```python
import torch

def _softmax(x, axis=-1):
    return torch.softmax(x, dim=axis)

def _gelu(x):
    return torch.nn.functional.gelu(x, approximate='tanh')

def _silu(x):
    return torch.nn.functional.silu(x)

def _sigmoid(x):
    return torch.sigmoid(x)

def _layernorm(x, axis=-1, eps=1e-05):
    m = x.mean(dim=axis, keepdim=True)
    v = x.var(dim=axis, keepdim=True, unbiased=False)
    return (x - m) / torch.sqrt(v + eps)

def _scatter_add(tgt, idx, src, axis=0):
    return tgt.clone().index_add_(axis, idx, src)

def _segment_sum(src, seg, n):
    out = torch.zeros((n,) + src.shape[1:], dtype=src.dtype)
    return out.index_add_(0, seg, src)

def _pad(x, pw):
    flat = tuple((v for pair in reversed(pw) for v in pair))
    return torch.nn.functional.pad(x, flat)
kernel_name = 'adaLN_cond__sliding_block_cached__mixer_s_mlp__prompt'

def setup_inputs():

    _w = lambda a: (lambda t: t.to(torch.bfloat16) if t.is_floating_point() else t)(torch.as_tensor(a))

    def _A_setup():
        B, Sq, D = (1, 2048, 512)
        Hq, Hkv, Sk, Dh = (32, 8, 2048, 128)
        assert Hq % Hkv == 0, (Hq, Hkv)
        return {'x': _w((lambda *s: torch.randn(*s, dtype=torch.bfloat16) * 0.05)(B, Sq, D)), 'k_cache': _w((lambda *s: torch.randn(*s, dtype=torch.bfloat16) * 3.2)(B, Hkv, Sk, Dh)), 'v_cache': _w((lambda *s: torch.randn(*s, dtype=torch.bfloat16) * 0.4)(B, Hkv, Sk, Dh)), 'wq': _w((lambda *s: torch.randn(*s, dtype=torch.bfloat16) * 3.2)(D, Hq * Dh) * D ** (-0.5)), 'wo': _w((lambda *s: torch.randn(*s, dtype=torch.bfloat16) * 0.4)(Hq * Dh, D) * (Hq * Dh) ** (-0.5))}
    _A_in = _A_setup()

    def _B_setup():
        B, S, D, F = (1, 2048, 512, 1792)
        return {'x': _w((lambda *s: torch.randn(*s, dtype=torch.bfloat16) * 0.05)(B, S, D)), 'w1': _w((lambda *s: torch.randn(*s, dtype=torch.bfloat16) * 3.2)(D, D) * D ** (-0.5)), 'w2': _w((lambda *s: torch.randn(*s, dtype=torch.bfloat16) * 3.2)(D, D) * D ** (-0.5)), 'w3': _w((lambda *s: torch.randn(*s, dtype=torch.bfloat16) * 3.2)(D, F) * D ** (-0.5)), 'w4': _w((lambda *s: torch.randn(*s, dtype=torch.bfloat16) * 3.2)(F, D) * F ** (-0.5))}
    _B_in = _B_setup()
    return {'A_x': _A_in['x'], 'A_k_cache': _A_in['k_cache'], 'A_v_cache': _A_in['v_cache'], 'A_wq': _A_in['wq'], 'A_wo': _A_in['wo'], 'B_x': _B_in['x'], 'B_w1': _B_in['w1'], 'B_w2': _B_in['w2'], 'B_w3': _B_in['w3'], 'B_w4': _B_in['w4'], 'c': _w((lambda *s: torch.randn(*s, dtype=torch.bfloat16) * 0.1)(1, 512) * 8.0), 'w_mod': _w((lambda *s: torch.randn(*s, dtype=torch.bfloat16) * 0.1)(512, 6 * 512) * 512 ** (-0.5) * 8.0)}

def reference(A_x, A_k_cache, A_v_cache, A_wq, A_wo, B_x, B_w1, B_w2, B_w3, B_w4, c, w_mod):

    def _A_ref(x, k_cache, v_cache, wq, wo):
        B, Sq, D = x.shape
        Hq, Dh = (32, 128)
        Hkv, Sk = (k_cache.shape[1], k_cache.shape[2])
        W = min(4096, max(256, Sk // 4))
        rep = Hq // Hkv
        q = (lambda x, *d: x.permute(*d))((x @ wq).reshape(B, Sq, Hq, Dh), 0, 2, 1, 3)
        k = (lambda x, n, axis: torch.repeat_interleave(x, n, dim=axis))(k_cache[:, :, Sk - W:, :], rep, axis=1)
        v = (lambda x, n, axis: torch.repeat_interleave(x, n, dim=axis))(v_cache[:, :, Sk - W:, :], rep, axis=1)
        scores = torch.einsum('bhqd,bhkd->bhqk', q, k) * Dh ** (-0.5)
        p = _softmax(scores, axis=-1)
        o = torch.einsum('bhqk,bhkd->bhqd', p, v)
        return (lambda x, *d: x.permute(*d))(o, 0, 2, 1, 3).reshape(B, Sq, Hq * Dh) @ wo

    def _B_ref(x, w1, w2, w3, w4):
        B, S, D = x.shape
        h = _gelu(_layernorm(x, axis=-1) @ w1)
        c = D // 4
        g0 = _pad(h[:, :, 0 * c:1 * c], ((0, 0), (1, 0), (0, 0)))[:, :S, :]
        g1 = _pad(h[:, :, 1 * c:2 * c], ((0, 0), (0, 1), (0, 0)))[:, 1:, :]
        g2 = _pad(h[:, :, 2 * c:3 * c], ((0, 0), (2, 0), (0, 0)))[:, :S, :]
        g3 = _pad(h[:, :, 3 * c:], ((0, 0), (0, 2), (0, 0)))[:, 2:, :]
        hs = torch.concatenate([g0, g1, g2, g3], axis=-1) @ w2
        x1 = x + hs
        h2 = _gelu(_layernorm(x1, axis=-1) @ w3) @ w4
        return x1 + h2
    x = A_x
    mod = (_silu(c) @ w_mod).reshape(c.shape[0], 6, 1, -1)
    sa, ca, ga, sb, cb, gb = (mod[:, 0].clone(), mod[:, 1].clone(), mod[:, 2].clone(), mod[:, 3].clone(), mod[:, 4].clone(), mod[:, 5].clone())
    h = _layernorm(x, axis=-1) * (1 + ca) + sa
    x = x + ga * _A_ref(h, A_k_cache, A_v_cache, A_wq, A_wo)
    h = _layernorm(x, axis=-1) * (1 + cb) + sb
    x = x + gb * _B_ref(h, B_w1, B_w2, B_w3, B_w4)
    return x
```

```python
import re

TRANS = ('v_exp_f32','v_log_f32','v_rcp_f32','v_rsq_f32','v_sqrt_f32','v_sin_f32','v_cos_f32','v_rcp_iflag_f32')

def parse_regs(tok):
    tok = tok.strip()
    tok = tok.lstrip('-')
    m = re.fullmatch(r'abs\((.*)\)', tok)
    if m: tok = m.group(1)
    m = re.fullmatch(r'\|(.*)\|', tok)
    if m: tok = m.group(1)
    m = re.fullmatch(r'([vsa])\[(\d+):(\d+)\]', tok)
    if m:
        return [(m.group(1), i) for i in range(int(m.group(2)), int(m.group(3))+1)]
    m = re.fullmatch(r'([vsa])(\d+)', tok)
    if m:
        return [(m.group(1), int(m.group(2)))]
    if tok in ('vcc',): return [('x','vcc')]
    if tok in ('exec',): return [('x','exec')]
    if tok in ('m0',): return [('x','m0')]
    return []

def split_ops(s):
    ops = []; depth = 0; cur = ''
    for ch in s:
        if ch in '[(': depth += 1
        if ch in '])': depth -= 1
        if ch == ',' and depth == 0:
            ops.append(cur.strip()); cur = ''
        else:
            cur += ch
    if cur.strip(): ops.append(cur.strip())
    return ops

class Ins:
    __slots__ = ('text','mn','cls','reads','writes','srcC','passes','ws','isDPP','ldsdma','widestore')
    def __init__(self, text):
        self.text = text
        t = text.split(';')[0].strip()
        parts = t.split(None, 1)
        mn = parts[0]; self.mn = mn
        rest = parts[1] if len(parts) > 1 else ''
        ops = split_ops(rest)
        mods = ''
        if ops:
            last = ops[-1].split()
            if len(last) > 1:
                ops[-1] = last[0]; mods = ' '.join(last[1:])
        self.reads = []; self.writes = []; self.srcC = []; self.passes = 0; self.ws = 1
        self.isDPP = ('dpp' in mn) or ('row_' in mods) or ('quad_perm' in mods)
        self.ldsdma = False; self.widestore = False
        R = lambda i: parse_regs(ops[i]) if i < len(ops) else []
        if mn.startswith('v_mfma'):
            self.cls = 'mfma'
            self.writes = R(0); self.reads = R(1) + R(2) + R(3); self.srcC = R(3)
            self.passes = 8 if '32x32x16' in mn else 4
        elif mn.startswith('v_cmp'):
            self.cls = 'valu'; self.writes = R(0); self.reads = R(1) + R(2)
        elif mn.startswith('v_permlane') and 'swap' in mn:
            self.cls = 'valu'; self.writes = R(0) + R(1); self.reads = R(0) + R(1)
        elif mn in ('v_readfirstlane_b32','v_readlane_b32'):
            self.cls = 'valu'; self.writes = R(0); self.reads = R(1) + R(2)
        elif mn.startswith('v_add_co') or mn.startswith('v_sub_co') or mn.startswith('v_addc_co'):
            self.cls = 'valu'; self.writes = R(0) + R(1); self.reads = sum([R(i) for i in range(2, len(ops))], [])
        elif mn == 'v_nop':
            self.cls = 'valu'
        elif mn.startswith('v_'):
            self.cls = 'trans' if any(mn.startswith(x) for x in TRANS) else 'valu'
            self.writes = R(0); self.reads = sum([R(i) for i in range(1, len(ops))], [])
            if mn.startswith('v_fmac') or mn.startswith('v_dot2c') or mn.startswith('v_mac') or self.isDPP or mn.startswith('v_writelane'):
                self.reads += R(0)
            if mn.startswith('v_cndmask') and len(ops) == 3: self.reads += [('x','vcc')]
        elif mn.startswith('ds_read') or mn.startswith('ds_bpermute') or mn.startswith('ds_swizzle') or mn.startswith('ds_permute'):
            self.cls = 'dsr'; self.writes = R(0); self.reads = sum([R(i) for i in range(1, len(ops))], [])
        elif mn.startswith('ds_write') or mn.startswith('ds_add'):
            self.cls = 'dsw'; self.reads = sum([R(i) for i in range(len(ops))], [])
        elif mn.startswith('buffer_load') or mn.startswith('global_load'):
            if re.search(r'\blds\b', mods) or 'lds' in mn:
                self.cls = 'vmem_dma'; self.ldsdma = True
                self.reads = sum([R(i) for i in range(len(ops))], []) + [('x','m0')]
            else:
                self.cls = 'vmem_ld'; self.writes = R(0); self.reads = sum([R(i) for i in range(1, len(ops))], [])
        elif mn.startswith('buffer_store') or mn.startswith('global_store') or mn.startswith('buffer_atomic') or mn.startswith('global_atomic'):
            self.cls = 'vmem_st'; self.reads = sum([R(i) for i in range(len(ops))], [])
            self.widestore = ('x3' in mn or 'x4' in mn)
            if self.widestore:
                self.srcC = R(0) if mn.startswith('buffer') else R(1)
        elif mn.startswith('s_load') or mn.startswith('s_buffer_load'):
            self.cls = 'smem'; self.writes = R(0); self.reads = R(1)
        elif mn == 's_nop':
            self.cls = 'nop'; self.ws = int(ops[0], 0) + 1
        elif mn in ('s_waitcnt','s_barrier','s_setprio','s_endpgm','s_sleep') or mn.startswith('s_cbranch') or mn == 's_branch':
            self.cls = 'ctl'
        elif mn.startswith('s_cmp'):
            self.cls = 'salu'; self.reads = R(0) + R(1)
        elif mn.startswith('s_'):
            self.cls = 'salu'; self.writes = R(0); self.reads = sum([R(i) for i in range(1, len(ops))], [])
            if 'saveexec' in mn: self.writes += [('x','exec')]
        else:
            raise ValueError("unknown instr: " + text)

class Asm:
    def __init__(self):
        self.out = []
        self.hist = []
        self.pos = 0
        self.lds_q = []
        self.vm_q = []
        self.nnop = 0
        self.ninstr = 0
    def raw(self, s):
        self.out.append(s)
    def label(self, name):
        self.out.append(name + ':')
        self.hist = [(p, self.pos) for (p, _) in self.hist]
        for attr in ('lds_q', 'vm_q'):
            q = getattr(self, attr)
            u = set()
            for d in q:
                if d: u |= d
            setattr(self, attr, [u] if u else [])
    def comment(self, s):
        self.out.append('    ; ' + s)
    def barrier_state(self):
        self._emit_nop(16)
    def _emit_nop(self, n):
        while n > 0:
            k = min(n, 16)
            self.out.append(f'    s_nop {k-1}')
            self.pos += k; n -= k; self.nnop += 1
    def _need(self, ins):
        need = 0
        rd = set(ins.reads); wr = set(ins.writes)
        for (p, pend) in reversed(self.hist):
            dist = self.pos - pend
            if dist >= 24: break
            pw = set(p.writes)
            req = 0
            isvalu = p.cls in ('valu','trans')
            if isvalu:
                vw = {r for r in pw if r[0] in 'va'}
                sw = {r for r in pw if r[0] == 's' or r == ('x','vcc')}
                if ins.cls == 'mfma' and vw & rd: req = max(req, 2)
                if ins.mn.startswith('v_permlane') and vw & rd: req = max(req, 2)
                if ins.mn in ('v_readfirstlane_b32','v_readlane_b32') and vw & rd: req = max(req, 1)
                if ins.isDPP and vw & rd: req = max(req, 2)
                if p.cls == 'trans' and ins.cls in ('valu','mfma','vmem_st','dsw','dsr','vmem_ld','vmem_dma') and vw & (rd|wr): req = max(req, 1)
                if sw & rd:
                    if ins.cls in ('valu','trans'): req = max(req, 2)
                    if ins.cls.startswith('vmem'): req = max(req, 5)
                    if ins.mn in ('v_readlane_b32','v_writelane_b32'): req = max(req, 4)
                    if ins.cls in ('salu',): req = max(req, 1)
            if p.cls == 'mfma':
                big = 12 if p.passes == 8 else 8
                ovl = 10 if p.passes == 8 else 6
                war = 7 if p.passes == 8 else 3
                if ins.cls == 'mfma':
                    a_b = set(ins.reads) - set(ins.srcC)
                    ab = set(parse_regs(split_ops(ins.text.split(None,1)[1])[1]) + parse_regs(split_ops(ins.text.split(None,1)[1])[2]))
                    if pw & ab: req = max(req, big)
                    c = set(ins.srcC)
                    if pw & c:
                        if c == pw and p.passes == ins.passes: pass
                        else: req = max(req, ovl)
                    elif pw & wr:
                        req = max(req, ovl)
                else:
                    if pw & (rd | wr): req = max(req, big)
                    if ins.cls in ('valu','trans','dsr','vmem_ld') and set(p.srcC) & wr: req = max(req, war)
            if p.cls == 'salu' and ('x','m0') in pw and ins.ldsdma: req = max(req, 1)
            if p.cls == 'vmem_st' and p.widestore and set(p.srcC) & wr:
                req = max(req, 2 if ins.cls in ('valu','trans','mfma') else 1)
            if req > dist: need = max(need, req - dist)
        return need
    def _autowait(self, ins):
        touched = set(ins.reads) | set(ins.writes)
        k = None
        for i, d in enumerate(self.lds_q):
            if d and (d & touched): k = i
        lg = None; vm = None
        if k is not None:
            lg = len(self.lds_q) - 1 - k
            self.lds_q = self.lds_q[k+1:]
        k = None
        for i, d in enumerate(self.vm_q):
            if d and (d & touched): k = i
        if k is not None:
            vm = len(self.vm_q) - 1 - k
            self.vm_q = self.vm_q[k+1:]
        if lg is not None or vm is not None:
            s = 's_waitcnt'
            if vm is not None: s += f' vmcnt({min(vm,63)})'
            if lg is not None: s += f' lgkmcnt({min(lg,15)})'
            self._put(Ins(s))
    def _put(self, ins):
        self.out.append('    ' + ins.text)
        self.pos += ins.ws
        self.hist.append((ins, self.pos))
        if len(self.hist) > 64: self.hist = self.hist[-48:]
        self.ninstr += 1
    def I(self, text):
        if '\n' in text:
            for t in text.split('\n'): self.I(t)
            return
        ins = Ins(text)
        if ins.mn == 's_waitcnt':
            m = re.search(r'vmcnt\((\d+)\)', text)
            if m:
                n = int(m.group(1));
                if len(self.vm_q) > n: self.vm_q = self.vm_q[len(self.vm_q)-n:] if n else []
            m = re.search(r'lgkmcnt\((\d+)\)', text)
            if m:
                n = int(m.group(1))
                if len(self.lds_q) > n: self.lds_q = self.lds_q[len(self.lds_q)-n:] if n else []
            self._put(ins); return
        self._autowait(ins)
        n = self._need(ins)
        if n > 0: self._emit_nop(n)
        self._put(ins)
        if ins.cls == 'dsr': self.lds_q.append(set(ins.writes))
        elif ins.cls == 'dsw': self.lds_q.append(set(r for r in ins.reads if r[0]=='v') and None)
        elif ins.cls == 'vmem_ld': self.vm_q.append(set(ins.writes))
        elif ins.cls in ('vmem_dma','vmem_st'): self.vm_q.append(None)
    def vm_outstanding(self):
        return len(self.vm_q)
    def text(self):
        return '\n'.join(self.out) + '\n'

def merge(*streams):
    streams = [s for s in streams if s]
    if not streams: return []
    total = max(len(s) for s in streams)
    idx = [0]*len(streams)
    out = []
    n = sum(len(s) for s in streams)
    while len(out) < n:
        best = None; bf = None
        for i, s in enumerate(streams):
            if idx[i] < len(s):
                f = (idx[i] + 0.5) / len(s)
                if bf is None or f < bf: bf = f; best = i
        out.append(streams[best][idx[best]]); idx[best] += 1
    return out
```

```python
from asmlib import *
NAME = "adaLN_cond__sliding_block_cached__mixer_s_mlp__prompt"
KA_X, KA_K, KA_V, KA_WQ, KA_WO, KA_BX, KA_W1, KA_W2, KA_W3, KA_W4, KA_C, KA_WMOD, KA_OUT, KA_DBG, KA_WS = [8*i for i in range(15)]
WS_H   = 0x0000000
WS_MOD = 0x0200000
WS_CS1 = 0x0202000
WS_CS3 = 0x0203000
WS_P   = 0x0400000
WS_X1  = 0x1400000
WS_HB  = 0x1600000
WS_T   = 0x1800000
WS_X1B = 0x1A00000
WS_ST4 = 0x1C00000
WS_T2  = 0x2000000
WS_SIZE = 268435456

def f32bits(x):
    import struct
    return struct.unpack('<I', struct.pack('<f', x))[0]

def kernel_header(a, name):
    a.raw(f'.globl {name}')
    a.raw('.p2align 8')
    a.raw(f'.type {name},@function')
    a.raw(f'{name}:')

def kernel_desc(name, vgpr, sgpr=96, accum=None):
    acc = accum if accum else (vgpr + 3)//4*4
    return f'''.p2align 6
.amdhsa_kernel {name}
  .amdhsa_next_free_vgpr {vgpr}
  .amdhsa_next_free_sgpr {sgpr}
  .amdhsa_accum_offset {acc}
  .amdhsa_group_segment_fixed_size 0
  .amdhsa_kernarg_size 120
  .amdhsa_user_sgpr_count 2
  .amdhsa_user_sgpr_kernarg_segment_ptr 1
  .amdhsa_system_sgpr_workgroup_id_x 1
  .amdhsa_float_denorm_mode_32 3
.end_amdhsa_kernel
'''

def srd(a, d, lo, hi, nbytes, add=0):
    if add:
        a.I(f's_add_u32 s{d}, s{lo}, {add:#x}')
        a.I(f's_addc_u32 s{d+1}, s{hi}, 0')
    else:
        a.I(f's_mov_b32 s{d}, s{lo}')
        a.I(f's_mov_b32 s{d+1}, s{hi}')
    a.I(f's_mov_b32 s{d+2}, {nbytes:#x}')
    a.I(f's_mov_b32 s{d+3}, 0x00020000')

def rnd_bf16(a, dst, src):
    a.I(f'v_cvt_pk_bf16_f32 v{dst}, 0, v{src}')
```

```python
from common import *

def gen_k0(name):
    a = Asm()
    kernel_header(a, name)
    I = a.I
    I('s_cmp_ge_u32 s2, 290')
    I('s_cbranch_scc1 K0_end')
    I(f's_load_dwordx2 s[4:5], s[0:1], {KA_X}')
    I(f's_load_dwordx4 s[8:11], s[0:1], {KA_C}')
    I(f's_load_dwordx2 s[12:13], s[0:1], {KA_W1}')
    I(f's_load_dwordx2 s[14:15], s[0:1], {KA_W3}')
    I(f's_load_dwordx2 s[16:17], s[0:1], {KA_WS}')
    I('v_and_b32 v1, 15, v0')
    I('v_lshrrev_b32 v2, 4, v0')
    I('s_waitcnt lgkmcnt(0)')
    I('s_cmp_lt_u32 s2, 256')
    I('s_cbranch_scc0 K0_j1')
    I('s_mov_b32 s20, s10'); I('s_mov_b32 s21, s11'); I(f's_mov_b32 s22, {512*6144}')
    I('s_movk_i32 s24, 6144')
    I('s_and_b32 s25, s2, 7'); I('s_lshl_b32 s25, s25, 7')
    I('s_movk_i32 s26, 1024'); I('s_mov_b32 s27, 0'); I('s_mov_b32 s28, 0')
    I('s_branch K0_jd')
    a.label('K0_j1')
    I('s_cmp_lt_u32 s2, 272')
    I('s_cbranch_scc0 K0_j2')
    I('s_mov_b32 s20, s10'); I('s_mov_b32 s21, s11'); I(f's_mov_b32 s22, {512*6144}')
    I('s_movk_i32 s24, 6144')
    I('s_sub_u32 s29, s2, 256')
    I('s_lshl_b32 s25, s29, 8'); I('s_add_u32 s25, s25, 2048')
    I('s_movk_i32 s26, 128'); I('s_mov_b32 s27, 1')
    I('s_lshl_b32 s28, s29, 9'); I(f's_add_u32 s28, s28, {WS_MOD:#x}')
    I('s_branch K0_jd')
    a.label('K0_j2')
    I('s_cmp_lt_u32 s2, 276')
    I('s_cbranch_scc0 K0_j3')
    I('s_mov_b32 s20, s12'); I('s_mov_b32 s21, s13'); I(f's_mov_b32 s22, {512*1024}')
    I('s_movk_i32 s24, 1024')
    I('s_sub_u32 s29, s2, 272')
    I('s_lshl_b32 s25, s29, 8')
    I('s_movk_i32 s26, 128'); I('s_mov_b32 s27, 2')
    I('s_lshl_b32 s28, s29, 9'); I(f's_add_u32 s28, s28, {WS_CS1:#x}')
    I('s_branch K0_jd')
    a.label('K0_j3')
    I('s_mov_b32 s20, s14'); I('s_mov_b32 s21, s15'); I(f's_mov_b32 s22, {512*3584}')
    I('s_movk_i32 s24, 3584')
    I('s_sub_u32 s29, s2, 276')
    I('s_lshl_b32 s25, s29, 8')
    I('s_movk_i32 s26, 128'); I('s_mov_b32 s27, 2')
    I('s_lshl_b32 s28, s29, 9'); I(f's_add_u32 s28, s28, {WS_CS3:#x}')
    a.label('K0_jd')
    I('s_mov_b32 s23, 0x00020000')
    srd(a, 32, 4, 5, 2048*1024)
    srd(a, 36, 8, 9, 1024)
    srd(a, 40, 16, 17, WS_SIZE)
    I('s_lshl_b32 s29, s24, 4')
    I('v_mul_lo_u32 v3, v2, s29')
    I('v_and_b32 v4, 7, v1')
    I('v_lshlrev_b32 v4, 4, v4')
    I('v_lshrrev_b32 v5, 3, v1')
    I('v_mul_lo_u32 v5, v5, s26')
    I('v_add3_u32 v3, v3, v4, v5')
    I('v_add_u32 v3, s25, v3')
    I('v_lshlrev_b32 v6, 5, v2')
    I('buffer_load_dwordx4 v[8:11], v6, s[36:39], 0 offen')
    I('buffer_load_dwordx4 v[12:15], v6, s[36:39], 0 offen offset:16')
    I('s_mov_b32 s29, 0')
    for i in range(16):
        I(f'buffer_load_dwordx4 v[{32+4*i}:{35+4*i}], v3, s[20:23], s29 offen')
        if i < 15: I('s_add_u32 s29, s29, s24')
    I('s_lshr_b32 s30, s2, 3')
    I('s_min_u32 s30, s30, 31')
    I('s_and_b32 s31, s2, 7')
    I('v_lshrrev_b32 v7, 3, v0')
    I('v_and_b32 v4, 7, v0')
    I('v_lshlrev_b32 v5, 10, v7')
    I('v_lshl_add_u32 v5, v4, 4, v5')
    I('s_lshl_b32 s29, s30, 16')
    for i in range(8):
        I(f'buffer_load_dwordx4 v[{96+4*i}:{99+4*i}], v5, s[32:35], s29 offen offset:{128*i}')
    I('s_lshl_b32 s44, s31, 7')
    I('s_add_u32 s44, s44, s29')
    I('buffer_load_dwordx4 v[24:27], v5, s[32:35], s44 offen')
    W = 128
    log2e = f32bits(1.4426950408889634)
    I(f's_mov_b32 s45, {log2e:#x}')
    I('s_mov_b32 s46, 0xffff0000')
    for i in range(16):
        src = 8 + i//2
        if i % 2 == 0: I(f'v_lshlrev_b32 v{W+i}, 16, v{src}')
        else: I(f'v_and_b32 v{W+i}, s46, v{src}')
    for i in range(16):
        I(f'v_mul_f32 v{16+(i%8)}, s45, v{W+i}')
        I(f'v_exp_f32 v{16+(i%8)}, -v{16+(i%8)}')
        I(f'v_add_f32 v{16+(i%8)}, 1.0, v{16+(i%8)}')
        I(f'v_rcp_f32 v{16+(i%8)}, v{16+(i%8)}')
        I(f'v_mul_f32 v{W+i}, v{W+i}, v{16+(i%8)}')
        rnd_bf16(a, W+i, W+i)
    I('s_cmp_eq_u32 s27, 2')
    I('s_cbranch_scc0 K0_w')
    for i in range(16): I(f'v_mov_b32 v{W+i}, 1.0')
    a.label('K0_w')
    for e in range(8): I(f'v_mov_b32 v{16+e}, 0')
    for i in range(16):
        for d in range(4):
            r = 32 + 4*i + d
            I(f'v_lshlrev_b32 v28, 16, v{r}')
            I(f'v_and_b32 v29, s46, v{r}')
            I(f'v_fmac_f32 v{16+2*d}, v{W+i}, v28')
            I(f'v_fmac_f32 v{17+2*d}, v{W+i}, v29')
    I('v_lshlrev_b32 v28, 9, v2')
    I('v_lshl_add_u32 v28, v1, 5, v28')
    I('ds_write_b128 v28, v[16:19]')
    I('ds_write_b128 v28, v[20:23] offset:16')
    I('v_mov_b32 v30, 0'); I('v_mov_b32 v31, 0')
    for i in range(32):
        r = 96 + i
        I(f'v_lshlrev_b32 v28, 16, v{r}')
        I(f'v_and_b32 v29, s46, v{r}')
        I('v_add_f32 v30, v30, v28')
        I('v_add_f32 v31, v31, v29')
    I('v_add_f32 v30, v30, v31')
    def red8(r, t):
        I(f'v_add_f32_dpp v{t}, v{r}, v{r} quad_perm:[1,0,3,2] row_mask:0xf bank_mask:0xf')
        I(f'v_add_f32_dpp v{r}, v{t}, v{t} quad_perm:[2,3,0,1] row_mask:0xf bank_mask:0xf')
        I(f'v_add_f32_dpp v{t}, v{r}, v{r} row_half_mirror row_mask:0xf bank_mask:0xf')
        I(f'v_mov_b32 v{r}, v{t}')
    red8(30, 31)
    I(f'v_mul_f32 v30, {f32bits(1.0/512):#x}, v30')
    I('v_mov_b32 v32, 0'); I('v_mov_b32 v33, 0')
    for i in range(32):
        r = 96 + i
        I(f'v_lshlrev_b32 v28, 16, v{r}')
        I(f'v_and_b32 v29, s46, v{r}')
        I('v_sub_f32 v28, v28, v30')
        I('v_sub_f32 v29, v29, v30')
        I('v_fmac_f32 v32, v28, v28')
        I('v_fmac_f32 v33, v29, v29')
    I('v_add_f32 v32, v32, v33')
    red8(32, 33)
    I(f'v_mul_f32 v32, {f32bits(1.0/512):#x}, v32')
    rnd_bf16(a, 30, 30)
    rnd_bf16(a, 32, 32)
    I(f'v_add_f32 v32, {f32bits(1e-5):#x}, v32')
    rnd_bf16(a, 32, 32)
    I('v_sqrt_f32 v32, v32')
    rnd_bf16(a, 32, 32)
    I('v_rcp_f32 v32, v32')
    for d in range(4):
        I(f'v_lshlrev_b32 v{40+2*d}, 16, v{24+d}')
        I(f'v_and_b32 v{41+2*d}, s46, v{24+d}')
    for e in range(8):
        I(f'v_sub_f32 v{40+e}, v{40+e}, v30')
        rnd_bf16(a, 40+e, 40+e)
        I(f'v_mul_f32 v{40+e}, v{40+e}, v32')
        rnd_bf16(a, 40+e, 40+e)
    I('s_waitcnt lgkmcnt(0)')
    I('s_barrier')
    I('v_cmp_gt_u32 vcc, 128, v0')
    I('s_and_saveexec_b64 s[48:49], vcc')
    I('s_cbranch_execz K0_r')
    I('v_lshlrev_b32 v28, 2, v0')
    for i in range(32):
        I(f'ds_read_b32 v{48+i}, v28 offset:{512*i}')
    for st in (16, 8, 4, 2, 1):
        for i in range(st):
            I(f'v_add_f32 v{48+i}, v{48+i}, v{48+i+st}')
    I('s_cmp_eq_u32 s27, 2')
    I('s_cbranch_scc1 K0_nr')
    rnd_bf16(a, 48, 48)
    a.label('K0_nr')
    I('ds_write_b32 v28, v48 offset:16384')
    I('s_cmp_eq_u32 s27, 0')
    I('s_cbranch_scc1 K0_r')
    I('buffer_store_dword v48, v28, s[40:43], s28 offen')
    a.label('K0_r')
    I('s_mov_b64 exec, s[48:49]')
    I('s_cmp_eq_u32 s27, 0')
    I('s_cbranch_scc0 K0_end')
    I('s_waitcnt lgkmcnt(0)')
    I('s_barrier')
    I('v_lshlrev_b32 v28, 5, v4')
    I('ds_read_b128 v[48:51], v28 offset:16384')
    I('ds_read_b128 v[52:55], v28 offset:16400')
    I('ds_read_b128 v[56:59], v28 offset:16640')
    I('ds_read_b128 v[60:63], v28 offset:16656')
    for e in range(8):
        I(f'v_add_f32 v{56+e}, 1.0, v{56+e}')
        rnd_bf16(a, 56+e, 56+e)
        I(f'v_mul_f32 v{40+e}, v{40+e}, v{56+e}')
        rnd_bf16(a, 40+e, 40+e)
        I(f'v_add_f32 v{40+e}, v{40+e}, v{48+e}')
    for d in range(4):
        I(f'v_cvt_pk_bf16_f32 v{64+d}, v{40+2*d}, v{41+2*d}')
    I('v_lshrrev_b32 v28, 5, v7')
    I('v_lshlrev_b32 v28, 15, v28')
    I('v_lshrrev_b32 v29, 1, v4')
    I('v_lshl_add_u32 v28, v29, 10, v28')
    I('v_and_b32 v29, 1, v4')
    I('v_lshl_add_u32 v28, v29, 9, v28')
    I('v_and_b32 v29, 31, v7')
    I('v_lshl_add_u32 v28, v29, 4, v28')
    I('s_lshl_b32 s29, s30, 16')
    I('s_lshl_b32 s44, s31, 12')
    I('s_add_u32 s29, s29, s44')
    I(f'buffer_store_dwordx4 v[64:67], v28, s[40:43], s29 offen')
    a.label('K0_end')
    I('s_endpgm')
    return a.text(), kernel_desc(name, 144, 64)
```

```python
from common import *

SLOT = 32768
def slot_of(c): return (c % 5) * SLOT

def gen_k1(name, stamps=False):
    a = Asm()
    nst = [0]
    def stamp():
        if not stamps: return
        a.I('s_memtime s[54:55]'); a.I('s_waitcnt lgkmcnt(0)'); a.I(f's_mov_b32 s{64+nst[0]}, s54'); nst[0] += 1
    kernel_header(a, name)
    I = a.I
    vX = [1,2,3,4]
    vWA = [5,6,7,8]
    vKA = [9,10,11,12,13,14,15,16]
    vT0, vT1, vT2, vT3 = 17,18,19,20
    vMX = 21; vNEGM = 22; vL = [23,24,25,26]
    vLANE16 = 27
    vKD = [28,29,30,31]
    BIG = 32
    ACC = 160
    AF = 224
    QF = ACC
    SACC = ACC + 32
    I('s_cmp_ge_u32 s2, 256')
    I('s_cbranch_scc1 K1_end')
    I(f's_load_dwordx4 s[4:7], s[0:1], {KA_K}')
    I(f's_load_dwordx4 s[28:31], s[0:1], {KA_WQ}')
    I(f's_load_dwordx2 s[32:33], s[0:1], {KA_WS}')
    I('v_and_b32 v17, 63, v0')
    I('v_lshrrev_b32 v18, 6, v0')
    I('s_nop 0')
    I('v_readfirstlane_b32 s34, v18')
    I('s_and_b32 s35, s2, 7')
    I('s_lshr_b32 s36, s2, 3')
    I(f'v_lshlrev_b32 v{vLANE16}, 4, v17')
    for j in range(4):
        I(f'v_xor_b32 v{vX[j]}, {j<<6}, v{vLANE16}')
    I('s_waitcnt lgkmcnt(0)')
    stamp()
    if stamps:
        I('s_memrealtime s[54:55]'); I('s_waitcnt lgkmcnt(0)'); I('s_mov_b32 s90, s54')
    srd(a, 8, 28, 29, 512*8192)
    srd(a, 12, 4, 5, 8*2048*256)
    srd(a, 16, 6, 7, 8*2048*256)
    srd(a, 20, 30, 31, 4096*1024)
    srd(a, 24, 32, 33, WS_SIZE)
    I('s_and_b32 s37, s34, 3')
    I('s_lshr_b32 s38, s34, 2')
    I('s_lshl_b32 s39, s34, 12')
    I('s_lshl_b32 s40, s36, 16')
    I('s_lshl_b32 s41, s34, 13')
    I('s_add_u32 s40, s40, s41')
    I(f's_add_u32 s42, s41, {3*SLOT}')
    I('s_mov_b32 m0, s42')
    for j in range(4):
        I(f'buffer_load_dwordx4 v{vLANE16}, s[24:27], s40 offen offset:{1024*j} lds')
    I('s_add_u32 s40, s40, 4096')
    I('s_add_u32 s42, s42, 4096')
    I('s_mov_b32 m0, s42')
    for j in range(4):
        I(f'buffer_load_dwordx4 v{vLANE16}, s[24:27], s40 offen offset:{1024*j} lds')
    I('s_lshl_b32 s44, s35, 10')
    I('s_lshl_b32 s45, s34, 15')
    I('s_add_u32 s44, s44, s45')
    I('s_lshl_b32 s45, s35, 19')
    I(f's_add_u32 s45, s45, {1536*256}')
    I('s_add_u32 s45, s45, s39')
    I('s_lshl_b32 s46, s35, 19')
    I('s_add_u32 s46, s46, s39')

    def dma_chunk(c):
        L = []
        L.append(f's_add_u32 s47, s39, {slot_of(c)}')
        L.append('s_mov_b32 m0, s47')
        if c < 16:
            for j in range(4):
                L.append(f's_add_u32 s48, s44, {c*32*8192 + j*7168}')
                L.append(f'buffer_load_dwordx4 v{vX[j]}, s[8:11], s48 offen offset:{1024*j} lds')
        elif c < 20:
            L.append(f's_add_u32 s48, s45, {(c-16)*32768}')
            for j in range(4):
                L.append(f'buffer_load_dwordx4 v{vKD[j]}, s[12:15], s48 offen offset:{1024*j} lds')
        elif c < 24:
            L.append(f's_add_u32 s48, s45, {(c-20)*32768}')
            for j in range(4):
                L.append(f'buffer_load_dwordx4 v{vKD[0]}, s[16:19], s48 offen offset:{1024*j} lds')
        else:
            L.append(f's_add_u32 s48, s46, {(c-24)*32768}')
            for j in range(4):
                L.append(f'buffer_load_dwordx4 v{vX[j]}, s[20:23], s48 offen offset:{1024*j} lds')
        return L
    for c in range(3):
        for s in dma_chunk(c): I(s)
    I('v_lshrrev_b32 v18, 5, v17')
    I('v_bfe_u32 v19, v17, 2, 2')
    I('v_lshl_add_u32 v20, v18, 3, v19')
    I('v_lshlrev_b32 v20, 10, v20')
    I('v_bfe_u32 v21, v17, 4, 1')
    I('v_lshl_add_u32 v20, v21, 5, v20')
    I('v_and_b32 v21, 1, v17')
    I('v_lshl_add_u32 v20, v21, 4, v20')
    I('v_bfe_u32 v21, v17, 1, 1')
    I('v_lshl_add_u32 v20, v21, 3, v20')
    I('s_lshl_b32 s48, s37, 8')
    I('v_add_u32 v22, s48, v20')
    for mt in range(4):
        I(f'v_xor_b32 v21, {mt}, v19')
        I(f'v_lshl_add_u32 v{vWA[mt]}, v21, 6, v22')
    I('v_and_b32 v21, 31, v17')
    I('v_and_b32 v22, 15, v17')
    I('v_xor_b32 v22, v22, v18')
    I('v_lshlrev_b32 v21, 8, v21')
    I(f'v_add_u32 v21, {slot_of(16)}, v21')
    for s in range(8):
        I(f'v_xor_b32 v23, {2*s}, v22')
        I(f'v_lshl_add_u32 v{vKA[s]}, v23, 4, v21')
    I('v_lshrrev_b32 v21, 4, v17')
    I('v_and_b32 v22, 15, v17')
    I('v_xor_b32 v22, v22, v21')
    I('v_lshlrev_b32 v21, 8, v21')
    for j in range(4):
        I(f'v_xor_b32 v23, {4*j}, v22')
        I(f'v_lshl_add_u32 v{vKD[j]}, v23, 4, v21')
    I('s_lshl_b32 s48, s38, 15')
    I(f's_add_u32 s48, s48, {3*SLOT}')
    I(f'v_add_u32 v{vT0}, s48, v{vLANE16}')
    I('s_waitcnt vmcnt(12)')
    I('s_barrier')
    stamp()
    for ks in range(32):
        I(f'ds_read_b128 v[{BIG+4*ks}:{BIG+4*ks+3}], v{vT0} offset:{1024*ks}')
    I('s_waitcnt lgkmcnt(0)')
    I('s_waitcnt vmcnt(4)')
    I('s_barrier')
    for c in (3, 4):
        for s in dma_chunk(c): I(s)

    def w_reads(buf, ks):
        L = []
        for mt in range(4):
            for t in range(2):
                d = AF + 16*buf + 4*mt + 2*t
                L.append(f'ds_read_b64_tr_b16 v[{d}:{d+1}], v{vWA[mt]} offset:{(16*ks + 4*t)*1024}')
        return L
    def w_advance(c_from, c_to):
        delta = slot_of(c_to) - slot_of(c_from)
        if delta >= 0: return [f'v_add_u32 v{vWA[mt]}, {delta}, v{vWA[mt]}' for mt in range(4)]
        return [f'v_subrev_u32 v{vWA[mt]}, {-delta}, v{vWA[mt]}' for mt in range(4)]
    def top_sync(c, nvm, issue):
        I(f's_waitcnt vmcnt({nvm})')
        I('s_barrier')
        return dma_chunk(issue) if issue is not None else []

    def gemm_phase(c0, first_reads_done, issue_map, nvm_map, tail_reads):
        for i in range(16):
            c = c0 + i
            extra = []
            if not (i == 0 and first_reads_done == 'nosync'):
                extra = top_sync(c, nvm_map[c], issue_map.get(c))
            for ks in range(2):
                kk = 2*i + ks
                buf = kk & 1
                if ks == 0:
                    pre = w_reads(buf ^ 1, 1)
                elif i < 15:
                    pre = w_advance(c, c+1) + w_reads(buf ^ 1, 0)
                else:
                    pre = tail_reads
                mf = []
                for mt in range(4):
                    d = ACC + 16*mt
                    cc = '0' if kk == 0 else f'v[{d}:{d+15}]'
                    mf.append(f'v_mfma_f32_32x32x16_bf16 v[{d}:{d+15}], v[{AF+16*buf+4*mt}:{AF+16*buf+4*mt+3}], v[{BIG+4*kk}:{BIG+4*kk+3}], {cc}')
                other = (extra if ks == 0 else []) + pre
                for s in merge(mf, other): I(s)

    def k_reads(t):
        L = []
        c = 16 + t//4
        for s in range(8):
            if t % 4 == 0 and t > 0:
                delta = slot_of(c) - slot_of(c-1)
                if delta >= 0: L.append(f'v_add_u32 v{vKA[s]}, {delta}, v{vKA[s]}')
                else: L.append(f'v_subrev_u32 v{vKA[s]}, {-delta}, v{vKA[s]}')
            L.append(f'ds_read_b128 v[{AF+4*s}:{AF+4*s+3}], v{vKA[s]} offset:{(t%4)*8192}')
        return L

    stamp()
    for s in w_reads(0, 0): I(s)
    issue_map = {c: c+4 for c in range(1, 36)}
    issue_map[23] = None
    nvm_map = {c: 8 for c in range(40)}
    gemm_phase(0, 'nosync', issue_map, nvm_map, [])
    stamp()
    kr0 = k_reads(0)
    for s in kr0: I(s)
    for j in range(32):
        I(f'v_cvt_pk_bf16_f32 v{QF+j}, v{ACC+2*j}, v{ACC+2*j+1}')
    scale = f32bits(128 ** -0.5)
    I(f's_mov_b32 s50, {scale:#x}')
    I(f's_mov_b32 s51, {f32bits(1.4426950408889634):#x}')
    I('s_mov_b32 s52, 0xffff0000')
    I(f'v_mov_b32 v{vMX}, 0xff800000')
    def s_post(t):
        b = SACC + 16*(t & 1)
        L = []
        for i in range(8):
            L.append(f'v_max3_f32 v{vMX}, v{b+2*i}, v{b+2*i+1}, v{vMX}')
        for i in range(8):
            L.append(f'v_cvt_pk_bf16_f32 v{b+2*i}, 0, v{b+2*i}')
            L.append(f'v_cvt_pk_bf16_f32 v{b+2*i+1}, 0, v{b+2*i+1}')
            L.append(f'v_mul_f32 v{b+2*i}, s50, v{b+2*i}')
            L.append(f'v_mul_f32 v{b+2*i+1}, s50, v{b+2*i+1}')
            L.append(f'v_cvt_pk_bf16_f32 v{BIG+8*t+i}, v{b+2*i}, v{b+2*i+1}')
        return L
    def v_addr_setup():
        L = []
        L.append(f'v_lshrrev_b32 v{vT0}, 4, v{vLANE16}')
        L.append(f'v_lshrrev_b32 v{vT1}, 5, v{vT0}')
        L.append(f'v_bfe_u32 v{vT2}, v{vT0}, 2, 2')
        L.append(f'v_lshl_add_u32 v{vT1}, v{vT1}, 2, v{vT2}')
        L.append(f'v_lshlrev_b32 v{vT1}, 8, v{vT1}')
        L.append(f'v_bfe_u32 v{vT3}, v{vT0}, 4, 1')
        L.append(f'v_lshl_add_u32 v{vT1}, v{vT3}, 5, v{vT1}')
        L.append(f'v_and_b32 v{vT3}, 1, v{vT0}')
        L.append(f'v_lshl_add_u32 v{vT1}, v{vT3}, 4, v{vT1}')
        L.append(f'v_bfe_u32 v{vT3}, v{vT0}, 1, 1')
        L.append(f'v_lshl_add_u32 v{vT1}, v{vT3}, 3, v{vT1}')
        L.append(f'v_add_u32 v{vT1}, {slot_of(20)}, v{vT1}')
        for mt in range(4):
            L.append(f'v_xor_b32 v{vT3}, {mt}, v{vT2}')
            L.append(f'v_lshl_add_u32 v{vWA[mt]}, v{vT3}, 6, v{vT1}')
        return L
    def v_dma_setup():
        L = []
        L.append(f'v_lshrrev_b32 v{vT0}, 8, v{vLANE16}')
        L.append(f'v_lshlrev_b32 v{vT1}, 6, v{vT0}')
        L.append(f'v_xor_b32 v{vKD[0]}, v{vT1}, v{vLANE16}')
        return L
    for s in v_dma_setup(): I(s)
    def v_reads(kap, buf):
        L = []
        c = 20 + kap//8; ks = kap % 8
        if ks == 0 and kap > 0:
            L += w_advance(c-1, c)
        for mt in range(4):
            for t in range(2):
                d = AF + 16*buf + 4*mt + 2*t
                L.append(f'ds_read_b64_tr_b16 v[{d}:{d+1}], v{vWA[mt]} offset:{(16*ks + 8*t)*256}')
        return L
    for t in range(16):
        c = 16 + t//4
        extra = []
        if t % 4 == 0:
            extra = top_sync(c, nvm_map[c], issue_map.get(c))
        b = SACC + 16*(t & 1)
        reads = k_reads(t+1) if t < 15 else []
        post = s_post(t-1) if t > 0 else []
        if t == 14: post = post + v_addr_setup()
        seq = []
        others = merge(extra, post)
        n_o = len(others); oi = 0
        ri = 0
        for s in range(8):
            cc = '0' if s == 0 else f'v[{b}:{b+15}]'
            seq.append(f'v_mfma_f32_32x32x16_bf16 v[{b}:{b+15}], v[{AF+4*s}:{AF+4*s+3}], v[{QF+4*s}:{QF+4*s+3}], {cc}')
            while ri < len(reads):
                seq.append(reads[ri]); ri += 1
                if reads[ri-1].startswith('ds_read'): break
            tgt = (n_o * (s+1)) // 8
            while oi < tgt:
                seq.append(others[oi]); oi += 1
        for s in seq: I(s)
    stamp()
    for s in v_reads(0, 0): I(s)
    for s in s_post(15): I(s)
    I(f'v_mov_b32 v{vT0}, v{vMX}')
    I(f'v_permlane32_swap_b32 v{vMX}, v{vT0}')
    I(f'v_max_f32 v{vMX}, v{vMX}, v{vT0}')
    I(f'v_cvt_pk_bf16_f32 v{vMX}, 0, v{vMX}')
    I(f'v_mul_f32 v{vMX}, s50, v{vMX}')
    I(f'v_cvt_pk_bf16_f32 v{vMX}, 0, v{vMX}')
    I(f'v_mul_f32 v{vNEGM}, s51, v{vMX}')
    I(f'v_sub_f32 v{vNEGM}, 0, v{vNEGM}')
    for l in vL: I(f'v_mov_b32 v{l}, 0')
    PT = vKA
    def p_comp(kap):
        L = []
        base = BIG + 4*kap
        for d in range(4):
            L.append(f'v_lshlrev_b32 v{PT[2*d]}, 16, v{base+d}')
            L.append(f'v_and_b32 v{PT[2*d+1]}, s52, v{base+d}')
        for e in range(8):
            L.append(f'v_fma_f32 v{PT[e]}, v{PT[e]}, s51, v{vNEGM}')
        for e in range(8):
            L.append(f'v_exp_f32 v{PT[e]}, v{PT[e]}')
        for d in range(4):
            L.append(f'v_add_f32 v{vL[d]}, v{vL[d]}, v{PT[2*d]}')
            L.append(f'v_cvt_pk_bf16_f32 v{base+d}, v{PT[2*d]}, v{PT[2*d+1]}')
            L.append(f'v_add_f32 v{vL[d]}, v{vL[d]}, v{PT[2*d+1]}')
        return L
    for s in p_comp(0): I(s)
    stamp()
    def w_addr_setup_p4():
        L = []
        L.append(f'v_lshrrev_b32 v{vT0}, 4, v{vLANE16}')
        L.append(f'v_lshrrev_b32 v{vT1}, 5, v{vT0}')
        L.append(f'v_bfe_u32 v{vT2}, v{vT0}, 2, 2')
        L.append(f'v_lshl_add_u32 v{vT1}, v{vT1}, 3, v{vT2}')
        L.append(f'v_lshlrev_b32 v{vT1}, 10, v{vT1}')
        L.append(f'v_bfe_u32 v{vT3}, v{vT0}, 4, 1')
        L.append(f'v_lshl_add_u32 v{vT1}, v{vT3}, 5, v{vT1}')
        L.append(f'v_and_b32 v{vT3}, 1, v{vT0}')
        L.append(f'v_lshl_add_u32 v{vT1}, v{vT3}, 4, v{vT1}')
        L.append(f'v_bfe_u32 v{vT3}, v{vT0}, 1, 1')
        L.append(f'v_lshl_add_u32 v{vT1}, v{vT3}, 3, v{vT1}')
        L.append('s_lshl_b32 s48, s37, 8')
        L.append(f's_add_u32 s48, s48, {slot_of(24)}')
        L.append(f'v_add_u32 v{vT1}, s48, v{vT1}')
        for mt in range(4):
            L.append(f'v_xor_b32 v{vT3}, {mt}, v{vT2}')
            L.append(f'v_lshl_add_u32 v{vWA[mt]}, v{vT3}, 6, v{vT1}')
        return L
    for kap in range(32):
        c = 20 + kap//8
        extra = []
        if kap % 8 == 0:
            extra = top_sync(c, nvm_map[c], issue_map.get(c))
        buf = kap & 1
        pre = v_reads(kap+1, buf ^ 1) if kap < 31 else []
        pc = p_comp(kap+1) if kap < 31 else []
        mf = []
        for mt in range(4):
            d = ACC + 16*mt
            cc = '0' if kap == 0 else f'v[{d}:{d+15}]'
            mf.append(f'v_mfma_f32_32x32x16_bf16 v[{d}:{d+15}], v[{AF+16*buf+4*mt}:{AF+16*buf+4*mt+3}], v[{BIG+4*kap}:{BIG+4*kap+3}], {cc}')
        for s in merge(mf, extra + pre, pc): I(s)
    stamp()
    for s in w_addr_setup_p4(): I(s)
    for s in w_reads(0, 0): I(s)
    I(f'v_add_f32 v{vL[0]}, v{vL[0]}, v{vL[1]}')
    I(f'v_add_f32 v{vL[2]}, v{vL[2]}, v{vL[3]}')
    I(f'v_add_f32 v{vL[0]}, v{vL[0]}, v{vL[2]}')
    I(f'v_mov_b32 v{vL[1]}, v{vL[0]}')
    I(f'v_permlane32_swap_b32 v{vL[0]}, v{vL[1]}')
    I(f'v_add_f32 v{vL[0]}, v{vL[0]}, v{vL[1]}')
    I(f'v_rcp_f32 v{vL[0]}, v{vL[0]}')
    for j in range(32):
        I(f'v_mul_f32 v{ACC+2*j}, v{ACC+2*j}, v{vL[0]}')
        I(f'v_mul_f32 v{ACC+2*j+1}, v{ACC+2*j+1}, v{vL[0]}')
        I(f'v_cvt_pk_bf16_f32 v{ACC+j}, v{ACC+2*j}, v{ACC+2*j+1}')
    assert slot_of(23) == slot_of(22) + SLOT
    I('s_lshl_b32 s48, s38, 15')
    I(f's_add_u32 s48, s48, {slot_of(22)}')
    I(f'v_add_u32 v{vT0}, s48, v{vLANE16}')
    I('s_lshl_b32 s49, s37, 13')
    I(f'v_add_u32 v{vT1}, s49, v{vT0}')
    I('s_barrier')
    for s in range(8):
        I(f'ds_write_b128 v{vT1}, v[{ACC+4*s}:{ACC+4*s+3}] offset:{1024*s}')
    I('s_waitcnt lgkmcnt(0)')
    I('s_barrier')
    for ks in range(32):
        I(f'ds_read_b128 v[{BIG+4*ks}:{BIG+4*ks+3}], v{vT0} offset:{1024*ks}')
    I('s_waitcnt lgkmcnt(0)')
    I('s_waitcnt vmcnt(4)')
    I('s_barrier')
    for c in (27, 28):
        for s in dma_chunk(c): I(s)
    stamp()
    nvm4 = dict(nvm_map)
    for c in range(24, 40):
        last_issued = min(39, c+3)
        nvm4[c] = max(0, 4*(last_issued - (c+1)))
    gemm_phase(24, 'nosync', issue_map, nvm4, [])
    stamp()
    I('s_lshl_b32 s48, s35, 21')
    I('s_lshl_b32 s49, s36, 16')
    I('s_add_u32 s48, s48, s49')
    I('s_lshl_b32 s49, s38, 15')
    I('s_add_u32 s48, s48, s49')
    I('s_lshl_b32 s49, s37, 13')
    I('s_add_u32 s48, s48, s49')
    I(f's_add_u32 s48, s48, {WS_P:#x}')
    I('s_add_u32 s49, s48, 4096')
    for j in range(32):
        I(f'v_cvt_pk_bf16_f32 v{BIG+j}, v{ACC+2*j}, v{ACC+2*j+1}')
        if j % 4 == 3:
            q = j // 4
            so = 's48' if q < 4 else 's49'
            I(f'buffer_store_dwordx4 v[{BIG+4*q}:{BIG+4*q+3}], v{vLANE16}, s[24:27], {so} offen offset:{1024*(q%4)}')
    if stamps:
        I('s_waitcnt vmcnt(0)')
        stamp()
        I('s_memrealtime s[54:55]'); I('s_waitcnt lgkmcnt(0)'); I(f's_mov_b32 s{64+nst[0]}, s54'); I(f's_mov_b32 s{65+nst[0]}, s90'); nst[0] += 2
        I('v_mov_b32 v200, 0')
        for i in range(nst[0]):
            I(f'v_writelane_b32 v200, s{64+i}, {i}')
        I('s_lshl_b32 s48, s2, 3'); I('s_add_u32 s48, s48, s34'); I('s_lshl_b32 s48, s48, 8')
        I(f's_add_u32 s48, s48, {0x8000000:#x}')
        I(f'v_lshrrev_b32 v201, 2, v{vLANE16}')
        I('buffer_store_dword v200, v201, s[24:27], s48 offen')
    a.label('K1_end')
    I('s_endpgm')
    print("K1 instrs", a.ninstr, "nops", a.nnop)
    return a.text(), kernel_desc(name, 256, 96)
```

```python
from common import *

LOG2E = 1.4426950408889634
def gelu_ops(x, t, sC0, sC1):
    return [
        f'v_mul_f32 v{t}, v{x}, v{x}',
        f'v_fma_f32 v{t}, v{t}, {sC1}, {sC0}',
        f'v_mul_f32 v{t}, v{t}, v{x}',
        f'v_exp_f32 v{t}, v{t}',
        f'v_add_f32 v{t}, 1.0, v{t}',
        f'v_rcp_f32 v{t}, v{t}',
        f'v_mul_f32 v{x}, v{x}, v{t}',
    ]

def ident_frags(a, lane, A0, A1, t0, t1, t2):
    I = a.I
    I(f'v_and_b32 v{t0}, 31, v{lane}')
    I(f'v_and_b32 v{t1}, 0x13, v{t0}')
    I(f'v_bfe_u32 v{t2}, v{t0}, 2, 1')
    I(f'v_lshl_or_b32 v{t1}, v{t2}, 3, v{t1}')
    I(f'v_bfe_u32 v{t2}, v{t0}, 3, 1')
    I(f'v_lshl_or_b32 v{t1}, v{t2}, 2, v{t1}')
    I(f'v_lshrrev_b32 v{t0}, 5, v{lane}')
    I(f'v_lshlrev_b32 v{t0}, 3, v{t0}')
    I(f'v_sub_u32 v{t1}, v{t1}, v{t0}')
    for which, A in ((0, A0), (1, A1)):
        for dw in range(4):
            I(f'v_mov_b32 v{A+dw}, 0')
            I(f'v_cmp_eq_u32 vcc, {16*which + 2*dw}, v{t1}')
            I(f'v_mov_b32 v{t2}, 0x3f80')
            I(f'v_cndmask_b32 v{A+dw}, v{A+dw}, v{t2}, vcc')
            I(f'v_cmp_eq_u32 vcc, {16*which + 2*dw + 1}, v{t1}')
            I(f'v_mov_b32 v{t2}, 0x3f800000')
            I(f'v_cndmask_b32 v{A+dw}, v{A+dw}, v{t2}, vcc')

def half_sum(a, r, t):
    a.I(f'v_mov_b32 v{t}, v{r}')
    a.I(f'v_permlane32_swap_b32 v{r}, v{t}')
    a.I(f'v_add_f32 v{r}, v{r}, v{t}')

def ln_rstd(a, var, mean):
    rnd_bf16(a, mean, mean)
    rnd_bf16(a, var, var)
    a.I(f'v_add_f32 v{var}, {f32bits(1e-5):#x}, v{var}')
    rnd_bf16(a, var, var)
    a.I(f'v_sqrt_f32 v{var}, v{var}')
    rnd_bf16(a, var, var)
    a.I(f'v_rcp_f32 v{var}, v{var}')

def gen_k2(name):
    a = Asm()
    kernel_header(a, name)
    I = a.I
    HB = 131072
    vLANE, vL16 = 1, 2
    A0, A1 = 4, 8
    T = [12,13,14,15,16,17,18,19]
    XR = 20
    GA = 36
    D = 68
    P = 100
    TB = 100; SB = 132
    I('s_cmp_ge_u32 s2, 256')
    I('s_cbranch_scc1 K2_end')
    I(f's_load_dwordx2 s[4:5], s[0:1], {KA_X}')
    I(f's_load_dwordx2 s[6:7], s[0:1], {KA_W1}')
    I(f's_load_dwordx2 s[32:33], s[0:1], {KA_WS}')
    I(f'v_and_b32 v{vLANE}, 63, v0')
    I('v_lshrrev_b32 v3, 6, v0')
    I('s_nop 0')
    I('v_readfirstlane_b32 s34, v3')
    I('s_and_b32 s35, s2, 7')
    I('s_lshr_b32 s36, s2, 3')
    I('s_lshl_b32 s35, s35, 3')
    I('s_lshr_b32 s37, s36, 2')
    I('s_add_u32 s35, s35, s37')
    I('s_and_b32 s36, s36, 3')
    I(f'v_lshlrev_b32 v{vL16}, 4, v{vLANE}')
    I('s_waitcnt lgkmcnt(0)')
    srd(a, 8, 4, 5, 2048*1024)
    srd(a, 12, 6, 7, 512*1024)
    srd(a, 24, 32, 33, WS_SIZE)
    I('s_lshl_b32 s40, s35, 15')
    I('s_lshl_b32 s41, s34, 12')
    I('s_add_u32 s40, s40, s41')
    I(f's_add_u32 s42, s40, {WS_P:#x}')
    for ct in range(2):
        for g in range(8):
            for s in range(2):
                r = P + 64*ct + 8*g + 4*s
                I(f's_add_u32 s43, s42, {g*2097152:#x}')
                I(f'buffer_load_dwordx4 v[{r}:{r+3}], v{vL16}, s[24:27], s43 offen offset:{1024*(2*ct+s)}')
    I(f'v_and_b32 v{T[0]}, 31, v{vLANE}')
    I(f'v_lshlrev_b32 v{T[0]}, 10, v{T[0]}')
    I(f'v_lshrrev_b32 v{T[1]}, 5, v{vLANE}')
    I(f'v_lshl_add_u32 v{T[0]}, v{T[1]}, 4, v{T[0]}')
    I('s_lshl_b32 s43, s35, 15')
    I('s_lshl_b32 s44, s34, 7')
    I('s_add_u32 s43, s43, s44')
    for s in range(4):
        I(f'buffer_load_dwordx4 v[{XR+4*s}:{XR+4*s+3}], v{T[0]}, s[8:11], s43 offen offset:{32*s}')
    I(f'v_lshlrev_b32 v{T[2]}, 5, v{T[1]}')
    I('s_lshl_b32 s44, s34, 8')
    I(f's_add_u32 s44, s44, {WS_MOD:#x}')
    for s in range(4):
        for h2 in range(2):
            r = GA + 8*s + 4*h2
            I(f'buffer_load_dwordx4 v[{r}:{r+3}], v{T[2]}, s[24:27], s44 offen offset:{64*s + 16*h2}')
    I(f'v_lshrrev_b32 v{T[3]}, 4, v{vLANE}')
    I(f'v_and_b32 v{T[4]}, 15, v{vLANE}')
    I(f'v_lshlrev_b32 v{T[5]}, 2, v{T[3]}')
    I(f'v_xor_b32 v{T[4]}, v{T[4]}, v{T[5]}')
    I(f'v_lshlrev_b32 v{T[4]}, 4, v{T[4]}')
    I(f'v_lshl_add_u32 v{T[4]}, v{T[3]}, 10, v{T[4]}')
    I('s_lshl_b32 s45, s34, 16')
    I('s_lshl_b32 s46, s36, 8')
    I('s_add_u32 s45, s45, s46')
    I('s_lshl_b32 s46, s34, 14')
    for j in range(16):
        I('s_mov_b32 m0, s46')
        I(f'buffer_load_dwordx4 v{T[4]}, s[12:15], s45 offen lds')
        if j < 15:
            I('s_add_u32 s45, s45, 4096')
            I('s_add_u32 s46, s46, 1024')
    ident_frags(a, vLANE, A0, A1, T[5], T[6], T[7])
    I('s_mov_b32 s52, 0xffff0000')
    for ct in range(2):
        d = D + 16*ct
        first = True
        for g in range(8):
            for s in range(2):
                r = P + 64*ct + 8*g + 4*s
                A = A0 if s == 0 else A1
                cc = '0' if first else f'v[{d}:{d+15}]'
                I(f'v_mfma_f32_32x32x16_bf16 v[{d}:{d+15}], v[{A}:{A+3}], v[{r}:{r+3}], {cc}')
                first = False
        if ct == 0:
            I('s_nop 7')
            for vec, base in ((2, TB), (1, SB)):
                I(f's_add_u32 s43, s44, {2048*vec}')
                for s in range(4):
                    for h2 in range(2):
                        r = base + 8*s + 4*h2
                        I(f'buffer_load_dwordx4 v[{r}:{r+3}], v{T[2]}, s[24:27], s43 offen offset:{64*s + 16*h2}')
    for e in range(32):
        r = D + e
        rnd_bf16(a, r, r)
        I(f'v_mul_f32 v{r}, v{r}, v{GA+e}')
        rnd_bf16(a, r, r)
        xr = XR + e//2
        if e % 2 == 0: I(f'v_lshlrev_b32 v{T[5]}, 16, v{xr}')
        else: I(f'v_and_b32 v{T[5]}, s52, v{xr}')
        I(f'v_add_f32 v{r}, v{r}, v{T[5]}')
        rnd_bf16(a, r, r)
    for j in range(16):
        I(f'v_cvt_pk_bf16_f32 v{XR+j}, v{D+2*j}, v{D+2*j+1}')
    I('s_lshr_b32 s47, s34, 1')
    I('s_cmp_eq_u32 s47, s36')
    I('s_cselect_b32 s47, 1, 0')
    I('s_cbranch_scc0 K2_ns1')
    I(f's_add_u32 s43, s40, {WS_X1:#x}')
    for s in range(4):
        I(f'buffer_store_dwordx4 v[{XR+4*s}:{XR+4*s+3}], v{vL16}, s[24:27], s43 offen offset:{1024*s}')
    a.label('K2_ns1')
    def local_stats(mean, m2):
        I(f'v_add_f32 v{mean}, v{D}, v{D+1}')
        I(f'v_add_f32 v{m2}, v{D+2}, v{D+3}')
        for e in range(4, 32, 2):
            I(f'v_add_f32 v{mean}, v{mean}, v{D+e}')
            I(f'v_add_f32 v{m2}, v{m2}, v{D+e+1}')
        I(f'v_add_f32 v{mean}, v{mean}, v{m2}')
        half_sum(a, mean, m2)
        I(f'v_mul_f32 v{mean}, {f32bits(1.0/64):#x}, v{mean}')
        I(f'v_mov_b32 v{m2}, 0'); I(f'v_mov_b32 v{T[7]}, 0')
        for e in range(0, 32, 2):
            I(f'v_sub_f32 v{T[5]}, v{D+e}, v{mean}')
            I(f'v_sub_f32 v{T[6]}, v{D+e+1}, v{mean}')
            I(f'v_fmac_f32 v{m2}, v{T[5]}, v{T[5]}')
            I(f'v_fmac_f32 v{T[7]}, v{T[6]}, v{T[6]}')
        I(f'v_add_f32 v{m2}, v{m2}, v{T[7]}')
        half_sum(a, m2, T[7])
    def exchange(area, mean, m2, R):
        I(f'v_and_b32 v{T[5]}, 31, v{vLANE}')
        I(f'v_lshlrev_b32 v{T[5]}, 3, v{T[5]}')
        I(f'v_add_u32 v{T[5]}, {area}, v{T[5]}')
        I('s_lshl_b32 s48, s34, 8')
        I(f'v_add_u32 v{T[6]}, s48, v{T[5]}')
        I(f'ds_write_b64 v{T[6]}, v[{mean}:{m2}]')
        I('s_waitcnt lgkmcnt(0)')
        I('s_barrier')
        for w in range(8):
            I(f'ds_read_b64 v[{R+2*w}:{R+2*w+1}], v{T[5]} offset:{256*w}')
        I(f'v_add_f32 v{mean}, v{R}, v{R+2}')
        I(f'v_add_f32 v{m2}, v{R+1}, v{R+3}')
        for w in range(2, 8):
            I(f'v_add_f32 v{mean}, v{mean}, v{R+2*w}')
            I(f'v_add_f32 v{m2}, v{m2}, v{R+2*w+1}')
        I(f'v_mul_f32 v{mean}, 0.125, v{mean}' if False else f'v_mul_f32 v{mean}, {f32bits(0.125):#x}, v{mean}')
        I(f'v_mov_b32 v{T[7]}, 0')
        for w in range(8):
            I(f'v_sub_f32 v{T[6]}, v{R+2*w}, v{mean}')
            I(f'v_fmac_f32 v{T[7]}, v{T[6]}, v{T[6]}')
        I(f'v_fmac_f32 v{m2}, {f32bits(64.0):#x}, v{T[7]}')
        I(f'v_mul_f32 v{m2}, {f32bits(1.0/512):#x}, v{m2}')
        ln_rstd(a, m2, mean)
    M, V = T[0], T[1]
    RX = GA
    local_stats(M, V)
    exchange(HB, M, V, RX)
    for e in range(32):
        r = D + e
        I(f'v_sub_f32 v{r}, v{r}, v{M}')
        rnd_bf16(a, r, r)
        I(f'v_mul_f32 v{r}, v{r}, v{V}')
        rnd_bf16(a, r, r)
        I(f'v_add_f32 v{TB+e}, 1.0, v{TB+e}')
        rnd_bf16(a, TB+e, TB+e)
        I(f'v_mul_f32 v{r}, v{r}, v{TB+e}')
        rnd_bf16(a, r, r)
        I(f'v_add_f32 v{r}, v{r}, v{SB+e}')
        rnd_bf16(a, r, r)
    for j in range(16):
        I(f'v_cvt_pk_bf16_f32 v{XR+j}, v{D+2*j}, v{D+2*j+1}')
    I('s_cmp_eq_u32 s47, 1')
    I('s_cbranch_scc0 K2_ns2')
    I(f's_add_u32 s43, s40, {WS_HB:#x}')
    for s in range(4):
        I(f'buffer_store_dwordx4 v[{XR+4*s}:{XR+4*s+3}], v{vL16}, s[24:27], s43 offen offset:{1024*s}')
    a.label('K2_ns2')
    M3, V3 = T[2], T[3]
    local_stats(M3, V3)
    exchange(HB + 2048, M3, V3, RX)
    I('s_waitcnt lgkmcnt(0)')
    I('s_barrier')
    I('s_lshl_b32 s48, s34, 12')
    I(f's_add_u32 s48, s48, {HB}')
    I(f'v_add_u32 v{T[5]}, s48, v{vL16}')
    for s in range(4):
        I(f'ds_write_b128 v{T[5]}, v[{XR+4*s}:{XR+4*s+3}] offset:{1024*s}')
    I('s_waitcnt vmcnt(0) lgkmcnt(0)')
    I('s_barrier')
    I('s_cmp_ge_u32 s34, 4')
    I('s_cbranch_scc1 K2_end')
    BF = 100
    AFR = 36
    ACC = 68
    CS = 20
    I(f'v_add_u32 v{T[5]}, {HB}, v{vL16}')
    I(f'v_lshrrev_b32 v{T[6]}, 5, v{vLANE}')
    I(f'v_lshlrev_b32 v{T[6]}, 5, v{T[6]}')
    I('s_lshl_b32 s48, s36, 9')
    I('s_lshl_b32 s49, s34, 7')
    I('s_add_u32 s48, s48, s49')
    I(f's_add_u32 s48, s48, {WS_CS1:#x}')
    for hf in range(2):
        for h2 in range(2):
            r = CS + 8*hf + 4*h2
            I(f'buffer_load_dwordx4 v[{r}:{r+3}], v{T[6]}, s[24:27], s48 offen offset:{64*hf + 16*h2}')
    I(f'v_lshrrev_b32 v{T[6]}, 5, v{vLANE}')
    I(f'v_bfe_u32 v{T[7]}, v{vLANE}, 2, 2')
    I(f'v_lshl_add_u32 v{T[6]}, v{T[6]}, 3, v{T[7]}')
    I(f'v_lshlrev_b32 v{T[6]}, 8, v{T[6]}')
    I(f'v_xor_b32 v{T[7]}, s34, v{T[7]}')
    I(f'v_lshl_add_u32 v{T[6]}, v{T[7]}, 6, v{T[6]}')
    I(f'v_bfe_u32 v{T[7]}, v{vLANE}, 4, 1')
    I(f'v_lshl_add_u32 v{T[6]}, v{T[7]}, 5, v{T[6]}')
    I(f'v_and_b32 v{T[7]}, 1, v{vLANE}')
    I(f'v_lshl_add_u32 v{T[6]}, v{T[7]}, 4, v{T[6]}')
    I(f'v_bfe_u32 v{T[7]}, v{vLANE}, 1, 1')
    I(f'v_lshl_add_u32 v{T[6]}, v{T[7]}, 3, v{T[6]}')
    I(f'v_add_u32 v{T[7]}, 65536, v{T[6]}')
    def rd(ks):
        L = [f'ds_read_b128 v[{BF+4*ks}:{BF+4*ks+3}], v{T[5]} offset:{1024*ks}']
        ar = T[6] if ks < 16 else T[7]
        for t in range(2):
            d = AFR + 4*(ks % 8) + 2*t
            L.append(f'ds_read_b64_tr_b16 v[{d}:{d+1}], v{ar} offset:{((16*(ks%16)) + 4*t)*256}')
        return L
    PRE = 4
    for ks in range(PRE):
        for s in rd(ks): I(s)
    for ks in range(32):
        cc = '0' if ks == 0 else f'v[{ACC}:{ACC+15}]'
        I(f'v_mfma_f32_32x32x16_bf16 v[{ACC}:{ACC+15}], v[{AFR+4*(ks%8)}:{AFR+4*(ks%8)+3}], v[{BF+4*ks}:{BF+4*ks+3}], {cc}')
        if ks + PRE < 32:
            for s in rd(ks + PRE): I(s)
    c0 = -2.0 * (2.0/3.141592653589793) ** 0.5 * LOG2E
    I(f's_mov_b32 s50, {f32bits(c0*0.044715):#x}')
    I(f'v_mov_b32 v{T[4]}, {f32bits(c0):#x}')
    for e in range(16):
        r = ACC + e
        I(f'v_fma_f32 v{r}, -v{M3}, v{CS+e}, v{r}')
        I(f'v_mul_f32 v{r}, v{r}, v{V3}')
        rnd_bf16(a, r, r)
        for s in gelu_ops(r, T[5], 'v%d' % T[4], 's50'): I(s)
    for j in range(8):
        I(f'v_cvt_pk_bf16_f32 v{XR+j}, v{ACC+2*j}, v{ACC+2*j+1}')
    I('s_lshl_b32 s48, s35, 15')
    I('s_lshl_b32 s49, s36, 13')
    I('s_add_u32 s48, s48, s49')
    I('s_lshl_b32 s49, s34, 11')
    I('s_add_u32 s48, s48, s49')
    I(f's_add_u32 s48, s48, {WS_T:#x}')
    for hf in range(2):
        I(f'buffer_store_dwordx4 v[{XR+4*hf}:{XR+4*hf+3}], v{vL16}, s[24:27], s48 offen offset:{1024*hf}')
    a.label('K2_end')
    I('s_endpgm')
    print("K2 instrs", a.ninstr, "nops", a.nnop)
    return a.text(), kernel_desc(name, 232, 64)
```

```python
from common import *
from k2 import half_sum

def gen_k3(name):
    a = Asm()
    kernel_header(a, name)
    I = a.I
    vLANE, vL16 = 1, 2
    T = [4,5,6,7,8,9,10,11]
    VS = [12,13,14,15]
    HBR = 16
    ACC = 24
    AFR = 40
    BF = 72
    I('s_cmp_ge_u32 s2, 256')
    I('s_cbranch_scc1 K3_end')
    I(f's_load_dwordx2 s[6:7], s[0:1], {KA_W2}')
    I(f's_load_dwordx2 s[32:33], s[0:1], {KA_WS}')
    I(f'v_and_b32 v{vLANE}, 63, v0')
    I('v_lshrrev_b32 v3, 6, v0')
    I('s_nop 0')
    I('v_readfirstlane_b32 s34, v3')
    I('s_and_b32 s35, s2, 7')
    I('s_lshr_b32 s36, s2, 3')
    I('s_lshl_b32 s35, s35, 2')
    I('s_lshr_b32 s37, s36, 3')
    I('s_add_u32 s35, s35, s37')
    I('s_and_b32 s36, s36, 7')
    I('s_and_b32 s38, s34, 1')
    I('s_lshr_b32 s39, s34, 1')
    I('s_lshl_b32 s40, s35, 1')
    I('s_add_u32 s40, s40, s38')
    I(f'v_lshlrev_b32 v{vL16}, 4, v{vLANE}')
    I('s_waitcnt lgkmcnt(0)')
    srd(a, 12, 6, 7, 512*1024)
    srd(a, 24, 32, 33, WS_SIZE)
    srd(a, 16, 32, 33, 2097152, add=WS_T)
    I(f'v_lshrrev_b32 v{T[0]}, 3, v{vLANE}')
    I(f'v_and_b32 v{T[1]}, 7, v{vLANE}')
    I(f'v_bfe_u32 v{T[2]}, v{vLANE}, 4, 1')
    I(f'v_lshlrev_b32 v{T[2]}, 2, v{T[2]}')
    I(f'v_xor_b32 v{T[1]}, v{T[1]}, v{T[2]}')
    I(f'v_lshlrev_b32 v{T[1]}, 4, v{T[1]}')
    I(f'v_lshl_add_u32 v{T[1]}, v{T[0]}, 10, v{T[1]}')
    I('s_lshl_b32 s45, s34, 17')
    I('s_lshl_b32 s46, s36, 7')
    I('s_add_u32 s45, s45, s46')
    I('s_lshl_b32 s46, s34, 14')
    I(f'v_and_b32 v{T[3]}, 31, v{vLANE}')
    I('s_lshl_b32 s47, s40, 5')
    I(f'v_add_u32 v{T[3]}, s47, v{T[3]}')
    I(f'v_and_b32 v{T[4]}, 32, v{vLANE}')
    for gi, sh in enumerate((-1, 1, -2, 2)):
        I(f'v_add_u32 v{T[5]}, {sh}, v{T[3]}')
        I(f'v_lshrrev_b32 v{T[6]}, 5, v{T[5]}')
        I(f'v_lshlrev_b32 v{T[6]}, 15, v{T[6]}')
        I(f'v_and_b32 v{T[5]}, 31, v{T[5]}')
        I(f'v_add_u32 v{T[5]}, v{T[5]}, v{T[4]}')
        I(f'v_lshl_add_u32 v{VS[gi]}, v{T[5]}, 4, v{T[6]}')
    dma = []
    for j in range(16):
        dma.append('s_mov_b32 m0, s46')
        dma.append(f'buffer_load_dwordx4 v{T[1]}, s[12:15], s45 offen lds')
        if j < 15:
            dma.append('s_add_u32 s45, s45, 8192'); dma.append('s_add_u32 s46, s46, 1024')
    for s in dma: I(s)
    for ks in range(32):
        if ks % 4 == 0: I(f's_movk_i32 s48, {ks*1024}')
        I(f'buffer_load_dwordx4 v[{BF+4*ks}:{BF+4*ks+3}], v{VS[ks//8]}, s[16:19], s48 offen offset:{1024*(ks%4)}')
    I('s_lshl_b32 s48, s40, 15')
    I('s_lshl_b32 s49, s36, 12')
    I('s_add_u32 s48, s48, s49')
    I('s_lshl_b32 s49, s39, 11')
    I('s_add_u32 s48, s48, s49')
    I(f's_add_u32 s49, s48, {WS_HB:#x}')
    for hf in range(2):
        I(f'buffer_load_dwordx4 v[{HBR+4*hf}:{HBR+4*hf+3}], v{vL16}, s[24:27], s49 offen offset:{1024*hf}')
    I(f'v_lshrrev_b32 v{T[6]}, 5, v{vLANE}')
    I(f'v_bfe_u32 v{T[7]}, v{vLANE}, 2, 2')
    I(f'v_lshl_add_u32 v{T[6]}, v{T[6]}, 3, v{T[7]}')
    I(f'v_lshlrev_b32 v{T[6]}, 7, v{T[6]}')
    I(f'v_bfe_u32 v{T[7]}, v{vLANE}, 3, 1')
    I(f'v_xor_b32 v{T[7]}, s39, v{T[7]}')
    I(f'v_lshl_add_u32 v{T[6]}, v{T[7]}, 6, v{T[6]}')
    I(f'v_bfe_u32 v{T[7]}, v{vLANE}, 4, 1')
    I(f'v_lshl_add_u32 v{T[6]}, v{T[7]}, 5, v{T[6]}')
    I(f'v_and_b32 v{T[7]}, 1, v{vLANE}')
    I(f'v_lshl_add_u32 v{T[6]}, v{T[7]}, 4, v{T[6]}')
    I(f'v_bfe_u32 v{T[7]}, v{vLANE}, 1, 1')
    I(f'v_lshl_add_u32 v{T[6]}, v{T[7]}, 3, v{T[6]}')
    I('s_waitcnt vmcnt(34)')
    I('s_barrier')
    def rd(ks):
        L = []
        for t in range(2):
            d = AFR + 4*(ks % 8) + 2*t
            L.append(f'ds_read_b64_tr_b16 v[{d}:{d+1}], v{T[6]} offset:{(16*ks + 4*t)*128}')
        return L
    PRE = 6
    for ks in range(PRE):
        for s in rd(ks): I(s)
    for ks in range(32):
        cc = '0' if ks == 0 else f'v[{ACC}:{ACC+15}]'
        I(f'v_mfma_f32_32x32x16_bf16 v[{ACC}:{ACC+15}], v[{AFR+4*(ks%8)}:{AFR+4*(ks%8)+3}], v[{BF+4*ks}:{BF+4*ks+3}], {cc}')
        if ks + PRE < 32:
            for s in rd(ks + PRE): I(s)
    I('s_mov_b32 s52, 0xffff0000')
    for e in range(16):
        r = ACC + e
        rnd_bf16(a, r, r)
        h = HBR + e//2
        if e % 2 == 0: I(f'v_lshlrev_b32 v{T[0]}, 16, v{h}')
        else: I(f'v_and_b32 v{T[0]}, s52, v{h}')
        I(f'v_add_f32 v{r}, v{r}, v{T[0]}')
        rnd_bf16(a, r, r)
    for j in range(8):
        I(f'v_cvt_pk_bf16_f32 v{HBR+j}, v{ACC+2*j}, v{ACC+2*j+1}')
    I(f's_add_u32 s49, s48, {WS_X1B:#x}')
    for hf in range(2):
        I(f'buffer_store_dwordx4 v[{HBR+4*hf}:{HBR+4*hf+3}], v{vL16}, s[24:27], s49 offen offset:{1024*hf}')
    M, V = T[0], T[1]
    I(f'v_add_f32 v{M}, v{ACC}, v{ACC+1}')
    for e in range(2, 16): I(f'v_add_f32 v{M}, v{M}, v{ACC+e}')
    half_sum(a, M, V)
    I(f'v_mul_f32 v{M}, {f32bits(1.0/32):#x}, v{M}')
    I(f'v_mov_b32 v{V}, 0')
    for e in range(16):
        I(f'v_sub_f32 v{T[2]}, v{ACC+e}, v{M}')
        I(f'v_fmac_f32 v{V}, v{T[2]}, v{T[2]}')
    half_sum(a, V, T[2])
    I(f'v_lshlrev_b32 v{T[2]}, 7, v{T[3]}')
    I('s_lshl_b32 s49, s36, 4')
    I('s_lshl_b32 s50, s39, 3')
    I('s_add_u32 s49, s49, s50')
    I(f's_add_u32 s49, s49, {WS_ST4:#x}')
    I('s_mov_b32 exec_lo, -1'); I('s_mov_b32 exec_hi, 0')
    I(f'buffer_store_dwordx2 v[{M}:{V}], v{T[2]}, s[24:27], s49 offen')
    a.label('K3_end')
    I('s_endpgm')
    print("K3 instrs", a.ninstr, "nops", a.nnop)
    return a.text(), kernel_desc(name, 200, 64)
```

```python
from common import *
from k2 import gelu_ops, ln_rstd, LOG2E

def gen_k4(name):
    a = Asm()
    kernel_header(a, name)
    I = a.I
    vLANE, vL16 = 1, 2
    T = [4,5,6,7,8,9,10,11]
    AD = [12,13,14,15,16,17,18,19]
    M4, V4 = 20, 21
    OUTP = 24
    ST = 32
    ACC = 64
    AFR = 96
    BF = 0
    CS = 128
    I('s_cmp_ge_u32 s2, 224')
    I('s_cbranch_scc1 K4_end')
    I(f's_load_dwordx2 s[6:7], s[0:1], {KA_W3}')
    I(f's_load_dwordx2 s[32:33], s[0:1], {KA_WS}')
    I(f'v_and_b32 v{vLANE}, 63, v0')
    I('v_lshrrev_b32 v3, 6, v0')
    I('s_nop 0')
    I('v_readfirstlane_b32 s34, v3')
    I('s_and_b32 s35, s2, 7')
    I('s_lshr_b32 s36, s2, 3')
    I('s_lshl_b32 s35, s35, 1')
    I('s_cmp_ge_u32 s36, 14')
    I('s_cselect_b32 s37, 1, 0')
    I('s_cselect_b32 s38, 14, 0')
    I('s_add_u32 s35, s35, s37')
    I('s_sub_u32 s36, s36, s38')
    I('s_lshl_b32 s40, s35, 2')
    I('s_add_u32 s40, s40, s34')
    I(f'v_lshlrev_b32 v{vL16}, 4, v{vLANE}')
    I('s_waitcnt lgkmcnt(0)')
    srd(a, 12, 6, 7, 512*3584)
    srd(a, 24, 32, 33, WS_SIZE)
    I(f'v_lshrrev_b32 v{T[3]}, 4, v{vLANE}')
    I(f'v_and_b32 v{T[4]}, 15, v{vLANE}')
    I(f'v_lshlrev_b32 v{T[5]}, 2, v{T[3]}')
    I(f'v_xor_b32 v{T[4]}, v{T[4]}, v{T[5]}')
    I(f'v_lshlrev_b32 v{T[4]}, 4, v{T[4]}')
    I(f'v_mul_u32_u24 v{T[3]}, 3584, v{T[3]}')
    I(f'v_add_u32 v{T[4]}, v{T[4]}, v{T[3]}')
    I(f's_mul_i32 s45, s34, {32*4*3584}')
    I('s_lshl_b32 s46, s36, 8')
    I('s_add_u32 s45, s45, s46')
    I('s_lshl_b32 s46, s34, 15')
    I('s_lshl_b32 s47, s40, 15')
    I(f's_add_u32 s47, s47, {WS_X1B:#x}')
    for j in range(32):
        I('s_mov_b32 m0, s46')
        I(f'buffer_load_dwordx4 v{T[4]}, s[12:15], s45 offen lds')
        if j < 31:
            I(f's_add_u32 s45, s45, {4*3584}'); I('s_add_u32 s46, s46, 1024')
    for ks in range(32):
        I(f'buffer_load_dwordx4 a[{BF+4*ks}:{BF+4*ks+3}], v{vL16}, s[24:27], s47 offen offset:{1024*(ks%4)}')
        if ks % 4 == 3 and ks < 31: I('s_add_u32 s47, s47, 4096')
    I(f'v_and_b32 v{T[0]}, 31, v{vLANE}')
    I(f'v_lshlrev_b32 v{T[0]}, 7, v{T[0]}')
    I('s_lshl_b32 s48, s40, 12')
    I(f's_add_u32 s48, s48, {WS_ST4:#x}')
    for j in range(8):
        I(f'buffer_load_dwordx4 v[{ST+4*j}:{ST+4*j+3}], v{T[0]}, s[24:27], s48 offen offset:{16*j}')
    I(f'v_lshrrev_b32 v{T[1]}, 5, v{vLANE}')
    I(f'v_lshlrev_b32 v{T[1]}, 5, v{T[1]}')
    I('s_lshl_b32 s48, s36, 9')
    I(f's_add_u32 s48, s48, {WS_CS3:#x}')
    for mt in range(4):
        for hf in range(2):
            for h2 in range(2):
                r = CS + 16*mt + 8*hf + 4*h2
                I(f'buffer_load_dwordx4 v[{r}:{r+3}], v{T[1]}, s[24:27], s48 offen offset:{128*mt + 64*hf + 16*h2}')
    I(f'v_lshrrev_b32 v{T[6]}, 5, v{vLANE}')
    I(f'v_bfe_u32 v{T[7]}, v{vLANE}, 2, 2')
    I(f'v_lshl_add_u32 v{T[6]}, v{T[6]}, 3, v{T[7]}')
    I(f'v_lshlrev_b32 v{T[6]}, 8, v{T[6]}')
    I(f'v_bfe_u32 v{T[5]}, v{vLANE}, 4, 1')
    I(f'v_lshl_add_u32 v{T[6]}, v{T[5]}, 5, v{T[6]}')
    I(f'v_and_b32 v{T[5]}, 1, v{vLANE}')
    I(f'v_lshl_add_u32 v{T[6]}, v{T[5]}, 4, v{T[6]}')
    I(f'v_bfe_u32 v{T[5]}, v{vLANE}, 1, 1')
    I(f'v_lshl_add_u32 v{T[6]}, v{T[5]}, 3, v{T[6]}')
    for mt in range(4):
        I(f'v_xor_b32 v{T[5]}, {mt}, v{T[7]}')
        I(f'v_lshl_add_u32 v{AD[2*mt]}, v{T[5]}, 6, v{T[6]}')
        I(f'v_add_u32 v{AD[2*mt+1]}, 65536, v{AD[2*mt]}')
    I('s_waitcnt vmcnt(56)')
    I('s_barrier')
    def stats():
        L = []
        L.append(f'v_add_f32 v{M4}, v{ST}, v{ST+2}')
        L.append(f'v_add_f32 v{V4}, v{ST+1}, v{ST+3}')
        for j in range(2, 16):
            L.append(f'v_add_f32 v{M4}, v{M4}, v{ST+2*j}')
            L.append(f'v_add_f32 v{V4}, v{V4}, v{ST+2*j+1}')
        L.append(f'v_mul_f32 v{M4}, {f32bits(1.0/16):#x}, v{M4}')
        L.append(f'v_mov_b32 v{T[2]}, 0')
        for j in range(16):
            L.append(f'v_sub_f32 v{T[3]}, v{ST+2*j}, v{M4}')
            L.append(f'v_fmac_f32 v{T[2]}, v{T[3]}, v{T[3]}')
        L.append(f'v_fmac_f32 v{V4}, {f32bits(32.0):#x}, v{T[2]}')
        L.append(f'v_mul_f32 v{V4}, {f32bits(1.0/512):#x}, v{V4}')
        L.append(f'v_cvt_pk_bf16_f32 v{M4}, 0, v{M4}')
        L.append(f'v_cvt_pk_bf16_f32 v{V4}, 0, v{V4}')
        L.append(f'v_add_f32 v{V4}, {f32bits(1e-5):#x}, v{V4}')
        L.append(f'v_cvt_pk_bf16_f32 v{V4}, 0, v{V4}')
        L.append(f'v_sqrt_f32 v{V4}, v{V4}')
        L.append(f'v_cvt_pk_bf16_f32 v{V4}, 0, v{V4}')
        L.append(f'v_rcp_f32 v{V4}, v{V4}')
        return L
    c0 = -2.0 * (2.0/3.141592653589793) ** 0.5 * LOG2E
    I(f's_mov_b32 s50, {f32bits(c0*0.044715):#x}')
    I(f'v_mov_b32 v{T[4]}, {f32bits(c0):#x}')
    I(f's_mul_i32 s48, s40, 114688')
    I('s_lshl_b32 s49, s36, 13')
    I('s_add_u32 s48, s48, s49')
    I(f's_add_u32 s48, s48, {WS_T2:#x}')
    I('s_add_u32 s49, s48, 4096')
    def epi(mt):
        L = []
        b = ACC + 16*(mt & 1)
        for e in range(16):
            r = b + e
            t = T[e % 2]
            L.append(f'v_fma_f32 v{r}, -v{M4}, v{CS+16*mt+e}, v{r}')
            L.append(f'v_mul_f32 v{r}, v{r}, v{V4}')
            L.append(f'v_cvt_pk_bf16_f32 v{r}, 0, v{r}')
            L += gelu_ops(r, t, 'v%d' % T[4], 's50')
            if e % 2 == 1:
                L.append(f'v_cvt_pk_bf16_f32 v{OUTP+e//2}, v{r-1}, v{r}')
            if e % 8 == 7:
                q = 2*mt + e//8
                so = 's48' if q < 4 else 's49'
                L.append(f'buffer_store_dwordx4 v[{OUTP+4*(e//8)}:{OUTP+4*(e//8)+3}], v{vL16}, s[24:27], {so} offen offset:{1024*(q%4)}')
        return L
    def rd(idx):
        mt, ks = idx // 32, idx % 32
        L = []
        ar = AD[2*mt + (ks // 16)]
        for t in range(2):
            d = AFR + 4*(idx % 8) + 2*t
            L.append(f'ds_read_b64_tr_b16 v[{d}:{d+1}], v{ar} offset:{(16*(ks%16) + 4*t)*256}')
        return L
    PRE = 6
    for idx in range(PRE):
        for s in rd(idx): I(s)
    for mt in range(4):
        b = ACC + 16*(mt & 1)
        main = []
        for ks in range(32):
            idx = 32*mt + ks
            cc = '0' if ks == 0 else f'v[{b}:{b+15}]'
            main.append(f'v_mfma_f32_32x32x16_bf16 v[{b}:{b+15}], v[{AFR+4*(idx%8)}:{AFR+4*(idx%8)+3}], a[{BF+4*ks}:{BF+4*ks+3}], {cc}')
            if idx + PRE < 128: main += rd(idx + PRE)
        side = stats() if mt == 0 else epi(mt-1)
        for s in merge(main, side): I(s)
    for s in epi(3): I(s)
    a.label('K4_end')
    I('s_endpgm')
    print("K4 instrs", a.ninstr, "nops", a.nnop)
    return a.text(), kernel_desc(name, 320, 64, accum=192)
```

```python
from common import *

def gen_k5(name):
    a = Asm()
    kernel_header(a, name)
    I = a.I
    vLANE, vL16 = 1, 2
    T = [4,5,6,7,8,9,10,11]
    AD = [12,13]
    X1R, X1BR = 16, 20
    GB = 24
    ACC = 32
    AFR = 64
    BF = 96
    RS = [10, 9, 9]
    BUF = [0, 81920, 0]
    I('s_cmp_ge_u32 s2, 256')
    I('s_cbranch_scc1 K5_end')
    I(f's_load_dwordx2 s[6:7], s[0:1], {KA_W4}')
    I(f's_load_dwordx2 s[4:5], s[0:1], {KA_OUT}')
    I(f's_load_dwordx2 s[32:33], s[0:1], {KA_WS}')
    I(f'v_and_b32 v{vLANE}, 63, v0')
    I('v_lshrrev_b32 v3, 6, v0')
    I('s_nop 0')
    I('v_readfirstlane_b32 s34, v3')
    I('s_and_b32 s35, s2, 7')
    I('s_lshr_b32 s36, s2, 3')
    I('s_lshl_b32 s35, s35, 2')
    I('s_lshr_b32 s37, s36, 3')
    I('s_add_u32 s35, s35, s37')
    I('s_and_b32 s36, s36, 7')
    I('s_and_b32 s38, s34, 1')
    I('s_lshr_b32 s39, s34, 1')
    I('s_lshl_b32 s40, s35, 1')
    I('s_add_u32 s40, s40, s38')
    I(f'v_lshlrev_b32 v{vL16}, 4, v{vLANE}')
    I('s_waitcnt lgkmcnt(0)')
    srd(a, 12, 6, 7, 1792*1024)
    srd(a, 8, 4, 5, 2048*1024)
    srd(a, 24, 32, 33, WS_SIZE)
    I(f'v_lshrrev_b32 v{T[0]}, 3, v{vLANE}')
    I(f'v_and_b32 v{T[1]}, 7, v{vLANE}')
    I(f'v_bfe_u32 v{T[2]}, v{vLANE}, 4, 1')
    I(f'v_lshlrev_b32 v{T[2]}, 2, v{T[2]}')
    I(f'v_xor_b32 v{T[1]}, v{T[1]}, v{T[2]}')
    I(f'v_lshlrev_b32 v{T[1]}, 4, v{T[1]}')
    I(f'v_lshl_add_u32 v{T[1]}, v{T[0]}, 10, v{T[1]}')
    I(f's_mul_i32 s45, s39, {448*1024}')
    I('s_lshl_b32 s46, s36, 7')
    I('s_add_u32 s45, s45, s46')
    I('s_lshl_b32 s46, s38, 13')
    I('s_add_u32 s45, s45, s46')
    I('s_mul_i32 s46, s39, 20480')
    I('s_lshl_b32 s47, s38, 10')
    I('s_add_u32 s46, s46, s47')
    def dma_round(R):
        L = []
        k0 = sum(RS[:R])
        n = RS[R]
        for j in range(n):
            L.append(f's_add_u32 s47, s46, {BUF[R] + j*2048}')
            L.append('s_mov_b32 m0, s47')
            L.append(f's_add_u32 s48, s45, {(k0 + j)*16*1024}')
            L.append(f'buffer_load_dwordx4 v{T[1]}, s[12:15], s48 offen lds')
        return L
    for s in dma_round(0): I(s)
    I('s_mul_i32 s49, s40, 114688')
    I(f's_mul_i32 s50, s39, {28*1024}')
    I('s_add_u32 s49, s49, s50')
    I(f's_add_u32 s49, s49, {WS_T2:#x}')
    for ks in range(10):
        I(f'buffer_load_dwordx4 v[{BF+4*ks}:{BF+4*ks+3}], v{vL16}, s[24:27], s49 offen offset:{1024*(ks%4)}')
        if ks % 4 == 3: I('s_add_u32 s49, s49, 4096')
    for s in dma_round(1): I(s)
    for ks in range(10, 28):
        I(f'buffer_load_dwordx4 v[{BF+4*ks}:{BF+4*ks+3}], v{vL16}, s[24:27], s49 offen offset:{1024*(ks%4)}')
        if ks % 4 == 3: I('s_add_u32 s49, s49, 4096')
    I('s_lshl_b32 s49, s40, 15')
    I('s_lshl_b32 s50, s36, 12')
    I('s_add_u32 s49, s49, s50')
    I('s_lshl_b32 s50, s39, 10')
    I('s_add_u32 s49, s49, s50')
    I(f's_add_u32 s50, s49, {WS_X1:#x}')
    I(f'buffer_load_dwordx4 v[{X1R}:{X1R+3}], v{vL16}, s[24:27], s50 offen')
    I(f's_add_u32 s50, s49, {WS_X1B:#x}')
    I(f'buffer_load_dwordx4 v[{X1BR}:{X1BR+3}], v{vL16}, s[24:27], s50 offen')
    I(f'v_lshrrev_b32 v{T[3]}, 5, v{vLANE}')
    I(f'v_lshlrev_b32 v{T[3]}, 5, v{T[3]}')
    I('s_lshl_b32 s50, s36, 8')
    I('s_lshl_b32 s51, s39, 6')
    I('s_add_u32 s50, s50, s51')
    I(f's_add_u32 s50, s50, {WS_MOD + 3*2048:#x}')
    I(f'buffer_load_dwordx4 v[{GB}:{GB+3}], v{T[3]}, s[24:27], s50 offen')
    I(f'buffer_load_dwordx4 v[{GB+4}:{GB+7}], v{T[3]}, s[24:27], s50 offen offset:16')
    I(f'v_lshrrev_b32 v{T[6]}, 5, v{vLANE}')
    I(f'v_bfe_u32 v{T[7]}, v{vLANE}, 2, 2')
    I(f'v_lshl_add_u32 v{T[6]}, v{T[6]}, 3, v{T[7]}')
    I(f'v_lshlrev_b32 v{T[6]}, 7, v{T[6]}')
    I(f'v_bfe_u32 v{T[7]}, v{vLANE}, 4, 1')
    I(f'v_lshl_add_u32 v{T[6]}, v{T[7]}, 5, v{T[6]}')
    I(f'v_and_b32 v{T[7]}, 1, v{vLANE}')
    I(f'v_lshl_add_u32 v{T[6]}, v{T[7]}, 4, v{T[6]}')
    I(f'v_bfe_u32 v{T[7]}, v{vLANE}, 1, 1')
    I(f'v_lshl_add_u32 v{T[6]}, v{T[7]}, 3, v{T[6]}')
    I('s_mul_i32 s50, s39, 20480')
    I(f'v_add_u32 v{T[6]}, s50, v{T[6]}')
    I(f'v_bfe_u32 v{T[7]}, v{vLANE}, 3, 1')
    I(f'v_lshl_add_u32 v{AD[0]}, v{T[7]}, 6, v{T[6]}')
    I(f'v_xor_b32 v{T[7]}, 1, v{T[7]}')
    I(f'v_lshl_add_u32 v{AD[1]}, v{T[7]}, 6, v{T[6]}')
    I(f'v_add_u32 v{T[4]}, {BUF[1]}, v{AD[0]}')
    I(f'v_add_u32 v{T[5]}, {BUF[1]}, v{AD[1]}')
    ADR = {0: AD, 1: [T[4], T[5]], 2: AD}
    cnt = 0
    def rd(R, j, nt, slot):
        L = []
        for t in range(2):
            d = AFR + 4*slot + 2*t
            L.append(f'ds_read_b64_tr_b16 v[{d}:{d+1}], v{ADR[R][nt]} offset:{(16*j + 4*t)*128}')
        return L
    first = True
    for R in range(3):
        if R == 0:
            I('s_waitcnt vmcnt(41)')
        elif R == 1:
            I('s_waitcnt vmcnt(31)')
        else:
            I('s_waitcnt vmcnt(0)')
        I('s_barrier')
        seq = [(j, nt) for j in range(RS[R]) for nt in range(2)]
        PRE = 4
        for i in range(PRE):
            for s in rd(R, seq[i][0], seq[i][1], i % 8): I(s)
        k0 = sum(RS[:R])
        for i, (j, nt) in enumerate(seq):
            b = ACC + 16*nt
            ks = k0 + j
            cc = '0' if ks == 0 else f'v[{b}:{b+15}]'
            I(f'v_mfma_f32_32x32x16_bf16 v[{b}:{b+15}], v[{AFR+4*(i%8)}:{AFR+4*(i%8)+3}], v[{BF+4*ks}:{BF+4*ks+3}], {cc}')
            if i + PRE < len(seq):
                for s in rd(R, seq[i+PRE][0], seq[i+PRE][1], (i+PRE) % 8): I(s)
        if R == 0:
            I('s_barrier')
            for s in dma_round(2): I(s)
    RED = 81920
    I('s_lshl_b32 s50, s34, 13')
    I(f's_add_u32 s50, s50, {RED}')
    I(f'v_add_u32 v{T[0]}, s50, v{vL16}')
    for p in range(4):
        for h in range(2):
            r = ACC + 8*p + 4*h
            I(f'ds_write_b128 v{T[0]}, v[{r}:{r+3}] offset:{2048*p + 1024*h}')
    I('s_waitcnt lgkmcnt(0)')
    I('s_barrier')
    I('s_lshl_b32 s50, s38, 13')
    I('s_lshl_b32 s51, s39, 11')
    I('s_add_u32 s50, s50, s51')
    I(f's_add_u32 s50, s50, {RED}')
    I(f'v_add_u32 v{T[0]}, s50, v{vL16}')
    for q in range(4):
        for h in range(2):
            r = AFR + 8*q + 4*h
            I(f'ds_read_b128 v[{r}:{r+3}], v{T[0]} offset:{16384*q + 1024*h}')
    I('s_mov_b32 s52, 0xffff0000')
    for e in range(8):
        r = AFR + e
        I(f'v_add_f32 v{r}, v{r}, v{r+8}')
        I(f'v_add_f32 v{r+16}, v{r+16}, v{r+24}')
        I(f'v_add_f32 v{r}, v{r}, v{r+16}')
        rnd_bf16(a, r, r)
        if e % 2 == 0:
            I(f'v_lshlrev_b32 v{T[1]}, 16, v{X1BR+e//2}'); I(f'v_lshlrev_b32 v{T[2]}, 16, v{X1R+e//2}')
        else:
            I(f'v_and_b32 v{T[1]}, s52, v{X1BR+e//2}'); I(f'v_and_b32 v{T[2]}, s52, v{X1R+e//2}')
        I(f'v_add_f32 v{r}, v{r}, v{T[1]}')
        rnd_bf16(a, r, r)
        I(f'v_mul_f32 v{r}, v{r}, v{GB+e}')
        rnd_bf16(a, r, r)
        I(f'v_add_f32 v{r}, v{r}, v{T[2]}')
    for j in range(4):
        I(f'v_cvt_pk_bf16_f32 v{ACC+j}, v{AFR+2*j}, v{AFR+2*j+1}')
    I(f'v_and_b32 v{T[1]}, 31, v{vLANE}')
    I(f'v_lshlrev_b32 v{T[1]}, 10, v{T[1]}')
    I(f'v_lshrrev_b32 v{T[2]}, 5, v{vLANE}')
    I(f'v_lshl_add_u32 v{T[1]}, v{T[2]}, 4, v{T[1]}')
    I('s_lshl_b32 s50, s40, 15')
    I('s_lshl_b32 s51, s36, 7')
    I('s_add_u32 s50, s50, s51')
    I('s_lshl_b32 s51, s39, 5')
    I('s_add_u32 s50, s50, s51')
    I(f'buffer_store_dwordx4 v[{ACC}:{ACC+3}], v{T[1]}, s[8:11], s50 offen')
    a.label('K5_end')
    I('s_endpgm')
    print("K5 instrs", a.ninstr, "nops", a.nnop)
    return a.text(), kernel_desc(name, 208, 64)
```

```python
import sys
from common import *
from k0 import gen_k0
from k1 import gen_k1
from k2 import gen_k2
from k3 import gen_k3
from k4 import gen_k4
from k5 import gen_k5
def build(path, upto=6, stamps=False):
    hdr = open('cdna_kernels/' + NAME + '.s.ref').read().split('; Override launch')[0]
    ks = []
    ks.append(('k0_kernel', (290,1,1), 512, 17408, gen_k0))
    ks.append(('k1_kernel', (256,1,1), 512, 163840, lambda n: gen_k1(n, stamps)))
    ks.append(('k2_kernel', (256,1,1), 512, 163840, gen_k2))
    ks.append(('k3_kernel', (256,1,1), 256, 65536, gen_k3))
    ks.append(('k4_kernel', (224,1,1), 256, 131072, gen_k4))
    ks.append(('k5_kernel', (256,1,1), 512, 163840, gen_k5))
    ks = ks[:upto]
    out = hdr
    for n, g, b, lds, f in ks:
        out += f'; @launch kernel={n} grid=({g[0]},{g[1]},{g[2]}) block=({b},1,1) lds={lds}\n'
    out += '.amdgcn_target "amdgcn-amd-amdhsa--gfx950"\n.text\n'
    descs = ''
    for n, g, b, lds, f in ks:
        t, d = f(n)
        out += t; descs += d
    out += '.section .rodata,"a"\n' + descs
    open(path, 'w').write(out)
if __name__ == '__main__':
    build(sys.argv[1] if len(sys.argv) > 1 else 'cur.s', stamps=(len(sys.argv) > 2))
```

```python
from asmlib import *
NAME = "adaLN_cond__sliding_block_cached__mixer_s_mlp__prompt"
KA_X, KA_K, KA_V, KA_WQ, KA_WO, KA_BX, KA_W1, KA_W2, KA_W3, KA_W4, KA_C, KA_WMOD, KA_OUT, KA_DBG, KA_WS = [8*i for i in range(15)]
WS_H   = 0x0000000
WS_MOD = 0x0200000
WS_CS1 = 0x0202000
WS_CS3 = 0x0203000
WS_W1P = 0x0280000
WS_VP  = 0x0300000
WS_P   = 0x0400000
WS_X1  = 0x1400000
WS_HB  = 0x1600000
WS_T   = 0x1800000
WS_X1B = 0x1A00000
WS_ST4 = 0x1C00000
WS_T2  = 0x2000000
WS_SIZE = 268435456

def f32bits(x):
    import struct
    return struct.unpack('<I', struct.pack('<f', x))[0]

def kernel_header(a, name):
    a.raw(f'.globl {name}')
    a.raw('.p2align 8')
    a.raw(f'.type {name},@function')
    a.raw(f'{name}:')

def kernel_desc(name, vgpr, sgpr=96, accum=None):
    acc = accum if accum else (vgpr + 3)//4*4
    return f'''.p2align 6
.amdhsa_kernel {name}
  .amdhsa_next_free_vgpr {vgpr}
  .amdhsa_next_free_sgpr {sgpr}
  .amdhsa_accum_offset {acc}
  .amdhsa_group_segment_fixed_size 0
  .amdhsa_kernarg_size 120
  .amdhsa_user_sgpr_count 2
  .amdhsa_user_sgpr_kernarg_segment_ptr 1
  .amdhsa_system_sgpr_workgroup_id_x 1
  .amdhsa_float_denorm_mode_32 3
.end_amdhsa_kernel
'''

def srd(a, d, lo, hi, nbytes, add=0):
    if add:
        a.I(f's_add_u32 s{d}, s{lo}, {add:#x}')
        a.I(f's_addc_u32 s{d+1}, s{hi}, 0')
    else:
        a.I(f's_mov_b32 s{d}, s{lo}')
        a.I(f's_mov_b32 s{d+1}, s{hi}')
    a.I(f's_mov_b32 s{d+2}, {nbytes:#x}')
    a.I(f's_mov_b32 s{d+3}, 0x00020000')

def rnd_bf16(a, dst, src):
    a.I(f'v_cvt_pk_bf16_f32 v{dst}, 0, v{src}')

STAMP_BASE = 0x8000000
class Stamper:
    def __init__(self, a, on, kidx):
        self.a = a; self.on = (1 if on == 3 else on); self.n = 0; self.kidx = kidx
    def __call__(self):
        if not self.on: return
        a = self.a
        a.I('s_memtime s[66:67]'); a.I('s_waitcnt lgkmcnt(0)'); a.I(f's_mov_b32 s{70+self.n}, s66')
        if self.on == 2:
            a.I('s_memrealtime s[66:67]'); a.I('s_waitcnt lgkmcnt(0)'); a.I(f's_mov_b32 s{82+self.n}, s66')
        self.n += 1
    def first(self):
        if not self.on: return
        a = self.a
        a.I('s_memrealtime s[66:67]'); a.I('s_waitcnt lgkmcnt(0)'); a.I('s_mov_b32 s69, s66')
        self()
    def flush(self, ws_srd, wave_sgpr, vtmp, lane_reg):
        if not self.on: return
        a = self.a
        a.I('s_waitcnt vmcnt(0)')
        self()
        a.I('s_memrealtime s[66:67]'); a.I('s_waitcnt lgkmcnt(0)')
        a.I('s_mov_b64 exec, -1')
        a.I(f'v_mov_b32 v{vtmp}, 0')
        for i in range(self.n):
            a.I(f'v_writelane_b32 v{vtmp}, s{70+i}, {i}')
            if self.on == 2: a.I(f'v_writelane_b32 v{vtmp}, s{82+i}, {32+i}')
        a.I(f'v_writelane_b32 v{vtmp}, s66, 30')
        a.I(f'v_writelane_b32 v{vtmp}, s69, 31')
        a.I(f'v_writelane_b32 v{vtmp}, {self.n}, 29')
        a.I('s_lshl_b32 s68, s2, 4'); a.I(f's_add_u32 s68, s68, s{wave_sgpr}'); a.I('s_lshl_b32 s68, s68, 8')
        a.I(f's_add_u32 s68, s68, {STAMP_BASE + self.kidx*0x100000:#x}')
        a.I(f'v_lshlrev_b32 v{vtmp+1}, 2, v{lane_reg}')
        a.I(f'buffer_store_dword v{vtmp}, v{vtmp+1}, s[{ws_srd}:{ws_srd+3}], s68 offen')
```

```python
from common import *

def gen_k0(name, stamps=False):
    a = Asm()
    st = Stamper(a, stamps, 0)
    kernel_header(a, name)
    I = a.I
    L_RES, L_SILU, L_V = 16384, 16896, 20480
    I('s_cmp_ge_u32 s2, 290')
    I('s_cbranch_scc1 K0_end')
    I(f's_load_dwordx2 s[4:5], s[0:1], {KA_X}')
    I(f's_load_dwordx4 s[8:11], s[0:1], {KA_C}')
    I(f's_load_dwordx2 s[12:13], s[0:1], {KA_W1}')
    I(f's_load_dwordx2 s[14:15], s[0:1], {KA_W3}')
    I(f's_load_dwordx2 s[16:17], s[0:1], {KA_WS}')
    I(f's_load_dwordx4 s[56:59], s[0:1], {KA_K}')
    I(f's_load_dwordx2 s[60:61], s[0:1], {KA_WQ}')
    I('v_and_b32 v1, 15, v0')
    I('v_lshrrev_b32 v2, 4, v0')
    I('v_lshrrev_b32 v3, 6, v0')
    I('s_nop 0')
    I('v_readfirstlane_b32 s54, v3')
    I('s_waitcnt lgkmcnt(0)')
    st.first()
    I('s_cmp_lt_u32 s2, 256')
    I('s_cbranch_scc0 K0_j1')
    I('s_mov_b32 s20, s10'); I('s_mov_b32 s21, s11'); I(f's_mov_b32 s22, {512*6144}')
    I('s_movk_i32 s24, 6144')
    I('s_and_b32 s25, s2, 1'); I('s_lshl_b32 s25, s25, 2'); I('s_bfe_u32 s29, s2, 0x20003'); I('s_add_u32 s25, s25, s29'); I('s_lshl_b32 s25, s25, 7')
    I('s_movk_i32 s26, 1024'); I('s_mov_b32 s27, 0'); I('s_mov_b32 s28, 0')
    I('s_branch K0_jd')
    a.label('K0_j1')
    I('s_cmp_lt_u32 s2, 272')
    I('s_cbranch_scc0 K0_j2')
    I('s_mov_b32 s20, s10'); I('s_mov_b32 s21, s11'); I(f's_mov_b32 s22, {512*6144}')
    I('s_movk_i32 s24, 6144')
    I('s_sub_u32 s29, s2, 256')
    I('s_lshl_b32 s25, s29, 8'); I('s_add_u32 s25, s25, 2048')
    I('s_movk_i32 s26, 128'); I('s_mov_b32 s27, 1')
    I('s_lshl_b32 s28, s29, 9'); I(f's_add_u32 s28, s28, {WS_MOD:#x}')
    I('s_branch K0_jd')
    a.label('K0_j2')
    I('s_cmp_lt_u32 s2, 276')
    I('s_cbranch_scc0 K0_j3')
    I('s_mov_b32 s20, s12'); I('s_mov_b32 s21, s13'); I(f's_mov_b32 s22, {512*1024}')
    I('s_movk_i32 s24, 1024')
    I('s_sub_u32 s29, s2, 272')
    I('s_lshl_b32 s25, s29, 8')
    I('s_movk_i32 s26, 128'); I('s_mov_b32 s27, 2')
    I('s_lshl_b32 s28, s29, 9'); I(f's_add_u32 s28, s28, {WS_CS1:#x}')
    I('s_branch K0_jd')
    a.label('K0_j3')
    I('s_mov_b32 s20, s14'); I('s_mov_b32 s21, s15'); I(f's_mov_b32 s22, {512*3584}')
    I('s_movk_i32 s24, 3584')
    I('s_sub_u32 s29, s2, 276')
    I('s_lshl_b32 s25, s29, 8')
    I('s_movk_i32 s26, 128'); I('s_mov_b32 s27, 2')
    I('s_lshl_b32 s28, s29, 9'); I(f's_add_u32 s28, s28, {WS_CS3:#x}')
    a.label('K0_jd')
    I('s_mov_b32 s23, 0x00020000')
    srd(a, 32, 4, 5, 2048*1024)
    srd(a, 36, 8, 9, 1024)
    srd(a, 40, 16, 17, WS_SIZE)
    srd(a, 48, 58, 59, 8*2048*256)
    srd(a, 4, 56, 57, 8*2048*256)
    srd(a, 8, 60, 61, 512*8192)
    I('v_lshlrev_b32 v6, 1, v0')
    I('buffer_load_ushort v8, v6, s[36:39], 0 offen')
    I('s_lshl_b32 s29, s24, 4')
    I('v_mul_lo_u32 v3, v2, s29')
    I('v_and_b32 v4, 7, v1')
    I('v_lshlrev_b32 v4, 4, v4')
    I('v_lshrrev_b32 v5, 3, v1')
    I('v_mul_lo_u32 v5, v5, s26')
    I('v_add3_u32 v3, v3, v4, v5')
    I('v_add_u32 v3, s25, v3')
    I('s_bfe_u32 s30, s2, 0x20001')
    I('s_lshl_b32 s30, s30, 3')
    I('s_bfe_u32 s31, s2, 0x30005')
    I('s_add_u32 s30, s30, s31')
    I('s_and_b32 s31, s2, 1'); I('s_lshl_b32 s31, s31, 2'); I('s_bfe_u32 s29, s2, 0x20003'); I('s_add_u32 s31, s31, s29')
    I('s_and_b32 s64, s2, 7')
    I('s_bfe_u32 s65, s2, 0x50003')
    I('v_lshrrev_b32 v7, 3, v0')
    I('v_and_b32 v4, 7, v0')
    I('v_lshlrev_b32 v5, 10, v7')
    I('v_lshl_add_u32 v5, v4, 4, v5')
    I('s_lshl_b32 s45, s30, 16')
    for i in range(8):
        I(f'buffer_load_dwordx4 v[{96+4*i}:{99+4*i}], v5, s[32:35], s45 offen offset:{128*i}')
    I('s_lshl_b32 s44, s31, 7')
    I('s_add_u32 s44, s44, s45')
    I('buffer_load_dwordx4 v[24:27], v5, s[32:35], s44 offen')
    I('s_mov_b32 s29, 0')
    for i in range(16):
        I(f'buffer_load_dwordx4 v[{32+4*i}:{35+4*i}], v3, s[20:23], s29 offen')
        if i < 15: I('s_add_u32 s29, s29, s24')
    st()
    log2e = f32bits(1.4426950408889634)
    I(f's_mov_b32 s45, {log2e:#x}')
    I('s_mov_b32 s46, 0xffff0000')
    I('v_lshlrev_b32 v8, 16, v8')
    I('v_mul_f32 v9, s45, v8')
    I('v_exp_f32 v9, -v9')
    I('v_add_f32 v9, 1.0, v9')
    I('v_rcp_f32 v9, v9')
    I('v_mul_f32 v8, v8, v9')
    I('v_cvt_pk_bf16_f32 v8, v8, v8')
    I('s_cmp_eq_u32 s27, 2')
    I('s_cbranch_scc0 K0_w')
    I('v_mov_b32 v8, 0x3f80')
    a.label('K0_w')
    I(f'ds_write_b16 v6, v8 offset:{L_SILU}')
    I('v_and_b32 v9, 63, v0')
    I('s_cmp_eq_u32 s27, 0')
    I('s_cbranch_scc0 K0_side_done')
    I('s_cmp_eq_u32 s54, 7')
    I('s_cbranch_scc0 K0_side_t')
    I('v_lshlrev_b32 v10, 4, v9')
    I('v_lshrrev_b32 v11, 4, v9')
    I('v_lshlrev_b32 v11, 6, v11')
    I('v_xor_b32 v10, v10, v11')
    I('s_lshl_b32 s62, s64, 19')
    I('s_lshl_b32 s63, s65, 12')
    I('s_add_u32 s62, s62, s63')
    I(f's_add_u32 s62, s62, {1536*256}')
    I(f's_mov_b32 m0, {L_V}')
    for j in range(4):
        I(f'buffer_load_dwordx4 v10, s[48:51], s62 offen offset:{1024*j} lds')
    I('v_lshrrev_b32 v11, 5, v9')
    I('v_bfe_u32 v12, v9, 2, 2')
    I('v_lshl_add_u32 v11, v11, 2, v12')
    I('v_lshlrev_b32 v11, 8, v11')
    I('v_bfe_u32 v13, v9, 4, 1')
    I('v_lshl_add_u32 v11, v13, 5, v11')
    I('v_and_b32 v13, 1, v9')
    I('v_lshl_add_u32 v11, v13, 4, v11')
    I('v_bfe_u32 v13, v9, 1, 1')
    I('v_lshl_add_u32 v11, v13, 3, v11')
    I('v_lshlrev_b32 v10, 4, v9')
    I('s_lshl_b32 s62, s64, 17')
    I('s_lshl_b32 s63, s65, 12')
    I('s_add_u32 s62, s62, s63')
    I(f's_add_u32 s62, s62, {WS_VP:#x}')
    I('s_waitcnt vmcnt(0)')
    for hf in range(2):
        for m2 in range(2):
            mt = 2*hf + m2
            I(f'v_xor_b32 v13, {mt}, v12')
            I('v_lshl_add_u32 v13, v13, 6, v11')
            for t in range(2):
                I(f'ds_read_b64_tr_b16 v[{16+4*m2+2*t}:{17+4*m2+2*t}], v13 offset:{L_V + 8*t*256}')
        for m2 in range(2):
            mt = 2*hf + m2
            I(f'buffer_store_dwordx4 v[{16+4*m2}:{19+4*m2}], v10, s[40:43], s62 offen offset:{1024*mt}')
        I('s_nop 4')
    I('s_branch K0_side_done')
    a.label('K0_side_t')
    I('s_cmp_ge_u32 s54, 4')
    I('s_cbranch_scc0 K0_side_done')
    I('s_cmp_eq_u32 s54, 6')
    I('s_cbranch_scc1 K0_side_k')
    I('v_lshrrev_b32 v10, 3, v9')
    I('v_and_b32 v11, 7, v9')
    I('v_lshlrev_b32 v10, 13, v10')
    I('v_lshl_add_u32 v10, v11, 7, v10')
    I('s_lshl_b32 s62, s65, 17')
    I('s_sub_u32 s63, s54, 4')
    I('s_lshl_b32 s63, s63, 16')
    I('s_add_u32 s62, s62, s63')
    I('s_lshl_b32 s63, s64, 10')
    I('s_add_u32 s62, s62, s63')
    I('buffer_load_dword v14, v10, s[8:11], s62 offen')
    I('s_branch K0_side_done')
    a.label('K0_side_k')
    I('v_lshlrev_b32 v10, 7, v9')
    I('s_lshl_b32 s62, s64, 19')
    I('s_lshl_b32 s63, s65, 12')
    I('s_add_u32 s62, s62, s63')
    I(f's_add_u32 s62, s62, {1536*256}')
    I('buffer_load_dword v14, v10, s[4:7], s62 offen')
    a.label('K0_side_done')
    I('s_waitcnt vmcnt(16)')
    st()
    I('s_mov_b32 s47, 0x3f803f80')
    I('v_mov_b32 v30, 0'); I('v_mov_b32 v31, 0'); I('v_mov_b32 v28, 0'); I('v_mov_b32 v29, 0')
    for i in range(0, 32, 2):
        I(f'v_dot2_f32_bf16 v30, v{96+i}, s47, v30')
        I(f'v_dot2_f32_bf16 v31, v{96+i}, v{96+i}, v31')
        I(f'v_dot2_f32_bf16 v28, v{97+i}, s47, v28')
        I(f'v_dot2_f32_bf16 v29, v{97+i}, v{97+i}, v29')
    I('s_nop 2')
    I('v_add_f32 v30, v30, v28')
    I('v_add_f32 v31, v31, v29')
    def red8(r, t):
        I(f'v_add_f32_dpp v{t}, v{r}, v{r} quad_perm:[1,0,3,2] row_mask:0xf bank_mask:0xf')
        I(f'v_add_f32_dpp v{r}, v{t}, v{t} quad_perm:[2,3,0,1] row_mask:0xf bank_mask:0xf')
        I(f'v_add_f32_dpp v{t}, v{r}, v{r} row_half_mirror row_mask:0xf bank_mask:0xf')
        I(f'v_mov_b32 v{r}, v{t}')
    red8(30, 28)
    red8(31, 29)
    I(f'v_mul_f32 v30, {f32bits(1.0/512):#x}, v30')
    I(f'v_mul_f32 v31, {f32bits(1.0/512):#x}, v31')
    I('v_fma_f32 v31, -v30, v30, v31')
    I('v_max_f32 v31, 0, v31')
    rnd_bf16(a, 30, 30)
    rnd_bf16(a, 31, 31)
    I(f'v_add_f32 v31, {f32bits(1e-5):#x}, v31')
    rnd_bf16(a, 31, 31)
    I('v_sqrt_f32 v31, v31')
    rnd_bf16(a, 31, 31)
    I('v_rcp_f32 v31, v31')
    for d in range(4):
        I(f'v_lshlrev_b32 v{96+2*d}, 16, v{24+d}')
        I(f'v_and_b32 v{97+2*d}, s46, v{24+d}')
    for e in range(8):
        I(f'v_sub_f32 v{96+e}, v{96+e}, v30')
        rnd_bf16(a, 96+e, 96+e)
        I(f'v_mul_f32 v{96+e}, v{96+e}, v31')
        rnd_bf16(a, 96+e, 96+e)
    st()
    I('s_waitcnt vmcnt(0) lgkmcnt(0)')
    I('s_barrier')
    st()
    I('v_lshlrev_b32 v28, 5, v2')
    I(f'ds_read_b128 v[104:107], v28 offset:{L_SILU}')
    I(f'ds_read_b128 v[108:111], v28 offset:{L_SILU+16}')
    for e in range(8): I(f'v_mov_b32 v{16+e}, 0')
    I('s_mov_b32 s62, 0x05040100')
    I('s_mov_b32 s63, 0x07060302')
    for p in range(8):
        for d in range(4):
            r0 = 32 + 8*p + d; r1 = r0 + 4
            I(f'v_perm_b32 v28, v{r1}, v{r0}, s62')
            I(f'v_perm_b32 v29, v{r1}, v{r0}, s63')
            I(f'v_dot2_f32_bf16 v{16+2*d}, v28, v{104+p}, v{16+2*d}')
            I(f'v_dot2_f32_bf16 v{17+2*d}, v29, v{104+p}, v{17+2*d}')
    I('s_nop 2')
    I('v_lshlrev_b32 v28, 9, v2')
    I('v_lshl_add_u32 v28, v1, 5, v28')
    I('ds_write_b128 v28, v[16:19]')
    I('ds_write_b128 v28, v[20:23] offset:16')
    I('s_waitcnt lgkmcnt(0)')
    I('s_barrier')
    st()
    I('v_cmp_gt_u32 vcc, 128, v0')
    I('s_and_saveexec_b64 s[52:53], vcc')
    I('s_cbranch_execz K0_r')
    I('v_lshlrev_b32 v28, 2, v0')
    for i in range(32):
        I(f'ds_read_b32 v{48+i}, v28 offset:{512*i}')
    for stp in (16, 8, 4, 2, 1):
        for i in range(stp):
            I(f'v_add_f32 v{48+i}, v{48+i}, v{48+i+stp}')
    I('s_cmp_eq_u32 s27, 2')
    I('s_cbranch_scc1 K0_nr')
    rnd_bf16(a, 48, 48)
    I('s_lshr_b32 s62, s2, 2')
    I('s_cmp_eq_u32 s62, 66')
    I('s_cbranch_scc0 K0_nr')
    I('v_add_f32 v48, 1.0, v48')
    rnd_bf16(a, 48, 48)
    a.label('K0_nr')
    I(f'ds_write_b32 v28, v48 offset:{L_RES}')
    I('s_cmp_eq_u32 s27, 0')
    I('s_cbranch_scc1 K0_r')
    I('buffer_store_dword v48, v28, s[40:43], s28 offen')
    a.label('K0_r')
    I('s_mov_b64 exec, s[52:53]')
    I('s_cmp_eq_u32 s27, 0')
    I('s_cbranch_scc0 K0_end')
    I('s_waitcnt lgkmcnt(0)')
    I('s_barrier')
    I('v_lshlrev_b32 v28, 5, v4')
    I(f'ds_read_b128 v[48:51], v28 offset:{L_RES}')
    I(f'ds_read_b128 v[52:55], v28 offset:{L_RES+16}')
    I(f'ds_read_b128 v[56:59], v28 offset:{L_RES+256}')
    I(f'ds_read_b128 v[60:63], v28 offset:{L_RES+272}')
    for e in range(8):
        I(f'v_add_f32 v{56+e}, 1.0, v{56+e}')
        rnd_bf16(a, 56+e, 56+e)
        I(f'v_mul_f32 v{96+e}, v{96+e}, v{56+e}')
        rnd_bf16(a, 96+e, 96+e)
        I(f'v_add_f32 v{96+e}, v{96+e}, v{48+e}')
    for d in range(4):
        I(f'v_cvt_pk_bf16_f32 v{64+d}, v{96+2*d}, v{97+2*d}')
    I('v_lshrrev_b32 v28, 5, v7')
    I('v_lshlrev_b32 v28, 15, v28')
    I('v_lshrrev_b32 v29, 1, v4')
    I('v_lshl_add_u32 v28, v29, 10, v28')
    I('v_and_b32 v29, 1, v4')
    I('v_lshl_add_u32 v28, v29, 9, v28')
    I('v_and_b32 v29, 31, v7')
    I('v_lshl_add_u32 v28, v29, 4, v28')
    I('s_lshl_b32 s29, s30, 16')
    I('s_lshl_b32 s44, s31, 12')
    I('s_add_u32 s29, s29, s44')
    I(f'buffer_store_dwordx4 v[64:67], v28, s[40:43], s29 offen')
    st.flush(40, 54, 70, 9)
    a.label('K0_end')
    I('s_endpgm')
    print("K0 instrs", a.ninstr, "nops", a.nnop)
    return a.text(), kernel_desc(name, 128, 96)
```

```python
from common import *

SLOT = 32768
EREG = 131072
def slot_of(c): return (c % 4) * SLOT

def gen_k1(name, stamps=False, touch=True):
    a = Asm()
    st = Stamper(a, stamps, 1)
    kernel_header(a, name)
    I = a.I
    vX = [1,2,3,4]
    vWA = [5,6,7,8]
    vKA = [9,10,11,12,13,14,15,16]
    vT0, vT1, vT2, vT3 = 17,18,19,20
    vMX = 21; vNEGM = 22; vL = [23,24,25,26]
    vLANE16 = 27
    vKD = [28,29,30,31]
    BIG = 32
    ACC = 160
    AF = 224
    QF = ACC
    SACC = ACC + 32
    vHA = vT0
    I('s_cmp_ge_u32 s2, 256')
    I('s_cbranch_scc1 K1_end')
    I(f's_load_dwordx4 s[4:7], s[0:1], {KA_K}')
    I(f's_load_dwordx4 s[28:31], s[0:1], {KA_WQ}')
    I(f's_load_dwordx2 s[32:33], s[0:1], {KA_WS}')
    I(f's_load_dwordx8 s[56:63], s[0:1], {KA_W1}')
    I('v_and_b32 v17, 63, v0')
    I('v_lshrrev_b32 v18, 6, v0')
    I('s_nop 0')
    I('v_readfirstlane_b32 s34, v18')
    I('s_and_b32 s35, s2, 7')
    I('s_lshr_b32 s36, s2, 3')
    I(f'v_lshlrev_b32 v{vLANE16}, 4, v17')
    for j in range(4):
        I(f'v_xor_b32 v{vX[j]}, {j<<6}, v{vLANE16}')
    I('s_waitcnt lgkmcnt(0)')
    st.first()
    srd(a, 8, 28, 29, 512*8192)
    srd(a, 12, 4, 5, 8*2048*256)
    srd(a, 16, 6, 7, 8*2048*256)
    srd(a, 20, 30, 31, 4096*1024)
    srd(a, 24, 32, 33, WS_SIZE)
    I('s_and_b32 s37, s34, 3')
    I('s_lshr_b32 s38, s34, 2')
    I('s_lshl_b32 s39, s34, 12')
    I('s_lshl_b32 s44, s35, 10')
    I('s_lshl_b32 s45, s34, 15')
    I('s_add_u32 s44, s44, s45')
    I('s_lshl_b32 s45, s35, 19')
    I(f's_add_u32 s45, s45, {1536*256}')
    I('s_add_u32 s45, s45, s39')
    I('s_lshl_b32 s46, s35, 19')
    I('s_add_u32 s46, s46, s39')
    I('s_lshl_b32 s43, s35, 17')
    I('s_add_u32 s43, s43, s39')
    I(f's_add_u32 s43, s43, {WS_VP:#x}')
    I('s_lshl_b32 s40, s36, 16')
    I('s_lshl_b32 s41, s38, 15')
    I('s_add_u32 s40, s40, s41')
    I('s_and_b32 s41, s34, 3')
    I('s_lshl_b32 s41, s41, 9')
    I('s_add_u32 s40, s40, s41')
    I('s_lshl_b32 s41, s34, 9')
    I(f's_add_u32 s41, s41, {EREG}')

    def dma_chunk(c):
        L = []
        L.append(f's_add_u32 s47, s39, {slot_of(c)}')
        L.append('s_mov_b32 m0, s47')
        if c < 16:
            for j in range(4):
                L.append(f's_add_u32 s48, s44, {c*32*8192 + j*7168}')
                L.append(f'buffer_load_dwordx4 v{vX[j]}, s[8:11], s48 offen offset:{1024*j} lds')
            L.append(f's_add_u32 s47, s41, {(c%4)*4096}')
            L.append('s_mov_b32 m0, s47')
            L.append(f's_add_u32 s48, s40, {c*2048}')
            L.append(f's_mov_b32 exec_hi, 0\nbuffer_load_dwordx4 v{vLANE16}, s[24:27], s48 offen lds\ns_mov_b32 exec_hi, -1')
        elif c < 20:
            L.append(f's_add_u32 s48, s45, {(c-16)*32768}')
            for j in range(4):
                L.append(f'buffer_load_dwordx4 v{vKD[j]}, s[12:15], s48 offen offset:{1024*j} lds')
        elif c < 24:
            L.append(f's_add_u32 s48, s43, {(c-20)*32768}')
            for j in range(4):
                L.append(f'buffer_load_dwordx4 v{vLANE16}, s[24:27], s48 offen offset:{1024*j} lds')
        else:
            L.append(f's_add_u32 s48, s46, {(c-24)*32768}')
            for j in range(4):
                L.append(f'buffer_load_dwordx4 v{vX[j]}, s[20:23], s48 offen offset:{1024*j} lds')
        return L
    TOUCH_AT = {19: 'wo', 23: 'wb'}
    def ndma(c): return (5 if c < 16 else 4) + (1 if c in TOUCH_AT else 0)
    def touch_ops(kind):
        L = []
        if kind == 'wo':
            L.append(f'v_lshlrev_b32 v{vT3}, 1, v{vLANE16}')
            L.append('s_lshl_b32 s48, s35, 19')
            L.append('s_lshl_b32 s49, s36, 14')
            L.append('s_add_u32 s48, s48, s49')
            L.append('s_lshl_b32 s49, s34, 11')
            L.append('s_add_u32 s48, s48, s49')
            L.append(f'buffer_load_dword v{vT2}, v{vT3}, s[20:23], s48 offen')
        else:
            L.append(f'v_lshlrev_b32 v{vT3}, 3, v{vLANE16}')
            L.append('s_cmp_eq_u32 s37, 1\ns_cselect_b32 s16, s58, s56\ns_cselect_b32 s17, s59, s57')
            L.append('s_cmp_eq_u32 s37, 2\ns_cselect_b32 s16, s60, s16\ns_cselect_b32 s17, s61, s17')
            L.append('s_cmp_eq_u32 s37, 3\ns_cselect_b32 s16, s62, s16\ns_cselect_b32 s17, s63, s17')
            L.append(f's_mov_b32 s18, {512*1024}\ns_movk_i32 s48, 2048\ns_cmp_ge_u32 s37, 2\ns_cselect_b32 s18, {1792*1024}, s18\ns_cselect_b32 s48, 7168, s48')
            L.append('s_mul_i32 s48, s48, s2')
            L.append(f'buffer_load_dword v{vT2}, v{vT3}, s[16:19], s48 offen')
        return L
    for s in dma_chunk(0): I(s)
    ntouch = 0
    for c in (1, 2):
        for s in dma_chunk(c): I(s)
    I('v_lshrrev_b32 v18, 5, v17')
    I('v_bfe_u32 v19, v17, 2, 2')
    I('v_lshl_add_u32 v20, v18, 3, v19')
    I('v_lshlrev_b32 v20, 10, v20')
    I('v_bfe_u32 v21, v17, 4, 1')
    I('v_lshl_add_u32 v20, v21, 5, v20')
    I('v_and_b32 v21, 1, v17')
    I('v_lshl_add_u32 v20, v21, 4, v20')
    I('v_bfe_u32 v21, v17, 1, 1')
    I('v_lshl_add_u32 v20, v21, 3, v20')
    I('s_lshl_b32 s48, s37, 8')
    I('v_add_u32 v22, s48, v20')
    for mt in range(4):
        I(f'v_xor_b32 v21, {mt}, v19')
        I(f'v_lshl_add_u32 v{vWA[mt]}, v21, 6, v22')
    I('v_and_b32 v21, 31, v17')
    I('v_and_b32 v22, 15, v17')
    I('v_xor_b32 v22, v22, v18')
    I('v_lshlrev_b32 v21, 8, v21')
    I(f'v_add_u32 v21, {slot_of(16)}, v21')
    for s in range(8):
        I(f'v_xor_b32 v23, {2*s}, v22')
        I(f'v_lshl_add_u32 v{vKA[s]}, v23, 4, v21')
    I('v_lshrrev_b32 v21, 4, v17')
    I('v_and_b32 v22, 15, v17')
    I('v_xor_b32 v22, v22, v21')
    I('v_lshlrev_b32 v21, 8, v21')
    for j in range(4):
        I(f'v_xor_b32 v23, {4*j}, v22')
        I(f'v_lshl_add_u32 v{vKD[j]}, v23, 4, v21')
    I('s_lshl_b32 s48, s38, 11')
    I(f's_add_u32 s48, s48, {EREG}')
    I(f'v_add_u32 v{vHA}, s48, v{vLANE16}')
    I(f's_waitcnt vmcnt({5 + 5 + ntouch})')
    I('s_barrier')
    st()

    def w_reads(buf, ks):
        L = []
        for mt in range(4):
            for t in range(2):
                d = AF + 16*buf + 4*mt + 2*t
                L.append(f'ds_read_b64_tr_b16 v[{d}:{d+1}], v{vWA[mt]} offset:{(16*ks + 4*t)*1024}')
        return L
    def h_read(kk):
        c = kk // 2; ks = kk % 2
        d = BIG + 4*(kk % 4)
        return [f'ds_read_b128 v[{d}:{d+3}], v{vHA} offset:{(c%4)*4096 + ks*1024}']
    def w_advance(c_from, c_to):
        delta = slot_of(c_to) - slot_of(c_from)
        if delta >= 0: return [f'v_add_u32 v{vWA[mt]}, {delta}, v{vWA[mt]}' for mt in range(4)]
        return [f'v_subrev_u32 v{vWA[mt]}, {-delta}, v{vWA[mt]}' for mt in range(4)]
    issued = [2]
    def top_sync(c, issue_list):
        allowed = sum(ndma(x) for x in range(c+2, issued[0]+1))
        I(f's_waitcnt vmcnt({allowed})')
        I('s_barrier')
        L = []
        for x in issue_list:
            L += dma_chunk(x); issued[0] = max(issued[0], x)
            if x in TOUCH_AT: L += touch_ops(TOUCH_AT[x])
        return L

    def gemm_phase(c0, is_p2, issue_map, side=None):
        for i in range(16):
            c = c0 + i
            extra = top_sync(c, issue_map.get(c, [])) if (is_p2 or i > 0) else []
            for ks in range(2):
                kk = 2*i + ks
                buf = kk & 1
                if ks == 0:
                    pre = w_reads(buf ^ 1, 1)
                    if is_p2: pre = h_read(kk+1) + pre
                elif i < 15:
                    pre = w_advance(c, c+1) + w_reads(buf ^ 1, 0)
                    if is_p2: pre = h_read(kk+1) + pre
                else:
                    pre = []
                bfr = BIG + 4*(kk % 4) if is_p2 else BIG + 4*kk
                mf = []
                for mt in range(4):
                    d = ACC + 16*mt
                    cc = '0' if kk == 0 else f'v[{d}:{d+15}]'
                    mf.append(f'v_mfma_f32_32x32x16_bf16 v[{d}:{d+15}], v[{AF+16*buf+4*mt}:{AF+16*buf+4*mt+3}], v[{bfr}:{bfr+3}], {cc}')
                other = pre + (extra if ks == 0 else [])
                sd = side.get(kk, []) if side else []
                for s in merge(mf, other, sd): I(s)

    def k_reads(t):
        L = []
        c = 16 + t//4
        for s in range(8):
            if t % 4 == 0 and t > 0:
                delta = slot_of(c) - slot_of(c-1)
                if delta >= 0: L.append(f'v_add_u32 v{vKA[s]}, {delta}, v{vKA[s]}')
                else: L.append(f'v_subrev_u32 v{vKA[s]}, {-delta}, v{vKA[s]}')
            L.append(f'ds_read_b128 v[{AF+4*s}:{AF+4*s+3}], v{vKA[s]} offset:{(t%4)*8192}')
        return L

    for s in h_read(0) + w_reads(0, 0): I(s)
    issue_map = {c: [c+3] for c in range(0, 37)}
    issue_map[24] = []
    issue_map[25] = [27, 28]
    gemm_phase(0, True, issue_map)
    st()
    for s in k_reads(0): I(s)
    for j in range(32):
        I(f'v_cvt_pk_bf16_f32 v{QF+j}, v{ACC+2*j}, v{ACC+2*j+1}')
    scale = f32bits(128 ** -0.5)
    I(f's_mov_b32 s50, {scale:#x}')
    I(f's_mov_b32 s51, {f32bits(1.4426950408889634):#x}')
    I('s_mov_b32 s52, 0xffff0000')
    I(f'v_mov_b32 v{vMX}, 0xff800000')
    def s_post(t):
        b = SACC + 16*(t & 1)
        L = []
        for i in range(8):
            L.append(f'v_max3_f32 v{vMX}, v{b+2*i}, v{b+2*i+1}, v{vMX}')
        for i in range(8):
            L.append(f'v_cvt_pk_bf16_f32 v{b+2*i}, 0, v{b+2*i}')
            L.append(f'v_cvt_pk_bf16_f32 v{b+2*i+1}, 0, v{b+2*i+1}')
            L.append(f'v_mul_f32 v{b+2*i}, s50, v{b+2*i}')
            L.append(f'v_mul_f32 v{b+2*i+1}, s50, v{b+2*i+1}')
            L.append(f'v_cvt_pk_bf16_f32 v{BIG+8*t+i}, v{b+2*i}, v{b+2*i+1}')
        return L
    def tr_addr_setup(rowshift, rowmul_log, base_expr_sgpr_setup):
        L = []
        L.append(f'v_lshrrev_b32 v{vT0}, 4, v{vLANE16}')
        L.append(f'v_lshrrev_b32 v{vT1}, 5, v{vT0}')
        L.append(f'v_bfe_u32 v{vT2}, v{vT0}, 2, 2')
        L.append(f'v_lshl_add_u32 v{vT1}, v{vT1}, {rowshift}, v{vT2}')
        L.append(f'v_lshlrev_b32 v{vT1}, {rowmul_log}, v{vT1}')
        L.append(f'v_bfe_u32 v{vT3}, v{vT0}, 4, 1')
        L.append(f'v_lshl_add_u32 v{vT1}, v{vT3}, 5, v{vT1}')
        L.append(f'v_and_b32 v{vT3}, 1, v{vT0}')
        L.append(f'v_lshl_add_u32 v{vT1}, v{vT3}, 4, v{vT1}')
        L.append(f'v_bfe_u32 v{vT3}, v{vT0}, 1, 1')
        L.append(f'v_lshl_add_u32 v{vT1}, v{vT3}, 3, v{vT1}')
        L += base_expr_sgpr_setup
        L.append(f'v_add_u32 v{vT1}, s53, v{vT1}')
        for mt in range(4):
            L.append(f'v_xor_b32 v{vT3}, {mt}, v{vT2}')
            L.append(f'v_lshl_add_u32 v{vWA[mt]}, v{vT3}, 6, v{vT1}')
        return L
    def v_dma_setup():
        L = []
        L.append(f'v_lshrrev_b32 v{vT1}, 8, v{vLANE16}')
        L.append(f'v_lshlrev_b32 v{vT1}, 6, v{vT1}')
        L.append(f'v_xor_b32 v{vT2}, v{vT1}, v{vLANE16}')
        return L
    def v_reads(kap, buf):
        L = []
        c = 20 + kap//8; ks = kap % 8
        if ks == 0:
            L.append(f'v_add_u32 v{vKD[1]}, {slot_of(c)}, v{vLANE16}')
        for mt in range(4):
            d = AF + 16*buf + 4*mt
            L.append(f'ds_read_b128 v[{d}:{d+3}], v{vKD[1]} offset:{ks*4096 + mt*1024}')
        return L
    for t in range(16):
        c = 16 + t//4
        extra = []
        if t % 4 == 0:
            extra = top_sync(c, issue_map.get(c, []))
        b = SACC + 16*(t & 1)
        reads = k_reads(t+1) if t < 15 else []
        post = s_post(t-1) if t > 0 else []
        if t == 14: post = post + tr_addr_setup(3, 10, ['s_lshl_b32 s53, s37, 8', f's_add_u32 s53, s53, {slot_of(24)}'])
        seq = []
        others = merge(extra, post)
        n_o = len(others); oi = 0
        ri = 0
        for s in range(8):
            cc = '0' if s == 0 else f'v[{b}:{b+15}]'
            seq.append(f'v_mfma_f32_32x32x16_bf16 v[{b}:{b+15}], v[{AF+4*s}:{AF+4*s+3}], v[{QF+4*s}:{QF+4*s+3}], {cc}')
            while ri < len(reads):
                seq.append(reads[ri]); ri += 1
                if reads[ri-1].startswith('ds_read'): break
            tgt = (n_o * (s+1)) // 8
            while oi < tgt:
                seq.append(others[oi]); oi += 1
        for s in seq: I(s)
    st()
    for s in v_reads(0, 0): I(s)
    for s in s_post(15): I(s)
    I(f'v_mov_b32 v{vT0}, v{vMX}')
    I(f'v_permlane32_swap_b32 v{vMX}, v{vT0}')
    I(f'v_max_f32 v{vMX}, v{vMX}, v{vT0}')
    I(f'v_cvt_pk_bf16_f32 v{vMX}, 0, v{vMX}')
    I(f'v_mul_f32 v{vMX}, s50, v{vMX}')
    I(f'v_cvt_pk_bf16_f32 v{vMX}, 0, v{vMX}')
    I(f'v_mul_f32 v{vNEGM}, s51, v{vMX}')
    I(f'v_sub_f32 v{vNEGM}, 0, v{vNEGM}')
    for l in vL: I(f'v_mov_b32 v{l}, 0')
    PT = vKA
    def p_comp(kap):
        L = []
        base = BIG + 4*kap
        for d in range(4):
            L.append(f'v_lshlrev_b32 v{PT[2*d]}, 16, v{base+d}')
            L.append(f'v_and_b32 v{PT[2*d+1]}, s52, v{base+d}')
        for e in range(8):
            L.append(f'v_fma_f32 v{PT[e]}, v{PT[e]}, s51, v{vNEGM}')
        for e in range(8):
            L.append(f'v_exp_f32 v{PT[e]}, v{PT[e]}')
        for d in range(4):
            L.append(f'v_add_f32 v{vL[d]}, v{vL[d]}, v{PT[2*d]}')
            L.append(f'v_cvt_pk_bf16_f32 v{base+d}, v{PT[2*d]}, v{PT[2*d+1]}')
            L.append(f'v_add_f32 v{vL[d]}, v{vL[d]}, v{PT[2*d+1]}')
        return L
    for s in p_comp(0): I(s)
    st()
    for kap in range(32):
        c = 20 + kap//8
        extra = []
        if kap % 8 == 0:
            extra = top_sync(c, issue_map.get(c, []))
        buf = kap & 1
        pre = v_reads(kap+1, buf ^ 1) if kap < 31 else []
        pc = p_comp(kap+1) if kap < 31 else []
        if kap == 31:
            pc = [f'v_add_f32 v{vL[0]}, v{vL[0]}, v{vL[1]}', f'v_add_f32 v{vL[2]}, v{vL[2]}, v{vL[3]}', f'v_add_f32 v{vL[0]}, v{vL[0]}, v{vL[2]}',
                  f'v_mov_b32 v{vL[1]}, v{vL[0]}', 's_nop 1', f'v_permlane32_swap_b32 v{vL[0]}, v{vL[1]}', f'v_add_f32 v{vL[0]}, v{vL[0]}, v{vL[1]}', f'v_rcp_f32 v{vL[0]}, v{vL[0]}']
        mf = []
        for mt in range(4):
            d = ACC + 16*mt
            cc = '0' if kap == 0 else f'v[{d}:{d+15}]'
            mf.append(f'v_mfma_f32_32x32x16_bf16 v[{d}:{d+15}], v[{AF+16*buf+4*mt}:{AF+16*buf+4*mt+3}], v[{BIG+4*kap}:{BIG+4*kap+3}], {cc}')
        for s in merge(mf, extra + pre, pc): I(s)
    st()
    I(f's_mov_b32 s48, {EREG}')
    I('s_cmp_eq_u32 s38, 1')
    I(f's_cselect_b32 s48, {slot_of(23)}, s48')
    I(f'v_add_u32 v{vT0}, s48, v{vLANE16}')
    I('s_lshl_b32 s49, s37, 13')
    I(f'v_add_u32 v{vT1}, s49, v{vT0}')
    I('s_barrier')
    for s in w_reads(0, 0): I(s)
    for q in range(8):
        for j in range(4*q, 4*q+4):
            I(f'v_mul_f32 v{ACC+2*j}, v{ACC+2*j}, v{vL[0]}')
            I(f'v_mul_f32 v{ACC+2*j+1}, v{ACC+2*j+1}, v{vL[0]}')
            I(f'v_cvt_pk_bf16_f32 v{BIG+j}, v{ACC+2*j}, v{ACC+2*j+1}')
        I(f'ds_write_b128 v{vT1}, v[{BIG+4*q}:{BIG+4*q+3}] offset:{1024*q}')
    allowed = sum(ndma(x) for x in range(26, issued[0]+1))
    I(f's_waitcnt vmcnt({allowed}) lgkmcnt(0)')
    I('s_barrier')
    o_reads = [f'ds_read_b128 v[{BIG+4*ks}:{BIG+4*ks+3}], v{vT0} offset:{1024*ks}' for ks in range(32)]
    for s in o_reads[:4]: I(s)
    st()
    side = {0: o_reads[4:18], 1: o_reads[18:32] + ['s_waitcnt lgkmcnt(0)']}
    gemm_phase(24, False, issue_map, side)
    st()
    I('s_lshl_b32 s48, s35, 21')
    I('s_lshl_b32 s49, s36, 16')
    I('s_add_u32 s48, s48, s49')
    I('s_lshl_b32 s49, s38, 15')
    I('s_add_u32 s48, s48, s49')
    I('s_lshl_b32 s49, s37, 13')
    I('s_add_u32 s48, s48, s49')
    I(f's_add_u32 s48, s48, {WS_P:#x}')
    I('s_add_u32 s49, s48, 4096')
    for j in range(32):
        I(f'v_cvt_pk_bf16_f32 v{BIG+j}, v{ACC+2*j}, v{ACC+2*j+1}')
        if j % 4 == 3:
            q = j // 4
            so = 's48' if q < 4 else 's49'
            I(f'buffer_store_dwordx4 v[{BIG+4*q}:{BIG+4*q+3}], v{vLANE16}, s[24:27], {so} offen offset:{1024*(q%4)}')
    if stamps:
        I(f'v_lshrrev_b32 v{vT3}, 4, v{vLANE16}')
        st.flush(24, 34, 200, vT3)
    a.label('K1_end')
    I('s_endpgm')
    print("K1 instrs", a.ninstr, "nops", a.nnop)
    return a.text(), kernel_desc(name, 256, 96)
```

```python
from common import *

LOG2E = 1.4426950408889634
def gelu_ops(x, t, sC0, sC1):
    return [
        f'v_mul_f32 v{t}, v{x}, v{x}',
        f'v_fma_f32 v{t}, v{t}, {sC1}, {sC0}',
        f'v_mul_f32 v{t}, v{t}, v{x}',
        f'v_exp_f32 v{t}, v{t}',
        f'v_add_f32 v{t}, 1.0, v{t}',
        f'v_rcp_f32 v{t}, v{t}',
        f'v_mul_f32 v{x}, v{x}, v{t}',
    ]

def ident_frags(a, lane, A0, A1, t0, t1, t2):
    I = a.I
    I(f'v_and_b32 v{t0}, 31, v{lane}')
    I(f'v_and_b32 v{t1}, 0x13, v{t0}')
    I(f'v_bfe_u32 v{t2}, v{t0}, 2, 1')
    I(f'v_lshl_or_b32 v{t1}, v{t2}, 3, v{t1}')
    I(f'v_bfe_u32 v{t2}, v{t0}, 3, 1')
    I(f'v_lshl_or_b32 v{t1}, v{t2}, 2, v{t1}')
    I(f'v_lshrrev_b32 v{t0}, 5, v{lane}')
    I(f'v_lshlrev_b32 v{t0}, 3, v{t0}')
    I(f'v_sub_u32 v{t1}, v{t1}, v{t0}')
    for which, A in ((0, A0), (1, A1)):
        for dw in range(4):
            I(f'v_mov_b32 v{A+dw}, 0')
            I(f'v_cmp_eq_u32 vcc, {16*which + 2*dw}, v{t1}')
            I(f'v_mov_b32 v{t2}, 0x3f80')
            I(f'v_cndmask_b32 v{A+dw}, v{A+dw}, v{t2}, vcc')
            I(f'v_cmp_eq_u32 vcc, {16*which + 2*dw + 1}, v{t1}')
            I(f'v_mov_b32 v{t2}, 0x3f800000')
            I(f'v_cndmask_b32 v{A+dw}, v{A+dw}, v{t2}, vcc')

def half_sum(a, r, t):
    a.I(f'v_mov_b32 v{t}, v{r}')
    a.I(f'v_permlane32_swap_b32 v{r}, v{t}')
    a.I(f'v_add_f32 v{r}, v{r}, v{t}')

def ln_rstd(a, var, mean):
    rnd_bf16(a, mean, mean)
    rnd_bf16(a, var, var)
    a.I(f'v_add_f32 v{var}, {f32bits(1e-5):#x}, v{var}')
    rnd_bf16(a, var, var)
    a.I(f'v_sqrt_f32 v{var}, v{var}')
    rnd_bf16(a, var, var)
    a.I(f'v_rcp_f32 v{var}, v{var}')

def gen_k2(name, stamps=False):
    a = Asm()
    st = Stamper(a, stamps, 2)
    kernel_header(a, name)
    I = a.I
    HB = 131072
    vLANE, vL16 = 1, 2
    A0, A1 = 4, 8
    T = [12,13,14,15,16,17,18,19]
    XR = 20
    GA = 36
    D = 68
    P = 100
    TB = 100; SB = 132
    U = 228
    I('s_cmp_ge_u32 s2, 256')
    I('s_cbranch_scc1 K2_end')
    I(f's_load_dwordx2 s[4:5], s[0:1], {KA_X}')
    I(f's_load_dwordx2 s[6:7], s[0:1], {KA_W1}')
    I(f's_load_dwordx2 s[32:33], s[0:1], {KA_WS}')
    I(f'v_and_b32 v{vLANE}, 63, v0')
    I('v_lshrrev_b32 v3, 6, v0')
    I('s_nop 0')
    I('v_readfirstlane_b32 s34, v3')
    I('s_and_b32 s35, s2, 7')
    I('s_lshr_b32 s36, s2, 3')
    I('s_lshl_b32 s35, s35, 3')
    I('s_lshr_b32 s37, s36, 2')
    I('s_add_u32 s35, s35, s37')
    I('s_and_b32 s36, s36, 3')
    I(f'v_lshlrev_b32 v{vL16}, 4, v{vLANE}')
    I('s_waitcnt lgkmcnt(0)')
    st.first()
    srd(a, 8, 4, 5, 2048*1024)
    srd(a, 12, 6, 7, 512*1024)
    srd(a, 24, 32, 33, WS_SIZE)
    I('s_lshl_b32 s40, s35, 15')
    I('s_lshl_b32 s41, s34, 12')
    I('s_add_u32 s40, s40, s41')
    I(f's_add_u32 s42, s40, {WS_P:#x}')
    def ploads(ct):
        for g in range(8):
            I(f's_add_u32 s43, s42, {g*2097152:#x}')
            for s in range(2):
                r = P + 64*ct + 8*g + 4*s
                I(f'buffer_load_dwordx4 v[{r}:{r+3}], v{vL16}, s[24:27], s43 offen offset:{1024*(2*ct+s)}')
    ploads(0)
    I(f'v_and_b32 v{T[0]}, 31, v{vLANE}')
    I(f'v_lshlrev_b32 v{T[0]}, 10, v{T[0]}')
    I(f'v_lshrrev_b32 v{T[1]}, 5, v{vLANE}')
    I(f'v_lshl_add_u32 v{T[0]}, v{T[1]}, 4, v{T[0]}')
    I('s_lshl_b32 s43, s35, 15')
    I('s_lshl_b32 s44, s34, 7')
    I('s_add_u32 s43, s43, s44')
    for s in range(4):
        I(f'buffer_load_dwordx4 v[{XR+4*s}:{XR+4*s+3}], v{T[0]}, s[8:11], s43 offen offset:{32*s}')
    I(f'v_lshlrev_b32 v{T[2]}, 5, v{T[1]}')
    I('s_lshl_b32 s44, s34, 8')
    I(f's_add_u32 s44, s44, {WS_MOD:#x}')
    for s in range(4):
        for h2 in range(2):
            r = GA + 8*s + 4*h2
            I(f'buffer_load_dwordx4 v[{r}:{r+3}], v{T[2]}, s[24:27], s44 offen offset:{64*s + 16*h2}')
    ploads(1)
    I(f'v_lshrrev_b32 v{T[3]}, 4, v{vLANE}')
    I(f'v_and_b32 v{T[4]}, 15, v{vLANE}')
    I(f'v_lshlrev_b32 v{T[5]}, 2, v{T[3]}')
    I(f'v_xor_b32 v{T[4]}, v{T[4]}, v{T[5]}')
    I(f'v_lshlrev_b32 v{T[4]}, 4, v{T[4]}')
    I(f'v_lshl_add_u32 v3, v{T[3]}, 10, v{T[4]}')
    I('s_lshl_b32 s45, s34, 16')
    I('s_lshl_b32 s46, s36, 8')
    I('s_add_u32 s45, s45, s46')
    I('s_lshl_b32 s46, s34, 14')
    dma = [f's_add_u32 s47, s46, {j*1024}\ns_mov_b32 m0, s47\ns_add_u32 s49, s45, {j*4096}\nbuffer_load_dwordx4 v3, s[12:15], s49 offen lds' for j in range(16)]
    ident_frags(a, vLANE, A0, A1, T[5], T[6], T[7])
    I('s_mov_b32 s52, 0xffff0000')
    I('s_mov_b32 s53, 0x3f803f80')
    st()
    def reduce(ct):
        L = []
        d = D + 16*ct
        first = True
        for g in range(8):
            for s in range(2):
                r = P + 64*ct + 8*g + 4*s
                A = A0 if s == 0 else A1
                cc = '0' if first else f'v[{d}:{d+15}]'
                L.append(f'v_mfma_f32_32x32x16_bf16 v[{d}:{d+15}], v[{A}:{A+3}], v[{r}:{r+3}], {cc}')
                first = False
        return L
    def x1_ops(ct):
        L = []
        for e in range(16*ct, 16*ct+16, 2):
            r = D + e; u = U + 2*((e//2) % 2); xr = XR + e//2
            L.append(f'v_cvt_pk_bf16_f32 v{r}, 0, v{r}')
            L.append(f'v_cvt_pk_bf16_f32 v{r+1}, 0, v{r+1}')
            L.append(f'v_lshlrev_b32 v{u}, 16, v{xr}')
            L.append(f'v_pk_mul_f32 v[{r}:{r+1}], v[{r}:{r+1}], v[{GA+e}:{GA+e+1}]')
            L.append(f'v_and_b32 v{u+1}, s52, v{xr}')
            L.append(f'v_cvt_pk_bf16_f32 v{r}, 0, v{r}')
            L.append(f'v_cvt_pk_bf16_f32 v{r+1}, 0, v{r+1}')
            L.append(f'v_pk_add_f32 v[{r}:{r+1}], v[{r}:{r+1}], v[{u}:{u+1}]')
            L.append(f'v_cvt_pk_bf16_f32 v{xr}, v{r}, v{r+1}')
            L.append(f'v_lshlrev_b32 v{r}, 16, v{xr}')
            L.append(f'v_and_b32 v{r+1}, s52, v{xr}')
        return L
    for s in reduce(0): I(s)
    I('s_nop 7')
    for vec, base in ((2, TB), (1, SB)):
        I(f's_add_u32 s43, s44, {2048*vec}')
        for s in range(4):
            for h2 in range(2):
                r = base + 8*s + 4*h2
                I(f'buffer_load_dwordx4 v[{r}:{r+3}], v{T[2]}, s[24:27], s43 offen offset:{64*s + 16*h2}')
    for s in merge(x1_ops(0), dma[:6]): I(s)
    for s in reduce(1): I(s)
    for s in merge(x1_ops(1), dma[6:12]): I(s)
    st()
    I('s_lshr_b32 s47, s34, 1')
    I('s_cmp_eq_u32 s47, s36')
    I('s_cselect_b32 s54, 0, 0x10000000')
    I(f's_add_u32 s43, s40, {WS_X1:#x}')
    I('s_add_u32 s43, s43, s54')
    for s in range(4):
        I(f'buffer_store_dwordx4 v[{XR+4*s}:{XR+4*s+3}], v{vL16}, s[24:27], s43 offen offset:{1024*s}')
    def stats_exchange(area, mean, var, R):
        I(f'v_mov_b32 v{mean}, 0'); I(f'v_mov_b32 v{var}, 0'); I(f'v_mov_b32 v{T[6]}, 0'); I(f'v_mov_b32 v{T[7]}, 0')
        for j in range(0, 16, 2):
            I(f'v_dot2_f32_bf16 v{mean}, v{XR+j}, s53, v{mean}')
            I(f'v_dot2_f32_bf16 v{var}, v{XR+j}, v{XR+j}, v{var}')
            I(f'v_dot2_f32_bf16 v{T[6]}, v{XR+j+1}, s53, v{T[6]}')
            I(f'v_dot2_f32_bf16 v{T[7]}, v{XR+j+1}, v{XR+j+1}, v{T[7]}')
        I(f'v_lshrrev_b32 v{T[5]}, 1, v{vL16}')
        I('s_lshl_b32 s48, s34, 9')
        I(f's_add_u32 s48, s48, {area}')
        I(f'v_add_f32 v{mean}, v{mean}, v{T[6]}')
        I(f'v_add_f32 v{var}, v{var}, v{T[7]}')
        I(f'v_add_u32 v{T[6]}, s48, v{T[5]}')
        I(f'ds_write_b64 v{T[6]}, v[{mean}:{var}]')
        I(f'v_and_b32 v{T[5]}, 0xff, v{T[5]}')
        I(f'v_add_u32 v{T[5]}, {area}, v{T[5]}')
        I('s_waitcnt lgkmcnt(0)')
        I('s_barrier')
        for w in range(16):
            I(f'ds_read_b64 v[{R+2*w}:{R+2*w+1}], v{T[5]} offset:{256*w}')
        for stp in (8, 4, 2, 1):
            for w in range(stp):
                I(f'v_pk_add_f32 v[{R+2*w}:{R+2*w+1}], v[{R+2*w}:{R+2*w+1}], v[{R+2*(w+stp)}:{R+2*(w+stp)+1}]')
        I(f'v_mul_f32 v{mean}, {f32bits(1.0/512):#x}, v{R}')
        I(f'v_mul_f32 v{var}, {f32bits(1.0/512):#x}, v{R+1}')
        I(f'v_fma_f32 v{var}, -v{mean}, v{mean}, v{var}')
        I(f'v_max_f32 v{var}, 0, v{var}')
        ln_rstd(a, var, mean)
    M, V = T[0], T[1]
    RX = GA
    stats_exchange(HB, M, V, RX)
    st()
    I(f'v_sub_f32 v{U}, 0, v{M}'); I(f'v_sub_f32 v{U+1}, 0, v{M}')
    I(f'v_mov_b32 v{U+2}, v{V}'); I(f'v_mov_b32 v{U+3}, v{V}')
    hbops = []
    for e in range(0, 32, 2):
        r = D + e
        hbops.append(f'v_pk_add_f32 v[{r}:{r+1}], v[{r}:{r+1}], v[{U}:{U+1}]')
        hbops.append(f'v_cvt_pk_bf16_f32 v{r}, 0, v{r}')
        hbops.append(f'v_cvt_pk_bf16_f32 v{r+1}, 0, v{r+1}')
        hbops.append(f'v_pk_mul_f32 v[{r}:{r+1}], v[{r}:{r+1}], v[{U+2}:{U+3}]')
        hbops.append(f'v_cvt_pk_bf16_f32 v{r}, 0, v{r}')
        hbops.append(f'v_cvt_pk_bf16_f32 v{r+1}, 0, v{r+1}')
        hbops.append(f'v_pk_mul_f32 v[{r}:{r+1}], v[{r}:{r+1}], v[{TB+e}:{TB+e+1}]')
        hbops.append(f'v_cvt_pk_bf16_f32 v{r}, 0, v{r}')
        hbops.append(f'v_cvt_pk_bf16_f32 v{r+1}, 0, v{r+1}')
        hbops.append(f'v_pk_add_f32 v[{r}:{r+1}], v[{r}:{r+1}], v[{SB+e}:{SB+e+1}]')
        hbops.append(f'v_cvt_pk_bf16_f32 v{XR+e//2}, v{r}, v{r+1}')
    for s in merge(hbops, dma[12:]): I(s)
    I(f's_add_u32 s43, s40, {WS_HB:#x}')
    I('s_add_u32 s43, s43, s54')
    for s in range(4):
        I(f'buffer_store_dwordx4 v[{XR+4*s}:{XR+4*s+3}], v{vL16}, s[24:27], s43 offen offset:{1024*s}')
    CS = 100
    I('s_and_b32 s55, s34, 3')
    I('s_lshr_b32 s56, s34, 2')
    I('s_lshl_b32 s48, s36, 9')
    I('s_lshl_b32 s49, s55, 7')
    I('s_add_u32 s48, s48, s49')
    I('s_lshl_b32 s49, s56, 6')
    I('s_add_u32 s48, s48, s49')
    I(f's_add_u32 s48, s48, {WS_CS1:#x}')
    for h2 in range(2):
        I(f'buffer_load_dwordx4 v[{CS+4*h2}:{CS+4*h2+3}], v{T[2]}, s[24:27], s48 offen offset:{16*h2}')
    M3, V3 = T[2], T[3]
    stats_exchange(HB + 4096, M3, V3, RX)
    I('s_waitcnt lgkmcnt(0)')
    I('s_barrier')
    st()
    I('s_lshl_b32 s48, s34, 12')
    I(f's_add_u32 s48, s48, {HB}')
    I(f'v_add_u32 v{T[5]}, s48, v{vL16}')
    for s in range(4):
        I(f'ds_write_b128 v{T[5]}, v[{XR+4*s}:{XR+4*s+3}] offset:{1024*s}')
    BF = 108
    AFR = 36
    ACC = 68
    I('s_lshl_b32 s48, s56, 14')
    I(f's_add_u32 s48, s48, {HB}')
    I(f'v_add_u32 v{T[5]}, s48, v{vL16}')
    I(f'v_lshrrev_b32 v{T[6]}, 5, v{vLANE}')
    I(f'v_bfe_u32 v{T[7]}, v{vLANE}, 2, 2')
    I(f'v_lshl_add_u32 v{T[6]}, v{T[6]}, 3, v{T[7]}')
    I(f'v_lshlrev_b32 v{T[6]}, 8, v{T[6]}')
    I(f'v_xor_b32 v{T[7]}, s55, v{T[7]}')
    I(f'v_lshl_add_u32 v{T[6]}, v{T[7]}, 6, v{T[6]}')
    I(f'v_bfe_u32 v{T[7]}, v{vLANE}, 4, 1')
    I(f'v_lshl_add_u32 v{T[6]}, v{T[7]}, 5, v{T[6]}')
    I(f'v_and_b32 v{T[7]}, 1, v{vLANE}')
    I(f'v_lshl_add_u32 v{T[6]}, v{T[7]}, 4, v{T[6]}')
    I(f'v_bfe_u32 v{T[7]}, v{vLANE}, 1, 1')
    I(f'v_lshl_add_u32 v{T[6]}, v{T[7]}, 3, v{T[6]}')
    I('s_lshl_b32 s48, s56, 16')
    I(f'v_add_u32 v{T[6]}, s48, v{T[6]}')
    I('s_waitcnt vmcnt(0) lgkmcnt(0)')
    I('s_barrier')
    st()
    def rd(ks):
        L = [f'ds_read_b128 v[{BF+4*ks}:{BF+4*ks+3}], v{T[5]} offset:{1024*ks}']
        for t in range(2):
            d = AFR + 4*(ks % 8) + 2*t
            L.append(f'ds_read_b64_tr_b16 v[{d}:{d+1}], v{T[6]} offset:{(16*ks + 4*t)*256}')
        return L
    PRE = 5
    for ks in range(PRE):
        for s in rd(ks): I(s)
    for ks in range(16):
        cc = '0' if ks == 0 else f'v[{ACC}:{ACC+15}]'
        I(f'v_mfma_f32_32x32x16_bf16 v[{ACC}:{ACC+15}], v[{AFR+4*(ks%8)}:{AFR+4*(ks%8)+3}], v[{BF+4*ks}:{BF+4*ks+3}], {cc}')
        if ks + PRE < 16:
            for s in rd(ks + PRE): I(s)
    I('s_barrier')
    I('s_lshl_b32 s48, s34, 11')
    I(f's_add_u32 s48, s48, {HB}')
    I(f'v_add_u32 v{T[5]}, s48, v{vL16}')
    I('s_xor_b32 s49, s34, 4')
    I('s_lshl_b32 s49, s49, 11')
    I(f's_add_u32 s49, s49, {HB}')
    I(f'v_add_u32 v{T[6]}, s49, v{vL16}')
    I('s_cmp_eq_u32 s56, 1')
    I('s_cselect_b64 vcc, -1, 0')
    for e in range(8):
        I(f'v_cndmask_b32 v{AFR+e}, v{ACC+8+e}, v{ACC+e}, vcc')
        I(f'v_cndmask_b32 v{AFR+8+e}, v{ACC+e}, v{ACC+8+e}, vcc')
    I(f'ds_write_b128 v{T[5]}, v[{AFR}:{AFR+3}]')
    I(f'ds_write_b128 v{T[5]}, v[{AFR+4}:{AFR+7}] offset:1024')
    I('s_waitcnt lgkmcnt(0)')
    I('s_barrier')
    I(f'ds_read_b128 v[{AFR+16}:{AFR+19}], v{T[6]}')
    I(f'ds_read_b128 v[{AFR+20}:{AFR+23}], v{T[6]} offset:1024')
    st()
    c0 = -2.0 * (2.0/3.141592653589793) ** 0.5 * LOG2E
    I(f's_mov_b32 s50, {f32bits(c0*0.044715):#x}')
    I(f'v_mov_b32 v{T[4]}, {f32bits(c0):#x}')
    ep = []
    for e in range(8):
        r = AFR + 8 + e
        L = [f'v_add_f32 v{r}, v{r}, v{AFR+16+e}', f'v_fma_f32 v{r}, -v{M3}, v{CS+e}, v{r}', f'v_mul_f32 v{r}, v{r}, v{V3}', f'v_cvt_pk_bf16_f32 v{r}, 0, v{r}']
        L += gelu_ops(r, AFR + e, 'v%d' % T[4], 's50')
        ep.append(L)
    for s in merge(*ep): I(s)
    for j in range(4):
        I(f'v_cvt_pk_bf16_f32 v{XR+j}, v{AFR+8+2*j}, v{AFR+8+2*j+1}')
    I('s_lshl_b32 s48, s35, 15')
    I('s_lshl_b32 s49, s36, 13')
    I('s_add_u32 s48, s48, s49')
    I('s_lshl_b32 s49, s55, 11')
    I('s_add_u32 s48, s48, s49')
    I('s_lshl_b32 s49, s56, 10')
    I('s_add_u32 s48, s48, s49')
    I(f's_add_u32 s48, s48, {WS_T:#x}')
    I(f'buffer_store_dwordx4 v[{XR}:{XR+3}], v{vL16}, s[24:27], s48 offen')
    st.flush(24, 34, 228, vLANE)
    a.label('K2_end')
    I('s_endpgm')
    print("K2 instrs", a.ninstr, "nops", a.nnop)
    return a.text(), kernel_desc(name, 232, 96)
```

```python
from common import *
from k2 import half_sum

def gen_k3(name, stamps=False):
    a = Asm()
    st = Stamper(a, stamps, 3)
    kernel_header(a, name)
    I = a.I
    vLANE, vL16 = 1, 2
    T = [4,5,6,7,8,9,10,11]
    VS = [12,13,14,15]
    HBR = 16
    ACC = 24
    AFR = 40
    BF = 72
    I('s_cmp_ge_u32 s2, 256')
    I('s_cbranch_scc1 K3_end')
    I(f's_load_dwordx2 s[6:7], s[0:1], {KA_W2}')
    I(f's_load_dwordx2 s[32:33], s[0:1], {KA_WS}')
    I(f'v_and_b32 v{vLANE}, 63, v0')
    I('v_lshrrev_b32 v3, 6, v0')
    I('s_nop 0')
    I('v_readfirstlane_b32 s34, v3')
    I('s_and_b32 s35, s2, 7')
    I('s_lshr_b32 s36, s2, 3')
    I('s_lshl_b32 s35, s35, 2')
    I('s_lshr_b32 s37, s36, 3')
    I('s_add_u32 s35, s35, s37')
    I('s_and_b32 s36, s36, 7')
    I('s_and_b32 s38, s34, 1')
    I('s_lshr_b32 s39, s34, 1')
    I('s_lshl_b32 s40, s35, 1')
    I('s_add_u32 s40, s40, s38')
    I(f'v_lshlrev_b32 v{vL16}, 4, v{vLANE}')
    I('s_waitcnt lgkmcnt(0)')
    st.first()
    srd(a, 12, 6, 7, 512*1024)
    srd(a, 24, 32, 33, WS_SIZE)
    srd(a, 16, 32, 33, 2097152, add=WS_T)
    I(f'v_lshrrev_b32 v{T[0]}, 3, v{vLANE}')
    I(f'v_and_b32 v{T[1]}, 7, v{vLANE}')
    I(f'v_bfe_u32 v{T[2]}, v{vLANE}, 4, 1')
    I(f'v_lshlrev_b32 v{T[2]}, 2, v{T[2]}')
    I(f'v_xor_b32 v{T[1]}, v{T[1]}, v{T[2]}')
    I(f'v_lshlrev_b32 v{T[1]}, 4, v{T[1]}')
    I(f'v_lshl_add_u32 v{T[1]}, v{T[0]}, 10, v{T[1]}')
    I('s_lshl_b32 s45, s34, 17')
    I('s_lshl_b32 s46, s36, 7')
    I('s_add_u32 s45, s45, s46')
    I('s_lshl_b32 s46, s34, 14')
    I(f'v_and_b32 v{T[3]}, 31, v{vLANE}')
    I('s_lshl_b32 s47, s40, 5')
    I(f'v_add_u32 v{T[3]}, s47, v{T[3]}')
    I(f'v_and_b32 v{T[4]}, 32, v{vLANE}')
    for gi, sh in enumerate((-1, 1, -2, 2)):
        I(f'v_add_u32 v{T[5]}, {sh}, v{T[3]}')
        I(f'v_lshrrev_b32 v{T[6]}, 5, v{T[5]}')
        I(f'v_lshlrev_b32 v{T[6]}, 15, v{T[6]}')
        I(f'v_and_b32 v{T[5]}, 31, v{T[5]}')
        I(f'v_add_u32 v{T[5]}, v{T[5]}, v{T[4]}')
        I(f'v_lshl_add_u32 v{VS[gi]}, v{T[5]}, 4, v{T[6]}')
    dma = []
    for j in range(16):
        dma.append('s_mov_b32 m0, s46')
        dma.append(f'buffer_load_dwordx4 v{T[1]}, s[12:15], s45 offen lds')
        if j < 15:
            dma.append('s_add_u32 s45, s45, 8192'); dma.append('s_add_u32 s46, s46, 1024')
    for s in dma: I(s)
    for ks in range(32):
        if ks % 4 == 0: I(f's_movk_i32 s48, {ks*1024}')
        I(f'buffer_load_dwordx4 v[{BF+4*ks}:{BF+4*ks+3}], v{VS[ks//8]}, s[16:19], s48 offen offset:{1024*(ks%4)}')
    I('s_lshl_b32 s48, s40, 15')
    I('s_lshl_b32 s49, s36, 12')
    I('s_add_u32 s48, s48, s49')
    I('s_lshl_b32 s49, s39, 11')
    I('s_add_u32 s48, s48, s49')
    I(f's_add_u32 s49, s48, {WS_HB:#x}')
    for hf in range(2):
        I(f'buffer_load_dwordx4 v[{HBR+4*hf}:{HBR+4*hf+3}], v{vL16}, s[24:27], s49 offen offset:{1024*hf}')
    I(f'v_lshrrev_b32 v{T[6]}, 5, v{vLANE}')
    I(f'v_bfe_u32 v{T[7]}, v{vLANE}, 2, 2')
    I(f'v_lshl_add_u32 v{T[6]}, v{T[6]}, 3, v{T[7]}')
    I(f'v_lshlrev_b32 v{T[6]}, 7, v{T[6]}')
    I(f'v_bfe_u32 v{T[7]}, v{vLANE}, 3, 1')
    I(f'v_xor_b32 v{T[7]}, s39, v{T[7]}')
    I(f'v_lshl_add_u32 v{T[6]}, v{T[7]}, 6, v{T[6]}')
    I(f'v_bfe_u32 v{T[7]}, v{vLANE}, 4, 1')
    I(f'v_lshl_add_u32 v{T[6]}, v{T[7]}, 5, v{T[6]}')
    I(f'v_and_b32 v{T[7]}, 1, v{vLANE}')
    I(f'v_lshl_add_u32 v{T[6]}, v{T[7]}, 4, v{T[6]}')
    I(f'v_bfe_u32 v{T[7]}, v{vLANE}, 1, 1')
    I(f'v_lshl_add_u32 v{T[6]}, v{T[7]}, 3, v{T[6]}')
    st()
    I('s_waitcnt vmcnt(34)')
    I('s_barrier')
    st()
    def rd(ks):
        L = []
        for t in range(2):
            d = AFR + 4*(ks % 8) + 2*t
            L.append(f'ds_read_b64_tr_b16 v[{d}:{d+1}], v{T[6]} offset:{(16*ks + 4*t)*128}')
        return L
    PRE = 6
    for ks in range(PRE):
        for s in rd(ks): I(s)
    for ks in range(32):
        cc = '0' if ks == 0 else f'v[{ACC}:{ACC+15}]'
        I(f'v_mfma_f32_32x32x16_bf16 v[{ACC}:{ACC+15}], v[{AFR+4*(ks%8)}:{AFR+4*(ks%8)+3}], v[{BF+4*ks}:{BF+4*ks+3}], {cc}')
        if ks + PRE < 32:
            for s in rd(ks + PRE): I(s)
    st()
    I('s_mov_b32 s52, 0xffff0000')
    for e in range(16):
        r = ACC + e
        rnd_bf16(a, r, r)
        h = HBR + e//2
        if e % 2 == 0: I(f'v_lshlrev_b32 v{T[0]}, 16, v{h}')
        else: I(f'v_and_b32 v{T[0]}, s52, v{h}')
        I(f'v_add_f32 v{r}, v{r}, v{T[0]}')
        rnd_bf16(a, r, r)
    for j in range(8):
        I(f'v_cvt_pk_bf16_f32 v{HBR+j}, v{ACC+2*j}, v{ACC+2*j+1}')
    I(f's_add_u32 s49, s48, {WS_X1B:#x}')
    for hf in range(2):
        I(f'buffer_store_dwordx4 v[{HBR+4*hf}:{HBR+4*hf+3}], v{vL16}, s[24:27], s49 offen offset:{1024*hf}')
    M, V = T[0], T[1]
    I(f'v_add_f32 v{M}, v{ACC}, v{ACC+1}')
    for e in range(2, 16): I(f'v_add_f32 v{M}, v{M}, v{ACC+e}')
    half_sum(a, M, V)
    I(f'v_mul_f32 v{M}, {f32bits(1.0/32):#x}, v{M}')
    I(f'v_mov_b32 v{V}, 0')
    for e in range(16):
        I(f'v_sub_f32 v{T[2]}, v{ACC+e}, v{M}')
        I(f'v_fmac_f32 v{V}, v{T[2]}, v{T[2]}')
    half_sum(a, V, T[2])
    I(f'v_lshlrev_b32 v{T[2]}, 7, v{T[3]}')
    I('s_lshl_b32 s49, s36, 4')
    I('s_lshl_b32 s50, s39, 3')
    I('s_add_u32 s49, s49, s50')
    I(f's_add_u32 s49, s49, {WS_ST4:#x}')
    I('s_mov_b32 exec_lo, -1'); I('s_mov_b32 exec_hi, 0')
    I(f'buffer_store_dwordx2 v[{M}:{V}], v{T[2]}, s[24:27], s49 offen')
    st.flush(24, 34, 200, vLANE)
    a.label('K3_end')
    I('s_endpgm')
    print("K3 instrs", a.ninstr, "nops", a.nnop)
    return a.text(), kernel_desc(name, 208, 96)
```

```python
from common import *
from k2 import gelu_ops, ln_rstd, LOG2E

def gen_k4(name, stamps=False):
    a = Asm()
    st = Stamper(a, stamps, 4)
    kernel_header(a, name)
    I = a.I
    vLANE, vL16 = 1, 2
    T = [4,5,6,7,8,9,10,11]
    AD = [12,13,14,15]
    M4, V4 = 20, 21
    OUTP = 24
    ST = 96
    ACC = 64
    AFR = 40
    CS = 32
    NRING = 6
    L_CS = 131072
    BF = 0
    I('s_cmp_ge_u32 s2, 224')
    I('s_cbranch_scc1 K4_end')
    I(f's_load_dwordx2 s[6:7], s[0:1], {KA_W3}')
    I(f's_load_dwordx2 s[32:33], s[0:1], {KA_WS}')
    I(f'v_and_b32 v{vLANE}, 63, v0')
    I('v_lshrrev_b32 v3, 6, v0')
    I('s_nop 0')
    I('v_readfirstlane_b32 s55, v3')
    I('s_and_b32 s34, s55, 3')
    I('s_and_b32 s35, s2, 7')
    I('s_lshr_b32 s36, s2, 3')
    I('s_mul_i32 s37, s36, 37')
    I('s_lshr_b32 s37, s37, 8')
    I('s_mul_i32 s38, s37, 7')
    I('s_sub_u32 s36, s36, s38')
    I('s_and_b32 s38, s35, 1')
    I('s_mul_i32 s38, s38, 7')
    I('s_add_u32 s36, s36, s38')
    I('s_lshr_b32 s35, s35, 1')
    I('s_lshl_b32 s35, s35, 2')
    I('s_add_u32 s35, s35, s37')
    I('s_lshl_b32 s40, s35, 2')
    I('s_add_u32 s40, s40, s34')
    I(f'v_lshlrev_b32 v{vL16}, 4, v{vLANE}')
    I('s_waitcnt lgkmcnt(0)')
    st.first()
    srd(a, 12, 6, 7, 512*3584)
    srd(a, 24, 32, 33, WS_SIZE)
    I(f'v_lshrrev_b32 v{T[0]}, 3, v{vLANE}')
    I(f'v_and_b32 v{T[1]}, 7, v{vLANE}')
    I(f'v_bfe_u32 v{T[2]}, v{vLANE}, 4, 1')
    I(f'v_lshlrev_b32 v{T[2]}, 2, v{T[2]}')
    I(f'v_xor_b32 v{T[1]}, v{T[1]}, v{T[2]}')
    I(f'v_lshlrev_b32 v{T[1]}, 4, v{T[1]}')
    I(f'v_mul_u32_u24 v{T[0]}, 3584, v{T[0]}')
    I(f'v_add_u32 v{T[4]}, v{T[1]}, v{T[0]}')
    I(f's_mul_i32 s45, s34, {8*3584}')
    I('s_lshl_b32 s46, s36, 8')
    I('s_add_u32 s45, s45, s46')
    I('s_lshl_b32 s46, s34, 10')
    def dma(hf, j):
        return [f's_add_u32 s47, s46, {hf*65536 + j*4096}', 's_mov_b32 m0, s47',
                f's_add_u32 s48, s45, {hf*128 + j*32*3584}',
                f'buffer_load_dwordx4 v{T[4]}, s[12:15], s48 offen lds']
    I('s_lshl_b32 s49, s40, 15')
    I(f's_add_u32 s49, s49, {WS_X1B:#x}')
    def bload(ks):
        L = []
        if ks % 4 == 0 and ks > 0: L.append('s_add_u32 s49, s49, 4096')
        L.append(f'buffer_load_dwordx4 a[{BF+4*ks}:{BF+4*ks+3}], v{vL16}, s[24:27], s49 offen offset:{1024*(ks%4)}')
        return L
    I('s_cmp_ge_u32 s55, 4')
    I('s_cbranch_scc0 K4_comp')
    I('s_lshl_b32 s51, s36, 9')
    I(f's_add_u32 s51, s51, {WS_CS3:#x}')
    I(f's_mov_b32 m0, {L_CS}')
    I('s_mov_b32 exec_hi, 0')
    I(f'buffer_load_dwordx4 v{vL16}, s[24:27], s51 offen lds')
    I('s_mov_b32 exec_hi, -1')
    n_save = st.n
    AH = 3
    def grp(q):
        for j in range(4*(q%4), 4*(q%4)+4):
            for s in dma(q//4, j): I(s)
    for q in range(AH): grp(q)
    for q in range(8):
        out = min(8, q + AH) - (q + 1)
        I(f's_waitcnt vmcnt({4*out})')
        st()
        I('s_barrier')
        if q + AH < 8: grp(q + AH)
    st.kidx = 6
    st.flush(24, 55, 22, vLANE)
    st.kidx = 4; st.n = n_save
    I('s_branch K4_end')
    a.label('K4_comp')
    for ks in range(8):
        for s in bload(ks): I(s)
    I(f'v_and_b32 v{T[0]}, 31, v{vLANE}')
    I(f'v_lshlrev_b32 v{T[0]}, 7, v{T[0]}')
    I('s_lshl_b32 s50, s40, 12')
    I(f's_add_u32 s50, s50, {WS_ST4:#x}')
    for j in range(8):
        I(f'buffer_load_dwordx4 v[{ST+4*j}:{ST+4*j+3}], v{T[0]}, s[24:27], s50 offen offset:{16*j}')
    for ks in range(8, 32):
        for s in bload(ks): I(s)
    I(f'v_lshrrev_b32 v{T[6]}, 5, v{vLANE}')
    I(f'v_bfe_u32 v{T[7]}, v{vLANE}, 2, 2')
    I(f'v_lshl_add_u32 v{T[6]}, v{T[6]}, 3, v{T[7]}')
    I(f'v_lshlrev_b32 v{T[6]}, 7, v{T[6]}')
    I(f'v_bfe_u32 v{T[5]}, v{vLANE}, 4, 1')
    I(f'v_lshl_add_u32 v{T[6]}, v{T[5]}, 5, v{T[6]}')
    I(f'v_and_b32 v{T[5]}, 1, v{vLANE}')
    I(f'v_lshl_add_u32 v{T[6]}, v{T[5]}, 4, v{T[6]}')
    I(f'v_bfe_u32 v{T[5]}, v{vLANE}, 1, 1')
    I(f'v_lshl_add_u32 v{T[6]}, v{T[5]}, 3, v{T[6]}')
    I(f'v_bfe_u32 v{T[7]}, v{vLANE}, 3, 1')
    I(f'v_lshl_add_u32 v{AD[0]}, v{T[7]}, 6, v{T[6]}')
    I(f'v_xor_b32 v{T[7]}, 1, v{T[7]}')
    I(f'v_lshl_add_u32 v{AD[1]}, v{T[7]}, 6, v{T[6]}')
    I(f'v_add_u32 v{AD[2]}, 65536, v{AD[0]}')
    I(f'v_add_u32 v{AD[3]}, 65536, v{AD[1]}')
    I(f'v_lshrrev_b32 v{T[5]}, 5, v{vLANE}')
    I(f'v_lshlrev_b32 v{T[5]}, 5, v{T[5]}')
    I(f'v_add_u32 v{T[5]}, {L_CS}, v{T[5]}')
    st()
    def stats():
        L = []
        L.append(f'v_add_f32 v{M4}, v{ST}, v{ST+2}')
        L.append(f'v_add_f32 v{V4}, v{ST+1}, v{ST+3}')
        for j in range(2, 16):
            L.append(f'v_add_f32 v{M4}, v{M4}, v{ST+2*j}')
            L.append(f'v_add_f32 v{V4}, v{V4}, v{ST+2*j+1}')
        L.append(f'v_mul_f32 v{M4}, {f32bits(1.0/16):#x}, v{M4}')
        L.append(f'v_mov_b32 v{T[2]}, 0')
        for j in range(16):
            L.append(f'v_sub_f32 v{T[3]}, v{ST+2*j}, v{M4}')
            L.append(f'v_fmac_f32 v{T[2]}, v{T[3]}, v{T[3]}')
        L.append(f'v_fmac_f32 v{V4}, {f32bits(32.0):#x}, v{T[2]}')
        L.append(f'v_mul_f32 v{V4}, {f32bits(1.0/512):#x}, v{V4}')
        L.append(f'v_cvt_pk_bf16_f32 v{M4}, 0, v{M4}')
        L.append(f'v_cvt_pk_bf16_f32 v{V4}, 0, v{V4}')
        L.append(f'v_add_f32 v{V4}, {f32bits(1e-5):#x}, v{V4}')
        L.append(f'v_cvt_pk_bf16_f32 v{V4}, 0, v{V4}')
        L.append(f'v_sqrt_f32 v{V4}, v{V4}')
        L.append(f'v_cvt_pk_bf16_f32 v{V4}, 0, v{V4}')
        L.append(f'v_rcp_f32 v{V4}, v{V4}')
        return L
    c0 = -2.0 * (2.0/3.141592653589793) ** 0.5 * LOG2E
    I(f's_mov_b32 s52, {f32bits(c0*0.044715):#x}')
    I(f'v_mov_b32 v{T[6]}, {f32bits(c0):#x}')
    I(f's_mul_i32 s53, s40, 114688')
    I('s_lshl_b32 s54, s36, 13')
    I('s_add_u32 s53, s53, s54')
    I(f's_add_u32 s53, s53, {WS_T2:#x}')
    I('s_add_u32 s54, s53, 4096')
    def epi(mt):
        L = []
        b = ACC + 16*mt
        TT = [T[0], T[1], T[2], T[3]]
        for h8 in range(2):
            L.append(f'ds_read_b128 v[{CS}:{CS+3}], v{T[5]} offset:{128*mt + 64*h8}')
            L.append(f'ds_read_b128 v[{CS+4}:{CS+7}], v{T[5]} offset:{128*mt + 64*h8 + 16}')
            for g4 in range(2):
                chains = []
                for i in range(4):
                    e = 8*h8 + 4*g4 + i
                    r = b + e
                    c = [f'v_fma_f32 v{r}, -v{M4}, v{CS+(e%8)}, v{r}', f'v_mul_f32 v{r}, v{r}, v{V4}', f'v_cvt_pk_bf16_f32 v{r}, 0, v{r}']
                    c += gelu_ops(r, TT[i], 'v%d' % T[6], 's52')
                    chains.append(c)
                for j in range(len(chains[0])):
                    for c in chains: L.append(c[j])
                for i in (0, 2):
                    e = 8*h8 + 4*g4 + i
                    L.append(f'v_cvt_pk_bf16_f32 v{OUTP+e//2}, v{b+e}, v{b+e+1}')
            q = 2*mt + h8
            so = 's53' if q < 4 else 's54'
            L.append(f'buffer_store_dwordx4 v[{OUTP+4*h8}:{OUTP+4*h8+3}], v{vL16}, s[24:27], {so} offen offset:{1024*(q%4)}')
        return L
    def rd(hf, idx):
        ks, m2 = idx // 2, idx % 2
        L = []
        for t in range(2):
            d = AFR + 4*(idx % NRING) + 2*t
            L.append(f'ds_read_b64_tr_b16 v[{d}:{d+1}], v{AD[2*hf+m2]} offset:{(16*ks + 4*t)*128}')
        return L
    PRE = 4
    for hf in range(2):
        for qd in range(4):
            I('s_barrier')
            if hf == 1 and qd == 0: st()
            main = []
            base = 16*qd
            for idx in range(base, base+PRE): main += rd(hf, idx)
            lim = base + 16
            for idx in range(base, base+16):
                ks, m2 = idx // 2, idx % 2
                b = ACC + 16*(2*hf + m2)
                cc = '0' if ks == 0 else f'v[{b}:{b+15}]'
                main.append(f'v_mfma_f32_32x32x16_bf16 v[{b}:{b+15}], v[{AFR+4*(idx%NRING)}:{AFR+4*(idx%NRING)+3}], a[{BF+4*ks}:{BF+4*ks+3}], {cc}')
                if idx + PRE < lim: main += rd(hf, idx + PRE)
            side = []
            if hf == 0:
                if qd == 1: side = stats()
            else:
                e = epi(0) + epi(1)
                n0 = (len(e) * qd) // 4; n1 = (len(e) * (qd+1)) // 4
                side = e[n0:n1]
            for s in merge(main, side): I(s)
    st()
    for s in merge(epi(2), []) : I(s)
    for s in epi(3): I(s)
    st.flush(24, 34, 22, vLANE)
    a.label('K4_end')
    I('s_endpgm')
    print("K4 instrs", a.ninstr, "nops", a.nnop)
    return a.text(), kernel_desc(name, 256, 96, accum=128)
```

```python
from common import *

def gen_k5(name, stamps=False):
    a = Asm()
    st = Stamper(a, stamps, 5)
    kernel_header(a, name)
    I = a.I
    vLANE, vL16 = 1, 2
    T = [4,5,6,7,8,9,10,11]
    AD = [12,13]
    X1R, X1BR = 16, 20
    GB = 24
    ACC = 32
    AFR = 64
    BF = 96
    NR = 7; NS = 5
    I('s_cmp_ge_u32 s2, 256')
    I('s_cbranch_scc1 K5_end')
    I(f's_load_dwordx2 s[6:7], s[0:1], {KA_W4}')
    I(f's_load_dwordx2 s[4:5], s[0:1], {KA_OUT}')
    I(f's_load_dwordx2 s[32:33], s[0:1], {KA_WS}')
    I(f'v_and_b32 v{vLANE}, 63, v0')
    I('v_lshrrev_b32 v3, 6, v0')
    I('s_nop 0')
    I('v_readfirstlane_b32 s34, v3')
    I('s_and_b32 s35, s2, 7')
    I('s_lshr_b32 s36, s2, 3')
    I('s_lshl_b32 s35, s35, 2')
    I('s_lshr_b32 s37, s36, 3')
    I('s_add_u32 s35, s35, s37')
    I('s_and_b32 s36, s36, 7')
    I('s_and_b32 s38, s34, 1')
    I('s_lshr_b32 s39, s34, 1')
    I('s_lshl_b32 s40, s35, 1')
    I('s_add_u32 s40, s40, s38')
    I(f'v_lshlrev_b32 v{vL16}, 4, v{vLANE}')
    I('s_waitcnt lgkmcnt(0)')
    st.first()
    srd(a, 12, 6, 7, 1792*1024)
    srd(a, 8, 4, 5, 2048*1024)
    srd(a, 24, 32, 33, WS_SIZE)
    I(f'v_lshrrev_b32 v{T[0]}, 3, v{vLANE}')
    I(f'v_and_b32 v{T[1]}, 7, v{vLANE}')
    I(f'v_bfe_u32 v{T[2]}, v{vLANE}, 4, 1')
    I(f'v_lshlrev_b32 v{T[2]}, 2, v{T[2]}')
    I(f'v_xor_b32 v{T[1]}, v{T[1]}, v{T[2]}')
    I(f'v_lshlrev_b32 v{T[1]}, 4, v{T[1]}')
    I(f'v_lshl_add_u32 v{T[1]}, v{T[0]}, 10, v{T[1]}')
    I(f's_mul_i32 s45, s39, {448*1024}')
    I('s_lshl_b32 s46, s36, 7')
    I('s_add_u32 s45, s45, s46')
    I('s_lshl_b32 s46, s38, 13')
    I('s_add_u32 s45, s45, s46')
    I('s_lshl_b32 s46, s39, 13')
    I('s_lshl_b32 s47, s38, 10')
    I('s_add_u32 s46, s46, s47')
    I('s_mul_i32 s49, s40, 114688')
    I(f's_mul_i32 s50, s39, {28*1024}')
    I('s_add_u32 s49, s49, s50')
    I(f's_add_u32 s49, s49, {WS_T2:#x}')
    def round_loads(R):
        L = []
        for j in range(4):
            L.append(f's_add_u32 s47, s46, {(R % NS)*32768 + j*2048}\ns_mov_b32 m0, s47\ns_add_u32 s48, s45, {(4*R + j)*16*1024}\nbuffer_load_dwordx4 v{T[1]}, s[12:15], s48 offen lds')
        L.append(f's_add_u32 s50, s49, {R*4096}')
        for j in range(4):
            ks = 4*R + j
            L.append(f'buffer_load_dwordx4 v[{BF+4*ks}:{BF+4*ks+3}], v{vL16}, s[24:27], s50 offen offset:{1024*j}')
        return L
    for R in range(3):
        for s in round_loads(R): I(s)
    I(f'v_lshrrev_b32 v{T[6]}, 5, v{vLANE}')
    I(f'v_bfe_u32 v{T[7]}, v{vLANE}, 2, 2')
    I(f'v_lshl_add_u32 v{T[6]}, v{T[6]}, 3, v{T[7]}')
    I(f'v_lshlrev_b32 v{T[6]}, 7, v{T[6]}')
    I(f'v_bfe_u32 v{T[7]}, v{vLANE}, 4, 1')
    I(f'v_lshl_add_u32 v{T[6]}, v{T[7]}, 5, v{T[6]}')
    I(f'v_and_b32 v{T[7]}, 1, v{vLANE}')
    I(f'v_lshl_add_u32 v{T[6]}, v{T[7]}, 4, v{T[6]}')
    I(f'v_bfe_u32 v{T[7]}, v{vLANE}, 1, 1')
    I(f'v_lshl_add_u32 v{T[6]}, v{T[7]}, 3, v{T[6]}')
    I('s_lshl_b32 s50, s39, 13')
    I(f'v_add_u32 v{T[6]}, s50, v{T[6]}')
    I(f'v_bfe_u32 v{T[7]}, v{vLANE}, 3, 1')
    I(f'v_lshl_add_u32 v{AD[0]}, v{T[7]}, 6, v{T[6]}')
    I(f'v_xor_b32 v{T[7]}, 1, v{T[7]}')
    I(f'v_lshl_add_u32 v{AD[1]}, v{T[7]}, 6, v{T[6]}')
    def epi_loads():
        L = []
        L.append('s_lshl_b32 s51, s40, 15')
        L.append('s_lshl_b32 s52, s36, 12')
        L.append('s_add_u32 s51, s51, s52')
        L.append('s_lshl_b32 s52, s39, 10')
        L.append('s_add_u32 s51, s51, s52')
        L.append(f's_add_u32 s52, s51, {WS_X1:#x}')
        L.append(f'buffer_load_dwordx4 v[{X1R}:{X1R+3}], v{vL16}, s[24:27], s52 offen')
        L.append(f's_add_u32 s52, s51, {WS_X1B:#x}')
        L.append(f'buffer_load_dwordx4 v[{X1BR}:{X1BR+3}], v{vL16}, s[24:27], s52 offen')
        L.append(f'v_lshrrev_b32 v{T[3]}, 5, v{vLANE}')
        L.append(f'v_lshlrev_b32 v{T[3]}, 5, v{T[3]}')
        L.append('s_lshl_b32 s52, s36, 8')
        L.append('s_lshl_b32 s53, s39, 6')
        L.append('s_add_u32 s52, s52, s53')
        L.append(f's_add_u32 s52, s52, {WS_MOD + 3*2048:#x}')
        L.append(f'buffer_load_dwordx4 v[{GB}:{GB+3}], v{T[3]}, s[24:27], s52 offen')
        L.append(f'buffer_load_dwordx4 v[{GB+4}:{GB+7}], v{T[3]}, s[24:27], s52 offen offset:16')
        return L
    def rd(R, j, nt, slot):
        L = []
        off = ((R % NS) % 2) * 32768 + (16*j)*128
        for t in range(2):
            d = AFR + 4*slot + 2*t
            L.append(f'ds_read_b64_tr_b16 v[{d}:{d+1}], v{AD[nt]} offset:{off + 4*t*128}')
        return L
    def adv(R):
        cur = ((R-1) % NS) // 2; new = (R % NS) // 2
        d = (new - cur) * 65536
        if d == 0: return []
        if d > 0: return [f'v_add_u32 v{AD[n]}, {d}, v{AD[n]}' for n in range(2)]
        return [f'v_subrev_u32 v{AD[n]}, {-d}, v{AD[n]}' for n in range(2)]
    issued = [8, 8, 8]
    st()
    for R in range(NR):
        allowed = 4 + sum(issued[R+1:])
        I(f's_waitcnt vmcnt({allowed})')
        I('s_barrier')
        side = []
        if R + 3 < NR:
            side = round_loads(R+3); issued.append(8)
        elif R + 3 == NR:
            side = epi_loads(); issued.append(4)
        seq = [(j, nt) for j in range(4) for nt in range(2)]
        main = adv(R) if R > 0 else []
        for i in range(4):
            main += rd(R, seq[i][0], seq[i][1], i)
        for i, (j, nt) in enumerate(seq):
            b = ACC + 16*nt
            ks = 4*R + j
            cc = '0' if ks == 0 else f'v[{b}:{b+15}]'
            main.append(f'v_mfma_f32_32x32x16_bf16 v[{b}:{b+15}], v[{AFR+4*i}:{AFR+4*i+3}], v[{BF+4*ks}:{BF+4*ks+3}], {cc}')
            if i + 4 < 8:
                main += rd(R, seq[i+4][0], seq[i+4][1], i+4)
        for s in merge(main, side): I(s)
    st()
    RED = 65536
    I('s_lshl_b32 s50, s34, 13')
    I(f's_add_u32 s50, s50, {RED}')
    I(f'v_add_u32 v{T[0]}, s50, v{vL16}')
    for p in range(4):
        for h in range(2):
            r = ACC + 8*p + 4*h
            I(f'ds_write_b128 v{T[0]}, v[{r}:{r+3}] offset:{2048*p + 1024*h}')
    I('s_waitcnt lgkmcnt(0)')
    I('s_barrier')
    I('s_lshl_b32 s50, s38, 13')
    I('s_lshl_b32 s51, s39, 11')
    I('s_add_u32 s50, s50, s51')
    I(f's_add_u32 s50, s50, {RED}')
    I(f'v_add_u32 v{T[0]}, s50, v{vL16}')
    for q in range(4):
        for h in range(2):
            r = AFR + 8*q + 4*h
            I(f'ds_read_b128 v[{r}:{r+3}], v{T[0]} offset:{16384*q + 1024*h}')
    I('s_mov_b32 s52, 0xffff0000')
    for e in range(8):
        r = AFR + e
        I(f'v_add_f32 v{r}, v{r}, v{r+8}')
        I(f'v_add_f32 v{r+16}, v{r+16}, v{r+24}')
        I(f'v_add_f32 v{r}, v{r}, v{r+16}')
        rnd_bf16(a, r, r)
        if e % 2 == 0:
            I(f'v_lshlrev_b32 v{T[1]}, 16, v{X1BR+e//2}'); I(f'v_lshlrev_b32 v{T[2]}, 16, v{X1R+e//2}')
        else:
            I(f'v_and_b32 v{T[1]}, s52, v{X1BR+e//2}'); I(f'v_and_b32 v{T[2]}, s52, v{X1R+e//2}')
        I(f'v_add_f32 v{r}, v{r}, v{T[1]}')
        rnd_bf16(a, r, r)
        I(f'v_mul_f32 v{r}, v{r}, v{GB+e}')
        rnd_bf16(a, r, r)
        I(f'v_add_f32 v{r}, v{r}, v{T[2]}')
    for j in range(4):
        I(f'v_cvt_pk_bf16_f32 v{ACC+j}, v{AFR+2*j}, v{AFR+2*j+1}')
    I(f'v_and_b32 v{T[1]}, 31, v{vLANE}')
    I(f'v_lshlrev_b32 v{T[1]}, 10, v{T[1]}')
    I(f'v_lshrrev_b32 v{T[2]}, 5, v{vLANE}')
    I(f'v_lshl_add_u32 v{T[1]}, v{T[2]}, 4, v{T[1]}')
    I('s_lshl_b32 s50, s40, 15')
    I('s_lshl_b32 s51, s36, 7')
    I('s_add_u32 s50, s50, s51')
    I('s_lshl_b32 s51, s39, 5')
    I('s_add_u32 s50, s50, s51')
    I(f'buffer_store_dwordx4 v[{ACC}:{ACC+3}], v{T[1]}, s[8:11], s50 offen')
    st.flush(24, 34, 208, vLANE)
    a.label('K5_end')
    I('s_endpgm')
    print("K5 instrs", a.ninstr, "nops", a.nnop)
    return a.text(), kernel_desc(name, 216, 96)
```

```python
import sys
from common import *
from k0 import gen_k0
from k1 import gen_k1
from k2 import gen_k2
from k3 import gen_k3
from k4 import gen_k4
from k5 import gen_k5
def build(path, upto=6, stamps=False):
    hdr = open('cdna_kernels/' + NAME + '.s.ref').read().split('; Override launch')[0]
    ks = []
    ks.append(('k0_kernel', (290,1,1), 512, 24576, lambda n: gen_k0(n, stamps)))
    ks.append(('k1_kernel', (256,1,1), 512, 163840, lambda n: gen_k1(n, stamps)))
    ks.append(('k2_kernel', (256,1,1), 512, 163840, lambda n: gen_k2(n, stamps)))
    ks.append(('k3_kernel', (256,1,1), 256, 65536, lambda n: gen_k3(n, stamps)))
    ks.append(('k4_kernel', (224,1,1), 512, 131584, lambda n: gen_k4(n, stamps)))
    ks.append(('k5_kernel', (256,1,1), 512, 163840, lambda n: gen_k5(n, stamps)))
    ks = ks[:upto]
    out = hdr
    for n, g, b, lds, f in ks:
        out += f'; @launch kernel={n} grid=({g[0]},{g[1]},{g[2]}) block=({b},1,1) lds={lds}\n'
    out += '.amdgcn_target "amdgcn-amd-amdhsa--gfx950"\n.text\n'
    descs = ''
    for n, g, b, lds, f in ks:
        t, d = f(n)
        out += t; descs += d
    out += '.section .rodata,"a"\n' + descs
    open(path, 'w').write(out)
if __name__ == '__main__':
    build(sys.argv[1] if len(sys.argv) > 1 else 'cur.s', stamps=(int(sys.argv[2]) if len(sys.argv) > 2 else 0))
```

```python
from common import *

def gen_k0(name, stamps=False, touch=True):
    a = Asm()
    early = (stamps == 3)
    st = Stamper(a, 1 if early else stamps, 0)
    kernel_header(a, name)
    I = a.I
    L_RES, L_SILU, L_V, L_W = 16384, 16896, 20480, 18432
    I('s_cmp_ge_u32 s2, 496')
    I('s_cbranch_scc1 K0_end')
    I(f's_load_dwordx2 s[4:5], s[0:1], {KA_X}')
    I(f's_load_dwordx4 s[8:11], s[0:1], {KA_C}')
    I(f's_load_dwordx2 s[12:13], s[0:1], {KA_W1}')
    I(f's_load_dwordx2 s[14:15], s[0:1], {KA_W3}')
    I(f's_load_dwordx2 s[16:17], s[0:1], {KA_WS}')
    I(f's_load_dwordx4 s[56:59], s[0:1], {KA_K}')
    I(f's_load_dwordx2 s[60:61], s[0:1], {KA_WQ}')
    I('v_and_b32 v1, 15, v0')
    I('v_lshrrev_b32 v2, 4, v0')
    I('v_lshrrev_b32 v3, 6, v0')
    I('s_nop 0')
    I('v_readfirstlane_b32 s54, v3')
    I('s_waitcnt lgkmcnt(0)')
    st.first()
    I('s_cmp_lt_u32 s2, 256')
    I('s_cbranch_scc0 K0_x')
    I('s_mov_b32 s20, s10'); I('s_mov_b32 s21, s11'); I(f's_mov_b32 s22, {512*6144}')
    I('s_movk_i32 s24, 6144')
    I('s_and_b32 s25, s2, 1'); I('s_lshl_b32 s25, s25, 2'); I('s_bfe_u32 s29, s2, 0x20003'); I('s_add_u32 s25, s25, s29'); I('s_lshl_b32 s25, s25, 7')
    I('s_movk_i32 s26, 1024'); I('s_mov_b32 s27, 0'); I('s_mov_b32 s28, 0')
    I('s_mov_b32 s23, 0x00020000')
    srd(a, 32, 4, 5, 2048*1024)
    srd(a, 36, 8, 9, 1024)
    srd(a, 40, 16, 17, WS_SIZE)
    srd(a, 48, 58, 59, 8*2048*256)
    srd(a, 4, 56, 57, 8*2048*256)
    srd(a, 8, 60, 61, 512*8192)
    srd(a, 56, 12, 13, 512*1024)
    if early:
        I('v_and_b32 v9, 63, v0')
        st.flush(40, 54, 70, 9)
        st.on = 0
        stamps = 0
    I('v_lshlrev_b32 v6, 1, v0')
    I('buffer_load_ushort v8, v6, s[36:39], 0 offen')
    I('s_lshl_b32 s29, s24, 4')
    I('v_mul_lo_u32 v3, v2, s29')
    I('v_and_b32 v4, 7, v1')
    I('v_lshlrev_b32 v4, 4, v4')
    I('v_lshrrev_b32 v5, 3, v1')
    I('v_mul_lo_u32 v5, v5, s26')
    I('v_add3_u32 v3, v3, v4, v5')
    I('v_add_u32 v3, s25, v3')
    I('s_bfe_u32 s30, s2, 0x20001')
    I('s_lshl_b32 s30, s30, 3')
    I('s_bfe_u32 s31, s2, 0x30005')
    I('s_add_u32 s30, s30, s31')
    I('s_and_b32 s31, s2, 1'); I('s_lshl_b32 s31, s31, 2'); I('s_bfe_u32 s29, s2, 0x20003'); I('s_add_u32 s31, s31, s29')
    I('s_and_b32 s64, s2, 7')
    I('s_bfe_u32 s65, s2, 0x50003')
    I('v_lshrrev_b32 v7, 3, v0')
    I('v_and_b32 v4, 7, v0')
    I('v_lshlrev_b32 v5, 10, v7')
    I('v_lshl_add_u32 v5, v4, 4, v5')
    I('s_lshl_b32 s45, s30, 16')
    for i in range(8):
        I(f'buffer_load_dwordx4 v[{96+4*i}:{99+4*i}], v5, s[32:35], s45 offen offset:{128*i}')
    I('s_lshl_b32 s44, s31, 7')
    I('s_add_u32 s44, s44, s45')
    I('buffer_load_dwordx4 v[24:27], v5, s[32:35], s44 offen')
    I('s_mov_b32 s29, 0')
    for i in range(16):
        I(f'buffer_load_dwordx4 v[{32+4*i}:{35+4*i}], v3, s[20:23], s29 offen')
        if i < 15: I('s_add_u32 s29, s29, s24')
    st()
    log2e = f32bits(1.4426950408889634)
    I(f's_mov_b32 s45, {log2e:#x}')
    I('s_mov_b32 s46, 0xffff0000')
    I('v_lshlrev_b32 v8, 16, v8')
    I('v_mul_f32 v9, s45, v8')
    I('v_exp_f32 v9, -v9')
    I('v_add_f32 v9, 1.0, v9')
    I('v_rcp_f32 v9, v9')
    I('v_mul_f32 v8, v8, v9')
    I('v_cvt_pk_bf16_f32 v8, v8, v8')
    I('s_cmp_eq_u32 s27, 2')
    I('s_cbranch_scc0 K0_w')
    I('v_mov_b32 v8, 0x3f80')
    a.label('K0_w')
    I(f'ds_write_b16 v6, v8 offset:{L_SILU}')
    I('v_and_b32 v9, 63, v0')
    I('s_waitcnt vmcnt(16)')
    a.vm_q = []
    st()
    I('s_mov_b32 s47, 0x3f803f80')
    I('v_mov_b32 v30, 0'); I('v_mov_b32 v31, 0'); I('v_mov_b32 v28, 0'); I('v_mov_b32 v29, 0')
    for i in range(0, 32, 2):
        I(f'v_dot2_f32_bf16 v30, v{96+i}, s47, v30')
        I(f'v_dot2_f32_bf16 v31, v{96+i}, v{96+i}, v31')
        I(f'v_dot2_f32_bf16 v28, v{97+i}, s47, v28')
        I(f'v_dot2_f32_bf16 v29, v{97+i}, v{97+i}, v29')
    I('s_nop 2')
    I('v_add_f32 v30, v30, v28')
    I('v_add_f32 v31, v31, v29')
    def red8(r, t):
        I(f'v_add_f32_dpp v{t}, v{r}, v{r} quad_perm:[1,0,3,2] row_mask:0xf bank_mask:0xf')
        I(f'v_add_f32_dpp v{r}, v{t}, v{t} quad_perm:[2,3,0,1] row_mask:0xf bank_mask:0xf')
        I(f'v_add_f32_dpp v{t}, v{r}, v{r} row_half_mirror row_mask:0xf bank_mask:0xf')
        I(f'v_mov_b32 v{r}, v{t}')
    red8(30, 28)
    red8(31, 29)
    I(f'v_mul_f32 v30, {f32bits(1.0/512):#x}, v30')
    I(f'v_mul_f32 v31, {f32bits(1.0/512):#x}, v31')
    I('v_fma_f32 v31, -v30, v30, v31')
    I('v_max_f32 v31, 0, v31')
    rnd_bf16(a, 30, 30)
    rnd_bf16(a, 31, 31)
    I(f'v_add_f32 v31, {f32bits(1e-5):#x}, v31')
    rnd_bf16(a, 31, 31)
    I('v_sqrt_f32 v31, v31')
    rnd_bf16(a, 31, 31)
    I('v_rcp_f32 v31, v31')
    for d in range(4):
        I(f'v_lshlrev_b32 v{96+2*d}, 16, v{24+d}')
        I(f'v_and_b32 v{97+2*d}, s46, v{24+d}')
    for e in range(8):
        I(f'v_sub_f32 v{96+e}, v{96+e}, v30')
        rnd_bf16(a, 96+e, 96+e)
        I(f'v_mul_f32 v{96+e}, v{96+e}, v31')
        rnd_bf16(a, 96+e, 96+e)
    st()
    I('s_waitcnt vmcnt(0) lgkmcnt(0)')
    I('s_barrier')
    st()
    I('v_lshlrev_b32 v28, 5, v2')
    I(f'ds_read_b128 v[104:107], v28 offset:{L_SILU}')
    I(f'ds_read_b128 v[108:111], v28 offset:{L_SILU+16}')
    for e in range(8): I(f'v_mov_b32 v{16+e}, 0')
    I('s_mov_b32 s62, 0x05040100')
    I('s_mov_b32 s63, 0x07060302')
    for p in range(8):
        for d in range(4):
            r0 = 32 + 8*p + d; r1 = r0 + 4
            I(f'v_perm_b32 v28, v{r1}, v{r0}, s62')
            I(f'v_perm_b32 v29, v{r1}, v{r0}, s63')
            I(f'v_dot2_f32_bf16 v{16+2*d}, v28, v{104+p}, v{16+2*d}')
            I(f'v_dot2_f32_bf16 v{17+2*d}, v29, v{104+p}, v{17+2*d}')
    I('s_nop 2')
    I('v_lshlrev_b32 v28, 9, v2')
    I('v_lshl_add_u32 v28, v1, 5, v28')
    I('ds_write_b128 v28, v[16:19]')
    I('ds_write_b128 v28, v[20:23] offset:16')
    I('s_waitcnt lgkmcnt(0)')
    I('s_barrier')
    st()
    I('v_cmp_gt_u32 vcc, 128, v0')
    I('s_and_saveexec_b64 s[52:53], vcc')
    I('s_cbranch_execz K0_r')
    I('v_lshlrev_b32 v28, 2, v0')
    for i in range(32):
        I(f'ds_read_b32 v{48+i}, v28 offset:{512*i}')
    for stp in (16, 8, 4, 2, 1):
        for i in range(stp):
            I(f'v_add_f32 v{48+i}, v{48+i}, v{48+i+stp}')
    I('s_cmp_eq_u32 s27, 2')
    I('s_cbranch_scc1 K0_nr')
    rnd_bf16(a, 48, 48)
    I('s_lshr_b32 s62, s2, 2')
    I('s_cmp_eq_u32 s62, 66')
    I('s_cbranch_scc0 K0_nr')
    I('v_add_f32 v48, 1.0, v48')
    rnd_bf16(a, 48, 48)
    a.label('K0_nr')
    I(f'ds_write_b32 v28, v48 offset:{L_RES}')
    I('s_cmp_eq_u32 s27, 0')
    I('s_cbranch_scc1 K0_r')
    I('buffer_store_dword v48, v28, s[40:43], s28 offen')
    a.label('K0_r')
    I('s_mov_b64 exec, s[52:53]')
    I('s_cmp_eq_u32 s27, 0')
    I('s_cbranch_scc0 K0_side_done' if stamps else 's_cbranch_scc0 K0_end')
    I('s_waitcnt lgkmcnt(0)')
    I('s_barrier')
    I('v_lshlrev_b32 v28, 5, v4')
    I(f'ds_read_b128 v[48:51], v28 offset:{L_RES}')
    I(f'ds_read_b128 v[52:55], v28 offset:{L_RES+16}')
    I(f'ds_read_b128 v[56:59], v28 offset:{L_RES+256}')
    I(f'ds_read_b128 v[60:63], v28 offset:{L_RES+272}')
    for e in range(8):
        I(f'v_add_f32 v{56+e}, 1.0, v{56+e}')
        rnd_bf16(a, 56+e, 56+e)
        I(f'v_mul_f32 v{96+e}, v{96+e}, v{56+e}')
        rnd_bf16(a, 96+e, 96+e)
        I(f'v_add_f32 v{96+e}, v{96+e}, v{48+e}')
    for d in range(4):
        I(f'v_cvt_pk_bf16_f32 v{64+d}, v{96+2*d}, v{97+2*d}')
    I('v_lshrrev_b32 v28, 5, v7')
    I('v_lshlrev_b32 v28, 15, v28')
    I('v_lshrrev_b32 v29, 1, v4')
    I('v_lshl_add_u32 v28, v29, 10, v28')
    I('v_and_b32 v29, 1, v4')
    I('v_lshl_add_u32 v28, v29, 9, v28')
    I('v_and_b32 v29, 31, v7')
    I('v_lshl_add_u32 v28, v29, 4, v28')
    I('s_lshl_b32 s29, s30, 16')
    I('s_lshl_b32 s44, s31, 12')
    I('s_add_u32 s29, s29, s44')
    I(f'buffer_store_dwordx4 v[64:67], v28, s[40:43], s29 offen')
    a.label('K0_side_done')
    st.flush(40, 54, 70, 9)
    I('s_endpgm')
    a.label('K0_x')
    I('s_cmp_ge_u32 s2, 392')
    I('s_cbranch_scc1 K0_s')
    I('s_sub_u32 s29, s2, 256')
    I('s_cmp_lt_u32 s29, 64')
    I('s_cbranch_scc0 K0_x1')
    I('s_mov_b32 s20, s10'); I('s_mov_b32 s21, s11'); I(f's_mov_b32 s22, {512*6144}')
    I('s_movk_i32 s24, 6144')
    I('s_lshl_b32 s25, s29, 6'); I('s_add_u32 s25, s25, 2048')
    I('s_mov_b32 s27, 1')
    I('s_lshl_b32 s28, s29, 7'); I(f's_add_u32 s28, s28, {WS_MOD:#x}')
    I('s_branch K0_xd')
    a.label('K0_x1')
    I('s_cmp_lt_u32 s29, 80')
    I('s_cbranch_scc0 K0_x2')
    I('s_mov_b32 s20, s12'); I('s_mov_b32 s21, s13'); I(f's_mov_b32 s22, {512*1024}')
    I('s_movk_i32 s24, 1024')
    I('s_sub_u32 s30, s29, 64')
    I('s_lshl_b32 s25, s30, 6')
    I('s_mov_b32 s27, 2')
    I('s_lshl_b32 s28, s30, 7'); I(f's_add_u32 s28, s28, {WS_CS1:#x}')
    I('s_branch K0_xd')
    a.label('K0_x2')
    I('s_mov_b32 s20, s14'); I('s_mov_b32 s21, s15'); I(f's_mov_b32 s22, {512*3584}')
    I('s_movk_i32 s24, 3584')
    I('s_sub_u32 s30, s29, 80')
    I('s_lshl_b32 s25, s30, 6')
    I('s_mov_b32 s27, 2')
    I('s_lshl_b32 s28, s30, 7'); I(f's_add_u32 s28, s28, {WS_CS3:#x}')
    a.label('K0_xd')
    I('s_mov_b32 s23, 0x00020000')
    srd(a, 36, 8, 9, 1024)
    srd(a, 40, 16, 17, WS_SIZE)
    I('v_lshlrev_b32 v6, 1, v0')
    I('buffer_load_ushort v8, v6, s[36:39], 0 offen')
    I('v_and_b32 v1, 3, v0')
    I('v_lshrrev_b32 v2, 2, v0')
    I('s_lshl_b32 s30, s24, 2')
    I('v_mul_lo_u32 v3, v2, s30')
    I('v_lshl_add_u32 v3, v1, 4, v3')
    I('s_mov_b32 s30, s25')
    for i in range(4):
        I(f'buffer_load_dwordx4 v[{32+4*i}:{35+4*i}], v3, s[20:23], s30 offen')
        if i < 3: I('s_add_u32 s30, s30, s24')
    I(f's_mov_b32 s45, {log2e:#x}')
    I('v_lshlrev_b32 v8, 16, v8')
    I('v_mul_f32 v9, s45, v8')
    I('v_exp_f32 v9, -v9')
    I('v_add_f32 v9, 1.0, v9')
    I('v_rcp_f32 v9, v9')
    I('v_mul_f32 v8, v8, v9')
    I('v_cvt_pk_bf16_f32 v8, v8, v8')
    I('s_cmp_eq_u32 s27, 2')
    I('s_cbranch_scc0 K0_xw')
    I('v_mov_b32 v8, 0x3f80')
    a.label('K0_xw')
    I(f'ds_write_b16 v6, v8 offset:{L_SILU}')
    I('s_waitcnt lgkmcnt(0)')
    I('s_barrier')
    I('v_lshlrev_b32 v28, 3, v2')
    I(f'ds_read_b64 v[10:11], v28 offset:{L_SILU}')
    for e in range(8): I(f'v_mov_b32 v{16+e}, 0')
    I('s_mov_b32 s62, 0x05040100')
    I('s_mov_b32 s63, 0x07060302')
    for p in range(2):
        for d in range(4):
            r0 = 32 + 8*p + d; r1 = r0 + 4
            I(f'v_perm_b32 v28, v{r1}, v{r0}, s62')
            I(f'v_perm_b32 v29, v{r1}, v{r0}, s63')
            I(f'v_dot2_f32_bf16 v{16+2*d}, v28, v{10+p}, v{16+2*d}')
            I(f'v_dot2_f32_bf16 v{17+2*d}, v29, v{10+p}, v{17+2*d}')
    I('s_nop 2')
    I('v_lshlrev_b32 v28, 5, v0')
    I('ds_write_b128 v28, v[16:19]')
    I('ds_write_b128 v28, v[20:23] offset:16')
    I('s_waitcnt lgkmcnt(0)')
    I('s_barrier')
    I('v_and_b32 v28, 31, v0')
    I('v_lshrrev_b32 v29, 5, v0')
    I('v_lshlrev_b32 v30, 10, v29')
    I('v_lshl_add_u32 v30, v28, 2, v30')
    for i in range(8):
        I(f'ds_read_b32 v{48+i}, v30 offset:{128*i}')
    for stp in (4, 2, 1):
        for i in range(stp):
            I(f'v_add_f32 v{48+i}, v{48+i}, v{48+i+stp}')
    I('v_lshlrev_b32 v30, 2, v0')
    I(f'ds_write_b32 v30, v48 offset:{L_V}')
    I('s_waitcnt lgkmcnt(0)')
    I('s_barrier')
    I('v_cmp_gt_u32 vcc, 32, v0')
    I('s_and_saveexec_b64 s[52:53], vcc')
    I('s_cbranch_execz K0_end')
    for i in range(16):
        I(f'ds_read_b32 v{48+i}, v30 offset:{L_V + 128*i}')
    for stp in (8, 4, 2, 1):
        for i in range(stp):
            I(f'v_add_f32 v{48+i}, v{48+i}, v{48+i+stp}')
    I('s_cmp_eq_u32 s27, 2')
    I('s_cbranch_scc1 K0_xs')
    rnd_bf16(a, 48, 48)
    I('s_lshr_b32 s62, s29, 4')
    I('s_cmp_eq_u32 s62, 2')
    I('s_cbranch_scc0 K0_xs')
    I('v_add_f32 v48, 1.0, v48')
    rnd_bf16(a, 48, 48)
    a.label('K0_xs')
    I('buffer_store_dword v48, v30, s[40:43], s28 offen')
    a.label('K0_end')
    I('s_endpgm')
    a.label('K0_s')
    srd(a, 40, 16, 17, WS_SIZE)
    I('v_and_b32 v9, 63, v0')
    I('s_lshl_b32 s66, s54, 12')
    I('s_cmp_ge_u32 s2, 424')
    I('s_cbranch_scc1 K0_s1')
    srd(a, 48, 58, 59, 8*2048*256)
    I('s_sub_u32 s29, s2, 392')
    I('s_and_b32 s64, s29, 7')
    I('s_lshr_b32 s65, s29, 3')
    I('s_lshl_b32 s65, s65, 3')
    I('s_add_u32 s65, s65, s54')
    I('v_lshlrev_b32 v10, 4, v9')
    I('v_lshrrev_b32 v11, 4, v9')
    I('v_lshlrev_b32 v11, 6, v11')
    I('v_xor_b32 v10, v10, v11')
    I('s_lshl_b32 s62, s64, 19')
    I('s_lshl_b32 s63, s65, 12')
    I('s_add_u32 s62, s62, s63')
    I(f's_add_u32 s62, s62, {1536*256}')
    I('s_mov_b32 m0, s66')
    for j in range(4):
        I(f'buffer_load_dwordx4 v10, s[48:51], s62 offen offset:{1024*j} lds')
    I('v_lshrrev_b32 v11, 5, v9')
    I('v_bfe_u32 v12, v9, 2, 2')
    I('v_lshl_add_u32 v11, v11, 2, v12')
    I('v_lshlrev_b32 v11, 8, v11')
    I('v_bfe_u32 v13, v9, 4, 1')
    I('v_lshl_add_u32 v11, v13, 5, v11')
    I('v_and_b32 v13, 1, v9')
    I('v_lshl_add_u32 v11, v13, 4, v11')
    I('v_bfe_u32 v13, v9, 1, 1')
    I('v_lshl_add_u32 v11, v13, 3, v11')
    I('v_add_u32 v11, s66, v11')
    I('v_lshlrev_b32 v10, 4, v9')
    I('s_lshl_b32 s62, s64, 17')
    I('s_lshl_b32 s63, s65, 12')
    I('s_add_u32 s62, s62, s63')
    I(f's_add_u32 s62, s62, {WS_VP:#x}')
    I('s_waitcnt vmcnt(0)')
    for mt in range(4):
        I(f'v_xor_b32 v13, {mt}, v12')
        I('v_lshl_add_u32 v13, v13, 6, v11')
        for t in range(2):
            I(f'ds_read_b64_tr_b16 v[{32+4*mt+2*t}:{33+4*mt+2*t}], v13 offset:{8*t*256}')
    for mt in range(4):
        I(f'buffer_store_dwordx4 v[{32+4*mt}:{35+4*mt}], v10, s[40:43], s62 offen offset:{1024*mt}')
    I('s_endpgm')
    a.label('K0_s1')
    I('s_cmp_ge_u32 s2, 456')
    I('s_cbranch_scc1 K0_s2')
    srd(a, 48, 12, 13, 512*1024)
    I('s_sub_u32 s29, s2, 424')
    I('s_lshl_b32 s29, s29, 3')
    I('s_add_u32 s29, s29, s54')
    I('v_lshrrev_b32 v10, 2, v9')
    I('v_lshlrev_b32 v10, 10, v10')
    I('v_and_b32 v11, 3, v9')
    I('v_lshl_add_u32 v10, v11, 4, v10')
    I('s_lshr_b32 s62, s29, 4')
    I('s_lshl_b32 s62, s62, 15')
    I('s_and_b32 s63, s29, 15')
    I('s_lshl_b32 s63, s63, 6')
    I('s_add_u32 s62, s62, s63')
    I('s_mov_b32 m0, s66')
    I('buffer_load_dwordx4 v10, s[48:51], s62 offen lds')
    I('s_add_u32 s62, s62, 16384')
    I('s_add_u32 s63, s66, 1024')
    I('s_mov_b32 m0, s63')
    I('buffer_load_dwordx4 v10, s[48:51], s62 offen lds')
    I('v_bfe_u32 v11, v9, 4, 1')
    I('v_lshlrev_b32 v11, 4, v11')
    I('v_lshrrev_b32 v12, 5, v9')
    I('v_lshl_add_u32 v11, v12, 3, v11')
    I('v_bfe_u32 v12, v9, 2, 2')
    I('v_add_u32 v11, v11, v12')
    I('v_lshlrev_b32 v11, 6, v11')
    I('v_and_b32 v12, 3, v9')
    I('v_lshl_add_u32 v11, v12, 4, v11')
    I('v_add_u32 v11, s66, v11')
    I('v_lshlrev_b32 v10, 4, v9')
    I('s_and_b32 s62, s29, 15')
    I('s_lshl_b32 s62, s62, 15')
    I('s_lshr_b32 s63, s29, 4')
    I('s_lshl_b32 s63, s63, 10')
    I('s_add_u32 s62, s62, s63')
    I(f's_add_u32 s62, s62, {WS_W1P:#x}')
    I('s_waitcnt vmcnt(0)')
    for T in range(2):
        for t in range(2):
            I(f'ds_read_b64_tr_b16 v[{32+4*T+2*t}:{33+4*T+2*t}], v11 offset:{4*t*64 + 8*T}')
    I('buffer_store_dwordx4 v[32:35], v10, s[40:43], s62 offen')
    I('s_add_u32 s62, s62, 16384')
    I('buffer_store_dwordx4 v[36:39], v10, s[40:43], s62 offen')
    I('s_endpgm')
    a.label('K0_s2')
    if not touch: I('s_endpgm')
    srd(a, 48, 60, 61, 512*8192)
    srd(a, 4, 56, 57, 8*2048*256)
    I('s_sub_u32 s29, s2, 456')
    I('s_lshl_b32 s29, s29, 3')
    I('s_add_u32 s29, s29, s54')
    I('v_lshlrev_b32 v10, 7, v9')
    I('s_cmp_ge_u32 s29, 256')
    I('s_cbranch_scc1 K0_s3')
    I('s_lshl_b32 s62, s29, 14')
    I('buffer_load_dword v14, v10, s[48:51], s62 offen')
    I('s_add_u32 s62, s62, 8192')
    I('buffer_load_dword v15, v10, s[48:51], s62 offen')
    I('s_endpgm')
    a.label('K0_s3')
    I('s_sub_u32 s29, s29, 256')
    I('s_lshr_b32 s62, s29, 3')
    I('s_lshl_b32 s62, s62, 19')
    I('s_and_b32 s63, s29, 7')
    I('s_lshl_b32 s63, s63, 14')
    I('s_add_u32 s62, s62, s63')
    I(f's_add_u32 s62, s62, {1536*256}')
    I('buffer_load_dword v16, v10, s[4:7], s62 offen')
    I('s_add_u32 s62, s62, 8192')
    I('buffer_load_dword v17, v10, s[4:7], s62 offen')
    I('s_endpgm')
    print("K0 instrs", a.ninstr, "nops", a.nnop)
    return a.text(), kernel_desc(name, 128, 96)
```

```python
from common import *

SLOT = 32768
EREG = 131072
def slot_of(c): return (c % 4) * SLOT

def gen_k1(name, stamps=False, touch=True, emu=True):
    a = Asm()
    st = Stamper(a, stamps, 1)
    kernel_header(a, name)
    I = a.I
    vX = [1,2,3,4]
    vWA = [5,6,7,8]
    vKA = [9,10,11,12,13,14,15,16]
    vT0, vT1, vT2, vT3 = 17,18,19,20
    vMX = 21; vNEGM = 22; vL = [23,24,25,26]
    vLANE16 = 27
    vKD = [28,29,30,31]
    BIG = 32
    ACC = 160
    AF = 224
    QF = ACC
    SACC = ACC + 32
    vHA = vT0
    I('s_cmp_ge_u32 s2, 256')
    I('s_cbranch_scc1 K1_end')
    I(f's_load_dwordx4 s[4:7], s[0:1], {KA_K}')
    I(f's_load_dwordx4 s[28:31], s[0:1], {KA_WQ}')
    I(f's_load_dwordx2 s[32:33], s[0:1], {KA_WS}')
    I(f's_load_dwordx8 s[56:63], s[0:1], {KA_W1}')
    I('v_and_b32 v17, 63, v0')
    I('v_lshrrev_b32 v18, 6, v0')
    I('s_nop 0')
    I('v_readfirstlane_b32 s34, v18')
    I('s_and_b32 s35, s2, 7')
    I('s_lshr_b32 s36, s2, 3')
    I(f'v_lshlrev_b32 v{vLANE16}, 4, v17')
    for j in range(4):
        I(f'v_xor_b32 v{vX[j]}, {j<<6}, v{vLANE16}')
    I('s_waitcnt lgkmcnt(0)')
    st.first()
    srd(a, 8, 28, 29, 512*8192)
    srd(a, 12, 4, 5, 8*2048*256)
    srd(a, 16, 6, 7, 8*2048*256)
    srd(a, 20, 30, 31, 4096*1024)
    srd(a, 24, 32, 33, WS_SIZE)
    I('s_and_b32 s37, s34, 3')
    I('s_lshr_b32 s38, s34, 2')
    I('s_lshl_b32 s39, s34, 12')
    I('s_lshl_b32 s44, s35, 10')
    I('s_lshl_b32 s45, s34, 15')
    I('s_add_u32 s44, s44, s45')
    I('s_lshl_b32 s45, s35, 19')
    I(f's_add_u32 s45, s45, {1536*256}')
    I('s_add_u32 s45, s45, s39')
    I('s_lshl_b32 s46, s35, 19')
    I('s_add_u32 s46, s46, s39')
    I('s_lshl_b32 s43, s35, 17')
    I('s_add_u32 s43, s43, s39')
    I(f's_add_u32 s43, s43, {WS_VP:#x}')
    I('s_lshl_b32 s40, s36, 16')
    I('s_lshl_b32 s41, s38, 15')
    I('s_add_u32 s40, s40, s41')
    I('s_and_b32 s41, s34, 3')
    I('s_lshl_b32 s41, s41, 9')
    I('s_add_u32 s40, s40, s41')
    I('s_lshl_b32 s41, s34, 9')
    I(f's_add_u32 s41, s41, {EREG}')

    def dma_chunk(c):
        L = []
        L.append(f's_add_u32 s47, s39, {slot_of(c)}')
        L.append('s_mov_b32 m0, s47')
        if c < 16:
            for j in range(4):
                L.append(f's_add_u32 s48, s44, {c*32*8192 + j*7168}')
                L.append(f'buffer_load_dwordx4 v{vX[j]}, s[8:11], s48 offen offset:{1024*j} lds')
            L.append(f's_add_u32 s47, s41, {(c%4)*4096}')
            L.append('s_mov_b32 m0, s47')
            L.append(f's_add_u32 s48, s40, {c*2048}')
            L.append(f's_mov_b32 exec_hi, 0\nbuffer_load_dwordx4 v{vLANE16}, s[24:27], s48 offen lds\ns_mov_b32 exec_hi, -1')
        elif c < 24 and c % 2 == 0:
            L.append(f's_add_u32 s48, s45, {((c-16)//2)*32768}')
            for j in range(4):
                L.append(f'buffer_load_dwordx4 v{vKD[j]}, s[12:15], s48 offen offset:{1024*j} lds')
        elif c < 24:
            L.append(f's_add_u32 s48, s43, {((c-17)//2)*32768}')
            for j in range(4):
                L.append(f'buffer_load_dwordx4 v{vLANE16}, s[24:27], s48 offen offset:{1024*j} lds')
        else:
            L.append(f's_add_u32 s48, s46, {(c-24)*32768}')
            for j in range(4):
                L.append(f'buffer_load_dwordx4 v{vX[j]}, s[20:23], s48 offen offset:{1024*j} lds')
        return L
    TOUCH_AT = {19: 'wo', 22: 'wb'}
    def ndma(c): return (5 if c < 16 else 4) + (1 if c in TOUCH_AT else 0)
    def touch_ops(kind):
        L = []
        if kind == 'wo':
            L.append(f'v_lshlrev_b32 v{vT2}, 1, v{vLANE16}')
            L.append('s_lshl_b32 s48, s35, 19')
            L.append('s_lshl_b32 s49, s36, 14')
            L.append('s_add_u32 s48, s48, s49')
            L.append('s_lshl_b32 s49, s34, 11')
            L.append('s_add_u32 s48, s48, s49')
            L.append(f'buffer_load_dword v{vT2}, v{vT2}, s[20:23], s48 offen')
        else:
            L.append(f'v_lshlrev_b32 v{vT2}, 3, v{vLANE16}')
            L.append('s_cmp_eq_u32 s37, 1\ns_cselect_b32 s16, s58, s56\ns_cselect_b32 s17, s59, s57')
            L.append('s_cmp_eq_u32 s37, 2\ns_cselect_b32 s16, s60, s16\ns_cselect_b32 s17, s61, s17')
            L.append('s_cmp_eq_u32 s37, 3\ns_cselect_b32 s16, s62, s16\ns_cselect_b32 s17, s63, s17')
            L.append(f's_mov_b32 s18, {512*1024}\ns_movk_i32 s48, 2048\ns_cmp_ge_u32 s37, 2\ns_cselect_b32 s18, {1792*1024}, s18\ns_cselect_b32 s48, 7168, s48')
            L.append('s_mul_i32 s48, s48, s2')
            L.append(f'buffer_load_dword v{vT2}, v{vT2}, s[16:19], s48 offen')
        return L
    for s in dma_chunk(0): I(s)
    ntouch = 0
    def start_touch():
        I('v_bfe_u32 v18, v17, 3, 1')
        I('v_and_b32 v19, 7, v17')
        I('v_lshlrev_b32 v18, 13, v18')
        I('v_lshl_add_u32 v18, v19, 7, v18')
        I('s_lshl_b32 s48, s36, 17')
        I('s_lshl_b32 s49, s34, 14')
        I('s_add_u32 s48, s48, s49')
        I('s_lshl_b32 s49, s35, 10')
        I('s_add_u32 s48, s48, s49')
        I(f'buffer_load_dword v{BIG+64}, v18, s[8:11], s48 offen')
        I('v_and_b32 v19, 3, v17')
        I('v_lshlrev_b32 v19, 7, v19')
        I('s_lshl_b32 s48, s35, 19')
        I('s_lshl_b32 s49, s36, 12')
        I('s_add_u32 s48, s48, s49')
        I('s_lshl_b32 s49, s34, 9')
        I('s_add_u32 s48, s48, s49')
        I(f's_add_u32 s48, s48, {1536*256}')
        I(f'buffer_load_dword v{BIG+65}, v19, s[12:15], s48 offen')
        a.vm_q = []
    if touch == 2:
        start_touch(); ntouch = 2
    for c in (1, 2):
        for s in dma_chunk(c): I(s)
    I('v_lshrrev_b32 v18, 5, v17')
    I('v_bfe_u32 v19, v17, 2, 2')
    I('v_lshl_add_u32 v20, v18, 3, v19')
    I('v_lshlrev_b32 v20, 10, v20')
    I('v_bfe_u32 v21, v17, 4, 1')
    I('v_lshl_add_u32 v20, v21, 5, v20')
    I('v_and_b32 v21, 1, v17')
    I('v_lshl_add_u32 v20, v21, 4, v20')
    I('v_bfe_u32 v21, v17, 1, 1')
    I('v_lshl_add_u32 v20, v21, 3, v20')
    I('s_lshl_b32 s48, s37, 8')
    I('v_add_u32 v22, s48, v20')
    for mt in range(4):
        I(f'v_xor_b32 v21, {mt}, v19')
        I(f'v_lshl_add_u32 v{vWA[mt]}, v21, 6, v22')
    I('v_and_b32 v21, 31, v17')
    I('v_and_b32 v22, 15, v17')
    I('v_xor_b32 v22, v22, v18')
    I('v_lshlrev_b32 v21, 8, v21')
    I(f'v_add_u32 v21, {slot_of(16)}, v21')
    for s in range(8):
        I(f'v_xor_b32 v23, {2*s}, v22')
        I(f'v_lshl_add_u32 v{vKA[s]}, v23, 4, v21')
    I('v_lshrrev_b32 v21, 4, v17')
    I('v_and_b32 v22, 15, v17')
    I('v_xor_b32 v22, v22, v21')
    I('v_lshlrev_b32 v21, 8, v21')
    for j in range(4):
        I(f'v_xor_b32 v23, {4*j}, v22')
        I(f'v_lshl_add_u32 v{vKD[j]}, v23, 4, v21')
    I('s_lshl_b32 s48, s38, 11')
    I(f's_add_u32 s48, s48, {EREG}')
    I(f'v_add_u32 v{vHA}, s48, v{vLANE16}')
    I(f's_waitcnt vmcnt({5 + 5 + ntouch})')
    I('s_barrier')
    st()

    def w_reads(buf, ks):
        L = []
        for mt in range(4):
            for t in range(2):
                d = AF + 16*buf + 4*mt + 2*t
                L.append(f'ds_read_b64_tr_b16 v[{d}:{d+1}], v{vWA[mt]} offset:{(16*ks + 4*t)*1024}')
        return L
    def h_read(kk):
        c = kk // 2; ks = kk % 2
        d = BIG + 4*(kk % 4)
        return [f'ds_read_b128 v[{d}:{d+3}], v{vHA} offset:{(c%4)*4096 + ks*1024}']
    def w_advance(c_from, c_to):
        delta = slot_of(c_to) - slot_of(c_from)
        if delta >= 0: return [f'v_add_u32 v{vWA[mt]}, {delta}, v{vWA[mt]}' for mt in range(4)]
        return [f'v_subrev_u32 v{vWA[mt]}, {-delta}, v{vWA[mt]}' for mt in range(4)]
    issued = [2]
    def top_sync(c, issue_list):
        allowed = sum(ndma(x) for x in range(c+2, issued[0]+1))
        I(f's_waitcnt vmcnt({allowed})')
        I('s_barrier')
        L = []
        for x in issue_list:
            L += dma_chunk(x); issued[0] = max(issued[0], x)
            if x in TOUCH_AT: L += touch_ops(TOUCH_AT[x])
        return L

    def gemm_phase(c0, is_p2, issue_map, side=None):
        for i in range(16):
            c = c0 + i
            extra = top_sync(c, issue_map.get(c, [])) if (is_p2 or i > 0) else []
            cut = 0
            nl = [j for j, s in enumerate(extra) if 'buffer_load' in s]
            if nl: cut = nl[len(nl)//2 - 1] + 1 if len(nl) >= 2 else len(extra)
            ex = [extra[:cut], extra[cut:]]
            for ks in range(2):
                kk = 2*i + ks
                buf = kk & 1
                if ks == 0:
                    pre = w_reads(buf ^ 1, 1)
                    if is_p2: pre = h_read(kk+1) + pre
                elif i < 15:
                    pre = w_advance(c, c+1) + w_reads(buf ^ 1, 0)
                    if is_p2: pre = h_read(kk+1) + pre
                else:
                    pre = []
                bfr = BIG + 4*(kk % 4) if is_p2 else BIG + 4*kk
                mf = []
                for mt in range(4):
                    d = ACC + 16*mt
                    cc = '0' if kk == 0 else f'v[{d}:{d+15}]'
                    mf.append(f'v_mfma_f32_32x32x16_bf16 v[{d}:{d+15}], v[{AF+16*buf+4*mt}:{AF+16*buf+4*mt+3}], v[{bfr}:{bfr+3}], {cc}')
                sd = side.get(kk, []) if side else []
                for s in merge(mf, pre, ex[ks], sd): I(s)

    QF2 = 32
    SB_ = [64, 96]
    VF = 128
    KF = AF
    vVA = vT3
    vMR = vMX
    def k_reads(t):
        L = []
        c = 16 + 2*(t//4)
        for s in range(8):
            if t % 4 == 0 and t > 0:
                delta = slot_of(c) - slot_of(c-2)
                if delta >= 0: L.append(f'v_add_u32 v{vKA[s]}, {delta}, v{vKA[s]}')
                else: L.append(f'v_subrev_u32 v{vKA[s]}, {-delta}, v{vKA[s]}')
            L.append(f'ds_read_b128 v[{KF+4*s}:{KF+4*s+3}], v{vKA[s]} offset:{(t%4)*8192}')
        return L
    def v_reads(kap):
        L = []
        c = 17 + 2*(kap//8); ks = kap % 8; buf = kap & 1
        if ks == 0:
            L.append(f'v_add_u32 v{vVA}, {slot_of(c)}, v{vLANE16}')
        for mt in range(4):
            d = VF + 16*buf + 4*mt
            L.append(f'ds_read_b128 v[{d}:{d+3}], v{vVA} offset:{ks*4096 + mt*1024}')
        return L
    def tr_addr_setup(rowshift, rowmul_log, base_expr_sgpr_setup):
        L = []
        L.append(f'v_lshrrev_b32 v{vT0}, 4, v{vLANE16}')
        L.append(f'v_lshrrev_b32 v{vT1}, 5, v{vT0}')
        L.append(f'v_bfe_u32 v{vT2}, v{vT0}, 2, 2')
        L.append(f'v_lshl_add_u32 v{vT1}, v{vT1}, {rowshift}, v{vT2}')
        L.append(f'v_lshlrev_b32 v{vT1}, {rowmul_log}, v{vT1}')
        L.append(f'v_bfe_u32 v{vWA[3]}, v{vT0}, 4, 1')
        L.append(f'v_lshl_add_u32 v{vT1}, v{vWA[3]}, 5, v{vT1}')
        L.append(f'v_and_b32 v{vWA[3]}, 1, v{vT0}')
        L.append(f'v_lshl_add_u32 v{vT1}, v{vWA[3]}, 4, v{vT1}')
        L.append(f'v_bfe_u32 v{vWA[3]}, v{vT0}, 1, 1')
        L.append(f'v_lshl_add_u32 v{vT1}, v{vWA[3]}, 3, v{vT1}')
        L += base_expr_sgpr_setup
        L.append(f'v_add_u32 v{vT1}, s53, v{vT1}')
        for mt in range(4):
            L.append(f'v_xor_b32 v{vT0}, {mt}, v{vT2}')
            L.append(f'v_lshl_add_u32 v{vWA[mt]}, v{vT0}, 6, v{vT1}')
        return L

    for s in h_read(0) + w_reads(0, 0): I(s)
    issue_map = {c: [c+3] for c in range(0, 37)}
    issue_map[17] = []
    for c in range(18, 24): issue_map[c] = [c+2]
    issue_map['p7'] = [26]
    issue_map[24] = []
    issue_map[25] = [27, 28]
    gemm_phase(0, True, issue_map)
    st()
    for s in k_reads(0): I(s)
    for j in range(32):
        I(f'v_cvt_pk_bf16_f32 v{QF2+j}, v{ACC+2*j}, v{ACC+2*j+1}')
    CEXP = 1.4426950408889634 * 128 ** -0.5
    I(f's_mov_b32 s51, {f32bits(CEXP):#x}')
    I(f's_mov_b32 s50, {f32bits(48.0 / CEXP):#x}')
    for l in vL: I(f'v_mov_b32 v{l}, 0')
    def s_mfmas(u):
        seq = []
        for tt in range(2):
            t = 2*u + tt
            b = SB_[u & 1] + 16*tt
            reads = k_reads(t+1) if t < 15 else []
            ri = 0
            for s in range(8):
                cc = '0' if s == 0 else f'v[{b}:{b+15}]'
                grp = [f'v_mfma_f32_32x32x16_bf16 v[{b}:{b+15}], v[{KF+4*s}:{KF+4*s+3}], v[{QF2+4*s}:{QF2+4*s+3}], {cc}']
                while ri < len(reads):
                    grp.append(reads[ri]); ri += 1
                    if reads[ri-1].startswith('ds_read'): break
                seq.append('\n'.join(grp))
        return seq
    def pv_mfmas(u, j):
        kap = 4*u + j; buf = kap & 1
        p = SB_[u & 1] + 8*j
        L = []
        for mt in range(4):
            d = ACC + 16*mt
            cc = '0' if kap == 0 else f'v[{d}:{d+15}]'
            L.append(f'v_mfma_f32_32x32x16_bf16 v[{d}:{d+15}], v[{VF+16*buf+4*mt}:{VF+16*buf+4*mt+3}], v[{p}:{p+3}], {cc}')
        return L
    def max_ops(u, tt):
        b = SB_[u & 1] + 16*tt
        L = []
        for i in range(8):
            if tt == 0 and i == 0:
                L.append(f'v_max_f32 v{vT0}, v{b}, v{b+1}')
            else:
                L.append(f'v_max3_f32 v{vT0}, v{b+2*i}, v{b+2*i+1}, v{vT0}')
        return L
    def p_ops(u, j):
        b = SB_[u & 1] + 8*j
        L = []
        for e in range(8):
            L.append(f'v_fma_f32 v{b+e}, v{b+e}, s51, v{vNEGM}')
        for e in range(8):
            L.append(f'v_exp_f32 v{b+e}, v{b+e}')
        for d in range(4):
            L.append(f'v_add_f32 v{vL[d]}, v{vL[d]}, v{b+2*d}')
            L.append(f'v_add_f32 v{vL[d]}, v{vL[d]}, v{b+2*d+1}')
            L.append(f'v_cvt_pk_bf16_f32 v{b+d}, v{b+2*d}, v{b+2*d+1}')
        return L
    rare = []
    extra = top_sync(16, issue_map[16])
    sm = s_mfmas(0)
    for s in merge(sm[:10], extra): I(s)
    for s in merge(sm[10:], max_ops(0, 0) + v_reads(0)): I(s)
    for s in max_ops(0, 1): I(s)
    for u in range(8):
        c = 17 + u
        I(f'v_mov_b32 v{vT1}, v{vT0}')
        I(f'v_permlane32_swap_b32 v{vT0}, v{vT1}')
        I(f'v_max_f32 v{vT0}, v{vT0}, v{vT1}')
        if u == 0:
            I(f'v_mov_b32 v{vMR}, v{vT0}')
            I(f'v_mul_f32 v{vNEGM}, s51, v{vMR}')
            I(f'v_sub_f32 v{vNEGM}, 0, v{vNEGM}')
        else:
            I(f'v_add_f32 v{vT1}, s50, v{vMR}')
            I(f'v_cmp_gt_f32 vcc, v{vT0}, v{vT1}')
            I('s_nop 1')
            I(f's_cbranch_vccnz K1_rs{u}')
            a.out.append(f'K1_rb{u}:')
            R = [f'K1_rs{u}:', 's_nop 15', 's_nop 15',
                 f'v_max_f32 v{vT1}, v{vT0}, v{vMR}', f'v_sub_f32 v{vT0}, v{vMR}, v{vT1}', f'v_mul_f32 v{vT0}, s51, v{vT0}', f'v_exp_f32 v{vT0}, v{vT0}',
                 f'v_mov_b32 v{vMR}, v{vT1}', f'v_mul_f32 v{vNEGM}, s51, v{vMR}', f'v_sub_f32 v{vNEGM}, 0, v{vNEGM}']
            R += [f'v_mul_f32 v{ACC+i}, v{ACC+i}, v{vT0}' for i in range(64)]
            R += [f'v_mul_f32 v{l}, v{l}, v{vT0}' for l in vL]
            R += ['s_nop 3', f's_branch K1_rb{u}']
            rare += R
        extra = top_sync(c, issue_map[c] if u < 7 else issue_map['p7']) if u < 7 else None
        if u == 7:
            I('s_barrier')
            extra = []
            for x in issue_map['p7']:
                extra += dma_chunk(x); issued[0] = max(issued[0], x)
        if u < 7:
            sm = s_mfmas(u+1)
            for s in merge(sm, extra, p_ops(u, 0) + p_ops(u, 1) + p_ops(u, 2)[:12]): I(s)
            rest = p_ops(u, 2)[12:] + p_ops(u, 3)
            mx = max_ops(u+1, 0) + max_ops(u+1, 1)
            side = {0: rest[:16+6], 1: rest[22:], 2: mx[:8], 3: mx[8:]}
        else:
            for s in merge(extra, p_ops(u, 0)): I(s)
            side = {0: p_ops(u, 1), 1: p_ops(u, 2), 2: p_ops(u, 3), 3: []}
        if u == 5: side[3] = side[3] + []
        for j in range(4):
            kap = 4*u + j
            pre = v_reads(kap+1) if kap < 31 else []
            sd = side[j]
            if u == 7 and j == 3:
                sd = [f'v_add_f32 v{vL[0]}, v{vL[0]}, v{vL[1]}', f'v_add_f32 v{vL[2]}, v{vL[2]}, v{vL[3]}', f'v_add_f32 v{vL[0]}, v{vL[0]}, v{vL[2]}',
                      f'v_mov_b32 v{vL[1]}, v{vL[0]}', 's_nop 1', f'v_permlane32_swap_b32 v{vL[0]}, v{vL[1]}', f'v_add_f32 v{vL[0]}, v{vL[0]}, v{vL[1]}', f'v_rcp_f32 v{vL[0]}, v{vL[0]}']
                sd += tr_addr_setup(3, 10, ['s_lshl_b32 s53, s37, 8', f's_add_u32 s53, s53, {slot_of(24)}'])
            for s in merge(pv_mfmas(u, j), pre, sd): I(s)
    st()
    I(f's_mov_b32 s48, {EREG}')
    I('s_cmp_eq_u32 s38, 1')
    I(f's_cselect_b32 s48, {slot_of(23)}, s48')
    I(f'v_add_u32 v{vT0}, s48, v{vLANE16}')
    I('s_lshl_b32 s49, s37, 13')
    I(f'v_add_u32 v{vT1}, s49, v{vT0}')
    I('s_barrier')
    for s in w_reads(0, 0): I(s)
    for q in range(8):
        for j in range(4*q, 4*q+4):
            I(f'v_mul_f32 v{ACC+2*j}, v{ACC+2*j}, v{vL[0]}')
            I(f'v_mul_f32 v{ACC+2*j+1}, v{ACC+2*j+1}, v{vL[0]}')
            I(f'v_cvt_pk_bf16_f32 v{BIG+j}, v{ACC+2*j}, v{ACC+2*j+1}')
        I(f'ds_write_b128 v{vT1}, v[{BIG+4*q}:{BIG+4*q+3}] offset:{1024*q}')
    allowed = sum(ndma(x) for x in range(26, issued[0]+1))
    I(f's_waitcnt vmcnt({allowed}) lgkmcnt(0)')
    I('s_barrier')
    o_reads = [f'ds_read_b128 v[{BIG+4*ks}:{BIG+4*ks+3}], v{vT0} offset:{1024*ks}' for ks in range(32)]
    for s in o_reads[:4]: I(s)
    st()
    side = {0: o_reads[4:18], 1: o_reads[18:32] + ['s_waitcnt lgkmcnt(0)']}
    gemm_phase(24, False, issue_map, side)
    st()
    I('s_lshl_b32 s48, s35, 21')
    I('s_lshl_b32 s49, s36, 16')
    I('s_add_u32 s48, s48, s49')
    I('s_lshl_b32 s49, s38, 15')
    I('s_add_u32 s48, s48, s49')
    I('s_lshl_b32 s49, s37, 13')
    I('s_add_u32 s48, s48, s49')
    I(f's_add_u32 s48, s48, {WS_P:#x}')
    I('s_add_u32 s49, s48, 4096')
    for j in range(32):
        I(f'v_cvt_pk_bf16_f32 v{BIG+j}, v{ACC+2*j}, v{ACC+2*j+1}')
        if j % 4 == 3:
            q = j // 4
            so = 's48' if q < 4 else 's49'
            I(f'buffer_store_dwordx4 v[{BIG+4*q}:{BIG+4*q+3}], v{vLANE16}, s[24:27], {so} offen offset:{1024*(q%4)}')
    if stamps:
        I(f'v_lshrrev_b32 v{vT3}, 4, v{vLANE16}')
        st.flush(24, 34, 200, vT3)
    a.label('K1_end')
    I('s_endpgm')
    for r in rare:
        a.out.append(r if r.endswith(':') else '    ' + r)
    print("K1 instrs", a.ninstr, "nops", a.nnop)
    return a.text(), kernel_desc(name, 256, 96)
```

```python
from common import *

LOG2E = 1.4426950408889634
def gelu_ops(x, t, sC0, sC1):
    return [
        f'v_mul_f32 v{t}, v{x}, v{x}',
        f'v_fma_f32 v{t}, v{t}, {sC1}, {sC0}',
        f'v_mul_f32 v{t}, v{t}, v{x}',
        f'v_exp_f32 v{t}, v{t}',
        f'v_add_f32 v{t}, 1.0, v{t}',
        f'v_rcp_f32 v{t}, v{t}',
        f'v_mul_f32 v{x}, v{x}, v{t}',
    ]

def ident_frags(a, lane, A0, A1, t0, t1, t2):
    I = a.I
    I(f'v_and_b32 v{t0}, 31, v{lane}')
    I(f'v_and_b32 v{t1}, 0x13, v{t0}')
    I(f'v_bfe_u32 v{t2}, v{t0}, 2, 1')
    I(f'v_lshl_or_b32 v{t1}, v{t2}, 3, v{t1}')
    I(f'v_bfe_u32 v{t2}, v{t0}, 3, 1')
    I(f'v_lshl_or_b32 v{t1}, v{t2}, 2, v{t1}')
    I(f'v_lshrrev_b32 v{t0}, 5, v{lane}')
    I(f'v_lshlrev_b32 v{t0}, 3, v{t0}')
    I(f'v_sub_u32 v{t1}, v{t1}, v{t0}')
    for which, A in ((0, A0), (1, A1)):
        for dw in range(4):
            I(f'v_mov_b32 v{A+dw}, 0')
            I(f'v_cmp_eq_u32 vcc, {16*which + 2*dw}, v{t1}')
            I(f'v_mov_b32 v{t2}, 0x3f80')
            I(f'v_cndmask_b32 v{A+dw}, v{A+dw}, v{t2}, vcc')
            I(f'v_cmp_eq_u32 vcc, {16*which + 2*dw + 1}, v{t1}')
            I(f'v_mov_b32 v{t2}, 0x3f800000')
            I(f'v_cndmask_b32 v{A+dw}, v{A+dw}, v{t2}, vcc')

def half_sum(a, r, t):
    a.I(f'v_mov_b32 v{t}, v{r}')
    a.I(f'v_permlane32_swap_b32 v{r}, v{t}')
    a.I(f'v_add_f32 v{r}, v{r}, v{t}')

def ln_rstd(a, var, mean):
    rnd_bf16(a, mean, mean)
    rnd_bf16(a, var, var)
    a.I(f'v_add_f32 v{var}, {f32bits(1e-5):#x}, v{var}')
    rnd_bf16(a, var, var)
    a.I(f'v_sqrt_f32 v{var}, v{var}')
    rnd_bf16(a, var, var)
    a.I(f'v_rcp_f32 v{var}, v{var}')

def gen_k2(name, stamps=False):
    a = Asm()
    st = Stamper(a, stamps, 2)
    kernel_header(a, name)
    I = a.I
    L_HB, L_S2, L_S3 = 0, 16384, 17408
    vLANE, vL16 = 1, 2
    vFO = 3
    A0, A1 = 4, 8
    T = [12,13,14,15,16,17,18,19]
    XR = 20
    U = 28
    GA = 32; D = 48; TB = 64; SB = 80
    P = 64
    AW = 160
    I('s_cmp_ge_u32 s2, 256')
    I('s_cbranch_scc1 K2_end')
    I(f's_load_dwordx2 s[4:5], s[0:1], {KA_X}')
    I(f's_load_dwordx2 s[32:33], s[0:1], {KA_WS}')
    I(f'v_and_b32 v{vLANE}, 63, v0')
    I('v_lshrrev_b32 v3, 6, v0')
    I('s_nop 0')
    I('v_readfirstlane_b32 s34, v3')
    I('s_and_b32 s35, s2, 7')
    I('s_lshr_b32 s36, s2, 3')
    I('s_lshl_b32 s35, s35, 4')
    I('s_lshr_b32 s37, s36, 1')
    I('s_add_u32 s35, s35, s37')
    I('s_and_b32 s36, s36, 1')
    I(f'v_lshlrev_b32 v{vL16}, 4, v{vLANE}')
    I(f'v_and_b32 v{T[0]}, 15, v{vLANE}')
    I(f'v_bfe_u32 v{T[1]}, v{vLANE}, 4, 1')
    I(f'v_lshrrev_b32 v{T[2]}, 5, v{vLANE}')
    I(f'v_lshl_add_u32 v{vFO}, v{T[2]}, 5, v{T[0]}')
    I('s_and_b32 s37, s35, 1')
    I('s_lshl_b32 s37, s37, 4')
    I(f'v_add_u32 v{vFO}, s37, v{vFO}')
    I(f'v_lshlrev_b32 v{vFO}, 4, v{vFO}')
    I(f'v_lshl_add_u32 v{vFO}, v{T[1]}, 10, v{vFO}')
    I('s_waitcnt lgkmcnt(0)')
    st.first()
    srd(a, 8, 4, 5, 2048*1024)
    srd(a, 24, 32, 33, WS_SIZE)
    I('s_lshr_b32 s40, s35, 1')
    I('s_lshl_b32 s40, s40, 15')
    I('s_lshl_b32 s41, s34, 12')
    I('s_add_u32 s41, s40, s41')
    I(f's_add_u32 s42, s41, {WS_P:#x}')
    pl = []
    for g in range(8):
        for f in range(2):
            r = P + 8*g + 4*f
            pl.append(f's_add_u32 s43, s42, {g*2097152:#x}\nbuffer_load_dwordx4 v[{r}:{r+3}], v{vFO}, s[24:27], s43 offen offset:{2048*f}')
    for s in pl[:6]: I(s)
    I(f'v_lshlrev_b32 v{T[3]}, 10, v{T[0]}')
    I(f'v_lshl_add_u32 v{T[3]}, v{T[1]}, 5, v{T[3]}')
    I(f'v_lshl_add_u32 v{T[3]}, v{T[2]}, 4, v{T[3]}')
    I('s_lshl_b32 s43, s35, 14')
    I('s_lshl_b32 s44, s34, 7')
    I('s_add_u32 s43, s43, s44')
    for f in range(2):
        I(f'buffer_load_dwordx4 v[{XR+4*f}:{XR+4*f+3}], v{T[3]}, s[8:11], s43 offen offset:{64*f}')
    I(f'v_lshlrev_b32 v{T[4]}, 6, v{T[1]}')
    I(f'v_lshl_add_u32 v{T[4]}, v{T[2]}, 5, v{T[4]}')
    I('s_lshl_b32 s44, s34, 8')
    I(f's_add_u32 s44, s44, {WS_MOD:#x}')
    def modloads(lst):
        L = []
        for vec, base in lst:
            for f in range(2):
                for h2 in range(2):
                    r = base + 8*f + 4*h2
                    L.append(f's_add_u32 s43, s44, {2048*vec}\nbuffer_load_dwordx4 v[{r}:{r+3}], v{T[4]}, s[24:27], s43 offen offset:{128*f + 16*h2}')
        return L
    for s in modloads([(0, GA)]): I(s)
    I('s_lshl_b32 s45, s36, 3')
    I('s_add_u32 s45, s45, s34')
    I('s_lshl_b32 s46, s45, 15')
    I(f's_add_u32 s46, s46, {WS_W1P:#x}')
    aloads = []
    for ks in range(16):
        for Tt in range(2):
            idx = 2*ks + Tt
            aloads.append(f's_add_u32 s47, s46, {Tt*16384 + (ks//4)*4096}\nbuffer_load_dwordx4 a[{4*idx}:{4*idx+3}], v{vL16}, s[24:27], s47 offen offset:{1024*(ks%4)}')
    for s in merge(pl[6:], aloads[:20]): I(s)
    ident_frags(a, vLANE, A0, A1, T[5], T[6], T[7])
    I('s_mov_b32 s52, 0xffff0000')
    I('s_mov_b32 s53, 0x3f803f80')
    for s in aloads[20:]: I(s)
    st()
    red = []
    first = True
    for g in range(8):
        for f in range(2):
            r = P + 8*g + 4*f
            A = A0 if f == 0 else A1
            cc = '0' if first else f'v[{D}:{D+15}]'
            red.append(f'v_mfma_f32_32x32x16_bf16 v[{D}:{D+15}], v[{A}:{A+3}], v[{r}:{r+3}], {cc}')
            first = False
    for s in red: I(s)
    x1o = []
    for e in range(0, 16, 2):
        r = D + e; u = U + 2*((e//2) % 2); xr = XR + e//2
        x1o.append(f'v_lshlrev_b32 v{u}, 16, v{xr}')
        x1o.append(f'v_and_b32 v{u+1}, s52, v{xr}')
        x1o.append(f'v_pk_fma_f32 v[{r}:{r+1}], v[{r}:{r+1}], v[{GA+e}:{GA+e+1}], v[{u}:{u+1}]')
        x1o.append(f'v_cvt_pk_bf16_f32 v{xr}, v{r}, v{r+1}')
        x1o.append(f'v_lshlrev_b32 v{r}, 16, v{xr}')
        x1o.append(f'v_and_b32 v{r+1}, s52, v{xr}')
    I('s_nop 7')
    for s in merge(x1o, modloads([(2, TB), (1, SB)])): I(s)
    st()
    def stats_local(mean, var):
        I(f'v_mov_b32 v{mean}, 0'); I(f'v_mov_b32 v{var}, 0'); I(f'v_mov_b32 v{T[6]}, 0'); I(f'v_mov_b32 v{T[7]}, 0')
        for j in range(0, 8, 2):
            I(f'v_dot2_f32_bf16 v{mean}, v{XR+j}, s53, v{mean}')
            I(f'v_dot2_f32_bf16 v{var}, v{XR+j}, v{XR+j}, v{var}')
            I(f'v_dot2_f32_bf16 v{T[6]}, v{XR+j+1}, s53, v{T[6]}')
            I(f'v_dot2_f32_bf16 v{T[7]}, v{XR+j+1}, v{XR+j+1}, v{T[7]}')
        I('s_nop 2')
        I(f'v_add_f32 v{mean}, v{mean}, v{T[6]}')
        I(f'v_add_f32 v{var}, v{var}, v{T[7]}')
        for op in ('v_permlane16_swap_b32', 'v_permlane32_swap_b32'):
            I(f'v_mov_b32 v{T[6]}, v{mean}'); I(f'v_mov_b32 v{T[7]}, v{var}')
            I(f'{op} v{mean}, v{T[6]}'); I(f'{op} v{var}, v{T[7]}')
            I(f'v_add_f32 v{mean}, v{mean}, v{T[6]}'); I(f'v_add_f32 v{var}, v{var}, v{T[7]}')
    def stats_write(area, mean, var):
        I(f'v_lshlrev_b32 v{T[5]}, 3, v{T[0]}')
        I('s_lshl_b32 s48, s34, 7')
        I(f's_add_u32 s48, s48, {area}')
        I(f'v_add_u32 v{T[6]}, s48, v{T[5]}')
        I(f'ds_write_b64 v{T[6]}, v[{mean}:{var}]')
    def stats_read(area, mean, var, R):
        for w in range(8):
            I(f'ds_read_b64 v[{R+2*w}:{R+2*w+1}], v{T[5]} offset:{area + 128*w}')
        for stp in (4, 2, 1):
            for w in range(stp):
                I(f'v_pk_add_f32 v[{R+2*w}:{R+2*w+1}], v[{R+2*w}:{R+2*w+1}], v[{R+2*(w+stp)}:{R+2*(w+stp)+1}]')
        I(f'v_mul_f32 v{mean}, {f32bits(1.0/512):#x}, v{R}')
        I(f'v_mul_f32 v{var}, {f32bits(1.0/512):#x}, v{R+1}')
        I(f'v_fma_f32 v{var}, -v{mean}, v{mean}, v{var}')
        I(f'v_max_f32 v{var}, 0, v{var}')
        ln_rstd(a, var, mean)
    M, V = T[2], T[3]
    stats_local(M, V)
    stats_write(L_S2, M, V)
    I('s_lshr_b32 s47, s34, 2')
    I('s_cmp_eq_u32 s47, s36')
    I('s_cselect_b32 s54, 0, 0x10000000')
    I(f's_add_u32 s43, s41, {WS_X1:#x}')
    I('s_add_u32 s43, s43, s54')
    for f in range(2):
        I(f'buffer_store_dwordx4 v[{XR+4*f}:{XR+4*f+3}], v{vFO}, s[24:27], s43 offen offset:{2048*f}')
    I('s_waitcnt lgkmcnt(0)')
    I('s_barrier')
    stats_read(L_S2, M, V, GA)
    st()
    I(f'v_sub_f32 v{U}, 0, v{M}'); I(f'v_sub_f32 v{U+1}, 0, v{M}')
    I(f'v_mov_b32 v{U+2}, v{V}'); I(f'v_mov_b32 v{U+3}, v{V}')
    for e in range(0, 16, 2):
        r = D + e
        I(f'v_pk_add_f32 v[{r}:{r+1}], v[{r}:{r+1}], v[{U}:{U+1}]')
        I(f'v_pk_mul_f32 v[{TB+e}:{TB+e+1}], v[{TB+e}:{TB+e+1}], v[{U+2}:{U+3}]')
        I(f'v_pk_fma_f32 v[{r}:{r+1}], v[{r}:{r+1}], v[{TB+e}:{TB+e+1}], v[{SB+e}:{SB+e+1}]')
        I(f'v_cvt_pk_bf16_f32 v{XR+e//2}, v{r}, v{r+1}')
    I('s_lshl_b32 s48, s34, 11')
    I(f'v_add_u32 v{T[4]}, s48, v{vL16}')
    for f in range(2):
        I(f'ds_write_b128 v{T[4]}, v[{XR+4*f}:{XR+4*f+3}] offset:{L_HB + 1024*f}')
    stats_local(M, V)
    stats_write(L_S3, M, V)
    I(f's_add_u32 s43, s41, {WS_HB:#x}')
    I('s_add_u32 s43, s43, s54')
    for f in range(2):
        I(f'buffer_store_dwordx4 v[{XR+4*f}:{XR+4*f+3}], v{vFO}, s[24:27], s43 offen offset:{2048*f}')
    CS = D + 8
    I(f'v_lshrrev_b32 v{T[4]}, 4, v{vLANE}')
    I(f'v_lshlrev_b32 v{T[1]}, 5, v{T[4]}')
    I('s_lshl_b32 s48, s45, 7')
    I(f's_add_u32 s48, s48, {WS_CS1:#x}')
    for h2 in range(2):
        I(f'buffer_load_dwordx4 v[{CS+4*h2}:{CS+4*h2+3}], v{T[1]}, s[24:27], s48 offen offset:{16*h2}')
    I('s_waitcnt lgkmcnt(0)')
    I('s_barrier')
    st()
    BF = P
    for ks in range(16):
        I(f'ds_read_b128 v[{BF+4*ks}:{BF+4*ks+3}], v{vL16} offset:{L_HB + 1024*ks}')
    stats_read(L_S3, M, V, GA)
    ACC = D
    for ks in range(16):
        for Tt in range(2):
            idx = 2*ks + Tt
            b = ACC + 4*Tt
            cc = '0' if ks == 0 else f'v[{b}:{b+3}]'
            I(f'v_mfma_f32_16x16x32_bf16 v[{b}:{b+3}], a[{4*idx}:{4*idx+3}], v[{BF+4*ks}:{BF+4*ks+3}], {cc}')
    st()
    c0 = -2.0 * (2.0/3.141592653589793) ** 0.5 * LOG2E
    I(f's_mov_b32 s50, {f32bits(c0*0.044715):#x}')
    I(f'v_mov_b32 v{T[7]}, {f32bits(c0):#x}')
    ep = []
    for e in range(8):
        r = ACC + e
        L = [f'v_fma_f32 v{r}, -v{M}, v{CS+e}, v{r}', f'v_mul_f32 v{r}, v{r}, v{V}']
        L += gelu_ops(r, GA + e, 'v%d' % T[7], 's50')
        ep.append(L)
    for j in range(len(ep[0])):
        for L in ep: I(L[j])
    for j in range(4):
        I(f'v_cvt_pk_bf16_f32 v{XR+j}, v{ACC+2*j}, v{ACC+2*j+1}')
    I(f'v_and_b32 v{T[1]}, 1, v{T[4]}')
    I(f'v_lshl_add_u32 v{T[1]}, v{T[1]}, 5, v{T[0]}')
    I(f'v_add_u32 v{T[1]}, s37, v{T[1]}')
    I(f'v_lshlrev_b32 v{T[1]}, 4, v{T[1]}')
    I(f'v_lshrrev_b32 v{T[5]}, 1, v{T[4]}')
    I(f'v_lshl_add_u32 v{T[1]}, v{T[5]}, 10, v{T[1]}')
    I('s_lshl_b32 s48, s45, 11')
    I('s_add_u32 s48, s48, s40')
    I(f's_add_u32 s48, s48, {WS_T:#x}')
    I(f'buffer_store_dwordx4 v[{XR}:{XR+3}], v{T[1]}, s[24:27], s48 offen')
    st.flush(24, 34, 100, vLANE)
    a.label('K2_end')
    I('s_endpgm')
    print("K2 instrs", a.ninstr, "nops", a.nnop)
    return a.text(), kernel_desc(name, 256, 96, accum=128)
```

```python
from common import *
from k2 import gelu_ops, ln_rstd, LOG2E

def gen_k4(name, stamps=False):
    a = Asm()
    st = Stamper(a, stamps, 4)
    kernel_header(a, name)
    I = a.I
    vLANE, vL16 = 1, 2
    T = [4,5,6,7,8,9,10,11]
    AD = [12,13,14,15]
    M4, V4 = 20, 21
    OUTP = 24
    ST = 96
    ACC = 64
    AFR = 40
    CS = 32
    NRING = 6
    L_CS = 131072
    BF = 0
    I('s_cmp_ge_u32 s2, 224')
    I('s_cbranch_scc1 K4_end')
    I(f's_load_dwordx2 s[6:7], s[0:1], {KA_W3}')
    I(f's_load_dwordx2 s[32:33], s[0:1], {KA_WS}')
    I(f'v_and_b32 v{vLANE}, 63, v0')
    I('v_lshrrev_b32 v3, 6, v0')
    I('s_nop 0')
    I('v_readfirstlane_b32 s55, v3')
    I('s_and_b32 s34, s55, 3')
    I('s_and_b32 s35, s2, 7')
    I('s_lshr_b32 s36, s2, 3')
    I('s_mul_i32 s37, s36, 37')
    I('s_lshr_b32 s37, s37, 8')
    I('s_mul_i32 s38, s37, 7')
    I('s_sub_u32 s36, s36, s38')
    I('s_and_b32 s38, s35, 1')
    I('s_mul_i32 s38, s38, 7')
    I('s_add_u32 s36, s36, s38')
    I('s_lshr_b32 s35, s35, 1')
    I('s_lshl_b32 s35, s35, 2')
    I('s_add_u32 s35, s35, s37')
    I('s_lshl_b32 s40, s35, 2')
    I('s_add_u32 s40, s40, s34')
    I(f'v_lshlrev_b32 v{vL16}, 4, v{vLANE}')
    I('s_waitcnt lgkmcnt(0)')
    st.first()
    srd(a, 12, 6, 7, 512*3584)
    srd(a, 24, 32, 33, WS_SIZE)
    I(f'v_lshrrev_b32 v{T[0]}, 3, v{vLANE}')
    I(f'v_and_b32 v{T[1]}, 7, v{vLANE}')
    I(f'v_bfe_u32 v{T[2]}, v{vLANE}, 4, 1')
    I(f'v_lshlrev_b32 v{T[2]}, 2, v{T[2]}')
    I(f'v_xor_b32 v{T[1]}, v{T[1]}, v{T[2]}')
    I(f'v_lshlrev_b32 v{T[1]}, 4, v{T[1]}')
    I(f'v_mul_u32_u24 v{T[0]}, 3584, v{T[0]}')
    I(f'v_add_u32 v{T[4]}, v{T[1]}, v{T[0]}')
    I(f's_mul_i32 s45, s34, {8*3584}')
    I('s_lshl_b32 s46, s36, 8')
    I('s_add_u32 s45, s45, s46')
    I('s_lshl_b32 s46, s34, 10')
    def dma(hf, j):
        return [f's_add_u32 s47, s46, {hf*65536 + j*4096}', 's_mov_b32 m0, s47',
                f's_add_u32 s48, s45, {hf*128 + j*32*3584}',
                f'buffer_load_dwordx4 v{T[4]}, s[12:15], s48 offen lds']
    I('s_lshl_b32 s49, s40, 15')
    I(f's_add_u32 s49, s49, {WS_X1B:#x}')
    def bload(ks):
        L = []
        if ks % 4 == 0 and ks > 0: L.append('s_add_u32 s49, s49, 4096')
        L.append(f'buffer_load_dwordx4 a[{BF+4*ks}:{BF+4*ks+3}], v{vL16}, s[24:27], s49 offen offset:{1024*(ks%4)}')
        return L
    I('s_cmp_ge_u32 s55, 4')
    I('s_cbranch_scc0 K4_comp')
    I('s_lshl_b32 s51, s36, 9')
    I(f's_add_u32 s51, s51, {WS_CS3:#x}')
    I(f's_mov_b32 m0, {L_CS}')
    I('s_mov_b32 exec_hi, 0')
    I(f'buffer_load_dwordx4 v{vL16}, s[24:27], s51 offen lds')
    I('s_mov_b32 exec_hi, -1')
    n_save = st.n
    AH = 3
    def grp(q):
        for j in range(4*(q%4), 4*(q%4)+4):
            for s in dma(q//4, j): I(s)
    for q in range(AH): grp(q)
    for q in range(8):
        out = min(8, q + AH) - (q + 1)
        I(f's_waitcnt vmcnt({4*out})')
        st()
        I('s_barrier')
        if q + AH < 8: grp(q + AH)
    st.kidx = 6
    st.flush(24, 55, 22, vLANE)
    st.kidx = 4; st.n = n_save
    I('s_branch K4_end')
    a.label('K4_comp')
    for ks in range(8):
        for s in bload(ks): I(s)
    I(f'v_and_b32 v{T[0]}, 31, v{vLANE}')
    I(f'v_lshlrev_b32 v{T[0]}, 7, v{T[0]}')
    I('s_lshl_b32 s50, s40, 12')
    I(f's_add_u32 s50, s50, {WS_ST4:#x}')
    for j in range(8):
        I(f'buffer_load_dwordx4 v[{ST+4*j}:{ST+4*j+3}], v{T[0]}, s[24:27], s50 offen offset:{16*j}')
    for ks in range(8, 16):
        for s in bload(ks): I(s)
    brest = ['\n'.join(bload(ks)) for ks in range(16, 32)]
    I(f'v_lshrrev_b32 v{T[6]}, 5, v{vLANE}')
    I(f'v_bfe_u32 v{T[7]}, v{vLANE}, 2, 2')
    I(f'v_lshl_add_u32 v{T[6]}, v{T[6]}, 3, v{T[7]}')
    I(f'v_lshlrev_b32 v{T[6]}, 7, v{T[6]}')
    I(f'v_bfe_u32 v{T[5]}, v{vLANE}, 4, 1')
    I(f'v_lshl_add_u32 v{T[6]}, v{T[5]}, 5, v{T[6]}')
    I(f'v_and_b32 v{T[5]}, 1, v{vLANE}')
    I(f'v_lshl_add_u32 v{T[6]}, v{T[5]}, 4, v{T[6]}')
    I(f'v_bfe_u32 v{T[5]}, v{vLANE}, 1, 1')
    I(f'v_lshl_add_u32 v{T[6]}, v{T[5]}, 3, v{T[6]}')
    I(f'v_bfe_u32 v{T[7]}, v{vLANE}, 3, 1')
    I(f'v_lshl_add_u32 v{AD[0]}, v{T[7]}, 6, v{T[6]}')
    I(f'v_xor_b32 v{T[7]}, 1, v{T[7]}')
    I(f'v_lshl_add_u32 v{AD[1]}, v{T[7]}, 6, v{T[6]}')
    I(f'v_add_u32 v{AD[2]}, 65536, v{AD[0]}')
    I(f'v_add_u32 v{AD[3]}, 65536, v{AD[1]}')
    I(f'v_lshrrev_b32 v{T[5]}, 5, v{vLANE}')
    I(f'v_lshlrev_b32 v{T[5]}, 5, v{T[5]}')
    I(f'v_add_u32 v{T[5]}, {L_CS}, v{T[5]}')
    st()
    def stats():
        L = []
        L.append(f'v_add_f32 v{M4}, v{ST}, v{ST+2}')
        L.append(f'v_add_f32 v{V4}, v{ST+1}, v{ST+3}')
        for j in range(2, 16):
            L.append(f'v_add_f32 v{M4}, v{M4}, v{ST+2*j}')
            L.append(f'v_add_f32 v{V4}, v{V4}, v{ST+2*j+1}')
        L.append(f'v_mul_f32 v{M4}, {f32bits(1.0/16):#x}, v{M4}')
        L.append(f'v_mov_b32 v{T[2]}, 0')
        for j in range(16):
            L.append(f'v_sub_f32 v{T[3]}, v{ST+2*j}, v{M4}')
            L.append(f'v_fmac_f32 v{T[2]}, v{T[3]}, v{T[3]}')
        L.append(f'v_fmac_f32 v{V4}, {f32bits(32.0):#x}, v{T[2]}')
        L.append(f'v_mul_f32 v{V4}, {f32bits(1.0/512):#x}, v{V4}')
        L.append(f'v_cvt_pk_bf16_f32 v{M4}, 0, v{M4}')
        L.append(f'v_cvt_pk_bf16_f32 v{V4}, 0, v{V4}')
        L.append(f'v_add_f32 v{V4}, {f32bits(1e-5):#x}, v{V4}')
        L.append(f'v_cvt_pk_bf16_f32 v{V4}, 0, v{V4}')
        L.append(f'v_sqrt_f32 v{V4}, v{V4}')
        L.append(f'v_cvt_pk_bf16_f32 v{V4}, 0, v{V4}')
        L.append(f'v_rcp_f32 v{V4}, v{V4}')
        return L
    c0 = -2.0 * (2.0/3.141592653589793) ** 0.5 * LOG2E
    I(f's_mov_b32 s52, {f32bits(c0*0.044715):#x}')
    I(f'v_mov_b32 v{T[6]}, {f32bits(c0):#x}')
    I(f's_mul_i32 s53, s40, 114688')
    I('s_lshl_b32 s54, s36, 13')
    I('s_add_u32 s53, s53, s54')
    I(f's_add_u32 s53, s53, {WS_T2:#x}')
    I('s_add_u32 s54, s53, 4096')
    def epi(mt):
        L = []
        b = ACC + 16*mt
        TT = [T[0], T[1], T[2], T[3]]
        for h8 in range(2):
            L.append(f'ds_read_b128 v[{CS}:{CS+3}], v{T[5]} offset:{128*mt + 64*h8}')
            L.append(f'ds_read_b128 v[{CS+4}:{CS+7}], v{T[5]} offset:{128*mt + 64*h8 + 16}')
            for g4 in range(2):
                chains = []
                for i in range(4):
                    e = 8*h8 + 4*g4 + i
                    r = b + e
                    c = [f'v_fma_f32 v{r}, -v{M4}, v{CS+(e%8)}, v{r}', f'v_mul_f32 v{r}, v{r}, v{V4}']
                    c += gelu_ops(r, TT[i], 'v%d' % T[6], 's52')
                    chains.append(c)
                for j in range(len(chains[0])):
                    for c in chains: L.append(c[j])
                for i in (0, 2):
                    e = 8*h8 + 4*g4 + i
                    L.append(f'v_cvt_pk_bf16_f32 v{OUTP+e//2}, v{b+e}, v{b+e+1}')
            q = 2*mt + h8
            so = 's53' if q < 4 else 's54'
            L.append(f'buffer_store_dwordx4 v[{OUTP+4*h8}:{OUTP+4*h8+3}], v{vL16}, s[24:27], {so} offen offset:{1024*(q%4)}')
        return L
    def rd(hf, idx):
        ks, m2 = idx // 2, idx % 2
        L = []
        for t in range(2):
            d = AFR + 4*(idx % NRING) + 2*t
            L.append(f'ds_read_b64_tr_b16 v[{d}:{d+1}], v{AD[2*hf+m2]} offset:{(16*ks + 4*t)*128}')
        return L
    PRE = 4
    for hf in range(2):
        for qd in range(4):
            I('s_barrier')
            if hf == 1 and qd == 0: st()
            main = []
            base = 16*qd
            for idx in range(base, base+PRE): main += rd(hf, idx)
            lim = base + 16
            for idx in range(base, base+16):
                ks, m2 = idx // 2, idx % 2
                b = ACC + 16*(2*hf + m2)
                cc = '0' if ks == 0 else f'v[{b}:{b+15}]'
                main.append(f'v_mfma_f32_32x32x16_bf16 v[{b}:{b+15}], v[{AFR+4*(idx%NRING)}:{AFR+4*(idx%NRING)+3}], a[{BF+4*ks}:{BF+4*ks+3}], {cc}')
                if idx + PRE < lim: main += rd(hf, idx + PRE)
            side = []
            if hf == 0:
                if qd < 2: side = brest[8*qd:8*qd+8]
                if qd == 2: side = stats()
            else:
                e = epi(0) + epi(1)
                n0 = (len(e) * qd) // 4; n1 = (len(e) * (qd+1)) // 4
                side = e[n0:n1]
            for s in merge(main, side): I(s)
    st()
    for s in merge(epi(2), []) : I(s)
    for s in epi(3): I(s)
    st.flush(24, 34, 22, vLANE)
    a.label('K4_end')
    I('s_endpgm')
    print("K4 instrs", a.ninstr, "nops", a.nnop)
    return a.text(), kernel_desc(name, 256, 96, accum=128)
```

```python
import sys
from common import *
from k0 import gen_k0
from k1 import gen_k1
from k2 import gen_k2
from k3 import gen_k3
from k4 import gen_k4
from k5 import gen_k5
def build(path, upto=6, stamps=False, emu=True, t0=False, t1=2):
    hdr = open('cdna_kernels/' + NAME + '.s.ref').read().split('; Override launch')[0]
    ks = []
    ks.append(('k0_kernel', (496,1,1), 512, 32768, lambda n: gen_k0(n, stamps, touch=t0)))
    ks.append(('k1_kernel', (256,1,1), 512, 163840, lambda n: gen_k1(n, stamps, emu=emu, touch=t1)))
    ks.append(('k2_kernel', (256,1,1), 512, 18432, lambda n: gen_k2(n, stamps)))
    ks.append(('k3_kernel', (256,1,1), 256, 65536, lambda n: gen_k3(n, stamps)))
    ks.append(('k4_kernel', (224,1,1), 512, 131584, lambda n: gen_k4(n, stamps)))
    ks.append(('k5_kernel', (256,1,1), 512, 163840, lambda n: gen_k5(n, stamps)))
    ks = ks[:upto]
    out = hdr
    for n, g, b, lds, f in ks:
        out += f'; @launch kernel={n} grid=({g[0]},{g[1]},{g[2]}) block=({b},1,1) lds={lds}\n'
    out += '.amdgcn_target "amdgcn-amd-amdhsa--gfx950"\n.text\n'
    descs = ''
    for n, g, b, lds, f in ks:
        t, d = f(n)
        out += t; descs += d
    out += '.section .rodata,"a"\n' + descs
    open(path, 'w').write(out)
if __name__ == '__main__':
    build(sys.argv[1] if len(sys.argv) > 1 else 'cur.s', stamps=(int(sys.argv[2]) if len(sys.argv) > 2 else 0))
```

```python
import re

TRANS = ('v_exp_f32','v_log_f32','v_rcp_f32','v_rsq_f32','v_sqrt_f32','v_sin_f32','v_cos_f32','v_rcp_iflag_f32')

def parse_regs(tok):
    tok = tok.strip()
    tok = tok.lstrip('-')
    m = re.fullmatch(r'abs\((.*)\)', tok)
    if m: tok = m.group(1)
    m = re.fullmatch(r'\|(.*)\|', tok)
    if m: tok = m.group(1)
    m = re.fullmatch(r'([vsa])\[(\d+):(\d+)\]', tok)
    if m:
        return [(m.group(1), i) for i in range(int(m.group(2)), int(m.group(3))+1)]
    m = re.fullmatch(r'([vsa])(\d+)', tok)
    if m:
        return [(m.group(1), int(m.group(2)))]
    if tok in ('vcc',): return [('x','vcc')]
    if tok in ('exec',): return [('x','exec')]
    if tok in ('m0',): return [('x','m0')]
    return []

def split_ops(s):
    ops = []; depth = 0; cur = ''
    for ch in s:
        if ch in '[(': depth += 1
        if ch in '])': depth -= 1
        if ch == ',' and depth == 0:
            ops.append(cur.strip()); cur = ''
        else:
            cur += ch
    if cur.strip(): ops.append(cur.strip())
    return ops

class Ins:
    __slots__ = ('text','mn','cls','reads','writes','srcC','passes','ws','isDPP','ldsdma','widestore','tagR','tagW')
    def __init__(self, text):
        self.text = text
        t = text.split(';')[0].strip()
        parts = t.split(None, 1)
        mn = parts[0]; self.mn = mn
        rest = parts[1] if len(parts) > 1 else ''
        ops = split_ops(rest)
        mods = ''
        if ops:
            last = ops[-1].split()
            if len(last) > 1:
                ops[-1] = last[0]; mods = ' '.join(last[1:])
        self.reads = []; self.writes = []; self.srcC = []; self.passes = 0; self.ws = 1
        self.isDPP = ('dpp' in mn) or ('row_' in mods) or ('quad_perm' in mods)
        self.ldsdma = False; self.widestore = False
        R = lambda i: parse_regs(ops[i]) if i < len(ops) else []
        if mn.startswith('v_mfma'):
            self.cls = 'mfma'
            self.writes = R(0); self.reads = R(1) + R(2) + R(3); self.srcC = R(3)
            self.passes = 8 if '32x32x16' in mn else 4
        elif mn.startswith('v_cmp'):
            self.cls = 'valu'; self.writes = R(0); self.reads = R(1) + R(2)
        elif mn.startswith('v_permlane') and 'swap' in mn:
            self.cls = 'valu'; self.writes = R(0) + R(1); self.reads = R(0) + R(1)
        elif mn in ('v_readfirstlane_b32','v_readlane_b32'):
            self.cls = 'valu'; self.writes = R(0); self.reads = R(1) + R(2)
        elif mn.startswith('v_add_co') or mn.startswith('v_sub_co') or mn.startswith('v_addc_co'):
            self.cls = 'valu'; self.writes = R(0) + R(1); self.reads = sum([R(i) for i in range(2, len(ops))], [])
        elif mn == 'v_nop':
            self.cls = 'valu'
        elif mn.startswith('v_'):
            self.cls = 'trans' if any(mn.startswith(x) for x in TRANS) else 'valu'
            self.writes = R(0); self.reads = sum([R(i) for i in range(1, len(ops))], [])
            if mn.startswith('v_fmac') or mn.startswith('v_dot2c') or mn.startswith('v_mac') or self.isDPP or mn.startswith('v_writelane'):
                self.reads += R(0)
            if mn.startswith('v_cndmask') and len(ops) == 3: self.reads += [('x','vcc')]
        elif mn.startswith('ds_read') or mn.startswith('ds_bpermute') or mn.startswith('ds_swizzle') or mn.startswith('ds_permute'):
            self.cls = 'dsr'; self.writes = R(0); self.reads = sum([R(i) for i in range(1, len(ops))], [])
        elif mn.startswith('ds_write') or mn.startswith('ds_add'):
            self.cls = 'dsw'; self.reads = sum([R(i) for i in range(len(ops))], [])
        elif mn.startswith('buffer_load') or mn.startswith('global_load'):
            if re.search(r'\blds\b', mods) or 'lds' in mn:
                self.cls = 'vmem_dma'; self.ldsdma = True
                self.reads = sum([R(i) for i in range(len(ops))], []) + [('x','m0')]
            else:
                self.cls = 'vmem_ld'; self.writes = R(0); self.reads = sum([R(i) for i in range(1, len(ops))], [])
        elif mn.startswith('buffer_store') or mn.startswith('global_store') or mn.startswith('buffer_atomic') or mn.startswith('global_atomic'):
            self.cls = 'vmem_st'; self.reads = sum([R(i) for i in range(len(ops))], [])
            self.widestore = ('x3' in mn or 'x4' in mn)
            if self.widestore:
                self.srcC = R(0) if mn.startswith('buffer') else R(1)
        elif mn.startswith('s_load') or mn.startswith('s_buffer_load'):
            self.cls = 'smem'; self.writes = R(0); self.reads = R(1)
        elif mn == 's_nop':
            self.cls = 'nop'; self.ws = int(ops[0], 0) + 1
        elif mn in ('s_waitcnt','s_barrier','s_setprio','s_endpgm','s_sleep') or mn.startswith('s_cbranch') or mn in ('s_branch', 's_call_b64', 's_setpc_b64'):
            self.cls = 'ctl'
        elif mn.startswith('s_cmp'):
            self.cls = 'salu'; self.reads = R(0) + R(1)
        elif mn.startswith('s_'):
            self.cls = 'salu'; self.writes = R(0); self.reads = sum([R(i) for i in range(1, len(ops))], [])
            if 'saveexec' in mn: self.writes += [('x','exec')]
        else:
            raise ValueError("unknown instr: " + text)
        self.tagR = []; self.tagW = []
        if ';' in text:
            for tok in text.split(';', 1)[1].split():
                if tok.startswith('R:'): self.tagR.append(('L', tok[2:]))
                elif tok.startswith('W:'): self.tagW.append(('L', tok[2:]))

class Asm:
    def __init__(self):
        self.out = []
        self.hist = []
        self.pos = 0
        self.lds_q = []
        self.vm_q = []
        self.nnop = 0
        self.ninstr = 0
    def raw(self, s):
        self.out.append(s)
    def label(self, name):
        self.out.append(name + ':')
        self.hist = [(p, self.pos) for (p, _) in self.hist]
        for attr in ('lds_q', 'vm_q'):
            q = getattr(self, attr)
            u = set()
            for d in q:
                if d: u |= d
            setattr(self, attr, [u] if u else [])
    def comment(self, s):
        self.out.append('    ; ' + s)
    def barrier_state(self):
        self._emit_nop(16)
    def _emit_nop(self, n):
        while n > 0:
            k = min(n, 16)
            self.out.append(f'    s_nop {k-1}')
            self.pos += k; n -= k; self.nnop += 1
    def _need(self, ins):
        need = 0
        rd = set(ins.reads); wr = set(ins.writes)
        for (p, pend) in reversed(self.hist):
            dist = self.pos - pend
            if dist >= 24: break
            pw = set(p.writes)
            req = 0
            isvalu = p.cls in ('valu','trans')
            if isvalu:
                vw = {r for r in pw if r[0] in 'va'}
                sw = {r for r in pw if r[0] == 's' or r == ('x','vcc')}
                if ins.cls == 'mfma' and vw & rd: req = max(req, 2)
                if ins.mn.startswith('v_permlane') and vw & rd: req = max(req, 2)
                if ins.mn in ('v_readfirstlane_b32','v_readlane_b32') and vw & rd: req = max(req, 1)
                if ins.isDPP and vw & rd: req = max(req, 2)
                if p.mn.startswith('v_dot') and vw & (rd | wr):
                    ops_ = split_ops(ins.text.split(';')[0].strip().split(None,1)[1]) if ' ' in ins.text.strip() else []
                    same_c = (ins.mn == p.mn and len(ops_) >= 4 and vw == set(parse_regs(ops_[3].split()[0])) and not (vw & set(parse_regs(ops_[1]) + parse_regs(ops_[2]))))
                    if not same_c: req = max(req, 3)
                if p.cls == 'trans' and ins.cls in ('valu','mfma','vmem_st','dsw','dsr','vmem_ld','vmem_dma') and vw & (rd|wr): req = max(req, 1)
                if sw & rd:
                    if ins.cls in ('valu','trans'): req = max(req, 2)
                    if ins.cls.startswith('vmem'): req = max(req, 5)
                    if ins.mn in ('v_readlane_b32','v_writelane_b32'): req = max(req, 4)
                    if ins.cls in ('salu',): req = max(req, 1)
            if p.cls == 'mfma':
                big = 12 if p.passes == 8 else 8
                ovl = 10 if p.passes == 8 else 6
                war = 7 if p.passes == 8 else 3
                if ins.cls == 'mfma':
                    a_b = set(ins.reads) - set(ins.srcC)
                    ab = set(parse_regs(split_ops(ins.text.split(None,1)[1])[1]) + parse_regs(split_ops(ins.text.split(None,1)[1])[2]))
                    if pw & ab: req = max(req, big)
                    c = set(ins.srcC)
                    if pw & c:
                        if c == pw and p.passes == ins.passes: pass
                        else: req = max(req, ovl)
                    elif pw & wr:
                        req = max(req, ovl)
                else:
                    if pw & (rd | wr): req = max(req, big)
                    if ins.cls in ('valu','trans','dsr','vmem_ld') and set(p.srcC) & wr: req = max(req, war)
            if p.cls == 'salu' and ('x','m0') in pw and ins.ldsdma: req = max(req, 1)
            if p.cls == 'vmem_st' and p.widestore and set(p.srcC) & wr:
                req = max(req, 2 if ins.cls in ('valu','trans','mfma') else 1)
            if req > dist: need = max(need, req - dist)
        return need
    def _autowait(self, ins):
        touched = set(ins.reads) | set(ins.writes)
        touched_l = touched | set(ins.tagW if ins.cls not in ('dsw',) else [])
        touched = touched | set(ins.tagR) | set(ins.tagW if ins.cls in ('dsw',) else [])
        k = None
        for i, d in enumerate(self.lds_q):
            if d and (d & touched_l): k = i
        lg = None; vm = None
        if k is not None:
            lg = len(self.lds_q) - 1 - k
            self.lds_q = self.lds_q[k+1:]
        k = None
        for i, d in enumerate(self.vm_q):
            if d and (d & touched): k = i
        if k is not None:
            vm = len(self.vm_q) - 1 - k
            self.vm_q = self.vm_q[k+1:]
        if lg is not None or vm is not None:
            s = 's_waitcnt'
            if vm is not None: s += f' vmcnt({min(vm,63)})'
            if lg is not None: s += f' lgkmcnt({min(lg,15)})'
            self._put(Ins(s))
    def _put(self, ins):
        self.out.append('    ' + ins.text.split(';')[0].rstrip())
        self.pos += ins.ws
        self.hist.append((ins, self.pos))
        if len(self.hist) > 64: self.hist = self.hist[-48:]
        self.ninstr += 1
    def I(self, text):
        if '\n' in text:
            for t in text.split('\n'): self.I(t)
            return
        ins = Ins(text)
        if ins.mn == 's_waitcnt':
            m = re.search(r'vmcnt\((\d+)\)', text)
            if m:
                n = int(m.group(1));
                if len(self.vm_q) > n: self.vm_q = self.vm_q[len(self.vm_q)-n:] if n else []
            m = re.search(r'lgkmcnt\((\d+)\)', text)
            if m:
                n = int(m.group(1))
                if len(self.lds_q) > n: self.lds_q = self.lds_q[len(self.lds_q)-n:] if n else []
            self._put(ins); return
        self._autowait(ins)
        n = self._need(ins)
        if n > 0: self._emit_nop(n)
        self._put(ins)
        if ins.cls == 'dsr': self.lds_q.append(set(ins.writes) | set(ins.tagR))
        elif ins.cls == 'dsw': self.lds_q.append(set(r for r in ins.reads if r[0]=='v') and None)
        elif ins.cls == 'vmem_ld': self.vm_q.append(set(ins.writes))
        elif ins.cls in ('vmem_dma','vmem_st'): self.vm_q.append(set(ins.tagW) or None)
    def wait_tags(self, tags, lg=False):
        k = None
        tt = {('L', t) for t in tags}
        for i, d in enumerate(self.vm_q):
            if d and (d & tt): k = i
        s = 's_waitcnt'
        if k is not None: s += f' vmcnt({min(len(self.vm_q) - 1 - k, 63)})'
        if lg: s += ' lgkmcnt(0)'
        if s != 's_waitcnt': self.I(s)
    def vm_outstanding(self):
        return len(self.vm_q)
    def text(self):
        return '\n'.join(self.out) + '\n'

def merge(*streams):
    streams = [s for s in streams if s]
    if not streams: return []
    total = max(len(s) for s in streams)
    idx = [0]*len(streams)
    out = []
    n = sum(len(s) for s in streams)
    while len(out) < n:
        best = None; bf = None
        for i, s in enumerate(streams):
            if idx[i] < len(s):
                f = (idx[i] + 0.5) / len(s)
                if bf is None or f < bf: bf = f; best = i
        out.append(streams[best][idx[best]]); idx[best] += 1
    return out
```

```python
from asmlib import *
NAME = "adaLN_cond__sliding_block_cached__mixer_s_mlp__prompt"
KA_X, KA_K, KA_V, KA_WQ, KA_WO, KA_BX, KA_W1, KA_W2, KA_W3, KA_W4, KA_C, KA_WMOD, KA_OUT, KA_DBG, KA_WS = [8*i for i in range(15)]
WS_H   = 0x0000000
WS_MOD = 0x0200000
WS_MODA = 0x0205000
WS_CS1 = 0x0202000
WS_CS3 = 0x0202800
WS_GP  = 0x0240000
GP_STRIDE = 5376*4
WS_W1P = 0x0280000
WS_M2P = 0x0270000
WS_C3P = 0x0260000
WS_VP  = 0x0300000
WS_P   = 0x0400000
WS_X1  = 0x1400000
WS_HB  = 0x1600000
WS_W2P = 0x1800000
WS_T   = 0x1800000
WS_X1B = 0x1A00000
WS_ST4 = 0x1C00000
WS_T2  = 0x2000000
WS_SIZE = 268435456

def f32bits(x):
    import struct
    return struct.unpack('<I', struct.pack('<f', x))[0]

def kernel_header(a, name):
    a.raw(f'.globl {name}')
    a.raw('.p2align 8')
    a.raw(f'.type {name},@function')
    a.raw(f'{name}:')

def kernel_desc(name, vgpr, sgpr=96, accum=None):
    acc = accum if accum else (vgpr + 3)//4*4
    return f'''.p2align 6
.amdhsa_kernel {name}
  .amdhsa_next_free_vgpr {vgpr}
  .amdhsa_next_free_sgpr {sgpr}
  .amdhsa_accum_offset {acc}
  .amdhsa_group_segment_fixed_size 0
  .amdhsa_kernarg_size 120
  .amdhsa_user_sgpr_count 2
  .amdhsa_user_sgpr_kernarg_segment_ptr 1
  .amdhsa_system_sgpr_workgroup_id_x 1
  .amdhsa_float_denorm_mode_32 3
.end_amdhsa_kernel
'''

def srd(a, d, lo, hi, nbytes, add=0):
    if add:
        a.I(f's_add_u32 s{d}, s{lo}, {add:#x}')
        a.I(f's_addc_u32 s{d+1}, s{hi}, 0')
    else:
        a.I(f's_mov_b32 s{d}, s{lo}')
        a.I(f's_mov_b32 s{d+1}, s{hi}')
    a.I(f's_mov_b32 s{d+2}, {nbytes:#x}')
    a.I(f's_mov_b32 s{d+3}, 0x00020000')

def rnd_bf16(a, dst, src):
    a.I(f'v_cvt_pk_bf16_f32 v{dst}, 0, v{src}')

class VStamper:
    def __init__(self, a, on, kidx, vs):
        self.a = a; self.on = on; self.n = 0; self.kidx = kidx; self.vs = vs
    def __call__(self):
        if not self.on: return
        a = self.a
        a.I('s_memtime s[100:101]'); a.I('s_waitcnt lgkmcnt(0)'); a.I(f'v_writelane_b32 v{self.vs}, s100, {self.n}')
        a.I('s_memrealtime s[100:101]'); a.I('s_waitcnt lgkmcnt(0)'); a.I(f'v_writelane_b32 v{self.vs}, s100, {32+self.n}')
        self.n += 1
    def first(self):
        if not self.on: return
        a = self.a
        a.I('s_memrealtime s[100:101]'); a.I('s_waitcnt lgkmcnt(0)'); a.I(f'v_writelane_b32 v{self.vs}, s100, 31')
        self()
    def flush(self, ws_srd, wave_sgpr, vtmp, lane_reg):
        if not self.on: return
        a = self.a
        a.I('s_waitcnt vmcnt(0)')
        self()
        a.I('s_memrealtime s[100:101]'); a.I('s_waitcnt lgkmcnt(0)')
        a.I(f'v_writelane_b32 v{self.vs}, s100, 30')
        a.I(f'v_writelane_b32 v{self.vs}, {self.n}, 29')
        a.I('s_lshl_b32 s100, s2, 4'); a.I(f's_add_u32 s100, s100, s{wave_sgpr}'); a.I('s_lshl_b32 s100, s100, 8')
        a.I(f's_add_u32 s100, s100, {0x8000000 + self.kidx*0x100000:#x}')
        a.I(f'v_lshlrev_b32 v{vtmp}, 2, v{lane_reg}')
        a.I(f'buffer_store_dword v{self.vs}, v{vtmp}, s[{ws_srd}:{ws_srd+3}], s100 offen')

STAMP_BASE = 0x8000000
class Stamper:
    def __init__(self, a, on, kidx):
        self.a = a; self.on = (1 if on == 3 else on); self.n = 0; self.kidx = kidx
    def __call__(self):
        if not self.on: return
        a = self.a
        a.I('s_memtime s[66:67]'); a.I('s_waitcnt lgkmcnt(0)'); a.I(f's_mov_b32 s{70+self.n}, s66')
        if self.on == 2:
            a.I('s_memrealtime s[66:67]'); a.I('s_waitcnt lgkmcnt(0)'); a.I(f's_mov_b32 s{82+self.n}, s66')
        self.n += 1
    def first(self):
        if not self.on: return
        a = self.a
        a.I('s_memrealtime s[66:67]'); a.I('s_waitcnt lgkmcnt(0)'); a.I('s_mov_b32 s69, s66')
        self()
    def flush(self, ws_srd, wave_sgpr, vtmp, lane_reg):
        if not self.on: return
        a = self.a
        a.I('s_waitcnt vmcnt(0)')
        self()
        a.I('s_memrealtime s[66:67]'); a.I('s_waitcnt lgkmcnt(0)')
        a.I('s_mov_b64 exec, -1')
        a.I(f'v_mov_b32 v{vtmp}, 0')
        for i in range(self.n):
            a.I(f'v_writelane_b32 v{vtmp}, s{70+i}, {i}')
            if self.on == 2: a.I(f'v_writelane_b32 v{vtmp}, s{82+i}, {32+i}')
        a.I(f'v_writelane_b32 v{vtmp}, s66, 30')
        a.I(f'v_writelane_b32 v{vtmp}, s69, 31')
        a.I(f'v_writelane_b32 v{vtmp}, {self.n}, 29')
        a.I('s_lshl_b32 s68, s2, 4'); a.I(f's_add_u32 s68, s68, s{wave_sgpr}'); a.I('s_lshl_b32 s68, s68, 8')
        a.I(f's_add_u32 s68, s68, {STAMP_BASE + self.kidx*0x100000:#x}')
        a.I(f'v_lshlrev_b32 v{vtmp+1}, 2, v{lane_reg}')
        a.I(f'buffer_store_dword v{vtmp}, v{vtmp+1}, s[{ws_srd}:{ws_srd+3}], s68 offen')
```

```python
from common import *

def gen_k0(name, stamps=False, touch=True, cpf=False):
    a = Asm()
    early = (stamps == 3)
    st = Stamper(a, 1 if early else stamps, 0)
    kernel_header(a, name)
    I = a.I
    L_RES, L_SILU, L_V, L_W = 16384, 16896, 20480, 18432
    I('s_cmp_ge_u32 s2, 496')
    I('s_cbranch_scc1 K0_end')
    I(f's_load_dwordx2 s[4:5], s[0:1], {KA_X}')
    I(f's_load_dwordx4 s[8:11], s[0:1], {KA_C}')
    I(f's_load_dwordx2 s[12:13], s[0:1], {KA_W1}')
    I(f's_load_dwordx2 s[18:19], s[0:1], {KA_W2}')
    I(f's_load_dwordx2 s[14:15], s[0:1], {KA_W3}')
    I(f's_load_dwordx2 s[16:17], s[0:1], {KA_WS}')
    I(f's_load_dwordx4 s[56:59], s[0:1], {KA_K}')
    I(f's_load_dwordx2 s[60:61], s[0:1], {KA_WQ}')
    I('v_and_b32 v1, 15, v0')
    I('v_lshrrev_b32 v2, 4, v0')
    I('v_lshrrev_b32 v3, 6, v0')
    I('s_nop 0')
    I('v_readfirstlane_b32 s54, v3')
    I('s_waitcnt lgkmcnt(0)')
    st.first()
    I('s_cmp_lt_u32 s2, 256')
    I('s_cbranch_scc0 K0_x')
    I('s_mov_b32 s20, s10'); I('s_mov_b32 s21, s11'); I(f's_mov_b32 s22, {512*6144}')
    I('s_movk_i32 s24, 6144')
    I('s_and_b32 s25, s2, 1'); I('s_lshl_b32 s25, s25, 2'); I('s_bfe_u32 s29, s2, 0x20003'); I('s_add_u32 s25, s25, s29'); I('s_lshl_b32 s25, s25, 7')
    I('s_movk_i32 s26, 1024'); I('s_mov_b32 s27, 0'); I('s_mov_b32 s28, 0')
    I('s_mov_b32 s23, 0x00020000')
    srd(a, 32, 4, 5, 2048*1024)
    srd(a, 36, 8, 9, 1024)
    srd(a, 40, 16, 17, WS_SIZE)
    srd(a, 48, 58, 59, 8*2048*256)
    srd(a, 4, 56, 57, 8*2048*256)
    srd(a, 8, 60, 61, 512*8192)
    srd(a, 56, 12, 13, 512*1024)
    if early:
        I('v_and_b32 v9, 63, v0')
        st.flush(40, 54, 70, 9)
        st.on = 0
        stamps = 0
    I('v_lshlrev_b32 v6, 1, v0')
    I('buffer_load_ushort v8, v6, s[36:39], 0 offen')
    I('s_lshl_b32 s29, s24, 4')
    I('v_mul_lo_u32 v3, v2, s29')
    I('v_and_b32 v4, 7, v1')
    I('v_lshlrev_b32 v4, 4, v4')
    I('v_lshrrev_b32 v5, 3, v1')
    I('v_mul_lo_u32 v5, v5, s26')
    I('v_add3_u32 v3, v3, v4, v5')
    I('v_add_u32 v3, s25, v3')
    I('s_bfe_u32 s30, s2, 0x20001')
    I('s_lshl_b32 s30, s30, 3')
    I('s_bfe_u32 s31, s2, 0x30005')
    I('s_add_u32 s30, s30, s31')
    I('s_and_b32 s31, s2, 1'); I('s_lshl_b32 s31, s31, 2'); I('s_bfe_u32 s29, s2, 0x20003'); I('s_add_u32 s31, s31, s29')
    I('s_and_b32 s64, s2, 7')
    I('s_bfe_u32 s65, s2, 0x50003')
    I('v_lshrrev_b32 v7, 3, v0')
    I('v_and_b32 v4, 7, v0')
    I('v_lshlrev_b32 v5, 10, v7')
    I('v_lshl_add_u32 v5, v4, 4, v5')
    I('s_lshl_b32 s45, s30, 16')
    for i in range(8):
        I(f'buffer_load_dwordx4 v[{96+4*i}:{99+4*i}], v5, s[32:35], s45 offen offset:{128*i}')
    I('s_lshl_b32 s44, s31, 7')
    I('s_add_u32 s44, s44, s45')
    I('buffer_load_dwordx4 v[24:27], v5, s[32:35], s44 offen')
    I('s_mov_b32 s29, 0')
    for i in range(16):
        I(f'buffer_load_dwordx4 v[{32+4*i}:{35+4*i}], v3, s[20:23], s29 offen')
        if i < 15: I('s_add_u32 s29, s29, s24')
    st()
    log2e = f32bits(1.4426950408889634)
    I(f's_mov_b32 s45, {log2e:#x}')
    I('s_mov_b32 s46, 0xffff0000')
    I('v_lshlrev_b32 v8, 16, v8')
    I('v_mul_f32 v9, s45, v8')
    I('v_exp_f32 v9, -v9')
    I('v_add_f32 v9, 1.0, v9')
    I('v_rcp_f32 v9, v9')
    I('v_mul_f32 v8, v8, v9')
    I('v_cvt_pk_bf16_f32 v8, v8, v8')
    I('s_cmp_eq_u32 s27, 2')
    I('s_cbranch_scc0 K0_w')
    I('v_mov_b32 v8, 0x3f80')
    a.label('K0_w')
    I(f'ds_write_b16 v6, v8 offset:{L_SILU}')
    I('v_and_b32 v9, 63, v0')
    I('s_waitcnt vmcnt(16)')
    a.vm_q = []
    st()
    I('s_mov_b32 s47, 0x3f803f80')
    I('v_mov_b32 v30, 0'); I('v_mov_b32 v31, 0'); I('v_mov_b32 v28, 0'); I('v_mov_b32 v29, 0')
    for i in range(0, 32, 2):
        I(f'v_dot2_f32_bf16 v30, v{96+i}, s47, v30')
        I(f'v_dot2_f32_bf16 v31, v{96+i}, v{96+i}, v31')
        I(f'v_dot2_f32_bf16 v28, v{97+i}, s47, v28')
        I(f'v_dot2_f32_bf16 v29, v{97+i}, v{97+i}, v29')
    I('s_nop 2')
    I('v_add_f32 v30, v30, v28')
    I('v_add_f32 v31, v31, v29')
    def red8(r, t):
        I(f'v_add_f32_dpp v{t}, v{r}, v{r} quad_perm:[1,0,3,2] row_mask:0xf bank_mask:0xf')
        I(f'v_add_f32_dpp v{r}, v{t}, v{t} quad_perm:[2,3,0,1] row_mask:0xf bank_mask:0xf')
        I(f'v_add_f32_dpp v{t}, v{r}, v{r} row_half_mirror row_mask:0xf bank_mask:0xf')
        I(f'v_mov_b32 v{r}, v{t}')
    red8(30, 28)
    red8(31, 29)
    I(f'v_mul_f32 v30, {f32bits(1.0/512):#x}, v30')
    I(f'v_mul_f32 v31, {f32bits(1.0/512):#x}, v31')
    I('v_fma_f32 v31, -v30, v30, v31')
    I('v_max_f32 v31, 0, v31')
    rnd_bf16(a, 30, 30)
    rnd_bf16(a, 31, 31)
    I(f'v_add_f32 v31, {f32bits(1e-5):#x}, v31')
    rnd_bf16(a, 31, 31)
    I('v_sqrt_f32 v31, v31')
    rnd_bf16(a, 31, 31)
    I('v_rcp_f32 v31, v31')
    for d in range(4):
        I(f'v_lshlrev_b32 v{96+2*d}, 16, v{24+d}')
        I(f'v_and_b32 v{97+2*d}, s46, v{24+d}')
    for e in range(8):
        I(f'v_sub_f32 v{96+e}, v{96+e}, v30')
        rnd_bf16(a, 96+e, 96+e)
        I(f'v_mul_f32 v{96+e}, v{96+e}, v31')
        rnd_bf16(a, 96+e, 96+e)
    st()
    I('s_waitcnt vmcnt(0) lgkmcnt(0)')
    I('s_barrier')
    st()
    I('v_lshlrev_b32 v28, 5, v2')
    I(f'ds_read_b128 v[104:107], v28 offset:{L_SILU}')
    I(f'ds_read_b128 v[108:111], v28 offset:{L_SILU+16}')
    for e in range(8): I(f'v_mov_b32 v{16+e}, 0')
    I('s_mov_b32 s62, 0x05040100')
    I('s_mov_b32 s63, 0x07060302')
    for p in range(8):
        for d in range(4):
            r0 = 32 + 8*p + d; r1 = r0 + 4
            I(f'v_perm_b32 v28, v{r1}, v{r0}, s62')
            I(f'v_perm_b32 v29, v{r1}, v{r0}, s63')
            I(f'v_dot2_f32_bf16 v{16+2*d}, v28, v{104+p}, v{16+2*d}')
            I(f'v_dot2_f32_bf16 v{17+2*d}, v29, v{104+p}, v{17+2*d}')
    I('s_nop 2')
    I('v_lshlrev_b32 v28, 9, v2')
    I('v_lshl_add_u32 v28, v1, 5, v28')
    I('ds_write_b128 v28, v[16:19]')
    I('ds_write_b128 v28, v[20:23] offset:16')
    I('s_waitcnt lgkmcnt(0)')
    I('s_barrier')
    st()
    I('v_cmp_gt_u32 vcc, 128, v0')
    I('s_and_saveexec_b64 s[52:53], vcc')
    I('s_cbranch_execz K0_r')
    I('v_lshlrev_b32 v28, 2, v0')
    for i in range(32):
        I(f'ds_read_b32 v{48+i}, v28 offset:{512*i}')
    for stp in (16, 8, 4, 2, 1):
        for i in range(stp):
            I(f'v_add_f32 v{48+i}, v{48+i}, v{48+i+stp}')
    I('s_cmp_eq_u32 s27, 2')
    I('s_cbranch_scc1 K0_nr')
    rnd_bf16(a, 48, 48)
    I('s_lshr_b32 s62, s2, 2')
    I('s_cmp_eq_u32 s62, 66')
    I('s_cbranch_scc0 K0_nr')
    I('v_add_f32 v48, 1.0, v48')
    rnd_bf16(a, 48, 48)
    a.label('K0_nr')
    I(f'ds_write_b32 v28, v48 offset:{L_RES}')
    I('s_cmp_eq_u32 s27, 0')
    I('s_cbranch_scc1 K0_r')
    I('buffer_store_dword v48, v28, s[40:43], s28 offen')
    a.label('K0_r')
    I('s_mov_b64 exec, s[52:53]')
    I('s_cmp_eq_u32 s27, 0')
    I('s_cbranch_scc0 K0_side_done' if stamps else 's_cbranch_scc0 K0_end')
    I('s_waitcnt lgkmcnt(0)')
    I('s_barrier')
    I('v_lshlrev_b32 v28, 5, v4')
    I(f'ds_read_b128 v[48:51], v28 offset:{L_RES}')
    I(f'ds_read_b128 v[52:55], v28 offset:{L_RES+16}')
    I(f'ds_read_b128 v[56:59], v28 offset:{L_RES+256}')
    I(f'ds_read_b128 v[60:63], v28 offset:{L_RES+272}')
    for e in range(8):
        I(f'v_add_f32 v{56+e}, 1.0, v{56+e}')
        rnd_bf16(a, 56+e, 56+e)
        I(f'v_mul_f32 v{96+e}, v{96+e}, v{56+e}')
        rnd_bf16(a, 96+e, 96+e)
        I(f'v_add_f32 v{96+e}, v{96+e}, v{48+e}')
    for d in range(4):
        I(f'v_cvt_pk_bf16_f32 v{64+d}, v{96+2*d}, v{97+2*d}')
    I('v_lshrrev_b32 v28, 5, v7')
    I('v_lshlrev_b32 v28, 15, v28')
    I('v_lshrrev_b32 v29, 1, v4')
    I('v_lshl_add_u32 v28, v29, 10, v28')
    I('v_and_b32 v29, 1, v4')
    I('v_lshl_add_u32 v28, v29, 9, v28')
    I('v_and_b32 v29, 31, v7')
    I('v_lshl_add_u32 v28, v29, 4, v28')
    I('s_lshl_b32 s29, s30, 16')
    I('s_lshl_b32 s44, s31, 12')
    I('s_add_u32 s29, s29, s44')
    I(f'buffer_store_dwordx4 v[64:67], v28, s[40:43], s29 offen')
    a.label('K0_side_done')
    st.flush(40, 54, 70, 9)
    I('s_endpgm')
    a.label('K0_x')
    I('s_cmp_ge_u32 s2, 392')
    I('s_cbranch_scc1 K0_s')
    I('s_sub_u32 s29, s2, 256')
    I('s_cmp_lt_u32 s29, 64')
    I('s_cbranch_scc0 K0_x1')
    I('s_mov_b32 s20, s10'); I('s_mov_b32 s21, s11'); I(f's_mov_b32 s22, {512*6144}')
    I('s_movk_i32 s24, 6144')
    I('s_lshl_b32 s25, s29, 6'); I('s_add_u32 s25, s25, 2048')
    I('s_mov_b32 s27, 1')
    I('s_lshl_b32 s28, s29, 7'); I(f's_add_u32 s28, s28, {WS_MOD:#x}')
    I('s_branch K0_xd')
    a.label('K0_x1')
    I('s_cmp_lt_u32 s29, 80')
    I('s_cbranch_scc0 K0_x2')
    I('s_mov_b32 s20, s12'); I('s_mov_b32 s21, s13'); I(f's_mov_b32 s22, {512*1024}')
    I('s_movk_i32 s24, 1024')
    I('s_sub_u32 s30, s29, 64')
    I('s_lshl_b32 s25, s30, 6')
    I('s_mov_b32 s27, 2')
    I('s_lshl_b32 s28, s30, 7'); I(f's_add_u32 s28, s28, {WS_CS1:#x}')
    I('s_branch K0_xd')
    a.label('K0_x2')
    I('s_mov_b32 s20, s14'); I('s_mov_b32 s21, s15'); I(f's_mov_b32 s22, {512*3584}')
    I('s_movk_i32 s24, 3584')
    I('s_sub_u32 s30, s29, 80')
    I('s_lshl_b32 s25, s30, 6')
    I('s_mov_b32 s27, 2')
    I('s_lshl_b32 s28, s30, 7'); I(f's_add_u32 s28, s28, {WS_CS3:#x}')
    a.label('K0_xd')
    I('s_mov_b32 s23, 0x00020000')
    srd(a, 36, 8, 9, 1024)
    srd(a, 40, 16, 17, WS_SIZE)
    I('v_lshlrev_b32 v6, 1, v0')
    I('buffer_load_ushort v8, v6, s[36:39], 0 offen')
    I('v_and_b32 v1, 3, v0')
    I('v_lshrrev_b32 v2, 2, v0')
    I('s_lshl_b32 s30, s24, 2')
    I('v_mul_lo_u32 v3, v2, s30')
    I('v_lshl_add_u32 v3, v1, 4, v3')
    I('s_mov_b32 s30, s25')
    for i in range(4):
        I(f'buffer_load_dwordx4 v[{32+4*i}:{35+4*i}], v3, s[20:23], s30 offen')
        if i < 3: I('s_add_u32 s30, s30, s24')
    I(f's_mov_b32 s45, {log2e:#x}')
    I('v_lshlrev_b32 v8, 16, v8')
    I('v_mul_f32 v9, s45, v8')
    I('v_exp_f32 v9, -v9')
    I('v_add_f32 v9, 1.0, v9')
    I('v_rcp_f32 v9, v9')
    I('v_mul_f32 v8, v8, v9')
    I('v_cvt_pk_bf16_f32 v8, v8, v8')
    I('s_cmp_eq_u32 s27, 2')
    I('s_cbranch_scc0 K0_xw')
    I('v_mov_b32 v8, 0x3f80')
    a.label('K0_xw')
    I(f'ds_write_b16 v6, v8 offset:{L_SILU}')
    I('s_waitcnt lgkmcnt(0)')
    I('s_barrier')
    I('v_lshlrev_b32 v28, 3, v2')
    I(f'ds_read_b64 v[10:11], v28 offset:{L_SILU}')
    for e in range(8): I(f'v_mov_b32 v{16+e}, 0')
    I('s_mov_b32 s62, 0x05040100')
    I('s_mov_b32 s63, 0x07060302')
    for p in range(2):
        for d in range(4):
            r0 = 32 + 8*p + d; r1 = r0 + 4
            I(f'v_perm_b32 v28, v{r1}, v{r0}, s62')
            I(f'v_perm_b32 v29, v{r1}, v{r0}, s63')
            I(f'v_dot2_f32_bf16 v{16+2*d}, v28, v{10+p}, v{16+2*d}')
            I(f'v_dot2_f32_bf16 v{17+2*d}, v29, v{10+p}, v{17+2*d}')
    I('s_nop 2')
    I('v_lshlrev_b32 v28, 5, v0')
    I('ds_write_b128 v28, v[16:19]')
    I('ds_write_b128 v28, v[20:23] offset:16')
    I('s_waitcnt lgkmcnt(0)')
    I('s_barrier')
    I('v_and_b32 v28, 31, v0')
    I('v_lshrrev_b32 v29, 5, v0')
    I('v_lshlrev_b32 v30, 10, v29')
    I('v_lshl_add_u32 v30, v28, 2, v30')
    for i in range(8):
        I(f'ds_read_b32 v{48+i}, v30 offset:{128*i}')
    for stp in (4, 2, 1):
        for i in range(stp):
            I(f'v_add_f32 v{48+i}, v{48+i}, v{48+i+stp}')
    I('v_lshlrev_b32 v30, 2, v0')
    I(f'ds_write_b32 v30, v48 offset:{L_V}')
    I('s_waitcnt lgkmcnt(0)')
    I('s_barrier')
    I('v_cmp_gt_u32 vcc, 32, v0')
    I('s_and_saveexec_b64 s[52:53], vcc')
    I('s_cbranch_execz K0_end')
    for i in range(16):
        I(f'ds_read_b32 v{48+i}, v30 offset:{L_V + 128*i}')
    for stp in (8, 4, 2, 1):
        for i in range(stp):
            I(f'v_add_f32 v{48+i}, v{48+i}, v{48+i+stp}')
    I('s_cmp_eq_u32 s27, 2')
    I('s_cbranch_scc1 K0_xs')
    rnd_bf16(a, 48, 48)
    I('s_lshr_b32 s62, s29, 4')
    I('s_cmp_eq_u32 s62, 2')
    I('s_cbranch_scc0 K0_xs')
    I('v_add_f32 v48, 1.0, v48')
    rnd_bf16(a, 48, 48)
    a.label('K0_xs')
    I('buffer_store_dword v48, v30, s[40:43], s28 offen')
    a.label('K0_end')
    I('s_endpgm')
    a.label('K0_s')
    srd(a, 40, 16, 17, WS_SIZE)
    I('v_and_b32 v9, 63, v0')
    I('s_lshl_b32 s66, s54, 12')
    I('s_cmp_ge_u32 s2, 424')
    I('s_cbranch_scc1 K0_s1')
    srd(a, 48, 58, 59, 8*2048*256)
    I('s_sub_u32 s29, s2, 392')
    I('s_and_b32 s64, s29, 7')
    I('s_lshr_b32 s65, s29, 3')
    I('s_lshl_b32 s65, s65, 3')
    I('s_add_u32 s65, s65, s54')
    I('v_lshlrev_b32 v10, 4, v9')
    I('v_lshrrev_b32 v11, 4, v9')
    I('v_lshlrev_b32 v11, 6, v11')
    I('v_xor_b32 v10, v10, v11')
    I('s_lshl_b32 s62, s64, 19')
    I('s_lshl_b32 s63, s65, 12')
    I('s_add_u32 s62, s62, s63')
    I(f's_add_u32 s62, s62, {1536*256}')
    I('s_mov_b32 m0, s66')
    for j in range(4):
        I(f'buffer_load_dwordx4 v10, s[48:51], s62 offen offset:{1024*j} lds')
    I('v_lshrrev_b32 v11, 5, v9')
    I('v_bfe_u32 v12, v9, 2, 2')
    I('v_lshl_add_u32 v11, v11, 2, v12')
    I('v_lshlrev_b32 v11, 8, v11')
    I('v_bfe_u32 v13, v9, 4, 1')
    I('v_lshl_add_u32 v11, v13, 5, v11')
    I('v_and_b32 v13, 1, v9')
    I('v_lshl_add_u32 v11, v13, 4, v11')
    I('v_bfe_u32 v13, v9, 1, 1')
    I('v_lshl_add_u32 v11, v13, 3, v11')
    I('v_add_u32 v11, s66, v11')
    I('v_lshlrev_b32 v10, 4, v9')
    I('s_lshl_b32 s62, s64, 17')
    I('s_lshl_b32 s63, s65, 12')
    I('s_add_u32 s62, s62, s63')
    I(f's_add_u32 s62, s62, {WS_VP:#x}')
    I('s_waitcnt vmcnt(0)')
    for mt in range(4):
        I(f'v_xor_b32 v13, {mt}, v12')
        I('v_lshl_add_u32 v13, v13, 6, v11')
        for t in range(2):
            I(f'ds_read_b64_tr_b16 v[{32+4*mt+2*t}:{33+4*mt+2*t}], v13 offset:{8*t*256}')
    for mt in range(4):
        I(f'buffer_store_dwordx4 v[{32+4*mt}:{35+4*mt}], v10, s[40:43], s62 offen offset:{1024*mt}')
    I('s_endpgm')
    a.label('K0_s1')
    I('s_cmp_ge_u32 s2, 496')
    I('s_cbranch_scc0 K0_s1b')
    srd(a, 48, 18, 19, 512*1024)
    I('s_sub_u32 s29, s2, 496')
    I('s_lshl_b32 s29, s29, 3')
    I('s_add_u32 s29, s29, s54')
    I('v_lshrrev_b32 v10, 2, v9')
    I('v_lshlrev_b32 v10, 10, v10')
    I('v_and_b32 v11, 3, v9')
    I('v_lshl_add_u32 v10, v11, 4, v10')
    I('s_lshr_b32 s62, s29, 4')
    I('s_lshl_b32 s62, s62, 15')
    I('s_and_b32 s63, s29, 15')
    I('s_lshl_b32 s63, s63, 6')
    I('s_add_u32 s62, s62, s63')
    I('s_mov_b32 m0, s66')
    I('buffer_load_dwordx4 v10, s[48:51], s62 offen lds')
    I('s_add_u32 s62, s62, 16384')
    I('s_add_u32 s63, s66, 1024')
    I('s_mov_b32 m0, s63')
    I('buffer_load_dwordx4 v10, s[48:51], s62 offen lds')
    I('v_lshrrev_b32 v11, 4, v9')
    I('v_lshlrev_b32 v11, 3, v11')
    I('v_bfe_u32 v12, v9, 2, 2')
    I('v_add_u32 v11, v11, v12')
    I('v_lshlrev_b32 v11, 6, v11')
    I('v_and_b32 v12, 1, v9')
    I('v_lshl_add_u32 v11, v12, 5, v11')
    I('v_bfe_u32 v12, v9, 1, 1')
    I('v_lshl_add_u32 v11, v12, 4, v11')
    I('v_add_u32 v11, s66, v11')
    I('v_lshlrev_b32 v10, 4, v9')
    I('s_and_b32 s62, s29, 15')
    I('s_lshl_b32 s62, s62, 15')
    I('s_lshr_b32 s63, s29, 4')
    I('s_lshl_b32 s63, s63, 10')
    I('s_add_u32 s62, s62, s63')
    I(f's_add_u32 s62, s62, {WS_W2P:#x}')
    I('s_waitcnt vmcnt(0)')
    for T in range(2):
        for t in range(2):
            I(f'ds_read_b64_tr_b16 v[{32+4*T+2*t}:{33+4*T+2*t}], v11 offset:{4*t*64 + 8*T}')
    I('buffer_store_dwordx4 v[32:35], v10, s[40:43], s62 offen')
    I('s_add_u32 s62, s62, 16384')
    I('buffer_store_dwordx4 v[36:39], v10, s[40:43], s62 offen')
    I('s_endpgm')
    a.label('K0_s1b')
    I('s_cmp_ge_u32 s2, 456')
    I('s_cbranch_scc1 K0_s2')
    srd(a, 48, 12, 13, 512*1024)
    I('s_sub_u32 s29, s2, 424')
    I('s_lshl_b32 s29, s29, 3')
    I('s_add_u32 s29, s29, s54')
    I('v_lshrrev_b32 v10, 2, v9')
    I('v_lshlrev_b32 v10, 10, v10')
    I('v_and_b32 v11, 3, v9')
    I('v_lshl_add_u32 v10, v11, 4, v10')
    I('s_lshr_b32 s62, s29, 4')
    I('s_lshl_b32 s62, s62, 15')
    I('s_and_b32 s63, s29, 15')
    I('s_lshl_b32 s63, s63, 6')
    I('s_add_u32 s62, s62, s63')
    I('s_mov_b32 m0, s66')
    I('buffer_load_dwordx4 v10, s[48:51], s62 offen lds')
    I('s_add_u32 s62, s62, 16384')
    I('s_add_u32 s63, s66, 1024')
    I('s_mov_b32 m0, s63')
    I('buffer_load_dwordx4 v10, s[48:51], s62 offen lds')
    I('v_bfe_u32 v11, v9, 4, 1')
    I('v_lshlrev_b32 v11, 4, v11')
    I('v_lshrrev_b32 v12, 5, v9')
    I('v_lshl_add_u32 v11, v12, 3, v11')
    I('v_bfe_u32 v12, v9, 2, 2')
    I('v_add_u32 v11, v11, v12')
    I('v_lshlrev_b32 v11, 6, v11')
    I('v_and_b32 v12, 3, v9')
    I('v_lshl_add_u32 v11, v12, 4, v11')
    I('v_add_u32 v11, s66, v11')
    I('v_lshlrev_b32 v10, 4, v9')
    I('s_and_b32 s62, s29, 15')
    I('s_lshl_b32 s62, s62, 15')
    I('s_lshr_b32 s63, s29, 4')
    I('s_lshl_b32 s63, s63, 10')
    I('s_add_u32 s62, s62, s63')
    I(f's_add_u32 s62, s62, {WS_W1P:#x}')
    I('s_waitcnt vmcnt(0)')
    for T in range(2):
        for t in range(2):
            I(f'ds_read_b64_tr_b16 v[{32+4*T+2*t}:{33+4*T+2*t}], v11 offset:{4*t*64 + 8*T}')
    I('buffer_store_dwordx4 v[32:35], v10, s[40:43], s62 offen')
    I('s_add_u32 s62, s62, 16384')
    I('buffer_store_dwordx4 v[36:39], v10, s[40:43], s62 offen')
    I('s_endpgm')
    a.label('K0_s2')
    if cpf:
        I('s_sub_u32 s29, s2, 456')
        I('s_and_b32 s30, s29, 7')
        I('s_lshr_b32 s29, s29, 3')
        I('s_lshl_b32 s29, s29, 3')
        I('s_add_u32 s29, s29, s54')
        I('s_getpc_b64 s[62:63]')
        a.raw('K0_pc:')
        a.raw('    s_add_u32 s62, s62, k1_kernel-K0_pc')
        a.raw('    s_addc_u32 s63, s63, 0')
        I('s_mov_b32 s48, s62'); I('s_mov_b32 s49, s63')
        a.raw('    s_mov_b32 s50, CODE_END-k1_kernel')
        I('s_mov_b32 s51, 0x00020000')
        I('v_lshlrev_b32 v10, 5, v9')
        I('s_lshl_b32 s29, s29, 11')
        I('buffer_load_dword v14, v10, s[48:51], s29 offen')
    if not touch: I('s_endpgm')
    srd(a, 48, 60, 61, 512*8192)
    srd(a, 4, 56, 57, 8*2048*256)
    I('s_sub_u32 s29, s2, 456')
    I('s_lshl_b32 s29, s29, 3')
    I('s_add_u32 s29, s29, s54')
    I('v_lshlrev_b32 v10, 7, v9')
    I('s_cmp_ge_u32 s29, 256')
    I('s_cbranch_scc1 K0_s3')
    I('s_lshl_b32 s62, s29, 14')
    I('buffer_load_dword v14, v10, s[48:51], s62 offen')
    I('s_add_u32 s62, s62, 8192')
    I('buffer_load_dword v15, v10, s[48:51], s62 offen')
    I('s_endpgm')
    a.label('K0_s3')
    I('s_sub_u32 s29, s29, 256')
    I('s_lshr_b32 s62, s29, 3')
    I('s_lshl_b32 s62, s62, 19')
    I('s_and_b32 s63, s29, 7')
    I('s_lshl_b32 s63, s63, 14')
    I('s_add_u32 s62, s62, s63')
    I(f's_add_u32 s62, s62, {1536*256}')
    I('buffer_load_dword v16, v10, s[4:7], s62 offen')
    I('s_add_u32 s62, s62, 8192')
    I('buffer_load_dword v17, v10, s[4:7], s62 offen')
    I('s_endpgm')
    print("K0 instrs", a.ninstr, "nops", a.nnop)
    return a.text(), kernel_desc(name, 128, 96)
```

```python
from common import *

NB_G0 = 32
NB_LN = 128
B_LN = NB_G0
B_G1 = B_LN + NB_LN
B_VP = B_G1 + 136
B_W1 = B_VP + 32
NB_K0 = B_W1 + 32

def gen_k0n(name, stamps=False, STF=''):
    a = Asm()
    st = Stamper(a, stamps, 0)
    kernel_header(a, name)
    I = a.I
    log2e = f32bits(1.4426950408889634)
    I(f's_cmp_ge_u32 s2, {NB_K0}')
    I('s_cbranch_scc1 K0_end')
    I(f's_load_dwordx2 s[4:5], s[0:1], {KA_X}')
    I(f's_load_dwordx4 s[8:11], s[0:1], {KA_C}')
    I(f's_load_dwordx2 s[12:13], s[0:1], {KA_W1}')
    I(f's_load_dwordx2 s[14:15], s[0:1], {KA_W3}')
    I(f's_load_dwordx2 s[16:17], s[0:1], {KA_WS}')
    I(f's_load_dwordx2 s[58:59], s[0:1], {KA_V}')
    I('v_lshrrev_b32 v3, 6, v0')
    I('v_and_b32 v9, 63, v0')
    I('v_readfirstlane_b32 s54, v3')
    I(f's_cmp_ge_u32 s2, {B_VP}')
    I('s_cbranch_scc1 K0_s')
    I(f's_cmp_lt_u32 s2, {B_LN}')
    I('s_cbranch_scc1 K0_g')
    I(f's_cmp_ge_u32 s2, {B_G1}')
    I('s_cbranch_scc1 K0_g')
    I('s_cmp_ge_u32 s54, 4')
    I('s_cbranch_scc1 K0_end')
    I(f's_sub_u32 s29, s2, {B_LN}')
    I('v_lshrrev_b32 v7, 3, v9')
    I('v_and_b32 v4, 7, v9')
    I('v_lshlrev_b32 v5, 10, v7')
    I('v_lshl_add_u32 v5, v4, 4, v5')
    I('s_lshr_b32 s30, s54, 1')
    I('s_and_b32 s31, s54, 1')
    I('s_lshl_b32 s44, s29, 14')
    I('s_lshl_b32 s45, s30, 13')
    I('s_add_u32 s44, s44, s45')
    I('s_lshl_b32 s45, s31, 9')
    I('s_add_u32 s46, s44, s45')
    I('s_xor_b32 s45, s45, 512')
    I('s_add_u32 s47, s44, s45')
    I('s_waitcnt lgkmcnt(0)')
    st.first()
    srd(a, 32, 4, 5, 2048*1024)
    for i in range(4):
        I(f'buffer_load_dwordx4 v[{32+4*i}:{35+4*i}], v5, s[32:35], s46 offen offset:{128*i}')
    for i in range(4):
        I(f'buffer_load_dwordx4 v[{48+4*i}:{51+4*i}], v5, s[32:35], s47 offen offset:{128*i}')
    srd(a, 40, 16, 17, WS_SIZE)
    I('v_lshrrev_b32 v10, 1, v4')
    I('v_lshlrev_b32 v10, 10, v10')
    I('v_and_b32 v11, 1, v4')
    I('v_lshl_add_u32 v10, v11, 9, v10')
    I('v_lshl_add_u32 v10, v7, 4, v10')
    I('s_and_b32 s44, s29, 1')
    I('s_lshl_b32 s44, s44, 8')
    I('s_lshl_b32 s45, s30, 7')
    I('s_add_u32 s44, s44, s45')
    I('s_lshr_b32 s45, s29, 1')
    I('s_lshl_b32 s45, s45, 15')
    I('s_add_u32 s44, s44, s45')
    I('s_lshl_b32 s45, s31, 14')
    I('s_add_u32 s44, s44, s45')
    I('s_mov_b32 s47, 0x3f803f80')
    I('s_mov_b32 s46, 0xffff0000')
    I('v_mov_b32 v12, 0x3f80')
    I('v_mov_b32 v13, 0x3f800000')
    I('v_mov_b32 v30, 0'); I('v_mov_b32 v31, 0'); I('v_mov_b32 v28, 0'); I('v_mov_b32 v29, 0')
    st()
    for i in range(0, 32, 2):
        I(f'v_dot2_f32_bf16 v30, v{32+i}, s47, v30')
        I(f'v_dot2_f32_bf16 v31, v{32+i}, v{32+i}, v31')
        I(f'v_dot2_f32_bf16 v28, v{33+i}, s47, v28')
        I(f'v_dot2_f32_bf16 v29, v{33+i}, v{33+i}, v29')
    I('s_nop 2')
    I('v_add_f32 v30, v30, v28')
    I('v_add_f32 v31, v31, v29')
    I('v_add_f32_dpp v28, v30, v30 quad_perm:[1,0,3,2] row_mask:0xf bank_mask:0xf')
    I('v_add_f32_dpp v29, v31, v31 quad_perm:[1,0,3,2] row_mask:0xf bank_mask:0xf')
    I('v_add_f32_dpp v30, v28, v28 quad_perm:[2,3,0,1] row_mask:0xf bank_mask:0xf')
    I('v_add_f32_dpp v31, v29, v29 quad_perm:[2,3,0,1] row_mask:0xf bank_mask:0xf')
    I('v_add_f32_dpp v28, v30, v30 row_half_mirror row_mask:0xf bank_mask:0xf')
    I('v_add_f32_dpp v29, v31, v31 row_half_mirror row_mask:0xf bank_mask:0xf')
    I(f'v_mul_f32 v30, {f32bits(1.0/512):#x}, v28')
    I(f'v_mul_f32 v31, {f32bits(1.0/512):#x}, v29')
    I('v_fma_f32 v31, -v30, v30, v31')
    I('v_max_f32 v31, 0, v31')
    rnd_bf16(a, 30, 30)
    rnd_bf16(a, 31, 31)
    I(f'v_add_f32 v31, {f32bits(1e-5):#x}, v31')
    rnd_bf16(a, 31, 31)
    I('v_sqrt_f32 v31, v31')
    I('v_sub_f32 v30, 0, v30')
    rnd_bf16(a, 31, 31)
    I('v_rcp_f32 v31, v31')
    st()
    for i in range(4):
        for d in range(4):
            r = 32 + 4*i + d
            I(f'v_dot2_f32_bf16 v{64+2*d}, v{r}, v12, v30')
            I(f'v_dot2_f32_bf16 v{65+2*d}, v{r}, v13, v30')
        I('s_nop 1')
        for e in range(8):
            rnd_bf16(a, 64+e, 64+e)
        for e in range(8):
            I(f'v_mul_f32 v{64+e}, v{64+e}, v31')
        for d in range(4):
            I(f'v_cvt_pk_bf16_f32 v{80+4*i+d}, v{64+2*d}, v{65+2*d}')
        I(f'buffer_store_dwordx4 v[{80+4*i}:{83+4*i}], v10, s[40:43], s44 offen')
        if i < 3: I('s_add_u32 s44, s44, 4096')
    st.flush(40, 54, 100, 9)
    I('s_endpgm')
    a.label('K0_g')
    a.vm_q = []; a.lds_q = []
    I(f's_sub_u32 s29, s2, {B_G1 - 32}')
    I(f's_cmp_lt_u32 s2, {B_LN}')
    I('s_cselect_b32 s29, s2, s29')
    I('s_and_b32 s31, s29, 3')
    I('s_lshr_b32 s29, s29, 2')
    I('v_and_b32 v1, 15, v0')
    I('v_lshrrev_b32 v2, 4, v0')
    I('v_lshlrev_b32 v6, 3, v2')
    I('s_lshl_b32 s26, s31, 8')
    I(f's_mul_i32 s28, s31, {GP_STRIDE}')
    I('s_lshl_b32 s30, s29, 9')
    I('s_add_u32 s28, s28, s30')
    I(f's_add_u32 s28, s28, {WS_GP:#x}')
    I('s_waitcnt lgkmcnt(0)')
    st.n = 0
    st.first()
    srd(a, 36, 8, 9, 1024)
    I('buffer_load_dwordx2 v[10:11], v6, s[36:39], s26 offen')
    I('s_mov_b32 s20, s10'); I('s_mov_b32 s21, s11'); I(f's_mov_b32 s22, {512*6144}')
    I('s_movk_i32 s24, 6144')
    I('s_mov_b32 s25, s29')
    I('s_cmp_ge_u32 s29, 24')
    I('s_cselect_b32 s20, s12, s20'); I('s_cselect_b32 s21, s13, s21'); I(f's_cselect_b32 s22, {512*1024}, s22')
    I('s_cselect_b32 s24, 1024, s24'); I('s_cselect_b32 s30, 24, 0')
    I('s_cmp_ge_u32 s29, 28')
    I('s_cselect_b32 s20, s14, s20'); I('s_cselect_b32 s21, s15, s21'); I(f's_cselect_b32 s22, {512*3584}, s22')
    I('s_cselect_b32 s24, 3584, s24'); I('s_cselect_b32 s30, 28, s30')
    I('s_sub_u32 s25, s25, s30')
    I('s_lshl_b32 s25, s25, 8')
    I('s_lshl_b32 s30, s31, 7')
    I('s_mul_i32 s30, s30, s24')
    I('s_add_u32 s25, s25, s30')
    I('s_mov_b32 s23, 0x00020000')
    I('s_lshl_b32 s30, s24, 2')
    I('v_mul_lo_u32 v3, v2, s30')
    I('v_lshl_add_u32 v3, v1, 4, v3')
    for i in range(4):
        I(f'buffer_load_dwordx4 v[{32+4*i}:{35+4*i}], v3, s[20:23], s25 offen')
        if i < 3: I('s_add_u32 s25, s25, s24')
    srd(a, 40, 16, 17, WS_SIZE)
    I(f's_mov_b32 s45, {log2e:#x}')
    I('s_mov_b32 s46, 0xffff0000')
    I('s_mov_b32 s62, 0x05040100')
    I('s_mov_b32 s63, 0x07060302')
    I('s_cmp_ge_u32 s29, 24')
    I('s_cselect_b64 s[52:53], -1, 0')
    I('v_mov_b32 v24, 0x3f803f80')
    for e in range(8): I(f'v_mov_b32 v{16+e}, 0')
    I('v_lshrrev_b32 v28, 4, v9')
    I('v_lshlrev_b32 v28, 3, v28')
    I('v_lshl_add_u32 v28, v1, 5, v28')
    I('s_lshl_b32 s30, s54, 9')
    I('v_add_u32 v27, s30, v28')
    I('v_lshlrev_b32 v26, 2, v0')
    st()
    I('v_lshlrev_b32 v12, 16, v10'); I('v_and_b32 v13, s46, v10')
    I('v_lshlrev_b32 v14, 16, v11'); I('v_and_b32 v15, s46, v11')
    for e in range(4): I(f'v_mul_f32 v{4+e}, s45, v{12+e}')
    for e in range(4): I(f'v_exp_f32 v{4+e}, -v{4+e}')
    for e in range(4): I(f'v_add_f32 v{4+e}, 1.0, v{4+e}')
    for e in range(4): I(f'v_rcp_f32 v{4+e}, v{4+e}')
    for e in range(4): I(f'v_mul_f32 v{12+e}, v{12+e}, v{4+e}')
    I('v_cvt_pk_bf16_f32 v10, v12, v13')
    I('v_cvt_pk_bf16_f32 v11, v14, v15')
    I('v_cndmask_b32 v10, v10, v24, s[52:53]')
    I('v_cndmask_b32 v11, v11, v24, s[52:53]')
    for p in range(2):
        for d in range(4):
            r0 = 32 + 8*p + d; r1 = r0 + 4
            I(f'v_perm_b32 v{4+(d&1)*2}, v{r1}, v{r0}, s62')
            I(f'v_perm_b32 v{5+(d&1)*2}, v{r1}, v{r0}, s63')
            I(f'v_dot2_f32_bf16 v{16+2*d}, v{4+(d&1)*2}, v{10+p}, v{16+2*d}')
            I(f'v_dot2_f32_bf16 v{17+2*d}, v{5+(d&1)*2}, v{10+p}, v{17+2*d}')
    for e in range(4):
        I(f'v_permlane32_swap_b32 v{16+e}, v{20+e}')
    for e in range(4):
        I(f'v_add_f32 v{16+e}, v{16+e}, v{20+e}')
    for e in range(2):
        I(f'v_permlane16_swap_b32 v{16+e}, v{18+e}')
    for e in range(2):
        I(f'v_add_f32 v{16+e}, v{16+e}, v{18+e}')
    I('ds_write_b64 v27, v[16:17]')
    I('s_waitcnt lgkmcnt(0)')
    I('s_barrier')
    st()
    if not stamps:
        I('s_cmp_ge_u32 s54, 2')
        I('s_cbranch_scc1 K0_end')
    if stamps: I('v_and_b32 v26, 511, v26')
    for i in range(8):
        I(f'ds_read_b32 v{48+i}, v26 offset:{512*i}')
    for stp in (4, 2, 1):
        for i in range(stp):
            I(f'v_add_f32 v{48+i}, v{48+i}, v{48+i+stp}')
    I('buffer_store_dword v48, v26, s[40:43], s28 offen' + STF)
    st.flush(40, 54, 100, 9)
    a.label('K0_end')
    I('s_endpgm')
    a.label('K0_s')
    I('s_lshl_b32 s66, s54, 12')
    I(f's_cmp_ge_u32 s2, {B_W1}')
    I('s_cbranch_scc1 K0_s1')
    I(f's_sub_u32 s29, s2, {B_VP}')
    I('s_and_b32 s64, s29, 7')
    I('s_lshr_b32 s65, s29, 3')
    I('s_lshl_b32 s65, s65, 3')
    I('s_add_u32 s65, s65, s54')
    I('v_lshlrev_b32 v10, 4, v9')
    I('v_lshrrev_b32 v11, 4, v9')
    I('v_lshlrev_b32 v11, 6, v11')
    I('v_xor_b32 v10, v10, v11')
    I('s_lshl_b32 s62, s64, 19')
    I('s_lshl_b32 s63, s65, 12')
    I('s_add_u32 s62, s62, s63')
    I(f's_add_u32 s62, s62, {1536*256}')
    I('s_mov_b32 m0, s66')
    I('s_mov_b32 s55, s66')
    I('s_waitcnt lgkmcnt(0)')
    st.n = 0
    st.first()
    I('s_mov_b32 s66, s55')
    srd(a, 48, 58, 59, 8*2048*256)
    for j in range(4):
        I(f'buffer_load_dwordx4 v10, s[48:51], s62 offen offset:{1024*j} lds')
    srd(a, 40, 16, 17, WS_SIZE)
    I('v_lshrrev_b32 v11, 5, v9')
    I('v_bfe_u32 v12, v9, 2, 2')
    I('v_lshl_add_u32 v11, v11, 2, v12')
    I('v_lshlrev_b32 v11, 8, v11')
    I('v_bfe_u32 v13, v9, 4, 1')
    I('v_lshl_add_u32 v11, v13, 5, v11')
    I('v_and_b32 v13, 1, v9')
    I('v_lshl_add_u32 v11, v13, 4, v11')
    I('v_bfe_u32 v13, v9, 1, 1')
    I('v_lshl_add_u32 v11, v13, 3, v11')
    I('v_add_u32 v11, s66, v11')
    I('v_lshlrev_b32 v10, 4, v9')
    I('s_lshl_b32 s62, s64, 17')
    I('s_lshl_b32 s63, s65, 12')
    I('s_add_u32 s62, s62, s63')
    I(f's_add_u32 s62, s62, {WS_VP:#x}')
    I('s_waitcnt vmcnt(0)')
    for mt in range(4):
        I(f'v_xor_b32 v13, {mt}, v12')
        I('v_lshl_add_u32 v13, v13, 6, v11')
        for t in range(2):
            I(f'ds_read_b64_tr_b16 v[{32+4*mt+2*t}:{33+4*mt+2*t}], v13 offset:{8*t*256}')
    for mt in range(4):
        I(f'buffer_store_dwordx4 v[{32+4*mt}:{35+4*mt}], v10, s[40:43], s62 offen offset:{1024*mt}')
    st.flush(40, 54, 100, 9)
    I('s_endpgm')
    a.label('K0_s1')
    I(f's_sub_u32 s29, s2, {B_W1}')
    I('s_lshl_b32 s29, s29, 3')
    I('s_add_u32 s29, s29, s54')
    I('v_lshrrev_b32 v10, 2, v9')
    I('v_lshlrev_b32 v10, 10, v10')
    I('v_and_b32 v11, 3, v9')
    I('v_lshl_add_u32 v10, v11, 4, v10')
    I('s_lshr_b32 s62, s29, 4')
    I('s_lshl_b32 s62, s62, 15')
    I('s_and_b32 s63, s29, 15')
    I('s_lshl_b32 s63, s63, 6')
    I('s_add_u32 s62, s62, s63')
    I('s_mov_b32 m0, s66')
    I('s_mov_b32 s55, s66')
    I('s_waitcnt lgkmcnt(0)')
    st.n = 0
    st.first()
    I('s_mov_b32 s66, s55')
    srd(a, 48, 12, 13, 512*1024)
    I('buffer_load_dwordx4 v10, s[48:51], s62 offen lds')
    I('s_add_u32 s62, s62, 16384')
    I('s_add_u32 s63, s66, 1024')
    I('s_mov_b32 m0, s63')
    I('buffer_load_dwordx4 v10, s[48:51], s62 offen lds')
    srd(a, 40, 16, 17, WS_SIZE)
    I('v_bfe_u32 v11, v9, 4, 1')
    I('v_lshlrev_b32 v11, 4, v11')
    I('v_lshrrev_b32 v12, 5, v9')
    I('v_lshl_add_u32 v11, v12, 3, v11')
    I('v_bfe_u32 v12, v9, 2, 2')
    I('v_add_u32 v11, v11, v12')
    I('v_lshlrev_b32 v11, 6, v11')
    I('v_and_b32 v12, 3, v9')
    I('v_lshl_add_u32 v11, v12, 4, v11')
    I('v_add_u32 v11, s66, v11')
    I('v_lshlrev_b32 v10, 4, v9')
    I('s_and_b32 s62, s29, 15')
    I('s_lshl_b32 s62, s62, 15')
    I('s_lshr_b32 s63, s29, 4')
    I('s_lshl_b32 s63, s63, 10')
    I('s_add_u32 s62, s62, s63')
    I(f's_add_u32 s62, s62, {WS_W1P:#x}')
    I('s_waitcnt vmcnt(0)')
    for T in range(2):
        for t in range(2):
            I(f'ds_read_b64_tr_b16 v[{32+4*T+2*t}:{33+4*T+2*t}], v11 offset:{4*t*64 + 8*T}')
    I('buffer_store_dwordx4 v[32:35], v10, s[40:43], s62 offen')
    I('s_add_u32 s62, s62, 16384')
    I('buffer_store_dwordx4 v[36:39], v10, s[40:43], s62 offen')
    st.flush(40, 54, 100, 9)
    I('s_endpgm')
    print("K0 instrs", a.ninstr, "nops", a.nnop)
    return a.text(), kernel_desc(name, 128, 96)
```

```python
from common import *

SLOT = 32768
EREG = 131072
def slot_of(c): return (c % 4) * SLOT

def gen_k1(name, stamps=False, touch=True, emu=True, X=()):
    a = Asm()
    offs = [x for x in X if isinstance(x, (int, float))]
    OFFS = f'{f32bits(-float(offs[0])):#x}' if offs else '0'
    st = Stamper(a, stamps, 1)
    kernel_header(a, name)
    I = a.I
    vX = [1,2,3,4]
    vWA = [5,6,7,8]
    vKA = [9,10,11,12,13,14,15,16]
    vT0, vT1, vT2, vT3 = 17,18,19,20
    vMX = 21; vNEGM = 22; vL = [23,24,25,26]
    vLANE16 = 27
    vKD = [28,29,30,31]
    BIG = 32
    ACC = 160
    AF = 224
    QF = ACC
    SACC = ACC + 32
    vHA = vT0
    I('s_cmp_ge_u32 s2, 256')
    I('s_cbranch_scc1 K1_end')
    I(f's_load_dwordx4 s[4:7], s[0:1], {KA_K}')
    I(f's_load_dwordx4 s[28:31], s[0:1], {KA_WQ}')
    I(f's_load_dwordx2 s[32:33], s[0:1], {KA_WS}')
    I(f's_load_dwordx8 s[56:63], s[0:1], {KA_W1}')
    I('v_and_b32 v17, 63, v0')
    I('v_lshrrev_b32 v18, 6, v0')
    I('s_nop 0')
    I('v_readfirstlane_b32 s34, v18')
    I('s_and_b32 s35, s2, 7')
    I('s_lshr_b32 s36, s2, 3')
    I(f'v_lshlrev_b32 v{vLANE16}, 4, v17')
    for j in range(4):
        I(f'v_xor_b32 v{vX[j]}, {j<<6}, v{vLANE16}')
    I('s_waitcnt lgkmcnt(0)')
    st.first()
    srd(a, 8, 28, 29, 512*8192)
    srd(a, 12, 4, 5, 8*2048*256)
    srd(a, 16, 6, 7, 8*2048*256)
    srd(a, 20, 30, 31, 4096*1024)
    srd(a, 24, 32, 33, WS_SIZE)
    I('s_and_b32 s37, s34, 3')
    I('s_lshr_b32 s38, s34, 2')
    I('s_lshl_b32 s39, s34, 12')
    I('s_lshl_b32 s44, s35, 10')
    I('s_lshl_b32 s45, s34, 15')
    I('s_add_u32 s44, s44, s45')
    I('s_lshl_b32 s45, s35, 19')
    I(f's_add_u32 s45, s45, {1536*256}')
    I('s_add_u32 s45, s45, s39')
    I('s_lshl_b32 s46, s35, 19')
    I('s_add_u32 s46, s46, s39')
    I('s_lshl_b32 s43, s35, 17')
    I('s_add_u32 s43, s43, s39')
    I(f's_add_u32 s43, s43, {WS_VP:#x}')
    I('s_lshl_b32 s40, s36, 16')
    I('s_lshl_b32 s41, s38, 15')
    I('s_add_u32 s40, s40, s41')
    I('s_and_b32 s41, s34, 3')
    I('s_lshl_b32 s41, s41, 9')
    I('s_add_u32 s40, s40, s41')
    I('s_lshl_b32 s41, s34, 9')
    I(f's_add_u32 s41, s41, {EREG}')

    def dma_chunk(c):
        L = []
        L.append(f's_add_u32 s47, s39, {slot_of(c)}')
        L.append('s_mov_b32 m0, s47')
        if c < 16:
            for j in range(4):
                L.append(f's_add_u32 s48, s44, {c*32*8192 + j*7168}')
                L.append(f'buffer_load_dwordx4 v{vX[j]}, s[8:11], s48 offen offset:{1024*j} lds')
            L.append(f's_add_u32 s47, s41, {(c%4)*4096}')
            L.append('s_mov_b32 m0, s47')
            L.append(f's_add_u32 s48, s40, {c*2048}')
            L.append(f's_mov_b32 exec_hi, 0\nbuffer_load_dwordx4 v{vLANE16}, s[24:27], s48 offen lds\ns_mov_b32 exec_hi, -1')
        elif c < 24 and c % 2 == 0:
            L.append(f's_add_u32 s48, s45, {((c-16)//2)*32768}')
            for j in range(4):
                L.append(f'buffer_load_dwordx4 v{vKD[j]}, s[12:15], s48 offen offset:{1024*j} lds')
        elif c < 24:
            L.append(f's_add_u32 s48, s43, {((c-17)//2)*32768}')
            for j in range(4):
                L.append(f'buffer_load_dwordx4 v{vLANE16}, s[24:27], s48 offen offset:{1024*j} lds')
        else:
            L.append(f's_add_u32 s48, s46, {(c-24)*32768}')
            for j in range(4):
                L.append(f'buffer_load_dwordx4 v{vX[j]}, s[20:23], s48 offen offset:{1024*j} lds')
        return L
    TOUCH_AT = {19: 'wo', 22: 'wb'}
    def ndma(c): return (5 if c < 16 else 4) + (1 if c in TOUCH_AT else 0)
    def touch_ops(kind):
        L = []
        if kind == 'wo':
            L.append(f'v_lshlrev_b32 v{vT2}, 1, v{vLANE16}')
            L.append('s_lshl_b32 s48, s35, 19')
            L.append('s_lshl_b32 s49, s36, 14')
            L.append('s_add_u32 s48, s48, s49')
            L.append('s_lshl_b32 s49, s34, 11')
            L.append('s_add_u32 s48, s48, s49')
            L.append(f'buffer_load_dword v{vT2}, v{vT2}, s[20:23], s48 offen')
        else:
            L.append(f'v_lshlrev_b32 v{vT2}, 3, v{vLANE16}')
            L.append('s_cmp_eq_u32 s37, 1\ns_cselect_b32 s16, s58, s56\ns_cselect_b32 s17, s59, s57')
            L.append('s_cmp_eq_u32 s37, 2\ns_cselect_b32 s16, s60, s16\ns_cselect_b32 s17, s61, s17')
            L.append('s_cmp_eq_u32 s37, 3\ns_cselect_b32 s16, s62, s16\ns_cselect_b32 s17, s63, s17')
            L.append(f's_mov_b32 s18, {512*1024}\ns_movk_i32 s48, 2048\ns_cmp_ge_u32 s37, 2\ns_cselect_b32 s18, {1792*1024}, s18\ns_cselect_b32 s48, 7168, s48')
            L.append('s_mul_i32 s48, s48, s2')
            L.append(f'buffer_load_dword v{vT2}, v{vT2}, s[16:19], s48 offen')
        return L
    for s in dma_chunk(0): I(s)
    ntouch = 0
    def start_touch():
        I('v_bfe_u32 v18, v17, 3, 1')
        I('v_and_b32 v19, 7, v17')
        I('v_lshlrev_b32 v18, 13, v18')
        I('v_lshl_add_u32 v18, v19, 7, v18')
        I('s_lshl_b32 s48, s36, 17')
        I('s_lshl_b32 s49, s34, 14')
        I('s_add_u32 s48, s48, s49')
        I('s_lshl_b32 s49, s35, 10')
        I('s_add_u32 s48, s48, s49')
        I(f'buffer_load_dword v{BIG+64}, v18, s[8:11], s48 offen')
        I('v_and_b32 v19, 3, v17')
        I('v_lshlrev_b32 v19, 7, v19')
        I('s_lshl_b32 s48, s35, 19')
        I('s_lshl_b32 s49, s36, 12')
        I('s_add_u32 s48, s48, s49')
        I('s_lshl_b32 s49, s34, 9')
        I('s_add_u32 s48, s48, s49')
        I(f's_add_u32 s48, s48, {1536*256}')
        I(f'buffer_load_dword v{BIG+65}, v19, s[12:15], s48 offen')
        a.vm_q = []
    if touch == 2:
        start_touch(); ntouch = 2
    for c in (1, 2):
        for s in dma_chunk(c): I(s)
    I('v_lshrrev_b32 v18, 5, v17')
    I('v_bfe_u32 v19, v17, 2, 2')
    I('v_lshl_add_u32 v20, v18, 3, v19')
    I('v_lshlrev_b32 v20, 10, v20')
    I('v_bfe_u32 v21, v17, 4, 1')
    I('v_lshl_add_u32 v20, v21, 5, v20')
    I('v_and_b32 v21, 1, v17')
    I('v_lshl_add_u32 v20, v21, 4, v20')
    I('v_bfe_u32 v21, v17, 1, 1')
    I('v_lshl_add_u32 v20, v21, 3, v20')
    I('s_lshl_b32 s48, s37, 8')
    I('v_add_u32 v22, s48, v20')
    for mt in range(4):
        I(f'v_xor_b32 v21, {mt}, v19')
        I(f'v_lshl_add_u32 v{vWA[mt]}, v21, 6, v22')
    I('v_and_b32 v21, 31, v17')
    I('v_and_b32 v22, 15, v17')
    I('v_xor_b32 v22, v22, v18')
    I('v_lshlrev_b32 v21, 8, v21')
    I(f'v_add_u32 v21, {slot_of(16)}, v21')
    for s in range(8):
        I(f'v_xor_b32 v23, {2*s}, v22')
        I(f'v_lshl_add_u32 v{vKA[s]}, v23, 4, v21')
    I('v_lshrrev_b32 v21, 4, v17')
    I('v_and_b32 v22, 15, v17')
    I('v_xor_b32 v22, v22, v21')
    I('v_lshlrev_b32 v21, 8, v21')
    for j in range(4):
        I(f'v_xor_b32 v23, {4*j}, v22')
        I(f'v_lshl_add_u32 v{vKD[j]}, v23, 4, v21')
    I('s_lshl_b32 s48, s38, 11')
    I(f's_add_u32 s48, s48, {EREG}')
    I(f'v_add_u32 v{vHA}, s48, v{vLANE16}')
    I(f's_waitcnt vmcnt({5 + 5 + ntouch})')
    I('s_barrier')
    st()

    def w_reads(buf, ks):
        L = []
        for mt in range(4):
            for t in range(2):
                d = AF + 16*buf + 4*mt + 2*t
                L.append(f'ds_read_b64_tr_b16 v[{d}:{d+1}], v{vWA[mt]} offset:{(16*ks + 4*t)*1024}')
        return L
    def h_read(kk):
        c = kk // 2; ks = kk % 2
        d = BIG + 4*(kk % 4)
        return [f'ds_read_b128 v[{d}:{d+3}], v{vHA} offset:{(c%4)*4096 + ks*1024}']
    def w_advance(c_from, c_to):
        delta = slot_of(c_to) - slot_of(c_from)
        if delta >= 0: return [f'v_add_u32 v{vWA[mt]}, {delta}, v{vWA[mt]}' for mt in range(4)]
        return [f'v_subrev_u32 v{vWA[mt]}, {-delta}, v{vWA[mt]}' for mt in range(4)]
    issued = [2]
    def top_sync(c, issue_list):
        allowed = sum(ndma(x) for x in range(c+2, issued[0]+1))
        if not ('nobar' in X and 17 <= c <= 23):
            I(f's_waitcnt vmcnt({allowed})')
            I('s_barrier')
        L = []
        for x in issue_list:
            L += dma_chunk(x); issued[0] = max(issued[0], x)
            if x in TOUCH_AT: L += touch_ops(TOUCH_AT[x])
        return L

    def gemm_phase(c0, is_p2, issue_map, side=None):
        for i in range(16):
            c = c0 + i
            extra = top_sync(c, issue_map.get(c, [])) if (is_p2 or i > 0) else []
            cut = 0
            nl = [j for j, s in enumerate(extra) if 'buffer_load' in s]
            if nl: cut = nl[len(nl)//2 - 1] + 1 if len(nl) >= 2 else len(extra)
            ex = [extra[:cut], extra[cut:]]
            for ks in range(2):
                kk = 2*i + ks
                buf = kk & 1
                if ks == 0:
                    pre = w_reads(buf ^ 1, 1)
                    if is_p2: pre = h_read(kk+1) + pre
                elif i < 15:
                    pre = w_advance(c, c+1) + w_reads(buf ^ 1, 0)
                    if is_p2: pre = h_read(kk+1) + pre
                else:
                    pre = []
                bfr = BIG + 4*(kk % 4) if is_p2 else BIG + 4*kk
                mf = []
                for mt in range(4):
                    d = ACC + 16*mt
                    cc = '0' if kk == 0 else f'v[{d}:{d+15}]'
                    mf.append(f'v_mfma_f32_32x32x16_bf16 v[{d}:{d+15}], v[{AF+16*buf+4*mt}:{AF+16*buf+4*mt+3}], v[{bfr}:{bfr+3}], {cc}')
                sd = side.get(kk, []) if side else []
                for s in merge(mf, pre, ex[ks], sd): I(s)

    QF2 = 32
    SB_ = [64, 96]
    VF = 128
    KF = AF
    vVA = vT3
    vMR = vMX
    def k_reads(t):
        L = []
        c = 16 + 2*(t//4)
        for s in range(8):
            if t % 4 == 0 and t > 0:
                delta = slot_of(c) - slot_of(c-2)
                if delta >= 0: L.append(f'v_add_u32 v{vKA[s]}, {delta}, v{vKA[s]}')
                else: L.append(f'v_subrev_u32 v{vKA[s]}, {-delta}, v{vKA[s]}')
            L.append(f'ds_read_b128 v[{KF+4*s}:{KF+4*s+3}], v{vKA[s]} offset:{(t%4)*8192}')
        return L
    def v_reads(kap):
        L = []
        c = 17 + 2*(kap//8); ks = kap % 8; buf = kap & 1
        if ks == 0:
            L.append(f'v_add_u32 v{vVA}, {slot_of(c)}, v{vLANE16}')
        for mt in range(4):
            d = VF + 16*buf + 4*mt
            L.append(f'ds_read_b128 v[{d}:{d+3}], v{vVA} offset:{ks*4096 + mt*1024}')
        return L
    def tr_addr_setup(rowshift, rowmul_log, base_expr_sgpr_setup):
        L = []
        L.append(f'v_lshrrev_b32 v{vT0}, 4, v{vLANE16}')
        L.append(f'v_lshrrev_b32 v{vT1}, 5, v{vT0}')
        L.append(f'v_bfe_u32 v{vT2}, v{vT0}, 2, 2')
        L.append(f'v_lshl_add_u32 v{vT1}, v{vT1}, {rowshift}, v{vT2}')
        L.append(f'v_lshlrev_b32 v{vT1}, {rowmul_log}, v{vT1}')
        L.append(f'v_bfe_u32 v{vWA[3]}, v{vT0}, 4, 1')
        L.append(f'v_lshl_add_u32 v{vT1}, v{vWA[3]}, 5, v{vT1}')
        L.append(f'v_and_b32 v{vWA[3]}, 1, v{vT0}')
        L.append(f'v_lshl_add_u32 v{vT1}, v{vWA[3]}, 4, v{vT1}')
        L.append(f'v_bfe_u32 v{vWA[3]}, v{vT0}, 1, 1')
        L.append(f'v_lshl_add_u32 v{vT1}, v{vWA[3]}, 3, v{vT1}')
        L += base_expr_sgpr_setup
        L.append(f'v_add_u32 v{vT1}, s53, v{vT1}')
        for mt in range(4):
            L.append(f'v_xor_b32 v{vT0}, {mt}, v{vT2}')
            L.append(f'v_lshl_add_u32 v{vWA[mt]}, v{vT0}, 6, v{vT1}')
        return L

    for s in h_read(0) + w_reads(0, 0): I(s)
    issue_map = {c: [c+3] for c in range(0, 37)}
    issue_map[17] = []
    for c in range(18, 24): issue_map[c] = [c+2]
    issue_map['p7'] = [26]
    issue_map[24] = []
    issue_map[25] = [27, 28]
    gemm_phase(0, True, issue_map)
    st()
    for s in k_reads(0): I(s)
    for j in range(32):
        I(f'v_cvt_pk_bf16_f32 v{QF2+j}, v{ACC+2*j}, v{ACC+2*j+1}')
    CEXP = 1.4426950408889634 * 128 ** -0.5
    I(f's_mov_b32 s51, {f32bits(CEXP):#x}')
    I(f's_mov_b32 s50, {f32bits(48.0 / CEXP):#x}')
    for l in vL: I(f'v_mov_b32 v{l}, 0')
    def s_mfmas(u):
        seq = []
        for tt in range(2):
            t = 2*u + tt
            b = SB_[u & 1] + 16*tt
            reads = k_reads(t+1) if t < 15 else []
            ri = 0
            for s in range(8):
                cc = '0' if s == 0 else f'v[{b}:{b+15}]'
                grp = [f'v_mfma_f32_32x32x16_bf16 v[{b}:{b+15}], v[{KF+4*s}:{KF+4*s+3}], v[{QF2+4*s}:{QF2+4*s+3}], {cc}']
                while ri < len(reads):
                    grp.append(reads[ri]); ri += 1
                    if reads[ri-1].startswith('ds_read'): break
                seq.append('\n'.join(grp))
        return seq
    def pv_mfmas(u, j):
        kap = 4*u + j; buf = kap & 1
        p = SB_[u & 1] + 8*j
        L = []
        for mt in range(4):
            d = ACC + 16*mt
            cc = '0' if kap == 0 else f'v[{d}:{d+15}]'
            L.append(f'v_mfma_f32_32x32x16_bf16 v[{d}:{d+15}], v[{VF+16*buf+4*mt}:{VF+16*buf+4*mt+3}], v[{p}:{p+3}], {cc}')
        return L
    def max_ops(u, tt):
        b = SB_[u & 1] + 16*tt
        L = []
        if 'nomax' in X and u > 0: return L
        for i in range(8):
            if tt == 0 and i == 0:
                L.append(f'v_max_f32 v{vT0}, v{b}, v{b+1}')
            else:
                L.append(f'v_max3_f32 v{vT0}, v{b+2*i}, v{b+2*i+1}, v{vT0}')
        return L
    def p_ops(u, j):
        b = SB_[u & 1] + 8*j
        L = []
        for e in range(8):
            if 'nofma' in X: continue
            L.append(f'v_fma_f32 v{b+e}, v{b+e}, s51, v{vNEGM}')
        for e in range(8):
            L.append(f'v_exp_f32 v{b+e}, v{b+e}')
        for d in range(4):
            L.append(f'v_add_f32 v{vL[d]}, v{vL[d]}, v{b+2*d}')
            L.append(f'v_add_f32 v{vL[d]}, v{vL[d]}, v{b+2*d+1}')
            L.append(f'v_cvt_pk_bf16_f32 v{b+d}, v{b+2*d}, v{b+2*d+1}')
        return L
    rare = []
    extra = top_sync(16, issue_map[16])
    sm = s_mfmas(0)
    for s in merge(sm[:10], extra): I(s)
    for s in merge(sm[10:], max_ops(0, 0) + v_reads(0)): I(s)
    for s in max_ops(0, 1): I(s)
    for u in range(8):
        c = 17 + u
        if not ('nomax' in X and u > 0):
            I(f'v_mov_b32 v{vT1}, v{vT0}')
            I(f'v_permlane32_swap_b32 v{vT0}, v{vT1}')
            I(f'v_max_f32 v{vT0}, v{vT0}, v{vT1}')
        if 'nomax' in X and u > 0:
            pass
        elif u == 0:
            I(f'v_mov_b32 v{vMR}, v{vT0}')
            I(f'v_mul_f32 v{vNEGM}, s51, v{vMR}')
            I(f'v_sub_f32 v{vNEGM}, {OFFS}, v{vNEGM}')
        else:
            I(f'v_add_f32 v{vT1}, s50, v{vMR}')
            I(f'v_cmp_gt_f32 vcc, v{vT0}, v{vT1}')
            I('s_nop 1')
            I(f's_cbranch_vccnz K1_rs{u}')
            a.out.append(f'K1_rb{u}:')
            R = [f'K1_rs{u}:', 's_nop 15', 's_nop 15',
                 f'v_max_f32 v{vT1}, v{vT0}, v{vMR}', f'v_sub_f32 v{vT0}, v{vMR}, v{vT1}', f'v_mul_f32 v{vT0}, s51, v{vT0}', f'v_exp_f32 v{vT0}, v{vT0}',
                 f'v_mov_b32 v{vMR}, v{vT1}', f'v_mul_f32 v{vNEGM}, s51, v{vMR}', f'v_sub_f32 v{vNEGM}, {OFFS}, v{vNEGM}']
            R += [f'v_mul_f32 v{ACC+i}, v{ACC+i}, v{vT0}' for i in range(64)]
            R += [f'v_mul_f32 v{l}, v{l}, v{vT0}' for l in vL]
            R += ['s_nop 3', f's_branch K1_rb{u}']
            rare += R
        extra = top_sync(c, issue_map[c] if u < 7 else issue_map['p7']) if u < 7 else None
        if u == 7:
            I('s_barrier')
            extra = []
            for x in issue_map['p7']:
                extra += dma_chunk(x); issued[0] = max(issued[0], x)
        if u < 7:
            sm = s_mfmas(u+1)
            if 'nofma' in X and 'nomax' in X:
                for s in merge(sm, extra, p_ops(u, 0) + p_ops(u, 1)): I(s)
                side = {0: p_ops(u, 2)[:14], 1: p_ops(u, 2)[14:] + p_ops(u, 3)[:8], 2: p_ops(u, 3)[8:], 3: []}
            elif 'nofma' in X:
                for s in merge(sm, extra, p_ops(u, 0) + p_ops(u, 1) + p_ops(u, 2)[:8]): I(s)
                rest = p_ops(u, 2)[8:] + p_ops(u, 3)
                mx = max_ops(u+1, 0) + max_ops(u+1, 1)
                side = {0: rest[:14], 1: rest[14:], 2: mx[:8], 3: mx[8:]}
            elif 'nomax' in X:
                for s in merge(sm, extra, p_ops(u, 0) + p_ops(u, 1)): I(s)
                side = {0: p_ops(u, 2)[:20], 1: p_ops(u, 2)[20:] + p_ops(u, 3)[:12], 2: p_ops(u, 3)[12:], 3: []}
            else:
                for s in merge(sm, extra, p_ops(u, 0) + p_ops(u, 1) + p_ops(u, 2)[:12]): I(s)
                rest = p_ops(u, 2)[12:] + p_ops(u, 3)
                mx = max_ops(u+1, 0) + max_ops(u+1, 1)
                side = {0: rest[:16+6], 1: rest[22:], 2: mx[:8], 3: mx[8:]}
        else:
            for s in merge(extra, p_ops(u, 0)): I(s)
            side = {0: p_ops(u, 1), 1: p_ops(u, 2), 2: p_ops(u, 3), 3: []}
        if u == 5: side[3] = side[3] + []
        for j in range(4):
            kap = 4*u + j
            pre = v_reads(kap+1) if kap < 31 else []
            sd = side[j]
            if u == 7 and j == 3:
                sd = [f'v_add_f32 v{vL[0]}, v{vL[0]}, v{vL[1]}', f'v_add_f32 v{vL[2]}, v{vL[2]}, v{vL[3]}', f'v_add_f32 v{vL[0]}, v{vL[0]}, v{vL[2]}',
                      f'v_mov_b32 v{vL[1]}, v{vL[0]}', 's_nop 1', f'v_permlane32_swap_b32 v{vL[0]}, v{vL[1]}', f'v_add_f32 v{vL[0]}, v{vL[0]}, v{vL[1]}', f'v_rcp_f32 v{vL[0]}, v{vL[0]}']
                sd += tr_addr_setup(3, 10, ['s_lshl_b32 s53, s37, 8', f's_add_u32 s53, s53, {slot_of(24)}'])
            for s in merge(pv_mfmas(u, j), pre, sd): I(s)
    st()
    I(f's_mov_b32 s48, {EREG}')
    I('s_cmp_eq_u32 s38, 1')
    I(f's_cselect_b32 s48, {slot_of(23)}, s48')
    I(f'v_add_u32 v{vT0}, s48, v{vLANE16}')
    I('s_lshl_b32 s49, s37, 13')
    I(f'v_add_u32 v{vT1}, s49, v{vT0}')
    I('s_barrier')
    for s in w_reads(0, 0): I(s)
    for q in range(8):
        for j in range(4*q, 4*q+4):
            I(f'v_mul_f32 v{ACC+2*j}, v{ACC+2*j}, v{vL[0]}')
            I(f'v_mul_f32 v{ACC+2*j+1}, v{ACC+2*j+1}, v{vL[0]}')
            I(f'v_cvt_pk_bf16_f32 v{BIG+j}, v{ACC+2*j}, v{ACC+2*j+1}')
        I(f'ds_write_b128 v{vT1}, v[{BIG+4*q}:{BIG+4*q+3}] offset:{1024*q}')
    allowed = sum(ndma(x) for x in range(26, issued[0]+1))
    I(f's_waitcnt vmcnt({allowed}) lgkmcnt(0)')
    I('s_barrier')
    o_reads = [f'ds_read_b128 v[{BIG+4*ks}:{BIG+4*ks+3}], v{vT0} offset:{1024*ks}' for ks in range(32)]
    for s in o_reads[:4]: I(s)
    st()
    side = {0: o_reads[4:18], 1: o_reads[18:32] + ['s_waitcnt lgkmcnt(0)']}
    gemm_phase(24, False, issue_map, side)
    st()
    I('s_lshl_b32 s48, s35, 21')
    I('s_lshl_b32 s49, s36, 16')
    I('s_add_u32 s48, s48, s49')
    I('s_lshl_b32 s49, s38, 15')
    I('s_add_u32 s48, s48, s49')
    I('s_lshl_b32 s49, s37, 13')
    I('s_add_u32 s48, s48, s49')
    I(f's_add_u32 s48, s48, {WS_P:#x}')
    I('s_add_u32 s49, s48, 4096')
    for j in range(32):
        I(f'v_cvt_pk_bf16_f32 v{BIG+j}, v{ACC+2*j}, v{ACC+2*j+1}')
        if j % 4 == 3:
            q = j // 4
            so = 's48' if q < 4 else 's49'
            I(f'buffer_store_dwordx4 v[{BIG+4*q}:{BIG+4*q+3}], v{vLANE16}, s[24:27], {so} offen offset:{1024*(q%4)}')
    if stamps:
        I(f'v_lshrrev_b32 v{vT3}, 4, v{vLANE16}')
        st.flush(24, 34, 200, vT3)
    a.label('K1_end')
    I('s_endpgm')
    for r in rare:
        a.out.append(r if r.endswith(':') else '    ' + r)
    print("K1 instrs", a.ninstr, "nops", a.nnop)
    return a.text(), kernel_desc(name, 256, 96)
```

```python
from common import *

SLOT = 32768
S4 = 4 * SLOT
def slot_of(c):
    if c < 4: return c * SLOT
    if c < 28: return ((c - 4) % 5) * SLOT
    return ((c - 28) % 5) * SLOT

def gen_k1n(name, stamps=False, X=(), offs=106.0):
    a = Asm()
    OFFS = f'{f32bits(-float(offs)):#x}'
    st = VStamper(a, stamps, 1, 0)
    kernel_header(a, name)
    I = a.I
    vX = [1,2,3,4]
    vWA = [5,6,7,8]
    vKA = [9,10,11,12,13,14,15,16]
    vT0, vT1, vT2, vT3 = 17,18,19,20
    vMX = 21; vNEGM = 22; vL = [23,24,25,26]
    vLANE16 = 27
    vKD = [28,29,30,31]
    BIG = 32
    ACC = 160
    AF = 224
    vHA = vT0
    vHW = vT1
    sK, sWQ, sWO, sWS, sTC = 4, 8, 12, 16, 20
    sW, sG, sRB, sHD, sRH, sW4K, sBQ, sBK, sBO, sBV = 24, 25, 26, 27, 28, 29, 30, 31, 32, 33
    t0, t1, t2 = 34, 35, 3
    MODS = 36
    I('s_cmp_ge_u32 s2, 256')
    I('s_cbranch_scc1 K1_end')
    I(f's_load_dwordx2 s[{sWS}:{sWS+1}], s[0:1], {KA_WS}')
    I(f's_load_dwordx2 s[{sWQ}:{sWQ+1}], s[0:1], {KA_WQ}')
    I(f's_load_dwordx2 s[{sK}:{sK+1}], s[0:1], {KA_K}')
    I(f's_load_dwordx2 s[{sWO}:{sWO+1}], s[0:1], {KA_WO}')
    I('v_and_b32 v17, 63, v0')
    I('v_lshrrev_b32 v18, 6, v0')
    I(f'v_lshlrev_b32 v{vLANE16}, 4, v17')
    I(f'v_readfirstlane_b32 s{sW}, v18')
    I(f's_and_b32 s{sG}, s2, 7')
    I(f's_lshr_b32 s{sRB}, s2, 3')
    for j in range(4):
        I(f'v_xor_b32 v{vX[j]}, {j<<6}, v{vLANE16}')
    I('v_lshrrev_b32 v18, 5, v17')
    I('v_and_b32 v19, 31, v17')
    I('v_lshlrev_b32 v19, 4, v19')
    I('v_lshl_add_u32 v20, v18, 15, v19')
    I('v_lshl_add_u32 v21, v18, 14, v19')
    for d, n in ((sWS, WS_SIZE), (sWQ, 512*8192), (sK, 8*2048*256), (sWO, 4096*1024)):
        I(f's_mov_b32 s{d+2}, {n:#x}')
        I(f's_mov_b32 s{d+3}, 0x00020000')
    I(f's_and_b32 s{sHD}, s{sW}, 3')
    I(f's_lshr_b32 s{sRH}, s{sW}, 2')
    I(f's_lshl_b32 s{sW4K}, s{sW}, 12')
    I(f's_lshl_b32 s{sBQ}, s{sG}, 10')
    I(f's_lshl_b32 s{t0}, s{sW}, 15')
    I(f's_add_u32 s{sBQ}, s{sBQ}, s{t0}')
    I(f's_lshl_b32 s{sBO}, s{sG}, 19')
    I(f's_add_u32 s{sBO}, s{sBO}, s{sW4K}')
    I(f's_add_u32 s{sBK}, s{sBO}, {1536*256}')
    I(f's_lshl_b32 s{sBV}, s{sG}, 17')
    I(f's_add_u32 s{sBV}, s{sBV}, s{sW4K}')
    I(f's_add_u32 s{sBV}, s{sBV}, {WS_VP:#x}')
    I(f's_lshl_b32 s{t0}, s{sW}, 8')
    I(f's_add_u32 s{t0}, s{t0}, {WS_MODA:#x}')
    I(f's_lshl_b32 s{t1}, s{sRB}, 16')
    I(f's_lshl_b32 s{t2}, s{sW}, 11')
    I(f's_add_u32 s{t1}, s{t1}, s{t2}')
    I(f's_add_u32 s{t2}, s{t2}, {S4}')
    I(f'v_add_u32 v21, s{t2}, v21')
    I('s_waitcnt lgkmcnt(0)')
    st.first()
    for u in range(4):
        I(f's_buffer_load_dwordx16 s[{MODS+16*u}:{MODS+16*u+15}], s[{sWS}:{sWS+3}], s{t0} offset:{64*u}')
    for u in range(4):
        I(f's_buffer_load_dword s{sTC+u}, s[{sWS}:{sWS+3}], s{t0} offset:{2048 + 64*u}')
    XR1 = 160; XR2 = 144
    for u in range(4):
        I(f'buffer_load_dwordx4 v[{XR1+4*u}:{XR1+4*u+3}], v20, s[{sWS}:{sWS+3}], s{t1} offen offset:{512*u}')
    I(f's_add_u32 s{t1}, s{t1}, 16384')
    xn2 = [f'buffer_load_dwordx4 v[{XR2+4*u}:{XR2+4*u+3}], v20, s[{sWS}:{sWS+3}], s{t1} offen offset:{512*u}' for u in range(4)]
    I(f's_mov_b32 s100, s{t0}') if not stamps else None
    sMO = 100 if not stamps else None

    vlist = []
    def dma_chunk(c):
        L = []
        L.append(f's_add_u32 s{t2}, s{sW4K}, {slot_of(c)}')
        L.append(f's_mov_b32 m0, s{t2}')
        if c < 16:
            for j in range(4):
                L.append(f's_add_u32 s{t2}, s{sBQ}, {c*32*8192 + j*7168}')
                L.append(f'buffer_load_dwordx4 v{vX[j]}, s[{sWQ}:{sWQ+3}], s{t2} offen offset:{1024*j} lds')
        elif c < 24 and c % 2 == 0:
            L.append(f's_add_u32 s{t2}, s{sBK}, {((c-16)//2)*32768}')
            for j in range(4):
                L.append(f'buffer_load_dwordx4 v{vKD[j]}, s[{sK}:{sK+3}], s{t2} offen offset:{1024*j} lds')
        elif c < 24:
            L.append(f's_add_u32 s{t2}, s{sBV}, {((c-17)//2)*32768}')
            for j in range(4):
                L.append(f'buffer_load_dwordx4 v{vLANE16}, s[{sWS}:{sWS+3}], s{t2} offen offset:{1024*j} lds')
        else:
            i = c - 24
            pre = []
            if i == 0:
                pre.append(f'v_lshrrev_b32 v{vKD[0]}, 8, v{vLANE16}')
                for j in range(4): pre.append(f'v_lshl_add_u32 v{vX[j]}, v{vKD[0]}, 17, v{vX[j]}')
            elif i % 4 == 0:
                for j in range(4):
                    pre.append(f'v_add_u32 v{vX[j]}, 0x20000, v{vX[j]}')
                    pre.append(f'v_and_b32 v{vX[j]}, 0x7ffff, v{vX[j]}')
            L = pre + L
            L.append(f's_add_u32 s{t2}, s{sBO}, {(i % 4)*32768}')
            for j in range(4):
                L.append(f'buffer_load_dwordx4 v{vX[j]}, s[{sWO}:{sWO+3}], s{t2} offen offset:{1024*j} lds')
        vlist.extend([c]*4)
        return L
    TOUCH_AT = {20: 'wo', 23: 'wb'}
    def touch_ops(kind):
        L = []
        if kind == 'wo':
            L.append(f'v_lshlrev_b32 v{vT2}, 1, v{vLANE16}')
            L.append(f's_lshl_b32 s{t0}, s{sG}, 19')
            L.append(f's_lshl_b32 s{t1}, s{sRB}, 14')
            L.append(f's_add_u32 s{t0}, s{t0}, s{t1}')
            L.append(f's_lshl_b32 s{t1}, s{sW}, 11')
            L.append(f's_add_u32 s{t0}, s{t0}, s{t1}')
            L.append(f'buffer_load_dword v{vT2}, v{vT2}, s[{sWO}:{sWO+3}], s{t0} offen')
        else:
            d = sTC
            L.append(f'v_lshlrev_b32 v{vT2}, 3, v{vLANE16}')
            L.append(f's_cmp_eq_u32 s{sHD}, 1\ns_cselect_b32 s{d}, s58, s56\ns_cselect_b32 s{d+1}, s59, s57')
            L.append(f's_cmp_eq_u32 s{sHD}, 2\ns_cselect_b32 s{d}, s60, s{d}\ns_cselect_b32 s{d+1}, s61, s{d+1}')
            L.append(f's_cmp_eq_u32 s{sHD}, 3\ns_cselect_b32 s{d}, s62, s{d}\ns_cselect_b32 s{d+1}, s63, s{d+1}')
            L.append(f's_mov_b32 s{d+2}, {512*1024}\ns_movk_i32 s{t0}, 2048\ns_cmp_ge_u32 s{sHD}, 2\ns_cselect_b32 s{d+2}, {1792*1024}, s{d+2}\ns_cselect_b32 s{t0}, 7168, s{t0}')
            L.append(f's_mov_b32 s{d+3}, 0x00020000')
            L.append(f's_mul_i32 s{t0}, s{t0}, s2')
            L.append(f'buffer_load_dword v{vT2}, v{vT2}, s[{d}:{d+3}], s{t0} offen')
        vlist.append('t')
        return L
    def allowed_after(tag):
        idx = max(i for i, x in enumerate(vlist) if x == tag)
        return len(vlist) - 1 - idx
    for s in dma_chunk(0): I(s)
    for s in xn2: I(s)
    vlist.extend(['x']*4)
    def start_touch():
        I('v_bfe_u32 v22, v17, 3, 1')
        I('v_and_b32 v23, 7, v17')
        I('v_lshlrev_b32 v22, 13, v22')
        I('v_lshl_add_u32 v22, v23, 7, v22')
        I(f's_lshl_b32 s{t1}, s{sRB}, 17')
        I(f's_lshl_b32 s{t2}, s{sW}, 14')
        I(f's_add_u32 s{t1}, s{t1}, s{t2}')
        I(f's_lshl_b32 s{t2}, s{sG}, 10')
        I(f's_add_u32 s{t1}, s{t1}, s{t2}')
        I(f'buffer_load_dword v{BIG+64}, v22, s[{sWQ}:{sWQ+3}], s{t1} offen')
        I('v_and_b32 v23, 3, v17')
        I('v_lshlrev_b32 v23, 7, v23')
        I(f's_lshl_b32 s{t1}, s{sG}, 19')
        I(f's_lshl_b32 s{t2}, s{sRB}, 12')
        I(f's_add_u32 s{t1}, s{t1}, s{t2}')
        I(f's_lshl_b32 s{t2}, s{sW}, 9')
        I(f's_add_u32 s{t1}, s{t1}, s{t2}')
        I(f's_add_u32 s{t1}, s{t1}, {1536*256}')
        I(f'buffer_load_dword v{BIG+65}, v23, s[{sK}:{sK+3}], s{t1} offen')
        vlist.extend(['t', 't'])
    if 'notouch' not in X: start_touch()
    for c in (1, 2, 3):
        for s in dma_chunk(c): I(s)
    I('v_bfe_u32 v19, v17, 2, 2')
    I('v_lshl_add_u32 v20, v18, 3, v19')
    I('v_lshlrev_b32 v20, 10, v20')
    I('v_bfe_u32 v22, v17, 4, 1')
    I('v_lshl_add_u32 v20, v22, 5, v20')
    I('v_and_b32 v22, 1, v17')
    I('v_lshl_add_u32 v20, v22, 4, v20')
    I('v_bfe_u32 v22, v17, 1, 1')
    I('v_lshl_add_u32 v20, v22, 3, v20')
    I(f's_lshl_b32 s{t1}, s{sHD}, 8')
    I(f'v_add_u32 v22, s{t1}, v20')
    for mt in range(4):
        I(f'v_xor_b32 v23, {mt}, v19')
        I(f'v_lshl_add_u32 v{vWA[mt]}, v23, 6, v22')
    I('v_and_b32 v20, 31, v17')
    I('v_and_b32 v22, 15, v17')
    I('v_xor_b32 v22, v22, v18')
    I('v_lshlrev_b32 v20, 8, v20')
    I(f'v_add_u32 v20, {slot_of(16)}, v20')
    for s in range(8):
        I(f'v_xor_b32 v23, {2*s}, v22')
        I(f'v_lshl_add_u32 v{vKA[s]}, v23, 4, v20')
    I('v_lshrrev_b32 v20, 4, v17')
    I('v_and_b32 v22, 15, v17')
    I('v_xor_b32 v22, v22, v20')
    I('v_lshlrev_b32 v20, 8, v20')
    for j in range(4):
        I(f'v_xor_b32 v23, {4*j}, v22')
        I(f'v_lshl_add_u32 v{vKD[j]}, v23, 4, v20')
    I(f'v_mov_b32 v{vHW}, v21')
    I(f's_lshl_b32 s{t1}, s{sRH}, 14')
    I(f's_add_u32 s{t1}, s{t1}, {S4}')
    I(f'v_add_u32 v{vHA}, s{t1}, v{vLANE16}')
    I('v_mov_b32 v192, 0x3f80')
    I('v_mov_b32 v193, 0x3f800000')
    if 'pst' in X: st()
    I('s_waitcnt lgkmcnt(0)')
    if 'pst' in X:
        st()
        I('s_waitcnt vmcnt(22)')
        st()
    if stamps:
        I(f's_lshl_b32 s{t0}, s{sW}, 8')
        I(f's_add_u32 s{t0}, s{t0}, {WS_MODA:#x}')
    mo = t0 if stamps else 100
    TT = 176
    for u in range(4):
        sb = MODS + 16*u
        for d in range(4):
            x = XR1 + 4*u + d
            I(f'v_dot2_f32_bf16 v{TT+2*d}, v{x}, s{sb+2*d}, 0')
            I(f'v_dot2_f32_bf16 v{TT+2*d+1}, v{x}, s{sb+2*d+1}, 0')
        for d in range(4):
            I(f'v_cvt_pk_bf16_f32 v{XR1+4*u+d}, v{TT+2*d}, v{TT+2*d+1}')
        for d in range(4):
            x = XR1 + 4*u + d
            I(f'v_dot2_f32_bf16 v{TT+8+2*d}, v{x}, v192, s{sb+8+2*d}')
            I(f'v_dot2_f32_bf16 v{TT+8+2*d+1}, v{x}, v193, s{sb+8+2*d+1}')
        I(f's_buffer_load_dwordx16 s[{sb}:{sb+15}], s[{sWS}:{sWS+3}], s{mo} offset:{2048 + 64*u}')
        for d in range(4):
            I(f'v_cvt_pk_bf16_f32 v{XR1+4*u+d}, v{TT+8+2*d}, v{TT+8+2*d+1}')
        I(f'ds_write_b128 v{vHW}, v[{XR1+4*u}:{XR1+4*u+3}] offset:{512*u}')
    if 'pst' in X:
        st()
        I(f's_waitcnt vmcnt({allowed_after(0)})')
        st()
        I(f's_waitcnt vmcnt({allowed_after(1)})')
        st()
    I(f's_waitcnt vmcnt({allowed_after(1)}) lgkmcnt(0)')
    I('s_barrier')
    st()
    mod2 = []
    T2 = 128
    for u in range(4):
        sb = MODS + 16*u
        for half in range(2):
            ds = (2*half, 2*half+1)
            seq = []
            for d in ds:
                x = XR2 + 4*u + d; lo = T2 + 2*(d % 4); hi = lo + 1
                seq.append([f'v_lshlrev_b32 v{lo}, 16, v{x}', f'v_and_b32 v{hi}, 0xffff0000, v{x}',
                            f'v_mul_f32 v{lo}, s{sb+2*d}, v{lo}', f'v_mul_f32 v{hi}, s{sb+2*d+1}, v{hi}',
                            f'v_cvt_pk_bf16_f32 v{lo}, 0, v{lo}', f'v_cvt_pk_bf16_f32 v{hi}, 0, v{hi}',
                            f'v_add_f32 v{lo}, s{sb+8+2*d}, v{lo}', f'v_add_f32 v{hi}, s{sb+8+2*d+1}, v{hi}',
                            f'v_cvt_pk_bf16_f32 v{x}, v{lo}, v{hi}'])
            for k in range(0, 8, 2):
                for q in seq: mod2 += q[k:k+2]
            for q in seq: mod2.append(q[8])
    h2w = [f'ds_write_b128 v{vHW}, v[{XR2+4*u}:{XR2+4*u+3}] offset:{512*u}' for u in range(4)]

    def w_reads(buf, ks):
        L = []
        for mt in range(4):
            for t in range(2):
                d = AF + 16*buf + 4*mt + 2*t
                L.append(f'ds_read_b64_tr_b16 v[{d}:{d+1}], v{vWA[mt]} offset:{(16*ks + 4*t)*1024}')
        return L
    def h_read(ks):
        return f'ds_read_b128 v[{BIG+4*ks}:{BIG+4*ks+3}], v{vHA} offset:{(ks & 15)*1024}'
    def w_advance(c_from, c_to):
        delta = slot_of(c_to) - slot_of(c_from)
        if delta >= 0: return [f'v_add_u32 v{vWA[mt]}, {delta}, v{vWA[mt]}' for mt in range(4)]
        return [f'v_subrev_u32 v{vWA[mt]}, {-delta}, v{vWA[mt]}' for mt in range(4)]
    def issue(lst):
        L = []
        for x in lst:
            L += dma_chunk(x)
            if x in TOUCH_AT and 'notouch' not in X: L += touch_ops(TOUCH_AT[x])
        return L
    def top_sync(need, issue_list, lg=False):
        w = f's_waitcnt vmcnt({allowed_after(need)})' if need is not None and need <= 39 else None
        if 'p4novm' in X and need is not None and need >= 26: w = None
        if lg: w = (w + ' lgkmcnt(0)') if w else 's_waitcnt lgkmcnt(0)'
        if w: I(w)
        if not ('p4nobar' in X and need is not None and need >= 26): I('s_barrier')
        L = issue(issue_list)
        if 'p4nodma' in X and need is not None and need >= 26: L = []
        return L

    def gemm_phase(c0, acc, bfrag, issue_map, side, lgset):
        for i in range(16):
            c = c0 + i
            extra = top_sync(c+1, issue_map.get(c, []), lg=(c in lgset)) if (i > 0 and c < 39) else []
            cut = 0
            nl = [j for j, s in enumerate(extra) if 'buffer_load' in s]
            if nl: cut = nl[len(nl)//2 - 1] + 1 if len(nl) >= 2 else len(extra)
            ex = [extra[:cut], extra[cut:]]
            for ks in range(2):
                kk = 2*i + ks
                buf = kk & 1
                if ks == 0:
                    pre = w_reads(buf ^ 1, 1)
                elif i < 15:
                    pre = w_advance(c, c+1) + w_reads(buf ^ 1, 0)
                else:
                    pre = []
                bfr = bfrag(kk)
                if 'p4nords' in X and c0 == 24: pre = []
                mf = []
                for mt in range(4):
                    d = acc + 16*mt
                    cc = '0' if kk == 0 else f'v[{d}:{d+15}]'
                    mf.append(f'v_mfma_f32_32x32x16_bf16 v[{d}:{d+15}], v[{AF+16*buf+4*mt}:{AF+16*buf+4*mt+3}], v[{bfr}:{bfr+3}], {cc}')
                sd = side.get(kk, [])
                for s in merge(mf, pre, ex[ks], *([sd] if not sd or isinstance(sd[0], str) else sd)): I(s)

    QF2 = 32
    SB_ = [64, 96]
    VF = 128
    KF = AF
    vVA = vT3
    vMR = vMX
    def k_reads(t):
        L = []
        c = 16 + 2*(t//4)
        for s in range(8):
            if t % 4 == 0 and t > 0:
                delta = slot_of(c) - slot_of(c-2)
                if delta >= 0: L.append(f'v_add_u32 v{vKA[s]}, {delta}, v{vKA[s]}')
                else: L.append(f'v_subrev_u32 v{vKA[s]}, {-delta}, v{vKA[s]}')
            L.append(f'ds_read_b128 v[{KF+4*s}:{KF+4*s+3}], v{vKA[s]} offset:{(t%4)*8192}')
        return L
    def v_reads(kap):
        L = []
        c = 17 + 2*(kap//8); ks = kap % 8; buf = kap & 1
        if ks == 0:
            L.append(f'v_add_u32 v{vVA}, {slot_of(c)}, v{vLANE16}')
        for mt in range(4):
            d = VF + 16*buf + 4*mt
            L.append(f'ds_read_b128 v[{d}:{d+3}], v{vVA} offset:{ks*4096 + mt*1024}')
        return L

    for s in [h_read(0)] + w_reads(0, 0) + [h_read(1), h_read(2), h_read(3)]: I(s)
    issue_map = {c: [c+3] for c in (1, 2, 3)}
    issue_map[4] = [7, 8]
    for c in range(5, 17): issue_map[c] = [c+4]
    issue_map[17] = []
    for c in range(18, 25): issue_map[c] = [c+3]
    for c in (25, 26, 27, 28): issue_map[c] = [c+3]
    issue_map[29] = [32, 33]
    for c in range(30, 36): issue_map[c] = [c+4]
    n2 = len(mod2)
    side = {0: [[h_read(k) for k in range(4, 10)], mod2[:n2//4]],
            1: [[h_read(k) for k in range(10, 16)], mod2[n2//4:n2//2]],
            2: mod2[n2//2:3*n2//4], 3: mod2[3*n2//4:] + h2w,
            4: [h_read(k) for k in range(16, 20)], 5: [h_read(k) for k in range(20, 24)],
            6: [h_read(k) for k in range(24, 28)], 7: [h_read(k) for k in range(28, 32)]}
    gemm_phase(0, ACC, lambda kk: BIG + 4*kk, issue_map, side, {1, 2, 4})
    st()
    I(f's_load_dwordx8 s[56:63], s[0:1], {KA_W1}')
    for s in k_reads(0): I(s)
    for j in range(32):
        I(f'v_cvt_pk_bf16_f32 v{QF2+j}, v{ACC+2*j}, v{ACC+2*j+1}')
    CEXP = 1.4426950408889634 * 128 ** -0.5
    I(f's_mov_b32 s51, {f32bits(CEXP):#x}')
    I(f's_mov_b32 s50, {f32bits(48.0 / CEXP):#x}')
    for l in vL: I(f'v_mov_b32 v{l}, 0')
    I('s_waitcnt lgkmcnt(0)')
    def s_mfmas(u):
        seq = []
        for tt in range(2):
            t = 2*u + tt
            b = SB_[u & 1] + 16*tt
            reads = k_reads(t+1) if t < 15 else []
            ri = 0
            for s in range(8):
                cc = '0' if s == 0 else f'v[{b}:{b+15}]'
                grp = [f'v_mfma_f32_32x32x16_bf16 v[{b}:{b+15}], v[{KF+4*s}:{KF+4*s+3}], v[{QF2+4*s}:{QF2+4*s+3}], {cc}']
                while ri < len(reads):
                    grp.append(reads[ri]); ri += 1
                    if reads[ri-1].startswith('ds_read'): break
                seq.append('\n'.join(grp))
        return seq
    def pv_mfmas(u, j):
        kap = 4*u + j; buf = kap & 1
        p = SB_[u & 1] + 8*j
        L = []
        for mt in range(4):
            d = ACC + 16*mt
            cc = '0' if kap == 0 else f'v[{d}:{d+15}]'
            L.append(f'v_mfma_f32_32x32x16_bf16 v[{d}:{d+15}], v[{VF+16*buf+4*mt}:{VF+16*buf+4*mt+3}], v[{p}:{p+3}], {cc}')
        return L
    def max_ops(u, tt):
        b = SB_[u & 1] + 16*tt
        L = []
        for i in range(8):
            if tt == 0 and i == 0:
                L.append(f'v_max_f32 v{vT0}, v{b}, v{b+1}')
            else:
                L.append(f'v_max3_f32 v{vT0}, v{b+2*i}, v{b+2*i+1}, v{vT0}')
        return L
    def p_ops(u, j):
        b = SB_[u & 1] + 8*j
        L = []
        for e in range(8):
            L.append(f'v_fma_f32 v{b+e}, v{b+e}, s51, v{vNEGM}')
        for e in range(8):
            L.append(f'v_exp_f32 v{b+e}, v{b+e}')
        for d in range(4):
            L.append(f'v_add_f32 v{vL[d]}, v{vL[d]}, v{b+2*d}')
            L.append(f'v_add_f32 v{vL[d]}, v{vL[d]}, v{b+2*d+1}')
            L.append(f'v_cvt_pk_bf16_f32 v{b+d}, v{b+2*d}, v{b+2*d+1}')
        return L
    rare = []
    extra = top_sync(17, issue_map[16])
    sm = s_mfmas(0)
    for s in merge(sm[:10], extra): I(s)
    for s in merge(sm[10:], max_ops(0, 0) + v_reads(0)): I(s)
    for s in max_ops(0, 1): I(s)
    delta = slot_of(24) - slot_of(15)
    p4set = w_advance(15, 24)
    p4set.append(f's_add_u32 s{t0}, s{sW4K}, {S4}')
    p4set.append(f'v_add_u32 v{vKA[0]}, s{t0}, v{vLANE16}')
    for rel in (1, 2, 3):
        p4set.append(f's_add_u32 s{t0}, s{sHD}, {rel}\ns_and_b32 s{t0}, s{t0}, 3\ns_lshl_b32 s{t1}, s{sRH}, 2\ns_add_u32 s{t0}, s{t0}, s{t1}\ns_lshl_b32 s{t0}, s{t0}, 12\ns_add_u32 s{t0}, s{t0}, {S4}')
        p4set.append(f'v_add_u32 v{vKA[rel]}, s{t0}, v{vLANE16}')
    for u in range(8):
        c = 17 + u
        I(f'v_mov_b32 v{vT1}, v{vT0}')
        I(f'v_permlane32_swap_b32 v{vT0}, v{vT1}')
        I(f'v_max_f32 v{vT0}, v{vT0}, v{vT1}')
        if u == 0:
            I(f'v_mov_b32 v{vMR}, v{vT0}')
            I(f'v_mul_f32 v{vNEGM}, s51, v{vMR}')
            I(f'v_sub_f32 v{vNEGM}, {OFFS}, v{vNEGM}')
        else:
            I(f'v_add_f32 v{vT1}, s50, v{vMR}')
            I(f'v_cmp_gt_f32 vcc, v{vT0}, v{vT1}')
            I('s_nop 1')
            I(f's_cbranch_vccnz K1_rs{u}')
            a.out.append(f'K1_rb{u}:')
            R = [f'K1_rs{u}:', 's_nop 15', 's_nop 15',
                 f'v_max_f32 v{vT1}, v{vT0}, v{vMR}', f'v_sub_f32 v{vT0}, v{vMR}, v{vT1}', f'v_mul_f32 v{vT0}, s51, v{vT0}', f'v_exp_f32 v{vT0}, v{vT0}',
                 f'v_mov_b32 v{vMR}, v{vT1}', f'v_mul_f32 v{vNEGM}, s51, v{vMR}', f'v_sub_f32 v{vNEGM}, {OFFS}, v{vNEGM}']
            R += [f'v_mul_f32 v{ACC+i}, v{ACC+i}, v{vT0}' for i in range(64)]
            R += [f'v_mul_f32 v{l}, v{l}, v{vT0}' for l in vL]
            R += ['s_nop 3', f's_branch K1_rb{u}']
            rare += R
        extra = top_sync(c+1, issue_map[c])
        if u < 7:
            sm = s_mfmas(u+1)
            for s in merge(sm, extra, p_ops(u, 0) + p_ops(u, 1) + p_ops(u, 2)[:12]): I(s)
            rest = p_ops(u, 2)[12:] + p_ops(u, 3)
            mx = max_ops(u+1, 0) + max_ops(u+1, 1)
            side = {0: rest[:16+6], 1: rest[22:], 2: mx[:8], 3: mx[8:]}
        else:
            for s in merge(extra, p_ops(u, 0)): I(s)
            side = {0: p_ops(u, 1) + p4set[:6], 1: p_ops(u, 2) + p4set[6:], 2: p_ops(u, 3), 3: []}
        for j in range(4):
            kap = 4*u + j
            pre = v_reads(kap+1) if kap < 31 else []
            sd = side[j]
            if u == 7 and j == 3:
                sd = [f'v_add_f32 v{vL[0]}, v{vL[0]}, v{vL[1]}', f'v_add_f32 v{vL[2]}, v{vL[2]}, v{vL[3]}', f'v_add_f32 v{vL[0]}, v{vL[0]}, v{vL[2]}',
                      f'v_mov_b32 v{vL[1]}, v{vL[0]}', 's_nop 1', f'v_permlane32_swap_b32 v{vL[0]}, v{vL[1]}', f'v_add_f32 v{vL[0]}, v{vL[0]}, v{vL[1]}', f'v_rcp_f32 v{vL[0]}, v{vL[0]}']
                pre = w_reads(0, 0)
            for s in merge(pv_mfmas(u, j), pre, sd): I(s)
    st()
    OWN = 32; ACC4 = 64
    BLK = [OWN, 128, 160, 192]
    def norm(q):
        L = []
        for j in range(4*q, 4*q+4):
            L.append(f'v_mul_f32 v{ACC+2*j}, v{ACC+2*j}, v{vL[0]}')
            L.append(f'v_mul_f32 v{ACC+2*j+1}, v{ACC+2*j+1}, v{vL[0]}')
        for j in range(4*q, 4*q+4):
            L.append(f'v_cvt_pk_bf16_f32 v{OWN+j}, v{ACC+2*j}, v{ACC+2*j+1}')
        return L
    def xw(qs): return [f'ds_write_b128 v{vKA[0]}, v[{OWN+4*q}:{OWN+4*q+3}] offset:{1024*(q & 3)}' for q in qs]
    def xr(rel, qs): return [f'ds_read_b128 v[{BLK[rel]+4*q}:{BLK[rel]+4*q+3}], v{vKA[rel]} offset:{1024*(q & 3)}' for q in qs]
    for s in norm(0): I(s)
    side = {0: norm(1) + norm(2) + norm(3), 1: norm(4) + norm(5) + norm(6),
            2: xw([0, 1, 2, 3]) + norm(7), 3: [],
            4: xr(1, range(4)) + xr(2, range(2)), 5: xr(2, range(2, 4)) + xr(3, range(4)),
            6: xw([4, 5, 6, 7]), 7: [],
            8: xr(1, range(4, 8)) + xr(2, range(4, 6)), 9: xr(2, range(6, 8)) + xr(3, range(4, 8))}
    gemm_phase(24, ACC4, lambda kk: BLK[kk // 8] + 4*(kk % 8), issue_map, side, {26, 27, 28, 29})
    st()
    I(f's_lshl_b32 s{t0}, s{sG}, 21')
    I(f's_lshl_b32 s{t1}, s{sRB}, 16')
    I(f's_add_u32 s{t0}, s{t0}, s{t1}')
    I(f's_lshl_b32 s{t1}, s{sRH}, 15')
    I(f's_add_u32 s{t0}, s{t0}, s{t1}')
    I(f's_lshl_b32 s{t1}, s{sHD}, 13')
    I(f's_add_u32 s{t0}, s{t0}, s{t1}')
    I(f's_add_u32 s{t0}, s{t0}, {WS_P:#x}')
    I(f's_add_u32 s{t1}, s{t0}, 4096')
    for j in range(32):
        I(f'v_cvt_pk_bf16_f32 v{OWN+j}, v{ACC4+2*j}, v{ACC4+2*j+1}')
        if j % 4 == 3:
            q = j // 4
            so = f's{t0}' if q < 4 else f's{t1}'
            I(f'buffer_store_dwordx4 v[{OWN+4*q}:{OWN+4*q+3}], v{vLANE16}, s[{sWS}:{sWS+3}], {so} offen offset:{1024*(q%4)}')
    if stamps:
        I(f'v_lshrrev_b32 v{vT3}, 4, v{vLANE16}')
        st.flush(sWS, sW, 200, vT3)
    a.label('K1_end')
    I('s_endpgm')
    for r in rare:
        a.out.append(r if r.endswith(':') else '    ' + r)
    print("K1 instrs", a.ninstr, "nops", a.nnop)
    return a.text(), kernel_desc(name, 256, 102)
```

```python
from common import *

SLOT = 32768
KV_SLOT = {16: 1, 17: 2, 18: 3, 19: 4, 20: 0, 21: 1, 22: 2, 23: 3}
def slot_of(c): return KV_SLOT[c] * SLOT

def interleave(main, side):
    out = []
    n = len(main); m = len(side); k = 0
    for i, x in enumerate(main):
        out.append(x)
        tgt = (m * (i + 1)) // n
        while k < tgt:
            out.append(side[k]); k += 1
    return out

DEF = {'early':'x0 a0 a1 t a2 a3', 'late':'a4 a5 x1', 'sl':(('x2',4),('x3',10),('f',12)), 'mq':((1,4,3),(2,10,4),(3,17,4)), 'bars':(7,14,22), 'fin':24}
def gen_k1p(name, stamps=False, X=(), offs=106.0):
    X = dict(DEF, **X) if isinstance(X, dict) else dict(DEF, **{k: True for k in X})
    a = Asm()
    OFFS = f'{f32bits(-float(offs)):#x}'
    st = VStamper(a, stamps, 1, 0)
    kernel_header(a, name)
    I = a.I
    vD, vD2 = 1, 2
    vB = [3, 4]
    vA = [5, 6, 7, 8]
    vKA = [9,10,11,12,13,14,15,16]
    vT0, vT1, vT2, vT3 = 17,18,19,20
    vMX = 21; vNEGM = 22; vL = [23,24,25,26]
    vLANE16 = 27
    vKD = [28,29,30,31]
    ACC = 160
    AF = 224
    BFB = 240
    vHW = vT0
    sK, sWQ, sWO, sWS, sTC = 4, 8, 12, 16, 20
    sW, sG, sRB, sHD, sRH, sW4K, sBQ, sBK, sBO, sBV = 24, 25, 26, 27, 28, 29, 30, 31, 32, 33
    t0, t1, t2 = 34, 35, 3
    MODS = 36
    I('s_cmp_ge_u32 s2, 256')
    I('s_cbranch_scc1 K1_end')
    I(f's_load_dwordx2 s[{sWS}:{sWS+1}], s[0:1], {KA_WS}')
    I(f's_load_dwordx2 s[{sWQ}:{sWQ+1}], s[0:1], {KA_WQ}')
    I(f's_load_dwordx2 s[{sK}:{sK+1}], s[0:1], {KA_K}')
    I(f's_load_dwordx2 s[{sWO}:{sWO+1}], s[0:1], {KA_WO}')
    I('v_and_b32 v21, 63, v0')
    I('v_lshrrev_b32 v18, 6, v0')
    I(f'v_lshlrev_b32 v{vLANE16}, 4, v21')
    I(f'v_readfirstlane_b32 s{sW}, v18')
    I(f's_and_b32 s{sG}, s2, 7')
    I(f's_lshr_b32 s{sRB}, s2, 3')
    I('v_lshrrev_b32 v22, 3, v21')
    I('v_and_b32 v23, 7, v21')
    I('v_bfe_u32 v24, v21, 4, 1')
    I('v_lshlrev_b32 v24, 2, v24')
    I('v_xor_b32 v23, v23, v24')
    I('v_lshlrev_b32 v23, 4, v23')
    I(f'v_lshl_add_u32 v{vD}, v22, 13, v23')
    I(f'v_lshl_add_u32 v{vD2}, v22, 10, v23')
    I('v_lshrrev_b32 v18, 5, v21')
    I('v_lshrrev_b32 v19, 4, v21')
    I('v_lshlrev_b32 v20, 9, v19')
    I('v_and_b32 v25, 7, v21')
    I('v_lshl_add_u32 v20, v25, 3, v20')
    I('v_bfe_u32 v25, v21, 3, 1')
    I('v_xor_b32 v26, 1, v25')
    I('v_lshl_add_u32 v20, v26, 11, v20')
    for d, n in ((sWS, WS_SIZE), (sWQ, 512*8192), (sK, 8*2048*256), (sWO, 4096*1024)):
        I(f's_mov_b32 s{d+2}, {n:#x}')
        I(f's_mov_b32 s{d+3}, 0x00020000')
    I(f's_lshr_b32 s{sHD}, s{sW}, 1')
    I(f's_and_b32 s{sRH}, s{sW}, 1')
    I(f's_lshl_b32 s{sW4K}, s{sW}, 12')
    I(f's_lshl_b32 s{t0}, s{sW}, 7')
    I(f's_lshl_b32 s{sBQ}, s{sG}, 10')
    I(f's_add_u32 s{sBQ}, s{sBQ}, s{t0}')
    I(f's_lshl_b32 s{sBK}, s{sG}, 19')
    I(f's_add_u32 s{sBO}, s{sBK}, s{t0}')
    I(f's_add_u32 s{sBK}, s{sBK}, s{sW4K}')
    I(f's_add_u32 s{sBK}, s{sBK}, {1536*256}')
    I(f's_lshl_b32 s{sBV}, s{sG}, 17')
    I(f's_add_u32 s{sBV}, s{sBV}, s{sW4K}')
    I(f's_add_u32 s{sBV}, s{sBV}, {WS_VP:#x}')
    I(f's_lshr_b32 s{t0}, s{t0}, 1')
    I(f's_add_u32 s{t0}, s{t0}, {WS_GP:#x}')
    I(f's_lshl_b32 s{t1}, s{sRB}, 16')
    I(f's_lshl_b32 s{t2}, s{sW}, 10')
    I(f's_add_u32 s{t1}, s{t1}, s{t2}')
    I(f's_add_u32 s{t2}, s{t2}, {3*SLOT}')
    I(f'v_add_u32 v{vHW}, s{t2}, v{vLANE16}')
    I('s_waitcnt lgkmcnt(0)')
    st.first()
    MP = 82
    for p in range(4):
        I(f'buffer_load_dwordx2 v[{MP+2*p}:{MP+2*p+1}], v20, s[{sWS}:{sWS+3}], s{t0} offen')
        if p < 3: I(f's_add_u32 s{t0}, s{t0}, {GP_STRIDE}')
    XR = 32
    def xnload(j):
        L = []
        for rh in range(2):
            L.append(f's_add_u32 s{t2}, s{t1}, {8192*j + 32768*rh}')
            L.append(f'buffer_load_dwordx4 v[{XR+8*j+4*rh}:{XR+8*j+4*rh+3}], v{vLANE16}, s[{sWS}:{sWS+3}], s{t2} offen' + (' nt' if 'xnt' in X else ''))
        return L
    FP = 90
    def finload():
        L = [f's_lshl_b32 s36, s2, 8', f's_add_u32 s37, s36, {WS_GP + 4096:#x}', f's_add_u32 s36, s36, {WS_MOD:#x}',
             f's_lshl_b32 s38, s{sW}, 8', 's_add_u32 s38, s38, s2', 's_cmp_ge_u32 s38, 68', 's_cselect_b32 s38, 0x10000000, 0',
             's_add_u32 s36, s36, s38', 's_add_u32 s37, s37, s38', f'v_lshrrev_b32 v20, 2, v{vLANE16}']
        for p in range(4):
            L.append(f'buffer_load_dword v{FP+p}, v20, s[{sWS}:{sWS+3}], s37 offen')
            if p < 3: L.append(f's_add_u32 s37, s37, {GP_STRIDE}')
        return L
    finops = ['s_lshr_b32 s38, s2, 3\ns_cmp_eq_u32 s38, 2\ns_cselect_b32 s38, 1.0, 0', 's_cmp_lt_u32 s2, 32\ns_cselect_b64 s[40:41], -1, 0',
              f'v_add_f32 v{FP}, v{FP}, v{FP+1}', f'v_add_f32 v{FP+2}, v{FP+2}, v{FP+3}', f'v_add_f32 v{FP}, v{FP}, v{FP+2}',
              f'v_cvt_pk_bf16_f32 v{FP+1}, 0, v{FP}', f'v_add_f32 v{FP+1}, s38, v{FP+1}', f'v_cvt_pk_bf16_f32 v{FP+1}, 0, v{FP+1}',
              f'v_cndmask_b32 v{FP}, v{FP}, v{FP+1}, s[40:41]', f'buffer_store_dword v{FP}, v20, s[{sWS}:{sWS+3}], s36 offen']
    RING = {0: [0,0,1,1,2,2], 1: [4,4,0,0,1,1]}
    def wo_row(kk): return ((kk >> 2) & 3)*128 + ((kk >> 4)*4 + (kk & 3))*16
    def a_dma(ph, kk):
        e = kk % 6
        lds = RING[ph][e]*SLOT + (e & 1)*2048
        if ph == 0:
            so = [kk*16*8192, kk*16*8192 + 8*8192 - 1024]; sb = sBQ; srd_ = sWQ; v = vD
        else:
            so = [wo_row(kk)*1024, wo_row(kk)*1024 + 7168]; sb = sBO; srd_ = sWO; v = vD2
            if 'wosmall' in X: so = [(kk % 8)*16384, (kk % 8)*16384 + 7168]
        h0 = f's_add_u32 m0, s{sW4K}, {lds}\ns_add_u32 s{t2}, s{sb}, {so[0]}\nbuffer_load_dwordx4 v{v}, s[{srd_}:{srd_+3}], s{t2} offen lds ; W:E{e}'
        h1 = f's_add_u32 s{t2}, s{sb}, {so[1]}\nbuffer_load_dwordx4 v{v}, s[{srd_}:{srd_+3}], s{t2} offen offset:1024 lds ; W:E{e}'
        return [h0, h1]
    def kv_dma(c, js=(0,1,2,3), tag=None):
        L = [f's_add_u32 m0, s{sW4K}, {slot_of(c)}']
        if c % 2 == 0:
            L.append(f's_add_u32 s{t2}, s{sBK}, {((c-16)//2)*32768}')
            for j in js:
                L.append(f'buffer_load_dwordx4 v{vKD[j]}, s[{sK}:{sK+3}], s{t2} offen offset:{1024*j} lds ; W:C{c}' + (f' W:{tag}' if tag else ''))
        else:
            L.append(f's_add_u32 s{t2}, s{sBV}, {((c-17)//2)*32768}')
            for j in js:
                L.append(f'buffer_load_dwordx4 v{vLANE16}, s[{sWS}:{sWS+3}], s{t2} offen offset:{1024*j} lds ; W:C{c}' + (f' W:{tag}' if tag else ''))
        return L
    def touch_ops(kind):
        L = []
        if 'notouch' in X or ('no' + kind) in X: return L
        if kind == 'wo':
            L.append(f'v_lshlrev_b32 v{vT2}, 1, v{vLANE16}')
            L.append(f's_lshl_b32 s{t0}, s{sG}, 19')
            L.append(f's_lshl_b32 s{t1}, s{sRB}, 14')
            L.append(f's_add_u32 s{t0}, s{t0}, s{t1}')
            L.append(f's_lshl_b32 s{t1}, s{sW}, 11')
            L.append(f's_add_u32 s{t0}, s{t0}, s{t1}')
            L.append(f'buffer_load_dword v{vT2}, v{vT2}, s[{sWO}:{sWO+3}], s{t0} offen')
        else:
            d = sTC
            L.append(f'v_lshlrev_b32 v{vT2}, 3, v{vLANE16}')
            L.append(f's_cmp_eq_u32 s{sHD}, 1\ns_cselect_b32 s{d}, s58, s56\ns_cselect_b32 s{d+1}, s59, s57')
            L.append(f's_cmp_eq_u32 s{sHD}, 2\ns_cselect_b32 s{d}, s60, s{d}\ns_cselect_b32 s{d+1}, s61, s{d+1}')
            L.append(f's_cmp_eq_u32 s{sHD}, 3\ns_cselect_b32 s{d}, s62, s{d}\ns_cselect_b32 s{d+1}, s63, s{d+1}')
            L.append(f's_mov_b32 s{d+2}, {512*1024}\ns_movk_i32 s{t0}, 2048\ns_cmp_ge_u32 s{sHD}, 2\ns_cselect_b32 s{d+2}, {1792*1024}, s{d+2}\ns_cselect_b32 s{t0}, 7168, s{t0}')
            L.append(f's_mov_b32 s{d+3}, 0x00020000')
            L.append(f's_mul_i32 s{t0}, s{t0}, s2')
            L.append(f'buffer_load_dword v{vT2}, v{vT2}, s[{d}:{d+3}], s{t0} offen')
        return L
    def start_touch():
        if 'notouch' in X: return
        I('v_bfe_u32 v22, v21, 3, 1')
        I('v_and_b32 v23, 7, v21')
        I('v_lshlrev_b32 v22, 13, v22')
        I('v_lshl_add_u32 v22, v23, 7, v22')
        I(f's_lshl_b32 s100, s{sRB}, 17')
        I(f's_lshl_b32 s{t2}, s{sW}, 14')
        I(f's_add_u32 s100, s100, s{t2}')
        I(f's_lshl_b32 s{t2}, s{sG}, 10')
        I(f's_add_u32 s100, s100, s{t2}')
        I(f'buffer_load_dword v94, v22, s[{sWQ}:{sWQ+3}], s100 offen')
        I('v_and_b32 v23, 3, v21')
        I('v_lshlrev_b32 v23, 7, v23')
        I(f's_lshl_b32 s100, s{sG}, 19')
        I(f's_lshl_b32 s{t2}, s{sRB}, 12')
        I(f's_add_u32 s100, s100, s{t2}')
        I(f's_lshl_b32 s{t2}, s{sW}, 9')
        I(f's_add_u32 s100, s100, s{t2}')
        I(f's_add_u32 s100, s100, {1536*256}')
        I(f'buffer_load_dword v95, v23, s[{sK}:{sK+3}], s100 offen')
    early = X.get('early', 'x0 a0 a1 t x1 a2 a3') if isinstance(X, dict) else 'x0 a0 a1 t x1 a2 a3'
    late = X.get('late', 'a4 a5 x2 x3 f') if isinstance(X, dict) else 'a4 a5 x2 x3 f'
    def emit_order(o):
        for tok in o.split():
            if tok == 't': start_touch()
            elif tok == 'f':
                for s in finload(): I(s)
            elif tok[0] == 'x':
                for s in xnload(int(tok[1])): I(s)
            else:
                for s in a_dma(0, int(tok[1])): I(s)
    emit_order(early)
    I('v_bfe_u32 v19, v21, 2, 2')
    I('v_lshl_add_u32 v22, v18, 3, v19')
    I('v_lshlrev_b32 v22, 7, v22')
    I('v_bfe_u32 v23, v21, 4, 1')
    I('v_lshl_add_u32 v22, v23, 5, v22')
    I('v_and_b32 v23, 1, v21')
    I('v_lshl_add_u32 v22, v23, 4, v22')
    I('v_bfe_u32 v23, v21, 1, 1')
    I('v_lshl_add_u32 v22, v23, 3, v22')
    I(f'v_add_u32 v22, s{sW4K}, v22')
    I('v_bfe_u32 v23, v21, 3, 1')
    I(f'v_lshl_add_u32 v{vA[0]}, v23, 6, v22')
    I('v_xor_b32 v23, 1, v23')
    I(f'v_lshl_add_u32 v{vA[1]}, v23, 6, v22')
    I(f'v_add_u32 v{vA[2]}, {2*SLOT}, v{vA[0]}')
    I(f'v_add_u32 v{vA[3]}, {2*SLOT}, v{vA[1]}')
    I('v_and_b32 v24, 31, v21')
    I('v_and_b32 v22, 15, v21')
    I('v_xor_b32 v22, v22, v18')
    I(f's_lshl_b32 s{t2}, s{sRH}, 3')
    I(f'v_xor_b32 v22, s{t2}, v22')
    I('v_lshlrev_b32 v24, 8, v24')
    I(f'v_add_u32 v24, {slot_of(16)}, v24')
    for s in range(8):
        I(f'v_xor_b32 v23, {2*s}, v22')
        I(f'v_lshl_add_u32 v{vKA[s]}, v23, 4, v24')
    I('v_lshrrev_b32 v24, 4, v21')
    I('v_and_b32 v22, 15, v21')
    I('v_xor_b32 v22, v22, v24')
    I('v_lshlrev_b32 v24, 8, v24')
    for j in range(4):
        I(f'v_xor_b32 v23, {4*j}, v22')
        I(f'v_lshl_add_u32 v{vKD[j]}, v23, 4, v24')
    I(f's_lshl_b32 s{t2}, s{sRH}, 14')
    I(f's_add_u32 s{t2}, s{t2}, {3*SLOT}')
    I(f'v_add_u32 v{vB[0]}, s{t2}, v{vLANE16}')
    I(f'v_xor_b32 v{vB[1]}, 0x4000, v{vB[0]}')
    I('v_mov_b32 v80, 0x3f80')
    I('v_mov_b32 v81, 0x3f800000')
    I('v_cvt_f32_u32 v26, v26')
    I('v_cmp_eq_u32 vcc, 0, v21')
    I('v_lshrrev_b32 v25, 3, v21')
    I('v_cmp_eq_u32 vcc, 0, v25')
    I('v_cndmask_b32 v25, 0, 16, vcc')
    STG = 3*SLOT + 32768 + 16384 + 8192
    I(f's_lshl_b32 s{t2}, s{sW}, 10')
    I(f's_add_u32 s{t2}, s{t2}, {STG}')
    I(f'v_lshl_add_u32 v24, v21, 3, s{t2}')
    I(f'v_lshl_add_u32 v23, v18, 5, s{t2}')
    for e in range(2):
        I(f'v_add_f32 v{MP+e}, v{MP+e}, v{MP+2+e}')
        I(f'v_add_f32 v{MP+4+e}, v{MP+4+e}, v{MP+6+e}')
    for e in range(2): I(f'v_add_f32 v{MP+e}, v{MP+e}, v{MP+4+e}')
    for e in range(2): rnd_bf16(a, MP+e, MP+e)
    for e in range(2): I(f'v_add_f32 v{MP+e}, v{MP+e}, v26')
    for e in range(2): rnd_bf16(a, MP+e, MP+e)
    I(f'v_lshrrev_b32 v{MP}, v25, v{MP}')
    I(f'ds_write_b64 v24, v[{MP}:{MP+1}]')
    MO = 96
    for j in range(4):
        for q, off in enumerate((0, 16, 64, 80)):
            I(f'ds_read_b128 v[{MO+16*j+4*q}:{MO+16*j+4*q+3}], v23 offset:{128*j + off}')
    TT = 64
    def hwrite(j, rh):
        return f'ds_write_b128 v{vHW}, v[{XR+8*j+4*rh}:{XR+8*j+4*rh+3}] offset:{(j >> 1)*32768 + (j & 1)*8192 + rh*16384}'
    for rh in range(2):
        xb = XR + 4*rh
        for d in range(4):
            I(f'v_dot2_f32_bf16 v{TT+2*d}, v{xb+d}, v{MO+2*d}, 0')
            I(f'v_dot2_f32_bf16 v{TT+2*d+1}, v{xb+d}, v{MO+2*d+1}, 0')
        for d in range(4):
            I(f'v_cvt_pk_bf16_f32 v{xb+d}, v{TT+2*d}, v{TT+2*d+1}')
        for d in range(4):
            I(f'v_dot2_f32_bf16 v{TT+8+2*d}, v{xb+d}, v80, v{MO+8+2*d}')
            I(f'v_dot2_f32_bf16 v{TT+8+2*d+1}, v{xb+d}, v81, v{MO+8+2*d+1}')
        for d in range(4):
            I(f'v_cvt_pk_bf16_f32 v{xb+d}, v{TT+8+2*d}, v{TT+8+2*d+1}')
        I(hwrite(0, rh))
    def modq(j):
        L = []
        sb = MO + 16*j
        for rh in range(2):
            for half in range(2):
                seq = []
                for d in (2*half, 2*half+1):
                    x = XR + 8*j + 4*rh + d; lo = TT + 2*d; hi = lo + 1
                    seq.append([f'v_lshlrev_b32 v{lo}, 16, v{x}', f'v_and_b32 v{hi}, 0xffff0000, v{x}',
                                f'v_mul_f32 v{lo}, v{sb+2*d}, v{lo}', f'v_mul_f32 v{hi}, v{sb+2*d+1}, v{hi}',
                                f'v_cvt_pk_bf16_f32 v{lo}, 0, v{lo}', f'v_cvt_pk_bf16_f32 v{hi}, 0, v{hi}',
                                f'v_add_f32 v{lo}, v{sb+8+2*d}, v{lo}', f'v_add_f32 v{hi}, v{sb+8+2*d+1}, v{hi}',
                                f'v_cvt_pk_bf16_f32 v{x}, v{lo}, v{hi}'])
                for k in range(0, 8, 2):
                    for q in seq: L += q[k:k+2]
                for q in seq: L.append(q[8])
            L.append(hwrite(j, rh))
        return L
    def a_reads(ph, kk, nt):
        e = kk % 6; sl = RING[ph][e]
        hi = sl >= 2
        off = (0 if hi else sl*SLOT) + (e & 1)*2048
        d = AF + 8*(kk & 1) + 4*nt
        return [f'ds_read_b64_tr_b16 v[{d+2*t}:{d+2*t+1}], v{vA[2*hi+nt]} offset:{off + 512*t} ; R:E{e}' for t in range(2)]
    def b_read(kk, b):
        d = BFB + 8*(kk & 1) + 4*b
        return f'ds_read_b128 v[{d}:{d+3}], v{vB[b]} offset:{(kk >> 4)*32768 + (kk & 15)*1024}'
    emit_order(late)
    for s in a_reads(0, 0, 0) + a_reads(0, 0, 1): I(s)
    I('s_waitcnt lgkmcnt(0)')
    I('s_barrier')
    st()

    def gemm_phase(ph, acc, tail, side, bars, lastorder=None):
        for kk in range(32):
            if kk in bars:
                I('s_waitcnt lgkmcnt(0)')
                I('s_barrier')
            buf = kk & 1
            pr = X.get('prio', (0, 8, 16, 24)) if isinstance(X, dict) else (0, 8, 16, 24)
            if ph == 0 and isinstance(X, dict) and kk in X.get('p2st', ()): st()
            if pr and kk in pr: I(f's_setprio {3 - pr.index(kk)}')
            order = [(0,0), (1,0), (0,1), (1,1)]
            if kk == 31 and lastorder: order = lastorder
            mf = []
            for (mt, b) in order:
                d = acc + 16*(2*b + mt)
                cc = '0' if kk == 0 else f'v[{d}:{d+15}]'
                A = AF + 8*buf + 4*mt; B = BFB + 8*buf + 4*b
                mf.append(f'v_mfma_f32_32x32x16_bf16 v[{d}:{d+15}], v[{A}:{A+3}], v[{B}:{B+3}], {cc}')
            if kk < 31:
                r0 = a_reads(ph, kk+1, 0) + [b_read(kk+1, 0)]
                r1 = a_reads(ph, kk+1, 1) + [b_read(kk+1, 1)]
            else:
                r0 = r1 = []
            if ph == 1 and isinstance(X, dict) and 'p4last' in X:
                last = X['p4last']
                js = [j for j in range(6, 32) if (((j-6)*last + 12)//25) == kk]
                dm = a_dma(ph, js[0]) if js else ['', '']
            elif kk + 6 < 32: dm = a_dma(ph, kk+6)
            else: dm = tail.get(kk, ['', ''])
            if ph == 1 and 'p4nodma' in X: dm = ['', '']
            if ph == 1 and 'p4noa' in X: r0 = r0[2:]; r1 = r1[2:]
            if ph == 1 and 'p4nob' in X: r0 = r0[:-1]; r1 = r1[:-1]
            main = [mf[0]] + r0 + [mf[1]] + r1 + [mf[2]] + ([dm[0]] if dm[0] else []) + [mf[3]] + ([dm[1]] if dm[1] else [])
            for s in interleave(main, side.get(kk, [])): I(s)

    def split(L, n):
        return [L[len(L)*i//n: len(L)*(i+1)//n] for i in range(n)]
    side = {}
    XD = X if isinstance(X, dict) else {}
    for j, k0, n in XD.get('mq', ((1, 0, 4), (2, 4, 4), (3, 8, 4))):
        for i, part in enumerate(split(modq(j), n)):
            side[k0 + i] = side.get(k0 + i, []) + part
    for tok, kk in XD.get('sl', ()):
        L = finload() if tok == 'f' else ['\n'.join(xnload(int(tok[1]))[2*i:2*i+2]) for i in range(2)]
        side[kk] = L + side.get(kk, [])
    fk = XD.get('fin', 14)
    side[fk] = side.get(fk, []) + finops
    p2bars = set(XD.get('bars', (6, 13)))
    tail = {}
    for kk, c, js in ((26, 16, (0,1)), (27, 16, (2,3)), (28, 17, (0,1)), (29, 17, (2,3))):
        L = kv_dma(c, js, tag=f'E{kk % 6}')
        tail[kk] = ['\n'.join(L[:3]), L[3]]
    for s in [b_read(0, 0), b_read(0, 1)]: I(s)
    gemm_phase(0, ACC, tail, side, p2bars, lastorder=[(0,1), (1,1), (0,0), (1,0)])
    st()
    QF2 = 32
    SB_ = [64, 96]
    VF = 128
    KF = AF
    vVA = vT3
    vMR = vMX
    def k_reads(t):
        L = []
        c = 16 + 2*(t//4)
        for s in range(8):
            if t % 4 == 0 and t > 0:
                delta = slot_of(c) - slot_of(c-2)
                if delta >= 0: L.append(f'v_add_u32 v{vKA[s]}, {delta}, v{vKA[s]}')
                else: L.append(f'v_subrev_u32 v{vKA[s]}, {-delta}, v{vKA[s]}')
            L.append(f'ds_read_b128 v[{KF+4*s}:{KF+4*s+3}], v{vKA[s]} offset:{(t%4)*8192}')
        return L
    def v_reads(kap):
        L = []
        c = 17 + 2*(kap//8); ks = kap % 8; buf = kap & 1
        if ks == 0:
            L.append(f'v_add_u32 v{vVA}, {slot_of(c)}, v{vLANE16}')
        for mt in range(4):
            d = VF + 16*buf + 4*mt
            L.append(f'ds_read_b128 v[{d}:{d+3}], v{vVA} offset:{ks*4096 + mt*1024}')
        return L
    I(f's_load_dwordx8 s[56:63], s[0:1], {KA_W1}')
    I(f'v_add_u32 v{vT0}, s{sW4K}, v{vLANE16}')
    I(f'v_xor_b32 v{vT1}, 0x1000, v{vT0}')
    EXP = 64
    for q in range(4):
        for j in range(4*q, 4*q+4):
            I(f'v_cvt_pk_bf16_f32 v{EXP+j}, v{ACC+32+2*j}, v{ACC+32+2*j+1}')
        I(f'ds_write_b128 v{vT0}, v[{EXP+4*q}:{EXP+4*q+3}] offset:{1024*q}')
    for j in range(16):
        I(f'v_cvt_pk_bf16_f32 v{QF2+j}, v{ACC+2*j}, v{ACC+2*j+1}')
    CEXP = 1.4426950408889634 * 128 ** -0.5
    I(f's_mov_b32 s51, {f32bits(CEXP):#x}')
    I(f's_mov_b32 s50, {f32bits(48.0 / CEXP):#x}')
    for l in vL: I(f'v_mov_b32 v{l}, 0')
    a.wait_tags(['C16'], lg=True)
    I('s_barrier')
    kr = k_reads(0)
    for s in kr[:4]: I(s)
    for q in range(4):
        I(kr[4+q])
        I(f'ds_read_b128 v[{QF2+16+4*q}:{QF2+16+4*q+3}], v{vT1} offset:{1024*q}')
    def s_mfmas(u):
        seq = []
        for tt in range(2):
            t = 2*u + tt
            b = SB_[u & 1] + 16*tt
            reads = k_reads(t+1) if t < 15 else []
            ri = 0
            for s in range(8):
                cc = '0' if s == 0 else f'v[{b}:{b+15}]'
                grp = [f'v_mfma_f32_32x32x16_bf16 v[{b}:{b+15}], v[{KF+4*s}:{KF+4*s+3}], v[{QF2+4*s}:{QF2+4*s+3}], {cc}']
                while ri < len(reads):
                    grp.append(reads[ri]); ri += 1
                    if reads[ri-1].startswith('ds_read'): break
                seq.append('\n'.join(grp))
        return seq
    def pv_mfmas(u, j):
        kap = 4*u + j; buf = kap & 1
        p = SB_[u & 1] + 8*j
        L = []
        for mt in range(4):
            d = ACC + 16*mt
            cc = '0' if kap == 0 else f'v[{d}:{d+15}]'
            L.append(f'v_mfma_f32_32x32x16_bf16 v[{d}:{d+15}], v[{VF+16*buf+4*mt}:{VF+16*buf+4*mt+3}], v[{p}:{p+3}], {cc}')
        return L
    def max_ops(u, tt):
        b = SB_[u & 1] + 16*tt
        L = []
        for i in range(8):
            if tt == 0 and i == 0:
                L.append(f'v_max_f32 v{vT0}, v{b}, v{b+1}')
            else:
                L.append(f'v_max3_f32 v{vT0}, v{b+2*i}, v{b+2*i+1}, v{vT0}')
        return L
    def p_ops(u, j):
        b = SB_[u & 1] + 8*j
        L = []
        for e in range(8):
            L.append(f'v_fma_f32 v{b+e}, v{b+e}, s51, v{vNEGM}')
        for e in range(8):
            L.append(f'v_exp_f32 v{b+e}, v{b+e}')
        for d in range(4):
            L.append(f'v_add_f32 v{vL[d]}, v{vL[d]}, v{b+2*d}')
            L.append(f'v_add_f32 v{vL[d]}, v{vL[d]}, v{b+2*d+1}')
            L.append(f'v_cvt_pk_bf16_f32 v{b+d}, v{b+2*d}, v{b+2*d+1}')
        return L
    rare = []
    extra = kv_dma(18) + kv_dma(19) + touch_ops('wo')
    for s in extra[:6]: I(s)
    sm = s_mfmas(0)
    for s in merge(sm[:10], extra[6:]): I(s)
    for s in merge(sm[10:], max_ops(0, 0)): I(s)
    for s in max_ops(0, 1): I(s)
    tops = {0: (['C18', 'C17'], kv_dma(20)), 1: (['C19'], kv_dma(21)), 2: (['C20'], kv_dma(22) + touch_ops('wb')), 3: (['C21'], kv_dma(23)),
            4: (['C22'], a_dma(1, 0) + a_dma(1, 1)), 5: (['C23'], a_dma(1, 2) + a_dma(1, 3)), 6: None,
            7: ([], a_dma(1, 4) + a_dma(1, 5))}
    p4set = [f'v_add_u32 v{vA[2]}, {2*SLOT}, v{vA[2]}', f'v_add_u32 v{vA[3]}, {2*SLOT}, v{vA[3]}',
             f'v_add_u32 v{vB[0]}, {2*SLOT}, v{vLANE16}', f'v_add_u32 v{vB[1]}, {2*SLOT + 16384}, v{vLANE16}',
             f's_lshl_b32 s{t0}, s{sRH}, 14\ns_lshl_b32 s{t1}, s{sHD}, 12\ns_add_u32 s{t0}, s{t0}, s{t1}\ns_add_u32 s{t0}, s{t0}, {2*SLOT}',
             f'v_add_u32 v{vKA[0]}, s{t0}, v{vLANE16}']
    for u in range(8):
        I(f'v_mov_b32 v{vT1}, v{vT0}')
        I(f'v_permlane32_swap_b32 v{vT0}, v{vT1}')
        I(f'v_max_f32 v{vT0}, v{vT0}, v{vT1}')
        if u == 0:
            I(f'v_mov_b32 v{vMR}, v{vT0}')
            I(f'v_mul_f32 v{vNEGM}, s51, v{vMR}')
            I(f'v_sub_f32 v{vNEGM}, {OFFS}, v{vNEGM}')
        else:
            I(f'v_add_f32 v{vT1}, s50, v{vMR}')
            I(f'v_cmp_gt_f32 vcc, v{vT0}, v{vT1}')
            I('s_nop 1')
            I(f's_cbranch_vccnz K1_rs{u}')
            a.out.append(f'K1_rb{u}:')
            R = [f'K1_rs{u}:', 's_nop 15', 's_nop 15',
                 f'v_max_f32 v{vT1}, v{vT0}, v{vMR}', f'v_sub_f32 v{vT0}, v{vMR}, v{vT1}', f'v_mul_f32 v{vT0}, s51, v{vT0}', f'v_exp_f32 v{vT0}, v{vT0}',
                 f'v_mov_b32 v{vMR}, v{vT1}', f'v_mul_f32 v{vNEGM}, s51, v{vMR}', f'v_sub_f32 v{vNEGM}, {OFFS}, v{vNEGM}']
            R += [f'v_mul_f32 v{ACC+i}, v{ACC+i}, v{vT0}' for i in range(64)]
            R += [f'v_mul_f32 v{l}, v{l}, v{vT0}' for l in vL]
            R += ['s_nop 3', f's_branch K1_rb{u}']
            rare += R
        extra = []
        if tops[u] is not None:
            a.wait_tags(tops[u][0])
            I('s_barrier')
            extra = tops[u][1]
        if u == 0: extra = extra + v_reads(0)
        if u < 7:
            sm = s_mfmas(u+1)
            for s in merge(sm, extra, p_ops(u, 0) + p_ops(u, 1) + p_ops(u, 2)[:12]): I(s)
            rest = p_ops(u, 2)[12:] + p_ops(u, 3)
            mx = max_ops(u+1, 0) + max_ops(u+1, 1)
            side = {0: rest[:16+6], 1: rest[22:], 2: mx[:8], 3: mx[8:]}
        else:
            for s in merge(extra, p_ops(u, 0)): I(s)
            side = {0: p_ops(u, 1) + p4set[:3], 1: p_ops(u, 2) + p4set[3:], 2: p_ops(u, 3), 3: []}
        for j in range(4):
            kap = 4*u + j
            pre = v_reads(kap+1) if kap < 31 else []
            sd = side[j]
            if u == 7 and j == 3:
                sd = [f'v_add_f32 v{vL[0]}, v{vL[0]}, v{vL[1]}', f'v_add_f32 v{vL[2]}, v{vL[2]}, v{vL[3]}', f'v_add_f32 v{vL[0]}, v{vL[0]}, v{vL[2]}',
                      f'v_mov_b32 v{vL[1]}, v{vL[0]}', 's_nop 1', f'v_permlane32_swap_b32 v{vL[0]}, v{vL[1]}', f'v_add_f32 v{vL[0]}, v{vL[0]}, v{vL[1]}', f'v_rcp_f32 v{vL[0]}, v{vL[0]}']
                pre = a_reads(1, 0, 0) + a_reads(1, 0, 1)
            for s in merge(pv_mfmas(u, j), pre, sd): I(s)
    st()
    OWN = 32; ACC4 = 64
    def norm(q):
        L = []
        for j in range(4*q, 4*q+4):
            L.append(f'v_mul_f32 v{ACC+2*j}, v{ACC+2*j}, v{vL[0]}')
            L.append(f'v_mul_f32 v{ACC+2*j+1}, v{ACC+2*j+1}, v{vL[0]}')
        for j in range(4*q, 4*q+4):
            L.append(f'v_cvt_pk_bf16_f32 v{OWN+j}, v{ACC+2*j}, v{ACC+2*j+1}')
        L.append(f'ds_write_b128 v{vKA[0]}, v[{OWN+4*q}:{OWN+4*q+3}] offset:{(q >> 2)*32768 + 1024*(q & 3)}')
        return L
    for q in range(4):
        for s in norm(q): I(s)
    I('s_waitcnt lgkmcnt(0)')
    I('s_barrier')
    for s in [b_read(0, 0), b_read(0, 1)]: I(s)
    for s in norm(4): I(s)
    st()
    side = {0: norm(5), 1: norm(6), 2: norm(7)}
    gemm_phase(1, ACC4, {}, side, set() if 'nox2' in X else ({X['x2at']} if isinstance(X, dict) and 'x2at' in X else {5}))
    st()
    I(f's_lshl_b32 s{t0}, s{sG}, 21')
    I(f's_lshl_b32 s{t1}, s{sRB}, 16')
    I(f's_add_u32 s{t0}, s{t0}, s{t1}')
    I(f's_add_u32 s{t0}, s{t0}, s{sW4K}')
    I(f's_add_u32 s{t0}, s{t0}, {WS_P:#x}')
    I(f's_add_u32 s{t1}, s{t0}, 32768')
    pace = X.get('pace') if isinstance(X, dict) else None
    def stores(pc):
        for j in range(32):
            I(f'v_cvt_pk_bf16_f32 v{OWN+j}, v{ACC4+2*j}, v{ACC4+2*j+1}')
            if j % 4 == 3:
                q = j // 4
                so = f's{t0}' if q < 4 else f's{t1}'
                if pc is not None and q > pc: I(f's_waitcnt vmcnt({pc})')
                I(f'buffer_store_dwordx4 v[{OWN+4*q}:{OWN+4*q+3}], v{vLANE16}, s[{sWS}:{sWS+3}], {so} offen offset:{1024*(q%4)}')
    if pace is not None:
        I(f's_cmp_ge_u32 s{sW}, 4')
        I('s_cbranch_scc1 K1_st2')
        I('s_nop 15')
        stores(pace)
        I('s_branch K1_st3')
        a.label('K1_st2')
        I('s_nop 15')
        stores(None)
        a.label('K1_st3')
    else:
        stores(None)
    if stamps:
        I(f'v_lshrrev_b32 v{vT3}, 4, v{vLANE16}')
        st.flush(sWS, sW, 200, vT3)
    a.label('K1_end')
    I('s_endpgm')
    for r in rare:
        a.out.append(r if r.endswith(':') else '    ' + r)
    print("K1 instrs", a.ninstr, "nops", a.nnop)
    return a.text(), kernel_desc(name, 256, 102)
```

```python
from common import *
from k2 import gelu_ops, ident_frags, ln_rstd, LOG2E

NWG23 = 171
def gen_k23(name, stamps=False):
    a = Asm()
    st = Stamper(a, stamps, 2)
    kernel_header(a, name)
    I = a.I
    L_HB, L_T, L_S2, L_S3, L_S4, L_W = 0, 16384, 32768, 33792, 34816, 35840 + 1024
    NLD = 14
    L_W = 36864
    vLANE, vL16 = 1, 2
    vFO = 3
    A0, A1 = 4, 8
    T = [12,13,14,15,16,17,18,19]
    XR = 20
    U = 28
    GA = 32; D = 48; TB = 64; SB = 80
    P = 64
    vSO = 4
    SH = [5,6,7,8]
    HBK = 120
    I(f's_cmp_ge_u32 s2, {NWG23}')
    I('s_cbranch_scc1 K23_end')
    I(f's_load_dwordx2 s[4:5], s[0:1], {KA_X}')
    I(f's_load_dwordx2 s[32:33], s[0:1], {KA_WS}')
    I(f'v_and_b32 v{vLANE}, 63, v0')
    I('v_lshrrev_b32 v3, 6, v0')
    I('s_nop 0')
    I('v_readfirstlane_b32 s34, v3')
    I('s_mul_i32 s35, s2, 12')
    I('s_sub_u32 s35, s35, 2')
    I(f'v_lshlrev_b32 v{vL16}, 4, v{vLANE}')
    I(f'v_and_b32 v{T[0]}, 15, v{vLANE}')
    I(f'v_bfe_u32 v{T[1]}, v{vLANE}, 4, 1')
    I(f'v_lshrrev_b32 v{T[2]}, 5, v{vLANE}')
    I(f'v_add_u32 v{T[3]}, s35, v{T[0]}')
    I(f'v_and_b32 v{T[4]}, 31, v{T[3]}')
    I(f'v_lshl_add_u32 v{T[4]}, v{T[2]}, 5, v{T[4]}')
    I(f'v_lshlrev_b32 v{T[4]}, 4, v{T[4]}')
    I(f'v_lshl_add_u32 v{T[4]}, v{T[1]}, 10, v{T[4]}')
    I(f'v_lshrrev_b32 v{T[5]}, 5, v{T[3]}')
    I(f'v_lshl_add_u32 v{T[4]}, v{T[5]}, 15, v{T[4]}')
    I(f'v_cmp_gt_u32 s[56:57], 2048, v{T[3]}' if False else f'v_mov_b32 v{T[5]}, 2048')
    I(f'v_cmp_lt_u32 s[56:57], v{T[3]}, v{T[5]}')
    I(f'v_mov_b32 v{T[5]}, 0xf0000000')
    I(f'v_cndmask_b32 v{vFO}, v{T[5]}, v{T[4]}, s[56:57]')
    I('s_waitcnt lgkmcnt(0)')
    st.first()
    srd(a, 8, 4, 5, 2048*1024)
    srd(a, 24, 32, 33, WS_SIZE)
    I('s_lshl_b32 s41, s34, 12')
    I(f's_add_u32 s42, s41, {WS_P:#x}')
    pl = []
    for g in range(8):
        for f in range(2):
            r = P + 8*g + 4*f
            pl.append(f's_add_u32 s43, s42, {g*2097152:#x}\nbuffer_load_dwordx4 v[{r}:{r+3}], v{vFO}, s[24:27], s43 offen offset:{2048*f}')
    for s in pl[:8]: I(s)
    I(f'v_lshlrev_b32 v{T[4]}, 10, v{T[3]}')
    I(f'v_lshl_add_u32 v{T[4]}, v{T[1]}, 5, v{T[4]}')
    I(f'v_lshl_add_u32 v{T[4]}, v{T[2]}, 4, v{T[4]}')
    I(f'v_cndmask_b32 v{T[4]}, v{T[5]}, v{T[4]}, s[56:57]')
    I('s_lshl_b32 s43, s34, 7')
    for f in range(2):
        I(f'buffer_load_dwordx4 v[{XR+4*f}:{XR+4*f+3}], v{T[4]}, s[8:11], s43 offen offset:{64*f}')
    I(f'v_lshlrev_b32 v{T[4]}, 6, v{T[1]}')
    I(f'v_lshl_add_u32 v{T[4]}, v{T[2]}, 5, v{T[4]}')
    I('s_lshl_b32 s44, s34, 8')
    I(f's_add_u32 s44, s44, {WS_MOD:#x}')
    def modloads(lst):
        L = []
        for vec, base in lst:
            for f in range(2):
                for h2 in range(2):
                    r = base + 8*f + 4*h2
                    L.append(f's_add_u32 s43, s44, {2048*vec}\nbuffer_load_dwordx4 v[{r}:{r+3}], v{T[4]}, s[24:27], s43 offen offset:{128*f + 16*h2}')
        return L
    for s in modloads([(0, GA)]): I(s)
    for s in pl[8:]: I(s)
    I('s_lshl_b32 s46, s34, 16')
    I(f's_add_u32 s47, s46, {WS_W2P:#x}')
    I(f's_add_u32 s46, s46, {WS_W1P:#x}')
    NREG = 128 - NLD
    def aload(i):
        j = i % 64; ks, mt = j // 4, j % 4
        sb = 's46' if i < 64 else 's47'
        off = mt*16384 + ks*1024
        slot = i % 32
        return f's_add_u32 s48, {sb}, {off & ~4095}\nbuffer_load_dwordx4 a[{4*slot}:{4*slot+3}], v{vL16}, s[24:27], s48 offen offset:{off & 4095}'
    def adma(i):
        j = i % 64; ks, mt = j // 4, j % 4
        off = mt*16384 + ks*1024
        return f's_add_u32 s49, s45, {(i-NREG)*1024}\ns_mov_b32 m0, s49\ns_add_u32 s48, s47, {off}\nbuffer_load_dwordx4 v{vL16}, s[24:27], s48 offen lds'
    I(f's_mul_i32 s45, s34, {NLD*1024}')
    I(f's_add_u32 s45, s45, {L_W}')
    for i in range(16): I(aload(i))
    ident_frags(a, vLANE, A0, A1, T[5], T[6], T[7])
    I('s_mov_b32 s52, 0xffff0000')
    I('s_mov_b32 s53, 0x3f803f80')
    for i in range(16, 32): I(aload(i))
    st()
    first = True
    for g in range(8):
        for f in range(2):
            r = P + 8*g + 4*f
            A = A0 if f == 0 else A1
            cc = '0' if first else f'v[{D}:{D+15}]'
            I(f'v_mfma_f32_32x32x16_bf16 v[{D}:{D+15}], v[{A}:{A+3}], v[{r}:{r+3}], {cc}')
            first = False
    I('s_nop 7')
    x1o = []
    for e in range(0, 16, 2):
        r = D + e; u = U + 2*((e//2) % 2); xr = XR + e//2
        x1o.append(f'v_lshlrev_b32 v{u}, 16, v{xr}')
        x1o.append(f'v_and_b32 v{u+1}, s52, v{xr}')
        x1o.append(f'v_pk_fma_f32 v[{r}:{r+1}], v[{r}:{r+1}], v[{GA+e}:{GA+e+1}], v[{u}:{u+1}]')
        x1o.append(f'v_cvt_pk_bf16_f32 v{xr}, v{r}, v{r+1}')
        x1o.append(f'v_lshlrev_b32 v{r}, 16, v{xr}')
        x1o.append(f'v_and_b32 v{r+1}, s52, v{xr}')
    for s in merge(x1o, modloads([(2, TB), (1, SB)])): I(s)
    I(f'v_subrev_u32 v{T[5]}, 2, v{T[0]}')
    I(f'v_cmp_gt_u32 vcc, 12, v{T[5]}')
    I(f'v_mov_b32 v{T[5]}, 0xf0000000')
    I(f'v_cndmask_b32 v{vSO}, v{T[5]}, v{vFO}, vcc')
    def stats_local(mean, var):
        I(f'v_mov_b32 v{mean}, 0'); I(f'v_mov_b32 v{var}, 0'); I(f'v_mov_b32 v{T[6]}, 0'); I(f'v_mov_b32 v{T[7]}, 0')
        for j in range(0, 8, 2):
            I(f'v_dot2_f32_bf16 v{mean}, v{XR+j}, s53, v{mean}')
            I(f'v_dot2_f32_bf16 v{var}, v{XR+j}, v{XR+j}, v{var}')
            I(f'v_dot2_f32_bf16 v{T[6]}, v{XR+j+1}, s53, v{T[6]}')
            I(f'v_dot2_f32_bf16 v{T[7]}, v{XR+j+1}, v{XR+j+1}, v{T[7]}')
        I('s_nop 2')
        I(f'v_add_f32 v{mean}, v{mean}, v{T[6]}')
        I(f'v_add_f32 v{var}, v{var}, v{T[7]}')
        for op in ('v_permlane16_swap_b32', 'v_permlane32_swap_b32'):
            I(f'v_mov_b32 v{T[6]}, v{mean}'); I(f'v_mov_b32 v{T[7]}, v{var}')
            I(f'{op} v{mean}, v{T[6]}'); I(f'{op} v{var}, v{T[7]}')
            I(f'v_add_f32 v{mean}, v{mean}, v{T[6]}'); I(f'v_add_f32 v{var}, v{var}, v{T[7]}')
    def stats_write(area, mean, var):
        I(f'v_lshlrev_b32 v{T[5]}, 3, v{T[0]}')
        I('s_lshl_b32 s48, s34, 7')
        I(f's_add_u32 s48, s48, {area}')
        I(f'v_add_u32 v{T[6]}, s48, v{T[5]}')
        I(f'ds_write_b64 v{T[6]}, v[{mean}:{var}]')
    def stats_read(area, mean, var, R):
        for w in range(8):
            I(f'ds_read_b64 v[{R+2*w}:{R+2*w+1}], v{T[5]} offset:{area + 128*w}')
        for stp in (4, 2, 1):
            for w in range(stp):
                I(f'v_pk_add_f32 v[{R+2*w}:{R+2*w+1}], v[{R+2*w}:{R+2*w+1}], v[{R+2*(w+stp)}:{R+2*(w+stp)+1}]')
        I(f'v_mul_f32 v{mean}, {f32bits(1.0/512):#x}, v{R}')
        I(f'v_mul_f32 v{var}, {f32bits(1.0/512):#x}, v{R+1}')
        I(f'v_fma_f32 v{var}, -v{mean}, v{mean}, v{var}')
        I(f'v_max_f32 v{var}, 0, v{var}')
        ln_rstd(a, var, mean)
    M, V = 10, 11
    stats_local(M, V)
    stats_write(L_S2, M, V)
    I(f's_add_u32 s43, s41, {WS_X1:#x}')
    for f in range(2):
        I(f'buffer_store_dwordx4 v[{XR+4*f}:{XR+4*f+3}], v{vSO}, s[24:27], s43 offen offset:{2048*f}')
    for i in range(NREG, NREG + NLD//2): I(adma(i))
    I('s_waitcnt lgkmcnt(0)')
    I('s_barrier')
    stats_read(L_S2, M, V, GA)
    st()
    I(f'v_sub_f32 v{U}, 0, v{M}'); I(f'v_sub_f32 v{U+1}, 0, v{M}')
    I(f'v_mov_b32 v{U+2}, v{V}'); I(f'v_mov_b32 v{U+3}, v{V}')
    for e in range(0, 16, 2):
        r = D + e
        I(f'v_pk_add_f32 v[{r}:{r+1}], v[{r}:{r+1}], v[{U}:{U+1}]')
        I(f'v_pk_mul_f32 v[{TB+e}:{TB+e+1}], v[{TB+e}:{TB+e+1}], v[{U+2}:{U+3}]')
        I(f'v_pk_fma_f32 v[{r}:{r+1}], v[{r}:{r+1}], v[{TB+e}:{TB+e+1}], v[{SB+e}:{SB+e+1}]')
        I(f'v_cvt_pk_bf16_f32 v{XR+e//2}, v{r}, v{r+1}')
    I('s_lshl_b32 s48, s34, 11')
    I(f'v_add_u32 v{T[4]}, s48, v{vL16}')
    for f in range(2):
        I(f'ds_write_b128 v{T[4]}, v[{XR+4*f}:{XR+4*f+3}] offset:{L_HB + 1024*f}')
    stats_local(M, V)
    stats_write(L_S3, M, V)
    for i in range(NREG + NLD//2, 128): I(adma(i))
    I(f'v_and_b32 v{T[6]}, 48, v{vLANE}')
    for gi, sh in enumerate((-1, 1, -2, 2)):
        I(f'v_add_u32 v{T[7]}, {sh}, v{T[0]}')
        I(f'v_and_b32 v{T[7]}, 15, v{T[7]}')
        I(f'v_add_u32 v{T[7]}, v{T[7]}, v{T[6]}')
        I(f'v_lshlrev_b32 v{SH[gi]}, 4, v{T[7]}')
    I('s_waitcnt lgkmcnt(0)')
    I('s_barrier')
    st()
    BF = P
    for ks in range(16):
        I(f'ds_read_b128 v[{BF+4*ks}:{BF+4*ks+3}], v{vL16} offset:{L_HB + 1024*ks}')
    stats_read(L_S3, M, V, GA)
    CS = GA
    I(f'v_lshrrev_b32 v{T[6]}, 4, v{vLANE}')
    I(f'v_lshlrev_b32 v{T[6]}, 5, v{T[6]}')
    I('s_lshl_b32 s48, s34, 8')
    I(f's_add_u32 s54, s48, {WS_CS1:#x}')
    for f in range(2):
        for h2 in range(2):
            I(f'buffer_load_dwordx4 v[{CS+8*f+4*h2}:{CS+8*f+4*h2+3}], v{T[6]}, s[24:27], s54 offen offset:{128*f + 16*h2}')
    ACC = D
    for i in range(64):
        ks, mt = i // 4, i % 4
        b = ACC + 4*mt
        cc = '0' if ks == 0 else f'v[{b}:{b+3}]'
        slot = i % 32
        I(f'v_mfma_f32_16x16x32_bf16 v[{b}:{b+3}], a[{4*slot}:{4*slot+3}], v[{BF+4*ks}:{BF+4*ks+3}], {cc}')
        if i + 32 < NREG: I(aload(i + 32))
    st()
    c0 = -2.0 * (2.0/3.141592653589793) ** 0.5 * LOG2E
    I(f's_mov_b32 s50, {f32bits(c0*0.044715):#x}')
    I(f'v_mov_b32 v{T[7]}, {f32bits(c0):#x}')
    for h in range(2):
        ep = []
        for e in range(8*h, 8*h+8):
            r = ACC + e
            L = [f'v_fma_f32 v{r}, -v{M}, v{CS+e}, v{r}', f'v_mul_f32 v{r}, v{r}, v{V}']
            L += gelu_ops(r, BF + (e % 8), 'v%d' % T[7], 's50')
            ep.append(L)
        for j in range(len(ep[0])):
            for L in ep: I(L[j])
    for j in range(8):
        I(f'v_cvt_pk_bf16_f32 v{BF+8+j}, v{ACC+2*j}, v{ACC+2*j+1}')
        I(f'v_cndmask_b32 v{BF+8+j}, 0, v{BF+8+j}, s[56:57]')
    for f in range(2):
        I(f'ds_write_b128 v{T[4]}, v[{BF+8+4*f}:{BF+8+4*f+3}] offset:{L_T + 1024*f}')
    I('s_waitcnt lgkmcnt(0)')
    I('s_barrier')
    for ks in range(16):
        I(f'ds_read_b128 v[{BF+4*ks}:{BF+4*ks+3}], v{SH[ks//4]} offset:{L_T + 1024*ks}')
    st()
    I(f'v_add_u32 v{T[6]}, s45, v{vL16}')
    LB = GA
    for i in range(64, 128):
        j = i - 64
        ks, mt = j // 4, j % 4
        b = ACC + 4*mt
        cc = '0' if ks == 0 else f'v[{b}:{b+3}]'
        if i == NREG - 4:
            I('s_waitcnt vmcnt(4)')
        if NREG - 4 <= i < 128 - 4:
            k2 = i + 4 - NREG
            I(f'ds_read_b128 v[{LB+4*(k2%4)}:{LB+4*(k2%4)+3}], v{T[6]} offset:{1024*k2}')
        if i < NREG:
            slot = i % 32
            I(f'v_mfma_f32_16x16x32_bf16 v[{b}:{b+3}], a[{4*slot}:{4*slot+3}], v[{BF+4*ks}:{BF+4*ks+3}], {cc}')
            if i + 32 < NREG: I(aload(i + 32))
        else:
            k2 = i - NREG
            I(f'v_mfma_f32_16x16x32_bf16 v[{b}:{b+3}], v[{LB+4*(k2%4)}:{LB+4*(k2%4)+3}], v[{BF+4*ks}:{BF+4*ks+3}], {cc}')
    st()
    for e in range(0, 16, 2):
        r = ACC + e; u = U + 2*((e//2) % 2); xr = XR + e//2
        I(f'v_lshlrev_b32 v{u}, 16, v{xr}')
        I(f'v_and_b32 v{u+1}, s52, v{xr}')
        I(f'v_pk_add_f32 v[{r}:{r+1}], v[{r}:{r+1}], v[{u}:{u+1}]')
        I(f'v_cvt_pk_bf16_f32 v{xr}, v{r}, v{r+1}')
    I(f's_add_u32 s43, s41, {WS_X1B:#x}')
    for f in range(2):
        I(f'buffer_store_dwordx4 v[{XR+4*f}:{XR+4*f+3}], v{vSO}, s[24:27], s43 offen offset:{2048*f}')
    stats_local(M, V)
    stats_write(L_S4, M, V)
    I('s_waitcnt lgkmcnt(0)')
    I('s_barrier')
    I('s_cmp_eq_u32 s34, 0')
    I('s_cbranch_scc0 K23_fin')
    stats_read(L_S4, M, V, GA)
    I(f'v_lshlrev_b32 v{T[6]}, 3, v{T[3]}')
    I(f'v_subrev_u32 v{T[7]}, 2, v{vLANE}')
    I(f'v_cmp_gt_u32 vcc, 12, v{T[7]}')
    I('s_and_b64 vcc, vcc, s[56:57]')
    I(f'v_mov_b32 v{T[7]}, 0xf0000000')
    I(f'v_cndmask_b32 v{T[6]}, v{T[7]}, v{T[6]}, vcc')
    I(f's_mov_b32 s43, {WS_ST4:#x}')
    I(f'buffer_store_dwordx2 v[{M}:{V}], v{T[6]}, s[24:27], s43 offen')
    a.label('K23_fin')
    st.flush(24, 34, 100, vLANE)
    a.label('K23_end')
    I('s_endpgm')
    print("K23 instrs", a.ninstr, "nops", a.nnop)
    return a.text(), kernel_desc(name, 256, 96, accum=128)
```

```python
from common import *
from k2 import gelu_ops, ln_rstd, LOG2E

def gen_k4(name, stamps=False, nt0=2, direct=True):
    a = Asm()
    st = Stamper(a, stamps, 4)
    kernel_header(a, name)
    I = a.I
    vLANE, vL16 = 1, 2
    T = [4,5,6,7,8,9,10,11]
    AD = [12,13,14,15]
    M4, V4 = 20, 21
    OUTP = 24
    ST = 96
    ACC = 64
    AFR = 40
    CS = 32
    NRING = 6
    L_CS = 131072
    BF = 0
    I('s_cmp_ge_u32 s2, 224')
    I('s_cbranch_scc1 K4_end')
    I(f's_load_dwordx2 s[6:7], s[0:1], {KA_W3}')
    I(f's_load_dwordx2 s[32:33], s[0:1], {KA_WS}')
    I(f'v_and_b32 v{vLANE}, 63, v0')
    I('v_lshrrev_b32 v3, 6, v0')
    I('s_nop 0')
    I('v_readfirstlane_b32 s55, v3')
    I('s_and_b32 s34, s55, 3')
    I('s_and_b32 s35, s2, 7')
    I('s_lshr_b32 s36, s2, 3')
    I('s_mul_i32 s37, s36, 37')
    I('s_lshr_b32 s37, s37, 8')
    I('s_mul_i32 s38, s37, 7')
    I('s_sub_u32 s36, s36, s38')
    I('s_and_b32 s38, s35, 1')
    I('s_mul_i32 s38, s38, 7')
    I('s_add_u32 s36, s36, s38')
    I('s_lshr_b32 s35, s35, 1')
    I('s_lshl_b32 s35, s35, 2')
    I('s_add_u32 s35, s35, s37')
    I('s_lshl_b32 s40, s35, 2')
    I('s_add_u32 s40, s40, s34')
    I(f'v_lshlrev_b32 v{vL16}, 4, v{vLANE}')
    I('s_waitcnt lgkmcnt(0)')
    st.first()
    srd(a, 12, 6, 7, 512*3584)
    srd(a, 24, 32, 33, WS_SIZE)
    I(f'v_lshrrev_b32 v{T[0]}, 3, v{vLANE}')
    I(f'v_and_b32 v{T[1]}, 7, v{vLANE}')
    I(f'v_bfe_u32 v{T[2]}, v{vLANE}, 4, 1')
    I(f'v_lshlrev_b32 v{T[2]}, 2, v{T[2]}')
    I(f'v_xor_b32 v{T[1]}, v{T[1]}, v{T[2]}')
    I(f'v_lshlrev_b32 v{T[1]}, 4, v{T[1]}')
    I(f'v_mul_u32_u24 v{T[0]}, 3584, v{T[0]}')
    I(f'v_add_u32 v{T[4]}, v{T[1]}, v{T[0]}')
    I(f's_mul_i32 s45, s34, {8*3584}')
    I('s_lshl_b32 s46, s36, 8')
    I('s_add_u32 s45, s45, s46')
    I('s_lshl_b32 s46, s34, 10')
    def dma(hf, j):
        return [f's_add_u32 s47, s46, {hf*65536 + j*4096}', 's_mov_b32 m0, s47',
                f's_add_u32 s48, s45, {hf*128 + j*32*3584}',
                f'buffer_load_dwordx4 v{T[4]}, s[12:15], s48 offen lds']
    I('s_lshl_b32 s49, s40, 15')
    I(f's_add_u32 s49, s49, {WS_X1B:#x}')
    def bload(ks):
        L = []
        if ks % 4 == 0 and ks > 0: L.append('s_add_u32 s49, s49, 4096')
        L.append(f'buffer_load_dwordx4 a[{BF+4*ks}:{BF+4*ks+3}], v{vL16}, s[24:27], s49 offen offset:{1024*(ks%4)}')
        return L
    I('s_cmp_ge_u32 s55, 4')
    I('s_cbranch_scc0 K4_comp')
    I('s_lshl_b32 s51, s36, 9')
    I(f's_add_u32 s51, s51, {WS_CS3:#x}')
    I(f's_mov_b32 m0, {L_CS}')
    I('s_mov_b32 exec_hi, 0')
    I(f'buffer_load_dwordx4 v{vL16}, s[24:27], s51 offen lds')
    I('s_mov_b32 exec_hi, -1')
    n_save = st.n
    AH = 3
    def grp(q):
        for j in range(2*q, 2*q+2):
            for hf in range(2):
                for s in dma(hf, j): I(s)
    for q in range(AH): grp(q)
    for q in range(8):
        out = min(8, q + AH) - (q + 1)
        I(f's_waitcnt vmcnt({4*out})')
        st()
        I('s_barrier')
        if q + AH < 8: grp(q + AH)
    st.kidx = 6
    st.flush(24, 55, 22, vLANE)
    st.kidx = 4; st.n = n_save
    I('s_branch K4_end')
    a.label('K4_comp')
    for ks in range(8):
        for s in bload(ks): I(s)
    if direct:
        I(f'v_and_b32 v{T[0]}, 31, v{vLANE}')
        I(f'v_lshlrev_b32 v{T[0]}, 3, v{T[0]}')
        I('s_lshl_b32 s50, s40, 8')
        I(f's_add_u32 s50, s50, {WS_ST4:#x}')
        I(f'buffer_load_dwordx2 v[{M4}:{V4}], v{T[0]}, s[24:27], s50 offen')
    else:
        I(f'v_and_b32 v{T[0]}, 31, v{vLANE}')
        I(f'v_lshlrev_b32 v{T[0]}, 7, v{T[0]}')
        I('s_lshl_b32 s50, s40, 12')
        I(f's_add_u32 s50, s50, {WS_ST4:#x}')
        for j in range(8):
            I(f'buffer_load_dwordx4 v[{ST+4*j}:{ST+4*j+3}], v{T[0]}, s[24:27], s50 offen offset:{16*j}')
    for ks in range(8, 16):
        for s in bload(ks): I(s)
    brest = ['\n'.join(bload(ks)) for ks in range(16, 32)]
    I(f'v_lshrrev_b32 v{T[6]}, 5, v{vLANE}')
    I(f'v_bfe_u32 v{T[7]}, v{vLANE}, 2, 2')
    I(f'v_lshl_add_u32 v{T[6]}, v{T[6]}, 3, v{T[7]}')
    I(f'v_lshlrev_b32 v{T[6]}, 7, v{T[6]}')
    I(f'v_bfe_u32 v{T[5]}, v{vLANE}, 4, 1')
    I(f'v_lshl_add_u32 v{T[6]}, v{T[5]}, 5, v{T[6]}')
    I(f'v_and_b32 v{T[5]}, 1, v{vLANE}')
    I(f'v_lshl_add_u32 v{T[6]}, v{T[5]}, 4, v{T[6]}')
    I(f'v_bfe_u32 v{T[5]}, v{vLANE}, 1, 1')
    I(f'v_lshl_add_u32 v{T[6]}, v{T[5]}, 3, v{T[6]}')
    I(f'v_bfe_u32 v{T[7]}, v{vLANE}, 3, 1')
    I(f'v_lshl_add_u32 v{AD[0]}, v{T[7]}, 6, v{T[6]}')
    I(f'v_xor_b32 v{T[7]}, 1, v{T[7]}')
    I(f'v_lshl_add_u32 v{AD[1]}, v{T[7]}, 6, v{T[6]}')
    I(f'v_add_u32 v{AD[2]}, 65536, v{AD[0]}')
    I(f'v_add_u32 v{AD[3]}, 65536, v{AD[1]}')
    I(f'v_lshrrev_b32 v{T[5]}, 5, v{vLANE}')
    I(f'v_lshlrev_b32 v{T[5]}, 5, v{T[5]}')
    I(f'v_add_u32 v{T[5]}, {L_CS}, v{T[5]}')
    st()
    def stats():
        L = []
        if direct: return L
        L.append(f'v_add_f32 v{M4}, v{ST}, v{ST+2}')
        L.append(f'v_add_f32 v{V4}, v{ST+1}, v{ST+3}')
        for j in range(2, 16):
            L.append(f'v_add_f32 v{M4}, v{M4}, v{ST+2*j}')
            L.append(f'v_add_f32 v{V4}, v{V4}, v{ST+2*j+1}')
        L.append(f'v_mul_f32 v{M4}, {f32bits(1.0/16):#x}, v{M4}')
        L.append(f'v_mov_b32 v{T[2]}, 0')
        for j in range(16):
            L.append(f'v_sub_f32 v{T[3]}, v{ST+2*j}, v{M4}')
            L.append(f'v_fmac_f32 v{T[2]}, v{T[3]}, v{T[3]}')
        L.append(f'v_fmac_f32 v{V4}, {f32bits(32.0):#x}, v{T[2]}')
        L.append(f'v_mul_f32 v{V4}, {f32bits(1.0/512):#x}, v{V4}')
        L.append(f'v_cvt_pk_bf16_f32 v{M4}, 0, v{M4}')
        L.append(f'v_cvt_pk_bf16_f32 v{V4}, 0, v{V4}')
        L.append(f'v_add_f32 v{V4}, {f32bits(1e-5):#x}, v{V4}')
        L.append(f'v_cvt_pk_bf16_f32 v{V4}, 0, v{V4}')
        L.append(f'v_sqrt_f32 v{V4}, v{V4}')
        L.append(f'v_cvt_pk_bf16_f32 v{V4}, 0, v{V4}')
        L.append(f'v_rcp_f32 v{V4}, v{V4}')
        return L
    c0 = -2.0 * (2.0/3.141592653589793) ** 0.5 * LOG2E
    I(f's_mov_b32 s52, {f32bits(c0*0.044715):#x}')
    I(f'v_mov_b32 v{T[6]}, {f32bits(c0):#x}')
    I(f's_mul_i32 s53, s40, 114688')
    I('s_lshl_b32 s54, s36, 13')
    I('s_add_u32 s53, s53, s54')
    I(f's_add_u32 s53, s53, {WS_T2:#x}')
    I('s_add_u32 s54, s53, 4096')
    def epi(mt):
        L = []
        b = ACC + 16*mt
        TT = [T[0], T[1], T[2], T[3]]
        for h8 in range(2):
            L.append(f'ds_read_b128 v[{CS}:{CS+3}], v{T[5]} offset:{128*mt + 64*h8}')
            L.append(f'ds_read_b128 v[{CS+4}:{CS+7}], v{T[5]} offset:{128*mt + 64*h8 + 16}')
            for g4 in range(2):
                chains = []
                for i in range(4):
                    e = 8*h8 + 4*g4 + i
                    r = b + e
                    c = [f'v_fma_f32 v{r}, -v{M4}, v{CS+(e%8)}, v{r}', f'v_mul_f32 v{r}, v{r}, v{V4}']
                    c += gelu_ops(r, TT[i], 'v%d' % T[6], 's52')
                    chains.append(c)
                for j in range(len(chains[0])):
                    for c in chains: L.append(c[j])
                for i in (0, 2):
                    e = 8*h8 + 4*g4 + i
                    L.append(f'v_cvt_pk_bf16_f32 v{OUTP+e//2}, v{b+e}, v{b+e+1}')
            q = 2*mt + h8
            so = 's53' if q < 4 else 's54'
            L.append(f'buffer_store_dwordx4 v[{OUTP+4*h8}:{OUTP+4*h8+3}], v{vL16}, s[24:27], {so} offen offset:{1024*(q%4)}')
        return L
    def rd(hf, idx):
        ks, m2 = idx // 2, idx % 2
        L = []
        for t in range(2):
            d = AFR + 4*(idx % NRING) + 2*t
            L.append(f'ds_read_b64_tr_b16 v[{d}:{d+1}], v{AD[2*hf+m2]} offset:{(16*ks + 4*t)*128}')
        return L
    PRE = 4
    def rd1(mt, ks, slot):
        L = []
        for t in range(2):
            d = AFR + 4*(slot % NRING) + 2*t
            L.append(f'ds_read_b64_tr_b16 v[{d}:{d+1}], v{AD[mt]} offset:{(16*ks + 4*t)*128}')
        return L
    def mf(mt, ks, slot):
        b = ACC + 16*mt
        cc = '0' if ks == 0 else f'v[{b}:{b+15}]'
        return f'v_mfma_f32_32x32x16_bf16 v[{b}:{b+15}], v[{AFR+4*(slot%NRING)}:{AFR+4*(slot%NRING)+3}], a[{BF+4*ks}:{BF+4*ks+3}], {cc}'
    NT0 = nt0
    if NT0 > 2:
        for s in stats(): I(s)
    for q in range(8):
        I('s_barrier')
        seq = [(mt, ks) for ks in range(4*q, 4*q+4) for mt in range(NT0)]
        main = []
        for i in range(min(PRE, len(seq))): main += rd1(seq[i][0], seq[i][1], i)
        for i, (mt, ks) in enumerate(seq):
            main.append(mf(mt, ks, i))
            if i + PRE < len(seq): main += rd1(seq[i+PRE][0], seq[i+PRE][1], i+PRE)
        side = brest[4*q:4*q+4] if q < 4 else []
        if q == 5 and NT0 <= 2: side = stats()
        for s in merge(main, side): I(s)
    st()
    seq = [(mt, ks) for mt in range(NT0, 4) for ks in range(32)]
    for i in range(min(PRE, len(seq))):
        for s in rd1(seq[i][0], seq[i][1], i): I(s)
    for ti, mt in enumerate(range(NT0, 4)):
        main = []
        for ks in range(32):
            i = 32*ti + ks
            main.append(mf(mt, ks, i))
            if i + PRE < len(seq): main += rd1(seq[i+PRE][0], seq[i+PRE][1], i+PRE)
        for s in merge(main, epi(ti)): I(s)
    st()
    for mt in range(4-NT0, 4):
        for s in epi(mt): I(s)
    st.flush(24, 34, 22, vLANE)
    a.label('K4_end')
    I('s_endpgm')
    print("K4 instrs", a.ninstr, "nops", a.nnop)
    return a.text(), kernel_desc(name, 256, 96, accum=128)
```

```python
from common import *

def gen_k5(name, stamps=False, LA=2):
    a = Asm()
    st = Stamper(a, stamps, 5)
    kernel_header(a, name)
    I = a.I
    vLANE, vL16 = 1, 2
    T = [4,5,6,7,8,9,10,11]
    AD = [12,13]
    X1R, X1BR = 16, 20
    GB = 24
    ACC = 32
    AFR = 64
    BF = 96
    NR = 7; NS = 5
    I('s_cmp_ge_u32 s2, 256')
    I('s_cbranch_scc1 K5_end')
    I(f's_load_dwordx2 s[6:7], s[0:1], {KA_W4}')
    I(f's_load_dwordx2 s[4:5], s[0:1], {KA_OUT}')
    I(f's_load_dwordx2 s[32:33], s[0:1], {KA_WS}')
    I(f'v_and_b32 v{vLANE}, 63, v0')
    I('v_lshrrev_b32 v3, 6, v0')
    I('s_nop 0')
    I('v_readfirstlane_b32 s34, v3')
    I('s_and_b32 s35, s2, 7')
    I('s_lshr_b32 s36, s2, 3')
    I('s_lshl_b32 s35, s35, 2')
    I('s_lshr_b32 s37, s36, 3')
    I('s_add_u32 s35, s35, s37')
    I('s_and_b32 s36, s36, 7')
    I('s_and_b32 s38, s34, 1')
    I('s_lshr_b32 s39, s34, 1')
    I('s_lshl_b32 s40, s35, 1')
    I('s_add_u32 s40, s40, s38')
    I(f'v_lshlrev_b32 v{vL16}, 4, v{vLANE}')
    I('s_waitcnt lgkmcnt(0)')
    st.first()
    srd(a, 12, 6, 7, 1792*1024)
    srd(a, 8, 4, 5, 2048*1024)
    srd(a, 24, 32, 33, WS_SIZE)
    I(f'v_lshrrev_b32 v{T[0]}, 3, v{vLANE}')
    I(f'v_and_b32 v{T[1]}, 7, v{vLANE}')
    I(f'v_bfe_u32 v{T[2]}, v{vLANE}, 4, 1')
    I(f'v_lshlrev_b32 v{T[2]}, 2, v{T[2]}')
    I(f'v_xor_b32 v{T[1]}, v{T[1]}, v{T[2]}')
    I(f'v_lshlrev_b32 v{T[1]}, 4, v{T[1]}')
    I(f'v_lshl_add_u32 v{T[1]}, v{T[0]}, 10, v{T[1]}')
    I(f's_mul_i32 s45, s39, {448*1024}')
    I('s_lshl_b32 s46, s36, 7')
    I('s_add_u32 s45, s45, s46')
    I('s_lshl_b32 s46, s38, 13')
    I('s_add_u32 s45, s45, s46')
    I('s_lshl_b32 s46, s39, 13')
    I('s_lshl_b32 s47, s38, 10')
    I('s_add_u32 s46, s46, s47')
    I('s_mul_i32 s49, s40, 114688')
    I(f's_mul_i32 s50, s39, {28*1024}')
    I('s_add_u32 s49, s49, s50')
    I(f's_add_u32 s49, s49, {WS_T2:#x}')
    def round_loads(R):
        L = []
        for j in range(4):
            L.append(f's_add_u32 s47, s46, {(R % NS)*32768 + j*2048}\ns_mov_b32 m0, s47\ns_add_u32 s48, s45, {(4*R + j)*16*1024}\nbuffer_load_dwordx4 v{T[1]}, s[12:15], s48 offen lds')
        L.append(f's_add_u32 s50, s49, {R*4096}')
        for j in range(4):
            ks = 4*R + j
            L.append(f'buffer_load_dwordx4 v[{BF+4*ks}:{BF+4*ks+3}], v{vL16}, s[24:27], s50 offen offset:{1024*j}')
        return L
    for R in range(LA):
        for s in round_loads(R): I(s)
    I(f'v_lshrrev_b32 v{T[6]}, 5, v{vLANE}')
    I(f'v_bfe_u32 v{T[7]}, v{vLANE}, 2, 2')
    I(f'v_lshl_add_u32 v{T[6]}, v{T[6]}, 3, v{T[7]}')
    I(f'v_lshlrev_b32 v{T[6]}, 7, v{T[6]}')
    I(f'v_bfe_u32 v{T[7]}, v{vLANE}, 4, 1')
    I(f'v_lshl_add_u32 v{T[6]}, v{T[7]}, 5, v{T[6]}')
    I(f'v_and_b32 v{T[7]}, 1, v{vLANE}')
    I(f'v_lshl_add_u32 v{T[6]}, v{T[7]}, 4, v{T[6]}')
    I(f'v_bfe_u32 v{T[7]}, v{vLANE}, 1, 1')
    I(f'v_lshl_add_u32 v{T[6]}, v{T[7]}, 3, v{T[6]}')
    I('s_lshl_b32 s50, s39, 13')
    I(f'v_add_u32 v{T[6]}, s50, v{T[6]}')
    I(f'v_bfe_u32 v{T[7]}, v{vLANE}, 3, 1')
    I(f'v_lshl_add_u32 v{AD[0]}, v{T[7]}, 6, v{T[6]}')
    I(f'v_xor_b32 v{T[7]}, 1, v{T[7]}')
    I(f'v_lshl_add_u32 v{AD[1]}, v{T[7]}, 6, v{T[6]}')
    def epi_loads():
        L = []
        L.append('s_lshl_b32 s51, s40, 15')
        L.append('s_lshl_b32 s52, s36, 12')
        L.append('s_add_u32 s51, s51, s52')
        L.append('s_lshl_b32 s52, s39, 10')
        L.append('s_add_u32 s51, s51, s52')
        L.append(f's_add_u32 s52, s51, {WS_X1:#x}')
        L.append(f'buffer_load_dwordx4 v[{X1R}:{X1R+3}], v{vL16}, s[24:27], s52 offen')
        L.append(f's_add_u32 s52, s51, {WS_X1B:#x}')
        L.append(f'buffer_load_dwordx4 v[{X1BR}:{X1BR+3}], v{vL16}, s[24:27], s52 offen')
        L.append(f'v_lshrrev_b32 v{T[3]}, 5, v{vLANE}')
        L.append(f'v_lshlrev_b32 v{T[3]}, 5, v{T[3]}')
        L.append('s_lshl_b32 s52, s36, 8')
        L.append('s_lshl_b32 s53, s39, 6')
        L.append('s_add_u32 s52, s52, s53')
        L.append(f's_add_u32 s52, s52, {WS_MOD + 3*2048:#x}')
        L.append(f'buffer_load_dwordx4 v[{GB}:{GB+3}], v{T[3]}, s[24:27], s52 offen')
        L.append(f'buffer_load_dwordx4 v[{GB+4}:{GB+7}], v{T[3]}, s[24:27], s52 offen offset:16')
        return L
    def rd(R, j, nt, slot):
        L = []
        off = ((R % NS) % 2) * 32768 + (16*j)*128
        for t in range(2):
            d = AFR + 4*slot + 2*t
            L.append(f'ds_read_b64_tr_b16 v[{d}:{d+1}], v{AD[nt]} offset:{off + 4*t*128}')
        return L
    def adv(R):
        cur = ((R-1) % NS) // 2; new = (R % NS) // 2
        d = (new - cur) * 65536
        if d == 0: return []
        if d > 0: return [f'v_add_u32 v{AD[n]}, {d}, v{AD[n]}' for n in range(2)]
        return [f'v_subrev_u32 v{AD[n]}, {-d}, v{AD[n]}' for n in range(2)]
    issued = [8]*LA
    st()
    for R in range(NR):
        allowed = 4 + sum(issued[R+1:])
        I(f's_waitcnt vmcnt({allowed})')
        I('s_barrier')
        side = []
        if R + LA < NR:
            side = round_loads(R+LA); issued.append(8)
        elif R + LA == NR:
            side = epi_loads(); issued.append(4)
        seq = [(j, nt) for j in range(4) for nt in range(2)]
        main = adv(R) if R > 0 else []
        for i in range(4):
            main += rd(R, seq[i][0], seq[i][1], i)
        for i, (j, nt) in enumerate(seq):
            b = ACC + 16*nt
            ks = 4*R + j
            cc = '0' if ks == 0 else f'v[{b}:{b+15}]'
            main.append(f'v_mfma_f32_32x32x16_bf16 v[{b}:{b+15}], v[{AFR+4*i}:{AFR+4*i+3}], v[{BF+4*ks}:{BF+4*ks+3}], {cc}')
            if i + 4 < 8:
                main += rd(R, seq[i+4][0], seq[i+4][1], i+4)
        for s in merge(main, side): I(s)
    st()
    RED = 65536
    I('s_lshl_b32 s50, s34, 13')
    I(f's_add_u32 s50, s50, {RED}')
    I(f'v_add_u32 v{T[0]}, s50, v{vL16}')
    for p in range(4):
        for h in range(2):
            r = ACC + 8*p + 4*h
            I(f'ds_write_b128 v{T[0]}, v[{r}:{r+3}] offset:{2048*p + 1024*h}')
    I('s_waitcnt lgkmcnt(0)')
    I('s_barrier')
    I('s_lshl_b32 s50, s38, 13')
    I('s_lshl_b32 s51, s39, 11')
    I('s_add_u32 s50, s50, s51')
    I(f's_add_u32 s50, s50, {RED}')
    I(f'v_add_u32 v{T[0]}, s50, v{vL16}')
    for q in range(4):
        for h in range(2):
            r = AFR + 8*q + 4*h
            I(f'ds_read_b128 v[{r}:{r+3}], v{T[0]} offset:{16384*q + 1024*h}')
    I('s_mov_b32 s52, 0xffff0000')
    for e in range(8):
        r = AFR + e
        I(f'v_add_f32 v{r}, v{r}, v{r+8}')
        I(f'v_add_f32 v{r+16}, v{r+16}, v{r+24}')
        I(f'v_add_f32 v{r}, v{r}, v{r+16}')
        if e % 2 == 0:
            I(f'v_lshlrev_b32 v{T[1]}, 16, v{X1BR+e//2}'); I(f'v_lshlrev_b32 v{T[2]}, 16, v{X1R+e//2}')
        else:
            I(f'v_and_b32 v{T[1]}, s52, v{X1BR+e//2}'); I(f'v_and_b32 v{T[2]}, s52, v{X1R+e//2}')
        I(f'v_add_f32 v{r}, v{r}, v{T[1]}')
        I(f'v_fma_f32 v{r}, v{r}, v{GB+e}, v{T[2]}')
    for j in range(4):
        I(f'v_cvt_pk_bf16_f32 v{ACC+j}, v{AFR+2*j}, v{AFR+2*j+1}')
    I(f'v_and_b32 v{T[1]}, 31, v{vLANE}')
    I(f'v_lshlrev_b32 v{T[1]}, 10, v{T[1]}')
    I(f'v_lshrrev_b32 v{T[2]}, 5, v{vLANE}')
    I(f'v_lshl_add_u32 v{T[1]}, v{T[2]}, 4, v{T[1]}')
    I('s_lshl_b32 s50, s40, 15')
    I('s_lshl_b32 s51, s36, 7')
    I('s_add_u32 s50, s50, s51')
    I('s_lshl_b32 s51, s39, 5')
    I('s_add_u32 s50, s50, s51')
    I(f'buffer_store_dwordx4 v[{ACC}:{ACC+3}], v{T[1]}, s[8:11], s50 offen')
    st.flush(24, 34, 208, vLANE)
    a.label('K5_end')
    I('s_endpgm')
    print("K5 instrs", a.ninstr, "nops", a.nnop)
    return a.text(), kernel_desc(name, 216, 96)
```

```python
from common import *

SLOT = 32768
EREG = 131072
def slot_of(c): return (c % 4) * SLOT

def gen_ka(name, stamps=False):
    a = Asm()
    st = Stamper(a, stamps, 1)
    kernel_header(a, name)
    I = a.I
    vX = [1,2,3,4]
    vWA = [5,6,7,8]
    vKA = [9,10,11,12,13,14,15,16]
    vT0, vT1, vT2, vT3 = 17,18,19,20
    vMX = 21; vNEGM = 22; vL = [23,24,25,26]
    vLANE16 = 27
    vKD = [28,29,30,31]
    BIG = 32
    ACC = 160
    AF = 224
    QF = ACC
    SACC = ACC + 32
    vHA = vT0
    XREG = 98304
    J_PART, J_RED, J_SILU = XREG, XREG + 16384, XREG + 20480
    I('s_cmp_ge_u32 s2, 256')
    I('s_cbranch_scc1 K1_end')
    I(f's_load_dwordx4 s[4:7], s[0:1], {KA_K}')
    I(f's_load_dwordx4 s[28:31], s[0:1], {KA_WQ}')
    I(f's_load_dwordx4 s[40:43], s[0:1], {KA_DBG}')
    I(f's_load_dwordx8 s[56:63], s[0:1], {KA_W1}')
    I(f's_load_dwordx4 s[80:83], s[0:1], {KA_C}')
    I(f's_load_dwordx2 s[84:85], s[0:1], {KA_X}')
    I('v_and_b32 v17, 63, v0')
    I('v_lshrrev_b32 v18, 6, v0')
    I('s_nop 0')
    I('v_readfirstlane_b32 s34, v18')
    I('s_and_b32 s35, s2, 7')
    I('s_lshr_b32 s36, s2, 3')
    I(f'v_lshlrev_b32 v{vLANE16}, 4, v17')
    for j in range(4):
        I(f'v_xor_b32 v{vX[j]}, {j<<6}, v{vLANE16}')
    I('s_waitcnt lgkmcnt(0)')
    st.first()
    srd(a, 8, 28, 29, 512*8192)
    srd(a, 12, 4, 5, 8*2048*256)
    srd(a, 16, 6, 7, 8*2048*256)
    srd(a, 20, 30, 31, 4096*1024)
    srd(a, 24, 42, 43, WS_SIZE)
    srd(a, 28, 84, 85, 2048*1024)
    srd(a, 4, 40, 41, 256)
    srd(a, 40, 80, 81, 1024)
    I('s_and_b32 s37, s34, 3')
    I('s_lshr_b32 s38, s34, 2')
    I('s_lshl_b32 s39, s34, 12')
    I('s_lshl_b32 s44, s35, 10')
    I('s_lshl_b32 s45, s34, 15')
    I('s_add_u32 s44, s44, s45')
    I('s_lshl_b32 s45, s35, 19')
    I(f's_add_u32 s45, s45, {1536*256}')
    I('s_add_u32 s45, s45, s39')
    I('s_lshl_b32 s46, s35, 19')
    I('s_add_u32 s46, s46, s39')

    def dma_chunk(c):
        L = []
        L.append(f's_add_u32 s47, s39, {slot_of(c)}')
        L.append('s_mov_b32 m0, s47')
        if c < 16:
            for j in range(4):
                L.append(f's_add_u32 s48, s44, {c*32*8192 + j*7168}')
                L.append(f'buffer_load_dwordx4 v{vX[j]}, s[8:11], s48 offen offset:{1024*j} lds')
        elif c < 24 and c % 2 == 0:
            L.append(f's_add_u32 s48, s45, {((c-16)//2)*32768}')
            for j in range(4):
                L.append(f'buffer_load_dwordx4 v{vKD[j]}, s[12:15], s48 offen offset:{1024*j} lds')
        elif c < 24:
            L.append(f's_add_u32 s48, s45, {((c-17)//2)*32768}')
            for j in range(4):
                L.append(f'buffer_load_dwordx4 v{vT3}, s[16:19], s48 offen offset:{1024*j} lds')
        else:
            L.append(f's_add_u32 s48, s46, {(c-24)*32768}')
            for j in range(4):
                L.append(f'buffer_load_dwordx4 v{vX[j]}, s[20:23], s48 offen offset:{1024*j} lds')
        return L
    TOUCH_AT = {19: 'wo', 22: 'wb'}
    def ndma(c): return 4 + (1 if c in TOUCH_AT else 0)
    def touch_ops(kind):
        L = []
        if kind == 'wo':
            L.append(f'v_lshlrev_b32 v0, 1, v{vLANE16}')
            L.append('s_lshl_b32 s48, s35, 19')
            L.append('s_lshl_b32 s49, s36, 14')
            L.append('s_add_u32 s48, s48, s49')
            L.append('s_lshl_b32 s49, s34, 11')
            L.append('s_add_u32 s48, s48, s49')
            L.append(f'buffer_load_dword v0, v0, s[20:23], s48 offen')
        else:
            L.append(f'v_lshlrev_b32 v0, 3, v{vLANE16}')
            L.append('s_cmp_eq_u32 s37, 1\ns_cselect_b32 s96, s58, s56\ns_cselect_b32 s97, s59, s57')
            L.append('s_cmp_eq_u32 s37, 2\ns_cselect_b32 s96, s60, s96\ns_cselect_b32 s97, s61, s97')
            L.append('s_cmp_eq_u32 s37, 3\ns_cselect_b32 s96, s62, s96\ns_cselect_b32 s97, s63, s97')
            L.append(f's_mov_b32 s98, {512*1024}\ns_mov_b32 s99, 0x00020000\ns_movk_i32 s48, 2048\ns_cmp_ge_u32 s37, 2\ns_cselect_b32 s98, {1792*1024}, s98\ns_cselect_b32 s48, 7168, s48')
            L.append('s_mul_i32 s48, s48, s2')
            L.append(f'buffer_load_dword v0, v0, s[96:99], s48 offen')
        return L
    def start_touch():
        I('v_bfe_u32 v18, v17, 3, 1')
        I('v_and_b32 v19, 7, v17')
        I('v_lshlrev_b32 v18, 13, v18')
        I('v_lshl_add_u32 v18, v19, 7, v18')
        I('s_lshl_b32 s48, s36, 17')
        I('s_lshl_b32 s49, s34, 14')
        I('s_add_u32 s48, s48, s49')
        I('s_lshl_b32 s49, s35, 10')
        I('s_add_u32 s48, s48, s49')
        I(f'buffer_load_dword v216, v18, s[8:11], s48 offen')
        I('v_and_b32 v19, 3, v17')
        I('v_lshlrev_b32 v19, 7, v19')
        I('s_lshl_b32 s48, s35, 19')
        I('s_lshl_b32 s49, s36, 12')
        I('s_add_u32 s48, s48, s49')
        I('s_lshl_b32 s49, s34, 9')
        I('s_add_u32 s48, s48, s49')
        I(f's_add_u32 s48, s48, {1536*256}')
        I(f'buffer_load_dword v217, v19, s[12:15], s48 offen')
        a.vm_q = []
    XP = 32; XN = 64; SV = 128
    JL = 160; JA = 176; JT = 184; JR = 200
    log2e = f32bits(1.4426950408889634)
    I('s_mov_b32 s54, 3')
    I('s_mov_b32 s96, s82'); I('s_mov_b32 s97, s83'); I(f's_mov_b32 s98, {512*6144}'); I('s_mov_b32 s99, 0x00020000')
    I('s_movk_i32 s86, 6144'); I('s_mov_b32 s87, 0'); I('s_mov_b32 s88, 0')
    I('s_cmp_lt_u32 s2, 96')
    I('s_cbranch_scc0 KA_j1')
    I('s_lshl_b32 s87, s2, 6')
    I('s_cmp_lt_u32 s2, 32')
    I('s_cselect_b32 s54, 0, 1')
    I('s_lshl_b32 s88, s2, 7')
    I(f's_add_u32 s89, s88, {WS_MODA:#x}')
    I(f's_add_u32 s88, s88, {WS_MOD - 4096:#x}')
    I('s_cmp_lt_u32 s2, 32')
    I('s_cselect_b32 s88, s89, s88')
    I('s_branch KA_jd')
    a.label('KA_j1')
    I('s_cmp_lt_u32 s2, 112')
    I('s_cbranch_scc0 KA_j2')
    I('s_mov_b32 s96, s56'); I('s_mov_b32 s97, s57'); I(f's_mov_b32 s98, {512*1024}')
    I('s_movk_i32 s86, 1024')
    I('s_sub_u32 s89, s2, 96')
    I('s_lshl_b32 s87, s89, 6')
    I('s_mov_b32 s54, 2')
    I('s_lshl_b32 s88, s89, 7'); I(f's_add_u32 s88, s88, {WS_CS1:#x}')
    I('s_branch KA_jd')
    a.label('KA_j2')
    I('s_cmp_lt_u32 s2, 168')
    I('s_cbranch_scc0 KA_j3')
    I('s_mov_b32 s96, s60'); I('s_mov_b32 s97, s61'); I(f's_mov_b32 s98, {512*3584}')
    I('s_movk_i32 s86, 3584')
    I('s_sub_u32 s89, s2, 112')
    I('s_lshl_b32 s87, s89, 6')
    I('s_mov_b32 s54, 2')
    I('s_lshl_b32 s88, s89, 7'); I(f's_add_u32 s88, s88, {WS_CS3:#x}')
    I('s_branch KA_jd')
    a.label('KA_j3')
    I('s_cmp_lt_u32 s2, 200')
    I('s_cbranch_scc0 KA_jd')
    I('s_mov_b32 s96, s56'); I('s_mov_b32 s97, s57'); I(f's_mov_b32 s98, {512*1024}')
    I('s_mov_b32 s54, 4')
    a.label('KA_jd')
    def job_loads():
        I(f'v_lshlrev_b32 v{JT}, 1, v0')
        I(f'buffer_load_ushort v{JT+1}, v{JT}, s[40:43], 0 offen')
        I(f'v_and_b32 v{JT+2}, 3, v0')
        I(f'v_lshrrev_b32 v{JT+3}, 2, v0')
        I('s_lshl_b32 s93, s86, 2')
        I(f'v_mul_lo_u32 v{JT+4}, v{JT+3}, s93')
        I(f'v_lshl_add_u32 v{JT+4}, v{JT+2}, 4, v{JT+4}')
        I('s_mov_b32 s93, s87')
        for i in range(4):
            I(f'buffer_load_dwordx4 v[{JL+4*i}:{JL+4*i+3}], v{JT+4}, s[96:99], s93 offen')
            if i < 3: I('s_add_u32 s93, s93, s86')
    I('s_mov_b32 s55, s88')
    I('s_cmp_eq_u32 s54, 0')
    I('s_cbranch_scc0 KA_l1')
    job_loads()
    a.label('KA_l1')
    I('v_lshrrev_b32 v18, 5, v17')
    I('v_bfe_u32 v19, v17, 2, 2')
    I('v_lshl_add_u32 v20, v18, 3, v19')
    I('v_lshlrev_b32 v20, 10, v20')
    I('v_bfe_u32 v21, v17, 4, 1')
    I('v_lshl_add_u32 v20, v21, 5, v20')
    I('v_and_b32 v21, 1, v17')
    I('v_lshl_add_u32 v20, v21, 4, v20')
    I('v_bfe_u32 v21, v17, 1, 1')
    I('v_lshl_add_u32 v20, v21, 3, v20')
    I('s_lshl_b32 s48, s37, 8')
    I('v_add_u32 v22, s48, v20')
    for mt in range(4):
        I(f'v_xor_b32 v21, {mt}, v19')
        I(f'v_lshl_add_u32 v{vWA[mt]}, v21, 6, v22')
    I('v_and_b32 v21, 31, v17')
    I('v_and_b32 v22, 15, v17')
    I('v_xor_b32 v22, v22, v18')
    I('v_lshlrev_b32 v21, 8, v21')
    I(f'v_add_u32 v21, {slot_of(16)}, v21')
    for s in range(8):
        I(f'v_xor_b32 v23, {2*s}, v22')
        I(f'v_lshl_add_u32 v{vKA[s]}, v23, 4, v21')
    I('v_lshrrev_b32 v21, 4, v17')
    I('v_and_b32 v22, 15, v17')
    I('v_xor_b32 v22, v22, v21')
    I('v_lshlrev_b32 v21, 8, v21')
    for j in range(4):
        I(f'v_xor_b32 v23, {4*j}, v22')
        I(f'v_lshl_add_u32 v{vKD[j]}, v23, 4, v21')
    I(f'v_lshrrev_b32 v21, 8, v{vLANE16}')
    I('v_lshlrev_b32 v21, 6, v21')
    I(f'v_xor_b32 v{vT3}, v21, v{vLANE16}')
    I('s_cmp_eq_u32 s54, 0')
    I('s_cbranch_scc0 KA_a2')
    I('s_waitcnt vmcnt(0)')
    a.label('KA_job')
    I(f's_mov_b32 s64, {log2e:#x}')
    I(f'v_lshlrev_b32 v{JT+1}, 16, v{JT+1}')
    I(f'v_mul_f32 v{JT+5}, s64, v{JT+1}')
    I(f'v_exp_f32 v{JT+5}, -v{JT+5}')
    I(f'v_add_f32 v{JT+5}, 1.0, v{JT+5}')
    I(f'v_rcp_f32 v{JT+5}, v{JT+5}')
    I(f'v_mul_f32 v{JT+1}, v{JT+1}, v{JT+5}')
    I(f'v_cvt_pk_bf16_f32 v{JT+1}, v{JT+1}, v{JT+1}')
    I('s_cmp_eq_u32 s54, 2')
    I('s_cbranch_scc0 KA_jw')
    I(f'v_mov_b32 v{JT+1}, 0x3f80')
    a.label('KA_jw')
    I(f'v_add_u32 v{JT}, {J_SILU}, v{JT}')
    I(f'ds_write_b16 v{JT}, v{JT+1}')
    I('s_waitcnt lgkmcnt(0)')
    I('s_barrier')
    I(f'v_lshlrev_b32 v{JT+5}, 3, v{JT+3}')
    I(f'v_add_u32 v{JT+5}, {J_SILU}, v{JT+5}')
    I(f'ds_read_b64 v[{JT+6}:{JT+7}], v{JT+5}')
    for e in range(8): I(f'v_mov_b32 v{JA+e}, 0')
    I('s_mov_b32 s64, 0x05040100')
    I('s_mov_b32 s65, 0x07060302')
    for p in range(2):
        for d in range(4):
            r0 = JL + 8*p + d; r1 = r0 + 4
            I(f'v_perm_b32 v{JT+8}, v{r1}, v{r0}, s64')
            I(f'v_perm_b32 v{JT+9}, v{r1}, v{r0}, s65')
            I(f'v_dot2_f32_bf16 v{JA+2*d}, v{JT+8}, v{JT+6+p}, v{JA+2*d}')
            I(f'v_dot2_f32_bf16 v{JA+2*d+1}, v{JT+9}, v{JT+6+p}, v{JA+2*d+1}')
    I('s_nop 2')
    I(f'v_lshlrev_b32 v{JT+8}, 5, v0')
    I(f'v_add_u32 v{JT+8}, {J_PART}, v{JT+8}')
    I(f'ds_write_b128 v{JT+8}, v[{JA}:{JA+3}]')
    I(f'ds_write_b128 v{JT+8}, v[{JA+4}:{JA+7}] offset:16')
    I('s_waitcnt lgkmcnt(0)')
    I('s_barrier')
    I(f'v_and_b32 v{JT+8}, 31, v0')
    I(f'v_lshrrev_b32 v{JT+9}, 5, v0')
    I(f'v_lshlrev_b32 v{JT+9}, 10, v{JT+9}')
    I(f'v_lshl_add_u32 v{JT+9}, v{JT+8}, 2, v{JT+9}')
    I(f'v_add_u32 v{JT+9}, {J_PART}, v{JT+9}')
    for i in range(8):
        I(f'ds_read_b32 v{JR+i}, v{JT+9} offset:{128*i}')
    for stp in (4, 2, 1):
        for i in range(stp):
            I(f'v_add_f32 v{JR+i}, v{JR+i}, v{JR+i+stp}')
    I(f'v_lshlrev_b32 v{JT+8}, 2, v0')
    I(f'v_add_u32 v{JT+9}, {J_RED}, v{JT+8}')
    I(f'ds_write_b32 v{JT+9}, v{JR}')
    I('s_waitcnt lgkmcnt(0)')
    I('s_barrier')
    I('s_cmp_eq_u32 s34, 0')
    I('s_cbranch_scc0 KA_jret')
    I('s_mov_b32 exec_hi, 0')
    for i in range(16):
        I(f'ds_read_b32 v{JR+i}, v{JT+9} offset:{128*i}')
    for stp in (8, 4, 2, 1):
        for i in range(stp):
            I(f'v_add_f32 v{JR+i}, v{JR+i}, v{JR+i+stp}')
    I('s_cmp_eq_u32 s54, 2')
    I('s_cbranch_scc1 KA_js')
    rnd_bf16(a, JR, JR)
    I('s_lshr_b32 s64, s2, 4')
    I('s_cmp_eq_u32 s64, 1')
    I('s_cselect_b32 s65, 1, 0')
    I('s_cmp_eq_u32 s64, 4')
    I('s_cselect_b32 s65, 1, s65')
    I('s_cmp_eq_u32 s65, 1')
    I('s_cbranch_scc0 KA_js')
    I(f'v_add_f32 v{JR}, 1.0, v{JR}')
    rnd_bf16(a, JR, JR)
    a.label('KA_js')
    I(f'buffer_store_dword v{JR}, v{JT+8}, s[24:27], s55 offen sc1')
    I('s_cmp_eq_u32 s54, 0')
    I('s_cbranch_scc0 KA_jx')
    I('s_waitcnt vmcnt(0)')
    I('s_mov_b32 exec_lo, 1')
    I(f'v_mov_b32 v{JR+1}, 1')
    I(f'v_mov_b32 v{JR+2}, 0')
    I(f'buffer_atomic_add v{JR+1}, v{JR+2}, s[4:7], 0 offen sc1')
    a.label('KA_jx')
    I('s_mov_b64 exec, -1')
    a.label('KA_jret')
    I('s_cmp_eq_u32 s54, 0')
    I('s_cbranch_scc0 KA_a3')
    I('s_branch KA_a2')
    a.label('KA_pack')
    I('s_sub_u32 s64, s2, 168')
    I('s_lshl_b32 s64, s64, 3')
    I('s_add_u32 s64, s64, s34')
    I(f'v_lshrrev_b32 v{JT}, 2, v17')
    I(f'v_lshlrev_b32 v{JT}, 10, v{JT}')
    I(f'v_and_b32 v{JT+1}, 3, v17')
    I(f'v_lshl_add_u32 v{JT}, v{JT+1}, 4, v{JT}')
    I('s_lshr_b32 s65, s64, 4')
    I('s_lshl_b32 s65, s65, 15')
    I('s_and_b32 s53, s64, 15')
    I('s_lshl_b32 s53, s53, 6')
    I('s_add_u32 s65, s65, s53')
    I(f's_add_u32 s47, s39, {XREG}')
    I('s_mov_b32 m0, s47')
    I(f'buffer_load_dwordx4 v{JT}, s[96:99], s65 offen lds')
    I('s_add_u32 s65, s65, 16384')
    I('s_add_u32 s53, s47, 1024')
    I('s_mov_b32 m0, s53')
    I(f'buffer_load_dwordx4 v{JT}, s[96:99], s65 offen lds')
    I(f'v_bfe_u32 v{JT+1}, v17, 4, 1')
    I(f'v_lshlrev_b32 v{JT+1}, 4, v{JT+1}')
    I(f'v_lshrrev_b32 v{JT+2}, 5, v17')
    I(f'v_lshl_add_u32 v{JT+1}, v{JT+2}, 3, v{JT+1}')
    I(f'v_bfe_u32 v{JT+2}, v17, 2, 2')
    I(f'v_add_u32 v{JT+1}, v{JT+1}, v{JT+2}')
    I(f'v_lshlrev_b32 v{JT+1}, 6, v{JT+1}')
    I(f'v_and_b32 v{JT+2}, 3, v17')
    I(f'v_lshl_add_u32 v{JT+1}, v{JT+2}, 4, v{JT+1}')
    I(f'v_add_u32 v{JT+1}, s47, v{JT+1}')
    I('s_and_b32 s65, s64, 15')
    I('s_lshl_b32 s65, s65, 15')
    I('s_lshr_b32 s53, s64, 4')
    I('s_lshl_b32 s53, s53, 10')
    I('s_add_u32 s65, s65, s53')
    I(f's_add_u32 s65, s65, {WS_W1P:#x}')
    I('s_waitcnt vmcnt(0)')
    for T in range(2):
        for t in range(2):
            I(f'ds_read_b64_tr_b16 v[{JL+4*T+2*t}:{JL+4*T+2*t+1}], v{JT+1} offset:{4*t*64 + 8*T}')
    I(f'buffer_store_dwordx4 v[{JL}:{JL+3}], v{vLANE16}, s[24:27], s65 offen')
    I('s_add_u32 s65, s65, 16384')
    I(f'buffer_store_dwordx4 v[{JL+4}:{JL+7}], v{vLANE16}, s[24:27], s65 offen')
    I('s_branch KA_a3')
    a.label('KA_a2')
    st()
    I('s_lshl_b32 s89, s36, 16')
    I('s_lshl_b32 s90, s34, 13')
    I('s_add_u32 s89, s89, s90')
    for r in range(8):
        if r == 4: I('s_add_u32 s89, s89, 4096')
        I(f'buffer_load_dwordx4 v[{XP+4*r}:{XP+4*r+3}], v{vLANE16}, s[28:31], s89 offen offset:{1024*(r%4)}')
    a.vm_q = []
    I('s_sub_u32 s64, s54, 1')
    I('s_cmp_lt_u32 s64, 2')
    I('s_cbranch_scc0 KA_l2')
    job_loads()
    a.label('KA_l2')
    a.vm_q = []
    for c in (0, 1, 2):
        for s in dma_chunk(c): I(s)
    start_touch()
    I('s_waitcnt vmcnt(14)')
    I('s_mov_b32 s89, 0x3f803f80')
    I('s_mov_b32 s52, 0xffff0000')
    def vidx(kind, r): return SV + kind + 2*(r & 1) + 4*((r >> 1) & 1) + 8*(r >> 2)
    for r in range(8):
        I(f'v_mov_b32 v{vidx(0,r)}, 0'); I(f'v_mov_b32 v{vidx(1,r)}, 0')
    for d in range(4):
        for r in range(8):
            I(f'v_dot2_f32_bf16 v{vidx(0,r)}, v{XP+4*r+d}, s89, v{vidx(0,r)}')
            I(f'v_dot2_f32_bf16 v{vidx(1,r)}, v{XP+4*r+d}, v{XP+4*r+d}, v{vidx(1,r)}')
    I('s_nop 2')
    for i in range(8):
        I(f'v_permlane32_swap_b32 v{SV+i}, v{SV+8+i}')
    for i in range(8):
        I(f'v_add_f32 v{SV+i}, v{SV+i}, v{SV+8+i}')
    for i in range(4):
        I(f'v_permlane16_swap_b32 v{SV+i}, v{SV+4+i}')
    for i in range(4):
        I(f'v_add_f32 v{SV+i}, v{SV+i}, v{SV+4+i}')
    for mod in ('quad_perm:[1,0,3,2]', 'quad_perm:[2,3,0,1]', 'row_half_mirror', 'row_mirror'):
        for i in range(4):
            I(f'v_add_f32_dpp v{SV+4+i}, v{SV+i}, v{SV+i} {mod} row_mask:0xf bank_mask:0xf')
        for i in range(4):
            I(f'v_mov_b32 v{SV+i}, v{SV+4+i}')
    for q in range(2):
        m, v = SV + 2*q, SV + 2*q + 1
        I(f'v_mul_f32 v{m}, {f32bits(1.0/512):#x}, v{m}')
        I(f'v_mul_f32 v{v}, {f32bits(1.0/512):#x}, v{v}')
        I(f'v_fma_f32 v{v}, -v{m}, v{m}, v{v}')
        I(f'v_max_f32 v{v}, 0, v{v}')
        rnd_bf16(a, m, m); rnd_bf16(a, v, v)
        I(f'v_add_f32 v{v}, {f32bits(1e-5):#x}, v{v}')
        rnd_bf16(a, v, v)
        I(f'v_sqrt_f32 v{v}, v{v}')
        rnd_bf16(a, v, v)
        I(f'v_rcp_f32 v{v}, v{v}')
    I('s_nop 1')
    for r in range(8):
        I(f'v_readlane_b32 s{80+2*r}, v{SV+2*(r&1)}, {16*(r>>1)}')
        I(f'v_readlane_b32 s{81+2*r}, v{SV+2*(r&1)+1}, {16*(r>>1)}')
    for r in range(8):
        b = XN + 8*r
        for d in range(4):
            I(f'v_lshlrev_b32 v{b+2*d}, 16, v{XP+4*r+d}')
            I(f'v_and_b32 v{b+2*d+1}, s52, v{XP+4*r+d}')
        for e in range(8): I(f'v_subrev_f32 v{b+e}, s{80+2*r}, v{b+e}')
        for e in range(8): rnd_bf16(a, b+e, b+e)
        for e in range(8): I(f'v_mul_f32 v{b+e}, s{81+2*r}, v{b+e}')
        for e in range(8): rnd_bf16(a, b+e, b+e)
    st()
    I('s_cmp_eq_u32 s54, 4')
    I('s_cbranch_scc1 KA_pack')
    I('s_sub_u32 s64, s54, 1')
    I('s_cmp_lt_u32 s64, 2')
    I('s_cbranch_scc0 KA_a3')
    I('s_waitcnt vmcnt(14)')
    I('s_branch KA_job')
    a.label('KA_a3')
    I('s_cmp_eq_u32 s34, 0')
    I('s_cbranch_scc0 KA_pd')
    I('s_mov_b32 s89, 0')
    I(f'v_mov_b32 v{JT}, 0')
    a.label('KA_poll')
    I(f'buffer_load_dword v{JT+1}, v{JT}, s[4:7], 0 offen sc1')
    I('s_waitcnt vmcnt(0)')
    I(f'v_readfirstlane_b32 s90, v{JT+1}')
    I('s_add_u32 s89, s89, 1')
    I('s_cmp_ge_u32 s90, 32')
    I('s_cbranch_scc1 KA_pd')
    I('s_cmp_ge_u32 s89, 4000')
    I('s_cbranch_scc1 KA_pd')
    I('s_sleep 4')
    I('s_branch KA_poll')
    a.label('KA_pd')
    I('s_barrier')
    st()
    I(f'v_lshlrev_b32 v{JT}, 1, v{vLANE16}')
    I(f's_mov_b32 s89, {WS_MODA:#x}')
    I(f'buffer_load_dwordx4 v[{JL}:{JL+3}], v{JT}, s[24:27], s89 offen sc1')
    I(f'buffer_load_dwordx4 v[{JL+4}:{JL+7}], v{JT}, s[24:27], s89 offen offset:16 sc1')
    I(f'buffer_load_dwordx4 v[{JL+8}:{JL+11}], v{JT}, s[24:27], s89 offen offset:2048 sc1')
    I(f'buffer_load_dwordx4 v[{JL+12}:{JL+15}], v{JT}, s[24:27], s89 offen offset:2064 sc1')
    I(f'v_lshrrev_b32 v{JT+1}, 1, v17')
    I(f'v_and_b32 v{JT+2}, 1, v17')
    I(f'v_lshlrev_b32 v{JT+2}, 5, v{JT+2}')
    I(f'v_and_b32 v{JT+3}, 15, v{JT+1}')
    I(f'v_xor_b32 v{JT+2}, v{JT+2}, v{JT+3}')
    I('s_lshl_b32 s90, s37, 3')
    I(f'v_xor_b32 v{JT+2}, s90, v{JT+2}')
    I(f'v_lshlrev_b32 v{JT+1}, 10, v{JT+1}')
    I('s_lshl_b32 s90, s38, 15')
    I(f's_add_u32 s90, s90, {XREG}')
    I(f'v_add_u32 v{JT+1}, s90, v{JT+1}')
    for r in range(8):
        b = XN + 8*r
        for d in range(4):
            I(f'v_pk_fma_f32 v[{b+2*d}:{b+2*d+1}], v[{b+2*d}:{b+2*d+1}], v[{JL+8+2*d}:{JL+8+2*d+1}], v[{JL+2*d}:{JL+2*d+1}]')
        for d in range(4):
            I(f'v_cvt_pk_bf16_f32 v{XP+4*r+d}, v{b+2*d}, v{b+2*d+1}')
        I(f'v_xor_b32 v{JT+3}, {r}, v{JT+2}')
        I(f'v_lshl_add_u32 v{JT+3}, v{JT+3}, 4, v{JT+1}')
        I(f'ds_write_b128 v{JT+3}, v[{XP+4*r}:{XP+4*r+3}]')
    I('s_waitcnt vmcnt(0) lgkmcnt(0)')
    I('s_barrier')
    I(f'v_add_u32 v{JT+1}, s90, v{vLANE16}')
    for ks in range(32):
        I(f'v_xor_b32 v{JT+2+(ks%4)}, {(ks & 15) << 4}, v{JT+1}')
        I(f'ds_read_b128 v[{BIG+4*ks}:{BIG+4*ks+3}], v{JT+2+(ks%4)} offset:{1024*ks}')
    st()

    def w_reads(buf, ks):
        L = []
        for mt in range(4):
            for t in range(2):
                d = AF + 16*buf + 4*mt + 2*t
                L.append(f'ds_read_b64_tr_b16 v[{d}:{d+1}], v{vWA[mt]} offset:{(16*ks + 4*t)*1024}')
        return L
    def h_read(kk):
        c = kk // 2; ks = kk % 2
        d = BIG + 4*(kk % 4)
        return [f'ds_read_b128 v[{d}:{d+3}], v{vHA} offset:{(c%4)*4096 + ks*1024}']
    def w_advance(c_from, c_to):
        delta = slot_of(c_to) - slot_of(c_from)
        if delta >= 0: return [f'v_add_u32 v{vWA[mt]}, {delta}, v{vWA[mt]}' for mt in range(4)]
        return [f'v_subrev_u32 v{vWA[mt]}, {-delta}, v{vWA[mt]}' for mt in range(4)]
    issued = [2]
    def top_sync(c, issue_list):
        allowed = sum(ndma(x) for x in range(c+2, issued[0]+1))
        I(f's_waitcnt vmcnt({allowed})')
        I('s_barrier')
        L = []
        for x in issue_list:
            L += dma_chunk(x); issued[0] = max(issued[0], x)
            if x in TOUCH_AT: L += touch_ops(TOUCH_AT[x])
        return L

    def gemm_phase(c0, is_p2, issue_map, side=None):
        for i in range(16):
            c = c0 + i
            extra = top_sync(c, issue_map.get(c, [])) if (is_p2 or i > 0) else []
            cut = 0
            nl = [j for j, s in enumerate(extra) if 'buffer_load' in s]
            if nl: cut = nl[len(nl)//2 - 1] + 1 if len(nl) >= 2 else len(extra)
            ex = [extra[:cut], extra[cut:]]
            for ks in range(2):
                kk = 2*i + ks
                buf = kk & 1
                if ks == 0:
                    pre = w_reads(buf ^ 1, 1)
                elif i < 15:
                    pre = w_advance(c, c+1) + w_reads(buf ^ 1, 0)
                else:
                    pre = []
                bfr = BIG + 4*kk
                mf = []
                for mt in range(4):
                    d = ACC + 16*mt
                    cc = '0' if kk == 0 else f'v[{d}:{d+15}]'
                    mf.append(f'v_mfma_f32_32x32x16_bf16 v[{d}:{d+15}], v[{AF+16*buf+4*mt}:{AF+16*buf+4*mt+3}], v[{bfr}:{bfr+3}], {cc}')
                sd = side.get(kk, []) if side else []
                for s in merge(mf, pre, ex[ks], sd): I(s)

    QF2 = 32
    SB_ = [64, 96]
    VF = 128
    KF = AF
    vVA = vT3
    vMR = vMX
    def k_reads(t):
        L = []
        c = 16 + 2*(t//4)
        for s in range(8):
            if t % 4 == 0 and t > 0:
                delta = slot_of(c) - slot_of(c-2)
                if delta >= 0: L.append(f'v_add_u32 v{vKA[s]}, {delta}, v{vKA[s]}')
                else: L.append(f'v_subrev_u32 v{vKA[s]}, {-delta}, v{vKA[s]}')
            L.append(f'ds_read_b128 v[{KF+4*s}:{KF+4*s+3}], v{vKA[s]} offset:{(t%4)*8192}')
        return L
    def v_reads(kap):
        L = []
        c = 17 + 2*(kap//8); ks = kap % 8; buf = kap & 1
        if ks == 0 and kap > 0:
            L += w_advance(c-2, c)
        for mt in range(4):
            for t in range(2):
                d = VF + 16*buf + 4*mt + 2*t
                L.append(f'ds_read_b64_tr_b16 v[{d}:{d+1}], v{vWA[mt]} offset:{(16*ks + 8*t)*256}')
        return L
    def tr_addr_setup(rowshift, rowmul_log, base_expr_sgpr_setup):
        L = []
        L.append(f'v_lshrrev_b32 v{vT0}, 4, v{vLANE16}')
        L.append(f'v_lshrrev_b32 v{vT1}, 5, v{vT0}')
        L.append(f'v_bfe_u32 v{vT2}, v{vT0}, 2, 2')
        L.append(f'v_lshl_add_u32 v{vT1}, v{vT1}, {rowshift}, v{vT2}')
        L.append(f'v_lshlrev_b32 v{vT1}, {rowmul_log}, v{vT1}')
        L.append(f'v_bfe_u32 v{vWA[3]}, v{vT0}, 4, 1')
        L.append(f'v_lshl_add_u32 v{vT1}, v{vWA[3]}, 5, v{vT1}')
        L.append(f'v_and_b32 v{vWA[3]}, 1, v{vT0}')
        L.append(f'v_lshl_add_u32 v{vT1}, v{vWA[3]}, 4, v{vT1}')
        L.append(f'v_bfe_u32 v{vWA[3]}, v{vT0}, 1, 1')
        L.append(f'v_lshl_add_u32 v{vT1}, v{vWA[3]}, 3, v{vT1}')
        L += base_expr_sgpr_setup
        L.append(f'v_add_u32 v{vT1}, s53, v{vT1}')
        for mt in range(4):
            L.append(f'v_xor_b32 v{vT0}, {mt}, v{vT2}')
            L.append(f'v_lshl_add_u32 v{vWA[mt]}, v{vT0}, 6, v{vT1}')
        return L

    for s in w_reads(0, 0): I(s)
    I('s_waitcnt lgkmcnt(0)')
    issue_map = {c: [c+3] for c in range(0, 37)}
    issue_map[17] = []
    for c in range(18, 24): issue_map[c] = [c+2]
    issue_map['p7'] = [26]
    issue_map[24] = []
    issue_map[25] = [27, 28]
    gemm_phase(0, True, issue_map)
    st()
    for s in k_reads(0): I(s)
    for j in range(32):
        I(f'v_cvt_pk_bf16_f32 v{QF2+j}, v{ACC+2*j}, v{ACC+2*j+1}')
    CEXP = 1.4426950408889634 * 128 ** -0.5
    I(f's_mov_b32 s51, {f32bits(CEXP):#x}')
    I(f's_mov_b32 s50, {f32bits(48.0 / CEXP):#x}')
    for l in vL: I(f'v_mov_b32 v{l}, 0')
    def s_mfmas(u):
        seq = []
        for tt in range(2):
            t = 2*u + tt
            b = SB_[u & 1] + 16*tt
            reads = k_reads(t+1) if t < 15 else []
            ri = 0
            for s in range(8):
                cc = '0' if s == 0 else f'v[{b}:{b+15}]'
                grp = [f'v_mfma_f32_32x32x16_bf16 v[{b}:{b+15}], v[{KF+4*s}:{KF+4*s+3}], v[{QF2+4*s}:{QF2+4*s+3}], {cc}']
                while ri < len(reads):
                    grp.append(reads[ri]); ri += 1
                    if reads[ri-1].startswith('ds_read'): break
                seq.append('\n'.join(grp))
        return seq
    def pv_mfmas(u, j):
        kap = 4*u + j; buf = kap & 1
        p = SB_[u & 1] + 8*j
        L = []
        for mt in range(4):
            d = ACC + 16*mt
            cc = '0' if kap == 0 else f'v[{d}:{d+15}]'
            L.append(f'v_mfma_f32_32x32x16_bf16 v[{d}:{d+15}], v[{VF+16*buf+4*mt}:{VF+16*buf+4*mt+3}], v[{p}:{p+3}], {cc}')
        return L
    def max_ops(u, tt):
        b = SB_[u & 1] + 16*tt
        L = []
        for i in range(8):
            if tt == 0 and i == 0:
                L.append(f'v_max_f32 v{vT0}, v{b}, v{b+1}')
            else:
                L.append(f'v_max3_f32 v{vT0}, v{b+2*i}, v{b+2*i+1}, v{vT0}')
        return L
    def p_ops(u, j):
        b = SB_[u & 1] + 8*j
        L = []
        for e in range(8):
            L.append(f'v_fma_f32 v{b+e}, v{b+e}, s51, v{vNEGM}')
        for e in range(8):
            L.append(f'v_exp_f32 v{b+e}, v{b+e}')
        for d in range(4):
            L.append(f'v_add_f32 v{vL[d]}, v{vL[d]}, v{b+2*d}')
            L.append(f'v_add_f32 v{vL[d]}, v{vL[d]}, v{b+2*d+1}')
            L.append(f'v_cvt_pk_bf16_f32 v{b+d}, v{b+2*d}, v{b+2*d+1}')
        return L
    rare = []
    extra = top_sync(16, issue_map[16])
    sm = s_mfmas(0)
    for s in merge(sm[:10], extra, tr_addr_setup(2, 8, [f's_mov_b32 s53, {slot_of(17)}'])): I(s)
    for s in merge(sm[10:], max_ops(0, 0) + v_reads(0)): I(s)
    for s in max_ops(0, 1): I(s)
    for u in range(8):
        c = 17 + u
        I(f'v_mov_b32 v{vT1}, v{vT0}')
        I(f'v_permlane32_swap_b32 v{vT0}, v{vT1}')
        I(f'v_max_f32 v{vT0}, v{vT0}, v{vT1}')
        if u == 0:
            I(f'v_mov_b32 v{vMR}, v{vT0}')
            I(f'v_mul_f32 v{vNEGM}, s51, v{vMR}')
            I(f'v_sub_f32 v{vNEGM}, 0, v{vNEGM}')
        else:
            I(f'v_add_f32 v{vT1}, s50, v{vMR}')
            I(f'v_cmp_gt_f32 vcc, v{vT0}, v{vT1}')
            I('s_nop 1')
            I(f's_cbranch_vccnz K1_rs{u}')
            a.out.append(f'K1_rb{u}:')
            R = [f'K1_rs{u}:', 's_nop 15', 's_nop 15',
                 f'v_max_f32 v{vT1}, v{vT0}, v{vMR}', f'v_sub_f32 v{vT0}, v{vMR}, v{vT1}', f'v_mul_f32 v{vT0}, s51, v{vT0}', f'v_exp_f32 v{vT0}, v{vT0}',
                 f'v_mov_b32 v{vMR}, v{vT1}', f'v_mul_f32 v{vNEGM}, s51, v{vMR}', f'v_sub_f32 v{vNEGM}, 0, v{vNEGM}']
            R += [f'v_mul_f32 v{ACC+i}, v{ACC+i}, v{vT0}' for i in range(64)]
            R += [f'v_mul_f32 v{l}, v{l}, v{vT0}' for l in vL]
            R += ['s_nop 3', f's_branch K1_rb{u}']
            rare += R
        extra = top_sync(c, issue_map[c] if u < 7 else issue_map['p7']) if u < 7 else None
        if u == 7:
            I('s_barrier')
            extra = []
            for x in issue_map['p7']:
                extra += dma_chunk(x); issued[0] = max(issued[0], x)
        if u < 7:
            sm = s_mfmas(u+1)
            for s in merge(sm, extra, p_ops(u, 0) + p_ops(u, 1) + p_ops(u, 2)[:12]): I(s)
            rest = p_ops(u, 2)[12:] + p_ops(u, 3)
            mx = max_ops(u+1, 0) + max_ops(u+1, 1)
            side = {0: rest[:16+6], 1: rest[22:], 2: mx[:8], 3: mx[8:]}
        else:
            for s in merge(extra, p_ops(u, 0)): I(s)
            side = {0: p_ops(u, 1), 1: p_ops(u, 2), 2: p_ops(u, 3), 3: []}
        if u == 5: side[3] = side[3] + []
        for j in range(4):
            kap = 4*u + j
            pre = v_reads(kap+1) if kap < 31 else []
            sd = side[j]
            if u == 7 and j == 3:
                sd = [f'v_add_f32 v{vL[0]}, v{vL[0]}, v{vL[1]}', f'v_add_f32 v{vL[2]}, v{vL[2]}, v{vL[3]}', f'v_add_f32 v{vL[0]}, v{vL[0]}, v{vL[2]}',
                      f'v_mov_b32 v{vL[1]}, v{vL[0]}', 's_nop 1', f'v_permlane32_swap_b32 v{vL[0]}, v{vL[1]}', f'v_add_f32 v{vL[0]}, v{vL[0]}, v{vL[1]}', f'v_rcp_f32 v{vL[0]}, v{vL[0]}']
                sd += tr_addr_setup(3, 10, ['s_lshl_b32 s53, s37, 8', f's_add_u32 s53, s53, {slot_of(24)}'])
            for s in merge(pv_mfmas(u, j), pre, sd): I(s)
    st()
    I(f's_mov_b32 s48, {EREG}')
    I('s_cmp_eq_u32 s38, 1')
    I(f's_cselect_b32 s48, {slot_of(23)}, s48')
    I(f'v_add_u32 v{vT0}, s48, v{vLANE16}')
    I('s_lshl_b32 s49, s37, 13')
    I(f'v_add_u32 v{vT1}, s49, v{vT0}')
    I('s_barrier')
    for s in w_reads(0, 0): I(s)
    for q in range(8):
        for j in range(4*q, 4*q+4):
            I(f'v_mul_f32 v{ACC+2*j}, v{ACC+2*j}, v{vL[0]}')
            I(f'v_mul_f32 v{ACC+2*j+1}, v{ACC+2*j+1}, v{vL[0]}')
            I(f'v_cvt_pk_bf16_f32 v{BIG+j}, v{ACC+2*j}, v{ACC+2*j+1}')
        I(f'ds_write_b128 v{vT1}, v[{BIG+4*q}:{BIG+4*q+3}] offset:{1024*q}')
    allowed = sum(ndma(x) for x in range(26, issued[0]+1))
    I(f's_waitcnt vmcnt({allowed}) lgkmcnt(0)')
    I('s_barrier')
    o_reads = [f'ds_read_b128 v[{BIG+4*ks}:{BIG+4*ks+3}], v{vT0} offset:{1024*ks}' for ks in range(32)]
    for s in o_reads[:4]: I(s)
    st()
    side = {0: o_reads[4:18], 1: o_reads[18:32] + ['s_waitcnt lgkmcnt(0)']}
    gemm_phase(24, False, issue_map, side)
    st()
    I('s_lshl_b32 s48, s35, 21')
    I('s_lshl_b32 s49, s36, 16')
    I('s_add_u32 s48, s48, s49')
    I('s_lshl_b32 s49, s38, 15')
    I('s_add_u32 s48, s48, s49')
    I('s_lshl_b32 s49, s37, 13')
    I('s_add_u32 s48, s48, s49')
    I(f's_add_u32 s48, s48, {WS_P:#x}')
    I('s_add_u32 s49, s48, 4096')
    for j in range(32):
        I(f'v_cvt_pk_bf16_f32 v{BIG+j}, v{ACC+2*j}, v{ACC+2*j+1}')
        if j % 4 == 3:
            q = j // 4
            so = 's48' if q < 4 else 's49'
            I(f'buffer_store_dwordx4 v[{BIG+4*q}:{BIG+4*q+3}], v{vLANE16}, s[24:27], {so} offen offset:{1024*(q%4)}')
    if stamps:
        I(f'v_lshrrev_b32 v{vT3}, 4, v{vLANE16}')
        st.flush(24, 34, 200, vT3)
    a.label('K1_end')
    I('s_endpgm')
    for r in rare:
        a.out.append(r if r.endswith(':') else '    ' + r)
    print("KA instrs", a.ninstr, "nops", a.nnop)
    return a.text(), kernel_desc(name, 256, 100)
```

```python
import sys
from common import *
from k0 import gen_k0
from k1 import gen_k1
from k0n import gen_k0n, NB_K0
from k1n import gen_k1n
from k1p import gen_k1p
from ka import gen_ka
from k2 import gen_k2
from k3 import gen_k3
from k23 import gen_k23, NWG23
from k4 import gen_k4
from k5 import gen_k5
def build(path, upto=6, stamps=False, emu=True, t0=False, t1=2, la5=2, merged=False, cpf=False, nt0=2, f23=False, sc=('k0','k1','k2','k3','k4'), **kw):
    hdr = open('cdna_kernels/' + NAME + '.s.ref').read().split('; Override launch')[0]
    ks = []
    ks.append(('k0_kernel', (496,1,1), 512, 32768, lambda n: gen_k0(n, stamps, touch=t0, cpf=cpf)))
    ks.append(('k1_kernel', (256,1,1), 512, 163840, lambda n: gen_k1(n, stamps, emu=emu, touch=t1, X=kw.get('X', ()))))
    ks.append(('k2_kernel', (256,1,1), 512, 18432, lambda n: gen_k2(n, stamps)))
    ks.append(('k3_kernel', (256,1,1), 256, 65536, lambda n: gen_k3(n, stamps)))
    ks.append(('k4_kernel', (224,1,1), 512, 131584, lambda n: gen_k4(n, stamps, nt0=nt0, direct=f23)))
    ks.append(('k5_kernel', (256,1,1), 512, 163840, lambda n: gen_k5(n, stamps, LA=la5)))
    if kw.get('new', True):
        ks[0] = ('k0_kernel', (NB_K0,1,1), 512, 32768, lambda n: gen_k0n(n, stamps))
        ks[1] = ('k1_kernel', (256,1,1), 512, 163840, lambda n: gen_k1p(n, stamps, X=kw.get('X', ()), offs=kw.get('offs', 106.0)))
    if f23:
        ks = ks[:2] + [('k23_kernel', (NWG23,1,1), 512, 151552, lambda n: gen_k23(n, stamps))] + ks[4:]
    if merged:
        ks = [('ka_kernel', (256,1,1), 512, 163840, lambda n: gen_ka(n, stamps))] + ks[2:]
    ks = ks[:upto]
    out = hdr
    for n, g, b, lds, f in ks:
        out += f'; @launch kernel={n} grid=({g[0]},{g[1]},{g[2]}) block=({b},1,1) lds={lds}\n'
    out += '.amdgcn_target "amdgcn-amd-amdhsa--gfx950"\n.text\n'
    descs = ''
    for n, g, b, lds, f in ks:
        t, d = f(n)
        if n.split('_')[0] in sc:
            t = '\n'.join((l + ' sc0 sc1' if 'buffer_store_dwordx4' in l and 'sc0' not in l else l) for l in t.split('\n'))
        out += t; descs += d
    out += 'CODE_END:\n    s_endpgm\n'
    out += '.section .rodata,"a"\n' + descs
    open(path, 'w').write(out)
if __name__ == '__main__':
    build(sys.argv[1] if len(sys.argv) > 1 else 'cur.s', stamps=(int(sys.argv[2]) if len(sys.argv) > 2 else 0))
```

```python
from common import *

NB_G0 = 32
NB_LN = 128
B_LN = NB_G0
B_G1 = B_LN + NB_LN
B_VP = B_G1 + 136
B_W1 = B_VP + 32
NB_K0 = B_W1 + 32

def gen_k0n(name, stamps=False, STF='', lite=0, xpf=0, qrows=512):
    a = Asm()
    st = Stamper(a, stamps, 0)
    kernel_header(a, name)
    I = a.I
    log2e = f32bits(1.4426950408889634)
    I(f's_cmp_ge_u32 s2, {NB_K0 + xpf}')
    I('s_cbranch_scc1 K0_end')
    I(f's_load_dwordx2 s[4:5], s[0:1], {KA_X}')
    I(f's_load_dwordx4 s[8:11], s[0:1], {KA_C}')
    I(f's_load_dwordx2 s[12:13], s[0:1], {KA_W1}')
    I(f's_load_dwordx2 s[14:15], s[0:1], {KA_W3}')
    I(f's_load_dwordx2 s[16:17], s[0:1], {KA_WS}')
    I(f's_load_dwordx2 s[58:59], s[0:1], {KA_V}')
    I('v_lshrrev_b32 v3, 6, v0')
    I('v_and_b32 v9, 63, v0')
    I('v_readfirstlane_b32 s54, v3')
    if xpf:
        I(f's_cmp_ge_u32 s2, {NB_K0}')
        I('s_cbranch_scc1 K0_xp')
    I(f's_cmp_ge_u32 s2, {B_VP}')
    I('s_cbranch_scc1 K0_s')
    I(f's_cmp_lt_u32 s2, {B_LN}')
    I('s_cbranch_scc1 K0_g')
    I(f's_cmp_ge_u32 s2, {B_G1}')
    I('s_cbranch_scc1 K0_g' if not lite else 's_cbranch_scc1 K0_end')
    I('s_cmp_ge_u32 s54, 4')
    I('s_cbranch_scc1 K0_end')
    I(f's_sub_u32 s29, s2, {B_LN}')
    I('v_lshrrev_b32 v7, 3, v9')
    I('v_and_b32 v4, 7, v9')
    I('v_lshlrev_b32 v5, 10, v7')
    I('v_lshl_add_u32 v5, v4, 4, v5')
    I('s_lshr_b32 s30, s54, 1')
    I('s_and_b32 s31, s54, 1')
    I('s_lshl_b32 s44, s29, 14')
    I('s_lshl_b32 s45, s30, 13')
    I('s_add_u32 s44, s44, s45')
    I('s_lshl_b32 s45, s31, 9')
    I('s_add_u32 s46, s44, s45')
    I('s_xor_b32 s45, s45, 512')
    I('s_add_u32 s47, s44, s45')
    I('s_waitcnt lgkmcnt(0)')
    st.first()
    srd(a, 32, 4, 5, 2048*1024)
    for i in range(4):
        I(f'buffer_load_dwordx4 v[{32+4*i}:{35+4*i}], v5, s[32:35], s46 offen offset:{128*i}')
    for i in range(4):
        I(f'buffer_load_dwordx4 v[{48+4*i}:{51+4*i}], v5, s[32:35], s47 offen offset:{128*i}')
    srd(a, 40, 16, 17, WS_SIZE)
    I('v_lshrrev_b32 v10, 1, v4')
    I('v_lshlrev_b32 v10, 10, v10')
    I('v_and_b32 v11, 1, v4')
    I('v_lshl_add_u32 v10, v11, 9, v10')
    I('v_lshl_add_u32 v10, v7, 4, v10')
    I('s_and_b32 s44, s29, 1')
    I('s_lshl_b32 s44, s44, 8')
    I('s_lshl_b32 s45, s30, 7')
    I('s_add_u32 s44, s44, s45')
    I('s_lshr_b32 s45, s29, 1')
    I('s_lshl_b32 s45, s45, 15')
    I('s_add_u32 s44, s44, s45')
    I('s_lshl_b32 s45, s31, 14')
    I('s_add_u32 s44, s44, s45')
    I('s_mov_b32 s47, 0x3f803f80')
    I('s_mov_b32 s46, 0xffff0000')
    I('v_mov_b32 v12, 0x3f80')
    I('v_mov_b32 v13, 0x3f800000')
    I('v_mov_b32 v30, 0'); I('v_mov_b32 v31, 0'); I('v_mov_b32 v28, 0'); I('v_mov_b32 v29, 0')
    st()
    for i in range(0, 32, 2):
        I(f'v_dot2_f32_bf16 v30, v{32+i}, s47, v30')
        I(f'v_dot2_f32_bf16 v31, v{32+i}, v{32+i}, v31')
        I(f'v_dot2_f32_bf16 v28, v{33+i}, s47, v28')
        I(f'v_dot2_f32_bf16 v29, v{33+i}, v{33+i}, v29')
    I('s_nop 2')
    I('v_add_f32 v30, v30, v28')
    I('v_add_f32 v31, v31, v29')
    I('v_add_f32_dpp v28, v30, v30 quad_perm:[1,0,3,2] row_mask:0xf bank_mask:0xf')
    I('v_add_f32_dpp v29, v31, v31 quad_perm:[1,0,3,2] row_mask:0xf bank_mask:0xf')
    I('v_add_f32_dpp v30, v28, v28 quad_perm:[2,3,0,1] row_mask:0xf bank_mask:0xf')
    I('v_add_f32_dpp v31, v29, v29 quad_perm:[2,3,0,1] row_mask:0xf bank_mask:0xf')
    I('v_add_f32_dpp v28, v30, v30 row_half_mirror row_mask:0xf bank_mask:0xf')
    I('v_add_f32_dpp v29, v31, v31 row_half_mirror row_mask:0xf bank_mask:0xf')
    I(f'v_mul_f32 v30, {f32bits(1.0/512):#x}, v28')
    I(f'v_mul_f32 v31, {f32bits(1.0/512):#x}, v29')
    I('v_fma_f32 v31, -v30, v30, v31')
    I('v_max_f32 v31, 0, v31')
    rnd_bf16(a, 30, 30)
    rnd_bf16(a, 31, 31)
    I(f'v_add_f32 v31, {f32bits(1e-5):#x}, v31')
    rnd_bf16(a, 31, 31)
    I('v_sqrt_f32 v31, v31')
    I('v_sub_f32 v30, 0, v30')
    rnd_bf16(a, 31, 31)
    I('v_rcp_f32 v31, v31')
    st()
    for i in range(4):
        for d in range(4):
            r = 32 + 4*i + d
            I(f'v_dot2_f32_bf16 v{64+2*d}, v{r}, v12, v30')
            I(f'v_dot2_f32_bf16 v{65+2*d}, v{r}, v13, v30')
        I('s_nop 1')
        for e in range(8):
            rnd_bf16(a, 64+e, 64+e)
        for e in range(8):
            I(f'v_mul_f32 v{64+e}, v{64+e}, v31')
        for d in range(4):
            I(f'v_cvt_pk_bf16_f32 v{80+4*i+d}, v{64+2*d}, v{65+2*d}')
        I(f'buffer_store_dwordx4 v[{80+4*i}:{83+4*i}], v10, s[40:43], s44 offen')
        if i < 3: I('s_add_u32 s44, s44, 4096')
    st.flush(40, 54, 100, 9)
    I('s_endpgm')
    a.label('K0_g')
    a.vm_q = []; a.lds_q = []
    I(f's_sub_u32 s29, s2, {B_G1 - 32}')
    I(f's_cmp_lt_u32 s2, {B_LN}')
    I('s_cselect_b32 s29, s2, s29')
    I('s_and_b32 s31, s29, 3')
    I('s_lshr_b32 s29, s29, 2')
    I('v_and_b32 v1, 15, v0')
    I('v_lshrrev_b32 v2, 4, v0')
    I('v_lshlrev_b32 v6, 3, v2')
    I('s_lshl_b32 s26, s31, 8')
    I(f's_mul_i32 s28, s31, {GP_STRIDE}')
    I('s_lshl_b32 s30, s29, 9')
    I('s_add_u32 s28, s28, s30')
    I(f's_add_u32 s28, s28, {WS_GP:#x}')
    I('s_waitcnt lgkmcnt(0)')
    st.n = 0
    st.first()
    srd(a, 36, 8, 9, 1024)
    I('buffer_load_dwordx2 v[10:11], v6, s[36:39], s26 offen')
    I('s_mov_b32 s20, s10'); I('s_mov_b32 s21, s11'); I(f's_mov_b32 s22, {512*6144}')
    I('s_movk_i32 s24, 6144')
    I('s_mov_b32 s25, s29')
    I('s_cmp_ge_u32 s29, 24')
    I('s_cselect_b32 s20, s12, s20'); I('s_cselect_b32 s21, s13, s21'); I(f's_cselect_b32 s22, {512*1024}, s22')
    I('s_cselect_b32 s24, 1024, s24'); I('s_cselect_b32 s30, 24, 0')
    I('s_cmp_ge_u32 s29, 28')
    I('s_cselect_b32 s20, s14, s20'); I('s_cselect_b32 s21, s15, s21'); I(f's_cselect_b32 s22, {512*3584}, s22')
    I('s_cselect_b32 s24, 3584, s24'); I('s_cselect_b32 s30, 28, s30')
    I('s_sub_u32 s25, s25, s30')
    I('s_lshl_b32 s25, s25, 8')
    I('s_lshl_b32 s30, s31, 7')
    I('s_mul_i32 s30, s30, s24')
    I('s_add_u32 s25, s25, s30')
    I('s_mov_b32 s23, 0x00020000')
    I('s_lshl_b32 s30, s24, 2')
    I('v_mul_lo_u32 v3, v2, s30')
    I('v_lshl_add_u32 v3, v1, 4, v3')
    for i in range(4):
        I(f'buffer_load_dwordx4 v[{32+4*i}:{35+4*i}], v3, s[20:23], s25 offen')
        if i < 3: I('s_add_u32 s25, s25, s24')
    srd(a, 40, 16, 17, WS_SIZE)
    I(f's_mov_b32 s45, {log2e:#x}')
    I('s_mov_b32 s46, 0xffff0000')
    I('s_mov_b32 s62, 0x05040100')
    I('s_mov_b32 s63, 0x07060302')
    I('s_cmp_ge_u32 s29, 24')
    I('s_cselect_b64 s[52:53], -1, 0')
    I('v_mov_b32 v24, 0x3f803f80')
    for e in range(8): I(f'v_mov_b32 v{16+e}, 0')
    I('v_lshrrev_b32 v28, 4, v9')
    I('v_lshlrev_b32 v28, 3, v28')
    I('v_lshl_add_u32 v28, v1, 5, v28')
    I('s_lshl_b32 s30, s54, 9')
    I('v_add_u32 v27, s30, v28')
    I('v_lshlrev_b32 v26, 2, v0')
    st()
    I('v_lshlrev_b32 v12, 16, v10'); I('v_and_b32 v13, s46, v10')
    I('v_lshlrev_b32 v14, 16, v11'); I('v_and_b32 v15, s46, v11')
    for e in range(4): I(f'v_mul_f32 v{4+e}, s45, v{12+e}')
    for e in range(4): I(f'v_exp_f32 v{4+e}, -v{4+e}')
    for e in range(4): I(f'v_add_f32 v{4+e}, 1.0, v{4+e}')
    for e in range(4): I(f'v_rcp_f32 v{4+e}, v{4+e}')
    for e in range(4): I(f'v_mul_f32 v{12+e}, v{12+e}, v{4+e}')
    I('v_cvt_pk_bf16_f32 v10, v12, v13')
    I('v_cvt_pk_bf16_f32 v11, v14, v15')
    I('v_cndmask_b32 v10, v10, v24, s[52:53]')
    I('v_cndmask_b32 v11, v11, v24, s[52:53]')
    for p in range(2):
        for d in range(4):
            r0 = 32 + 8*p + d; r1 = r0 + 4
            I(f'v_perm_b32 v{4+(d&1)*2}, v{r1}, v{r0}, s62')
            I(f'v_perm_b32 v{5+(d&1)*2}, v{r1}, v{r0}, s63')
            I(f'v_dot2_f32_bf16 v{16+2*d}, v{4+(d&1)*2}, v{10+p}, v{16+2*d}')
            I(f'v_dot2_f32_bf16 v{17+2*d}, v{5+(d&1)*2}, v{10+p}, v{17+2*d}')
    for e in range(4):
        I(f'v_permlane32_swap_b32 v{16+e}, v{20+e}')
    for e in range(4):
        I(f'v_add_f32 v{16+e}, v{16+e}, v{20+e}')
    for e in range(2):
        I(f'v_permlane16_swap_b32 v{16+e}, v{18+e}')
    for e in range(2):
        I(f'v_add_f32 v{16+e}, v{16+e}, v{18+e}')
    I('ds_write_b64 v27, v[16:17]')
    I('s_waitcnt lgkmcnt(0)')
    I('s_barrier')
    st()
    if not stamps:
        I('s_cmp_ge_u32 s54, 2')
        I('s_cbranch_scc1 K0_end')
    if stamps: I('v_and_b32 v26, 511, v26')
    for i in range(8):
        I(f'ds_read_b32 v{48+i}, v26 offset:{512*i}')
    for stp in (4, 2, 1):
        for i in range(stp):
            I(f'v_add_f32 v{48+i}, v{48+i}, v{48+i+stp}')
    I('buffer_store_dword v48, v26, s[40:43], s28 offen' + STF)
    st.flush(40, 54, 100, 9)
    a.label('K0_end')
    I('s_endpgm')
    a.label('K0_s')
    I('s_lshl_b32 s66, s54, 12')
    I(f's_cmp_ge_u32 s2, {B_W1 if lite < 2 else B_VP}')
    I('s_cbranch_scc1 K0_s1' if not lite else 's_cbranch_scc1 K0_end')
    I(f's_sub_u32 s29, s2, {B_VP}')
    I('s_and_b32 s64, s29, 7')
    I('s_lshr_b32 s65, s29, 3')
    I('s_lshl_b32 s65, s65, 3')
    I('s_add_u32 s65, s65, s54')
    I('v_lshlrev_b32 v10, 4, v9')
    I('v_lshrrev_b32 v11, 4, v9')
    I('v_lshlrev_b32 v11, 6, v11')
    I('v_xor_b32 v10, v10, v11')
    I('s_lshl_b32 s62, s64, 19')
    I('s_lshl_b32 s63, s65, 12')
    I('s_add_u32 s62, s62, s63')
    I(f's_add_u32 s62, s62, {1536*256}')
    I('s_mov_b32 m0, s66')
    I('s_mov_b32 s55, s66')
    I('s_waitcnt lgkmcnt(0)')
    st.n = 0
    st.first()
    I('s_mov_b32 s66, s55')
    srd(a, 48, 58, 59, 8*2048*256)
    for j in range(4):
        I(f'buffer_load_dwordx4 v10, s[48:51], s62 offen offset:{1024*j} lds')
    srd(a, 40, 16, 17, WS_SIZE)
    I('v_lshrrev_b32 v11, 5, v9')
    I('v_bfe_u32 v12, v9, 2, 2')
    I('v_lshl_add_u32 v11, v11, 2, v12')
    I('v_lshlrev_b32 v11, 8, v11')
    I('v_bfe_u32 v13, v9, 4, 1')
    I('v_lshl_add_u32 v11, v13, 5, v11')
    I('v_and_b32 v13, 1, v9')
    I('v_lshl_add_u32 v11, v13, 4, v11')
    I('v_bfe_u32 v13, v9, 1, 1')
    I('v_lshl_add_u32 v11, v13, 3, v11')
    I('v_add_u32 v11, s66, v11')
    I('v_lshlrev_b32 v10, 4, v9')
    I('s_lshl_b32 s62, s64, 17')
    I('s_lshl_b32 s63, s65, 12')
    I('s_add_u32 s62, s62, s63')
    I(f's_add_u32 s62, s62, {WS_VP:#x}')
    I('s_waitcnt vmcnt(0)')
    for mt in range(4):
        I(f'v_xor_b32 v13, {mt}, v12')
        I('v_lshl_add_u32 v13, v13, 6, v11')
        for t in range(2):
            I(f'ds_read_b64_tr_b16 v[{32+4*mt+2*t}:{33+4*mt+2*t}], v13 offset:{8*t*256}')
    for mt in range(4):
        I(f'buffer_store_dwordx4 v[{32+4*mt}:{35+4*mt}], v10, s[40:43], s62 offen offset:{1024*mt}')
    st.flush(40, 54, 100, 9)
    I('s_endpgm')
    a.label('K0_s1')
    I(f's_sub_u32 s29, s2, {B_W1}')
    I('s_lshl_b32 s29, s29, 3')
    I('s_add_u32 s29, s29, s54')
    I('v_lshrrev_b32 v10, 2, v9')
    I('v_lshlrev_b32 v10, 10, v10')
    I('v_and_b32 v11, 3, v9')
    I('v_lshl_add_u32 v10, v11, 4, v10')
    I('s_lshr_b32 s62, s29, 4')
    I('s_lshl_b32 s62, s62, 15')
    I('s_and_b32 s63, s29, 15')
    I('s_lshl_b32 s63, s63, 6')
    I('s_add_u32 s62, s62, s63')
    I('s_mov_b32 m0, s66')
    I('s_mov_b32 s55, s66')
    I('s_waitcnt lgkmcnt(0)')
    st.n = 0
    st.first()
    I('s_mov_b32 s66, s55')
    srd(a, 48, 12, 13, 512*1024)
    I('buffer_load_dwordx4 v10, s[48:51], s62 offen lds')
    I('s_add_u32 s62, s62, 16384')
    I('s_add_u32 s63, s66, 1024')
    I('s_mov_b32 m0, s63')
    I('buffer_load_dwordx4 v10, s[48:51], s62 offen lds')
    srd(a, 40, 16, 17, WS_SIZE)
    I('v_bfe_u32 v11, v9, 4, 1')
    I('v_lshlrev_b32 v11, 4, v11')
    I('v_lshrrev_b32 v12, 5, v9')
    I('v_lshl_add_u32 v11, v12, 3, v11')
    I('v_bfe_u32 v12, v9, 2, 2')
    I('v_add_u32 v11, v11, v12')
    I('v_lshlrev_b32 v11, 6, v11')
    I('v_and_b32 v12, 3, v9')
    I('v_lshl_add_u32 v11, v12, 4, v11')
    I('v_add_u32 v11, s66, v11')
    I('v_lshlrev_b32 v10, 4, v9')
    I('s_and_b32 s62, s29, 15')
    I('s_lshl_b32 s62, s62, 15')
    I('s_lshr_b32 s63, s29, 4')
    I('s_lshl_b32 s63, s63, 10')
    I('s_add_u32 s62, s62, s63')
    I(f's_add_u32 s62, s62, {WS_W1P:#x}')
    I('s_waitcnt vmcnt(0)')
    for T in range(2):
        for t in range(2):
            I(f'ds_read_b64_tr_b16 v[{32+4*T+2*t}:{33+4*T+2*t}], v11 offset:{4*t*64 + 8*T}')
    I('buffer_store_dwordx4 v[32:35], v10, s[40:43], s62 offen')
    I('s_add_u32 s62, s62, 16384')
    I('buffer_store_dwordx4 v[36:39], v10, s[40:43], s62 offen')
    st.flush(40, 54, 100, 9)
    I('s_endpgm')
    if xpf:
        a.label('K0_xp')
        nw = xpf
        rows = qrows // nw
        I(f's_load_dwordx2 s[32:33], s[0:1], {KA_WQ}')
        I(f's_sub_u32 s29, s2, {NB_K0}')
        I('s_and_b32 s31, s29, 7')
        I('s_lshr_b32 s29, s29, 3')
        I('s_lshl_b32 s29, s29, 3')
        I('s_add_u32 s29, s29, s54')
        I(f's_mul_i32 s29, s29, {rows*8192}')
        I('s_lshl_b32 s31, s31, 10')
        I('s_add_u32 s29, s29, s31')
        I('v_lshrrev_b32 v10, 3, v9')
        I(f'v_min_u32 v10, {min(rows, 8)-1}, v10')
        I('v_lshlrev_b32 v10, 13, v10')
        I('v_and_b32 v11, 7, v9')
        I('v_lshl_add_u32 v10, v11, 7, v10')
        I('s_mov_b32 s34, 0x400000'); I('s_mov_b32 s35, 0x00020000')
        I('s_waitcnt lgkmcnt(0)')
        for i in range(max(1, rows // 8)):
            I(f'buffer_load_dword v{20+i}, v10, s[32:35], s29 offen')
            I('s_add_u32 s29, s29, 65536')
        I('s_endpgm')
    print("K0 instrs", a.ninstr, "nops", a.nnop)
    return a.text(), kernel_desc(name, 128, 96)
```

```python
from common import *

SLOT = 32768
KV_SLOT = {16: 1, 17: 2, 18: 3, 19: 4, 20: 0, 21: 1, 22: 2, 23: 3}
def slot_of(c): return KV_SLOT[c] * SLOT

def interleave(main, side):
    out = []
    n = len(main); m = len(side); k = 0
    for i, x in enumerate(main):
        out.append(x)
        tgt = (m * (i + 1)) // n
        while k < tgt:
            out.append(side[k]); k += 1
    return out

DEF = {'late':'', 'early':'u m x0 a0 v a1', 'post':'a2 a3', 'after':{0:'a4 a5', 1:'x1', 3:'k'}, 'sl':(('x2',4),('x3',10),('f',12)), 'mq':((1,4,3),(2,10,4),(3,17,4)), 'bars':(7,14,22), 'fin':24, 'late0':8}
def gen_k1p(name, stamps=False, X=(), offs=106.0):
    X = dict(DEF, **X) if isinstance(X, dict) else dict(DEF, **{k: True for k in X})
    a = Asm()
    OFFS = f'{f32bits(-float(offs)):#x}'
    st = VStamper(a, stamps, 1, 0)
    kernel_header(a, name)
    I = a.I
    vD, vD2 = 1, 2
    vB = [3, 4]
    vA = [5, 6, 7, 8]
    vKA = [9,10,11,12,13,14,15,16]
    vT0, vT1, vT2, vT3 = 17,18,19,20
    vMX = 21; vNEGM = 22; vL = [23,24,25,26]
    vLANE16 = 27
    vKD = [28,29,30,31]
    ACC = 160
    AF = 224
    BFB = 240
    vHW = vT0
    sK, sWQ, sWO, sWS, sTC = 4, 8, 12, 16, 20
    sW, sG, sRB, sHD, sRH, sW4K, sBQ, sBK, sBO, sBV = 24, 25, 26, 27, 28, 29, 30, 31, 32, 33
    t0, t1, t2 = 34, 35, 3
    MODS = 36
    I('s_cmp_ge_u32 s2, 256')
    I('s_cbranch_scc1 K1_end')
    I(f's_load_dwordx2 s[{sWS}:{sWS+1}], s[0:1], {KA_WS}')
    I(f's_load_dwordx2 s[{sWQ}:{sWQ+1}], s[0:1], {KA_WQ}')
    I(f's_load_dwordx2 s[{sK}:{sK+1}], s[0:1], {KA_K}')
    I(f's_load_dwordx2 s[{sWO}:{sWO+1}], s[0:1], {KA_WO}')
    if 'xfake' in X:
        I(f's_load_dwordx2 s[80:81], s[0:1], {KA_X}')
        I(f's_mov_b32 s82, {2048*1024}'); I('s_mov_b32 s83, 0x00020000')
    I('v_and_b32 v21, 63, v0')
    I('v_lshrrev_b32 v18, 6, v0')
    I(f'v_lshlrev_b32 v{vLANE16}, 4, v21')
    I(f'v_readfirstlane_b32 s{sW}, v18')
    I(f's_and_b32 s{sG}, s2, 7')
    I(f's_lshr_b32 s{sRB}, s2, 3')
    I('v_lshrrev_b32 v22, 3, v21')
    I('v_and_b32 v23, 7, v21')
    I('v_bfe_u32 v24, v21, 4, 1')
    I('v_lshlrev_b32 v24, 2, v24')
    I('v_xor_b32 v23, v23, v24')
    I('v_lshlrev_b32 v23, 4, v23')
    I(f'v_lshl_add_u32 v{vD}, v22, 13, v23')
    I(f'v_lshl_add_u32 v{vD2}, v22, 10, v23')
    I('v_lshrrev_b32 v18, 5, v21')
    I('v_lshrrev_b32 v19, 4, v21')
    I('v_lshlrev_b32 v20, 9, v19')
    I('v_and_b32 v25, 7, v21')
    I('v_lshl_add_u32 v20, v25, 3, v20')
    I('v_bfe_u32 v25, v21, 3, 1')
    I('v_xor_b32 v26, 1, v25')
    I('v_lshl_add_u32 v20, v26, 11, v20')
    for d, n in ((sWS, WS_SIZE), (sWQ, 512*8192), (sK, 8*2048*256), (sWO, 4096*1024)):
        I(f's_mov_b32 s{d+2}, {n:#x}')
        I(f's_mov_b32 s{d+3}, 0x00020000')
    I(f's_lshr_b32 s{sHD}, s{sW}, 1')
    I(f's_and_b32 s{sRH}, s{sW}, 1')
    I(f's_lshl_b32 s{sW4K}, s{sW}, 12')
    I(f's_lshl_b32 s{t0}, s{sW}, 7')
    I(f's_lshl_b32 s{sBQ}, s{sG}, 10')
    I(f's_add_u32 s{sBQ}, s{sBQ}, s{t0}')
    I(f's_lshl_b32 s{sBK}, s{sG}, 19')
    I(f's_add_u32 s{sBO}, s{sBK}, s{t0}')
    I(f's_add_u32 s{sBK}, s{sBK}, s{sW4K}')
    I(f's_add_u32 s{sBK}, s{sBK}, {1536*256}')
    I(f's_lshl_b32 s{sBV}, s{sG}, 17')
    I(f's_add_u32 s{sBV}, s{sBV}, s{sW4K}')
    I(f's_add_u32 s{sBV}, s{sBV}, {WS_VP:#x}')
    I(f's_lshr_b32 s{t0}, s{t0}, 1')
    I(f's_add_u32 s{t0}, s{t0}, {WS_GP:#x}')
    I(f's_lshl_b32 s{t1}, s{sRB}, 16')
    I(f's_lshl_b32 s{t2}, s{sW}, 10')
    I(f's_add_u32 s{t1}, s{t1}, s{t2}')
    I(f's_add_u32 s{t2}, s{t2}, {3*SLOT}')
    I(f'v_add_u32 v{vHW}, s{t2}, v{vLANE16}')
    I('s_waitcnt lgkmcnt(0)')
    st.first()
    MP = 82
    def mploads():
        for p in range(4):
            I(f'buffer_load_dwordx2 v[{MP+2*p}:{MP+2*p+1}], v20, s[{sWS}:{sWS+3}], s{t0} offen')
            if p < 3: I(f's_add_u32 s{t0}, s{t0}, {GP_STRIDE}')
    if 'm' not in X['early'].split(): mploads()
    XR = 32
    def xnload(j):
        L = []
        for rh in range(2):
            L.append(f's_add_u32 s{t2}, s{t1}, {8192*j + 32768*rh}')
            L.append(f'buffer_load_dwordx4 v[{XR+8*j+4*rh}:{XR+8*j+4*rh+3}], v{vLANE16}, ' + (f's[{sWS}:{sWS+3}]' if 'xfake' not in X else 's[80:83]') + f', s{t2} offen' + (' nt' if 'xnt' in X else ''))
        return L
    FP = 90
    def finload():
        L = [f's_lshl_b32 s36, s2, 8', f's_add_u32 s37, s36, {WS_GP + 4096:#x}', f's_add_u32 s36, s36, {WS_MOD:#x}',
             f's_lshl_b32 s38, s{sW}, 8', 's_add_u32 s38, s38, s2', 's_cmp_ge_u32 s38, 68', 's_cselect_b32 s38, 0x10000000, 0',
             's_add_u32 s36, s36, s38', 's_add_u32 s37, s37, s38', f'v_lshrrev_b32 v20, 2, v{vLANE16}']
        for p in range(4):
            L.append(f'buffer_load_dword v{FP+p}, v20, s[{sWS}:{sWS+3}], s37 offen')
            if p < 3: L.append(f's_add_u32 s37, s37, {GP_STRIDE}')
        return L
    finops = ['s_lshr_b32 s38, s2, 3\ns_cmp_eq_u32 s38, 2\ns_cselect_b32 s38, 1.0, 0', 's_cmp_lt_u32 s2, 32\ns_cselect_b64 s[40:41], -1, 0',
              f'v_add_f32 v{FP}, v{FP}, v{FP+1}', f'v_add_f32 v{FP+2}, v{FP+2}, v{FP+3}', f'v_add_f32 v{FP}, v{FP}, v{FP+2}',
              f'v_cvt_pk_bf16_f32 v{FP+1}, 0, v{FP}', f'v_add_f32 v{FP+1}, s38, v{FP+1}', f'v_cvt_pk_bf16_f32 v{FP+1}, 0, v{FP+1}',
              f'v_cndmask_b32 v{FP}, v{FP}, v{FP+1}, s[40:41]', f'buffer_store_dword v{FP}, v20, s[{sWS}:{sWS+3}], s36 offen']
    EX2 = X.get('ex2', 0)
    RING = {0: [0,0,1,1,2,2] if not EX2 else [1,1,2,2,0,0,4,4], 1: [4,4,0,0,1,1]}
    def ent(ph, kk):
        if ph == 0 and EX2: return kk if kk < 8 else (kk - 2) % 6
        return kk % 6
    def nxt_dma(ph, k):
        if ph == 0 and EX2 and k < 8: return k + 8 if k < 6 else None
        return k + 6 if k + 6 < 32 else None
    vAX = [23, 24]
    def wo_row(kk): return ((kk >> 2) & 3)*128 + ((kk >> 4)*4 + (kk & 3))*16
    def a_dma(ph, kk):
        e = ent(ph, kk)
        lds = RING[ph][e]*SLOT + (e & 1)*2048
        if ph == 0:
            so = [kk*16*8192, kk*16*8192 + 8*8192 - 1024]; sb = sBQ; srd_ = sWQ; v = vD
        else:
            so = [wo_row(kk)*1024, wo_row(kk)*1024 + 7168]; sb = sBO; srd_ = sWO; v = vD2
            if 'wosmall' in X: so = [(kk % 8)*16384, (kk % 8)*16384 + 7168]
        h0 = f's_add_u32 m0, s{sW4K}, {lds}\ns_add_u32 s{t2}, s{sb}, {so[0]}\nbuffer_load_dwordx4 v{v}, s[{srd_}:{srd_+3}], s{t2} offen lds ; W:E{e}'
        h1 = f's_add_u32 s{t2}, s{sb}, {so[1]}\nbuffer_load_dwordx4 v{v}, s[{srd_}:{srd_+3}], s{t2} offen offset:1024 lds ; W:E{e}'
        return [h0, h1]
    def kv_dma(c, js=(0,1,2,3), tag=None):
        L = [f's_add_u32 m0, s{sW4K}, {slot_of(c)}']
        if c % 2 == 0:
            L.append(f's_add_u32 s{t2}, s{sBK}, {((c-16)//2)*32768}')
            for j in js:
                L.append(f'buffer_load_dwordx4 v{vKD[j]}, s[{sK}:{sK+3}], s{t2} offen offset:{1024*j} lds ; W:C{c}' + (f' W:{tag}' if tag else ''))
        else:
            L.append(f's_add_u32 s{t2}, s{sBV}, {((c-17)//2)*32768}')
            for j in js:
                L.append(f'buffer_load_dwordx4 v{vLANE16}, s[{sWS}:{sWS+3}], s{t2} offen offset:{1024*j} lds ; W:C{c}' + (f' W:{tag}' if tag else ''))
        return L
    def touch_ops(kind):
        L = []
        if 'notouch' in X or ('no' + kind) in X: return L
        if kind == 'wo':
            L.append(f'v_lshlrev_b32 v{vT2}, 1, v{vLANE16}')
            L.append(f's_lshl_b32 s{t0}, s{sG}, 19')
            L.append(f's_lshl_b32 s{t1}, s{sRB}, 14')
            L.append(f's_add_u32 s{t0}, s{t0}, s{t1}')
            L.append(f's_lshl_b32 s{t1}, s{sW}, 11')
            L.append(f's_add_u32 s{t0}, s{t0}, s{t1}')
            L.append(f'buffer_load_dword v{vT2}, v{vT2}, s[{sWO}:{sWO+3}], s{t0} offen')
        elif X.get('wbmode', 1) == 0:
            d = sTC
            L.append(f'v_lshlrev_b32 v{vT2}, 3, v{vLANE16}')
            L.append(f's_cmp_eq_u32 s{sHD}, 1\ns_cselect_b32 s{d}, s58, s56\ns_cselect_b32 s{d+1}, s59, s57')
            L.append(f's_cmp_eq_u32 s{sHD}, 2\ns_cselect_b32 s{d}, s60, s{d}\ns_cselect_b32 s{d+1}, s61, s{d+1}')
            L.append(f's_cmp_eq_u32 s{sHD}, 3\ns_cselect_b32 s{d}, s62, s{d}\ns_cselect_b32 s{d+1}, s63, s{d+1}')
            L.append(f's_mov_b32 s{d+2}, {512*1024}\ns_movk_i32 s{t0}, 2048\ns_cmp_ge_u32 s{sHD}, 2\ns_cselect_b32 s{d+2}, {1792*1024}, s{d+2}\ns_cselect_b32 s{t0}, 7168, s{t0}')
            L.append(f's_mov_b32 s{d+3}, 0x00020000')
            L.append(f's_mul_i32 s{t0}, s{t0}, s2')
            L.append(f'buffer_load_dword v{vT2}, v{vT2}, s[{d}:{d+3}], s{t0} offen')
        else:
            d = sTC
            L.append(f'v_lshlrev_b32 v{vT2}, 3, v{vLANE16}')
            L.append(f's_cmp_eq_u32 s{sHD}, 1\ns_cselect_b32 s{d}, s58, s{sWS}\ns_cselect_b32 s{d+1}, s59, s{sWS+1}\ns_cselect_b32 s{d+2}, {512*1024}, s{sWS+2}\ns_cselect_b32 s{t1}, 0, {WS_W1P:#x}')
            L.append(f's_cmp_eq_u32 s{sHD}, 2\ns_cselect_b32 s{d}, s60, s{d}\ns_cselect_b32 s{d+1}, s61, s{d+1}')
            L.append(f's_cmp_eq_u32 s{sHD}, 3\ns_cselect_b32 s{d}, s62, s{d}\ns_cselect_b32 s{d+1}, s63, s{d+1}')
            L.append(f's_lshl_b32 s{t0}, s{sRB}, 14\ns_add_u32 s{t1}, s{t1}, s{t0}\ns_lshl_b32 s{t0}, s{sRH}, 13\ns_add_u32 s{t1}, s{t1}, s{t0}')
            L.append(f's_mul_i32 s{t0}, s2, 7168\ns_cmp_ge_u32 s{sHD}, 2\ns_cselect_b32 s{d+2}, {1792*1024}, s{d+2}\ns_cselect_b32 s{t0}, s{t0}, s{t1}')
            L.append(f's_mov_b32 s{d+3}, 0x00020000')
            L.append(f'buffer_load_dword v{vT2}, v{vT2}, s[{d}:{d+3}], s{t0} offen')
        return L
    def pf_ops(kind):
        d = sTC
        L = []
        if kind == 'w4':
            L.append(f'v_lshrrev_b32 v{vT2}, 4, v{vLANE16}\nv_min_u32 v{vT2}, 55, v{vT2}\nv_lshlrev_b32 v{vT2}, 7, v{vT2}')
            L.append(f's_mov_b32 s{d}, s62\ns_mov_b32 s{d+1}, s63\ns_mov_b32 s{d+2}, {1792*1024}\ns_mov_b32 s{d+3}, 0x00020000')
            L.append(f's_lshl_b32 s{t0}, s{sRB}, 3\ns_add_u32 s{t0}, s{t0}, s{sW}\ns_mul_i32 s{t0}, s{t0}, 7168')
        elif kind == 'w3':
            L.append(f'v_bfe_u32 v{vT2}, v{vLANE16}, 4, 5\nv_min_u32 v{vT2}, 13, v{vT2}\nv_lshlrev_b32 v{vT2}, 7, v{vT2}')
            L.append(f'v_lshrrev_b32 v{vT1}, 9, v{vLANE16}\nv_mul_u32_u24 v{vT1}, 3584, v{vT1}\nv_add_u32 v{vT2}, v{vT2}, v{vT1}')
            L.append(f's_mov_b32 s{d}, s60\ns_mov_b32 s{d+1}, s61\ns_mov_b32 s{d+2}, {512*3584}\ns_mov_b32 s{d+3}, 0x00020000')
            L.append(f's_lshl_b32 s{t0}, s{sRB}, 3\ns_add_u32 s{t0}, s{t0}, s{sW}\ns_mul_i32 s{t0}, s{t0}, {2*3584}\ns_and_b32 s{t1}, s{sG}, 1\ns_mul_i32 s{t1}, s{t1}, 1792\ns_add_u32 s{t0}, s{t0}, s{t1}')
        L.append(f'buffer_load_dword v{vT2}, v{vT2}, s[{d}:{d+3}], s{t0} offen')
        return L
    def start_touch():
        if 'notouch' in X: return
        I('v_bfe_u32 v22, v21, 3, 1')
        I('v_and_b32 v23, 7, v21')
        I('v_lshlrev_b32 v22, 13, v22')
        I('v_lshl_add_u32 v22, v23, 7, v22')
        I(f's_lshl_b32 s100, s{sRB}, 17')
        I(f's_lshl_b32 s{t2}, s{sW}, 14')
        I(f's_add_u32 s100, s100, s{t2}')
        I(f's_lshl_b32 s{t2}, s{sG}, 10')
        I(f's_add_u32 s100, s100, s{t2}')
        I(f'buffer_load_dword v94, v22, s[{sWQ}:{sWQ+3}], s100 offen')
        I('v_and_b32 v23, 3, v21')
        I('v_lshlrev_b32 v23, 7, v23')
        I(f's_lshl_b32 s100, s{sG}, 19')
        I(f's_lshl_b32 s{t2}, s{sRB}, 12')
        I(f's_add_u32 s100, s100, s{t2}')
        I(f's_lshl_b32 s{t2}, s{sW}, 9')
        I(f's_add_u32 s100, s100, s{t2}')
        I(f's_add_u32 s100, s100, {1536*256}')
        I(f'buffer_load_dword v95, v23, s[{sK}:{sK+3}], s100 offen')
    def touch2(kind, dst):
        L = []
        if kind in 'uv':
            L.append(f'v_and_b32 v{dst}, 0x70, v{vLANE16}')
            L.append(f'v_lshlrev_b32 v{dst}, 3, v{dst}')
            L.append(f's_lshl_b32 s44, s{sRB}, 16\ns_lshl_b32 s45, s{sW}, 13\ns_add_u32 s44, s44, s45\ns_lshl_b32 s45, s{sG}, 10\ns_add_u32 s44, s44, s45' + (f'\ns_add_u32 s44, s44, {256*8192}' if kind == 'v' else ''))
            L.append(f'buffer_load_dword v{dst}, v{dst}, s[{sWQ}:{sWQ+3}], s44 offen')
        else:
            L.append(f'v_and_b32 v{dst}, 0x30, v{vLANE16}')
            L.append(f'v_lshlrev_b32 v{dst}, 3, v{dst}')
            L.append(f's_lshl_b32 s44, s{sG}, 19\ns_lshl_b32 s45, s{sRB}, 12\ns_add_u32 s44, s44, s45\ns_lshl_b32 s45, s{sW}, 9\ns_add_u32 s44, s44, s45\ns_add_u32 s44, s44, {1536*256}')
            L.append(f'buffer_load_dword v{dst}, v{dst}, s[{sK}:{sK+3}], s44 offen')
        return L
    TD = {'u': 94, 'v': 95, 'k': 93}
    early = X.get('early', 'x0 a0 a1 t x1 a2 a3') if isinstance(X, dict) else 'x0 a0 a1 t x1 a2 a3'
    late = X.get('late', 'a4 a5 x2 x3 f') if isinstance(X, dict) else 'a4 a5 x2 x3 f'
    def emit_order(o):
        for tok in o.split():
            if tok == 't': start_touch()
            elif tok == 'm': mploads()
            elif tok == 'f':
                for s in finload(): I(s)
            elif tok in TD:
                for s in touch2(tok, TD[tok]): I(s)
            elif tok[0] == 'x':
                for s in xnload(int(tok[1])): I(s)
            else:
                for s in a_dma(0, int(tok[1])): I(s)
    emit_order(early)
    I('v_bfe_u32 v19, v21, 2, 2')
    I('v_lshl_add_u32 v22, v18, 3, v19')
    I('v_lshlrev_b32 v22, 7, v22')
    I('v_bfe_u32 v23, v21, 4, 1')
    I('v_lshl_add_u32 v22, v23, 5, v22')
    I('v_and_b32 v23, 1, v21')
    I('v_lshl_add_u32 v22, v23, 4, v22')
    I('v_bfe_u32 v23, v21, 1, 1')
    I('v_lshl_add_u32 v22, v23, 3, v22')
    I(f'v_add_u32 v22, s{sW4K}, v22')
    I('v_bfe_u32 v23, v21, 3, 1')
    I(f'v_lshl_add_u32 v{vA[0]}, v23, 6, v22')
    I('v_xor_b32 v23, 1, v23')
    I(f'v_lshl_add_u32 v{vA[1]}, v23, 6, v22')
    I(f'v_add_u32 v{vA[2]}, {2*SLOT}, v{vA[0]}')
    I(f'v_add_u32 v{vA[3]}, {2*SLOT}, v{vA[1]}')
    I('v_and_b32 v24, 31, v21')
    I('v_and_b32 v22, 15, v21')
    I('v_xor_b32 v22, v22, v18')
    I(f's_lshl_b32 s{t2}, s{sRH}, 3')
    I(f'v_xor_b32 v22, s{t2}, v22')
    I('v_lshlrev_b32 v24, 8, v24')
    I(f'v_add_u32 v24, {slot_of(16)}, v24')
    for s in range(8):
        I(f'v_xor_b32 v23, {2*s}, v22')
        I(f'v_lshl_add_u32 v{vKA[s]}, v23, 4, v24')
    I('v_lshrrev_b32 v24, 4, v21')
    I('v_and_b32 v22, 15, v21')
    I('v_xor_b32 v22, v22, v24')
    I('v_lshlrev_b32 v24, 8, v24')
    for j in range(4):
        I(f'v_xor_b32 v23, {4*j}, v22')
        I(f'v_lshl_add_u32 v{vKD[j]}, v23, 4, v24')
    I(f's_lshl_b32 s{t2}, s{sRH}, 14')
    I(f's_add_u32 s{t2}, s{t2}, {3*SLOT}')
    I(f'v_add_u32 v{vB[0]}, s{t2}, v{vLANE16}')
    I(f'v_xor_b32 v{vB[1]}, 0x4000, v{vB[0]}')
    I('v_mov_b32 v80, 0x3f80')
    I('v_mov_b32 v81, 0x3f800000')
    I('v_cvt_f32_u32 v26, v26')
    I('v_cmp_eq_u32 vcc, 0, v21')
    I('v_lshrrev_b32 v25, 3, v21')
    I('v_cmp_eq_u32 vcc, 0, v25')
    I('v_cndmask_b32 v25, 0, 16, vcc')
    STG = 3*SLOT + 16384 + 8192
    I(f's_lshl_b32 s{t2}, s{sW}, 10')
    I(f's_add_u32 s{t2}, s{t2}, {STG}')
    I(f'v_lshl_add_u32 v24, v21, 3, s{t2}')
    I(f'v_lshl_add_u32 v23, v18, 5, s{t2}')
    for e in range(2):
        I(f'v_add_f32 v{MP+e}, v{MP+e}, v{MP+2+e}')
        I(f'v_add_f32 v{MP+4+e}, v{MP+4+e}, v{MP+6+e}')
    for e in range(2): I(f'v_add_f32 v{MP+e}, v{MP+e}, v{MP+4+e}')
    for e in range(2): rnd_bf16(a, MP+e, MP+e)
    for e in range(2): I(f'v_add_f32 v{MP+e}, v{MP+e}, v26')
    for e in range(2): rnd_bf16(a, MP+e, MP+e)
    I(f'v_lshrrev_b32 v{MP}, v25, v{MP}')
    I(f'ds_write_b64 v24, v[{MP}:{MP+1}]')
    MO = 96
    for j in range(4):
        for q, off in enumerate((0, 16, 64, 80)):
            I(f'ds_read_b128 v[{MO+16*j+4*q}:{MO+16*j+4*q+3}], v23 offset:{128*j + off}')
    TT = 64
    def hwrite(j, rh):
        return f'ds_write_b128 v{vHW}, v[{XR+8*j+4*rh}:{XR+8*j+4*rh+3}] offset:{(j >> 1)*32768 + (j & 1)*8192 + rh*16384}'
    for rh in range(2):
        xb = XR + 4*rh
        for d in range(4):
            I(f'v_dot2_f32_bf16 v{TT+2*d}, v{xb+d}, v{MO+2*d}, 0')
            I(f'v_dot2_f32_bf16 v{TT+2*d+1}, v{xb+d}, v{MO+2*d+1}, 0')
        for d in range(4):
            I(f'v_cvt_pk_bf16_f32 v{xb+d}, v{TT+2*d}, v{TT+2*d+1}')
        for d in range(4):
            I(f'v_dot2_f32_bf16 v{TT+8+2*d}, v{xb+d}, v80, v{MO+8+2*d}')
            I(f'v_dot2_f32_bf16 v{TT+8+2*d+1}, v{xb+d}, v81, v{MO+8+2*d+1}')
        for d in range(4):
            I(f'v_cvt_pk_bf16_f32 v{xb+d}, v{TT+8+2*d}, v{TT+8+2*d+1}')
        I(hwrite(0, rh))
    def modq(j):
        L = []
        sb = MO + 16*j
        for rh in range(2):
            for half in range(2):
                seq = []
                for d in (2*half, 2*half+1):
                    x = XR + 8*j + 4*rh + d; lo = TT + 2*d; hi = lo + 1
                    seq.append([f'v_lshlrev_b32 v{lo}, 16, v{x}', f'v_and_b32 v{hi}, 0xffff0000, v{x}',
                                f'v_mul_f32 v{lo}, v{sb+2*d}, v{lo}', f'v_mul_f32 v{hi}, v{sb+2*d+1}, v{hi}',
                                f'v_cvt_pk_bf16_f32 v{lo}, 0, v{lo}', f'v_cvt_pk_bf16_f32 v{hi}, 0, v{hi}',
                                f'v_add_f32 v{lo}, v{sb+8+2*d}, v{lo}', f'v_add_f32 v{hi}, v{sb+8+2*d+1}, v{hi}',
                                f'v_cvt_pk_bf16_f32 v{x}, v{lo}, v{hi}'])
                for k in range(0, 8, 2):
                    for q in seq: L += q[k:k+2]
                for q in seq: L.append(q[8])
            L.append(hwrite(j, rh))
        return L
    def a_reads(ph, kk, nt):
        e = ent(ph, kk); sl = RING[ph][e]
        hi = sl >= 2
        off = (0 if hi else sl*SLOT) + (e & 1)*2048
        d = AF + 8*(kk & 1) + 4*nt
        va = vA[2*hi+nt] if e < 6 else vAX[nt]
        return [f'ds_read_b64_tr_b16 v[{d+2*t}:{d+2*t+1}], v{va} offset:{off + 512*t} ; R:E{e}' for t in range(2)]
    def b_read(kk, b):
        d = BFB + 8*(kk & 1) + 4*b
        return f'ds_read_b128 v[{d}:{d+3}], v{vB[b]} offset:{(kk >> 4)*32768 + (kk & 15)*1024}'
    emit_order(late)
    if EX2:
        I(f'v_add_u32 v{vAX[0]}, {4*SLOT}, v{vA[0]}')
        I(f'v_add_u32 v{vAX[1]}, {4*SLOT}, v{vA[1]}')
    for s in a_reads(0, 0, 0) + a_reads(0, 0, 1): I(s)
    I('s_waitcnt lgkmcnt(0)')
    I('s_barrier')
    st()

    def gemm_phase(ph, acc, tail, side, bars, lastorder=None):
        for kk in range(32):
            if kk in bars:
                I('s_waitcnt lgkmcnt(0)')
                I('s_barrier')
            buf = kk & 1
            pr = X.get('prio', (0, 8, 16, 24)) if isinstance(X, dict) else (0, 8, 16, 24)
            if ph == 0 and isinstance(X, dict) and kk in X.get('p2st', ()): st()
            if pr and kk in pr: I(f's_setprio {3 - pr.index(kk)}')
            order = [(0,0), (1,0), (0,1), (1,1)]
            if kk == 31 and lastorder: order = lastorder
            mf = []
            for (mt, b) in order:
                d = acc + 16*(2*b + mt)
                cc = '0' if kk == 0 else f'v[{d}:{d+15}]'
                A = AF + 8*buf + 4*mt; B = BFB + 8*buf + 4*b
                mf.append(f'v_mfma_f32_32x32x16_bf16 v[{d}:{d+15}], v[{A}:{A+3}], v[{B}:{B+3}], {cc}')
            if kk < 31:
                r0 = a_reads(ph, kk+1, 0) + [b_read(kk+1, 0)]
                r1 = a_reads(ph, kk+1, 1) + [b_read(kk+1, 1)]
            else:
                r0 = r1 = []
            if ph == 1 and isinstance(X, dict) and 'p4last' in X:
                last = X['p4last']
                js = [j for j in range(6, 32) if (((j-6)*last + 12)//25) == kk]
                dm = a_dma(ph, js[0]) if js else ['', '']
            elif nxt_dma(ph, kk) is not None: dm = a_dma(ph, nxt_dma(ph, kk))
            else: dm = tail.get(kk, ['', ''])
            if ph == 1 and 'p4nodma' in X: dm = ['', '']
            if ph == 1 and 'p4noa' in X: r0 = r0[2:]; r1 = r1[2:]
            if ph == 1 and 'p4nob' in X: r0 = r0[:-1]; r1 = r1[:-1]
            main = [mf[0]] + r0 + [mf[1]] + r1 + [mf[2]] + ([dm[0]] if dm[0] else []) + [mf[3]] + ([dm[1]] if dm[1] else [])
            for s in interleave(main, side.get(kk, [])): I(s)
            if ph == 0 and kk in X.get('after', {}): emit_order(X['after'][kk])

    def split(L, n):
        return [L[len(L)*i//n: len(L)*(i+1)//n] for i in range(n)]
    side = {}
    XD = X if isinstance(X, dict) else {}
    for j, k0, n in XD.get('mq', ((1, 0, 4), (2, 4, 4), (3, 8, 4))):
        for i, part in enumerate(split(modq(j), n)):
            side[k0 + i] = side.get(k0 + i, []) + part
    for tok, kk in XD.get('sl', ()):
        L = finload() if tok == 'f' else touch2(tok, TD[tok]) if tok in TD else ['\n'.join(xnload(int(tok[1]))[2*i:2*i+2]) for i in range(2)]
        side[kk] = L + side.get(kk, [])
    fk = XD.get('fin', 14)
    side[fk] = side.get(fk, []) + finops
    p2bars = set(XD.get('bars', (6, 13)))
    tail = {}
    for kk, c, js in ((26, 16, (0,1)), (27, 16, (2,3)), (28, 17, (0,1)), (29, 17, (2,3))):
        if c == 17 and X.get('v0late'): continue
        L = kv_dma(c, js, tag=f'E{ent(0, kk)}')
        tail[kk] = ['\n'.join(L[:3]), L[3]]
    for s in [b_read(0, 0), b_read(0, 1)]: I(s)
    emit_order(X.get('post', ''))
    gemm_phase(0, ACC, tail, side, p2bars, lastorder=[(0,1), (1,1), (0,0), (1,0)])
    st()
    QF2 = 32
    SB_ = [64, 96]
    VF = 128
    KF = AF
    vVA = vT3
    vMR = vMX
    def k_reads(t):
        L = []
        c = 16 + 2*(t//4)
        for s in range(8):
            if t % 4 == 0 and t > 0:
                delta = slot_of(c) - slot_of(c-2)
                if delta >= 0: L.append(f'v_add_u32 v{vKA[s]}, {delta}, v{vKA[s]}')
                else: L.append(f'v_subrev_u32 v{vKA[s]}, {-delta}, v{vKA[s]}')
            L.append(f'ds_read_b128 v[{KF+4*s}:{KF+4*s+3}], v{vKA[s]} offset:{(t%4)*8192}')
        return L
    def v_reads(kap):
        L = []
        c = 17 + 2*(kap//8); ks = kap % 8; buf = kap & 1
        if ks == 0:
            L.append(f'v_add_u32 v{vVA}, {slot_of(c)}, v{vLANE16}')
        for mt in range(4):
            d = VF + 16*buf + 4*mt
            L.append(f'ds_read_b128 v[{d}:{d+3}], v{vVA} offset:{ks*4096 + mt*1024}')
        return L
    I(f's_load_dwordx8 s[56:63], s[0:1], {KA_W1}')
    I(f'v_add_u32 v{vT0}, s{sW4K}, v{vLANE16}')
    I(f'v_xor_b32 v{vT1}, 0x1000, v{vT0}')
    EXP = 64
    for q in range(4):
        for j in range(4*q, 4*q+4):
            I(f'v_cvt_pk_bf16_f32 v{EXP+j}, v{ACC+32+2*j}, v{ACC+32+2*j+1}')
        I(f'ds_write_b128 v{vT0}, v[{EXP+4*q}:{EXP+4*q+3}] offset:{1024*q}')
    for j in range(16):
        I(f'v_cvt_pk_bf16_f32 v{QF2+j}, v{ACC+2*j}, v{ACC+2*j+1}')
    CEXP = 1.4426950408889634 * 128 ** -0.5
    I(f's_mov_b32 s51, {f32bits(CEXP):#x}')
    for l in vL: I(f'v_mov_b32 v{l}, 0')
    a.wait_tags(['C16'], lg=True)
    I('s_barrier')
    if 'ast' in X: st()
    kr = k_reads(0)
    for s in kr[:4]: I(s)
    for q in range(4):
        I(kr[4+q])
        I(f'ds_read_b128 v[{QF2+16+4*q}:{QF2+16+4*q+3}], v{vT1} offset:{1024*q}')
    def s_mfmas(u):
        seq = []
        for tt in range(2):
            t = 2*u + tt
            b = SB_[u & 1] + 16*tt
            reads = k_reads(t+1) if t < 15 else []
            ri = 0
            for s in range(8):
                cc = '0' if s == 0 else f'v[{b}:{b+15}]'
                grp = [f'v_mfma_f32_32x32x16_bf16 v[{b}:{b+15}], v[{KF+4*s}:{KF+4*s+3}], v[{QF2+4*s}:{QF2+4*s+3}], {cc}']
                while ri < len(reads):
                    grp.append(reads[ri]); ri += 1
                    if reads[ri-1].startswith('ds_read'): break
                if 'pp' in X and s == 0 and X['pp'][tt] is not None: grp = [f's_setprio {X["pp"][tt]}'] + grp
                seq.append('\n'.join(grp))
        return seq
    def pv_mfmas(u, j):
        kap = 4*u + j; buf = kap & 1
        p = SB_[u & 1] + 8*j
        L = []
        for mt in range(4):
            d = ACC + 16*mt
            cc = '0' if kap == 0 else f'v[{d}:{d+15}]'
            L.append(f'v_mfma_f32_32x32x16_bf16 v[{d}:{d+15}], v[{VF+16*buf+4*mt}:{VF+16*buf+4*mt+3}], v[{p}:{p+3}], {cc}')
        return L
    def max_ops(u, tt):
        b = SB_[u & 1] + 16*tt
        L = []
        for i in range(8):
            if tt == 0 and i == 0:
                L.append(f'v_max_f32 v{vT0}, v{b}, v{b+1}')
            else:
                L.append(f'v_max3_f32 v{vT0}, v{b+2*i}, v{b+2*i+1}, v{vT0}')
        return L
    def p_ops(u, j):
        b = SB_[u & 1] + 8*j
        L = []
        for e in range(8):
            L.append(f'v_fma_f32 v{b+e}, v{b+e}, s51, v{vNEGM}' if 'nofma' not in X else 's_nop 0')
        for e in range(8):
            L.append(f'v_exp_f32 v{b+e}, v{b+e}')
        for d in range(4):
            L.append(f'v_add_f32 v{vL[d]}, v{vL[d]}, v{b+2*d}' if 'noadd' not in X else 's_nop 0')
            L.append(f'v_add_f32 v{vL[d]}, v{vL[d]}, v{b+2*d+1}' if 'noadd' not in X else 's_nop 0')
            L.append(f'v_cvt_pk_bf16_f32 v{b+d}, v{b+2*d}, v{b+2*d+1}')
        return L
    rare = []
    extra = kv_dma(18) + (kv_dma(17) if X.get('v0late') else []) + kv_dma(19) + touch_ops('wo')
    for s in extra[:6]: I(s)
    sm = s_mfmas(0)
    for s in merge(sm[:10], extra[6:]): I(s)
    for s in merge(sm[10:], max_ops(0, 0)): I(s)
    for s in max_ops(0, 1): I(s)
    tops = {0: (['C18', 'C17'], kv_dma(20)), 1: (['C19'], kv_dma(21)), 2: (['C20'], kv_dma(22) + (touch_ops('wb') if X.get('wbat', 2) == 2 else [])), 3: (['C21'], kv_dma(23)),
            4: (['C22'], a_dma(1, 0) + a_dma(1, 1)), 5: (['C23'], a_dma(1, 2) + a_dma(1, 3) + (touch_ops('wb') if X.get('wbat', 2) == 5 else [])), 6: None,
            7: ([], a_dma(1, 4) + a_dma(1, 5))}
    for kind, u_ in X.get('pf', ()):
        tops[u_] = (tops[u_][0], tops[u_][1] + pf_ops(kind))
    p4set = [f'v_add_u32 v{vA[2]}, {2*SLOT}, v{vA[2]}', f'v_add_u32 v{vA[3]}, {2*SLOT}, v{vA[3]}',
             f'v_add_u32 v{vB[0]}, {2*SLOT}, v{vLANE16}', f'v_add_u32 v{vB[1]}, {2*SLOT + 16384}, v{vLANE16}',
             f's_lshl_b32 s{t0}, s{sRH}, 14\ns_lshl_b32 s{t1}, s{sHD}, 12\ns_add_u32 s{t0}, s{t0}, s{t1}\ns_add_u32 s{t0}, s{t0}, {2*SLOT}',
             f'v_add_u32 v{vKA[0]}, s{t0}, v{vLANE16}']
    I(f'v_mov_b32 v{vT1}, v{vT0}')
    I(f'v_permlane32_swap_b32 v{vT0}, v{vT1}')
    I(f'v_max_f32 v{vT0}, v{vT0}, v{vT1}')
    I(f'v_mul_f32 v{vNEGM}, s51, v{vT0}')
    I(f'v_sub_f32 v{vNEGM}, {OFFS}, v{vNEGM}')
    lred = [f'v_add_f32 v{vL[0]}, v{vL[0]}, v{vL[1]}', f'v_add_f32 v{vL[2]}, v{vL[2]}, v{vL[3]}', f'v_add_f32 v{vL[0]}, v{vL[0]}, v{vL[2]}',
            f'v_mov_b32 v{vL[1]}, v{vL[0]}', 's_nop 1', f'v_permlane32_swap_b32 v{vL[0]}, v{vL[1]}', f'v_add_f32 v{vL[1]}, v{vL[0]}, v{vL[1]}', f'v_rcp_f32 v{vL[0]}, v{vL[1]}']
    for u in range(8):
        extra = []
        if u == 0 and 'late0' in X:
            sm = s_mfmas(1)
            pv = p_ops(0, 0) + p_ops(0, 1) + p_ops(0, 2)[:14]
            n0 = X['late0']
            for s in merge(sm[:n0], pv[:len(pv)*n0//16]): I(s)
            a.wait_tags(tops[0][0])
            I('s_barrier')
            for s in merge(sm[n0:], tops[0][1] + v_reads(0), pv[len(pv)*n0//16:]): I(s)
            rest = p_ops(u, 2)[14:] + p_ops(u, 3)
            nxt = p_ops(1, 0)
            side = {0: rest[:18], 1: rest[18:36], 2: rest[36:] + nxt[:10], 3: nxt[10:]}
        elif tops[u] is not None:
            a.wait_tags(tops[u][0])
            if not ('nobar' in X and u > 0): I('s_barrier')
            extra = tops[u][1]
        if 'aprio' in X: I(f's_setprio {X["aprio"][u]}')
        if 'ast' in X: st()
        if u == 0: extra = extra + v_reads(0)
        nxt = p_ops(u+1, 0) if u < 7 else []
        if u == 0 and 'late0' in X:
            pass
        elif u == 0:
            sm = s_mfmas(u+1)
            for s in merge(sm, extra, p_ops(u, 0) + p_ops(u, 1) + p_ops(u, 2)[:14]): I(s)
            rest = p_ops(u, 2)[14:] + p_ops(u, 3)
            side = {0: rest[:18], 1: rest[18:36], 2: rest[36:] + nxt[:10], 3: nxt[10:]}
        elif u < 7:
            sm = s_mfmas(u+1)
            for s in merge(sm, extra, p_ops(u, 1) + p_ops(u, 2)): I(s)
            p3 = p_ops(u, 3)
            side = {0: p3[:14], 1: p3[14:], 2: nxt[:14], 3: nxt[14:]}
        else:
            for s in extra: I(s)
            side = {0: p_ops(u, 1) + p4set[:3], 1: p_ops(u, 2) + p4set[3:], 2: p_ops(u, 3), 3: []}
        for j in range(4):
            kap = 4*u + j
            pre = v_reads(kap+1) if kap < 31 else []
            sd = side[j]
            if u == 7 and j == 3:
                sd = lred + [f'v_cmp_nle_f32 vcc, v{vL[1]}, {X.get("thr", "1.0")}']
                pre = a_reads(1, 0, 0) + a_reads(1, 0, 1)
            if 'pp' in X:
                pq = X['pp'][2+j] if u < 7 else 3-j
                if pq is not None: I(f's_setprio {pq}')
            for s in merge(pv_mfmas(u, j), pre, sd): I(s)
    I('s_nop 1')
    I('s_cbranch_vccnz K1_fb')
    a.out.append('K1_fbr:')
    f = Asm(); F = f.I
    KFb, St, VFb = 96, 64, 128
    vKa, vKb, vM = vKA[1], vKA[2], vKA[3]
    f.raw('K1_fb:')
    F('s_nop 15'); F('s_nop 15')
    F(f'v_lshrrev_b32 v{vT0}, 4, v{vLANE16}')
    F(f'v_and_b32 v{vT1}, 31, v{vT0}')
    F(f'v_lshlrev_b32 v{vT1}, 8, v{vT1}')
    F(f'v_lshrrev_b32 v{vT0}, 5, v{vT0}')
    F(f'v_lshl_add_u32 v{vT1}, v{vT0}, 4, v{vT1}')
    F(f's_lshl_b32 s40, s{sRH}, 7')
    F(f'v_add_u32 v{vKa}, s40, v{vT1}')
    F(f'v_xor_b32 v{vKb}, 0x80, v{vKa}')
    F(f'v_mov_b32 v{vM}, 0xff800000')
    def fb_s():
        for s_ in range(8):
            F(f'buffer_load_dwordx4 v[{KFb+4*s_}:{KFb+4*s_+3}], v{vKa if s_ < 4 else vKb}, s[{sK}:{sK+3}], s41 offen offset:{32*(s_ & 3)}')
    def fb_mf():
        for s_ in range(8):
            cc = '0' if s_ == 0 else f'v[{St}:{St+15}]'
            F(f'v_mfma_f32_32x32x16_bf16 v[{St}:{St+15}], v[{KFb+4*s_}:{KFb+4*s_+3}], v[{QF2+4*s_}:{QF2+4*s_+3}], {cc}')
    F(f's_sub_u32 s41, s{sBK}, s{sW4K}')
    F('s_mov_b32 s40, 0')
    f.label('K1_fb1')
    fb_s()
    F('s_waitcnt vmcnt(0)')
    fb_mf()
    for i in range(8):
        F(f'v_max3_f32 v{vM}, v{St+2*i}, v{St+2*i+1}, v{vM}')
    F('s_add_u32 s41, s41, 8192')
    F('s_add_u32 s40, s40, 1')
    F('s_cmp_lt_u32 s40, 16')
    F('s_nop 7')
    F('s_cbranch_scc1 K1_fb1')
    F(f'v_mov_b32 v{vT1}, v{vM}')
    F(f'v_permlane32_swap_b32 v{vM}, v{vT1}')
    F(f'v_max_f32 v{vM}, v{vM}, v{vT1}')
    F(f'v_mul_f32 v{vNEGM}, s51, v{vM}')
    F(f'v_sub_f32 v{vNEGM}, 0, v{vNEGM}')
    for i in range(64): F(f'v_mov_b32 v{ACC+i}, 0')
    for l in vL: F(f'v_mov_b32 v{l}, 0')
    F(f's_sub_u32 s41, s{sBK}, s{sW4K}')
    F(f's_sub_u32 s42, s{sBV}, s{sW4K}')
    F('s_mov_b32 s40, 0')
    f.label('K1_fb2')
    fb_s()
    F('s_add_u32 s43, s42, 4096')
    for j in range(2):
        for mt in range(4):
            d = VFb + 16*j + 4*mt
            F(f'buffer_load_dwordx4 v[{d}:{d+3}], v{vLANE16}, s[{sWS}:{sWS+3}], s{42+j} offen offset:{1024*mt}')
    F('s_waitcnt vmcnt(0)')
    fb_mf()
    for j in range(2):
        for s_ in p_ops(0, j): F(s_)
    for j in range(2):
        for mt in range(4):
            d = ACC + 16*mt
            F(f'v_mfma_f32_32x32x16_bf16 v[{d}:{d+15}], v[{VFb+16*j+4*mt}:{VFb+16*j+4*mt+3}], v[{St+8*j}:{St+8*j+3}], v[{d}:{d+15}]')
    F('s_add_u32 s41, s41, 8192')
    F('s_add_u32 s42, s42, 8192')
    F('s_add_u32 s40, s40, 1')
    F('s_cmp_lt_u32 s40, 16')
    F('s_nop 15'); F('s_nop 15')
    F('s_cbranch_scc1 K1_fb2')
    for s_ in lred: F(s_)
    F('s_nop 15'); F('s_nop 15')
    F('s_branch K1_fbr')
    rare = f.out
    st()
    OWN = 32; ACC4 = 64
    def norm(q):
        L = []
        for j in range(4*q, 4*q+4):
            L.append(f'v_mul_f32 v{ACC+2*j}, v{ACC+2*j}, v{vL[0]}')
            L.append(f'v_mul_f32 v{ACC+2*j+1}, v{ACC+2*j+1}, v{vL[0]}')
        for j in range(4*q, 4*q+4):
            L.append(f'v_cvt_pk_bf16_f32 v{OWN+j}, v{ACC+2*j}, v{ACC+2*j+1}')
        L.append(f'ds_write_b128 v{vKA[0]}, v[{OWN+4*q}:{OWN+4*q+3}] offset:{(q >> 2)*32768 + 1024*(q & 3)}')
        return L
    for q in range(4):
        for s in norm(q): I(s)
    I('s_waitcnt lgkmcnt(0)')
    I('s_barrier')
    for s in [b_read(0, 0), b_read(0, 1)]: I(s)
    for s in norm(4): I(s)
    st()
    side = {0: norm(5), 1: norm(6), 2: norm(7)}
    gemm_phase(1, ACC4, {}, side, set() if 'nox2' in X else ({X['x2at']} if isinstance(X, dict) and 'x2at' in X else {5}))
    st()
    I(f's_lshl_b32 s{t0}, s{sG}, 21')
    I(f's_lshl_b32 s{t1}, s{sRB}, 16')
    I(f's_add_u32 s{t0}, s{t0}, s{t1}')
    I(f's_add_u32 s{t0}, s{t0}, s{sW4K}')
    I(f's_add_u32 s{t0}, s{t0}, {WS_P:#x}')
    I(f's_add_u32 s{t1}, s{t0}, 32768')
    pace = X.get('pace') if isinstance(X, dict) else None
    def stores(pc):
        for j in range(32):
            I(f'v_cvt_pk_bf16_f32 v{OWN+j}, v{ACC4+2*j}, v{ACC4+2*j+1}')
            if j % 4 == 3:
                q = j // 4
                so = f's{t0}' if q < 4 else f's{t1}'
                if pc is not None and q > pc: I(f's_waitcnt vmcnt({pc})')
                I(f'buffer_store_dwordx4 v[{OWN+4*q}:{OWN+4*q+3}], v{vLANE16}, s[{sWS}:{sWS+3}], {so} offen offset:{1024*(q%4)}')
    if pace is not None:
        I(f's_cmp_ge_u32 s{sW}, 4')
        I('s_cbranch_scc1 K1_st2')
        I('s_nop 15')
        stores(pace)
        I('s_branch K1_st3')
        a.label('K1_st2')
        I('s_nop 15')
        stores(None)
        a.label('K1_st3')
    else:
        stores(None)
    if stamps:
        I(f'v_lshrrev_b32 v{vT3}, 4, v{vLANE16}')
        st.flush(sWS, sW, 200, vT3)
    a.label('K1_end')
    I('s_endpgm')
    a.out += rare
    print("K1 instrs", a.ninstr, "nops", a.nnop)
    return a.text(), kernel_desc(name, 256, 102)
```

```python
from common import *

LOG2E = 1.4426950408889634
def gelu_ops(x, t, sC0, sC1):
    return [
        f'v_mul_f32 v{t}, v{x}, v{x}',
        f'v_fma_f32 v{t}, v{t}, {sC1}, {sC0}',
        f'v_mul_f32 v{t}, v{t}, v{x}',
        f'v_exp_f32 v{t}, v{t}',
        f'v_add_f32 v{t}, 1.0, v{t}',
        f'v_rcp_f32 v{t}, v{t}',
        f'v_mul_f32 v{x}, v{x}, v{t}',
    ]

def ident_frags(a, lane, A0, A1, t0, t1, t2):
    I = a.I
    I(f'v_and_b32 v{t0}, 31, v{lane}')
    I(f'v_and_b32 v{t1}, 0x13, v{t0}')
    I(f'v_bfe_u32 v{t2}, v{t0}, 2, 1')
    I(f'v_lshl_or_b32 v{t1}, v{t2}, 3, v{t1}')
    I(f'v_bfe_u32 v{t2}, v{t0}, 3, 1')
    I(f'v_lshl_or_b32 v{t1}, v{t2}, 2, v{t1}')
    I(f'v_lshrrev_b32 v{t0}, 5, v{lane}')
    I(f'v_lshlrev_b32 v{t0}, 3, v{t0}')
    I(f'v_sub_u32 v{t1}, v{t1}, v{t0}')
    for which, A in ((0, A0), (1, A1)):
        for dw in range(4):
            I(f'v_mov_b32 v{A+dw}, 0')
            I(f'v_cmp_eq_u32 vcc, {16*which + 2*dw}, v{t1}')
            I(f'v_mov_b32 v{t2}, 0x3f80')
            I(f'v_cndmask_b32 v{A+dw}, v{A+dw}, v{t2}, vcc')
            I(f'v_cmp_eq_u32 vcc, {16*which + 2*dw + 1}, v{t1}')
            I(f'v_mov_b32 v{t2}, 0x3f800000')
            I(f'v_cndmask_b32 v{A+dw}, v{A+dw}, v{t2}, vcc')

def half_sum(a, r, t):
    a.I(f'v_mov_b32 v{t}, v{r}')
    a.I(f'v_permlane32_swap_b32 v{r}, v{t}')
    a.I(f'v_add_f32 v{r}, v{r}, v{t}')

def ln_rstd(a, var, mean):
    rnd_bf16(a, mean, mean)
    rnd_bf16(a, var, var)
    a.I(f'v_add_f32 v{var}, {f32bits(1e-5):#x}, v{var}')
    rnd_bf16(a, var, var)
    a.I(f'v_sqrt_f32 v{var}, v{var}')
    rnd_bf16(a, var, var)
    a.I(f'v_rcp_f32 v{var}, v{var}')

def gen_k2(name, stamps=False, X={}):
    a = Asm()
    st = Stamper(a, stamps, 2)
    kernel_header(a, name)
    I = a.I
    L_HB, L_S2, L_S3 = 0, 16384, 17408
    vLANE, vL16 = 1, 2
    vFO = 3
    A0, A1 = 4, 8
    T = [12,13,14,15,16,17,18,19]
    XR = 20
    U = 28
    GA = 32; D = 48; TB = 64; SB = 80
    P = 64
    AW = 160
    I('s_cmp_ge_u32 s2, 256')
    I('s_cbranch_scc1 K2_end')
    I(f's_load_dwordx2 s[24:25], s[0:1], {KA_WS}')
    I(f's_load_dwordx2 s[8:9], s[0:1], {KA_X}')
    if X.get('pf3') or X.get('pf4'):
        I(f's_load_dwordx2 s[56:57], s[0:1], {KA_W3}')
        I(f's_load_dwordx2 s[60:61], s[0:1], {KA_W4}')
    I(f'v_and_b32 v{vLANE}, 63, v0')
    I('v_lshrrev_b32 v3, 6, v0')
    I('s_nop 0')
    I('v_readfirstlane_b32 s34, v3')
    I('s_and_b32 s35, s2, 7')
    I('s_lshr_b32 s36, s2, 3')
    I('s_lshl_b32 s35, s35, 4')
    I('s_lshr_b32 s37, s36, 1')
    I('s_add_u32 s35, s35, s37')
    I('s_and_b32 s36, s36, 1')
    I(f'v_lshlrev_b32 v{vL16}, 4, v{vLANE}')
    I(f'v_and_b32 v{T[0]}, 15, v{vLANE}')
    I(f'v_bfe_u32 v{T[1]}, v{vLANE}, 4, 1')
    I(f'v_lshrrev_b32 v{T[2]}, 5, v{vLANE}')
    I(f'v_lshl_add_u32 v{vFO}, v{T[2]}, 5, v{T[0]}')
    I('s_and_b32 s37, s35, 1')
    I('s_lshl_b32 s37, s37, 4')
    I(f'v_add_u32 v{vFO}, s37, v{vFO}')
    I(f'v_lshlrev_b32 v{vFO}, 4, v{vFO}')
    I(f'v_lshl_add_u32 v{vFO}, v{T[1]}, 10, v{vFO}')
    for d, n in ((8, 2048*1024), (24, WS_SIZE)):
        I(f's_mov_b32 s{d+2}, {n:#x}'); I(f's_mov_b32 s{d+3}, 0x00020000')
    I('s_lshr_b32 s40, s35, 1')
    I('s_lshl_b32 s40, s40, 15')
    I('s_lshl_b32 s41, s34, 12')
    I('s_add_u32 s41, s40, s41')
    I(f's_add_u32 s42, s41, {WS_P:#x}')
    pl = []
    for g in range(8):
        for f in range(2):
            r = P + 8*g + 4*f
            pl.append(f's_add_u32 s43, s42, {g*2097152:#x}\nbuffer_load_dwordx4 v[{r}:{r+3}], v{vFO}, s[24:27], s43 offen offset:{2048*f}')
    I('s_waitcnt lgkmcnt(0)')
    st.first()
    NP0 = X.get('np0', 2); NA0 = X.get('na0', 28)
    for s in pl[:NP0]: I(s)
    I(f'v_lshlrev_b32 v{T[3]}, 10, v{T[0]}')
    I(f'v_lshl_add_u32 v{T[3]}, v{T[1]}, 5, v{T[3]}')
    I(f'v_lshl_add_u32 v{T[3]}, v{T[2]}, 4, v{T[3]}')
    I('s_lshl_b32 s43, s35, 14')
    I('s_lshl_b32 s44, s34, 7')
    I('s_add_u32 s43, s43, s44')
    for f in range(2):
        I(f'buffer_load_dwordx4 v[{XR+4*f}:{XR+4*f+3}], v{T[3]}, s[8:11], s43 offen offset:{64*f}')
    I(f'v_lshlrev_b32 v{T[4]}, 6, v{T[1]}')
    I(f'v_lshl_add_u32 v{T[4]}, v{T[2]}, 5, v{T[4]}')
    I('s_lshl_b32 s44, s34, 8')
    I(f's_add_u32 s44, s44, {WS_MOD:#x}')
    def modloads(lst):
        L = []
        for vec, base in lst:
            for f in range(2):
                for h2 in range(2):
                    r = base + 8*f + 4*h2
                    L.append(f's_add_u32 s43, s44, {2048*vec}\nbuffer_load_dwordx4 v[{r}:{r+3}], v{T[4]}, s[24:27], s43 offen offset:{128*f + 16*h2}')
        return L
    for s in modloads([(0, GA)]): I(s)
    I('s_lshl_b32 s45, s36, 3')
    I('s_add_u32 s45, s45, s34')
    I('s_lshl_b32 s46, s45, 15')
    I(f's_add_u32 s46, s46, {WS_W1P:#x}')
    aloads = []
    for ks in range(16):
        for Tt in range(2):
            idx = 2*ks + Tt
            aloads.append(f's_add_u32 s47, s46, {Tt*16384 + (ks//4)*4096}\nbuffer_load_dwordx4 a[{4*idx}:{4*idx+3}], v{vL16}, s[24:27], s47 offen offset:{1024*(ks%4)}')
    for s in merge(pl[NP0:], aloads[:NA0]): I(s)
    ident_frags(a, vLANE, A0, A1, T[5], T[6], T[7])
    I('s_mov_b32 s52, 0xffff0000')
    I('s_mov_b32 s53, 0x3f803f80')
    NA1 = X.get('na1', 32)
    for s in aloads[NA0:NA1]: I(s)
    st()
    red = []
    first = True
    for g in range(8):
        for f in range(2):
            r = P + 8*g + 4*f
            A = A0 if f == 0 else A1
            cc = '0' if first else f'v[{D}:{D+15}]'
            red.append(f'v_mfma_f32_32x32x16_bf16 v[{D}:{D+15}], v[{A}:{A+3}], v[{r}:{r+3}], {cc}')
            first = False
    for s in red: I(s)
    x1o = []
    for e in range(0, 16, 2):
        r = D + e; u = U + 2*((e//2) % 2); xr = XR + e//2
        x1o.append(f'v_lshlrev_b32 v{u}, 16, v{xr}')
        x1o.append(f'v_and_b32 v{u+1}, s52, v{xr}')
        x1o.append(f'v_pk_fma_f32 v[{r}:{r+1}], v[{r}:{r+1}], v[{GA+e}:{GA+e+1}], v[{u}:{u+1}]')
        x1o.append(f'v_cvt_pk_bf16_f32 v{xr}, v{r}, v{r+1}')
        x1o.append(f'v_lshlrev_b32 v{r}, 16, v{xr}')
        x1o.append(f'v_and_b32 v{r+1}, s52, v{xr}')
    I('s_nop 7')
    CS = A0 if X.get('cse', 1) else D + 8
    csl = [f'v_lshrrev_b32 v{T[1]}, 4, v{vLANE}\nv_lshlrev_b32 v{T[1]}, 5, v{T[1]}\ns_lshl_b32 s48, s45, 7\ns_add_u32 s48, s48, {WS_CS1:#x}']
    for h2 in range(2):
        csl.append(f'buffer_load_dwordx4 v[{CS+4*h2}:{CS+4*h2+3}], v{T[1]}, s[24:27], s48 offen offset:{16*h2}')
    for s in merge(x1o, modloads([(2, TB), (1, SB)]) + (csl if X.get('cse', 1) else []) + aloads[NA1:]): I(s)
    st()
    def stats_local(mean, var):
        I(f'v_mov_b32 v{mean}, 0'); I(f'v_mov_b32 v{var}, 0'); I(f'v_mov_b32 v{T[6]}, 0'); I(f'v_mov_b32 v{T[7]}, 0')
        for j in range(0, 8, 2):
            I(f'v_dot2_f32_bf16 v{mean}, v{XR+j}, s53, v{mean}')
            I(f'v_dot2_f32_bf16 v{var}, v{XR+j}, v{XR+j}, v{var}')
            I(f'v_dot2_f32_bf16 v{T[6]}, v{XR+j+1}, s53, v{T[6]}')
            I(f'v_dot2_f32_bf16 v{T[7]}, v{XR+j+1}, v{XR+j+1}, v{T[7]}')
        I('s_nop 2')
        I(f'v_add_f32 v{mean}, v{mean}, v{T[6]}')
        I(f'v_add_f32 v{var}, v{var}, v{T[7]}')
        for op in ('v_permlane16_swap_b32', 'v_permlane32_swap_b32'):
            I(f'v_mov_b32 v{T[6]}, v{mean}'); I(f'v_mov_b32 v{T[7]}, v{var}')
            I(f'{op} v{mean}, v{T[6]}'); I(f'{op} v{var}, v{T[7]}')
            I(f'v_add_f32 v{mean}, v{mean}, v{T[6]}'); I(f'v_add_f32 v{var}, v{var}, v{T[7]}')
    def stats_write(area, mean, var):
        I(f'v_lshlrev_b32 v{T[5]}, 3, v{T[0]}')
        I('s_lshl_b32 s48, s34, 7')
        I(f's_add_u32 s48, s48, {area}')
        I(f'v_add_u32 v{T[6]}, s48, v{T[5]}')
        I(f'ds_write_b64 v{T[6]}, v[{mean}:{var}]')
    def stats_read(area, mean, var, R):
        for w in range(8):
            I(f'ds_read_b64 v[{R+2*w}:{R+2*w+1}], v{T[5]} offset:{area + 128*w}')
        for stp in (4, 2, 1):
            for w in range(stp):
                I(f'v_pk_add_f32 v[{R+2*w}:{R+2*w+1}], v[{R+2*w}:{R+2*w+1}], v[{R+2*(w+stp)}:{R+2*(w+stp)+1}]')
        I(f'v_mul_f32 v{mean}, {f32bits(1.0/512):#x}, v{R}')
        I(f'v_mul_f32 v{var}, {f32bits(1.0/512):#x}, v{R+1}')
        I(f'v_fma_f32 v{var}, -v{mean}, v{mean}, v{var}')
        I(f'v_max_f32 v{var}, 0, v{var}')
        ln_rstd(a, var, mean)
    M, V = T[2], T[3]
    stats_local(M, V)
    stats_write(L_S2, M, V)
    I('s_lshr_b32 s47, s34, 2')
    I('s_cmp_eq_u32 s47, s36')
    I('s_cselect_b32 s54, 0, 0x10000000')
    I(f's_add_u32 s43, s41, {WS_X1:#x}')
    I('s_add_u32 s43, s43, s54')
    for f in range(2):
        I(f'buffer_store_dwordx4 v[{XR+4*f}:{XR+4*f+3}], v{vFO}, s[24:27], s43 offen offset:{2048*f}')
    if X.get('pf3', 0):
        I(f's_mov_b32 s58, {512*3584}'); I('s_mov_b32 s59, 0x00020000')
        I(f'v_and_b32 v{U}, 31, v{vLANE}')
        I(f'v_min_u32 v{U}, 13, v{U}')
        I(f'v_lshlrev_b32 v{U}, 7, v{U}')
        I(f'v_lshrrev_b32 v{U+1}, 5, v{vLANE}')
        I(f'v_mad_u32_u24 v{U}, v{U+1}, s58, v{U}') if False else I(f'v_mul_u32_u24 v{U+1}, 3584, v{U+1}')
        I(f'v_add_u32 v{U}, v{U}, v{U+1}')
        I('s_lshr_b32 s64, s2, 3'); I('s_lshl_b32 s64, s64, 3'); I('s_add_u32 s64, s64, s34'); I(f's_mul_i32 s64, s64, {2*3584}')
        I('s_and_b32 s65, s2, 1'); I('s_mul_i32 s65, s65, 1792'); I('s_add_u32 s64, s64, s65')
        I(f'buffer_load_dword v0, v{U}, s[56:59], s64 offen')
    if X.get('pf4', 0):
        I(f's_mov_b32 s62, {1792*1024}'); I('s_mov_b32 s63, 0x00020000')
        I(f'v_min_u32 v{U+2}, 55, v{vLANE}')
        I(f'v_lshlrev_b32 v{U+2}, 7, v{U+2}')
        I('s_lshr_b32 s64, s2, 3'); I('s_lshl_b32 s64, s64, 3'); I('s_add_u32 s64, s64, s34'); I(f's_mul_i32 s64, s64, 7168')
        I(f'buffer_load_dword v4, v{U+2}, s[60:63], s64 offen')
    I('s_waitcnt lgkmcnt(0)')
    I('s_barrier')
    stats_read(L_S2, M, V, GA)
    st()
    I(f'v_sub_f32 v{U}, 0, v{M}'); I(f'v_sub_f32 v{U+1}, 0, v{M}')
    I(f'v_mov_b32 v{U+2}, v{V}'); I(f'v_mov_b32 v{U+3}, v{V}')
    for e in range(0, 16, 2):
        r = D + e
        I(f'v_pk_add_f32 v[{r}:{r+1}], v[{r}:{r+1}], v[{U}:{U+1}]')
        I(f'v_pk_mul_f32 v[{TB+e}:{TB+e+1}], v[{TB+e}:{TB+e+1}], v[{U+2}:{U+3}]')
        I(f'v_pk_fma_f32 v[{r}:{r+1}], v[{r}:{r+1}], v[{TB+e}:{TB+e+1}], v[{SB+e}:{SB+e+1}]')
        I(f'v_cvt_pk_bf16_f32 v{XR+e//2}, v{r}, v{r+1}')
    I('s_lshl_b32 s48, s34, 11')
    I(f'v_add_u32 v{T[4]}, s48, v{vL16}')
    for f in range(2):
        I(f'ds_write_b128 v{T[4]}, v[{XR+4*f}:{XR+4*f+3}] offset:{L_HB + 1024*f}')
    stats_local(M, V)
    stats_write(L_S3, M, V)
    I(f's_add_u32 s43, s41, {WS_HB:#x}')
    I('s_add_u32 s43, s43, s54')
    for f in range(2):
        I(f'buffer_store_dwordx4 v[{XR+4*f}:{XR+4*f+3}], v{vFO}, s[24:27], s43 offen offset:{2048*f}')
    I(f'v_lshrrev_b32 v{T[4]}, 4, v{vLANE}')
    if not X.get('cse', 1):
        for s in csl: I(s)
    I('s_waitcnt lgkmcnt(0)')
    I('s_barrier')
    st()
    BF = P
    ACC = D
    mfs = []
    for ks in range(16):
        for Tt in range(2):
            idx = 2*ks + Tt
            b = ACC + 4*Tt
            cc = '0' if ks == 0 else f'v[{b}:{b+3}]'
            mfs.append(f'v_mfma_f32_16x16x32_bf16 v[{b}:{b+3}], a[{4*idx}:{4*idx+3}], v[{BF+4*ks}:{BF+4*ks+3}], {cc}')
    if X.get('g2', 1):
        R = GA
        for ks in range(8):
            I(f'ds_read_b128 v[{BF+4*ks}:{BF+4*ks+3}], v{vL16} offset:{L_HB + 1024*ks}')
        rd2 = [f'ds_read_b128 v[{BF+4*ks}:{BF+4*ks+3}], v{vL16} offset:{L_HB + 1024*ks}' for ks in range(8, 16)]
        rd2 += [f'ds_read_b64 v[{R+2*w}:{R+2*w+1}], v{T[5]} offset:{L_S3 + 128*w}' for w in range(8)]
        sm = []
        for stp in (4, 2, 1):
            for w in range(stp):
                sm.append(f'v_add_f32 v{R+2*w}, v{R+2*w}, v{R+2*(w+stp)}')
                sm.append(f'v_add_f32 v{R+2*w+1}, v{R+2*w+1}, v{R+2*(w+stp)+1}')
        sm += [f'v_mul_f32 v{M}, {f32bits(1.0/512):#x}, v{R}', f'v_mul_f32 v{V}, {f32bits(1.0/512):#x}, v{R+1}', f'v_fma_f32 v{V}, -v{M}, v{M}, v{V}', f'v_max_f32 v{V}, 0, v{V}',
               f'v_cvt_pk_bf16_f32 v{M}, 0, v{M}', f'v_cvt_pk_bf16_f32 v{V}, 0, v{V}', f'v_add_f32 v{V}, {f32bits(1e-5):#x}, v{V}', f'v_cvt_pk_bf16_f32 v{V}, 0, v{V}',
               f'v_sqrt_f32 v{V}, v{V}', f'v_cvt_pk_bf16_f32 v{V}, 0, v{V}', f'v_rcp_f32 v{V}, v{V}']
        for s in merge(mfs[:12], rd2): I(s)
        for s in merge(mfs[12:], sm): I(s)
    else:
        for ks in range(16):
            I(f'ds_read_b128 v[{BF+4*ks}:{BF+4*ks+3}], v{vL16} offset:{L_HB + 1024*ks}')
        stats_read(L_S3, M, V, GA)
        for s in mfs: I(s)
    st()
    c0 = -2.0 * (2.0/3.141592653589793) ** 0.5 * LOG2E
    I(f's_mov_b32 s50, {f32bits(c0*0.044715):#x}')
    I(f'v_mov_b32 v{T[7]}, {f32bits(c0):#x}')
    ep = []
    for e in range(8):
        r = ACC + e
        L = [f'v_fma_f32 v{r}, -v{M}, v{CS+e}, v{r}', f'v_mul_f32 v{r}, v{r}, v{V}']
        L += gelu_ops(r, GA + e, 'v%d' % T[7], 's50')
        ep.append(L)
    for j in range(len(ep[0])):
        for L in ep: I(L[j])
    for j in range(4):
        I(f'v_cvt_pk_bf16_f32 v{XR+j}, v{ACC+2*j}, v{ACC+2*j+1}')
    I(f'v_and_b32 v{T[1]}, 1, v{T[4]}')
    I(f'v_lshl_add_u32 v{T[1]}, v{T[1]}, 5, v{T[0]}')
    I(f'v_add_u32 v{T[1]}, s37, v{T[1]}')
    I(f'v_lshlrev_b32 v{T[1]}, 4, v{T[1]}')
    I(f'v_lshrrev_b32 v{T[5]}, 1, v{T[4]}')
    I(f'v_lshl_add_u32 v{T[1]}, v{T[5]}, 10, v{T[1]}')
    I('s_lshl_b32 s48, s45, 11')
    I('s_add_u32 s48, s48, s40')
    I(f's_add_u32 s48, s48, {WS_T:#x}')
    I(f'buffer_store_dwordx4 v[{XR}:{XR+3}], v{T[1]}, s[24:27], s48 offen')
    st.flush(24, 34, 100, vLANE)
    a.label('K2_end')
    I('s_endpgm')
    print("K2 instrs", a.ninstr, "nops", a.nnop)
    return a.text(), kernel_desc(name, 256, 96, accum=128)
```

```python
from common import *
from k2 import half_sum

def gen_k3(name, stamps=False, X={}):
    a = Asm()
    st = Stamper(a, stamps, 3)
    kernel_header(a, name)
    I = a.I
    vLANE, vL16 = 1, 2
    T = [4,5,6,7,8,9,10,11]
    VS = [12,13,14,15]
    HBR = 16
    ACC = 24
    AFR = 40
    BF = 72
    I('s_cmp_ge_u32 s2, 256')
    I('s_cbranch_scc1 K3_end')
    I(f's_load_dwordx2 s[6:7], s[0:1], {KA_W2}')
    I(f's_load_dwordx2 s[32:33], s[0:1], {KA_WS}')
    I(f's_load_dwordx2 s[60:61], s[0:1], {KA_W4}')
    I(f'v_and_b32 v{vLANE}, 63, v0')
    I('v_lshrrev_b32 v3, 6, v0')
    I('s_nop 0')
    I('v_readfirstlane_b32 s34, v3')
    I('s_and_b32 s35, s2, 7')
    I('s_lshr_b32 s36, s2, 3')
    I('s_lshl_b32 s35, s35, 2')
    I('s_lshr_b32 s37, s36, 3')
    I('s_add_u32 s35, s35, s37')
    I('s_and_b32 s36, s36, 7')
    I('s_and_b32 s38, s34, 1')
    I('s_lshr_b32 s39, s34, 1')
    I('s_lshl_b32 s40, s35, 1')
    I('s_add_u32 s40, s40, s38')
    I(f'v_lshlrev_b32 v{vL16}, 4, v{vLANE}')
    I('s_waitcnt lgkmcnt(0)')
    st.first()
    srd(a, 12, 6, 7, 512*1024)
    srd(a, 24, 32, 33, WS_SIZE)
    srd(a, 16, 32, 33, 2097152, add=WS_T)
    I(f'v_lshrrev_b32 v{T[0]}, 3, v{vLANE}')
    I(f'v_and_b32 v{T[1]}, 7, v{vLANE}')
    I(f'v_bfe_u32 v{T[2]}, v{vLANE}, 4, 1')
    I(f'v_lshlrev_b32 v{T[2]}, 2, v{T[2]}')
    I(f'v_xor_b32 v{T[1]}, v{T[1]}, v{T[2]}')
    I(f'v_lshlrev_b32 v{T[1]}, 4, v{T[1]}')
    I(f'v_lshl_add_u32 v{T[1]}, v{T[0]}, 10, v{T[1]}')
    I('s_lshl_b32 s45, s34, 17')
    I('s_lshl_b32 s46, s36, 7')
    I('s_add_u32 s45, s45, s46')
    I('s_lshl_b32 s46, s34, 14')
    I(f'v_and_b32 v{T[3]}, 31, v{vLANE}')
    I('s_lshl_b32 s47, s40, 5')
    I(f'v_add_u32 v{T[3]}, s47, v{T[3]}')
    I(f'v_and_b32 v{T[4]}, 32, v{vLANE}')
    for gi, sh in enumerate((-1, 1, -2, 2)):
        I(f'v_add_u32 v{T[5]}, {sh}, v{T[3]}')
        I(f'v_lshrrev_b32 v{T[6]}, 5, v{T[5]}')
        I(f'v_lshlrev_b32 v{T[6]}, 15, v{T[6]}')
        I(f'v_and_b32 v{T[5]}, 31, v{T[5]}')
        I(f'v_add_u32 v{T[5]}, v{T[5]}, v{T[4]}')
        I(f'v_lshl_add_u32 v{VS[gi]}, v{T[5]}, 4, v{T[6]}')
    if not X.get('prog', 1):
        dma = []
        for j in range(16):
            dma.append('s_mov_b32 m0, s46')
            dma.append(f'buffer_load_dwordx4 v{T[1]}, s[12:15], s45 offen lds')
            if j < 15:
                dma.append('s_add_u32 s45, s45, 8192'); dma.append('s_add_u32 s46, s46, 1024')
        for s in dma: I(s)
        for ks in range(32):
            if ks % 4 == 0: I(f's_movk_i32 s48, {ks*1024}')
            I(f'buffer_load_dwordx4 v[{BF+4*ks}:{BF+4*ks+3}], v{VS[ks//8]}, s[16:19], s48 offen offset:{1024*(ks%4)}')
        I('s_lshl_b32 s48, s40, 15')
        I('s_lshl_b32 s49, s36, 12')
        I('s_add_u32 s48, s48, s49')
        I('s_lshl_b32 s49, s39, 11')
        I('s_add_u32 s48, s48, s49')
        I(f's_add_u32 s49, s48, {WS_HB:#x}')
        for hf in range(2):
            I(f'buffer_load_dwordx4 v[{HBR+4*hf}:{HBR+4*hf+3}], v{vL16}, s[24:27], s49 offen offset:{1024*hf}')
        I(f'v_lshrrev_b32 v{T[6]}, 5, v{vLANE}')
        I(f'v_bfe_u32 v{T[7]}, v{vLANE}, 2, 2')
        I(f'v_lshl_add_u32 v{T[6]}, v{T[6]}, 3, v{T[7]}')
        I(f'v_lshlrev_b32 v{T[6]}, 7, v{T[6]}')
        I(f'v_bfe_u32 v{T[7]}, v{vLANE}, 3, 1')
        I(f'v_xor_b32 v{T[7]}, s39, v{T[7]}')
        I(f'v_lshl_add_u32 v{T[6]}, v{T[7]}, 6, v{T[6]}')
        I(f'v_bfe_u32 v{T[7]}, v{vLANE}, 4, 1')
        I(f'v_lshl_add_u32 v{T[6]}, v{T[7]}, 5, v{T[6]}')
        I(f'v_and_b32 v{T[7]}, 1, v{vLANE}')
        I(f'v_lshl_add_u32 v{T[6]}, v{T[7]}, 4, v{T[6]}')
        I(f'v_bfe_u32 v{T[7]}, v{vLANE}, 1, 1')
        I(f'v_lshl_add_u32 v{T[6]}, v{T[7]}, 3, v{T[6]}')
        npf = 0
        if X.get('pf4', 0):
            I(f's_mov_b32 s62, {1792*1024}'); I('s_mov_b32 s63, 0x00020000')
            I(f'v_min_u32 v3, 55, v{vLANE}')
            I(f'v_lshlrev_b32 v3, 7, v3')
            I('s_lshr_b32 s64, s2, 3'); I('s_lshl_b32 s64, s64, 2'); I('s_add_u32 s64, s64, s34'); I(f's_mul_i32 s64, s64, 14336')
            I(f'buffer_load_dword v0, v3, s[60:63], s64 offen')
            I('s_add_u32 s64, s64, 7168')
            I(f'buffer_load_dword v3, v3, s[60:63], s64 offen')
            npf = 2
        st()
        I(f's_waitcnt vmcnt({34+npf})')
        I('s_barrier')
        st()
        def rd(ks):
            L = []
            for t in range(2):
                d = AFR + 4*(ks % 8) + 2*t
                L.append(f'ds_read_b64_tr_b16 v[{d}:{d+1}], v{T[6]} offset:{(16*ks + 4*t)*128}')
            return L
        PRE = 6
        for ks in range(PRE):
            for s in rd(ks): I(s)
        for ks in range(32):
            cc = '0' if ks == 0 else f'v[{ACC}:{ACC+15}]'
            I(f'v_mfma_f32_32x32x16_bf16 v[{ACC}:{ACC+15}], v[{AFR+4*(ks%8)}:{AFR+4*(ks%8)+3}], v[{BF+4*ks}:{BF+4*ks+3}], {cc}')
            if ks + PRE < 32:
                for s in rd(ks + PRE): I(s)
    else:
        NQ = X.get('nq', 4); LA = X.get('la', 2)
        per = 16 // NQ
        I('s_lshl_b32 s45, s34, 13')
        I('s_lshl_b32 s46, s36, 7')
        I('s_add_u32 s45, s45, s46')
        I('s_lshl_b32 s46, s34, 10')
        def loads(Q):
            L = []
            for j in range(per*Q, per*(Q+1)):
                L.append(f's_add_u32 m0, s46, {4096*j}\ns_add_u32 s47, s45, {32768*j}\nbuffer_load_dwordx4 v{T[1]}, s[12:15], s47 offen lds ; W:G{Q}')
            for ks in range(2*per*Q, 2*per*(Q+1)):
                L.append(f's_movk_i32 s50, {(ks//4)*4096}\nbuffer_load_dwordx4 v[{BF+4*ks}:{BF+4*ks+3}], v{VS[ks//8]}, s[16:19], s50 offen offset:{1024*(ks%4)}')
            return L
        for Q in range(LA):
            for s in loads(Q): I(s)
        I('s_lshl_b32 s48, s40, 15')
        I('s_lshl_b32 s49, s36, 12')
        I('s_add_u32 s48, s48, s49')
        I('s_lshl_b32 s49, s39, 11')
        I('s_add_u32 s48, s48, s49')
        I(f's_add_u32 s49, s48, {WS_HB:#x}')
        hbl = [f'buffer_load_dwordx4 v[{HBR+4*hf}:{HBR+4*hf+3}], v{vL16}, s[24:27], s49 offen offset:{1024*hf}' for hf in range(2)]
        I(f'v_lshrrev_b32 v{T[6]}, 5, v{vLANE}')
        I(f'v_bfe_u32 v{T[7]}, v{vLANE}, 2, 2')
        I(f'v_lshl_add_u32 v{T[6]}, v{T[6]}, 3, v{T[7]}')
        I(f'v_lshlrev_b32 v{T[6]}, 7, v{T[6]}')
        I(f'v_bfe_u32 v{T[7]}, v{vLANE}, 3, 1')
        I(f'v_xor_b32 v{T[7]}, s39, v{T[7]}')
        I(f'v_lshl_add_u32 v{T[6]}, v{T[7]}, 6, v{T[6]}')
        I(f'v_bfe_u32 v{T[7]}, v{vLANE}, 4, 1')
        I(f'v_lshl_add_u32 v{T[6]}, v{T[7]}, 5, v{T[6]}')
        I(f'v_and_b32 v{T[7]}, 1, v{vLANE}')
        I(f'v_lshl_add_u32 v{T[6]}, v{T[7]}, 4, v{T[6]}')
        I(f'v_bfe_u32 v{T[7]}, v{vLANE}, 1, 1')
        I(f'v_lshl_add_u32 v{T[6]}, v{T[7]}, 3, v{T[6]}')
        st()
        def rd(ks):
            return [f'ds_read_b64_tr_b16 v[{AFR + 4*(ks % 8) + 2*t}:{AFR + 4*(ks % 8) + 2*t + 1}], v{T[6]} offset:{(16*ks + 4*t)*128}' for t in range(2)]
        nk = 2*per
        for Q in range(NQ):
            a.wait_tags([f'G{Q}'])
            I('s_barrier')
            side = loads(Q + LA) if Q + LA < NQ else (hbl if Q + LA == NQ else [])
            main = []
            PRE = min(6, nk)
            for ks in range(nk*Q, nk*Q + PRE): main += rd(ks)
            pre_n = len(main)
            for ks in range(nk*Q, nk*(Q+1)):
                cc = '0' if ks == 0 else f'v[{ACC}:{ACC+15}]'
                main.append(f'v_mfma_f32_32x32x16_bf16 v[{ACC}:{ACC+15}], v[{AFR+4*(ks%8)}:{AFR+4*(ks%8)+3}], v[{BF+4*ks}:{BF+4*ks+3}], {cc}')
                if ks + PRE < nk*(Q+1): main += rd(ks + PRE)
            if X.get('sidefirst', 1):
                for s in main[:pre_n]: I(s)
                for s in side: I(s)
                for s in main[pre_n:]: I(s)
            else:
                for s in merge(main, side): I(s)
        st()
    st()
    I('s_mov_b32 s52, 0xffff0000')
    for e in range(16):
        r = ACC + e
        rnd_bf16(a, r, r)
        h = HBR + e//2
        if e % 2 == 0: I(f'v_lshlrev_b32 v{T[0]}, 16, v{h}')
        else: I(f'v_and_b32 v{T[0]}, s52, v{h}')
        I(f'v_add_f32 v{r}, v{r}, v{T[0]}')
        rnd_bf16(a, r, r)
    for j in range(8):
        I(f'v_cvt_pk_bf16_f32 v{HBR+j}, v{ACC+2*j}, v{ACC+2*j+1}')
    I(f's_add_u32 s49, s48, {WS_X1B:#x}')
    for hf in range(2):
        I(f'buffer_store_dwordx4 v[{HBR+4*hf}:{HBR+4*hf+3}], v{vL16}, s[24:27], s49 offen offset:{1024*hf}')
    M, V = T[0], T[1]
    I(f'v_add_f32 v{M}, v{ACC}, v{ACC+1}')
    for e in range(2, 16): I(f'v_add_f32 v{M}, v{M}, v{ACC+e}')
    half_sum(a, M, V)
    I(f'v_mul_f32 v{M}, {f32bits(1.0/32):#x}, v{M}')
    I(f'v_mov_b32 v{V}, 0')
    for e in range(16):
        I(f'v_sub_f32 v{T[2]}, v{ACC+e}, v{M}')
        I(f'v_fmac_f32 v{V}, v{T[2]}, v{T[2]}')
    half_sum(a, V, T[2])
    I(f'v_lshlrev_b32 v{T[2]}, 7, v{T[3]}')
    I('s_lshl_b32 s49, s36, 4')
    I('s_lshl_b32 s50, s39, 3')
    I('s_add_u32 s49, s49, s50')
    I(f's_add_u32 s49, s49, {WS_ST4:#x}')
    I('s_mov_b32 exec_lo, -1'); I('s_mov_b32 exec_hi, 0')
    I(f'buffer_store_dwordx2 v[{M}:{V}], v{T[2]}, s[24:27], s49 offen')
    st.flush(24, 34, 200, vLANE)
    a.label('K3_end')
    I('s_endpgm')
    print("K3 instrs", a.ninstr, "nops", a.nnop)
    return a.text(), kernel_desc(name, 208, 96)
```

```python
from common import *

def gen_k3n(name, stamps=False, X={}):
    a = Asm()
    st = Stamper(a, stamps, 3)
    kernel_header(a, name)
    I = a.I
    vLANE, vL16 = 1, 2
    T = [4,5,6,7,8,9,10,11]
    VS = [12,13]
    AD = [14,15]
    HBR = 16
    ACC = 24
    AFR = 56
    BF = 88
    vDM, vROW, vXW = 152, 153, 154
    I('s_cmp_ge_u32 s2, 256')
    I('s_cbranch_scc1 K3_end')
    I(f's_load_dwordx2 s[12:13], s[0:1], {KA_W2}')
    I(f's_load_dwordx2 s[24:25], s[0:1], {KA_WS}')
    I(f'v_and_b32 v{vLANE}, 63, v0')
    I('v_lshrrev_b32 v3, 6, v0')
    I(f'v_lshlrev_b32 v{vL16}, 4, v{vLANE}')
    I('v_readfirstlane_b32 s34, v3')
    I('s_and_b32 s35, s2, 7')
    I('s_lshr_b32 s36, s2, 3')
    I('s_lshl_b32 s35, s35, 2')
    I('s_lshr_b32 s37, s36, 3')
    I('s_add_u32 s35, s35, s37')
    I('s_and_b32 s36, s36, 7')
    I('s_and_b32 s38, s34, 1')
    I('s_lshr_b32 s39, s34, 1')
    I('s_lshl_b32 s40, s35, 1')
    I('s_add_u32 s40, s40, s38')
    I(f's_mov_b32 s14, {512*1024}'); I('s_mov_b32 s15, 0x00020000')
    I(f's_mov_b32 s26, {WS_SIZE:#x}'); I('s_mov_b32 s27, 0x00020000')
    I(f's_mov_b32 s18, {2097152}'); I('s_mov_b32 s19, 0x00020000')
    I(f'v_lshrrev_b32 v{T[0]}, 3, v{vLANE}')
    I(f'v_and_b32 v{T[1]}, 7, v{vLANE}')
    I(f'v_bfe_u32 v{T[2]}, v{vLANE}, 4, 1')
    I(f'v_lshlrev_b32 v{T[2]}, 2, v{T[2]}')
    I(f'v_xor_b32 v{T[1]}, v{T[1]}, v{T[2]}')
    I(f'v_lshlrev_b32 v{T[1]}, 4, v{T[1]}')
    I(f'v_lshl_add_u32 v{vDM}, v{T[0]}, 10, v{T[1]}')
    I('s_lshl_b32 s45, s34, 13')
    I('s_lshl_b32 s46, s36, 7')
    I('s_add_u32 s45, s45, s46')
    I('s_lshl_b32 s46, s34, 10')
    I(f'v_and_b32 v{vROW}, 31, v{vLANE}')
    I('s_lshl_b32 s47, s40, 5')
    I(f'v_add_u32 v{vROW}, s47, v{vROW}')
    I(f'v_and_b32 v{T[4]}, 32, v{vLANE}')
    I('s_add_u32 s47, s39, 1')
    for gi in range(2):
        I(f'v_subrev_u32 v{T[5]}, s47, v{vROW}' if gi == 0 else f'v_add_u32 v{T[5]}, s47, v{vROW}')
        I(f'v_lshrrev_b32 v{T[6]}, 5, v{T[5]}')
        I(f'v_lshlrev_b32 v{T[6]}, 15, v{T[6]}')
        I(f'v_and_b32 v{T[5]}, 31, v{T[5]}')
        I(f'v_add_u32 v{T[5]}, v{T[5]}, v{T[4]}')
        I(f'v_lshl_add_u32 v{VS[gi]}, v{T[5]}, 4, v{T[6]}')
    I('s_lshl_b32 s51, s39, 14')
    I('s_waitcnt lgkmcnt(0)')
    st.first()
    I(f's_add_u32 s16, s24, {WS_T:#x}')
    I('s_addc_u32 s17, s25, 0')
    NQ = 4; LA = X.get('la', 2)
    def loads(Q):
        L = []
        for j in (2*Q, 8 + 2*Q, 2*Q + 1, 9 + 2*Q):
            L.append(f's_add_u32 m0, s46, {4096*j}\ns_add_u32 s47, s45, {32768*j}\nbuffer_load_dwordx4 v{vDM}, s[12:15], s47 offen lds ; W:G{Q}')
        for i in range(4*Q, 4*Q + 4):
            pre = f's_add_u32 s50, s51, {Q*4096}\n' if i % 4 == 0 else ''
            L.append(pre + f'buffer_load_dwordx4 v[{BF+4*i}:{BF+4*i+3}], v{VS[i//8]}, s[16:19], s50 offen offset:{1024*(i%4)}')
        return L
    for Q in range(LA):
        for s in loads(Q): I(s)
    I('s_lshl_b32 s48, s40, 15')
    I('s_lshl_b32 s49, s36, 12')
    I('s_add_u32 s48, s48, s49')
    I('s_lshl_b32 s49, s39, 11')
    I('s_add_u32 s48, s48, s49')
    I(f's_add_u32 s49, s48, {WS_HB:#x}')
    hbl = [f'buffer_load_dwordx4 v[{HBR+4*hf}:{HBR+4*hf+3}], v{vL16}, s[24:27], s49 offen offset:{1024*hf}' for hf in range(2)]
    I(f'v_lshrrev_b32 v{T[6]}, 5, v{vLANE}')
    I(f'v_bfe_u32 v{T[7]}, v{vLANE}, 2, 2')
    I(f'v_lshl_add_u32 v{T[6]}, v{T[6]}, 3, v{T[7]}')
    I(f'v_lshlrev_b32 v{T[6]}, 7, v{T[6]}')
    I(f'v_bfe_u32 v{T[7]}, v{vLANE}, 4, 1')
    I(f'v_lshl_add_u32 v{T[6]}, v{T[7]}, 5, v{T[6]}')
    I(f'v_and_b32 v{T[7]}, 1, v{vLANE}')
    I(f'v_lshl_add_u32 v{T[6]}, v{T[7]}, 4, v{T[6]}')
    I(f'v_bfe_u32 v{T[7]}, v{vLANE}, 1, 1')
    I(f'v_lshl_add_u32 v{T[6]}, v{T[7]}, 3, v{T[6]}')
    I('s_lshl_b32 s52, s39, 15')
    I(f'v_add_u32 v{T[6]}, s52, v{T[6]}')
    I(f'v_bfe_u32 v{T[7]}, v{vLANE}, 3, 1')
    I(f'v_xor_b32 v{T[7]}, s39, v{T[7]}')
    I(f'v_lshl_add_u32 v{AD[0]}, v{T[7]}, 6, v{T[6]}')
    I(f'v_xor_b32 v{AD[1]}, 64, v{AD[0]}')
    I('s_lshl_b32 s52, s34, 12')
    I(f'v_add_u32 v{vXW}, s52, v{vL16}')
    st()
    for Q in range(NQ):
        a.wait_tags([f'G{Q}'])
        I('s_barrier')
        side = loads(Q + LA) if Q + LA < NQ else (hbl if Q + LA == NQ else [])
        seq = [(i, t) for i in range(4*Q, 4*Q+4) for t in range(2)]
        if Q == 3: seq = [(i, 1) for i in range(12, 16)] + [(i, 0) for i in range(12, 16)]
        def rd(n):
            i, t = seq[n]
            return [f'ds_read_b64_tr_b16 v[{AFR + 4*n + 2*h}:{AFR + 4*n + 2*h + 1}], v{AD[t]} offset:{(16*i + 4*h)*128}' for h in range(2)]
        for n in range(8):
            for s in rd(n): I(s)
        for s in side: I(s)
        for n, (i, t) in enumerate(seq):
            b = ACC + 16*t
            cc = '0' if i == 0 else f'v[{b}:{b+15}]'
            I(f'v_mfma_f32_32x32x16_bf16 v[{b}:{b+15}], v[{AFR+4*n}:{AFR+4*n+3}], v[{BF+4*i}:{BF+4*i+3}], {cc}')
            if Q == 3 and n == 6:
                for k in range(4): I(f'ds_write_b128 v{vXW}, v[{ACC+16+4*k}:{ACC+16+4*k+3}] offset:{1024*k}')
    I(f'v_xor_b32 v{vXW}, 0x2000, v{vXW}')
    I('s_mov_b32 s52, 0xffff0000')
    HU = BF
    for j in range(8):
        I(f'v_lshlrev_b32 v{HU+2*j}, 16, v{HBR+j}')
        I(f'v_and_b32 v{HU+2*j+1}, s52, v{HBR+j}')
    I('s_waitcnt lgkmcnt(0)')
    I('s_barrier')
    for k in range(4): I(f'ds_read_b128 v[{ACC+16+4*k}:{ACC+16+4*k+3}], v{vXW} offset:{1024*k}')
    st()
    for hf in range(2):
        R = range(8*hf, 8*hf+8)
        for e in R: I(f'v_add_f32 v{ACC+e}, v{ACC+e}, v{ACC+16+e}')
        for e in R: rnd_bf16(a, ACC+e, ACC+e)
        for e in R: I(f'v_add_f32 v{ACC+e}, v{ACC+e}, v{HU+e}')
        for j in range(4*hf, 4*hf+4): I(f'v_cvt_pk_bf16_f32 v{HBR+j}, v{ACC+2*j}, v{ACC+2*j+1}')
        if hf == 0: I(f's_add_u32 s49, s48, {WS_X1B:#x}')
        I(f'buffer_store_dwordx4 v[{HBR+4*hf}:{HBR+4*hf+3}], v{vL16}, s[24:27], s49 offen offset:{1024*hf}')
    for j in range(8):
        I(f'v_lshlrev_b32 v{ACC+2*j}, 16, v{HBR+j}')
        I(f'v_and_b32 v{ACC+2*j+1}, s52, v{HBR+j}')
    S = ACC + 16
    for j in range(8): I(f'v_add_f32 v{S+j}, v{ACC+2*j}, v{ACC+2*j+1}')
    for stp in (4, 2, 1):
        for j in range(stp): I(f'v_add_f32 v{S+j}, v{S+j}, v{S+j+stp}')
    M, V = T[0], T[1]
    I(f'v_mov_b32 v{V}, v{S}')
    I(f'v_permlane32_swap_b32 v{S}, v{V}')
    I(f'v_add_f32 v{M}, v{S}, v{V}')
    I(f'v_mul_f32 v{M}, {f32bits(1.0/32):#x}, v{M}')
    for e in range(16): I(f'v_sub_f32 v{ACC+e}, v{ACC+e}, v{M}')
    for j in range(4): I(f'v_mul_f32 v{S+j}, v{ACC+j}, v{ACC+j}')
    for e in range(4, 16): I(f'v_fmac_f32 v{S+e%4}, v{ACC+e}, v{ACC+e}')
    I(f'v_add_f32 v{S}, v{S}, v{S+1}'); I(f'v_add_f32 v{S+2}, v{S+2}, v{S+3}'); I(f'v_add_f32 v{S}, v{S}, v{S+2}')
    I(f'v_mov_b32 v{V}, v{S}')
    I(f'v_permlane32_swap_b32 v{S}, v{V}')
    I(f'v_add_f32 v{V}, v{S}, v{V}')
    I(f'v_lshlrev_b32 v{T[2]}, 7, v{vROW}')
    I('s_lshl_b32 s49, s36, 4')
    I('s_lshl_b32 s50, s39, 3')
    I('s_add_u32 s49, s49, s50')
    I(f's_add_u32 s49, s49, {WS_ST4:#x}')
    I('s_mov_b32 exec_hi, 0')
    I(f'buffer_store_dwordx2 v[{M}:{V}], v{T[2]}, s[24:27], s49 offen')
    st.flush(24, 34, 156, vLANE)
    a.label('K3_end')
    I('s_endpgm')
    print("K3 instrs", a.ninstr, "nops", a.nnop)
    return a.text(), kernel_desc(name, 160, 96)
```

```python
from common import *
from k2 import gelu_ops, ln_rstd, LOG2E

def gen_k4(name, stamps=False, nt0=2, direct=True, X={}):
    a = Asm()
    st = Stamper(a, stamps, 4)
    kernel_header(a, name)
    I = a.I
    vLANE, vL16 = 1, 2
    T = [4,5,6,7,8,9,10,11]
    AD = [12,13,14,15]
    M4, V4 = 20, 21
    OUTP = 24
    ST = 96
    ACC = 64
    AFR = 40
    CS = 32
    NRING = 6
    L_CS = 131072
    BF = 0
    I('s_cmp_ge_u32 s2, 224')
    I('s_cbranch_scc1 K4_end')
    I(f's_load_dwordx2 s[6:7], s[0:1], {KA_W3}')
    I(f's_load_dwordx2 s[32:33], s[0:1], {KA_WS}')
    I(f's_load_dwordx2 s[56:57], s[0:1], {KA_W4}')
    I(f'v_and_b32 v{vLANE}, 63, v0')
    I('v_lshrrev_b32 v3, 6, v0')
    I('s_nop 0')
    I('v_readfirstlane_b32 s55, v3')
    I('s_and_b32 s34, s55, 3')
    I('s_and_b32 s35, s2, 7')
    I('s_lshr_b32 s36, s2, 3')
    I('s_mul_i32 s37, s36, 37')
    I('s_lshr_b32 s37, s37, 8')
    I('s_mul_i32 s38, s37, 7')
    I('s_sub_u32 s36, s36, s38')
    I('s_and_b32 s38, s35, 1')
    I('s_mul_i32 s38, s38, 7')
    I('s_add_u32 s36, s36, s38')
    I('s_lshr_b32 s35, s35, 1')
    I('s_lshl_b32 s35, s35, 2')
    I('s_add_u32 s35, s35, s37')
    I('s_lshl_b32 s40, s35, 2')
    I('s_add_u32 s40, s40, s34')
    I(f'v_lshlrev_b32 v{vL16}, 4, v{vLANE}')
    I('s_waitcnt lgkmcnt(0)')
    st.first()
    srd(a, 12, 6, 7, 512*3584)
    srd(a, 24, 32, 33, WS_SIZE)
    I(f'v_lshrrev_b32 v{T[0]}, 3, v{vLANE}')
    I(f'v_and_b32 v{T[1]}, 7, v{vLANE}')
    I(f'v_bfe_u32 v{T[2]}, v{vLANE}, 4, 1')
    I(f'v_lshlrev_b32 v{T[2]}, 2, v{T[2]}')
    I(f'v_xor_b32 v{T[1]}, v{T[1]}, v{T[2]}')
    I(f'v_lshlrev_b32 v{T[1]}, 4, v{T[1]}')
    I(f'v_mul_u32_u24 v{T[0]}, 3584, v{T[0]}')
    I(f'v_add_u32 v{T[4]}, v{T[1]}, v{T[0]}')
    I(f's_mul_i32 s45, s34, {8*3584}')
    I('s_lshl_b32 s46, s36, 8')
    I('s_add_u32 s45, s45, s46')
    I('s_lshl_b32 s46, s34, 10')
    def dma(hf, j):
        return [f's_add_u32 s47, s46, {hf*65536 + j*4096}', 's_mov_b32 m0, s47',
                f's_add_u32 s48, s45, {hf*128 + j*32*3584}',
                f'buffer_load_dwordx4 v{T[4]}, s[12:15], s48 offen lds']
    I('s_lshl_b32 s49, s40, 15')
    I(f's_add_u32 s49, s49, {WS_X1B:#x}')
    def bload(ks):
        L = []
        if ks % 4 == 0 and ks > 0: L.append('s_add_u32 s49, s49, 4096')
        L.append(f'buffer_load_dwordx4 a[{BF+4*ks}:{BF+4*ks+3}], v{vL16}, s[24:27], s49 offen offset:{1024*(ks%4)}')
        return L
    I('s_cmp_ge_u32 s55, 4')
    I('s_cbranch_scc0 K4_comp')
    I('s_lshl_b32 s51, s36, 9')
    I(f's_add_u32 s51, s51, {WS_CS3:#x}')
    I(f's_mov_b32 m0, {L_CS}')
    I('s_mov_b32 exec_hi, 0')
    I(f'buffer_load_dwordx4 v{vL16}, s[24:27], s51 offen lds')
    I('s_mov_b32 exec_hi, -1')
    n_save = st.n
    AH = 3
    def grp(q):
        for j in range(2*q, 2*q+2):
            for hf in range(2):
                for s in dma(hf, j): I(s)
    for q in range(AH): grp(q)
    for q in range(8):
        out = min(8, q + AH) - (q + 1)
        I(f's_waitcnt vmcnt({4*out + (2 if q > X.get("pf4", 7) >= 4 else 0)})')
        st()
        I('s_barrier')
        if q + AH < 8: grp(q + AH)
        if q == X.get('pf4', 7):
            I(f's_mov_b32 s58, {1792*1024}'); I('s_mov_b32 s59, 0x00020000')
            I(f'v_lshlrev_b32 v{T[0]}, 7, v{vLANE}')
            I('s_lshr_b32 s60, s2, 3'); I('s_lshl_b32 s60, s60, 16'); I('s_lshl_b32 s61, s34, 14'); I('s_add_u32 s60, s60, s61')
            nsp = X.get('nsp', 4)
            if nsp:
                lanes = 128 // nsp
                I(f's_mov_b64 exec, {(1 << lanes) - 1:#x}' if lanes <= 32 else 's_mov_b64 exec, -1')
                for i in range(nsp):
                    I(f'buffer_load_dword v{T[1]}, v{T[0]}, s[56:59], s60 offen')
                    I(f's_add_u32 s60, s60, {lanes*128}')
                    I('s_waitcnt vmcnt(0)')
                I('s_mov_b64 exec, -1')
            else:
                I(f'buffer_load_dword v{T[1]}, v{T[0]}, s[56:59], s60 offen')
                I('s_add_u32 s60, s60, 8192')
                I(f'buffer_load_dword v{T[2]}, v{T[0]}, s[56:59], s60 offen')
            npf = 2
    st.kidx = 6
    st.flush(24, 55, 22, vLANE)
    st.kidx = 4; st.n = n_save
    I('s_branch K4_end')
    a.label('K4_comp')
    for ks in range(8):
        for s in bload(ks): I(s)
    if direct:
        I(f'v_and_b32 v{T[0]}, 31, v{vLANE}')
        I(f'v_lshlrev_b32 v{T[0]}, 3, v{T[0]}')
        I('s_lshl_b32 s50, s40, 8')
        I(f's_add_u32 s50, s50, {WS_ST4:#x}')
        I(f'buffer_load_dwordx2 v[{M4}:{V4}], v{T[0]}, s[24:27], s50 offen')
    else:
        I(f'v_and_b32 v{T[0]}, 31, v{vLANE}')
        I(f'v_lshlrev_b32 v{T[0]}, 7, v{T[0]}')
        I('s_lshl_b32 s50, s40, 12')
        I(f's_add_u32 s50, s50, {WS_ST4:#x}')
        for j in range(8):
            I(f'buffer_load_dwordx4 v[{ST+4*j}:{ST+4*j+3}], v{T[0]}, s[24:27], s50 offen offset:{16*j}')
    for ks in range(8, 16):
        for s in bload(ks): I(s)
    brest = ['\n'.join(bload(ks)) for ks in range(16, 32)]
    I(f'v_lshrrev_b32 v{T[6]}, 5, v{vLANE}')
    I(f'v_bfe_u32 v{T[7]}, v{vLANE}, 2, 2')
    I(f'v_lshl_add_u32 v{T[6]}, v{T[6]}, 3, v{T[7]}')
    I(f'v_lshlrev_b32 v{T[6]}, 7, v{T[6]}')
    I(f'v_bfe_u32 v{T[5]}, v{vLANE}, 4, 1')
    I(f'v_lshl_add_u32 v{T[6]}, v{T[5]}, 5, v{T[6]}')
    I(f'v_and_b32 v{T[5]}, 1, v{vLANE}')
    I(f'v_lshl_add_u32 v{T[6]}, v{T[5]}, 4, v{T[6]}')
    I(f'v_bfe_u32 v{T[5]}, v{vLANE}, 1, 1')
    I(f'v_lshl_add_u32 v{T[6]}, v{T[5]}, 3, v{T[6]}')
    I(f'v_bfe_u32 v{T[7]}, v{vLANE}, 3, 1')
    I(f'v_lshl_add_u32 v{AD[0]}, v{T[7]}, 6, v{T[6]}')
    I(f'v_xor_b32 v{T[7]}, 1, v{T[7]}')
    I(f'v_lshl_add_u32 v{AD[1]}, v{T[7]}, 6, v{T[6]}')
    I(f'v_add_u32 v{AD[2]}, 65536, v{AD[0]}')
    I(f'v_add_u32 v{AD[3]}, 65536, v{AD[1]}')
    I(f'v_lshrrev_b32 v{T[5]}, 5, v{vLANE}')
    I(f'v_lshlrev_b32 v{T[5]}, 5, v{T[5]}')
    I(f'v_add_u32 v{T[5]}, {L_CS}, v{T[5]}')
    st()
    def stats():
        L = []
        if direct: return L
        L.append(f'v_add_f32 v{M4}, v{ST}, v{ST+2}')
        L.append(f'v_add_f32 v{V4}, v{ST+1}, v{ST+3}')
        for j in range(2, 16):
            L.append(f'v_add_f32 v{M4}, v{M4}, v{ST+2*j}')
            L.append(f'v_add_f32 v{V4}, v{V4}, v{ST+2*j+1}')
        L.append(f'v_mul_f32 v{M4}, {f32bits(1.0/16):#x}, v{M4}')
        L.append(f'v_mov_b32 v{T[2]}, 0')
        for j in range(16):
            L.append(f'v_sub_f32 v{T[3]}, v{ST+2*j}, v{M4}')
            L.append(f'v_fmac_f32 v{T[2]}, v{T[3]}, v{T[3]}')
        L.append(f'v_fmac_f32 v{V4}, {f32bits(32.0):#x}, v{T[2]}')
        L.append(f'v_mul_f32 v{V4}, {f32bits(1.0/512):#x}, v{V4}')
        L.append(f'v_cvt_pk_bf16_f32 v{M4}, 0, v{M4}')
        L.append(f'v_cvt_pk_bf16_f32 v{V4}, 0, v{V4}')
        L.append(f'v_add_f32 v{V4}, {f32bits(1e-5):#x}, v{V4}')
        L.append(f'v_cvt_pk_bf16_f32 v{V4}, 0, v{V4}')
        L.append(f'v_sqrt_f32 v{V4}, v{V4}')
        L.append(f'v_cvt_pk_bf16_f32 v{V4}, 0, v{V4}')
        L.append(f'v_rcp_f32 v{V4}, v{V4}')
        return L
    c0 = -2.0 * (2.0/3.141592653589793) ** 0.5 * LOG2E
    I(f's_mov_b32 s52, {f32bits(c0*0.044715):#x}')
    I(f'v_mov_b32 v{T[6]}, {f32bits(c0):#x}')
    I(f's_mul_i32 s53, s40, 114688')
    I('s_lshl_b32 s54, s36, 13')
    I('s_add_u32 s53, s53, s54')
    I(f's_add_u32 s53, s53, {WS_T2:#x}')
    I('s_add_u32 s54, s53, 4096')
    def epi(mt):
        L = []
        b = ACC + 16*mt
        TT = [T[0], T[1], T[2], T[3]]
        for h8 in range(2):
            L.append(f'ds_read_b128 v[{CS}:{CS+3}], v{T[5]} offset:{128*mt + 64*h8}')
            L.append(f'ds_read_b128 v[{CS+4}:{CS+7}], v{T[5]} offset:{128*mt + 64*h8 + 16}')
            for g4 in range(2):
                chains = []
                for i in range(4):
                    e = 8*h8 + 4*g4 + i
                    r = b + e
                    c = [f'v_fma_f32 v{r}, -v{M4}, v{CS+(e%8)}, v{r}', f'v_mul_f32 v{r}, v{r}, v{V4}']
                    c += gelu_ops(r, TT[i], 'v%d' % T[6], 's52')
                    chains.append(c)
                for j in range(len(chains[0])):
                    for c in chains: L.append(c[j])
                for i in (0, 2):
                    e = 8*h8 + 4*g4 + i
                    L.append(f'v_cvt_pk_bf16_f32 v{OUTP+e//2}, v{b+e}, v{b+e+1}')
            q = 2*mt + h8
            so = 's53' if q < 4 else 's54'
            L.append(f'buffer_store_dwordx4 v[{OUTP+4*h8}:{OUTP+4*h8+3}], v{vL16}, s[24:27], {so} offen offset:{1024*(q%4)}')
        return L
    def rd(hf, idx):
        ks, m2 = idx // 2, idx % 2
        L = []
        for t in range(2):
            d = AFR + 4*(idx % NRING) + 2*t
            L.append(f'ds_read_b64_tr_b16 v[{d}:{d+1}], v{AD[2*hf+m2]} offset:{(16*ks + 4*t)*128}')
        return L
    PRE = 4
    def rd1(mt, ks, slot):
        L = []
        for t in range(2):
            d = AFR + 4*(slot % NRING) + 2*t
            L.append(f'ds_read_b64_tr_b16 v[{d}:{d+1}], v{AD[mt]} offset:{(16*ks + 4*t)*128}')
        return L
    def mf(mt, ks, slot):
        b = ACC + 16*mt
        cc = '0' if ks == 0 else f'v[{b}:{b+15}]'
        return f'v_mfma_f32_32x32x16_bf16 v[{b}:{b+15}], v[{AFR+4*(slot%NRING)}:{AFR+4*(slot%NRING)+3}], a[{BF+4*ks}:{BF+4*ks+3}], {cc}'
    NT0 = nt0
    if NT0 > 2:
        for s in stats(): I(s)
    for q in range(8):
        I('s_barrier')
        seq = [(mt, ks) for ks in range(4*q, 4*q+4) for mt in range(NT0)]
        main = []
        for i in range(min(PRE, len(seq))): main += rd1(seq[i][0], seq[i][1], i)
        for i, (mt, ks) in enumerate(seq):
            main.append(mf(mt, ks, i))
            if i + PRE < len(seq): main += rd1(seq[i+PRE][0], seq[i+PRE][1], i+PRE)
        side = brest[4*q:4*q+4] if q < 4 else []
        if q == 5 and NT0 <= 2: side = stats()
        for s in merge(main, side): I(s)
    st()
    seq = [(mt, ks) for mt in range(NT0, 4) for ks in range(32)]
    for i in range(min(PRE, len(seq))):
        for s in rd1(seq[i][0], seq[i][1], i): I(s)
    for ti, mt in enumerate(range(NT0, 4)):
        main = []
        for ks in range(32):
            i = 32*ti + ks
            main.append(mf(mt, ks, i))
            if i + PRE < len(seq): main += rd1(seq[i+PRE][0], seq[i+PRE][1], i+PRE)
        for s in merge(main, epi(ti)): I(s)
    st()
    for mt in range(4-NT0, 4):
        for s in epi(mt): I(s)
    st.flush(24, 34, 22, vLANE)
    a.label('K4_end')
    I('s_endpgm')
    print("K4 instrs", a.ninstr, "nops", a.nnop)
    return a.text(), kernel_desc(name, 256, 96, accum=128)
```

```python
from common import *
from k2 import LOG2E

L_CS = 131072
L_ST = L_CS + 512
LDS4 = L_ST + 2048

def gen_k4h(name, stamps=False, X={}):
    a = Asm()
    st = Stamper(a, stamps, 4)
    kernel_header(a, name)
    I = a.I
    vLANE, vL16 = 1, 2
    T = [4,5,6,7,8,9,10,11]
    AD = [12,13,14,15]
    RM = 16
    vCSA, vSTG = 20, 21
    OUTP = 24
    CS = 32
    AFR = 40
    ACC = 64
    ST = 96
    NRING = 6
    BF = 0
    I('s_cmp_ge_u32 s2, 224')
    I('s_cbranch_scc1 K4_end')
    I(f's_load_dwordx2 s[6:7], s[0:1], {KA_W3}')
    I(f's_load_dwordx2 s[32:33], s[0:1], {KA_WS}')
    I(f's_load_dwordx2 s[56:57], s[0:1], {KA_W4}')
    I(f'v_and_b32 v{vLANE}, 63, v0')
    I('v_lshrrev_b32 v3, 6, v0')
    I('s_nop 0')
    I('v_readfirstlane_b32 s55, v3')
    I('s_and_b32 s34, s55, 3')
    I('s_and_b32 s35, s2, 7')
    I('s_lshr_b32 s36, s2, 3')
    I('s_mul_i32 s37, s36, 37')
    I('s_lshr_b32 s37, s37, 8')
    I('s_mul_i32 s38, s37, 7')
    I('s_sub_u32 s36, s36, s38')
    I('s_and_b32 s38, s35, 1')
    I('s_mul_i32 s38, s38, 7')
    I('s_add_u32 s36, s36, s38')
    I('s_lshr_b32 s35, s35, 1')
    I('s_lshl_b32 s35, s35, 2')
    I('s_add_u32 s35, s35, s37')
    I('s_lshl_b32 s40, s35, 2')
    I('s_add_u32 s40, s40, s34')
    I(f'v_lshlrev_b32 v{vL16}, 4, v{vLANE}')
    I(f'v_lshrrev_b32 v{vCSA}, 5, v{vLANE}')
    I(f'v_lshlrev_b32 v{vCSA}, 5, v{vCSA}')
    I(f'v_add_u32 v{vCSA}, {L_CS}, v{vCSA}')
    I('s_lshl_b32 s41, s34, 13')
    I(f'v_add_u32 v{vSTG}, s41, v{vL16}')
    I(f's_mul_i32 s53, s40, 114688')
    I('s_lshl_b32 s54, s36, 13')
    I('s_add_u32 s53, s53, s54')
    I(f's_add_u32 s53, s53, {WS_T2:#x}')
    I('s_add_u32 s54, s53, 4096')
    I('s_waitcnt lgkmcnt(0)')
    st.first()
    srd(a, 12, 6, 7, 512*3584)
    srd(a, 24, 32, 33, WS_SIZE)
    c0 = -2.0 * (2.0/3.141592653589793) ** 0.5 * LOG2E
    M, A_, B_, S_ = RM, RM+1, RM+2, RM+3
    def epi(mt, b, pk=False):
        L = []
        TT = [T[0], T[1], T[2], T[3], T[4], T[5], T[6], T[7]]
        for h8 in range(2):
            L.append(f'ds_read_b128 v[{CS}:{CS+3}], v{vCSA} offset:{128*mt + 64*h8}')
            L.append(f'ds_read_b128 v[{CS+4}:{CS+7}], v{vCSA} offset:{128*mt + 64*h8 + 16}')
            chains = []
            for i in range(8):
                r = b + 8*h8 + i; t = TT[i]
                chains.append([f'v_fma_f32 v{r}, -v{M}, v{CS+i}, v{r}', f'v_mul_f32 v{t}, v{r}, v{r}', f'v_fma_f32 v{t}, v{t}, v{B_}, v{A_}',
                               f'v_mul_f32 v{t}, v{t}, v{r}', f'v_exp_f32 v{t}, v{t}', f'v_fma_f32 v{t}, v{t}, v{S_}, v{S_}',
                               f'v_rcp_f32 v{t}, v{t}', f'v_mul_f32 v{r}, v{r}, v{t}'])
            for j in range(8):
                for c in chains: L.append(c[j])
            for i in range(4):
                L.append(f'v_cvt_pk_bf16_f32 v{OUTP+4*h8+i}, v{b+8*h8+2*i}, v{b+8*h8+2*i+1}')
            q = 2*mt + h8
            so = 's53' if q < 4 else 's54'
            L.append(f'buffer_store_dwordx4 v[{OUTP+4*h8}:{OUTP+4*h8+3}], v{vL16}, s[24:27], {so} offen offset:{1024*(q%4)}')
        return L
    I('s_cmp_ge_u32 s55, 4')
    I('s_cbranch_scc0 K4_comp')
    I(f'v_lshrrev_b32 v{T[0]}, 3, v{vLANE}')
    I(f'v_and_b32 v{T[1]}, 7, v{vLANE}')
    I(f'v_bfe_u32 v{T[2]}, v{vLANE}, 4, 1')
    I(f'v_lshlrev_b32 v{T[2]}, 2, v{T[2]}')
    I(f'v_xor_b32 v{T[1]}, v{T[1]}, v{T[2]}')
    I(f'v_lshlrev_b32 v{T[1]}, 4, v{T[1]}')
    I(f'v_mul_u32_u24 v{T[0]}, 3584, v{T[0]}')
    I(f'v_add_u32 v{AD[0]}, v{T[1]}, v{T[0]}')
    I(f's_mul_i32 s45, s34, {8*3584}')
    I('s_lshl_b32 s46, s36, 8')
    I('s_add_u32 s45, s45, s46')
    I('s_lshl_b32 s46, s34, 10')
    def dma(hf, j, g):
        return [f's_add_u32 m0, s46, {hf*65536 + j*4096}\ns_add_u32 s48, s45, {hf*128 + j*32*3584}\n'
                f'buffer_load_dwordx4 v{AD[0]}, s[12:15], s48 offen lds ; W:G{g}']
    def grp(q):
        L = []
        for j in range(4*(q % 4), 4*(q % 4) + 4): L += dma(q // 4, j, q)
        return L
    AH = X.get('ah', 3)
    for s in grp(0): I(s)
    I(f'v_and_b32 v{T[0]}, 31, v{vLANE}')
    I(f'v_lshlrev_b32 v{T[1]}, 7, v{T[0]}')
    I('s_lshl_b32 s50, s40, 12')
    I(f's_add_u32 s50, s50, {WS_ST4:#x}')
    stl = [f'buffer_load_dwordx4 v[{ST+4*j}:{ST+4*j+3}], v{T[1]}, s[24:27], s50 offen offset:{16*j}' for j in range(8)]
    for q in range(1, AH):
        for s in grp(q): I(s)
    I('s_lshl_b32 s51, s36, 9')
    I(f's_add_u32 s51, s51, {WS_CS3:#x}')
    csl = f's_mov_b32 m0, {L_CS}\ns_mov_b32 exec_hi, 0\nbuffer_load_dwordx4 v{vL16}, s[24:27], s51 offen lds ; W:CS\ns_mov_b32 exec_hi, -1'
    I('s_lshl_b32 s41, s34, 9')
    I(f's_add_u32 s41, s41, {L_ST}')
    I(f'v_lshl_add_u32 v{AD[1]}, v{T[0]}, 4, s41')
    def stats():
        L = []
        V = S_
        L.append(f'v_add_f32 v{M}, v{ST}, v{ST+2}')
        L.append(f'v_add_f32 v{V}, v{ST+1}, v{ST+3}')
        for j in range(2, 16):
            L.append(f'v_add_f32 v{M}, v{M}, v{ST+2*j}')
            L.append(f'v_add_f32 v{V}, v{V}, v{ST+2*j+1}')
        L.append(f'v_mul_f32 v{M}, {f32bits(1.0/16):#x}, v{M}')
        L.append(f'v_mov_b32 v{T[2]}, 0')
        for j in range(16):
            L.append(f'v_sub_f32 v{T[3]}, v{ST+2*j}, v{M}')
            L.append(f'v_fmac_f32 v{T[2]}, v{T[3]}, v{T[3]}')
        L.append(f'v_fmac_f32 v{V}, {f32bits(32.0):#x}, v{T[2]}')
        L.append(f'v_mul_f32 v{V}, {f32bits(1.0/512):#x}, v{V}')
        L.append(f'v_cvt_pk_bf16_f32 v{M}, 0, v{M}')
        L.append(f'v_cvt_pk_bf16_f32 v{V}, 0, v{V}')
        L.append(f'v_add_f32 v{V}, {f32bits(1e-5):#x}, v{V}')
        L.append(f'v_cvt_pk_bf16_f32 v{V}, 0, v{V}')
        L.append(f'v_sqrt_f32 v{V}, v{V}')
        L.append(f'v_cvt_pk_bf16_f32 v{V}, 0, v{V}')
        L.append(f'v_rcp_f32 v{T[2]}, v{V}')
        L.append(f'v_mul_f32 v{A_}, {f32bits(c0):#x}, v{T[2]}')
        L.append(f'v_mul_f32 v{B_}, v{T[2]}, v{T[2]}')
        L.append(f'v_mul_f32 v{B_}, v{B_}, v{A_}')
        L.append(f'v_mul_f32 v{B_}, {f32bits(0.044715):#x}, v{B_}')
        L.append(f'ds_write_b128 v{AD[1]}, v[{RM}:{RM+3}]')
        return L
    def pf4():
        L = [f's_mov_b32 s58, {1792*1024}\ns_mov_b32 s59, 0x00020000\nv_lshlrev_b32 v{AD[2]}, 7, v{vLANE}\n'
             's_lshr_b32 s60, s2, 3\ns_lshl_b32 s60, s60, 16\ns_lshl_b32 s61, s34, 14\ns_add_u32 s60, s60, s61']
        for i in range(4):
            L.append(f's_mov_b32 exec_hi, 0\nbuffer_load_dword v{AFR+i}, v{AD[2]}, s[56:59], s60 offen\ns_mov_b32 exec_hi, -1\ns_add_u32 s60, s60, 4096')
        return L
    n_save = st.n
    def stg_read(slot, b):
        return [f'ds_read_b128 v[{b+4*i}:{b+4*i+3}], v{vSTG} offset:{4096*slot + 1024*i}' for i in range(4)]
    e01 = None
    FREE = X.get('free', 1)
    NPF = X.get('pf4', 4); PFQ = X.get('pfq', 5)
    for q in range(8):
        if not (FREE and q >= 6):
            tags = [f'G{q}'] + (['CS'] if q == 4 else [])
            if FREE and q == 5: tags = ['G5', 'G6', 'G7']
            a.wait_tags(tags, lg=(q == 4))
            I('s_barrier')
            if X.get('hst'): st()
        if q + AH < 8:
            for s in grp(q + AH): I(s)
        if q == 0:
            for s in stl: I(s)
            I(csl)
        if q == 2:
            for s in stats(): I(s)
        if NPF and q == PFQ and X.get('pfburst', 1):
            for s in pf4()[:1+NPF]: I(s)
        if q == 5:
            for s in stg_read(0, ACC) + stg_read(1, ACC+16): I(s)
            e01 = epi(0, ACC) + epi(1, ACC+16)
            if NPF and not X.get('pfburst', 1):
                p = pf4()[:1+NPF]
                e01 = p[:1] + merge(e01, p[1:])
        if q >= 5:
            n = len(e01); k = q - 5
            cuts = X.get('cuts', (0.0, 0.3, 0.6, 1.0))
            for s in e01[int(n*cuts[k]):int(n*cuts[k+1])]: I(s)
    st()
    I('s_barrier')
    if X.get('hst'): st()
    for s in stg_read(0, ACC+32): I(s)
    for s in epi(3, ACC+32): I(s)
    if X.get('hst'): st()
    st.kidx = 6
    st.flush(24, 55, 22, vLANE)
    st.kidx = 4; st.n = n_save
    I('s_branch K4_end')
    a.label('K4_comp')
    a.vm_q = []; a.lds_q = []
    I('s_lshl_b32 s49, s40, 15')
    I(f's_add_u32 s49, s49, {WS_X1B:#x}')
    def bload(ks):
        L = []
        if ks % 4 == 0 and ks > 0: L.append('s_add_u32 s49, s49, 4096')
        L.append(f'buffer_load_dwordx4 a[{BF+4*ks}:{BF+4*ks+3}], v{vL16}, s[24:27], s49 offen offset:{1024*(ks%4)}')
        return L
    NB0 = X.get('nb0', 16)
    for ks in range(NB0):
        for s in bload(ks): I(s)
    brest = ['\n'.join(bload(ks)) for ks in range(NB0, 32)]
    I(f'v_lshrrev_b32 v{T[6]}, 5, v{vLANE}')
    I(f'v_bfe_u32 v{T[7]}, v{vLANE}, 2, 2')
    I(f'v_lshl_add_u32 v{T[6]}, v{T[6]}, 3, v{T[7]}')
    I(f'v_lshlrev_b32 v{T[6]}, 7, v{T[6]}')
    I(f'v_bfe_u32 v{T[5]}, v{vLANE}, 4, 1')
    I(f'v_lshl_add_u32 v{T[6]}, v{T[5]}, 5, v{T[6]}')
    I(f'v_and_b32 v{T[5]}, 1, v{vLANE}')
    I(f'v_lshl_add_u32 v{T[6]}, v{T[5]}, 4, v{T[6]}')
    I(f'v_bfe_u32 v{T[5]}, v{vLANE}, 1, 1')
    I(f'v_lshl_add_u32 v{T[6]}, v{T[5]}, 3, v{T[6]}')
    I(f'v_bfe_u32 v{T[7]}, v{vLANE}, 3, 1')
    I(f'v_lshl_add_u32 v{AD[0]}, v{T[7]}, 6, v{T[6]}')
    I(f'v_xor_b32 v{T[7]}, 1, v{T[7]}')
    I(f'v_lshl_add_u32 v{AD[1]}, v{T[7]}, 6, v{T[6]}')
    I(f'v_add_u32 v{AD[2]}, 65536, v{AD[0]}')
    I(f'v_add_u32 v{AD[3]}, 65536, v{AD[1]}')
    I(f'v_and_b32 v{T[0]}, 31, v{vLANE}')
    I('s_lshl_b32 s41, s34, 9')
    I(f's_add_u32 s41, s41, {L_ST}')
    I(f'v_lshl_add_u32 v22, v{T[0]}, 4, s41')
    st()
    PRE = 4
    def rd(hf, idx):
        ks, m2 = idx // 2, idx % 2
        L = []
        for t in range(2):
            d = AFR + 4*(idx % NRING) + 2*t
            L.append(f'ds_read_b64_tr_b16 v[{d}:{d+1}], v{AD[2*hf+m2]} offset:{(16*ks + 4*t)*128}')
        return L
    def stg_write(slot, b):
        return [f'ds_write_b128 v{vSTG}, v[{b+4*i}:{b+4*i+3}] offset:{4096*slot + 1024*i}' for i in range(4)]
    if X.get('prio', 1): I('s_setprio 2')
    for hf in range(2):
        for qd in range(4):
            q = 4*hf + qd
            if q == 5: I('s_waitcnt lgkmcnt(0)')
            if not (X.get('free', 1) and q >= 6): I('s_barrier')
            if q == 4: st()
            main = []
            base = 16*qd
            order = list(range(base, base+16))
            if q == 7:
                order = order[:8] + [i for i in order[8:] if i % 2 == 1] + [i for i in order[8:] if i % 2 == 0]
            slot = {idx: n for n, idx in enumerate(order)}
            def rd2(idx):
                ks, m2 = idx // 2, idx % 2
                return [f'ds_read_b64_tr_b16 v[{AFR + 4*(slot[idx] % NRING) + 2*t}:{AFR + 4*(slot[idx] % NRING) + 2*t + 1}], v{AD[2*hf+m2]} offset:{(16*ks + 4*t)*128}' for t in range(2)]
            for n in range(PRE): main += rd2(order[n])
            for n, idx in enumerate(order):
                ks, m2 = idx // 2, idx % 2
                b = ACC + 16*(2*hf + m2)
                cc = '0' if ks == 0 else f'v[{b}:{b+15}]'
                r = AFR + 4*(n % NRING)
                main.append(f'v_mfma_f32_32x32x16_bf16 v[{b}:{b+15}], v[{r}:{r+3}], a[{BF+4*ks}:{BF+4*ks+3}], {cc}')
                if n + PRE < 16: main += rd2(order[n+PRE])
            side = []
            if hf == 0 and qd < 2:
                h = len(brest)//2
                side = brest[:h] if qd == 0 else brest[h:]
            if q == 4:
                for s in main[:12]: I(s)
                main = main[12:]
                side = stg_write(0, ACC) + stg_write(1, ACC+16)
            if q == 6: side = [f'ds_read_b128 v[{RM}:{RM+3}], v22']
            for s in merge(main, side): I(s)
    st()
    for s in stg_write(0, ACC+48): I(s)
    I('s_setprio 0')
    I('s_waitcnt lgkmcnt(0)')
    I('s_barrier')
    for s in epi(2, ACC+32): I(s)
    st.flush(24, 34, 22, vLANE)
    a.label('K4_end')
    I('s_endpgm')
    print("K4 instrs", a.ninstr, "nops", a.nnop)
    return a.text(), kernel_desc(name, 256, 96, accum=128)
```

```python
from common import *
from k2 import LOG2E

L_CS = 131072
L_ST = L_CS + 512
LDS4 = L_ST + 2048

def gen_k4l(name, stamps=False, X={}):
    a = Asm()
    st = Stamper(a, stamps, 4)
    kernel_header(a, name)
    I = a.I
    vLANE, vL16 = 1, 2
    T = [4,5,6,7,8,9,10,11]
    AD = [12,13,14,15]
    RM = 16
    vCSA, vSTG = 20, 21
    OUTP = 24
    CS = 32
    AFR = 40
    ACC = 64
    ST = 96
    NRING = 6
    BF = 0
    I('s_cmp_ge_u32 s2, 224')
    I('s_cbranch_scc1 K4_end')
    I(f's_load_dwordx2 s[12:13], s[0:1], {KA_W3}')
    I(f's_load_dwordx2 s[24:25], s[0:1], {KA_WS}')
    I(f's_load_dwordx2 s[56:57], s[0:1], {KA_W4}')
    I(f'v_and_b32 v{vLANE}, 63, v0')
    I('v_lshrrev_b32 v3, 6, v0')
    I(f'v_lshlrev_b32 v{vL16}, 4, v{vLANE}')
    I('v_readfirstlane_b32 s55, v3')
    I('s_and_b32 s35, s2, 7')
    I('s_lshr_b32 s36, s2, 3')
    I('s_mul_i32 s37, s36, 37')
    I('s_lshr_b32 s37, s37, 8')
    I('s_mul_i32 s38, s37, 7')
    I('s_sub_u32 s36, s36, s38')
    I('s_and_b32 s38, s35, 1')
    I('s_mul_i32 s38, s38, 7')
    I('s_add_u32 s36, s36, s38')
    I('s_lshr_b32 s35, s35, 1')
    I('s_lshl_b32 s35, s35, 2')
    I('s_add_u32 s35, s35, s37')
    I('s_and_b32 s34, s55, 3')
    I('s_lshl_b32 s40, s35, 2')
    I('s_add_u32 s40, s40, s34')
    I(f's_mov_b32 s14, {512*3584}'); I('s_mov_b32 s15, 0x00020000')
    I(f's_mov_b32 s26, {WS_SIZE:#x}'); I('s_mov_b32 s27, 0x00020000')
    I('s_lshl_b32 s49, s40, 15')
    I(f's_add_u32 s49, s49, {WS_X1B:#x}')
    I(f'v_lshrrev_b32 v{T[0]}, 3, v{vLANE}')
    I(f'v_and_b32 v{T[1]}, 7, v{vLANE}')
    I(f'v_bfe_u32 v{T[2]}, v{vLANE}, 4, 1')
    I(f'v_lshlrev_b32 v{T[2]}, 2, v{T[2]}')
    I(f'v_xor_b32 v{T[1]}, v{T[1]}, v{T[2]}')
    I(f'v_lshlrev_b32 v{T[1]}, 4, v{T[1]}')
    I(f'v_mul_u32_u24 v{T[0]}, 3584, v{T[0]}')
    I(f'v_add_u32 v{AD[0]}, v{T[1]}, v{T[0]}')
    I(f's_mul_i32 s45, s34, {8*3584}')
    I('s_lshl_b32 s46, s36, 8')
    I('s_add_u32 s45, s45, s46')
    I('s_lshl_b32 s46, s34, 10')
    I(f'v_and_b32 v{T[0]}, 31, v{vLANE}')
    I(f'v_lshlrev_b32 v{T[3]}, 7, v{T[0]}')
    I('s_lshl_b32 s50, s40, 12')
    I(f's_add_u32 s50, s50, {WS_ST4:#x}')
    I('s_cmp_lt_u32 s55, 4')
    I('s_waitcnt lgkmcnt(0)')
    if stamps:
        st.first()
        I('s_cmp_lt_u32 s55, 4')
    I('s_cbranch_scc1 K4_c1')
    def grp(q):
        L = []
        for j in range(4*(q % 4), 4*(q % 4) + 4):
            hf = q // 4
            L.append(f's_add_u32 m0, s46, {hf*65536 + j*4096}\ns_add_u32 s48, s45, {hf*128 + j*32*3584}\n'
                     f'buffer_load_dwordx4 v{AD[0]}, s[12:15], s48 offen lds ; W:G{q}')
        return L
    AH = X.get('ah', 4)
    SE = X.get('se', 2)
    stl = [f'buffer_load_dwordx4 v[{ST+4*j}:{ST+4*j+3}], v{T[3]}, s[24:27], s50 offen offset:{16*j}' for j in range(8)]
    for q in range(AH):
        for s in grp(q): I(s)
        if SE and q == SE - 1:
            for s in stl: I(s)
    I('s_branch K4_help')
    hq = list(a.vm_q); hn = st.n
    a.label('K4_c1')
    a.vm_q = []
    c0 = -2.0 * (2.0/3.141592653589793) ** 0.5 * LOG2E
    M, A_, B_, S_ = RM, RM+1, RM+2, RM+3
    def common():
        I(f'v_lshrrev_b32 v{vCSA}, 5, v{vLANE}')
        I(f'v_lshlrev_b32 v{vCSA}, 5, v{vCSA}')
        I(f'v_add_u32 v{vCSA}, {L_CS}, v{vCSA}')
        I('s_lshl_b32 s41, s34, 13')
        I(f'v_add_u32 v{vSTG}, s41, v{vL16}')
        I(f's_mul_i32 s53, s40, 114688')
        I('s_lshl_b32 s54, s36, 13')
        I('s_add_u32 s53, s53, s54')
        I(f's_add_u32 s53, s53, {WS_T2:#x}')
    for ks in range(32):
        if ks % 4 == 0 and ks > 0: I('s_add_u32 s49, s49, 4096')
        I(f'buffer_load_dwordx4 a[{BF+4*ks}:{BF+4*ks+3}], v{vL16}, s[24:27], s49 offen offset:{1024*(ks%4)}')
        if ks == X.get('nb0', 7):
            I(f'v_lshrrev_b32 v{T[6]}, 5, v{vLANE}')
            I(f'v_bfe_u32 v{T[7]}, v{vLANE}, 2, 2')
            I(f'v_lshl_add_u32 v{T[6]}, v{T[6]}, 3, v{T[7]}')
            I(f'v_lshlrev_b32 v{T[6]}, 7, v{T[6]}')
            I(f'v_bfe_u32 v{T[5]}, v{vLANE}, 4, 1')
            I(f'v_lshl_add_u32 v{T[6]}, v{T[5]}, 5, v{T[6]}')
            I(f'v_and_b32 v{T[5]}, 1, v{vLANE}')
            I(f'v_lshl_add_u32 v{T[6]}, v{T[5]}, 4, v{T[6]}')
            I(f'v_bfe_u32 v{T[5]}, v{vLANE}, 1, 1')
            I(f'v_lshl_add_u32 v{T[6]}, v{T[5]}, 3, v{T[6]}')
            I(f'v_bfe_u32 v{T[7]}, v{vLANE}, 3, 1')
            I(f'v_lshl_add_u32 v{AD[0]}, v{T[7]}, 6, v{T[6]}')
            I(f'v_xor_b32 v{T[7]}, 1, v{T[7]}')
            I(f'v_lshl_add_u32 v{AD[1]}, v{T[7]}, 6, v{T[6]}')
            I(f'v_and_b32 v{T[0]}, 31, v{vLANE}')
            I('s_lshl_b32 s41, s34, 9')
            I(f's_add_u32 s41, s41, {L_ST}')
            I(f'v_lshl_add_u32 v22, v{T[0]}, 4, s41')
            common()
            I(f'v_add_u32 v{vCSA}, 256, v{vCSA}')
            I('s_add_u32 s53, s53, 4096')
    I('s_mov_b32 s44, 0')
    if X.get('prio', 1): I('s_setprio 2')
    st()
    PRE = 4
    a.raw('K4_pass:')
    for qd in range(4):
        if qd >= 2:
            I('s_cmp_eq_u32 s44, 1')
            I(f's_cbranch_scc1 K4_nb{qd}')
            I('s_barrier')
            a.raw(f'K4_nb{qd}:')
        else:
            I('s_barrier')
        base = 16*qd
        order = list(range(base, base+16))
        if qd == 3:
            order = order[:8] + [i for i in order[8:] if i % 2 == 1] + [i for i in order[8:] if i % 2 == 0]
        def rd2(n):
            idx = order[n]; ks, m2 = idx // 2, idx % 2
            return [f'ds_read_b64_tr_b16 v[{AFR + 4*(n % NRING) + 2*t}:{AFR + 4*(n % NRING) + 2*t + 1}], v{AD[m2]} offset:{(16*ks + 4*t)*128}' for t in range(2)]
        for n in range(PRE):
            for s in rd2(n): I(s)
        for n, idx in enumerate(order):
            ks, m2 = idx // 2, idx % 2
            b = ACC + 16*m2
            cc = '0' if ks == 0 else f'v[{b}:{b+15}]'
            r = AFR + 4*(n % NRING)
            I(f'v_mfma_f32_32x32x16_bf16 v[{b}:{b+15}], v[{r}:{r+3}], a[{BF+4*ks}:{BF+4*ks+3}], {cc}')
            if n + PRE < 16:
                for s in rd2(n+PRE): I(s)
            if qd == 3 and n == 14:
                for i in range(4): I(f'ds_write_b128 v{vSTG}, v[{ACC+16+4*i}:{ACC+16+4*i+3}] offset:{4096 + 1024*i}')
    I('s_cmp_eq_u32 s44, 1')
    I('s_cbranch_scc1 K4_done')
    for i in range(4): I(f'ds_write_b128 v{vSTG}, v[{ACC+4*i}:{ACC+4*i+3}] offset:{1024*i}')
    I(f'v_add_u32 v{AD[0]}, 65536, v{AD[0]}')
    I(f'v_add_u32 v{AD[1]}, 65536, v{AD[1]}')
    I('s_mov_b32 s44, 1')
    I('s_waitcnt lgkmcnt(0)')
    I('s_branch K4_pass')
    a.label('K4_done')
    I(f'ds_read_b128 v[{RM}:{RM+3}], v22')
    I('s_setprio 0')
    I('s_waitcnt lgkmcnt(0)')
    st()
    I('s_barrier')
    I('s_nop 7')
    I('s_call_b64 s[62:63], K4_epi')
    st.flush(24, 34, 22, vLANE)
    I('s_endpgm')
    n_comp = st.n
    a.label('K4_epi')
    a.vm_q = []; a.lds_q = []
    b = ACC
    for h8 in range(2):
        I(f'ds_read_b128 v[{CS}:{CS+3}], v{vCSA} offset:{64*h8}')
        I(f'ds_read_b128 v[{CS+4}:{CS+7}], v{vCSA} offset:{64*h8 + 16}')
        chains = []
        for i in range(8):
            r = b + 8*h8 + i; t = T[i]
            chains.append([f'v_fma_f32 v{r}, -v{M}, v{CS+i}, v{r}', f'v_mul_f32 v{t}, v{r}, v{r}', f'v_fma_f32 v{t}, v{t}, v{B_}, v{A_}',
                           f'v_mul_f32 v{t}, v{t}, v{r}', f'v_exp_f32 v{t}, v{t}', f'v_fma_f32 v{t}, v{t}, v{S_}, v{S_}',
                           f'v_rcp_f32 v{t}, v{t}', f'v_mul_f32 v{r}, v{r}, v{t}'])
        for j in range(8):
            for c in chains: I(c[j])
        for i in range(4):
            I(f'v_cvt_pk_bf16_f32 v{OUTP+4*h8+i}, v{b+8*h8+2*i}, v{b+8*h8+2*i+1}')
        I(f'buffer_store_dwordx4 v[{OUTP+4*h8}:{OUTP+4*h8+3}], v{vL16}, s[24:27], s53 offen offset:{1024*h8}')
    I('s_nop 1')
    I('s_setpc_b64 s[62:63]')
    a.label('K4_help')
    a.lds_q = []
    a.vm_q = list(hq)
    st.n = hn
    I('s_lshl_b32 s51, s36, 9')
    I(f's_add_u32 s51, s51, {WS_CS3:#x}')
    csl = f's_mov_b32 m0, {L_CS}\ns_mov_b32 exec_hi, 0\nbuffer_load_dwordx4 v{vL16}, s[24:27], s51 offen lds ; W:CS\ns_mov_b32 exec_hi, -1'
    I('s_lshl_b32 s41, s34, 9')
    I(f's_add_u32 s41, s41, {L_ST}')
    I(f'v_lshl_add_u32 v{AD[1]}, v{T[0]}, 4, s41')
    common()
    def stats():
        L = []
        V = S_
        L.append(f'v_add_f32 v{M}, v{ST}, v{ST+2}')
        L.append(f'v_add_f32 v{V}, v{ST+1}, v{ST+3}')
        for j in range(2, 16):
            L.append(f'v_add_f32 v{M}, v{M}, v{ST+2*j}')
            L.append(f'v_add_f32 v{V}, v{V}, v{ST+2*j+1}')
        L.append(f'v_mul_f32 v{M}, {f32bits(1.0/16):#x}, v{M}')
        L.append(f'v_mov_b32 v{T[2]}, 0')
        for j in range(16):
            L.append(f'v_sub_f32 v{T[3]}, v{ST+2*j}, v{M}')
            L.append(f'v_fmac_f32 v{T[2]}, v{T[3]}, v{T[3]}')
        L.append(f'v_fmac_f32 v{V}, {f32bits(32.0):#x}, v{T[2]}')
        L.append(f'v_mul_f32 v{V}, {f32bits(1.0/512):#x}, v{V}')
        L.append(f'v_cvt_pk_bf16_f32 v{M}, 0, v{M}')
        L.append(f'v_cvt_pk_bf16_f32 v{V}, 0, v{V}')
        L.append(f'v_add_f32 v{V}, {f32bits(1e-5):#x}, v{V}')
        L.append(f'v_cvt_pk_bf16_f32 v{V}, 0, v{V}')
        L.append(f'v_sqrt_f32 v{V}, v{V}')
        L.append(f'v_cvt_pk_bf16_f32 v{V}, 0, v{V}')
        L.append(f'v_rcp_f32 v{T[2]}, v{V}')
        L.append(f'v_mul_f32 v{A_}, {f32bits(c0):#x}, v{T[2]}')
        L.append(f'v_mul_f32 v{B_}, v{T[2]}, v{T[2]}')
        L.append(f'v_mul_f32 v{B_}, v{B_}, v{A_}')
        L.append(f'v_mul_f32 v{B_}, {f32bits(0.044715):#x}, v{B_}')
        L.append(f'ds_write_b128 v{AD[1]}, v[{RM}:{RM+3}]')
        return L
    def pf4(n):
        L = [f's_mov_b32 s58, {1792*1024}\ns_mov_b32 s59, 0x00020000\nv_lshlrev_b32 v{AD[2]}, 7, v{vLANE}\n'
             's_lshr_b32 s60, s2, 3\ns_lshl_b32 s60, s60, 16\ns_lshl_b32 s61, s34, 14\ns_add_u32 s60, s60, s61']
        for i in range(n):
            L.append(f'buffer_load_dword v{AFR+i}, v{AD[2]}, s[56:59], s60 offen\ns_add_u32 s60, s60, 8192')
        return L
    NPF = X.get('pf4', 0); PFQ = X.get('pfq', 'e0')
    for q in range(6):
        tags = [f'G{q}'] + (['CS'] if q == 4 else [])
        if q == 5: tags = ['G5', 'G6', 'G7']
        a.wait_tags(tags, lg=(q >= 4))
        I('s_barrier')
        if X.get('hst'): st()
        if q + AH < 8:
            for s in grp(q + AH): I(s)
        if q == 0:
            if not SE:
                for s in stl: I(s)
            I(csl)
        if q == X.get('sq', 3):
            for s in stats(): I(s)
            if X.get('dry', 0):
                I('s_mov_b64 exec, 0')
                I('s_call_b64 s[62:63], K4_epi')
                I('s_mov_b64 exec, -1')
                I('s_waitcnt lgkmcnt(0)')
        if q == 4:
            for i in range(4): I(f'ds_read_b128 v[{ACC+4*i}:{ACC+4*i+3}], v{vSTG} offset:{1024*i}')
            for i in range(4): I(f'ds_read_b128 v[{ACC+16+4*i}:{ACC+16+4*i+3}], v{vSTG} offset:{4096 + 1024*i}')
        if NPF and q == PFQ:
            for s in pf4(NPF): I(s)
    I('s_call_b64 s[62:63], K4_epi')
    if NPF and PFQ == 'e0':
        for s in pf4(NPF): I(s)
    for i in range(16): I(f'v_mov_b32 v{ACC+i}, v{ACC+16+i}')
    I(f'v_add_u32 v{vCSA}, 128, v{vCSA}')
    I('s_add_u32 s53, s53, 2048')
    I('s_call_b64 s[62:63], K4_epi')
    if NPF and PFQ == 'e1':
        for s in pf4(NPF): I(s)
    I(f'v_add_u32 v{vCSA}, 256, v{vCSA}')
    I('s_add_u32 s53, s53, 4096')
    st()
    I('s_barrier')
    if X.get('hst'): st()
    for i in range(4): I(f'ds_read_b128 v[{ACC+4*i}:{ACC+4*i+3}], v{vSTG} offset:{4096 + 1024*i}')
    I('s_waitcnt lgkmcnt(0)')
    I('s_call_b64 s[62:63], K4_epi')
    if X.get('hst'): st()
    st.kidx = 6
    st.flush(24, 55, 22, vLANE)
    a.label('K4_end')
    I('s_endpgm')
    print("K4 instrs", a.ninstr, "nops", a.nnop)
    return a.text(), kernel_desc(name, 256, 96, accum=128)
```

```python
from common import *

def gen_k5(name, stamps=False, LA=2, X={}):
    a = Asm()
    st = Stamper(a, stamps, 5)
    kernel_header(a, name)
    I = a.I
    vLANE, vL16 = 1, 2
    T = [4,5,6,7,8,9,10,11]
    AD = [12,13]
    X1R, X1BR = 16, 20
    GB = 24
    ACC = 32
    AFR = 64
    BF = 96
    NR = 7; NS = 5
    I('s_cmp_ge_u32 s2, 256')
    I('s_cbranch_scc1 K5_end')
    I(f's_load_dwordx2 s[12:13], s[0:1], {KA_W4}')
    I(f's_load_dwordx2 s[24:25], s[0:1], {KA_WS}')
    I(f's_load_dwordx2 s[8:9], s[0:1], {KA_OUT}')
    I(f'v_and_b32 v{vLANE}, 63, v0')
    I('v_lshrrev_b32 v3, 6, v0')
    I('s_nop 0')
    I('v_readfirstlane_b32 s34, v3')
    I('s_and_b32 s35, s2, 7')
    I('s_lshr_b32 s36, s2, 3')
    I('s_lshl_b32 s35, s35, 2')
    I('s_lshr_b32 s37, s36, 3')
    I('s_add_u32 s35, s35, s37')
    I('s_and_b32 s36, s36, 7')
    I('s_and_b32 s38, s34, 1')
    I('s_lshr_b32 s39, s34, 1')
    I('s_lshl_b32 s40, s35, 1')
    I('s_add_u32 s40, s40, s38')
    I(f'v_lshlrev_b32 v{vL16}, 4, v{vLANE}')
    for d, n in ((12, 1792*1024), (8, 2048*1024), (24, WS_SIZE)):
        I(f's_mov_b32 s{d+2}, {n:#x}'); I(f's_mov_b32 s{d+3}, 0x00020000')
    I(f'v_lshrrev_b32 v{T[0]}, 3, v{vLANE}')
    I(f'v_and_b32 v{T[1]}, 7, v{vLANE}')
    I(f'v_bfe_u32 v{T[2]}, v{vLANE}, 4, 1')
    I(f'v_lshlrev_b32 v{T[2]}, 2, v{T[2]}')
    I(f'v_xor_b32 v{T[1]}, v{T[1]}, v{T[2]}')
    I(f'v_lshlrev_b32 v{T[1]}, 4, v{T[1]}')
    I(f'v_lshl_add_u32 v{T[1]}, v{T[0]}, 10, v{T[1]}')
    I(f's_mul_i32 s45, s39, {448*1024}')
    I('s_lshl_b32 s46, s36, 7')
    I('s_add_u32 s45, s45, s46')
    I('s_lshl_b32 s46, s38, 13')
    I('s_add_u32 s45, s45, s46')
    I('s_lshl_b32 s46, s39, 13')
    I('s_lshl_b32 s47, s38, 10')
    I('s_add_u32 s46, s46, s47')
    I('s_mul_i32 s49, s40, 114688')
    I(f's_mul_i32 s50, s39, {28*1024}')
    I('s_add_u32 s49, s49, s50')
    I(f's_add_u32 s49, s49, {WS_T2:#x}')
    def round_loads(R):
        L = []
        for j in range(4):
            L.append(f's_add_u32 s47, s46, {(R % NS)*32768 + j*2048}\ns_mov_b32 m0, s47\ns_add_u32 s48, s45, {(4*R + j)*16*1024}\nbuffer_load_dwordx4 v{T[1]}, s[12:15], s48 offen lds')
        L.append(f's_add_u32 s50, s49, {R*4096}')
        for j in range(4):
            ks = 4*R + j
            L.append(f'buffer_load_dwordx4 v[{BF+4*ks}:{BF+4*ks+3}], v{vL16}, s[24:27], s50 offen offset:{1024*j}')
        return L
    I('s_waitcnt lgkmcnt(0)')
    st.first()
    tw = []
    if X.get('tw'):
        tw += [f'v_min_u32 v208, 55, v{vLANE}\nv_lshlrev_b32 v208, 7, v208\ns_lshr_b32 s60, s2, 3\ns_lshl_b32 s60, s60, 3\ns_add_u32 s60, s60, s34\ns_mul_i32 s61, s60, 7168\n'
               f'buffer_load_dword v209, v208, s[12:15], s61 offen']
    if X.get('tt'):
        tw += [f'v_min_u32 v210, 27, v{vLANE}\nv_lshlrev_b32 v210, 7, v210\ns_lshr_b32 s60, s2, 3\ns_lshl_b32 s60, s60, 3\ns_add_u32 s60, s60, s34\ns_mul_i32 s61, s60, 3584\n'
               f's_and_b32 s60, s2, 7\ns_mul_i32 s60, s60, {8*114688}\ns_add_u32 s61, s61, s60\ns_add_u32 s61, s61, {WS_T2:#x}\n'
               f'buffer_load_dword v211, v210, s[24:27], s61 offen']
    TP = X.get('tp', 1)
    for R in range(LA):
        if R == TP:
            for s in tw: I(s)
        for s in round_loads(R): I(s)
    if TP >= LA:
        for s in tw: I(s)
    I(f'v_lshrrev_b32 v{T[6]}, 5, v{vLANE}')
    I(f'v_bfe_u32 v{T[7]}, v{vLANE}, 2, 2')
    I(f'v_lshl_add_u32 v{T[6]}, v{T[6]}, 3, v{T[7]}')
    I(f'v_lshlrev_b32 v{T[6]}, 7, v{T[6]}')
    I(f'v_bfe_u32 v{T[7]}, v{vLANE}, 4, 1')
    I(f'v_lshl_add_u32 v{T[6]}, v{T[7]}, 5, v{T[6]}')
    I(f'v_and_b32 v{T[7]}, 1, v{vLANE}')
    I(f'v_lshl_add_u32 v{T[6]}, v{T[7]}, 4, v{T[6]}')
    I(f'v_bfe_u32 v{T[7]}, v{vLANE}, 1, 1')
    I(f'v_lshl_add_u32 v{T[6]}, v{T[7]}, 3, v{T[6]}')
    I('s_lshl_b32 s50, s39, 13')
    I(f'v_add_u32 v{T[6]}, s50, v{T[6]}')
    I(f'v_bfe_u32 v{T[7]}, v{vLANE}, 3, 1')
    I(f'v_lshl_add_u32 v{AD[0]}, v{T[7]}, 6, v{T[6]}')
    I(f'v_xor_b32 v{T[7]}, 1, v{T[7]}')
    I(f'v_lshl_add_u32 v{AD[1]}, v{T[7]}, 6, v{T[6]}')
    FL = X.get('fl', 1)
    vEP = 14
    def epi_loads():
        L = []
        L.append('s_lshl_b32 s51, s40, 15')
        L.append('s_lshl_b32 s52, s36, 12')
        L.append('s_add_u32 s51, s51, s52')
        if FL:
            L.append(f'v_lshrrev_b32 v{T[3]}, 3, v{vLANE}\ns_lshl_b32 s52, s39, 3\nv_add_u32 v{T[3]}, s52, v{T[3]}')
            L.append(f'v_and_b32 v{T[4]}, 1, v{vLANE}\nv_lshl_add_u32 v{T[3]}, v{T[4]}, 5, v{T[3]}\nv_lshlrev_b32 v{T[3]}, 4, v{T[3]}')
            L.append(f'v_bfe_u32 v{T[4]}, v{vLANE}, 1, 2\nv_lshl_add_u32 v{vEP}, v{T[4]}, 10, v{T[3]}\nv_lshl_add_u32 v{vEP+1}, v{T[4]}, 11, v{T[3]}')
            va = vEP
        else:
            L.append('s_lshl_b32 s52, s39, 10')
            L.append('s_add_u32 s51, s51, s52')
            va = vL16
        L.append(f's_add_u32 s52, s51, {WS_X1:#x}')
        L.append(f'buffer_load_dwordx4 v[{X1R}:{X1R+3}], v{va}, s[24:27], s52 offen')
        L.append(f's_add_u32 s52, s51, {WS_X1B:#x}')
        L.append(f'buffer_load_dwordx4 v[{X1BR}:{X1BR+3}], v{va}, s[24:27], s52 offen')
        if FL:
            L.append(f'v_and_b32 v{T[3]}, 7, v{vLANE}')
            L.append(f'v_lshlrev_b32 v{T[3]}, 5, v{T[3]}')
            L.append('s_lshl_b32 s52, s36, 8')
        else:
            L.append(f'v_lshrrev_b32 v{T[3]}, 5, v{vLANE}')
            L.append(f'v_lshlrev_b32 v{T[3]}, 5, v{T[3]}')
            L.append('s_lshl_b32 s52, s36, 8')
            L.append('s_lshl_b32 s53, s39, 6')
            L.append('s_add_u32 s52, s52, s53')
        L.append(f's_add_u32 s52, s52, {WS_MOD + 3*2048:#x}')
        L.append(f'buffer_load_dwordx4 v[{GB}:{GB+3}], v{T[3]}, s[24:27], s52 offen')
        L.append(f'buffer_load_dwordx4 v[{GB+4}:{GB+7}], v{T[3]}, s[24:27], s52 offen offset:16')
        return L
    def rd(R, j, nt, slot):
        L = []
        off = ((R % NS) % 2) * 32768 + (16*j)*128
        for t in range(2):
            d = AFR + 4*slot + 2*t
            L.append(f'ds_read_b64_tr_b16 v[{d}:{d+1}], v{AD[nt]} offset:{off + 4*t*128}')
        return L
    def adv(R):
        cur = ((R-1) % NS) // 2; new = (R % NS) // 2
        d = (new - cur) * 65536
        if d == 0: return []
        if d > 0: return [f'v_add_u32 v{AD[n]}, {d}, v{AD[n]}' for n in range(2)]
        return [f'v_subrev_u32 v{AD[n]}, {-d}, v{AD[n]}' for n in range(2)]
    issued = [8]*LA
    if tw:
        if TP == 0: pass
        else: issued[min(TP, LA) - 1] += len(tw)
    extra_after = {min(TP, LA) - 1: len(tw)} if (tw and TP > 0) else {}
    st()
    for R in range(NR):
        allowed = 4 + extra_after.get(R, 0) + sum(issued[R+1:])
        I(f's_waitcnt vmcnt({allowed})')
        I('s_barrier')
        side = []
        if R + LA < NR:
            side = round_loads(R+LA); issued.append(8)
        elif R + LA == NR:
            side = epi_loads(); issued.append(4)
        seq = [(j, nt) for j in range(4) for nt in range(2)]
        main = adv(R) if R > 0 else []
        for i in range(4):
            main += rd(R, seq[i][0], seq[i][1], i)
        for i, (j, nt) in enumerate(seq):
            b = ACC + 16*nt
            ks = 4*R + j
            cc = '0' if ks == 0 else f'v[{b}:{b+15}]'
            main.append(f'v_mfma_f32_32x32x16_bf16 v[{b}:{b+15}], v[{AFR+4*i}:{AFR+4*i+3}], v[{BF+4*ks}:{BF+4*ks+3}], {cc}')
            if i + 4 < 8:
                main += rd(R, seq[i+4][0], seq[i+4][1], i+4)
        for s in merge(main, side): I(s)
    st()
    RED = 65536
    I('s_lshl_b32 s50, s34, 13')
    I(f's_add_u32 s50, s50, {RED}')
    I(f'v_add_u32 v{T[0]}, s50, v{vL16}')
    for p in range(4):
        for h in range(2):
            r = ACC + 8*p + 4*h
            I(f'ds_write_b128 v{T[0]}, v[{r}:{r+3}] offset:{2048*p + 1024*h}')
    I('s_waitcnt lgkmcnt(0)')
    I('s_barrier')
    I('s_lshl_b32 s50, s38, 13')
    if not FL:
        I('s_lshl_b32 s51, s39, 11')
        I('s_add_u32 s50, s50, s51')
    I(f's_add_u32 s50, s50, {RED}')
    I(f'v_add_u32 v{T[0]}, s50, v{vEP+1 if FL else vL16}')
    for q in range(4):
        for h in range(2):
            r = AFR + 8*q + 4*h
            I(f'ds_read_b128 v[{r}:{r+3}], v{T[0]} offset:{16384*q + 1024*h}')
    I('s_mov_b32 s52, 0xffff0000')
    for e in range(8):
        r = AFR + e
        I(f'v_add_f32 v{r}, v{r}, v{r+8}')
        I(f'v_add_f32 v{r+16}, v{r+16}, v{r+24}')
        I(f'v_add_f32 v{r}, v{r}, v{r+16}')
        if e % 2 == 0:
            I(f'v_lshlrev_b32 v{T[1]}, 16, v{X1BR+e//2}'); I(f'v_lshlrev_b32 v{T[2]}, 16, v{X1R+e//2}')
        else:
            I(f'v_and_b32 v{T[1]}, s52, v{X1BR+e//2}'); I(f'v_and_b32 v{T[2]}, s52, v{X1R+e//2}')
        I(f'v_add_f32 v{r}, v{r}, v{T[1]}')
        I(f'v_fma_f32 v{r}, v{r}, v{GB+e}, v{T[2]}')
    for j in range(4):
        I(f'v_cvt_pk_bf16_f32 v{ACC+j}, v{AFR+2*j}, v{AFR+2*j+1}')
    if FL:
        I(f'v_lshrrev_b32 v{T[1]}, 3, v{vLANE}')
        I(f'v_lshlrev_b32 v{T[1]}, 10, v{T[1]}')
        I(f'v_and_b32 v{T[2]}, 7, v{vLANE}')
        I(f'v_lshl_add_u32 v{T[1]}, v{T[2]}, 4, v{T[1]}')
        I('s_lshl_b32 s50, s40, 15')
        I('s_lshl_b32 s51, s36, 7')
        I('s_add_u32 s50, s50, s51')
        I('s_lshl_b32 s51, s39, 13')
        I('s_add_u32 s50, s50, s51')
    else:
        I(f'v_and_b32 v{T[1]}, 31, v{vLANE}')
        I(f'v_lshlrev_b32 v{T[1]}, 10, v{T[1]}')
        I(f'v_lshrrev_b32 v{T[2]}, 5, v{vLANE}')
        I(f'v_lshl_add_u32 v{T[1]}, v{T[2]}, 4, v{T[1]}')
        I('s_lshl_b32 s50, s40, 15')
        I('s_lshl_b32 s51, s36, 7')
        I('s_add_u32 s50, s50, s51')
        I('s_lshl_b32 s51, s39, 5')
        I('s_add_u32 s50, s50, s51')
    I(f'buffer_store_dwordx4 v[{ACC}:{ACC+3}], v{T[1]}, s[8:11], s50 offen')
    st.flush(24, 34, 208, vLANE)
    a.label('K5_end')
    I('s_endpgm')
    print("K5 instrs", a.ninstr, "nops", a.nnop)
    return a.text(), kernel_desc(name, 216, 96)
```

```python
import sys
from common import *
from k0 import gen_k0
from k1 import gen_k1
from k0n import gen_k0n, NB_K0
from k1n import gen_k1n
from k1p import gen_k1p
import k1p_max
from ka import gen_ka
from k2 import gen_k2
from k3 import gen_k3
from k3n import gen_k3n
from k23 import gen_k23, NWG23
from k4 import gen_k4
from k4h import gen_k4h, LDS4
from k4l import gen_k4l
from k5 import gen_k5
def build(path, upto=6, stamps=False, emu=True, t0=False, t1=2, la5=2, merged=False, cpf=False, nt0=2, f23=False, sc=('k0','k1','k2','k3','k4','k5'), **kw):
    hdr = open('cdna_kernels/' + NAME + '.s.ref').read().split('; Override launch')[0]
    ks = []
    ks.append(('k0_kernel', (496,1,1), 512, 32768, lambda n: gen_k0(n, stamps, touch=t0, cpf=cpf)))
    ks.append(('k1_kernel', (256,1,1), 512, 163840, lambda n: gen_k1(n, stamps, emu=emu, touch=t1, X=kw.get('X', ()))))
    ks.append(('k2_kernel', (256,1,1), 512, 18432, lambda n: gen_k2(n, stamps, X=kw.get('X2', {}))))
    ks.append(('k3_kernel', (256,1,1), 256, 65536, lambda n: (gen_k3n if kw.get('k3n', True) else gen_k3)(n, stamps, X=kw.get('X3', {}))))
    ks.append(('k4_kernel', (224,1,1), 512, 131584, lambda n: gen_k4(n, stamps, nt0=nt0, direct=f23, X=kw.get('X4', {}))))
    ks.append(('k5_kernel', (256,1,1), 512, 163840, lambda n: gen_k5(n, stamps, LA=la5, X=kw.get('X5', {}))))
    if kw.get('new', True):
        ks[0] = ('k0_kernel', (NB_K0+kw.get('xpf',0),1,1), 512, 32768, lambda n: gen_k0n(n, stamps, lite=kw.get('lite', 0), xpf=kw.get('xpf',0), qrows=kw.get('qrows',512)))
        ks[1] = ('k1_kernel', (256,1,1), 512, 163840, lambda n: (k1p_max.gen_k1p if kw.get('oldmax') else gen_k1p)(n, stamps, X=kw.get('X', ()), offs=kw.get('offs', 106.0)))
    if kw.get('k4h', True):
        ks[4] = ('k4_kernel', (224,1,1), 512, LDS4, lambda n: (gen_k4h if kw.get('k4h', True) == 'h' else gen_k4l)(n, stamps, X=kw.get('X4', {})))
    if f23:
        ks = ks[:2] + [('k23_kernel', (NWG23,1,1), 512, 151552, lambda n: gen_k23(n, stamps))] + ks[4:]
    if merged:
        ks = [('ka_kernel', (256,1,1), 512, 163840, lambda n: gen_ka(n, stamps))] + ks[2:]
    ks = ks[:upto]
    out = hdr
    for n, g, b, lds, f in ks:
        out += f'; @launch kernel={n} grid=({g[0]},{g[1]},{g[2]}) block=({b},1,1) lds={lds}\n'
    out += '.amdgcn_target "amdgcn-amd-amdhsa--gfx950"\n.text\n'
    descs = ''
    for n, g, b, lds, f in ks:
        t, d = f(n)
        if n.split('_')[0] in sc:
            t = '\n'.join((l + ' sc0 sc1' if 'buffer_store_dwordx4' in l and 'sc0' not in l else l) for l in t.split('\n'))
        out += t; descs += d
    out += 'CODE_END:\n    s_endpgm\n'
    out += '.section .rodata,"a"\n' + descs
    open(path, 'w').write(out)
if __name__ == '__main__':
    build(sys.argv[1] if len(sys.argv) > 1 else 'cur.s', stamps=(int(sys.argv[2]) if len(sys.argv) > 2 else 0))
```

```python
from common import *

SLOT = 32768
KV_SLOT = {16: 1, 17: 2, 18: 3, 19: 4, 20: 0, 21: 1, 22: 2, 23: 3}
def slot_of(c): return KV_SLOT[c] * SLOT

def interleave(main, side):
    out = []
    n = len(main); m = len(side); k = 0
    for i, x in enumerate(main):
        out.append(x)
        tgt = (m * (i + 1)) // n
        while k < tgt:
            out.append(side[k]); k += 1
    return out

DEF = {'late':'', 'early':'u m x0 a0 v a1', 'post':'a2 a3', 'after':{0:'a4 a5', 1:'x1', 3:'k'}, 'sl':(('x2',4),('x3',10),('f',12)), 'mq':((1,4,3),(2,10,4),(3,17,4)), 'bars':(7,14,22), 'fin':24, 'late0':8}
def gen_k1p(name, stamps=False, X=(), offs=106.0):
    X = dict(DEF, **X) if isinstance(X, dict) else dict(DEF, **{k: True for k in X})
    a = Asm()
    OFFS = f'{f32bits(-float(offs)):#x}'
    st = VStamper(a, stamps, 1, 0)
    kernel_header(a, name)
    I = a.I
    vD, vD2 = 1, 2
    vB = [3, 4]
    vA = [5, 6, 7, 8]
    vKA = [9,10,11,12,13,14,15,16]
    vT0, vT1, vT2, vT3 = 17,18,19,20
    vMX = 21; vNEGM = 22; vL = [23,24,25,26]
    vLANE16 = 27
    vKD = [28,29,30,31]
    ACC = 160
    AF = 224
    BFB = 240
    vHW = vT0
    sK, sWQ, sWO, sWS, sTC = 4, 8, 12, 16, 20
    sW, sG, sRB, sHD, sRH, sW4K, sBQ, sBK, sBO, sBV = 24, 25, 26, 27, 28, 29, 30, 31, 32, 33
    t0, t1, t2 = 34, 35, 3
    MODS = 36
    I('s_cmp_ge_u32 s2, 256')
    I('s_cbranch_scc1 K1_end')
    I(f's_load_dwordx2 s[{sWS}:{sWS+1}], s[0:1], {KA_WS}')
    I(f's_load_dwordx2 s[{sWQ}:{sWQ+1}], s[0:1], {KA_WQ}')
    I(f's_load_dwordx2 s[{sK}:{sK+1}], s[0:1], {KA_K}')
    I(f's_load_dwordx2 s[{sWO}:{sWO+1}], s[0:1], {KA_WO}')
    if 'xfake' in X:
        I(f's_load_dwordx2 s[80:81], s[0:1], {KA_X}')
        I(f's_mov_b32 s82, {2048*1024}'); I('s_mov_b32 s83, 0x00020000')
    I('v_and_b32 v21, 63, v0')
    I('v_lshrrev_b32 v18, 6, v0')
    I(f'v_lshlrev_b32 v{vLANE16}, 4, v21')
    I(f'v_readfirstlane_b32 s{sW}, v18')
    I(f's_and_b32 s{sG}, s2, 7')
    I(f's_lshr_b32 s{sRB}, s2, 3')
    I('v_lshrrev_b32 v22, 3, v21')
    I('v_and_b32 v23, 7, v21')
    I('v_bfe_u32 v24, v21, 4, 1')
    I('v_lshlrev_b32 v24, 2, v24')
    I('v_xor_b32 v23, v23, v24')
    I('v_lshlrev_b32 v23, 4, v23')
    I(f'v_lshl_add_u32 v{vD}, v22, 13, v23')
    I(f'v_lshl_add_u32 v{vD2}, v22, 10, v23')
    I('v_lshrrev_b32 v18, 5, v21')
    I('v_lshrrev_b32 v19, 4, v21')
    I('v_lshlrev_b32 v20, 9, v19')
    I('v_and_b32 v25, 7, v21')
    I('v_lshl_add_u32 v20, v25, 3, v20')
    I('v_bfe_u32 v25, v21, 3, 1')
    I('v_xor_b32 v26, 1, v25')
    I('v_lshl_add_u32 v20, v26, 11, v20')
    for d, n in ((sWS, WS_SIZE), (sWQ, 512*8192), (sK, 8*2048*256), (sWO, 4096*1024)):
        I(f's_mov_b32 s{d+2}, {n:#x}')
        I(f's_mov_b32 s{d+3}, 0x00020000')
    I(f's_lshr_b32 s{sHD}, s{sW}, 1')
    I(f's_and_b32 s{sRH}, s{sW}, 1')
    I(f's_lshl_b32 s{sW4K}, s{sW}, 12')
    I(f's_lshl_b32 s{t0}, s{sW}, 7')
    I(f's_lshl_b32 s{sBQ}, s{sG}, 10')
    I(f's_add_u32 s{sBQ}, s{sBQ}, s{t0}')
    I(f's_lshl_b32 s{sBK}, s{sG}, 19')
    I(f's_add_u32 s{sBO}, s{sBK}, s{t0}')
    I(f's_add_u32 s{sBK}, s{sBK}, s{sW4K}')
    I(f's_add_u32 s{sBK}, s{sBK}, {1536*256}')
    I(f's_lshl_b32 s{sBV}, s{sG}, 17')
    I(f's_add_u32 s{sBV}, s{sBV}, s{sW4K}')
    I(f's_add_u32 s{sBV}, s{sBV}, {WS_VP:#x}')
    I(f's_lshr_b32 s{t0}, s{t0}, 1')
    I(f's_add_u32 s{t0}, s{t0}, {WS_GP:#x}')
    I(f's_lshl_b32 s{t1}, s{sRB}, 16')
    I(f's_lshl_b32 s{t2}, s{sW}, 10')
    I(f's_add_u32 s{t1}, s{t1}, s{t2}')
    I(f's_add_u32 s{t2}, s{t2}, {3*SLOT}')
    I(f'v_add_u32 v{vHW}, s{t2}, v{vLANE16}')
    I('s_waitcnt lgkmcnt(0)')
    st.first()
    MP = 82
    def mploads():
        for p in range(4):
            I(f'buffer_load_dwordx2 v[{MP+2*p}:{MP+2*p+1}], v20, s[{sWS}:{sWS+3}], s{t0} offen')
            if p < 3: I(f's_add_u32 s{t0}, s{t0}, {GP_STRIDE}')
    if 'm' not in X['early'].split(): mploads()
    XR = 32
    def xnload(j):
        L = []
        for rh in range(2):
            L.append(f's_add_u32 s{t2}, s{t1}, {8192*j + 32768*rh}')
            L.append(f'buffer_load_dwordx4 v[{XR+8*j+4*rh}:{XR+8*j+4*rh+3}], v{vLANE16}, ' + (f's[{sWS}:{sWS+3}]' if 'xfake' not in X else 's[80:83]') + f', s{t2} offen' + (' nt' if 'xnt' in X else ''))
        return L
    FP = 90
    def finload():
        L = [f's_lshl_b32 s36, s2, 8', f's_add_u32 s37, s36, {WS_GP + 4096:#x}', f's_add_u32 s36, s36, {WS_MOD:#x}',
             f's_lshl_b32 s38, s{sW}, 8', 's_add_u32 s38, s38, s2', 's_cmp_ge_u32 s38, 68', 's_cselect_b32 s38, 0x10000000, 0',
             's_add_u32 s36, s36, s38', 's_add_u32 s37, s37, s38', f'v_lshrrev_b32 v20, 2, v{vLANE16}']
        for p in range(4):
            L.append(f'buffer_load_dword v{FP+p}, v20, s[{sWS}:{sWS+3}], s37 offen')
            if p < 3: L.append(f's_add_u32 s37, s37, {GP_STRIDE}')
        return L
    finops = ['s_lshr_b32 s38, s2, 3\ns_cmp_eq_u32 s38, 2\ns_cselect_b32 s38, 1.0, 0', 's_cmp_lt_u32 s2, 32\ns_cselect_b64 s[40:41], -1, 0',
              f'v_add_f32 v{FP}, v{FP}, v{FP+1}', f'v_add_f32 v{FP+2}, v{FP+2}, v{FP+3}', f'v_add_f32 v{FP}, v{FP}, v{FP+2}',
              f'v_cvt_pk_bf16_f32 v{FP+1}, 0, v{FP}', f'v_add_f32 v{FP+1}, s38, v{FP+1}', f'v_cvt_pk_bf16_f32 v{FP+1}, 0, v{FP+1}',
              f'v_cndmask_b32 v{FP}, v{FP}, v{FP+1}, s[40:41]', f'buffer_store_dword v{FP}, v20, s[{sWS}:{sWS+3}], s36 offen']
    EX2 = X.get('ex2', 0)
    RING = {0: [0,0,1,1,2,2] if not EX2 else [1,1,2,2,0,0,4,4], 1: [4,4,0,0,1,1]}
    def ent(ph, kk):
        if ph == 0 and EX2: return kk if kk < 8 else (kk - 2) % 6
        return kk % 6
    def nxt_dma(ph, k):
        if ph == 0 and EX2 and k < 8: return k + 8 if k < 6 else None
        return k + 6 if k + 6 < 32 else None
    vAX = [23, 24]
    def wo_row(kk): return ((kk >> 2) & 3)*128 + ((kk >> 4)*4 + (kk & 3))*16
    def a_dma(ph, kk):
        e = ent(ph, kk)
        lds = RING[ph][e]*SLOT + (e & 1)*2048
        if ph == 0:
            so = [kk*16*8192, kk*16*8192 + 8*8192 - 1024]; sb = sBQ; srd_ = sWQ; v = vD
        else:
            so = [wo_row(kk)*1024, wo_row(kk)*1024 + 7168]; sb = sBO; srd_ = sWO; v = vD2
            if 'wosmall' in X: so = [(kk % 8)*16384, (kk % 8)*16384 + 7168]
        h0 = f's_add_u32 m0, s{sW4K}, {lds}\ns_add_u32 s{t2}, s{sb}, {so[0]}\nbuffer_load_dwordx4 v{v}, s[{srd_}:{srd_+3}], s{t2} offen lds ; W:E{e}'
        h1 = f's_add_u32 s{t2}, s{sb}, {so[1]}\nbuffer_load_dwordx4 v{v}, s[{srd_}:{srd_+3}], s{t2} offen offset:1024 lds ; W:E{e}'
        return [h0, h1]
    def kv_dma(c, js=(0,1,2,3), tag=None):
        L = [f's_add_u32 m0, s{sW4K}, {slot_of(c)}']
        if c % 2 == 0:
            L.append(f's_add_u32 s{t2}, s{sBK}, {((c-16)//2)*32768}')
            for j in js:
                L.append(f'buffer_load_dwordx4 v{vKD[j]}, s[{sK}:{sK+3}], s{t2} offen offset:{1024*j} lds ; W:C{c}' + (f' W:{tag}' if tag else ''))
        else:
            L.append(f's_add_u32 s{t2}, s{sBV}, {((c-17)//2)*32768}')
            for j in js:
                L.append(f'buffer_load_dwordx4 v{vLANE16}, s[{sWS}:{sWS+3}], s{t2} offen offset:{1024*j} lds ; W:C{c}' + (f' W:{tag}' if tag else ''))
        return L
    def touch_ops(kind):
        L = []
        if 'notouch' in X or ('no' + kind) in X: return L
        if kind == 'wo':
            L.append(f'v_lshlrev_b32 v{vT2}, 1, v{vLANE16}')
            L.append(f's_lshl_b32 s{t0}, s{sG}, 19')
            L.append(f's_lshl_b32 s{t1}, s{sRB}, 14')
            L.append(f's_add_u32 s{t0}, s{t0}, s{t1}')
            L.append(f's_lshl_b32 s{t1}, s{sW}, 11')
            L.append(f's_add_u32 s{t0}, s{t0}, s{t1}')
            L.append(f'buffer_load_dword v{vT2}, v{vT2}, s[{sWO}:{sWO+3}], s{t0} offen')
        elif X.get('wbmode', 1) == 0:
            d = sTC
            L.append(f'v_lshlrev_b32 v{vT2}, 3, v{vLANE16}')
            L.append(f's_cmp_eq_u32 s{sHD}, 1\ns_cselect_b32 s{d}, s58, s56\ns_cselect_b32 s{d+1}, s59, s57')
            L.append(f's_cmp_eq_u32 s{sHD}, 2\ns_cselect_b32 s{d}, s60, s{d}\ns_cselect_b32 s{d+1}, s61, s{d+1}')
            L.append(f's_cmp_eq_u32 s{sHD}, 3\ns_cselect_b32 s{d}, s62, s{d}\ns_cselect_b32 s{d+1}, s63, s{d+1}')
            L.append(f's_mov_b32 s{d+2}, {512*1024}\ns_movk_i32 s{t0}, 2048\ns_cmp_ge_u32 s{sHD}, 2\ns_cselect_b32 s{d+2}, {1792*1024}, s{d+2}\ns_cselect_b32 s{t0}, 7168, s{t0}')
            L.append(f's_mov_b32 s{d+3}, 0x00020000')
            L.append(f's_mul_i32 s{t0}, s{t0}, s2')
            L.append(f'buffer_load_dword v{vT2}, v{vT2}, s[{d}:{d+3}], s{t0} offen')
        else:
            d = sTC
            L.append(f'v_lshlrev_b32 v{vT2}, 3, v{vLANE16}')
            L.append(f's_cmp_eq_u32 s{sHD}, 1\ns_cselect_b32 s{d}, s58, s{sWS}\ns_cselect_b32 s{d+1}, s59, s{sWS+1}\ns_cselect_b32 s{d+2}, {512*1024}, s{sWS+2}\ns_cselect_b32 s{t1}, 0, {WS_W1P:#x}')
            L.append(f's_cmp_eq_u32 s{sHD}, 2\ns_cselect_b32 s{d}, s60, s{d}\ns_cselect_b32 s{d+1}, s61, s{d+1}')
            L.append(f's_cmp_eq_u32 s{sHD}, 3\ns_cselect_b32 s{d}, s62, s{d}\ns_cselect_b32 s{d+1}, s63, s{d+1}')
            L.append(f's_lshl_b32 s{t0}, s{sRB}, 14\ns_add_u32 s{t1}, s{t1}, s{t0}\ns_lshl_b32 s{t0}, s{sRH}, 13\ns_add_u32 s{t1}, s{t1}, s{t0}')
            L.append(f's_mul_i32 s{t0}, s2, 7168\ns_cmp_ge_u32 s{sHD}, 2\ns_cselect_b32 s{d+2}, {1792*1024}, s{d+2}\ns_cselect_b32 s{t0}, s{t0}, s{t1}')
            L.append(f's_mov_b32 s{d+3}, 0x00020000')
            L.append(f'buffer_load_dword v{vT2}, v{vT2}, s[{d}:{d+3}], s{t0} offen')
        return L
    def pf_ops(kind):
        d = sTC
        L = []
        if kind == 'w4':
            L.append(f'v_lshrrev_b32 v{vT2}, 4, v{vLANE16}\nv_min_u32 v{vT2}, 55, v{vT2}\nv_lshlrev_b32 v{vT2}, 7, v{vT2}')
            L.append(f's_mov_b32 s{d}, s62\ns_mov_b32 s{d+1}, s63\ns_mov_b32 s{d+2}, {1792*1024}\ns_mov_b32 s{d+3}, 0x00020000')
            L.append(f's_lshl_b32 s{t0}, s{sRB}, 3\ns_add_u32 s{t0}, s{t0}, s{sW}\ns_mul_i32 s{t0}, s{t0}, 7168')
        elif kind == 'w3':
            L.append(f'v_bfe_u32 v{vT2}, v{vLANE16}, 4, 5\nv_min_u32 v{vT2}, 13, v{vT2}\nv_lshlrev_b32 v{vT2}, 7, v{vT2}')
            L.append(f'v_lshrrev_b32 v{vT1}, 9, v{vLANE16}\nv_mul_u32_u24 v{vT1}, 3584, v{vT1}\nv_add_u32 v{vT2}, v{vT2}, v{vT1}')
            L.append(f's_mov_b32 s{d}, s60\ns_mov_b32 s{d+1}, s61\ns_mov_b32 s{d+2}, {512*3584}\ns_mov_b32 s{d+3}, 0x00020000')
            L.append(f's_lshl_b32 s{t0}, s{sRB}, 3\ns_add_u32 s{t0}, s{t0}, s{sW}\ns_mul_i32 s{t0}, s{t0}, {2*3584}\ns_and_b32 s{t1}, s{sG}, 1\ns_mul_i32 s{t1}, s{t1}, 1792\ns_add_u32 s{t0}, s{t0}, s{t1}')
        L.append(f'buffer_load_dword v{vT2}, v{vT2}, s[{d}:{d+3}], s{t0} offen')
        return L
    def start_touch():
        if 'notouch' in X: return
        I('v_bfe_u32 v22, v21, 3, 1')
        I('v_and_b32 v23, 7, v21')
        I('v_lshlrev_b32 v22, 13, v22')
        I('v_lshl_add_u32 v22, v23, 7, v22')
        I(f's_lshl_b32 s100, s{sRB}, 17')
        I(f's_lshl_b32 s{t2}, s{sW}, 14')
        I(f's_add_u32 s100, s100, s{t2}')
        I(f's_lshl_b32 s{t2}, s{sG}, 10')
        I(f's_add_u32 s100, s100, s{t2}')
        I(f'buffer_load_dword v94, v22, s[{sWQ}:{sWQ+3}], s100 offen')
        I('v_and_b32 v23, 3, v21')
        I('v_lshlrev_b32 v23, 7, v23')
        I(f's_lshl_b32 s100, s{sG}, 19')
        I(f's_lshl_b32 s{t2}, s{sRB}, 12')
        I(f's_add_u32 s100, s100, s{t2}')
        I(f's_lshl_b32 s{t2}, s{sW}, 9')
        I(f's_add_u32 s100, s100, s{t2}')
        I(f's_add_u32 s100, s100, {1536*256}')
        I(f'buffer_load_dword v95, v23, s[{sK}:{sK+3}], s100 offen')
    def touch2(kind, dst):
        L = []
        if kind in 'uv':
            L.append(f'v_and_b32 v{dst}, 0x70, v{vLANE16}')
            L.append(f'v_lshlrev_b32 v{dst}, 3, v{dst}')
            L.append(f's_lshl_b32 s44, s{sRB}, 16\ns_lshl_b32 s45, s{sW}, 13\ns_add_u32 s44, s44, s45\ns_lshl_b32 s45, s{sG}, 10\ns_add_u32 s44, s44, s45' + (f'\ns_add_u32 s44, s44, {256*8192}' if kind == 'v' else ''))
            L.append(f'buffer_load_dword v{dst}, v{dst}, s[{sWQ}:{sWQ+3}], s44 offen')
        else:
            L.append(f'v_and_b32 v{dst}, 0x30, v{vLANE16}')
            L.append(f'v_lshlrev_b32 v{dst}, 3, v{dst}')
            L.append(f's_lshl_b32 s44, s{sG}, 19\ns_lshl_b32 s45, s{sRB}, 12\ns_add_u32 s44, s44, s45\ns_lshl_b32 s45, s{sW}, 9\ns_add_u32 s44, s44, s45\ns_add_u32 s44, s44, {1536*256}')
            L.append(f'buffer_load_dword v{dst}, v{dst}, s[{sK}:{sK+3}], s44 offen')
        return L
    TD = {'u': 94, 'v': 95, 'k': 93}
    early = X.get('early', 'x0 a0 a1 t x1 a2 a3') if isinstance(X, dict) else 'x0 a0 a1 t x1 a2 a3'
    late = X.get('late', 'a4 a5 x2 x3 f') if isinstance(X, dict) else 'a4 a5 x2 x3 f'
    def emit_order(o):
        for tok in o.split():
            if tok == 't': start_touch()
            elif tok == 'm': mploads()
            elif tok == 'f':
                for s in finload(): I(s)
            elif tok in TD:
                for s in touch2(tok, TD[tok]): I(s)
            elif tok[0] == 'x':
                for s in xnload(int(tok[1])): I(s)
            else:
                for s in a_dma(0, int(tok[1])): I(s)
    emit_order(early)
    I('v_bfe_u32 v19, v21, 2, 2')
    I('v_lshl_add_u32 v22, v18, 3, v19')
    I('v_lshlrev_b32 v22, 7, v22')
    I('v_bfe_u32 v23, v21, 4, 1')
    I('v_lshl_add_u32 v22, v23, 5, v22')
    I('v_and_b32 v23, 1, v21')
    I('v_lshl_add_u32 v22, v23, 4, v22')
    I('v_bfe_u32 v23, v21, 1, 1')
    I('v_lshl_add_u32 v22, v23, 3, v22')
    I(f'v_add_u32 v22, s{sW4K}, v22')
    I('v_bfe_u32 v23, v21, 3, 1')
    I(f'v_lshl_add_u32 v{vA[0]}, v23, 6, v22')
    I('v_xor_b32 v23, 1, v23')
    I(f'v_lshl_add_u32 v{vA[1]}, v23, 6, v22')
    I(f'v_add_u32 v{vA[2]}, {2*SLOT}, v{vA[0]}')
    I(f'v_add_u32 v{vA[3]}, {2*SLOT}, v{vA[1]}')
    I('v_and_b32 v24, 31, v21')
    I('v_and_b32 v22, 15, v21')
    I('v_xor_b32 v22, v22, v18')
    I(f's_lshl_b32 s{t2}, s{sRH}, 3')
    I(f'v_xor_b32 v22, s{t2}, v22')
    I('v_lshlrev_b32 v24, 8, v24')
    I(f'v_add_u32 v24, {slot_of(16)}, v24')
    for s in range(8):
        I(f'v_xor_b32 v23, {2*s}, v22')
        I(f'v_lshl_add_u32 v{vKA[s]}, v23, 4, v24')
    I('v_lshrrev_b32 v24, 4, v21')
    I('v_and_b32 v22, 15, v21')
    I('v_xor_b32 v22, v22, v24')
    I('v_lshlrev_b32 v24, 8, v24')
    for j in range(4):
        I(f'v_xor_b32 v23, {4*j}, v22')
        I(f'v_lshl_add_u32 v{vKD[j]}, v23, 4, v24')
    I(f's_lshl_b32 s{t2}, s{sRH}, 14')
    I(f's_add_u32 s{t2}, s{t2}, {3*SLOT}')
    I(f'v_add_u32 v{vB[0]}, s{t2}, v{vLANE16}')
    I(f'v_xor_b32 v{vB[1]}, 0x4000, v{vB[0]}')
    I('v_mov_b32 v80, 0x3f80')
    I('v_mov_b32 v81, 0x3f800000')
    I('v_cvt_f32_u32 v26, v26')
    I('v_cmp_eq_u32 vcc, 0, v21')
    I('v_lshrrev_b32 v25, 3, v21')
    I('v_cmp_eq_u32 vcc, 0, v25')
    I('v_cndmask_b32 v25, 0, 16, vcc')
    STG = 3*SLOT + 16384 + 8192
    I(f's_lshl_b32 s{t2}, s{sW}, 10')
    I(f's_add_u32 s{t2}, s{t2}, {STG}')
    I(f'v_lshl_add_u32 v24, v21, 3, s{t2}')
    I(f'v_lshl_add_u32 v23, v18, 5, s{t2}')
    for e in range(2):
        I(f'v_add_f32 v{MP+e}, v{MP+e}, v{MP+2+e}')
        I(f'v_add_f32 v{MP+4+e}, v{MP+4+e}, v{MP+6+e}')
    for e in range(2): I(f'v_add_f32 v{MP+e}, v{MP+e}, v{MP+4+e}')
    for e in range(2): rnd_bf16(a, MP+e, MP+e)
    for e in range(2): I(f'v_add_f32 v{MP+e}, v{MP+e}, v26')
    for e in range(2): rnd_bf16(a, MP+e, MP+e)
    I(f'v_lshrrev_b32 v{MP}, v25, v{MP}')
    I(f'ds_write_b64 v24, v[{MP}:{MP+1}]')
    MO = 96
    for j in range(4):
        for q, off in enumerate((0, 16, 64, 80)):
            I(f'ds_read_b128 v[{MO+16*j+4*q}:{MO+16*j+4*q+3}], v23 offset:{128*j + off}')
    TT = 64
    def hwrite(j, rh):
        return f'ds_write_b128 v{vHW}, v[{XR+8*j+4*rh}:{XR+8*j+4*rh+3}] offset:{(j >> 1)*32768 + (j & 1)*8192 + rh*16384}'
    for rh in range(2):
        xb = XR + 4*rh
        for d in range(4):
            I(f'v_dot2_f32_bf16 v{TT+2*d}, v{xb+d}, v{MO+2*d}, 0')
            I(f'v_dot2_f32_bf16 v{TT+2*d+1}, v{xb+d}, v{MO+2*d+1}, 0')
        for d in range(4):
            I(f'v_cvt_pk_bf16_f32 v{xb+d}, v{TT+2*d}, v{TT+2*d+1}')
        for d in range(4):
            I(f'v_dot2_f32_bf16 v{TT+8+2*d}, v{xb+d}, v80, v{MO+8+2*d}')
            I(f'v_dot2_f32_bf16 v{TT+8+2*d+1}, v{xb+d}, v81, v{MO+8+2*d+1}')
        for d in range(4):
            I(f'v_cvt_pk_bf16_f32 v{xb+d}, v{TT+8+2*d}, v{TT+8+2*d+1}')
        I(hwrite(0, rh))
    def modq(j):
        L = []
        sb = MO + 16*j
        for rh in range(2):
            for half in range(2):
                seq = []
                for d in (2*half, 2*half+1):
                    x = XR + 8*j + 4*rh + d; lo = TT + 2*d; hi = lo + 1
                    if X.get('mod5'):
                        seq.append([f'v_lshlrev_b32 v{lo}, 16, v{x}', f'v_and_b32 v{hi}, 0xffff0000, v{x}',
                                    f'v_fma_f32 v{lo}, v{sb+2*d}, v{lo}, v{sb+8+2*d}', f'v_fma_f32 v{hi}, v{sb+2*d+1}, v{hi}, v{sb+8+2*d+1}',
                                    f'v_cvt_pk_bf16_f32 v{x}, v{lo}, v{hi}'])
                    else:
                        seq.append([f'v_lshlrev_b32 v{lo}, 16, v{x}', f'v_and_b32 v{hi}, 0xffff0000, v{x}',
                                f'v_mul_f32 v{lo}, v{sb+2*d}, v{lo}', f'v_mul_f32 v{hi}, v{sb+2*d+1}, v{hi}',
                                f'v_cvt_pk_bf16_f32 v{lo}, 0, v{lo}', f'v_cvt_pk_bf16_f32 v{hi}, 0, v{hi}',
                                f'v_add_f32 v{lo}, v{sb+8+2*d}, v{lo}', f'v_add_f32 v{hi}, v{sb+8+2*d+1}, v{hi}',
                                f'v_cvt_pk_bf16_f32 v{x}, v{lo}, v{hi}'])
                n = len(seq[0]) - 1
                for k in range(0, n, 2):
                    for q in seq: L += q[k:k+2]
                for q in seq: L.append(q[n])
            L.append(hwrite(j, rh))
        return L
    SK = X.get('skew', 0)
    ABUF = [224, 232, 128, 136, 144, 152, 160, 168, 176, 184, 192, 200, 208, 216]
    def abuf(ph, kk):
        if ph == 1 and SK: return ABUF[kk % (SK + 2)]
        return AF + 8*(kk & 1)
    def a_reads(ph, kk, nt):
        e = ent(ph, kk); sl = RING[ph][e]
        hi = sl >= 2
        off = (0 if hi else sl*SLOT) + (e & 1)*2048
        d = abuf(ph, kk) + 4*nt
        va = vA[2*hi+nt] if e < 6 else vAX[nt]
        return [f'ds_read_b64_tr_b16 v[{d+2*t}:{d+2*t+1}], v{va} offset:{off + 512*t} ; R:E{e}' for t in range(2)]
    def b_read(kk, b):
        d = BFB + 8*(kk & 1) + 4*b
        return f'ds_read_b128 v[{d}:{d+3}], v{vB[b]} offset:{(kk >> 4)*32768 + (kk & 15)*1024}'
    emit_order(late)
    if EX2:
        I(f'v_add_u32 v{vAX[0]}, {4*SLOT}, v{vA[0]}')
        I(f'v_add_u32 v{vAX[1]}, {4*SLOT}, v{vA[1]}')
    for s in a_reads(0, 0, 0) + a_reads(0, 0, 1): I(s)
    I('s_waitcnt lgkmcnt(0)')
    I('s_barrier')
    st()

    def gemm_phase(ph, acc, tail, side, bars, lastorder=None):
        for kk in range(32):
            if kk in bars:
                I('s_waitcnt lgkmcnt(0)')
                I('s_barrier')
            buf = kk & 1
            pr = X.get('prio', (0, 8, 16, 24)) if isinstance(X, dict) else (0, 8, 16, 24)
            if ph == 0 and isinstance(X, dict) and kk in X.get('p2st', ()): st()
            if pr and kk in pr: I(f's_setprio {3 - pr.index(kk)}')
            order = [(0,0), (1,0), (0,1), (1,1)]
            if kk == 31 and lastorder: order = lastorder
            mf = []
            for (mt, b) in order:
                d = acc + 16*(2*b + mt)
                cc = '0' if kk == 0 else f'v[{d}:{d+15}]'
                A = AF + 8*buf + 4*mt; B = BFB + 8*buf + 4*b
                mf.append(f'v_mfma_f32_32x32x16_bf16 v[{d}:{d+15}], v[{A}:{A+3}], v[{B}:{B+3}], {cc}')
            if kk < 31:
                r0 = a_reads(ph, kk+1, 0) + [b_read(kk+1, 0)]
                r1 = a_reads(ph, kk+1, 1) + [b_read(kk+1, 1)]
            else:
                r0 = r1 = []
            if ph == 1 and isinstance(X, dict) and 'p4last' in X:
                last = X['p4last']
                js = [j for j in range(6, 32) if (((j-6)*last + 12)//25) == kk]
                dm = a_dma(ph, js[0]) if js else ['', '']
            elif nxt_dma(ph, kk) is not None: dm = a_dma(ph, nxt_dma(ph, kk))
            else: dm = tail.get(kk, ['', ''])
            if ph == 1 and 'p4nodma' in X: dm = ['', '']
            if ph == 1 and 'p4noa' in X: r0 = r0[2:]; r1 = r1[2:]
            if ph == 1 and 'p4nob' in X: r0 = r0[:-1]; r1 = r1[:-1]
            main = [mf[0]] + r0 + [mf[1]] + r1 + [mf[2]] + ([dm[0]] if dm[0] else []) + [mf[3]] + ([dm[1]] if dm[1] else [])
            for s in interleave(main, side.get(kk, [])): I(s)
            if ph == 0 and kk in X.get('after', {}): emit_order(X['after'][kk])

    def gemm_skew(acc, side, bars, st0):
        D = SK
        pr = X.get('prio4', (0, 10, 20, 30))
        for s_ in range(32 + D):
            if s_ in bars:
                I('s_waitcnt lgkmcnt(0)')
                I('s_barrier')
            if pr and s_ in pr: I(f's_setprio {3 - pr.index(s_)}')
            def mfm(kk, b):
                L = []
                for mt in range(2):
                    d = acc + 16*(2*b + mt)
                    cc = '0' if kk == 0 else f'v[{d}:{d+15}]'
                    A = abuf(1, kk) + 4*mt; B = BFB + 8*(kk & 1) + 4*b
                    L.append(f'v_mfma_f32_32x32x16_bf16 v[{d}:{d+15}], v[{A}:{A+3}], v[{B}:{B+3}], {cc}')
                return L
            m0_ = mfm(s_, 0) if s_ < 32 else []
            m1_ = mfm(s_ - D, 1) if s_ >= D else []
            r0 = (a_reads(1, s_+1, 0) + [b_read(s_+1, 0)]) if s_ + 1 < 32 else []
            r1 = (a_reads(1, s_+1, 1) if s_ + 1 < 32 else []) + ([b_read(s_+1-D, 1)] if 0 <= s_ + 1 - D < 32 else [])
            dm = a_dma(1, s_+6) if s_ + 6 < 32 else ['', '']
            mf = m0_ + m1_
            slots = [r0, r1, [dm[0]] if dm[0] else [], [dm[1]] if dm[1] else []]
            main = []
            if len(mf) == 4:
                for m, sl_ in zip(mf, slots): main += [m] + sl_
            else:
                main = [mf[0]] + slots[0] + slots[1] + [mf[1]] + slots[2] + slots[3]
            sd = list(side.get(s_, []))
            if s_ >= 33:
                n = len(st0); k = s_ - 33; tot = D - 1
                sd += st0[n*k//tot: n*(k+1)//tot]
            for s in interleave(main, sd): I(s)

    def split(L, n):
        return [L[len(L)*i//n: len(L)*(i+1)//n] for i in range(n)]
    side = {}
    XD = X if isinstance(X, dict) else {}
    for j, k0, n in XD.get('mq', ((1, 0, 4), (2, 4, 4), (3, 8, 4))):
        for i, part in enumerate(split(modq(j), n)):
            side[k0 + i] = side.get(k0 + i, []) + part
    for tok, kk in XD.get('sl', ()):
        L = finload() if tok == 'f' else touch2(tok, TD[tok]) if tok in TD else ['\n'.join(xnload(int(tok[1]))[2*i:2*i+2]) for i in range(2)]
        side[kk] = L + side.get(kk, [])
    fk = XD.get('fin', 14)
    side[fk] = side.get(fk, []) + finops
    p2bars = set(XD.get('bars', (6, 13)))
    tail = {}
    for kk, c, js in ((26, 16, (0,1)), (27, 16, (2,3)), (28, 17, (0,1)), (29, 17, (2,3))):
        if c == 17 and X.get('v0late'): continue
        L = kv_dma(c, js, tag=f'E{ent(0, kk)}')
        tail[kk] = ['\n'.join(L[:3]), L[3]]
    for s in [b_read(0, 0), b_read(0, 1)]: I(s)
    emit_order(X.get('post', ''))
    gemm_phase(0, ACC, tail, side, p2bars, lastorder=[(0,1), (1,1), (0,0), (1,0)])
    st()
    QF2 = 32
    SB_ = [64, 96]
    VF = 128
    KF = AF
    vVA = vT3
    vMR = vMX
    def k_reads(t):
        L = []
        c = 16 + 2*(t//4)
        for s in range(8):
            if t % 4 == 0 and t > 0:
                delta = slot_of(c) - slot_of(c-2)
                if delta >= 0: L.append(f'v_add_u32 v{vKA[s]}, {delta}, v{vKA[s]}')
                else: L.append(f'v_subrev_u32 v{vKA[s]}, {-delta}, v{vKA[s]}')
            L.append(f'ds_read_b128 v[{KF+4*s}:{KF+4*s+3}], v{vKA[s]} offset:{(t%4)*8192}')
        return L
    def v_reads(kap):
        L = []
        c = 17 + 2*(kap//8); ks = kap % 8; buf = kap & 1
        if ks == 0:
            L.append(f'v_add_u32 v{vVA}, {slot_of(c)}, v{vLANE16}')
        for mt in range(4):
            d = VF + 16*buf + 4*mt
            L.append(f'ds_read_b128 v[{d}:{d+3}], v{vVA} offset:{ks*4096 + mt*1024}')
        return L
    I(f's_load_dwordx8 s[56:63], s[0:1], {KA_W1}')
    I(f'v_add_u32 v{vT0}, s{sW4K}, v{vLANE16}')
    I(f'v_xor_b32 v{vT1}, 0x1000, v{vT0}')
    EXP = 64
    for q in range(4):
        for j in range(4*q, 4*q+4):
            I(f'v_cvt_pk_bf16_f32 v{EXP+j}, v{ACC+32+2*j}, v{ACC+32+2*j+1}')
        I(f'ds_write_b128 v{vT0}, v[{EXP+4*q}:{EXP+4*q+3}] offset:{1024*q}')
    for j in range(16):
        I(f'v_cvt_pk_bf16_f32 v{QF2+j}, v{ACC+2*j}, v{ACC+2*j+1}')
    CEXP = 1.4426950408889634 * 128 ** -0.5
    I(f's_mov_b32 s51, {f32bits(CEXP):#x}')
    for l in vL: I(f'v_mov_b32 v{l}, 0')
    a.wait_tags(['C16'], lg=True)
    I('s_barrier')
    if 'ast' in X: st()
    kr = k_reads(0)
    for s in kr[:4]: I(s)
    for q in range(4):
        I(kr[4+q])
        I(f'ds_read_b128 v[{QF2+16+4*q}:{QF2+16+4*q+3}], v{vT1} offset:{1024*q}')
    def s_mfmas(u):
        seq = []
        for tt in range(2):
            t = 2*u + tt
            b = SB_[u & 1] + 16*tt
            reads = k_reads(t+1) if t < 15 else []
            ri = 0
            for s in range(8):
                cc = '0' if s == 0 else f'v[{b}:{b+15}]'
                grp = [f'v_mfma_f32_32x32x16_bf16 v[{b}:{b+15}], v[{KF+4*s}:{KF+4*s+3}], v[{QF2+4*s}:{QF2+4*s+3}], {cc}']
                while ri < len(reads):
                    grp.append(reads[ri]); ri += 1
                    if reads[ri-1].startswith('ds_read'): break
                if 'pp' in X and s == 0 and X['pp'][tt] is not None: grp = [f's_setprio {X["pp"][tt]}'] + grp
                seq.append('\n'.join(grp))
        return seq
    def pv_mfmas(u, j):
        kap = 4*u + j; buf = kap & 1
        p = SB_[u & 1] + 8*j
        L = []
        for mt in range(4):
            d = ACC + 16*mt
            cc = '0' if kap == 0 else f'v[{d}:{d+15}]'
            L.append(f'v_mfma_f32_32x32x16_bf16 v[{d}:{d+15}], v[{VF+16*buf+4*mt}:{VF+16*buf+4*mt+3}], v[{p}:{p+3}], {cc}')
        return L
    def max_ops(u, tt):
        b = SB_[u & 1] + 16*tt
        L = []
        for i in range(8):
            if tt == 0 and i == 0:
                L.append(f'v_max_f32 v{vT0}, v{b}, v{b+1}')
            else:
                L.append(f'v_max3_f32 v{vT0}, v{b+2*i}, v{b+2*i+1}, v{vT0}')
        return L
    def p_ops(u, j):
        b = SB_[u & 1] + 8*j
        L = []
        for e in range(8):
            L.append(f'v_fma_f32 v{b+e}, v{b+e}, s51, v{vNEGM}' if 'nofma' not in X else 's_nop 0')
        for e in range(8):
            L.append(f'v_exp_f32 v{b+e}, v{b+e}')
        for d in range(4):
            L.append(f'v_add_f32 v{vL[d]}, v{vL[d]}, v{b+2*d}' if 'noadd' not in X else 's_nop 0')
            L.append(f'v_add_f32 v{vL[d]}, v{vL[d]}, v{b+2*d+1}' if 'noadd' not in X else 's_nop 0')
            L.append(f'v_cvt_pk_bf16_f32 v{b+d}, v{b+2*d}, v{b+2*d+1}')
        return L
    rare = []
    extra = kv_dma(18) + (kv_dma(17) if X.get('v0late') else []) + kv_dma(19) + touch_ops('wo')
    for s in extra[:6]: I(s)
    sm = s_mfmas(0)
    for s in merge(sm[:10], extra[6:]): I(s)
    for s in merge(sm[10:], max_ops(0, 0)): I(s)
    for s in max_ops(0, 1): I(s)
    tops = {0: (['C18', 'C17'], kv_dma(20)), 1: (['C19'], kv_dma(21)), 2: (['C20'], kv_dma(22) + (touch_ops('wb') if X.get('wbat', 2) == 2 else [])), 3: (['C21'], kv_dma(23)),
            4: (['C22'], a_dma(1, 0) + a_dma(1, 1)), 5: (['C23'], a_dma(1, 2) + a_dma(1, 3) + (touch_ops('wb') if X.get('wbat', 2) == 5 else [])), 6: None,
            7: ([], a_dma(1, 4) + a_dma(1, 5))}
    for kind, u_ in X.get('pf', ()):
        tops[u_] = (tops[u_][0], tops[u_][1] + pf_ops(kind))
    p4set = [f'v_add_u32 v{vA[2]}, {2*SLOT}, v{vA[2]}', f'v_add_u32 v{vA[3]}, {2*SLOT}, v{vA[3]}',
             f'v_add_u32 v{vB[0]}, {2*SLOT}, v{vLANE16}', f'v_add_u32 v{vB[1]}, {2*SLOT + 16384}, v{vLANE16}',
             f's_lshl_b32 s{t0}, s{sRH}, 14\ns_lshl_b32 s{t1}, s{sHD}, 12\ns_add_u32 s{t0}, s{t0}, s{t1}\ns_add_u32 s{t0}, s{t0}, {2*SLOT}',
             f'v_add_u32 v{vKA[0]}, s{t0}, v{vLANE16}']
    I(f'v_mov_b32 v{vT1}, v{vT0}')
    I(f'v_permlane32_swap_b32 v{vT0}, v{vT1}')
    I(f'v_max_f32 v{vT0}, v{vT0}, v{vT1}')
    I(f'v_mul_f32 v{vNEGM}, s51, v{vT0}')
    I(f'v_sub_f32 v{vNEGM}, {OFFS}, v{vNEGM}')
    lred = [f'v_add_f32 v{vL[0]}, v{vL[0]}, v{vL[1]}', f'v_add_f32 v{vL[2]}, v{vL[2]}, v{vL[3]}', f'v_add_f32 v{vL[0]}, v{vL[0]}, v{vL[2]}',
            f'v_mov_b32 v{vL[1]}, v{vL[0]}', 's_nop 1', f'v_permlane32_swap_b32 v{vL[0]}, v{vL[1]}', f'v_add_f32 v{vL[1]}, v{vL[0]}, v{vL[1]}', f'v_rcp_f32 v{vL[0]}, v{vL[1]}']
    for u in range(8):
        extra = []
        if u == 0 and 'late0' in X:
            sm = s_mfmas(1)
            pv = p_ops(0, 0) + p_ops(0, 1) + p_ops(0, 2)[:14]
            n0 = X['late0']
            for s in merge(sm[:n0], pv[:len(pv)*n0//16]): I(s)
            a.wait_tags(tops[0][0])
            I('s_barrier')
            for s in merge(sm[n0:], tops[0][1] + v_reads(0), pv[len(pv)*n0//16:]): I(s)
            rest = p_ops(u, 2)[14:] + p_ops(u, 3)
            nxt = p_ops(1, 0)
            side = {0: rest[:18], 1: rest[18:36], 2: rest[36:] + nxt[:10], 3: nxt[10:]}
        elif tops[u] is not None:
            a.wait_tags(tops[u][0])
            if not ('nobar' in X and u > 0): I('s_barrier')
            extra = tops[u][1]
        if 'aprio' in X: I(f's_setprio {X["aprio"][u]}')
        if 'ast' in X: st()
        if u == 0: extra = extra + v_reads(0)
        nxt = p_ops(u+1, 0) if u < 7 else []
        if u == 0 and 'late0' in X:
            pass
        elif u == 0:
            sm = s_mfmas(u+1)
            for s in merge(sm, extra, p_ops(u, 0) + p_ops(u, 1) + p_ops(u, 2)[:14]): I(s)
            rest = p_ops(u, 2)[14:] + p_ops(u, 3)
            side = {0: rest[:18], 1: rest[18:36], 2: rest[36:] + nxt[:10], 3: nxt[10:]}
        elif u < 7:
            sm = s_mfmas(u+1)
            for s in merge(sm, extra, p_ops(u, 1) + p_ops(u, 2)): I(s)
            p3 = p_ops(u, 3)
            side = {0: p3[:14], 1: p3[14:], 2: nxt[:14], 3: nxt[14:]}
        else:
            for s in extra: I(s)
            side = {0: p_ops(u, 1) + p4set[:3], 1: p_ops(u, 2) + p4set[3:], 2: p_ops(u, 3), 3: []}
        for j in range(4):
            kap = 4*u + j
            pre = v_reads(kap+1) if kap < 31 else []
            sd = side[j]
            if u == 7 and j == 3:
                sd = lred + [f'v_cmp_nle_f32 vcc, v{vL[1]}, {X.get("thr", "1.0")}']
                pre = a_reads(1, 0, 0) + a_reads(1, 0, 1)
            if 'pp' in X:
                pq = X['pp'][2+j] if u < 7 else 3-j
                if pq is not None: I(f's_setprio {pq}')
            for s in merge(pv_mfmas(u, j), pre, sd): I(s)
    I('s_nop 1')
    I('s_cbranch_vccnz K1_fb')
    a.out.append('K1_fbr:')
    f = Asm(); F = f.I
    KFb, St, VFb = 96, 64, 128
    vKa, vKb, vM = vKA[1], vKA[2], vKA[3]
    f.raw('K1_fb:')
    F('s_nop 15'); F('s_nop 15')
    F(f'v_lshrrev_b32 v{vT0}, 4, v{vLANE16}')
    F(f'v_and_b32 v{vT1}, 31, v{vT0}')
    F(f'v_lshlrev_b32 v{vT1}, 8, v{vT1}')
    F(f'v_lshrrev_b32 v{vT0}, 5, v{vT0}')
    F(f'v_lshl_add_u32 v{vT1}, v{vT0}, 4, v{vT1}')
    F(f's_lshl_b32 s40, s{sRH}, 7')
    F(f'v_add_u32 v{vKa}, s40, v{vT1}')
    F(f'v_xor_b32 v{vKb}, 0x80, v{vKa}')
    F(f'v_mov_b32 v{vM}, 0xff800000')
    def fb_s():
        for s_ in range(8):
            F(f'buffer_load_dwordx4 v[{KFb+4*s_}:{KFb+4*s_+3}], v{vKa if s_ < 4 else vKb}, s[{sK}:{sK+3}], s41 offen offset:{32*(s_ & 3)}')
    def fb_mf():
        for s_ in range(8):
            cc = '0' if s_ == 0 else f'v[{St}:{St+15}]'
            F(f'v_mfma_f32_32x32x16_bf16 v[{St}:{St+15}], v[{KFb+4*s_}:{KFb+4*s_+3}], v[{QF2+4*s_}:{QF2+4*s_+3}], {cc}')
    F(f's_sub_u32 s41, s{sBK}, s{sW4K}')
    F('s_mov_b32 s40, 0')
    f.label('K1_fb1')
    fb_s()
    F('s_waitcnt vmcnt(0)')
    fb_mf()
    for i in range(8):
        F(f'v_max3_f32 v{vM}, v{St+2*i}, v{St+2*i+1}, v{vM}')
    F('s_add_u32 s41, s41, 8192')
    F('s_add_u32 s40, s40, 1')
    F('s_cmp_lt_u32 s40, 16')
    F('s_nop 7')
    F('s_cbranch_scc1 K1_fb1')
    F(f'v_mov_b32 v{vT1}, v{vM}')
    F(f'v_permlane32_swap_b32 v{vM}, v{vT1}')
    F(f'v_max_f32 v{vM}, v{vM}, v{vT1}')
    F(f'v_mul_f32 v{vNEGM}, s51, v{vM}')
    F(f'v_sub_f32 v{vNEGM}, 0, v{vNEGM}')
    for i in range(64): F(f'v_mov_b32 v{ACC+i}, 0')
    for l in vL: F(f'v_mov_b32 v{l}, 0')
    F(f's_sub_u32 s41, s{sBK}, s{sW4K}')
    F(f's_sub_u32 s42, s{sBV}, s{sW4K}')
    F('s_mov_b32 s40, 0')
    f.label('K1_fb2')
    fb_s()
    F('s_add_u32 s43, s42, 4096')
    for j in range(2):
        for mt in range(4):
            d = VFb + 16*j + 4*mt
            F(f'buffer_load_dwordx4 v[{d}:{d+3}], v{vLANE16}, s[{sWS}:{sWS+3}], s{42+j} offen offset:{1024*mt}')
    F('s_waitcnt vmcnt(0)')
    fb_mf()
    for j in range(2):
        for s_ in p_ops(0, j): F(s_)
    for j in range(2):
        for mt in range(4):
            d = ACC + 16*mt
            F(f'v_mfma_f32_32x32x16_bf16 v[{d}:{d+15}], v[{VFb+16*j+4*mt}:{VFb+16*j+4*mt+3}], v[{St+8*j}:{St+8*j+3}], v[{d}:{d+15}]')
    F('s_add_u32 s41, s41, 8192')
    F('s_add_u32 s42, s42, 8192')
    F('s_add_u32 s40, s40, 1')
    F('s_cmp_lt_u32 s40, 16')
    F('s_nop 15'); F('s_nop 15')
    F('s_cbranch_scc1 K1_fb2')
    for s_ in lred: F(s_)
    F('s_nop 15'); F('s_nop 15')
    F('s_branch K1_fbr')
    rare = f.out
    st()
    OWN = 32; ACC4 = 64
    def norm(q):
        L = []
        for j in range(4*q, 4*q+4):
            L.append(f'v_mul_f32 v{ACC+2*j}, v{ACC+2*j}, v{vL[0]}')
            L.append(f'v_mul_f32 v{ACC+2*j+1}, v{ACC+2*j+1}, v{vL[0]}')
        for j in range(4*q, 4*q+4):
            L.append(f'v_cvt_pk_bf16_f32 v{OWN+j}, v{ACC+2*j}, v{ACC+2*j+1}')
        L.append(f'ds_write_b128 v{vKA[0]}, v[{OWN+4*q}:{OWN+4*q+3}] offset:{(q >> 2)*32768 + 1024*(q & 3)}')
        return L
    for q in range(4):
        for s in norm(q): I(s)
    I('s_waitcnt lgkmcnt(0)')
    I('s_barrier')
    for s in ([b_read(0, 0), b_read(0, 1)] if not SK else [b_read(0, 0)]): I(s)
    for s in norm(4): I(s)
    st()
    side = {0: norm(5), 1: norm(6), 2: norm(7)}
    addr = [f's_lshl_b32 s{t0}, s{sG}, 21\ns_lshl_b32 s{t1}, s{sRB}, 16\ns_add_u32 s{t0}, s{t0}, s{t1}\ns_add_u32 s{t0}, s{t0}, s{sW4K}\ns_add_u32 s{t0}, s{t0}, {WS_P:#x}\ns_add_u32 s{t1}, s{t0}, 32768']
    side[3] = addr
    def stq(q):
        so = f's{t0}' if q < 4 else f's{t1}'
        return [f'v_cvt_pk_bf16_f32 v{OWN+j}, v{ACC4+2*j}, v{ACC4+2*j+1}' for j in range(4*q, 4*q+4)] + \
               [f'buffer_store_dwordx4 v[{OWN+4*q}:{OWN+4*q+3}], v{vLANE16}, s[{sWS}:{sWS+3}], {so} offen offset:{1024*(q%4)}']
    if SK:
        gemm_skew(ACC4, side, {5}, stq(0) + stq(1) + stq(2) + stq(3))
    else:
        gemm_phase(1, ACC4, {}, side, set() if 'nox2' in X else ({X['x2at']} if isinstance(X, dict) and 'x2at' in X else {5}))
    st()
    pace = X.get('pace') if isinstance(X, dict) else None
    def stores(pc):
        for j in range(16 if SK else 0, 32):
            I(f'v_cvt_pk_bf16_f32 v{OWN+j}, v{ACC4+2*j}, v{ACC4+2*j+1}')
            if j % 4 == 3:
                q = j // 4
                so = f's{t0}' if q < 4 else f's{t1}'
                if pc is not None and q > pc: I(f's_waitcnt vmcnt({pc})')
                I(f'buffer_store_dwordx4 v[{OWN+4*q}:{OWN+4*q+3}], v{vLANE16}, s[{sWS}:{sWS+3}], {so} offen offset:{1024*(q%4)}')
    if pace is not None:
        I(f's_cmp_ge_u32 s{sW}, 4')
        I('s_cbranch_scc1 K1_st2')
        I('s_nop 15')
        stores(pace)
        I('s_branch K1_st3')
        a.label('K1_st2')
        I('s_nop 15')
        stores(None)
        a.label('K1_st3')
    else:
        stores(None)
    if stamps:
        I(f'v_lshrrev_b32 v{vT3}, 4, v{vLANE16}')
        st.flush(sWS, sW, 200, vT3)
    a.label('K1_end')
    I('s_endpgm')
    a.out += rare
    print("K1 instrs", a.ninstr, "nops", a.nnop)
    return a.text(), kernel_desc(name, 256, 102)
```

```python
from common import *

def gen_k3n(name, stamps=False, X={}):
    a = Asm()
    st = Stamper(a, stamps, 3)
    kernel_header(a, name)
    I = a.I
    vLANE, vL16 = 1, 2
    T = [4,5,6,7,8,9,10,11]
    VS = [12,13]
    AD = [14,15]
    HBR = 16
    ACC = 24
    AFR = 56
    BF = 88
    vDM, vROW, vXW = 152, 153, 154
    I('s_cmp_ge_u32 s2, 256')
    I('s_cbranch_scc1 K3_end')
    I(f's_load_dwordx2 s[12:13], s[0:1], {KA_W2}')
    I(f's_load_dwordx2 s[24:25], s[0:1], {KA_WS}')
    I(f'v_and_b32 v{vLANE}, 63, v0')
    I('v_lshrrev_b32 v3, 6, v0')
    I(f'v_lshlrev_b32 v{vL16}, 4, v{vLANE}')
    I('v_readfirstlane_b32 s34, v3')
    I('s_and_b32 s35, s2, 7')
    I('s_lshr_b32 s36, s2, 3')
    I('s_lshl_b32 s35, s35, 2')
    I('s_lshr_b32 s37, s36, 3')
    I('s_add_u32 s35, s35, s37')
    I('s_and_b32 s36, s36, 7')
    I('s_and_b32 s38, s34, 1')
    I('s_lshr_b32 s39, s34, 1')
    I('s_lshl_b32 s40, s35, 1')
    I('s_add_u32 s40, s40, s38')
    I(f's_mov_b32 s14, {512*1024}'); I('s_mov_b32 s15, 0x00020000')
    I(f's_mov_b32 s26, {WS_SIZE:#x}'); I('s_mov_b32 s27, 0x00020000')
    I(f's_mov_b32 s18, {2097152}'); I('s_mov_b32 s19, 0x00020000')
    I(f'v_lshrrev_b32 v{T[0]}, 3, v{vLANE}')
    I(f'v_and_b32 v{T[1]}, 7, v{vLANE}')
    I(f'v_bfe_u32 v{T[2]}, v{vLANE}, 4, 1')
    I(f'v_lshlrev_b32 v{T[2]}, 2, v{T[2]}')
    I(f'v_xor_b32 v{T[1]}, v{T[1]}, v{T[2]}')
    I(f'v_lshlrev_b32 v{T[1]}, 4, v{T[1]}')
    I(f'v_lshl_add_u32 v{vDM}, v{T[0]}, 10, v{T[1]}')
    I('s_lshl_b32 s45, s34, 13')
    I('s_lshl_b32 s46, s36, 7')
    I('s_add_u32 s45, s45, s46')
    I('s_lshl_b32 s46, s34, 10')
    I(f'v_and_b32 v{vROW}, 31, v{vLANE}')
    I('s_lshl_b32 s47, s40, 5')
    I(f'v_add_u32 v{vROW}, s47, v{vROW}')
    I(f'v_and_b32 v{T[4]}, 32, v{vLANE}')
    I('s_add_u32 s47, s39, 1')
    for gi in range(2):
        I(f'v_subrev_u32 v{T[5]}, s47, v{vROW}' if gi == 0 else f'v_add_u32 v{T[5]}, s47, v{vROW}')
        I(f'v_lshrrev_b32 v{T[6]}, 5, v{T[5]}')
        I(f'v_lshlrev_b32 v{T[6]}, 15, v{T[6]}')
        I(f'v_and_b32 v{T[5]}, 31, v{T[5]}')
        I(f'v_add_u32 v{T[5]}, v{T[5]}, v{T[4]}')
        I(f'v_lshl_add_u32 v{VS[gi]}, v{T[5]}, 4, v{T[6]}')
    I('s_lshl_b32 s51, s39, 14')
    I('s_waitcnt lgkmcnt(0)')
    st.first()
    I(f's_add_u32 s16, s24, {WS_T:#x}')
    I('s_addc_u32 s17, s25, 0')
    NQ = 4; LA = X.get('la', 2)
    def loads(Q):
        L = []
        for j in (2*Q, 8 + 2*Q, 2*Q + 1, 9 + 2*Q):
            L.append(f's_add_u32 m0, s46, {4096*j}\ns_add_u32 s47, s45, {32768*j}\nbuffer_load_dwordx4 v{vDM}, s[12:15], s47 offen lds ; W:G{Q}')
        for i in range(4*Q, 4*Q + 4):
            pre = f's_add_u32 s50, s51, {Q*4096}\n' if i % 4 == 0 else ''
            L.append(pre + f'buffer_load_dwordx4 v[{BF+4*i}:{BF+4*i+3}], v{VS[i//8]}, s[16:19], s50 offen offset:{1024*(i%4)}')
        return L
    for Q in range(LA):
        for s in loads(Q): I(s)
    I('s_lshl_b32 s48, s40, 15')
    I('s_lshl_b32 s49, s36, 12')
    I('s_add_u32 s48, s48, s49')
    I('s_lshl_b32 s49, s39, 11')
    I('s_add_u32 s48, s48, s49')
    I(f's_add_u32 s49, s48, {WS_HB:#x}')
    hbl = [f'buffer_load_dwordx4 v[{HBR+4*hf}:{HBR+4*hf+3}], v{vL16}, s[24:27], s49 offen offset:{1024*hf}' for hf in range(2)]
    I(f'v_lshrrev_b32 v{T[6]}, 5, v{vLANE}')
    I(f'v_bfe_u32 v{T[7]}, v{vLANE}, 2, 2')
    I(f'v_lshl_add_u32 v{T[6]}, v{T[6]}, 3, v{T[7]}')
    I(f'v_lshlrev_b32 v{T[6]}, 7, v{T[6]}')
    I(f'v_bfe_u32 v{T[7]}, v{vLANE}, 4, 1')
    I(f'v_lshl_add_u32 v{T[6]}, v{T[7]}, 5, v{T[6]}')
    I(f'v_and_b32 v{T[7]}, 1, v{vLANE}')
    I(f'v_lshl_add_u32 v{T[6]}, v{T[7]}, 4, v{T[6]}')
    I(f'v_bfe_u32 v{T[7]}, v{vLANE}, 1, 1')
    I(f'v_lshl_add_u32 v{T[6]}, v{T[7]}, 3, v{T[6]}')
    I('s_lshl_b32 s52, s39, 15')
    I(f'v_add_u32 v{T[6]}, s52, v{T[6]}')
    I(f'v_bfe_u32 v{T[7]}, v{vLANE}, 3, 1')
    I(f'v_xor_b32 v{T[7]}, s39, v{T[7]}')
    I(f'v_lshl_add_u32 v{AD[0]}, v{T[7]}, 6, v{T[6]}')
    I(f'v_xor_b32 v{AD[1]}, 64, v{AD[0]}')
    I('s_lshl_b32 s52, s34, 12')
    I(f'v_add_u32 v{vXW}, s52, v{vL16}')
    st()
    for Q in range(NQ):
        a.wait_tags([f'G{Q}'])
        I('s_barrier')
        side = loads(Q + LA) if Q + LA < NQ else (hbl if Q + LA == NQ else [])
        seq = [(i, t) for i in range(4*Q, 4*Q+4) for t in range(2)]
        if Q == 3: seq = [(i, 1) for i in range(12, 16)] + [(i, 0) for i in range(12, 16)]
        def rd(n):
            i, t = seq[n]
            return [f'ds_read_b64_tr_b16 v[{AFR + 4*n + 2*h}:{AFR + 4*n + 2*h + 1}], v{AD[t]} offset:{(16*i + 4*h)*128}' for h in range(2)]
        for n in range(8):
            for s in rd(n): I(s)
        for s in side: I(s)
        for n, (i, t) in enumerate(seq):
            b = ACC + 16*t
            cc = '0' if i == 0 else f'v[{b}:{b+15}]'
            I(f'v_mfma_f32_32x32x16_bf16 v[{b}:{b+15}], v[{AFR+4*n}:{AFR+4*n+3}], v[{BF+4*i}:{BF+4*i+3}], {cc}')
            if Q == 3 and n == 6:
                for k in range(4): I(f'ds_write_b128 v{vXW}, v[{ACC+16+4*k}:{ACC+16+4*k+3}] offset:{1024*k}')
    I(f'v_xor_b32 v{vXW}, 0x2000, v{vXW}')
    I('s_mov_b32 s52, 0xffff0000')
    HU = BF
    for j in range(8):
        I(f'v_lshlrev_b32 v{HU+2*j}, 16, v{HBR+j}')
        I(f'v_and_b32 v{HU+2*j+1}, s52, v{HBR+j}')
    I('s_waitcnt lgkmcnt(0)')
    I('s_barrier')
    for k in range(4): I(f'ds_read_b128 v[{ACC+16+4*k}:{ACC+16+4*k+3}], v{vXW} offset:{1024*k}')
    st()
    for hf in range(2):
        R = range(8*hf, 8*hf+8)
        for e in R: I(f'v_add_f32 v{ACC+e}, v{ACC+e}, v{ACC+16+e}')
        for e in R: rnd_bf16(a, ACC+e, ACC+e)
        for e in R: I(f'v_add_f32 v{ACC+e}, v{ACC+e}, v{HU+e}')
        for j in range(4*hf, 4*hf+4): I(f'v_cvt_pk_bf16_f32 v{HBR+j}, v{ACC+2*j}, v{ACC+2*j+1}')
        if hf == 0: I(f's_add_u32 s49, s48, {WS_X1B:#x}')
        I(f'buffer_store_dwordx4 v[{HBR+4*hf}:{HBR+4*hf+3}], v{vL16}, s[24:27], s49 offen offset:{1024*hf}')
    if X.get('st2', 1):
        M, V = T[0], T[1]
        I('s_mov_b32 s53, 0x3f803f80')
        for r in (M, V, T[2], T[3]): I(f'v_mov_b32 v{r}, 0')
        for j in range(0, 8, 2):
            I(f'v_dot2_f32_bf16 v{M}, v{HBR+j}, s53, v{M}')
            I(f'v_dot2_f32_bf16 v{V}, v{HBR+j}, v{HBR+j}, v{V}')
            I(f'v_dot2_f32_bf16 v{T[2]}, v{HBR+j+1}, s53, v{T[2]}')
            I(f'v_dot2_f32_bf16 v{T[3]}, v{HBR+j+1}, v{HBR+j+1}, v{T[3]}')
        I(f'v_add_f32 v{M}, v{M}, v{T[2]}')
        I(f'v_add_f32 v{V}, v{V}, v{T[3]}')
        I(f'v_mov_b32 v{T[2]}, v{M}'); I(f'v_mov_b32 v{T[3]}, v{V}')
        I(f'v_permlane32_swap_b32 v{M}, v{T[2]}'); I(f'v_permlane32_swap_b32 v{V}, v{T[3]}')
        I(f'v_add_f32 v{M}, v{M}, v{T[2]}'); I(f'v_add_f32 v{V}, v{V}, v{T[3]}')
        I(f'v_lshlrev_b32 v{T[2]}, 3, v{vROW}')
        I('s_lshl_b32 s49, s36, 15')
        I('s_lshl_b32 s50, s39, 14')
        I('s_add_u32 s49, s49, s50')
        I(f's_add_u32 s49, s49, {WS_ST4:#x}')
        I('s_mov_b32 exec_hi, 0')
        I(f'buffer_store_dwordx2 v[{M}:{V}], v{T[2]}, s[24:27], s49 offen' + X.get('stf', ' sc0 sc1'))
    else:
        for j in range(8):
            I(f'v_lshlrev_b32 v{ACC+2*j}, 16, v{HBR+j}')
            I(f'v_and_b32 v{ACC+2*j+1}, s52, v{HBR+j}')
        S = ACC + 16
        for j in range(8): I(f'v_add_f32 v{S+j}, v{ACC+2*j}, v{ACC+2*j+1}')
        for stp in (4, 2, 1):
            for j in range(stp): I(f'v_add_f32 v{S+j}, v{S+j}, v{S+j+stp}')
        M, V = T[0], T[1]
        I(f'v_mov_b32 v{V}, v{S}')
        I(f'v_permlane32_swap_b32 v{S}, v{V}')
        I(f'v_add_f32 v{M}, v{S}, v{V}')
        I(f'v_mul_f32 v{M}, {f32bits(1.0/32):#x}, v{M}')
        for e in range(16): I(f'v_sub_f32 v{ACC+e}, v{ACC+e}, v{M}')
        for j in range(4): I(f'v_mul_f32 v{S+j}, v{ACC+j}, v{ACC+j}')
        for e in range(4, 16): I(f'v_fmac_f32 v{S+e%4}, v{ACC+e}, v{ACC+e}')
        I(f'v_add_f32 v{S}, v{S}, v{S+1}'); I(f'v_add_f32 v{S+2}, v{S+2}, v{S+3}'); I(f'v_add_f32 v{S}, v{S}, v{S+2}')
        I(f'v_mov_b32 v{V}, v{S}')
        I(f'v_permlane32_swap_b32 v{S}, v{V}')
        I(f'v_add_f32 v{V}, v{S}, v{V}')
        I(f'v_lshlrev_b32 v{T[2]}, 7, v{vROW}')
        I('s_lshl_b32 s49, s36, 4')
        I('s_lshl_b32 s50, s39, 3')
        I('s_add_u32 s49, s49, s50')
        I(f's_add_u32 s49, s49, {WS_ST4:#x}')
        I('s_mov_b32 exec_hi, 0')
        I(f'buffer_store_dwordx2 v[{M}:{V}], v{T[2]}, s[24:27], s49 offen')
    st.flush(24, 34, 156, vLANE)
    a.label('K3_end')
    I('s_endpgm')
    print("K3 instrs", a.ninstr, "nops", a.nnop)
    return a.text(), kernel_desc(name, 160, 96)
```

```python
from common import *
from k2 import LOG2E

L_CS = 131072
L_ST = L_CS + 512
LDS4 = L_ST + 2048

def gen_k4l(name, stamps=False, X={}):
    a = Asm()
    st = Stamper(a, stamps, 4)
    kernel_header(a, name)
    I = a.I
    vLANE, vL16 = 1, 2
    T = [4,5,6,7,8,9,10,11]
    AD = [12,13,14,15]
    RM = 16
    vCSA, vSTG = 20, 21
    OUTP = 24
    CS = 32
    AFR = 40
    ACC = 64
    ST = 96
    NRING = 6
    BF = 0
    I('s_cmp_ge_u32 s2, 224')
    I('s_cbranch_scc1 K4_end')
    I(f's_load_dwordx2 s[12:13], s[0:1], {KA_W3}')
    I(f's_load_dwordx2 s[24:25], s[0:1], {KA_WS}')
    I(f's_load_dwordx2 s[56:57], s[0:1], {KA_W4}')
    I(f'v_and_b32 v{vLANE}, 63, v0')
    I('v_lshrrev_b32 v3, 6, v0')
    I(f'v_lshlrev_b32 v{vL16}, 4, v{vLANE}')
    I('v_readfirstlane_b32 s55, v3')
    I('s_and_b32 s35, s2, 7')
    I('s_lshr_b32 s36, s2, 3')
    I('s_mul_i32 s37, s36, 37')
    I('s_lshr_b32 s37, s37, 8')
    I('s_mul_i32 s38, s37, 7')
    I('s_sub_u32 s36, s36, s38')
    I('s_and_b32 s38, s35, 1')
    I('s_mul_i32 s38, s38, 7')
    I('s_add_u32 s36, s36, s38')
    I('s_lshr_b32 s35, s35, 1')
    I('s_lshl_b32 s35, s35, 2')
    I('s_add_u32 s35, s35, s37')
    I('s_and_b32 s34, s55, 3')
    I('s_lshl_b32 s40, s35, 2')
    I('s_add_u32 s40, s40, s34')
    I(f's_mov_b32 s14, {512*3584}'); I('s_mov_b32 s15, 0x00020000')
    I(f's_mov_b32 s26, {WS_SIZE:#x}'); I('s_mov_b32 s27, 0x00020000')
    I('s_lshl_b32 s49, s40, 15')
    I(f's_add_u32 s49, s49, {WS_X1B:#x}')
    I(f'v_lshrrev_b32 v{T[0]}, 3, v{vLANE}')
    I(f'v_and_b32 v{T[1]}, 7, v{vLANE}')
    I(f'v_bfe_u32 v{T[2]}, v{vLANE}, 4, 1')
    I(f'v_lshlrev_b32 v{T[2]}, 2, v{T[2]}')
    I(f'v_xor_b32 v{T[1]}, v{T[1]}, v{T[2]}')
    I(f'v_lshlrev_b32 v{T[1]}, 4, v{T[1]}')
    I(f'v_mul_u32_u24 v{T[0]}, 3584, v{T[0]}')
    I(f'v_add_u32 v{AD[0]}, v{T[1]}, v{T[0]}')
    I(f's_mul_i32 s45, s34, {8*3584}')
    I('s_lshl_b32 s46, s36, 8')
    I('s_add_u32 s45, s45, s46')
    I('s_lshl_b32 s46, s34, 10')
    I(f'v_and_b32 v{T[0]}, 31, v{vLANE}')
    if X.get('st2', 1):
        I(f'v_lshrrev_b32 v{T[3]}, 5, v{vLANE}')
        I(f'v_lshlrev_b32 v{T[3]}, 14, v{T[3]}')
        I(f'v_lshl_add_u32 v{T[3]}, v{T[0]}, 3, v{T[3]}')
        I('s_lshl_b32 s50, s40, 8')
    else:
        I(f'v_lshlrev_b32 v{T[3]}, 7, v{T[0]}')
        I('s_lshl_b32 s50, s40, 12')
    I(f's_add_u32 s50, s50, {WS_ST4:#x}')
    I('s_cmp_lt_u32 s55, 4')
    I('s_waitcnt lgkmcnt(0)')
    if stamps:
        st.first()
        I('s_cmp_lt_u32 s55, 4')
    I('s_cbranch_scc1 K4_c1')
    def grp(q):
        L = []
        for j in range(4*(q % 4), 4*(q % 4) + 4):
            hf = q // 4
            L.append(f's_add_u32 m0, s46, {hf*65536 + j*4096}\ns_add_u32 s48, s45, {hf*128 + j*32*3584}\n'
                     f'buffer_load_dwordx4 v{AD[0]}, s[12:15], s48 offen lds ; W:G{q}')
        return L
    AH = X.get('ah', 4)
    SE = X.get('se', 1)
    stl = [f'buffer_load_dwordx4 v[{ST+4*j}:{ST+4*j+3}], v{T[3]}, s[24:27], s50 offen offset:{16*j}' for j in range(8)]
    if X.get('st2', 1):
        stl = [f'buffer_load_dwordx2 v[{ST+2*j}:{ST+2*j+1}], v{T[3]}, s[24:27], s50 offen' + ('\ns_add_u32 s50, s50, 32768' if j < 7 else '') for j in range(8)]
    for q in range(AH):
        for s in grp(q): I(s)
        if SE and q == SE - 1:
            for s in stl: I(s)
    I('s_branch K4_help')
    hq = list(a.vm_q); hn = st.n
    a.label('K4_c1')
    a.vm_q = []
    c0 = -2.0 * (2.0/3.141592653589793) ** 0.5 * LOG2E
    M, A_, B_, S_ = RM, RM+1, RM+2, RM+3
    def common():
        I(f'v_lshrrev_b32 v{vCSA}, 5, v{vLANE}')
        I(f'v_lshlrev_b32 v{vCSA}, 5, v{vCSA}')
        I(f'v_add_u32 v{vCSA}, {L_CS}, v{vCSA}')
        I('s_lshl_b32 s41, s34, 13')
        I(f'v_add_u32 v{vSTG}, s41, v{vL16}')
        I(f's_mul_i32 s53, s40, 114688')
        I('s_lshl_b32 s54, s36, 13')
        I('s_add_u32 s53, s53, s54')
        I(f's_add_u32 s53, s53, {WS_T2:#x}')
    for ks in range(32):
        if ks % 4 == 0 and ks > 0: I('s_add_u32 s49, s49, 4096')
        I(f'buffer_load_dwordx4 a[{BF+4*ks}:{BF+4*ks+3}], v{vL16}, s[24:27], s49 offen offset:{1024*(ks%4)}')
        if ks == X.get('nb0', 7):
            I(f'v_lshrrev_b32 v{T[6]}, 5, v{vLANE}')
            I(f'v_bfe_u32 v{T[7]}, v{vLANE}, 2, 2')
            I(f'v_lshl_add_u32 v{T[6]}, v{T[6]}, 3, v{T[7]}')
            I(f'v_lshlrev_b32 v{T[6]}, 7, v{T[6]}')
            I(f'v_bfe_u32 v{T[5]}, v{vLANE}, 4, 1')
            I(f'v_lshl_add_u32 v{T[6]}, v{T[5]}, 5, v{T[6]}')
            I(f'v_and_b32 v{T[5]}, 1, v{vLANE}')
            I(f'v_lshl_add_u32 v{T[6]}, v{T[5]}, 4, v{T[6]}')
            I(f'v_bfe_u32 v{T[5]}, v{vLANE}, 1, 1')
            I(f'v_lshl_add_u32 v{T[6]}, v{T[5]}, 3, v{T[6]}')
            I(f'v_bfe_u32 v{T[7]}, v{vLANE}, 3, 1')
            I(f'v_lshl_add_u32 v{AD[0]}, v{T[7]}, 6, v{T[6]}')
            I(f'v_xor_b32 v{T[7]}, 1, v{T[7]}')
            I(f'v_lshl_add_u32 v{AD[1]}, v{T[7]}, 6, v{T[6]}')
            I(f'v_and_b32 v{T[0]}, 31, v{vLANE}')
            I('s_lshl_b32 s41, s34, 9')
            I(f's_add_u32 s41, s41, {L_ST}')
            I(f'v_lshl_add_u32 v22, v{T[0]}, 4, s41')
            common()
            I(f'v_add_u32 v{vCSA}, 256, v{vCSA}')
            I('s_add_u32 s53, s53, 4096')
    I('s_mov_b32 s44, 0')
    if X.get('prio', 1): I('s_setprio 2')
    st()
    PRE = 4
    a.raw('K4_pass:')
    for qd in range(4):
        if qd >= 2:
            I('s_cmp_eq_u32 s44, 1')
            I(f's_cbranch_scc1 K4_nb{qd}')
            I('s_barrier')
            a.raw(f'K4_nb{qd}:')
        else:
            I('s_barrier')
        base = 16*qd
        order = list(range(base, base+16))
        if qd == 3:
            order = order[:8] + [i for i in order[8:] if i % 2 == 1] + [i for i in order[8:] if i % 2 == 0]
        def rd2(n):
            idx = order[n]; ks, m2 = idx // 2, idx % 2
            return [f'ds_read_b64_tr_b16 v[{AFR + 4*(n % NRING) + 2*t}:{AFR + 4*(n % NRING) + 2*t + 1}], v{AD[m2]} offset:{(16*ks + 4*t)*128}' for t in range(2)]
        for n in range(PRE):
            for s in rd2(n): I(s)
        for n, idx in enumerate(order):
            ks, m2 = idx // 2, idx % 2
            b = ACC + 16*m2
            cc = '0' if ks == 0 else f'v[{b}:{b+15}]'
            r = AFR + 4*(n % NRING)
            I(f'v_mfma_f32_32x32x16_bf16 v[{b}:{b+15}], v[{r}:{r+3}], a[{BF+4*ks}:{BF+4*ks+3}], {cc}')
            if n + PRE < 16:
                for s in rd2(n+PRE): I(s)
            if qd == 3 and n == 14:
                for i in range(4): I(f'ds_write_b128 v{vSTG}, v[{ACC+16+4*i}:{ACC+16+4*i+3}] offset:{4096 + 1024*i}')
    I('s_cmp_eq_u32 s44, 1')
    I('s_cbranch_scc1 K4_done')
    for i in range(4): I(f'ds_write_b128 v{vSTG}, v[{ACC+4*i}:{ACC+4*i+3}] offset:{1024*i}')
    I(f'v_add_u32 v{AD[0]}, 65536, v{AD[0]}')
    I(f'v_add_u32 v{AD[1]}, 65536, v{AD[1]}')
    I('s_mov_b32 s44, 1')
    I('s_waitcnt lgkmcnt(0)')
    I('s_branch K4_pass')
    a.label('K4_done')
    I(f'ds_read_b128 v[{RM}:{RM+3}], v22')
    I('s_setprio 0')
    I('s_waitcnt lgkmcnt(0)')
    st()
    I('s_barrier')
    I('s_nop 7')
    I('s_call_b64 s[62:63], K4_epi')
    st.flush(24, 34, 22, vLANE)
    I('s_endpgm')
    n_comp = st.n
    a.label('K4_epi')
    a.vm_q = []; a.lds_q = []
    b = ACC
    for h8 in range(2):
        I(f'ds_read_b128 v[{CS}:{CS+3}], v{vCSA} offset:{64*h8}')
        I(f'ds_read_b128 v[{CS+4}:{CS+7}], v{vCSA} offset:{64*h8 + 16}')
        chains = []
        for i in range(8):
            r = b + 8*h8 + i; t = T[i]
            chains.append([f'v_fma_f32 v{r}, -v{M}, v{CS+i}, v{r}', f'v_mul_f32 v{t}, v{r}, v{r}', f'v_fma_f32 v{t}, v{t}, v{B_}, v{A_}',
                           f'v_mul_f32 v{t}, v{t}, v{r}', f'v_exp_f32 v{t}, v{t}', f'v_fma_f32 v{t}, v{t}, v{S_}, v{S_}',
                           f'v_rcp_f32 v{t}, v{t}', f'v_mul_f32 v{r}, v{r}, v{t}'])
        for j in range(8):
            for c in chains: I(c[j])
        for i in range(4):
            I(f'v_cvt_pk_bf16_f32 v{OUTP+4*h8+i}, v{b+8*h8+2*i}, v{b+8*h8+2*i+1}')
        I(f'buffer_store_dwordx4 v[{OUTP+4*h8}:{OUTP+4*h8+3}], v{vL16}, s[24:27], s53 offen offset:{1024*h8}')
    I('s_nop 1')
    I('s_setpc_b64 s[62:63]')
    a.label('K4_help')
    a.lds_q = []
    a.vm_q = list(hq)
    st.n = hn
    I('s_lshl_b32 s51, s36, 9')
    I(f's_add_u32 s51, s51, {WS_CS3:#x}')
    csl = f's_mov_b32 m0, {L_CS}\ns_mov_b32 exec_hi, 0\nbuffer_load_dwordx4 v{vL16}, s[24:27], s51 offen lds ; W:CS\ns_mov_b32 exec_hi, -1'
    I('s_lshl_b32 s41, s34, 9')
    I(f's_add_u32 s41, s41, {L_ST}')
    I(f'v_lshl_add_u32 v{AD[1]}, v{T[0]}, 4, s41')
    common()
    def stats():
        L = []
        V = S_
        if X.get('st2', 1):
            for stp in (4, 2, 1):
                for j in range(stp):
                    L.append(f'v_add_f32 v{ST+2*j}, v{ST+2*j}, v{ST+2*(j+stp)}')
                    L.append(f'v_add_f32 v{ST+2*j+1}, v{ST+2*j+1}, v{ST+2*(j+stp)+1}')
            L += [f'v_mov_b32 v{M}, v{ST}', f'v_mov_b32 v{V}, v{ST+1}', f'v_permlane32_swap_b32 v{M}, v{ST}', f'v_permlane32_swap_b32 v{V}, v{ST+1}',
                  f'v_add_f32 v{M}, v{M}, v{ST}', f'v_add_f32 v{V}, v{V}, v{ST+1}',
                  f'v_mul_f32 v{M}, {f32bits(1.0/512):#x}, v{M}', f'v_mul_f32 v{V}, {f32bits(1.0/512):#x}, v{V}', f'v_fma_f32 v{V}, -v{M}, v{M}, v{V}', f'v_max_f32 v{V}, 0, v{V}']
        else:
            L.append(f'v_add_f32 v{M}, v{ST}, v{ST+2}')
            L.append(f'v_add_f32 v{V}, v{ST+1}, v{ST+3}')
            for j in range(2, 16):
                L.append(f'v_add_f32 v{M}, v{M}, v{ST+2*j}')
                L.append(f'v_add_f32 v{V}, v{V}, v{ST+2*j+1}')
            L.append(f'v_mul_f32 v{M}, {f32bits(1.0/16):#x}, v{M}')
            L.append(f'v_mov_b32 v{T[2]}, 0')
            for j in range(16):
                L.append(f'v_sub_f32 v{T[3]}, v{ST+2*j}, v{M}')
                L.append(f'v_fmac_f32 v{T[2]}, v{T[3]}, v{T[3]}')
            L.append(f'v_fmac_f32 v{V}, {f32bits(32.0):#x}, v{T[2]}')
            L.append(f'v_mul_f32 v{V}, {f32bits(1.0/512):#x}, v{V}')
        L.append(f'v_cvt_pk_bf16_f32 v{M}, 0, v{M}')
        L.append(f'v_cvt_pk_bf16_f32 v{V}, 0, v{V}')
        L.append(f'v_add_f32 v{V}, {f32bits(1e-5):#x}, v{V}')
        L.append(f'v_cvt_pk_bf16_f32 v{V}, 0, v{V}')
        L.append(f'v_sqrt_f32 v{V}, v{V}')
        L.append(f'v_cvt_pk_bf16_f32 v{V}, 0, v{V}')
        L.append(f'v_rcp_f32 v{T[2]}, v{V}')
        L.append(f'v_mul_f32 v{A_}, {f32bits(c0):#x}, v{T[2]}')
        L.append(f'v_mul_f32 v{B_}, v{T[2]}, v{T[2]}')
        L.append(f'v_mul_f32 v{B_}, v{B_}, v{A_}')
        L.append(f'v_mul_f32 v{B_}, {f32bits(0.044715):#x}, v{B_}')
        L.append(f'ds_write_b128 v{AD[1]}, v[{RM}:{RM+3}]')
        return L
    def pf4(n):
        L = [f's_mov_b32 s58, {1792*1024}\ns_mov_b32 s59, 0x00020000\nv_lshlrev_b32 v{AD[2]}, 7, v{vLANE}\n'
             's_lshr_b32 s60, s2, 3\ns_lshl_b32 s60, s60, 16\ns_lshl_b32 s61, s34, 14\ns_add_u32 s60, s60, s61']
        for i in range(n):
            L.append(f'buffer_load_dword v{AFR+i}, v{AD[2]}, s[56:59], s60 offen\ns_add_u32 s60, s60, 8192')
        return L
    NPF = X.get('pf4', 0); PFQ = X.get('pfq', 'e0')
    for q in range(6):
        tags = [f'G{q}'] + (['CS'] if q == 4 else [])
        if q == 5: tags = ['G5', 'G6', 'G7']
        a.wait_tags(tags, lg=(q >= 4))
        I('s_barrier')
        if X.get('hst'): st()
        if q + AH < 8:
            for s in grp(q + AH): I(s)
        if q == 0:
            if not SE:
                for s in stl: I(s)
            I(csl)
        if q == X.get('sq', 1):
            for s in stats(): I(s)
            if X.get('dry', 0):
                I('s_mov_b64 exec, 0')
                I('s_call_b64 s[62:63], K4_epi')
                I('s_mov_b64 exec, -1')
                I('s_waitcnt lgkmcnt(0)')
        if q == 4:
            for i in range(4): I(f'ds_read_b128 v[{ACC+4*i}:{ACC+4*i+3}], v{vSTG} offset:{1024*i}')
            for i in range(4): I(f'ds_read_b128 v[{ACC+16+4*i}:{ACC+16+4*i+3}], v{vSTG} offset:{4096 + 1024*i}')
        if NPF and q == PFQ:
            for s in pf4(NPF): I(s)
    I('s_call_b64 s[62:63], K4_epi')
    if NPF and PFQ == 'e0':
        for s in pf4(NPF): I(s)
    for i in range(16): I(f'v_mov_b32 v{ACC+i}, v{ACC+16+i}')
    I(f'v_add_u32 v{vCSA}, 128, v{vCSA}')
    I('s_add_u32 s53, s53, 2048')
    I('s_call_b64 s[62:63], K4_epi')
    if NPF and PFQ == 'e1':
        for s in pf4(NPF): I(s)
    I(f'v_add_u32 v{vCSA}, 256, v{vCSA}')
    I('s_add_u32 s53, s53, 4096')
    st()
    I('s_barrier')
    if X.get('hst'): st()
    for i in range(4): I(f'ds_read_b128 v[{ACC+4*i}:{ACC+4*i+3}], v{vSTG} offset:{4096 + 1024*i}')
    I('s_waitcnt lgkmcnt(0)')
    I('s_call_b64 s[62:63], K4_epi')
    if X.get('hst'): st()
    st.kidx = 6
    st.flush(24, 55, 22, vLANE)
    a.label('K4_end')
    I('s_endpgm')
    print("K4 instrs", a.ninstr, "nops", a.nnop)
    return a.text(), kernel_desc(name, 256, 96, accum=128)
```

```python
from common import *
from k2 import LOG2E

L_CS = 131072
L_ST = L_CS + 512
LDS4 = L_ST + 2048

def gen_k4l(name, stamps=False, X={}):
    X = dict({'hs':('01','23s','45','67'),'bs':(16,32,32),'sq':2}, **X)
    a = Asm()
    st = Stamper(a, stamps, 4)
    kernel_header(a, name)
    I = a.I
    vLANE, vL16 = 1, 2
    T = [4,5,6,7,8,9,10,11]
    AD = [12,13,14,15]
    RM = 16
    vCSA, vSTG = 20, 21
    OUTP = 24
    CS = 32
    AFR = 40
    ACC = 64
    ST = 96
    NRING = 6
    BF = 0
    I('s_cmp_ge_u32 s2, 224')
    I('s_cbranch_scc1 K4_end')
    I(f's_load_dwordx2 s[12:13], s[0:1], {KA_W3}')
    I(f's_load_dwordx2 s[24:25], s[0:1], {KA_WS}')
    I(f's_load_dwordx2 s[56:57], s[0:1], {KA_W4}')
    I(f'v_and_b32 v{vLANE}, 63, v0')
    I('v_lshrrev_b32 v3, 6, v0')
    I(f'v_lshlrev_b32 v{vL16}, 4, v{vLANE}')
    I('v_readfirstlane_b32 s55, v3')
    I('s_and_b32 s35, s2, 7')
    I('s_lshr_b32 s36, s2, 3')
    I('s_mul_i32 s37, s36, 37')
    I('s_lshr_b32 s37, s37, 8')
    I('s_mul_i32 s38, s37, 7')
    I('s_sub_u32 s36, s36, s38')
    I('s_and_b32 s38, s35, 1')
    I('s_mul_i32 s38, s38, 7')
    I('s_add_u32 s36, s36, s38')
    I('s_lshr_b32 s35, s35, 1')
    I('s_lshl_b32 s35, s35, 2')
    I('s_add_u32 s35, s35, s37')
    I('s_and_b32 s34, s55, 3')
    I('s_lshl_b32 s40, s35, 2')
    I('s_add_u32 s40, s40, s34')
    I(f's_mov_b32 s14, {512*3584}'); I('s_mov_b32 s15, 0x00020000')
    I(f's_mov_b32 s26, {WS_SIZE:#x}'); I('s_mov_b32 s27, 0x00020000')
    I('s_lshl_b32 s49, s40, 15')
    I(f's_add_u32 s49, s49, {WS_X1B:#x}')
    I(f'v_lshrrev_b32 v{T[0]}, 3, v{vLANE}')
    I(f'v_and_b32 v{T[1]}, 7, v{vLANE}')
    I(f'v_bfe_u32 v{T[2]}, v{vLANE}, 4, 1')
    I(f'v_lshlrev_b32 v{T[2]}, 2, v{T[2]}')
    I(f'v_xor_b32 v{T[1]}, v{T[1]}, v{T[2]}')
    I(f'v_lshlrev_b32 v{T[1]}, 4, v{T[1]}')
    I(f'v_mul_u32_u24 v{T[0]}, 3584, v{T[0]}')
    I(f'v_add_u32 v{AD[0]}, v{T[1]}, v{T[0]}')
    I(f's_mul_i32 s45, s34, {8*3584}')
    I('s_lshl_b32 s46, s36, 8')
    I('s_add_u32 s45, s45, s46')
    I('s_lshl_b32 s46, s34, 10')
    I(f'v_and_b32 v{T[0]}, 31, v{vLANE}')
    if X.get('st2', 1):
        I(f'v_lshrrev_b32 v{T[3]}, 5, v{vLANE}')
        I(f'v_lshlrev_b32 v{T[3]}, 14, v{T[3]}')
        I(f'v_lshl_add_u32 v{T[3]}, v{T[0]}, 3, v{T[3]}')
        I('s_lshl_b32 s50, s40, 8')
    else:
        I(f'v_lshlrev_b32 v{T[3]}, 7, v{T[0]}')
        I('s_lshl_b32 s50, s40, 12')
    I(f's_add_u32 s50, s50, {WS_ST4:#x}')
    I('s_cmp_lt_u32 s55, 4')
    I('s_waitcnt lgkmcnt(0)')
    if stamps:
        st.first()
        I('s_cmp_lt_u32 s55, 4')
    I('s_cbranch_scc1 K4_c1')
    def grp(q):
        L = []
        for j in range(4*(q % 4), 4*(q % 4) + 4):
            hf = q // 4
            L.append(f's_add_u32 m0, s46, {hf*65536 + j*4096}\ns_add_u32 s48, s45, {hf*128 + j*32*3584}\n'
                     f'buffer_load_dwordx4 v{AD[0]}, s[12:15], s48 offen lds ; W:G{q}')
        return L
    AH = X.get('ah', 4)
    SE = X.get('se', 1)
    stl = [f'buffer_load_dwordx4 v[{ST+4*j}:{ST+4*j+3}], v{T[3]}, s[24:27], s50 offen offset:{16*j}' for j in range(8)]
    if X.get('st2', 1):
        stl = [f'buffer_load_dwordx2 v[{ST+2*j}:{ST+2*j+1}], v{T[3]}, s[24:27], s50 offen' + ('\ns_add_u32 s50, s50, 32768' if j < 7 else '') for j in range(8)]
    HS = X.get('hs')
    def hs_emit(spec):
        for ch in spec:
            if ch == 's':
                for s in stl: I(s)
            else:
                for s in grp(int(ch)): I(s)
    if HS: hs_emit(HS[0])
    else:
      for q in range(AH):
        for s in grp(q): I(s)
        if SE and q == SE - 1:
            for s in stl: I(s)
    I('s_branch K4_help')
    hq = list(a.vm_q); hn = st.n
    a.label('K4_c1')
    a.vm_q = []
    c0 = -2.0 * (2.0/3.141592653589793) ** 0.5 * LOG2E
    M, A_, B_, S_ = RM, RM+1, RM+2, RM+3
    def common():
        I(f'v_lshrrev_b32 v{vCSA}, 5, v{vLANE}')
        I(f'v_lshlrev_b32 v{vCSA}, 5, v{vCSA}')
        I(f'v_add_u32 v{vCSA}, {L_CS}, v{vCSA}')
        I('s_lshl_b32 s41, s34, 13')
        I(f'v_add_u32 v{vSTG}, s41, v{vL16}')
        I(f's_mul_i32 s53, s40, 114688')
        I('s_lshl_b32 s54, s36, 13')
        I('s_add_u32 s53, s53, s54')
        I(f's_add_u32 s53, s53, {WS_T2:#x}')
    BS = X.get('bs', (32, 32, 32))
    def bl(ks):
        if ks % 4 == 0 and ks > 0: I('s_add_u32 s49, s49, 4096')
        I(f'buffer_load_dwordx4 a[{BF+4*ks}:{BF+4*ks+3}], v{vL16}, s[24:27], s49 offen offset:{1024*(ks%4)}')
    for ks in range(BS[0]):
        bl(ks)
        if ks == X.get('nb0', 7):
            I(f'v_lshrrev_b32 v{T[6]}, 5, v{vLANE}')
            I(f'v_bfe_u32 v{T[7]}, v{vLANE}, 2, 2')
            I(f'v_lshl_add_u32 v{T[6]}, v{T[6]}, 3, v{T[7]}')
            I(f'v_lshlrev_b32 v{T[6]}, 7, v{T[6]}')
            I(f'v_bfe_u32 v{T[5]}, v{vLANE}, 4, 1')
            I(f'v_lshl_add_u32 v{T[6]}, v{T[5]}, 5, v{T[6]}')
            I(f'v_and_b32 v{T[5]}, 1, v{vLANE}')
            I(f'v_lshl_add_u32 v{T[6]}, v{T[5]}, 4, v{T[6]}')
            I(f'v_bfe_u32 v{T[5]}, v{vLANE}, 1, 1')
            I(f'v_lshl_add_u32 v{T[6]}, v{T[5]}, 3, v{T[6]}')
            I(f'v_bfe_u32 v{T[7]}, v{vLANE}, 3, 1')
            I(f'v_lshl_add_u32 v{AD[0]}, v{T[7]}, 6, v{T[6]}')
            I(f'v_xor_b32 v{T[7]}, 1, v{T[7]}')
            I(f'v_lshl_add_u32 v{AD[1]}, v{T[7]}, 6, v{T[6]}')
            I(f'v_and_b32 v{T[0]}, 31, v{vLANE}')
            I('s_lshl_b32 s41, s34, 9')
            I(f's_add_u32 s41, s41, {L_ST}')
            I(f'v_lshl_add_u32 v22, v{T[0]}, 4, s41')
            common()
            I(f'v_add_u32 v{vCSA}, 256, v{vCSA}')
            I('s_add_u32 s53, s53, 4096')
    I('s_mov_b32 s44, 0')
    if X.get('prio', 1): I('s_setprio 2')
    st()
    PRE = 4
    a.raw('K4_pass:')
    for qd in range(4):
        if qd >= 2:
            I('s_cmp_eq_u32 s44, 1')
            I(f's_cbranch_scc1 K4_nb{qd}')
            I('s_barrier')
            a.raw(f'K4_nb{qd}:')
        else:
            I('s_barrier')
        base = 16*qd
        order = list(range(base, base+16))
        if qd == 3:
            order = order[:8] + [i for i in order[8:] if i % 2 == 1] + [i for i in order[8:] if i % 2 == 0]
        def rd2(n):
            idx = order[n]; ks, m2 = idx // 2, idx % 2
            return [f'ds_read_b64_tr_b16 v[{AFR + 4*(n % NRING) + 2*t}:{AFR + 4*(n % NRING) + 2*t + 1}], v{AD[m2]} offset:{(16*ks + 4*t)*128}' for t in range(2)]
        for n in range(PRE):
            for s in rd2(n): I(s)
        lo_, hi_ = ((BS[0], BS[1]), (BS[1], BS[2]), (BS[2], 32), (32, 32))[qd]
        if hi_ > lo_:
            I('s_cmp_eq_u32 s44, 1')
            I(f's_cbranch_scc1 K4_nl{qd}')
            for ks in range(lo_, hi_): bl(ks)
            a.raw(f'K4_nl{qd}:')
        for n, idx in enumerate(order):
            ks, m2 = idx // 2, idx % 2
            b = ACC + 16*m2
            cc = '0' if ks == 0 else f'v[{b}:{b+15}]'
            r = AFR + 4*(n % NRING)
            I(f'v_mfma_f32_32x32x16_bf16 v[{b}:{b+15}], v[{r}:{r+3}], a[{BF+4*ks}:{BF+4*ks+3}], {cc}')
            if n + PRE < 16:
                for s in rd2(n+PRE): I(s)
            if qd == 3 and n == 14:
                for i in range(4): I(f'ds_write_b128 v{vSTG}, v[{ACC+16+4*i}:{ACC+16+4*i+3}] offset:{4096 + 1024*i}')
    I('s_cmp_eq_u32 s44, 1')
    I('s_cbranch_scc1 K4_done')
    for i in range(4): I(f'ds_write_b128 v{vSTG}, v[{ACC+4*i}:{ACC+4*i+3}] offset:{1024*i}')
    I(f'v_add_u32 v{AD[0]}, 65536, v{AD[0]}')
    I(f'v_add_u32 v{AD[1]}, 65536, v{AD[1]}')
    I('s_mov_b32 s44, 1')
    I('s_waitcnt lgkmcnt(0)')
    I('s_branch K4_pass')
    a.label('K4_done')
    I(f'ds_read_b128 v[{RM}:{RM+3}], v22')
    I('s_setprio 0')
    I('s_waitcnt lgkmcnt(0)')
    st()
    I('s_barrier')
    I('s_nop 7')
    I('s_call_b64 s[62:63], ' + ('K4_epk' if X.get('pk', 1) else 'K4_epi'))
    st.flush(24, 34, 22, vLANE)
    I('s_endpgm')
    n_comp = st.n
    a.label('K4_epi')
    a.vm_q = []; a.lds_q = []
    b = ACC
    for h8 in range(2):
        I(f'ds_read_b128 v[{CS}:{CS+3}], v{vCSA} offset:{64*h8}')
        I(f'ds_read_b128 v[{CS+4}:{CS+7}], v{vCSA} offset:{64*h8 + 16}')
        chains = []
        for i in range(8):
            r = b + 8*h8 + i; t = T[i]
            chains.append([f'v_fma_f32 v{r}, -v{M}, v{CS+i}, v{r}', f'v_mul_f32 v{t}, v{r}, v{r}', f'v_fma_f32 v{t}, v{t}, v{B_}, v{A_}',
                           f'v_mul_f32 v{t}, v{t}, v{r}', f'v_exp_f32 v{t}, v{t}', f'v_fma_f32 v{t}, v{t}, v{S_}, v{S_}',
                           f'v_rcp_f32 v{t}, v{t}', f'v_mul_f32 v{r}, v{r}, v{t}'])
        for j in range(8):
            for c in chains: I(c[j])
        for i in range(4):
            I(f'v_cvt_pk_bf16_f32 v{OUTP+4*h8+i}, v{b+8*h8+2*i}, v{b+8*h8+2*i+1}')
        I(f'buffer_store_dwordx4 v[{OUTP+4*h8}:{OUTP+4*h8+3}], v{vL16}, s[24:27], s53 offen offset:{1024*h8}')
    I('s_nop 1')
    I('s_setpc_b64 s[62:63]')
    if X.get('pk', 1):
        a.label('K4_epk')
        a.vm_q = []; a.lds_q = []
        PC = AFR + 4
        I(f'v_sub_f32 v{PC}, 0, v{M}'); I(f'v_sub_f32 v{PC+1}, 0, v{M}')
        for k, r in enumerate((A_, B_, S_)):
            I(f'v_mov_b32 v{PC+2+2*k}, v{r}'); I(f'v_mov_b32 v{PC+3+2*k}, v{r}')
        pm, pa, pb, ps = (f'v[{PC+2*k}:{PC+2*k+1}]' for k in range(4))
        for h8 in range(2):
            I(f'ds_read_b128 v[{CS}:{CS+3}], v{vCSA} offset:{64*h8}')
            I(f'ds_read_b128 v[{CS+4}:{CS+7}], v{vCSA} offset:{64*h8 + 16}')
            chains = []
            for i in range(0, 8, 2):
                r = ACC + 8*h8 + i; t = T[i]
                R = f'v[{r}:{r+1}]'; TT_ = f'v[{t}:{t+1}]'
                chains.append([f'v_pk_fma_f32 {R}, {pm}, v[{CS+i}:{CS+i+1}], {R}', f'v_pk_mul_f32 {TT_}, {R}, {R}', f'v_pk_fma_f32 {TT_}, {TT_}, {pb}, {pa}',
                               f'v_pk_mul_f32 {TT_}, {TT_}, {R}', f'v_exp_f32 v{t}, v{t}\nv_exp_f32 v{t+1}, v{t+1}', f'v_pk_fma_f32 {TT_}, {TT_}, {ps}, {ps}',
                               f'v_rcp_f32 v{t}, v{t}\nv_rcp_f32 v{t+1}, v{t+1}', f'v_pk_mul_f32 {R}, {R}, {TT_}', f'v_cvt_pk_bf16_f32 v{OUTP+4*h8+i//2}, v{r}, v{r+1}'])
            for j in range(9):
                for c in chains: I(c[j])
            I(f'buffer_store_dwordx4 v[{OUTP+4*h8}:{OUTP+4*h8+3}], v{vL16}, s[24:27], s53 offen offset:{1024*h8}')
        I('s_nop 1')
        I('s_setpc_b64 s[62:63]')
    a.label('K4_help')
    a.lds_q = []
    a.vm_q = list(hq)
    st.n = hn
    I('s_lshl_b32 s51, s36, 9')
    I(f's_add_u32 s51, s51, {WS_CS3:#x}')
    csl = f's_mov_b32 m0, {L_CS}\ns_mov_b32 exec_hi, 0\nbuffer_load_dwordx4 v{vL16}, s[24:27], s51 offen lds ; W:CS\ns_mov_b32 exec_hi, -1'
    I('s_lshl_b32 s41, s34, 9')
    I(f's_add_u32 s41, s41, {L_ST}')
    I(f'v_lshl_add_u32 v{AD[1]}, v{T[0]}, 4, s41')
    common()
    def stats():
        L = []
        V = S_
        if X.get('st2', 1):
            for stp in (4, 2, 1):
                for j in range(stp):
                    L.append(f'v_add_f32 v{ST+2*j}, v{ST+2*j}, v{ST+2*(j+stp)}')
                    L.append(f'v_add_f32 v{ST+2*j+1}, v{ST+2*j+1}, v{ST+2*(j+stp)+1}')
            L += [f'v_mov_b32 v{M}, v{ST}', f'v_mov_b32 v{V}, v{ST+1}', f'v_permlane32_swap_b32 v{M}, v{ST}', f'v_permlane32_swap_b32 v{V}, v{ST+1}',
                  f'v_add_f32 v{M}, v{M}, v{ST}', f'v_add_f32 v{V}, v{V}, v{ST+1}',
                  f'v_mul_f32 v{M}, {f32bits(1.0/512):#x}, v{M}', f'v_mul_f32 v{V}, {f32bits(1.0/512):#x}, v{V}', f'v_fma_f32 v{V}, -v{M}, v{M}, v{V}', f'v_max_f32 v{V}, 0, v{V}']
        else:
            L.append(f'v_add_f32 v{M}, v{ST}, v{ST+2}')
            L.append(f'v_add_f32 v{V}, v{ST+1}, v{ST+3}')
            for j in range(2, 16):
                L.append(f'v_add_f32 v{M}, v{M}, v{ST+2*j}')
                L.append(f'v_add_f32 v{V}, v{V}, v{ST+2*j+1}')
            L.append(f'v_mul_f32 v{M}, {f32bits(1.0/16):#x}, v{M}')
            L.append(f'v_mov_b32 v{T[2]}, 0')
            for j in range(16):
                L.append(f'v_sub_f32 v{T[3]}, v{ST+2*j}, v{M}')
                L.append(f'v_fmac_f32 v{T[2]}, v{T[3]}, v{T[3]}')
            L.append(f'v_fmac_f32 v{V}, {f32bits(32.0):#x}, v{T[2]}')
            L.append(f'v_mul_f32 v{V}, {f32bits(1.0/512):#x}, v{V}')
        L.append(f'v_cvt_pk_bf16_f32 v{M}, 0, v{M}')
        L.append(f'v_cvt_pk_bf16_f32 v{V}, 0, v{V}')
        L.append(f'v_add_f32 v{V}, {f32bits(1e-5):#x}, v{V}')
        L.append(f'v_cvt_pk_bf16_f32 v{V}, 0, v{V}')
        L.append(f'v_sqrt_f32 v{V}, v{V}')
        L.append(f'v_cvt_pk_bf16_f32 v{V}, 0, v{V}')
        L.append(f'v_rcp_f32 v{T[2]}, v{V}')
        L.append(f'v_mul_f32 v{A_}, {f32bits(c0):#x}, v{T[2]}')
        L.append(f'v_mul_f32 v{B_}, v{T[2]}, v{T[2]}')
        L.append(f'v_mul_f32 v{B_}, v{B_}, v{A_}')
        L.append(f'v_mul_f32 v{B_}, {f32bits(0.044715):#x}, v{B_}')
        L.append(f'ds_write_b128 v{AD[1]}, v[{RM}:{RM+3}]')
        return L
    def pf4(n):
        L = [f's_mov_b32 s58, {1792*1024}\ns_mov_b32 s59, 0x00020000\nv_lshlrev_b32 v{AD[2]}, 7, v{vLANE}\n'
             's_lshr_b32 s60, s2, 3\ns_lshl_b32 s60, s60, 16\ns_lshl_b32 s61, s34, 14\ns_add_u32 s60, s60, s61']
        for i in range(n):
            L.append(f'buffer_load_dword v{AFR+i}, v{AD[2]}, s[56:59], s60 offen\ns_add_u32 s60, s60, 8192')
        return L
    NPF = X.get('pf4', 0); PFQ = X.get('pfq', 'e0')
    for q in range(6):
        tags = [f'G{q}'] + (['CS'] if q == 4 else [])
        if q == 5: tags = ['G5', 'G6', 'G7']
        a.wait_tags(tags, lg=(q >= 4))
        I('s_barrier')
        if X.get('hst'): st()
        if HS:
            if q + 1 < len(HS): hs_emit(HS[q+1])
        elif q + AH < 8:
            for s in grp(q + AH): I(s)
        if q == 0:
            if not SE and not HS:
                for s in stl: I(s)
            I(csl)
        if q == X.get('sq', 1):
            for s in stats(): I(s)
            if X.get('dry', 0):
                I('s_mov_b64 exec, 0')
                I('s_call_b64 s[62:63], ' + ('K4_epk' if X.get('pk', 1) else 'K4_epi'))
                I('s_mov_b64 exec, -1')
                I('s_waitcnt lgkmcnt(0)')
        if q == 4:
            for i in range(4): I(f'ds_read_b128 v[{ACC+4*i}:{ACC+4*i+3}], v{vSTG} offset:{1024*i}')
            for i in range(4): I(f'ds_read_b128 v[{ACC+16+4*i}:{ACC+16+4*i+3}], v{vSTG} offset:{4096 + 1024*i}')
        if NPF and q == PFQ:
            for s in pf4(NPF): I(s)
    I('s_call_b64 s[62:63], K4_epi')
    if NPF and PFQ == 'e0':
        for s in pf4(NPF): I(s)
    for i in range(16): I(f'v_mov_b32 v{ACC+i}, v{ACC+16+i}')
    I(f'v_add_u32 v{vCSA}, 128, v{vCSA}')
    I('s_add_u32 s53, s53, 2048')
    I('s_call_b64 s[62:63], K4_epi')
    if NPF and PFQ == 'e1':
        for s in pf4(NPF): I(s)
    I(f'v_add_u32 v{vCSA}, 256, v{vCSA}')
    I('s_add_u32 s53, s53, 4096')
    st()
    I('s_barrier')
    if X.get('hst'): st()
    for i in range(4): I(f'ds_read_b128 v[{ACC+4*i}:{ACC+4*i+3}], v{vSTG} offset:{4096 + 1024*i}')
    I('s_waitcnt lgkmcnt(0)')
    I('s_call_b64 s[62:63], ' + ('K4_epk' if X.get('pk', 1) else 'K4_epi'))
    if X.get('hst'): st()
    st.kidx = 6
    st.flush(24, 55, 22, vLANE)
    a.label('K4_end')
    I('s_endpgm')
    print("K4 instrs", a.ninstr, "nops", a.nnop)
    return a.text(), kernel_desc(name, 256, 96, accum=128)
```

```python
from common import *

def gen_k5(name, stamps=False, LA=2, X={}):
    a = Asm()
    st = Stamper(a, stamps, 5)
    kernel_header(a, name)
    I = a.I
    vLANE, vL16 = 1, 2
    T = [4,5,6,7,8,9,10,11]
    AD = [12,13]
    X1R, X1BR = 16, 20
    GB = 24
    ACC = 32
    AFR = 64
    BF = 96
    NR = 7; NS = 5
    I('s_cmp_ge_u32 s2, 256')
    I('s_cbranch_scc1 K5_end')
    I(f's_load_dwordx2 s[12:13], s[0:1], {KA_W4}')
    I(f's_load_dwordx2 s[24:25], s[0:1], {KA_WS}')
    I(f's_load_dwordx2 s[8:9], s[0:1], {KA_OUT}')
    I(f'v_and_b32 v{vLANE}, 63, v0')
    I('v_lshrrev_b32 v3, 6, v0')
    I('s_nop 0')
    I('v_readfirstlane_b32 s34, v3')
    I('s_and_b32 s35, s2, 7')
    I('s_lshr_b32 s36, s2, 3')
    I('s_lshl_b32 s35, s35, 2')
    I('s_lshr_b32 s37, s36, 3')
    I('s_add_u32 s35, s35, s37')
    I('s_and_b32 s36, s36, 7')
    I('s_and_b32 s38, s34, 1')
    I('s_lshr_b32 s39, s34, 1')
    I('s_lshl_b32 s40, s35, 1')
    I('s_add_u32 s40, s40, s38')
    I(f'v_lshlrev_b32 v{vL16}, 4, v{vLANE}')
    for d, n in ((12, 1792*1024), (8, 2048*1024), (24, WS_SIZE)):
        I(f's_mov_b32 s{d+2}, {n:#x}'); I(f's_mov_b32 s{d+3}, 0x00020000')
    I(f'v_lshrrev_b32 v{T[0]}, 3, v{vLANE}')
    I(f'v_and_b32 v{T[1]}, 7, v{vLANE}')
    I(f'v_bfe_u32 v{T[2]}, v{vLANE}, 4, 1')
    I(f'v_lshlrev_b32 v{T[2]}, 2, v{T[2]}')
    I(f'v_xor_b32 v{T[1]}, v{T[1]}, v{T[2]}')
    I(f'v_lshlrev_b32 v{T[1]}, 4, v{T[1]}')
    I(f'v_lshl_add_u32 v{T[1]}, v{T[0]}, 10, v{T[1]}')
    I(f's_mul_i32 s45, s39, {448*1024}')
    I('s_lshl_b32 s46, s36, 7')
    I('s_add_u32 s45, s45, s46')
    I('s_lshl_b32 s46, s38, 13')
    I('s_add_u32 s45, s45, s46')
    I('s_lshl_b32 s46, s39, 13')
    I('s_lshl_b32 s47, s38, 10')
    I('s_add_u32 s46, s46, s47')
    I('s_mul_i32 s49, s40, 114688')
    I(f's_mul_i32 s50, s39, {28*1024}')
    I('s_add_u32 s49, s49, s50')
    I(f's_add_u32 s49, s49, {WS_T2:#x}')
    ROT = X.get('rot', (0, 2))
    if ROT:
        I(f's_mul_i32 s54, s36, {ROT[0]}')
        I(f's_mul_i32 s55, s37, {ROT[1]}')
        I('s_add_u32 s54, s54, s55')
        if len(ROT) > 2:
            I('s_and_b32 s55, s2, 7'); I(f's_mul_i32 s55, s55, {ROT[2]}'); I('s_add_u32 s54, s54, s55')
        if len(ROT) > 3:
            I('s_lshr_b32 s55, s36, 2'); I(f's_mul_i32 s55, s55, {ROT[3]}'); I('s_add_u32 s54, s54, s55')
        I('s_mul_i32 s55, s54, 37'); I('s_lshr_b32 s55, s55, 8'); I('s_mul_i32 s55, s55, 7'); I('s_sub_u32 s54, s54, s55')
    def round_loads(R):
        L = []
        if ROT:
            for j in range(4):
                pre = 's_lshl_b32 s55, s54, 16\ns_add_u32 s55, s55, s45\n' if j == 0 else ''
                L.append(pre + f's_add_u32 m0, s46, {(R % NS)*32768 + j*2048}\ns_add_u32 s48, s55, {j*16*1024}\nbuffer_load_dwordx4 v{T[1]}, s[12:15], s48 offen lds')
            L.append('s_lshl_b32 s50, s54, 12\ns_add_u32 s50, s50, s49\ns_add_u32 s54, s54, 1\ns_cmp_eq_u32 s54, 7\ns_cselect_b32 s54, 0, s54')
        else:
            for j in range(4):
                L.append(f's_add_u32 s47, s46, {(R % NS)*32768 + j*2048}\ns_mov_b32 m0, s47\ns_add_u32 s48, s45, {(4*R + j)*16*1024}\nbuffer_load_dwordx4 v{T[1]}, s[12:15], s48 offen lds')
            L.append(f's_add_u32 s50, s49, {R*4096}')
        for j in range(4):
            ks = 4*R + j
            L.append(f'buffer_load_dwordx4 v[{BF+4*ks}:{BF+4*ks+3}], v{vL16}, s[24:27], s50 offen offset:{1024*j}')
        return L
    I('s_waitcnt lgkmcnt(0)')
    st.first()
    tw = []
    if X.get('tw'):
        tw += [f'v_min_u32 v208, 55, v{vLANE}\nv_lshlrev_b32 v208, 7, v208\ns_lshr_b32 s60, s2, 3\ns_lshl_b32 s60, s60, 3\ns_add_u32 s60, s60, s34\ns_mul_i32 s61, s60, 7168\n'
               f'buffer_load_dword v209, v208, s[12:15], s61 offen']
    if X.get('tt'):
        tw += [f'v_min_u32 v210, 27, v{vLANE}\nv_lshlrev_b32 v210, 7, v210\ns_lshr_b32 s60, s2, 3\ns_lshl_b32 s60, s60, 3\ns_add_u32 s60, s60, s34\ns_mul_i32 s61, s60, 3584\n'
               f's_and_b32 s60, s2, 7\ns_mul_i32 s60, s60, {8*114688}\ns_add_u32 s61, s61, s60\ns_add_u32 s61, s61, {WS_T2:#x}\n'
               f'buffer_load_dword v211, v210, s[24:27], s61 offen']
    TP = X.get('tp', 1)
    for R in range(LA):
        if R == TP:
            for s in tw: I(s)
        for s in round_loads(R): I(s)
    if TP >= LA:
        for s in tw: I(s)
    I(f'v_lshrrev_b32 v{T[6]}, 5, v{vLANE}')
    I(f'v_bfe_u32 v{T[7]}, v{vLANE}, 2, 2')
    I(f'v_lshl_add_u32 v{T[6]}, v{T[6]}, 3, v{T[7]}')
    I(f'v_lshlrev_b32 v{T[6]}, 7, v{T[6]}')
    I(f'v_bfe_u32 v{T[7]}, v{vLANE}, 4, 1')
    I(f'v_lshl_add_u32 v{T[6]}, v{T[7]}, 5, v{T[6]}')
    I(f'v_and_b32 v{T[7]}, 1, v{vLANE}')
    I(f'v_lshl_add_u32 v{T[6]}, v{T[7]}, 4, v{T[6]}')
    I(f'v_bfe_u32 v{T[7]}, v{vLANE}, 1, 1')
    I(f'v_lshl_add_u32 v{T[6]}, v{T[7]}, 3, v{T[6]}')
    I('s_lshl_b32 s50, s39, 13')
    I(f'v_add_u32 v{T[6]}, s50, v{T[6]}')
    I(f'v_bfe_u32 v{T[7]}, v{vLANE}, 3, 1')
    I(f'v_lshl_add_u32 v{AD[0]}, v{T[7]}, 6, v{T[6]}')
    I(f'v_xor_b32 v{T[7]}, 1, v{T[7]}')
    I(f'v_lshl_add_u32 v{AD[1]}, v{T[7]}, 6, v{T[6]}')
    FL = X.get('fl', 1)
    vEP = 14
    def epi_loads():
        L = []
        L.append('s_lshl_b32 s51, s40, 15')
        L.append('s_lshl_b32 s52, s36, 12')
        L.append('s_add_u32 s51, s51, s52')
        if FL:
            L.append(f'v_lshrrev_b32 v{T[3]}, 3, v{vLANE}\ns_lshl_b32 s52, s39, 3\nv_add_u32 v{T[3]}, s52, v{T[3]}')
            L.append(f'v_and_b32 v{T[4]}, 1, v{vLANE}\nv_lshl_add_u32 v{T[3]}, v{T[4]}, 5, v{T[3]}\nv_lshlrev_b32 v{T[3]}, 4, v{T[3]}')
            L.append(f'v_bfe_u32 v{T[4]}, v{vLANE}, 1, 2\nv_lshl_add_u32 v{vEP}, v{T[4]}, 10, v{T[3]}\nv_lshl_add_u32 v{vEP+1}, v{T[4]}, 11, v{T[3]}')
            va = vEP
        else:
            L.append('s_lshl_b32 s52, s39, 10')
            L.append('s_add_u32 s51, s51, s52')
            va = vL16
        L.append(f's_add_u32 s52, s51, {WS_X1:#x}')
        L.append(f'buffer_load_dwordx4 v[{X1R}:{X1R+3}], v{va}, s[24:27], s52 offen')
        L.append(f's_add_u32 s52, s51, {WS_X1B:#x}')
        L.append(f'buffer_load_dwordx4 v[{X1BR}:{X1BR+3}], v{va}, s[24:27], s52 offen')
        if FL:
            L.append(f'v_and_b32 v{T[3]}, 7, v{vLANE}')
            L.append(f'v_lshlrev_b32 v{T[3]}, 5, v{T[3]}')
            L.append('s_lshl_b32 s52, s36, 8')
        else:
            L.append(f'v_lshrrev_b32 v{T[3]}, 5, v{vLANE}')
            L.append(f'v_lshlrev_b32 v{T[3]}, 5, v{T[3]}')
            L.append('s_lshl_b32 s52, s36, 8')
            L.append('s_lshl_b32 s53, s39, 6')
            L.append('s_add_u32 s52, s52, s53')
        L.append(f's_add_u32 s52, s52, {WS_MOD + 3*2048:#x}')
        L.append(f'buffer_load_dwordx4 v[{GB}:{GB+3}], v{T[3]}, s[24:27], s52 offen')
        L.append(f'buffer_load_dwordx4 v[{GB+4}:{GB+7}], v{T[3]}, s[24:27], s52 offen offset:16')
        return L
    def rd(R, j, nt, slot):
        L = []
        off = ((R % NS) % 2) * 32768 + (16*j)*128
        for t in range(2):
            d = AFR + 4*slot + 2*t
            L.append(f'ds_read_b64_tr_b16 v[{d}:{d+1}], v{AD[nt]} offset:{off + 4*t*128}')
        return L
    def adv(R):
        cur = ((R-1) % NS) // 2; new = (R % NS) // 2
        d = (new - cur) * 65536
        if d == 0: return []
        if d > 0: return [f'v_add_u32 v{AD[n]}, {d}, v{AD[n]}' for n in range(2)]
        return [f'v_subrev_u32 v{AD[n]}, {-d}, v{AD[n]}' for n in range(2)]
    issued = [8]*LA
    if tw:
        if TP == 0: pass
        else: issued[min(TP, LA) - 1] += len(tw)
    extra_after = {min(TP, LA) - 1: len(tw)} if (tw and TP > 0) else {}
    st()
    for R in range(NR):
        allowed = 4 + extra_after.get(R, 0) + sum(issued[R+1:])
        I(f's_waitcnt vmcnt({allowed})')
        I('s_barrier')
        side = []
        if R + LA < NR:
            side = round_loads(R+LA); issued.append(8)
        elif R + LA == NR:
            side = epi_loads(); issued.append(4)
        seq = [(j, nt) for j in range(4) for nt in range(2)]
        main = adv(R) if R > 0 else []
        for i in range(4):
            main += rd(R, seq[i][0], seq[i][1], i)
        for i, (j, nt) in enumerate(seq):
            b = ACC + 16*nt
            ks = 4*R + j
            cc = '0' if ks == 0 else f'v[{b}:{b+15}]'
            main.append(f'v_mfma_f32_32x32x16_bf16 v[{b}:{b+15}], v[{AFR+4*i}:{AFR+4*i+3}], v[{BF+4*ks}:{BF+4*ks+3}], {cc}')
            if i + 4 < 8:
                main += rd(R, seq[i+4][0], seq[i+4][1], i+4)
        for s in merge(main, side): I(s)
    st()
    RED = 65536
    I('s_lshl_b32 s50, s34, 13')
    I(f's_add_u32 s50, s50, {RED}')
    I(f'v_add_u32 v{T[0]}, s50, v{vL16}')
    for p in range(4):
        for h in range(2):
            r = ACC + 8*p + 4*h
            I(f'ds_write_b128 v{T[0]}, v[{r}:{r+3}] offset:{2048*p + 1024*h}')
    I('s_waitcnt lgkmcnt(0)')
    I('s_barrier')
    I('s_lshl_b32 s50, s38, 13')
    if not FL:
        I('s_lshl_b32 s51, s39, 11')
        I('s_add_u32 s50, s50, s51')
    I(f's_add_u32 s50, s50, {RED}')
    I(f'v_add_u32 v{T[0]}, s50, v{vEP+1 if FL else vL16}')
    for q in range(4):
        for h in range(2):
            r = AFR + 8*q + 4*h
            I(f'ds_read_b128 v[{r}:{r+3}], v{T[0]} offset:{16384*q + 1024*h}')
    I('s_mov_b32 s52, 0xffff0000')
    for e in range(8):
        r = AFR + e
        I(f'v_add_f32 v{r}, v{r}, v{r+8}')
        I(f'v_add_f32 v{r+16}, v{r+16}, v{r+24}')
        I(f'v_add_f32 v{r}, v{r}, v{r+16}')
        if e % 2 == 0:
            I(f'v_lshlrev_b32 v{T[1]}, 16, v{X1BR+e//2}'); I(f'v_lshlrev_b32 v{T[2]}, 16, v{X1R+e//2}')
        else:
            I(f'v_and_b32 v{T[1]}, s52, v{X1BR+e//2}'); I(f'v_and_b32 v{T[2]}, s52, v{X1R+e//2}')
        I(f'v_add_f32 v{r}, v{r}, v{T[1]}')
        I(f'v_fma_f32 v{r}, v{r}, v{GB+e}, v{T[2]}')
    for j in range(4):
        I(f'v_cvt_pk_bf16_f32 v{ACC+j}, v{AFR+2*j}, v{AFR+2*j+1}')
    if FL:
        I(f'v_lshrrev_b32 v{T[1]}, 3, v{vLANE}')
        I(f'v_lshlrev_b32 v{T[1]}, 10, v{T[1]}')
        I(f'v_and_b32 v{T[2]}, 7, v{vLANE}')
        I(f'v_lshl_add_u32 v{T[1]}, v{T[2]}, 4, v{T[1]}')
        I('s_lshl_b32 s50, s40, 15')
        I('s_lshl_b32 s51, s36, 7')
        I('s_add_u32 s50, s50, s51')
        I('s_lshl_b32 s51, s39, 13')
        I('s_add_u32 s50, s50, s51')
    else:
        I(f'v_and_b32 v{T[1]}, 31, v{vLANE}')
        I(f'v_lshlrev_b32 v{T[1]}, 10, v{T[1]}')
        I(f'v_lshrrev_b32 v{T[2]}, 5, v{vLANE}')
        I(f'v_lshl_add_u32 v{T[1]}, v{T[2]}, 4, v{T[1]}')
        I('s_lshl_b32 s50, s40, 15')
        I('s_lshl_b32 s51, s36, 7')
        I('s_add_u32 s50, s50, s51')
        I('s_lshl_b32 s51, s39, 5')
        I('s_add_u32 s50, s50, s51')
    I(f'buffer_store_dwordx4 v[{ACC}:{ACC+3}], v{T[1]}, s[8:11], s50 offen')
    st.flush(24, 34, 208, vLANE)
    a.label('K5_end')
    I('s_endpgm')
    print("K5 instrs", a.ninstr, "nops", a.nnop)
    return a.text(), kernel_desc(name, 216, 96)
```

```python
import re

TRANS = ('v_exp_f32','v_log_f32','v_rcp_f32','v_rsq_f32','v_sqrt_f32','v_sin_f32','v_cos_f32','v_rcp_iflag_f32')

def parse_regs(tok):
    tok = tok.strip()
    tok = tok.lstrip('-')
    m = re.fullmatch(r'abs\((.*)\)', tok)
    if m: tok = m.group(1)
    m = re.fullmatch(r'\|(.*)\|', tok)
    if m: tok = m.group(1)
    m = re.fullmatch(r'([vsa])\[(\d+):(\d+)\]', tok)
    if m:
        return [(m.group(1), i) for i in range(int(m.group(2)), int(m.group(3))+1)]
    m = re.fullmatch(r'([vsa])(\d+)', tok)
    if m:
        return [(m.group(1), int(m.group(2)))]
    if tok in ('vcc',): return [('x','vcc')]
    if tok in ('exec',): return [('x','exec')]
    if tok in ('m0',): return [('x','m0')]
    return []

def split_ops(s):
    ops = []; depth = 0; cur = ''
    for ch in s:
        if ch in '[(': depth += 1
        if ch in '])': depth -= 1
        if ch == ',' and depth == 0:
            ops.append(cur.strip()); cur = ''
        else:
            cur += ch
    if cur.strip(): ops.append(cur.strip())
    return ops

class Ins:
    __slots__ = ('text','mn','cls','reads','writes','srcC','passes','ws','isDPP','ldsdma','widestore','tagR','tagW')
    def __init__(self, text):
        self.text = text
        t = text.split(';')[0].strip()
        parts = t.split(None, 1)
        mn = parts[0]; self.mn = mn
        rest = parts[1] if len(parts) > 1 else ''
        ops = split_ops(rest)
        mods = ''
        if ops:
            last = ops[-1].split()
            if len(last) > 1:
                ops[-1] = last[0]; mods = ' '.join(last[1:])
        self.reads = []; self.writes = []; self.srcC = []; self.passes = 0; self.ws = 1
        self.isDPP = ('dpp' in mn) or ('row_' in mods) or ('quad_perm' in mods)
        self.ldsdma = False; self.widestore = False
        R = lambda i: parse_regs(ops[i]) if i < len(ops) else []
        if mn.startswith('v_mfma'):
            self.cls = 'mfma'
            self.writes = R(0); self.reads = R(1) + R(2) + R(3); self.srcC = R(3)
            self.passes = 8 if '32x32x16' in mn else 4
        elif mn.startswith('v_cmp'):
            self.cls = 'valu'; self.writes = R(0); self.reads = R(1) + R(2)
        elif mn.startswith('v_permlane') and 'swap' in mn:
            self.cls = 'valu'; self.writes = R(0) + R(1); self.reads = R(0) + R(1)
        elif mn in ('v_readfirstlane_b32','v_readlane_b32'):
            self.cls = 'valu'; self.writes = R(0); self.reads = R(1) + R(2)
        elif mn.startswith('v_add_co') or mn.startswith('v_sub_co') or mn.startswith('v_addc_co'):
            self.cls = 'valu'; self.writes = R(0) + R(1); self.reads = sum([R(i) for i in range(2, len(ops))], [])
        elif mn == 'v_nop':
            self.cls = 'valu'
        elif mn.startswith('v_'):
            self.cls = 'trans' if any(mn.startswith(x) for x in TRANS) else 'valu'
            self.writes = R(0); self.reads = sum([R(i) for i in range(1, len(ops))], [])
            if mn.startswith('v_fmac') or mn.startswith('v_dot2c') or mn.startswith('v_mac') or self.isDPP or mn.startswith('v_writelane'):
                self.reads += R(0)
            if mn.startswith('v_cndmask') and len(ops) == 3: self.reads += [('x','vcc')]
        elif mn.startswith('ds_read') or mn.startswith('ds_bpermute') or mn.startswith('ds_swizzle') or mn.startswith('ds_permute'):
            self.cls = 'dsr'; self.writes = R(0); self.reads = sum([R(i) for i in range(1, len(ops))], [])
        elif mn.startswith('ds_write') or mn.startswith('ds_add'):
            self.cls = 'dsw'; self.reads = sum([R(i) for i in range(len(ops))], [])
        elif mn.startswith('buffer_load') or mn.startswith('global_load'):
            if re.search(r'\blds\b', mods) or 'lds' in mn:
                self.cls = 'vmem_dma'; self.ldsdma = True
                self.reads = sum([R(i) for i in range(len(ops))], []) + [('x','m0')]
            else:
                self.cls = 'vmem_ld'; self.writes = R(0); self.reads = sum([R(i) for i in range(1, len(ops))], [])
        elif mn.startswith('buffer_store') or mn.startswith('global_store') or mn.startswith('buffer_atomic') or mn.startswith('global_atomic'):
            self.cls = 'vmem_st'; self.reads = sum([R(i) for i in range(len(ops))], [])
            self.widestore = ('x3' in mn or 'x4' in mn)
            if self.widestore:
                self.srcC = R(0) if mn.startswith('buffer') else R(1)
        elif mn.startswith('s_load') or mn.startswith('s_buffer_load'):
            self.cls = 'smem'; self.writes = R(0); self.reads = R(1)
        elif mn == 's_nop':
            self.cls = 'nop'; self.ws = int(ops[0], 0) + 1
        elif mn in ('s_waitcnt','s_barrier','s_setprio','s_endpgm','s_sleep') or mn.startswith('s_cbranch') or mn in ('s_branch', 's_call_b64', 's_setpc_b64'):
            self.cls = 'ctl'
        elif mn.startswith('s_cmp'):
            self.cls = 'salu'; self.reads = R(0) + R(1)
        elif mn.startswith('s_'):
            self.cls = 'salu'; self.writes = R(0); self.reads = sum([R(i) for i in range(1, len(ops))], [])
            if 'saveexec' in mn: self.writes += [('x','exec')]
        else:
            raise ValueError("unknown instr: " + text)
        self.tagR = []; self.tagW = []
        if ';' in text:
            for tok in text.split(';', 1)[1].split():
                if tok.startswith('R:'): self.tagR.append(('L', tok[2:]))
                elif tok.startswith('W:'): self.tagW.append(('L', tok[2:]))

FAKE16 = [False]
class Asm:
    def __init__(self):
        self.tog = {}
        self.lg_extra = 0; self.lg_keep = 0
        self.out = []
        self.hist = []
        self.pos = 0
        self.lds_q = []
        self.vm_q = []
        self.nnop = 0
        self.ninstr = 0
    def raw(self, s):
        self.out.append(s)
    def label(self, name):
        self.out.append(name + ':')
        self.hist = [(p, self.pos) for (p, _) in self.hist]
        for attr in ('lds_q', 'vm_q'):
            q = getattr(self, attr)
            u = set()
            for d in q:
                if d: u |= d
            setattr(self, attr, [u] if u else [])
    def comment(self, s):
        self.out.append('    ; ' + s)
    def barrier_state(self):
        self._emit_nop(16)
    def _emit_nop(self, n):
        while n > 0:
            k = min(n, 16)
            self.out.append(f'    s_nop {k-1}')
            self.pos += k; n -= k; self.nnop += 1
    def _need(self, ins):
        need = 0
        rd = set(ins.reads); wr = set(ins.writes)
        for (p, pend) in reversed(self.hist):
            dist = self.pos - pend
            if dist >= 24: break
            pw = set(p.writes)
            req = 0
            isvalu = p.cls in ('valu','trans')
            if isvalu:
                vw = {r for r in pw if r[0] in 'va'}
                sw = {r for r in pw if r[0] == 's' or r == ('x','vcc')}
                if ins.cls == 'mfma' and vw & rd: req = max(req, 2)
                if ins.mn.startswith('v_permlane') and vw & rd: req = max(req, 2)
                if ins.mn in ('v_readfirstlane_b32','v_readlane_b32') and vw & rd: req = max(req, 1)
                if ins.isDPP and vw & rd: req = max(req, 2)
                if p.mn.startswith('v_dot') and vw & (rd | wr):
                    ops_ = split_ops(ins.text.split(';')[0].strip().split(None,1)[1]) if ' ' in ins.text.strip() else []
                    same_c = (ins.mn == p.mn and len(ops_) >= 4 and vw == set(parse_regs(ops_[3].split()[0])) and not (vw & set(parse_regs(ops_[1]) + parse_regs(ops_[2]))))
                    if not same_c: req = max(req, 3)
                if p.cls == 'trans' and ins.cls in ('valu','mfma','vmem_st','dsw','dsr','vmem_ld','vmem_dma') and vw & (rd|wr): req = max(req, 1)
                if sw & rd:
                    if ins.cls in ('valu','trans'): req = max(req, 2)
                    if ins.cls.startswith('vmem'): req = max(req, 5)
                    if ins.mn in ('v_readlane_b32','v_writelane_b32'): req = max(req, 4)
                    if ins.cls in ('salu',): req = max(req, 1)
            if p.cls == 'mfma':
                big = 12 if p.passes == 8 else 8
                ovl = 10 if p.passes == 8 else 6
                war = 7 if p.passes == 8 else 3
                if ins.cls == 'mfma':
                    a_b = set(ins.reads) - set(ins.srcC)
                    ab = set(parse_regs(split_ops(ins.text.split(None,1)[1])[1]) + parse_regs(split_ops(ins.text.split(None,1)[1])[2]))
                    if pw & ab: req = max(req, big)
                    c = set(ins.srcC)
                    if pw & c:
                        if c == pw and p.passes == ins.passes: pass
                        else: req = max(req, ovl)
                    elif pw & wr:
                        req = max(req, ovl)
                else:
                    if pw & (rd | wr): req = max(req, big)
                    if ins.cls in ('valu','trans','dsr','vmem_ld') and set(p.srcC) & wr: req = max(req, war)
            if p.cls == 'salu' and ('x','m0') in pw and ins.ldsdma: req = max(req, 1)
            if p.cls == 'vmem_st' and p.widestore and set(p.srcC) & wr:
                req = max(req, 2 if ins.cls in ('valu','trans','mfma') else 1)
            if req > dist: need = max(need, req - dist)
        return need
    def _autowait(self, ins):
        touched = set(ins.reads) | set(ins.writes)
        touched_l = touched | set(ins.tagW if ins.cls not in ('dsw',) else [])
        touched = touched | set(ins.tagR) | set(ins.tagW if ins.cls in ('dsw',) else [])
        k = None
        for i, d in enumerate(self.lds_q):
            if d and (d & touched_l): k = i
        lg = None; vm = None
        if k is not None:
            k = max(k, min(k + self.lg_extra, len(self.lds_q) - 1 - self.lg_keep))
            lg = len(self.lds_q) - 1 - k
            self.lds_q = self.lds_q[k+1:]
        k = None
        for i, d in enumerate(self.vm_q):
            if d and (d & touched): k = i
        if k is not None:
            vm = len(self.vm_q) - 1 - k
            self.vm_q = self.vm_q[k+1:]
        if lg is not None or vm is not None:
            s = 's_waitcnt'
            if vm is not None: s += f' vmcnt({min(vm,63)})'
            if lg is not None: s += f' lgkmcnt({min(lg,15)})'
            self._put(Ins(s))
    def _put(self, ins):
        self.out.append('    ' + ins.text.split(';')[0].rstrip())
        self.pos += ins.ws
        self.hist.append((ins, self.pos))
        if len(self.hist) > 64: self.hist = self.hist[-48:]
        self.ninstr += 1
    def I(self, text):
        if '\n' in text:
            for t in text.split('\n'): self.I(t)
            return
        if FAKE16[0] and text.startswith('v_mfma_f32_32x32x16_bf16'):
            ops = split_ops(text.split(None, 1)[1])
            d = int(re.match(r'v\[(\d+):', ops[0]).group(1))
            if ops[3] == '0': self.tog[d] = 0
            t = self.tog[d]; self.tog[d] += 1
            for i in range(2):
                dd = d + 8*(t & 1) + 4*i
                cc = '0' if t < 2 else f'v[{dd}:{dd+3}]'
                self.I(f'v_mfma_f32_16x16x32_bf16 v[{dd}:{dd+3}], {ops[1]}, {ops[2]}, {cc}')
            return
        ins = Ins(text)
        if ins.mn == 's_waitcnt':
            m = re.search(r'vmcnt\((\d+)\)', text)
            if m:
                n = int(m.group(1));
                if len(self.vm_q) > n: self.vm_q = self.vm_q[len(self.vm_q)-n:] if n else []
            m = re.search(r'lgkmcnt\((\d+)\)', text)
            if m:
                n = int(m.group(1))
                if len(self.lds_q) > n: self.lds_q = self.lds_q[len(self.lds_q)-n:] if n else []
            self._put(ins); return
        self._autowait(ins)
        n = self._need(ins)
        if n > 0: self._emit_nop(n)
        self._put(ins)
        if ins.cls == 'dsr': self.lds_q.append(set(ins.writes) | set(ins.tagR))
        elif ins.cls == 'dsw': self.lds_q.append(set(r for r in ins.reads if r[0]=='v') and None)
        elif ins.cls == 'vmem_ld': self.vm_q.append(set(ins.writes))
        elif ins.cls in ('vmem_dma','vmem_st'): self.vm_q.append(set(ins.tagW) or None)
    def wait_tags(self, tags, lg=False):
        k = None
        tt = {('L', t) for t in tags}
        for i, d in enumerate(self.vm_q):
            if d and (d & tt): k = i
        s = 's_waitcnt'
        if k is not None: s += f' vmcnt({min(len(self.vm_q) - 1 - k, 63)})'
        if lg: s += ' lgkmcnt(0)'
        if s != 's_waitcnt': self.I(s)
    def vm_outstanding(self):
        return len(self.vm_q)
    def text(self):
        return '\n'.join(self.out) + '\n'

def merge(*streams):
    streams = [s for s in streams if s]
    if not streams: return []
    total = max(len(s) for s in streams)
    idx = [0]*len(streams)
    out = []
    n = sum(len(s) for s in streams)
    while len(out) < n:
        best = None; bf = None
        for i, s in enumerate(streams):
            if idx[i] < len(s):
                f = (idx[i] + 0.5) / len(s)
                if bf is None or f < bf: bf = f; best = i
        out.append(streams[best][idx[best]]); idx[best] += 1
    return out
```

```python
from common import *

NB_G0 = 32
NB_LN = 128
B_LN = NB_G0
B_G1 = B_LN + NB_LN
B_VP = B_G1 + 136
B_W1 = B_VP + 32
NB_K0 = B_W1 + 32
def set_c3(on):
    global B_VP, B_W1, NB_K0
    global J1
    B_VP = B_G1 + {0: 136, 1: 80, 2: 16}[on]; B_W1 = B_VP + 32; NB_K0 = B_W1 + 32
    J1 = 96 if on == 2 else 32
    return NB_K0
J1 = 32

def gen_k0n(name, stamps=False, STF='', lite=0, xpf=0, qrows=512, perm=0, skipj=(), fold=0, w1n=0):
    a = Asm()
    st = Stamper(a, stamps, 0)
    kernel_header(a, name)
    I = a.I
    log2e = f32bits(1.4426950408889634)
    I(f's_cmp_ge_u32 s2, {(B_VP if fold else NB_K0) + xpf}')
    I('s_cbranch_scc1 K0_end')
    if perm == 1:
        I('s_add_u32 s3, s2, 128'); I('s_cmp_lt_u32 s2, 32'); I('s_cselect_b32 s3, s2, s3')
        I('s_sub_u32 s29, s2, 200'); I('s_cmp_ge_u32 s2, 232'); I('s_cselect_b32 s2, s29, s3')
    if perm == 2:
        I('s_add_u32 s3, s2, 64'); I('s_sub_u32 s29, s2, 64'); I('s_cmp_lt_u32 s2, 96'); I('s_cselect_b32 s3, s29, s3')
        I('s_add_u32 s29, s2, 296'); I('s_cmp_lt_u32 s2, 64'); I('s_cselect_b32 s3, s29, s3')
        I('s_sub_u32 s29, s2, 200'); I('s_cmp_ge_u32 s2, 232'); I('s_cselect_b32 s2, s29, s3')
    I(f's_load_dwordx2 s[4:5], s[0:1], {KA_X}')
    I(f's_load_dwordx4 s[8:11], s[0:1], {KA_C}')
    I(f's_load_dwordx2 s[12:13], s[0:1], {KA_W1}')
    I(f's_load_dwordx2 s[14:15], s[0:1], {KA_W3}')
    I(f's_load_dwordx2 s[16:17], s[0:1], {KA_WS}')
    I(f's_load_dwordx2 s[58:59], s[0:1], {KA_V}')
    I('v_lshrrev_b32 v3, 6, v0')
    I('v_and_b32 v9, 63, v0')
    I('v_readfirstlane_b32 s54, v3')
    if xpf:
        I(f's_cmp_ge_u32 s2, {B_VP if fold else NB_K0}')
        I('s_cbranch_scc1 K0_xp')
    if not fold:
        I(f's_cmp_ge_u32 s2, {B_VP}')
        I('s_cbranch_scc1 K0_s')
    I(f's_cmp_lt_u32 s2, {B_LN}')
    I('s_cbranch_scc1 K0_g')
    I(f's_cmp_ge_u32 s2, {B_G1}')
    I('s_cbranch_scc1 K0_g' if not lite else 's_cbranch_scc1 K0_end')
    I('s_cmp_ge_u32 s54, 4')
    I('s_cbranch_scc1 K0_end' if not fold else 's_cbranch_scc1 K0_s')
    I(f's_sub_u32 s29, s2, {B_LN}')
    I('v_lshrrev_b32 v7, 3, v9')
    I('v_and_b32 v4, 7, v9')
    I('v_lshlrev_b32 v5, 10, v7')
    I('v_lshl_add_u32 v5, v4, 4, v5')
    I('s_lshr_b32 s30, s54, 1')
    I('s_and_b32 s31, s54, 1')
    I('s_lshl_b32 s44, s29, 14')
    I('s_lshl_b32 s45, s30, 13')
    I('s_add_u32 s44, s44, s45')
    I('s_lshl_b32 s45, s31, 9')
    I('s_add_u32 s46, s44, s45')
    I('s_xor_b32 s45, s45, 512')
    I('s_add_u32 s47, s44, s45')
    I('s_waitcnt lgkmcnt(0)')
    st.first()
    srd(a, 32, 4, 5, 2048*1024)
    for i in range(4):
        I(f'buffer_load_dwordx4 v[{32+4*i}:{35+4*i}], v5, s[32:35], s46 offen offset:{128*i}')
    for i in range(4):
        I(f'buffer_load_dwordx4 v[{48+4*i}:{51+4*i}], v5, s[32:35], s47 offen offset:{128*i}')
    srd(a, 40, 16, 17, WS_SIZE)
    I('v_lshrrev_b32 v10, 1, v4')
    I('v_lshlrev_b32 v10, 10, v10')
    I('v_and_b32 v11, 1, v4')
    I('v_lshl_add_u32 v10, v11, 9, v10')
    I('v_lshl_add_u32 v10, v7, 4, v10')
    I('s_and_b32 s44, s29, 1')
    I('s_lshl_b32 s44, s44, 8')
    I('s_lshl_b32 s45, s30, 7')
    I('s_add_u32 s44, s44, s45')
    I('s_lshr_b32 s45, s29, 1')
    I('s_lshl_b32 s45, s45, 15')
    I('s_add_u32 s44, s44, s45')
    I('s_lshl_b32 s45, s31, 14')
    I('s_add_u32 s44, s44, s45')
    I('s_mov_b32 s47, 0x3f803f80')
    I('s_mov_b32 s46, 0xffff0000')
    I('v_mov_b32 v12, 0x3f80')
    I('v_mov_b32 v13, 0x3f800000')
    I('v_mov_b32 v30, 0'); I('v_mov_b32 v31, 0'); I('v_mov_b32 v28, 0'); I('v_mov_b32 v29, 0')
    st()
    for i in range(0, 32, 2):
        I(f'v_dot2_f32_bf16 v30, v{32+i}, s47, v30')
        I(f'v_dot2_f32_bf16 v31, v{32+i}, v{32+i}, v31')
        I(f'v_dot2_f32_bf16 v28, v{33+i}, s47, v28')
        I(f'v_dot2_f32_bf16 v29, v{33+i}, v{33+i}, v29')
    I('s_nop 2')
    I('v_add_f32 v30, v30, v28')
    I('v_add_f32 v31, v31, v29')
    I('v_add_f32_dpp v28, v30, v30 quad_perm:[1,0,3,2] row_mask:0xf bank_mask:0xf')
    I('v_add_f32_dpp v29, v31, v31 quad_perm:[1,0,3,2] row_mask:0xf bank_mask:0xf')
    I('v_add_f32_dpp v30, v28, v28 quad_perm:[2,3,0,1] row_mask:0xf bank_mask:0xf')
    I('v_add_f32_dpp v31, v29, v29 quad_perm:[2,3,0,1] row_mask:0xf bank_mask:0xf')
    I('v_add_f32_dpp v28, v30, v30 row_half_mirror row_mask:0xf bank_mask:0xf')
    I('v_add_f32_dpp v29, v31, v31 row_half_mirror row_mask:0xf bank_mask:0xf')
    I(f'v_mul_f32 v30, {f32bits(1.0/512):#x}, v28')
    I(f'v_mul_f32 v31, {f32bits(1.0/512):#x}, v29')
    I('v_fma_f32 v31, -v30, v30, v31')
    I('v_max_f32 v31, 0, v31')
    rnd_bf16(a, 30, 30)
    rnd_bf16(a, 31, 31)
    I(f'v_add_f32 v31, {f32bits(1e-5):#x}, v31')
    rnd_bf16(a, 31, 31)
    I('v_sqrt_f32 v31, v31')
    I('v_sub_f32 v30, 0, v30')
    rnd_bf16(a, 31, 31)
    I('v_rcp_f32 v31, v31')
    st()
    for i in range(4):
        for d in range(4):
            r = 32 + 4*i + d
            I(f'v_dot2_f32_bf16 v{64+2*d}, v{r}, v12, v30')
            I(f'v_dot2_f32_bf16 v{65+2*d}, v{r}, v13, v30')
        I('s_nop 1')
        for e in range(8):
            rnd_bf16(a, 64+e, 64+e)
        for e in range(8):
            I(f'v_mul_f32 v{64+e}, v{64+e}, v31')
        for d in range(4):
            I(f'v_cvt_pk_bf16_f32 v{80+4*i+d}, v{64+2*d}, v{65+2*d}')
        I(f'buffer_store_dwordx4 v[{80+4*i}:{83+4*i}], v10, s[40:43], s44 offen')
        if i < 3: I('s_add_u32 s44, s44, 4096')
    st.flush(40, 54, 100, 9)
    I('s_endpgm')
    a.label('K0_g')
    a.vm_q = []; a.lds_q = []
    I(f's_sub_u32 s29, s2, {B_G1 - J1}')
    I(f's_cmp_lt_u32 s2, {B_LN}')
    I('s_cselect_b32 s29, s2, s29')
    if skipj:
        for lo, hi in [x for x in skipj if not isinstance(x, str)]:
            I(f's_sub_u32 s31, s29, {lo}')
            I(f's_cmp_lt_u32 s31, {hi - lo}')
            I('s_cbranch_scc1 K0_end')
    I('s_and_b32 s31, s29, 3')
    I('s_lshr_b32 s29, s29, 2')
    I('v_and_b32 v1, 15, v0')
    I('v_lshrrev_b32 v2, 4, v0')
    I('v_lshlrev_b32 v6, 3, v2')
    I('s_lshl_b32 s26, s31, 8')
    I(f's_mul_i32 s28, s31, {GP_STRIDE}')
    I('s_lshl_b32 s30, s29, 9')
    I('s_add_u32 s28, s28, s30')
    I(f's_add_u32 s28, s28, {WS_GP:#x}')
    I('s_waitcnt lgkmcnt(0)')
    st.n = 0
    st.first()
    srd(a, 36, 8, 9, 1024)
    I('buffer_load_dwordx2 v[10:11], v6, s[36:39], s26 offen')
    I('s_mov_b32 s20, s10'); I('s_mov_b32 s21, s11'); I(f's_mov_b32 s22, {512*6144}')
    I('s_movk_i32 s24, 6144')
    I('s_mov_b32 s25, s29')
    I('s_cmp_ge_u32 s29, 24')
    I('s_cselect_b32 s20, s12, s20'); I('s_cselect_b32 s21, s13, s21'); I(f's_cselect_b32 s22, {512*1024}, s22')
    I('s_cselect_b32 s24, 1024, s24'); I('s_cselect_b32 s30, 24, 0')
    I('s_cmp_ge_u32 s29, 28')
    I('s_cselect_b32 s20, s14, s20'); I('s_cselect_b32 s21, s15, s21'); I(f's_cselect_b32 s22, {512*3584}, s22')
    I('s_cselect_b32 s24, 3584, s24'); I('s_cselect_b32 s30, 28, s30')
    I('s_sub_u32 s25, s25, s30')
    I('s_lshl_b32 s25, s25, 8')
    I('s_lshl_b32 s30, s31, 7')
    I('s_mul_i32 s30, s30, s24')
    I('s_add_u32 s25, s25, s30')
    I('s_mov_b32 s23, 0x00020000')
    I('s_lshl_b32 s30, s24, 2')
    I('v_mul_lo_u32 v3, v2, s30')
    I('v_lshl_add_u32 v3, v1, 4, v3')
    for i in range(4):
        I(f'buffer_load_dwordx4 v[{32+4*i}:{35+4*i}], v3, s[20:23], s25 offen')
        if i < 3: I('s_add_u32 s25, s25, s24')
    srd(a, 40, 16, 17, WS_SIZE)
    I(f's_mov_b32 s45, {log2e:#x}')
    I('s_mov_b32 s46, 0xffff0000')
    I('s_mov_b32 s62, 0x05040100')
    I('s_mov_b32 s63, 0x07060302')
    I('s_cmp_ge_u32 s29, 24')
    I('s_cselect_b64 s[52:53], -1, 0')
    I('v_mov_b32 v24, 0x3f803f80')
    for e in range(8): I(f'v_mov_b32 v{16+e}, 0')
    I('v_lshrrev_b32 v28, 4, v9')
    I('v_lshlrev_b32 v28, 3, v28')
    I('v_lshl_add_u32 v28, v1, 5, v28')
    I('s_lshl_b32 s30, s54, 9')
    I('v_add_u32 v27, s30, v28')
    I('v_lshlrev_b32 v26, 2, v0')
    st()
    I('v_lshlrev_b32 v12, 16, v10'); I('v_and_b32 v13, s46, v10')
    I('v_lshlrev_b32 v14, 16, v11'); I('v_and_b32 v15, s46, v11')
    for e in range(4): I(f'v_mul_f32 v{4+e}, s45, v{12+e}')
    for e in range(4): I(f'v_exp_f32 v{4+e}, -v{4+e}')
    for e in range(4): I(f'v_add_f32 v{4+e}, 1.0, v{4+e}')
    for e in range(4): I(f'v_rcp_f32 v{4+e}, v{4+e}')
    for e in range(4): I(f'v_mul_f32 v{12+e}, v{12+e}, v{4+e}')
    I('v_cvt_pk_bf16_f32 v10, v12, v13')
    I('v_cvt_pk_bf16_f32 v11, v14, v15')
    I('v_cndmask_b32 v10, v10, v24, s[52:53]')
    I('v_cndmask_b32 v11, v11, v24, s[52:53]')
    for p in range(2):
        for d in range(4):
            r0 = 32 + 8*p + d; r1 = r0 + 4
            I(f'v_perm_b32 v{4+(d&1)*2}, v{r1}, v{r0}, s62')
            I(f'v_perm_b32 v{5+(d&1)*2}, v{r1}, v{r0}, s63')
            I(f'v_dot2_f32_bf16 v{16+2*d}, v{4+(d&1)*2}, v{10+p}, v{16+2*d}')
            I(f'v_dot2_f32_bf16 v{17+2*d}, v{5+(d&1)*2}, v{10+p}, v{17+2*d}')
    for e in range(4):
        I(f'v_permlane32_swap_b32 v{16+e}, v{20+e}')
    for e in range(4):
        I(f'v_add_f32 v{16+e}, v{16+e}, v{20+e}')
    for e in range(2):
        I(f'v_permlane16_swap_b32 v{16+e}, v{18+e}')
    for e in range(2):
        I(f'v_add_f32 v{16+e}, v{16+e}, v{18+e}')
    I('ds_write_b64 v27, v[16:17]')
    I('s_waitcnt lgkmcnt(0)')
    I('s_barrier')
    st()
    if not stamps:
        I('s_cmp_ge_u32 s54, 2')
        I('s_cbranch_scc1 K0_end')
    if stamps: I('v_and_b32 v26, 511, v26')
    for i in range(8):
        I(f'ds_read_b32 v{48+i}, v26 offset:{512*i}')
    for stp in (4, 2, 1):
        for i in range(stp):
            I(f'v_add_f32 v{48+i}, v{48+i}, v{48+i+stp}')
    I('buffer_store_dword v48, v26, s[40:43], s28 offen' + STF)
    st.flush(40, 54, 100, 9)
    a.label('K0_end')
    I('s_endpgm')
    a.label('K0_s')
    I('s_lshl_b32 s66, s54, 12')
    if fold:
        I('s_cmp_ge_u32 s54, 6')
        I('s_cbranch_scc1 K0_s1')
    else:
        I(f's_cmp_ge_u32 s2, {B_W1 if lite < 2 else B_VP}')
        I('s_cbranch_scc1 K0_s1' if not lite else 's_cbranch_scc1 K0_end')
    if 'vp' in skipj: I('s_branch K0_end')
    if fold:
        I(f's_sub_u32 s29, s2, {B_LN}')
        I('s_and_b32 s64, s29, 7')
        I('s_lshr_b32 s65, s29, 3')
        I('s_lshl_b32 s65, s65, 1')
        I('s_and_b32 s63, s54, 1')
        I('s_add_u32 s65, s65, s63')
    else:
        I(f's_sub_u32 s29, s2, {B_VP}')
        I('s_and_b32 s64, s29, 7')
        I('s_lshr_b32 s65, s29, 3')
        I('s_lshl_b32 s65, s65, 3')
        I('s_add_u32 s65, s65, s54')
    I('v_lshlrev_b32 v10, 4, v9')
    I('v_lshrrev_b32 v11, 4, v9')
    I('v_lshlrev_b32 v11, 6, v11')
    I('v_xor_b32 v10, v10, v11')
    I('s_lshl_b32 s62, s64, 19')
    I('s_lshl_b32 s63, s65, 12')
    I('s_add_u32 s62, s62, s63')
    I(f's_add_u32 s62, s62, {1536*256}')
    I('s_mov_b32 m0, s66')
    I('s_mov_b32 s55, s66')
    I('s_waitcnt lgkmcnt(0)')
    st.n = 0
    st.first()
    I('s_mov_b32 s66, s55')
    srd(a, 48, 58, 59, 8*2048*256)
    for j in range(4):
        I(f'buffer_load_dwordx4 v10, s[48:51], s62 offen offset:{1024*j} lds')
    srd(a, 40, 16, 17, WS_SIZE)
    I('v_lshrrev_b32 v11, 5, v9')
    I('v_bfe_u32 v12, v9, 2, 2')
    I('v_lshl_add_u32 v11, v11, 2, v12')
    I('v_lshlrev_b32 v11, 8, v11')
    I('v_bfe_u32 v13, v9, 4, 1')
    I('v_lshl_add_u32 v11, v13, 5, v11')
    I('v_and_b32 v13, 1, v9')
    I('v_lshl_add_u32 v11, v13, 4, v11')
    I('v_bfe_u32 v13, v9, 1, 1')
    I('v_lshl_add_u32 v11, v13, 3, v11')
    I('v_add_u32 v11, s66, v11')
    I('v_lshlrev_b32 v10, 4, v9')
    I('s_lshl_b32 s62, s64, 17')
    I('s_lshl_b32 s63, s65, 12')
    I('s_add_u32 s62, s62, s63')
    I(f's_add_u32 s62, s62, {WS_VP:#x}')
    I('s_waitcnt vmcnt(0)')
    for mt in range(4):
        I(f'v_xor_b32 v13, {mt}, v12')
        I('v_lshl_add_u32 v13, v13, 6, v11')
        for t in range(2):
            I(f'ds_read_b64_tr_b16 v[{32+4*mt+2*t}:{33+4*mt+2*t}], v13 offset:{8*t*256}')
    for mt in range(4):
        I(f'buffer_store_dwordx4 v[{32+4*mt}:{35+4*mt}], v10, s[40:43], s62 offen offset:{1024*mt}')
    st.flush(40, 54, 100, 9)
    I('s_endpgm')
    a.label('K0_s1')
    if 'w1' in skipj: I('s_branch K0_end')
    if fold:
        I(f's_sub_u32 s29, s2, {B_LN}')
        I('s_lshl_b32 s29, s29, 1')
        I('s_and_b32 s63, s54, 1')
        I('s_add_u32 s29, s29, s63')
    else:
        I(f's_sub_u32 s29, s2, {B_W1}')
        I('s_lshl_b32 s29, s29, 3')
        I('s_add_u32 s29, s29, s54')
    I('v_lshrrev_b32 v10, 2, v9')
    I('v_lshlrev_b32 v10, 10, v10')
    I('v_and_b32 v11, 3, v9')
    I('v_lshl_add_u32 v10, v11, 4, v10')
    I('s_lshr_b32 s62, s29, 4')
    I('s_lshl_b32 s62, s62, 15')
    I('s_and_b32 s63, s29, 15')
    I('s_lshl_b32 s63, s63, 6')
    I('s_add_u32 s62, s62, s63')
    I('s_mov_b32 m0, s66')
    I('s_mov_b32 s55, s66')
    I('s_waitcnt lgkmcnt(0)')
    st.n = 0
    st.first()
    I('s_mov_b32 s66, s55')
    srd(a, 48, 12, 13, 512*1024)
    I('buffer_load_dwordx4 v10, s[48:51], s62 offen lds')
    I('s_add_u32 s62, s62, 16384')
    I('s_add_u32 s63, s66, 1024')
    I('s_mov_b32 m0, s63')
    I('buffer_load_dwordx4 v10, s[48:51], s62 offen lds')
    srd(a, 40, 16, 17, WS_SIZE)
    I('v_bfe_u32 v11, v9, 4, 1')
    I('v_lshlrev_b32 v11, 4, v11')
    I('v_lshrrev_b32 v12, 5, v9')
    I('v_lshl_add_u32 v11, v12, 3, v11')
    I('v_bfe_u32 v12, v9, 2, 2')
    I('v_add_u32 v11, v11, v12')
    I('v_lshlrev_b32 v11, 6, v11')
    I('v_and_b32 v12, 3, v9')
    I(f'v_lshl_add_u32 v11, v12, {3 if w1n else 4}, v11')
    I('v_add_u32 v11, s66, v11')
    I('v_lshlrev_b32 v10, 4, v9')
    I('s_and_b32 s62, s29, 15')
    I('s_lshl_b32 s62, s62, 15')
    I('s_lshr_b32 s63, s29, 4')
    I('s_lshl_b32 s63, s63, 10')
    I('s_add_u32 s62, s62, s63')
    I(f's_add_u32 s62, s62, {WS_W1P:#x}')
    I('s_waitcnt vmcnt(0)')
    for T in range(2):
        for t in range(2):
            I(f'ds_read_b64_tr_b16 v[{32+4*T+2*t}:{33+4*T+2*t}], v11 offset:{4*t*64 + (32 if w1n else 8)*T}')
    I('buffer_store_dwordx4 v[32:35], v10, s[40:43], s62 offen')
    I('s_add_u32 s62, s62, 16384')
    I('buffer_store_dwordx4 v[36:39], v10, s[40:43], s62 offen')
    st.flush(40, 54, 100, 9)
    I('s_endpgm')
    if xpf:
        a.label('K0_xp')
        nw = xpf
        rows = qrows // nw
        I(f's_load_dwordx2 s[32:33], s[0:1], {KA_WQ}')
        I(f's_sub_u32 s29, s2, {B_VP if fold else NB_K0}')
        I('s_and_b32 s31, s29, 7')
        I('s_lshr_b32 s29, s29, 3')
        I('s_lshl_b32 s29, s29, 3')
        I('s_add_u32 s29, s29, s54')
        I(f's_mul_i32 s29, s29, {rows*8192}')
        I('s_lshl_b32 s31, s31, 10')
        I('s_add_u32 s29, s29, s31')
        I('v_lshrrev_b32 v10, 3, v9')
        I(f'v_min_u32 v10, {min(rows, 8)-1}, v10')
        I('v_lshlrev_b32 v10, 13, v10')
        I('v_and_b32 v11, 7, v9')
        I('v_lshl_add_u32 v10, v11, 7, v10')
        I('s_mov_b32 s34, 0x400000'); I('s_mov_b32 s35, 0x00020000')
        I('s_waitcnt lgkmcnt(0)')
        for i in range(max(1, rows // 8)):
            I(f'buffer_load_dword v{20+i}, v10, s[32:35], s29 offen')
            I('s_add_u32 s29, s29, 65536')
        I('s_endpgm')
    print("K0 instrs", a.ninstr, "nops", a.nnop)
    return a.text(), kernel_desc(name, 128, 96)
```

```python
from common import *

SLOT = 32768
KV_SLOT = {16: 1, 17: 2, 18: 3, 19: 4, 20: 0, 21: 1, 22: 2, 23: 3}
def slot_of(c): return KV_SLOT[c] * SLOT

def interleave(main, side):
    out = []
    n = len(main); m = len(side); k = 0
    for i, x in enumerate(main):
        out.append(x)
        tgt = (m * (i + 1)) // n
        while k < tgt:
            out.append(side[k]); k += 1
    return out

DEF = {'late':'', 'early':'u m x0 a0 v a1', 'post':'a2 a3', 'after':{0:'a4 a5', 1:'x1', 3:'k'}, 'sl':(('x2',4),('x3',10),('f',12)), 'mq':((1,4,3),(2,10,4),(3,17,4)), 'bars':(7,14,22), 'fin':24, 'late0':8, 'r16':1}
def gen_k1p(name, stamps=False, X=(), offs=106.0):
    X = dict(DEF, **X) if isinstance(X, dict) else dict(DEF, **{k: True for k in X})
    a = Asm()
    OFFS = f'{f32bits(-float(offs)):#x}'
    st = VStamper(a, stamps, 1, 0)
    kernel_header(a, name)
    I = a.I
    M16 = X.get('m16', '')
    tog = {}
    def MF(ph, d, A, B, first, A2=None, B2=None):
        if ph not in M16.split():
            cc = '0' if first else f'v[{d}:{d+15}]'
            return f'v_mfma_f32_32x32x16_bf16 v[{d}:{d+15}], v[{A}:{A+3}], v[{B}:{B+3}], {cc}'
        if first: tog[d] = 0
        t = tog[d]; tog[d] += 1
        L = []
        for i, (x, y) in enumerate(((A, B), (A2 if A2 is not None else A, B2 if B2 is not None else B))):
            dd = d + 8*(t & 1) + 4*i
            cc = '0' if t < 2 else f'v[{dd}:{dd+3}]'
            L.append(f'v_mfma_f32_16x16x32_bf16 v[{dd}:{dd+3}], v[{x}:{x+3}], v[{y}:{y+3}], {cc}')
        return '\n'.join(L)
    vD, vD2 = 1, 2
    vB = [3, 4]
    vA = [5, 6, 7, 8]
    vKA = [9,10,11,12,13,14,15,16]
    vT0, vT1, vT2, vT3 = 17,18,19,20
    vMX = 21; vNEGM = 22; vL = [23,24,25,26]
    vLANE16 = 27
    vKD = [28,29,30,31]
    ACC = 160
    AF = 224
    BFB = 240
    vHW = vT0
    sK, sWQ, sWO, sWS, sTC = 4, 8, 12, 16, 20
    sW, sG, sRB, sHD, sRH, sW4K, sBQ, sBK, sBO, sBV = 24, 25, 26, 27, 28, 29, 30, 31, 32, 33
    t0, t1, t2 = 34, 35, 3
    MODS = 36
    I('s_cmp_ge_u32 s2, 256')
    I('s_cbranch_scc1 K1_end')
    I(f's_load_dwordx2 s[{sWS}:{sWS+1}], s[0:1], {KA_WS}')
    I(f's_load_dwordx2 s[{sWQ}:{sWQ+1}], s[0:1], {KA_WQ}')
    I(f's_load_dwordx2 s[{sK}:{sK+1}], s[0:1], {KA_K}')
    I(f's_load_dwordx2 s[{sWO}:{sWO+1}], s[0:1], {KA_WO}')
    VTR = X.get('vtr', 0)
    sV = 76
    if VTR: I(f's_load_dwordx2 s[{sV}:{sV+1}], s[0:1], {KA_V}')
    if 'xfake' in X:
        I(f's_load_dwordx2 s[80:81], s[0:1], {KA_X}')
        I(f's_mov_b32 s82, {2048*1024}'); I('s_mov_b32 s83, 0x00020000')
    I('v_and_b32 v21, 63, v0')
    I('v_lshrrev_b32 v18, 6, v0')
    I(f'v_lshlrev_b32 v{vLANE16}, 4, v21')
    I(f'v_readfirstlane_b32 s{sW}, v18')
    if X.get('xmap'):
        I(f's_bfe_u32 s{sG}, s2, 0x30003')
        I(f's_and_b32 s{sRB}, s2, 7')
        I(f's_lshl_b32 s{sRB}, s{sRB}, 2')
        I(f's_lshr_b32 s{t0}, s2, 6')
        I(f's_add_u32 s{sRB}, s{sRB}, s{t0}')
    else:
        I(f's_and_b32 s{sG}, s2, 7')
        I(f's_lshr_b32 s{sRB}, s2, 3')
    R16 = X.get('r16', 0)
    if R16:
        I('v_bfe_u32 v22, v21, 3, 2')
        I('v_lshrrev_b32 v23, 5, v21')
        I('v_lshl_add_u32 v22, v23, 3, v22')
        I('v_and_b32 v23, 7, v21')
        I('v_bfe_u32 v24, v21, 4, 2')
        I('v_lshlrev_b32 v24, 1, v24')
    else:
        I('v_lshrrev_b32 v22, 3, v21')
        I('v_and_b32 v23, 7, v21')
        I('v_bfe_u32 v24, v21, 4, 1')
        I('v_lshlrev_b32 v24, 2, v24')
    I('v_xor_b32 v23, v23, v24')
    I('v_lshlrev_b32 v23, 4, v23')
    I(f'v_lshl_add_u32 v{vD}, v22, 13, v23')
    I(f'v_lshl_add_u32 v{vD2}, v22, 10, v23')
    I('v_lshrrev_b32 v18, 5, v21')
    I('v_lshrrev_b32 v19, 4, v21')
    I('v_lshlrev_b32 v20, 9, v19')
    I('v_and_b32 v25, 7, v21')
    I('v_lshl_add_u32 v20, v25, 3, v20')
    I('v_bfe_u32 v25, v21, 3, 1')
    I('v_xor_b32 v26, 1, v25')
    I('v_lshl_add_u32 v20, v26, 11, v20')
    for d, n in ((sWS, WS_SIZE), (sWQ, 512*8192), (sK, 8*2048*256), (sWO, 4096*1024)) + (((sV, 8*2048*256),) if VTR else ()):
        I(f's_mov_b32 s{d+2}, {n:#x}')
        I(f's_mov_b32 s{d+3}, 0x00020000')
    I(f's_lshr_b32 s{sHD}, s{sW}, 1')
    I(f's_and_b32 s{sRH}, s{sW}, 1')
    I(f's_lshl_b32 s{sW4K}, s{sW}, 12')
    I(f's_lshl_b32 s{t0}, s{sW}, 7')
    I(f's_lshl_b32 s{sBQ}, s{sG}, 10')
    I(f's_add_u32 s{sBQ}, s{sBQ}, s{t0}')
    I(f's_lshl_b32 s{sBK}, s{sG}, 19')
    I(f's_add_u32 s{sBO}, s{sBK}, s{t0}')
    I(f's_add_u32 s{sBK}, s{sBK}, s{sW4K}')
    I(f's_add_u32 s{sBK}, s{sBK}, {1536*256}')
    if not VTR:
        I(f's_lshl_b32 s{sBV}, s{sG}, 17')
        I(f's_add_u32 s{sBV}, s{sBV}, s{sW4K}')
        I(f's_add_u32 s{sBV}, s{sBV}, {WS_VP:#x}')
    I(f's_lshr_b32 s{t0}, s{t0}, 1')
    I(f's_add_u32 s{t0}, s{t0}, {WS_GP:#x}')
    I(f's_lshl_b32 s{t1}, s{sRB}, 16')
    I(f's_lshl_b32 s{t2}, s{sW}, 10')
    I(f's_add_u32 s{t1}, s{t1}, s{t2}')
    I(f's_add_u32 s{t2}, s{t2}, {3*SLOT}')
    I(f'v_add_u32 v{vHW}, s{t2}, v{vLANE16}')
    I('s_waitcnt lgkmcnt(0)')
    st.first()
    MP = 82
    def mploads():
        for p in range(4):
            I(f'buffer_load_dwordx2 v[{MP+2*p}:{MP+2*p+1}], v20, s[{sWS}:{sWS+3}], s{t0} offen')
            if p < 3: I(f's_add_u32 s{t0}, s{t0}, {GP_STRIDE}')
    if 'm' not in X['early'].split(): mploads()
    XR = 32
    def xnload(j):
        L = []
        for rh in range(2):
            L.append(f's_add_u32 s{t2}, s{t1}, {8192*j + 32768*rh}')
            L.append(f'buffer_load_dwordx4 v[{XR+8*j+4*rh}:{XR+8*j+4*rh+3}], v{vLANE16}, ' + (f's[{sWS}:{sWS+3}]' if 'xfake' not in X else 's[80:83]') + f', s{t2} offen' + (' nt' if 'xnt' in X else ''))
        return L
    FP = 90
    def finload():
        FO = 8192 if X.get('c3') == 2 else 0
        L = [f's_lshl_b32 s36, s2, 8', f's_add_u32 s37, s36, {WS_GP + 4096 + FO:#x}', f's_add_u32 s36, s36, {WS_MOD + FO:#x}',
             f's_lshl_b32 s38, s{sW}, 8', 's_add_u32 s38, s38, s2', f's_cmp_ge_u32 s38, {(68, 40, 8)[X.get("c3", 0)]}\ns_cselect_b32 s38, 0x10000000, 0',
             's_add_u32 s36, s36, s38', 's_add_u32 s37, s37, s38', f'v_lshrrev_b32 v20, 2, v{vLANE16}']
        for p in range(4):
            L.append(f'buffer_load_dword v{FP+p}, v20, s[{sWS}:{sWS+3}], s37 offen')
            if p < 3: L.append(f's_add_u32 s37, s37, {GP_STRIDE}')
        return L
    finops = ['s_lshr_b32 s38, s2, 3\ns_cmp_eq_u32 s38, 2\ns_cselect_b32 s38, 1.0, 0', 's_cmp_lt_u32 s2, 32\ns_cselect_b64 s[40:41], -1, 0',
              f'v_add_f32 v{FP}, v{FP}, v{FP+1}', f'v_add_f32 v{FP+2}, v{FP+2}, v{FP+3}', f'v_add_f32 v{FP}, v{FP}, v{FP+2}',
              f'v_cvt_pk_bf16_f32 v{FP+1}, 0, v{FP}', f'v_add_f32 v{FP+1}, s38, v{FP+1}', f'v_cvt_pk_bf16_f32 v{FP+1}, 0, v{FP+1}',
              f'v_cndmask_b32 v{FP}, v{FP}, v{FP+1}, s[40:41]', f'buffer_store_dword v{FP}, v20, s[{sWS}:{sWS+3}], s36 offen']
    if X.get('c3') == 2: finops = finops[2:5] + finops[-1:]
    EX2 = X.get('ex2', 0)
    RING = {0: [0,0,1,1,2,2] if not EX2 else [1,1,2,2,0,0,4,4], 1: [4,4,0,0,1,1]}
    def ent(ph, kk):
        if ph == 0 and EX2: return kk if kk < 8 else (kk - 2) % 6
        return kk % 6
    def nxt_dma(ph, k):
        if ph == 0 and EX2 and k < 8: return k + 8 if k < 6 else None
        return k + 6 if k + 6 < 32 else None
    vAX = [23, 24]
    def wo_row(kk): return ((kk >> 2) & 3)*128 + ((kk >> 4)*4 + (kk & 3))*16
    def a_dma(ph, kk):
        e = ent(ph, kk)
        lds = RING[ph][e]*SLOT + (e & 1)*2048
        if ph == 0:
            so = [kk*16*8192, kk*16*8192 + 8*8192 - 1024]; sb = sBQ; srd_ = sWQ; v = vD
        else:
            so = [wo_row(kk)*1024, wo_row(kk)*1024 + 7168]; sb = sBO; srd_ = sWO; v = vD2
            if 'wosmall' in X: so = [(kk % 8)*16384, (kk % 8)*16384 + 7168]
        if R16:
            r0_ = (32*(kk >> 1) if ph == 0 else wo_row(kk & ~1)) + 4*(kk & 1)
            rs_ = 8192 if ph == 0 else 1024
            so = [r0_*rs_, (r0_ + 16)*rs_ - 1024]
        h0 = f's_add_u32 m0, s{sW4K}, {lds}\ns_add_u32 s{t2}, s{sb}, {so[0]}\nbuffer_load_dwordx4 v{v}, s[{srd_}:{srd_+3}], s{t2} offen lds ; W:E{e}'
        h1 = f's_add_u32 s{t2}, s{sb}, {so[1]}\nbuffer_load_dwordx4 v{v}, s[{srd_}:{srd_+3}], s{t2} offen offset:1024 lds ; W:E{e}'
        return [h0, h1]
    def kv_dma(c, js=(0,1,2,3), tag=None):
        L = [f's_add_u32 m0, s{sW4K}, {slot_of(c)}']
        if c % 2 == 0:
            L.append(f's_add_u32 s{t2}, s{sBK}, {((c-16)//2)*32768}')
            for j in js:
                L.append(f'buffer_load_dwordx4 v{vKD[j]}, s[{sK}:{sK+3}], s{t2} offen offset:{1024*j} lds ; W:C{c}' + (f' W:{tag}' if tag else ''))
        elif VTR:
            L.append(f's_add_u32 s{t2}, s{sBK}, {((c-17)//2)*32768}')
            for j in js:
                L.append(f'buffer_load_dwordx4 v{vD}, s[{sV}:{sV+3}], s{t2} offen offset:{1024*j} lds ; W:C{c}' + (f' W:{tag}' if tag else ''))
        else:
            L.append(f's_add_u32 s{t2}, s{sBV}, {((c-17)//2)*32768}')
            for j in js:
                L.append(f'buffer_load_dwordx4 v{vLANE16}, s[{sWS}:{sWS+3}], s{t2} offen offset:{1024*j} lds ; W:C{c}' + (f' W:{tag}' if tag else ''))
        return L
    def touch_ops(kind):
        L = []
        if 'notouch' in X or ('no' + kind) in X: return L
        if kind == 'wo':
            L.append(f'v_lshlrev_b32 v{vT2}, 1, v{vLANE16}')
            L.append(f's_lshl_b32 s{t0}, s{sG}, 19')
            L.append(f's_lshl_b32 s{t1}, s{sRB}, 14')
            L.append(f's_add_u32 s{t0}, s{t0}, s{t1}')
            L.append(f's_lshl_b32 s{t1}, s{sW}, 11')
            L.append(f's_add_u32 s{t0}, s{t0}, s{t1}')
            L.append(f'buffer_load_dword v{vT2}, v{vT2}, s[{sWO}:{sWO+3}], s{t0} offen')
        elif X.get('wbmode', 1) == 0:
            d = sTC
            L.append(f'v_lshlrev_b32 v{vT2}, 3, v{vLANE16}')
            L.append(f's_cmp_eq_u32 s{sHD}, 1\ns_cselect_b32 s{d}, s58, s56\ns_cselect_b32 s{d+1}, s59, s57')
            L.append(f's_cmp_eq_u32 s{sHD}, 2\ns_cselect_b32 s{d}, s60, s{d}\ns_cselect_b32 s{d+1}, s61, s{d+1}')
            L.append(f's_cmp_eq_u32 s{sHD}, 3\ns_cselect_b32 s{d}, s62, s{d}\ns_cselect_b32 s{d+1}, s63, s{d+1}')
            L.append(f's_mov_b32 s{d+2}, {512*1024}\ns_movk_i32 s{t0}, 2048\ns_cmp_ge_u32 s{sHD}, 2\ns_cselect_b32 s{d+2}, {1792*1024}, s{d+2}\ns_cselect_b32 s{t0}, 7168, s{t0}')
            L.append(f's_mov_b32 s{d+3}, 0x00020000')
            L.append(f's_mul_i32 s{t0}, s{t0}, s2')
            L.append(f'buffer_load_dword v{vT2}, v{vT2}, s[{d}:{d+3}], s{t0} offen')
        else:
            d = sTC
            L.append(f'v_lshlrev_b32 v{vT2}, 3, v{vLANE16}')
            L.append(f's_cmp_eq_u32 s{sHD}, 1\ns_cselect_b32 s{d}, s58, s{sWS}\ns_cselect_b32 s{d+1}, s59, s{sWS+1}\ns_cselect_b32 s{d+2}, {512*1024}, s{sWS+2}\ns_cselect_b32 s{t1}, 0, {WS_W1P:#x}')
            L.append(f's_cmp_eq_u32 s{sHD}, 2\ns_cselect_b32 s{d}, s60, s{d}\ns_cselect_b32 s{d+1}, s61, s{d+1}')
            L.append(f's_cmp_eq_u32 s{sHD}, 3\ns_cselect_b32 s{d}, s62, s{d}\ns_cselect_b32 s{d+1}, s63, s{d+1}')
            L.append(f's_lshl_b32 s{t0}, s{sRB}, 14\ns_add_u32 s{t1}, s{t1}, s{t0}\ns_lshl_b32 s{t0}, s{sRH}, 13\ns_add_u32 s{t1}, s{t1}, s{t0}')
            L.append(f's_mul_i32 s{t0}, s2, 7168\ns_cmp_ge_u32 s{sHD}, 2\ns_cselect_b32 s{d+2}, {1792*1024}, s{d+2}\ns_cselect_b32 s{t0}, s{t0}, s{t1}')
            L.append(f's_mov_b32 s{d+3}, 0x00020000')
            L.append(f'buffer_load_dword v{vT2}, v{vT2}, s[{d}:{d+3}], s{t0} offen')
        return L
    def pf_ops(kind):
        d = sTC
        L = []
        if kind == 'w4':
            L.append(f'v_lshrrev_b32 v{vT2}, 4, v{vLANE16}\nv_min_u32 v{vT2}, 55, v{vT2}\nv_lshlrev_b32 v{vT2}, 7, v{vT2}')
            L.append(f's_mov_b32 s{d}, s62\ns_mov_b32 s{d+1}, s63\ns_mov_b32 s{d+2}, {1792*1024}\ns_mov_b32 s{d+3}, 0x00020000')
            L.append(f's_lshl_b32 s{t0}, s{sRB}, 3\ns_add_u32 s{t0}, s{t0}, s{sW}\ns_mul_i32 s{t0}, s{t0}, 7168')
        elif kind == 'w3':
            L.append(f'v_bfe_u32 v{vT2}, v{vLANE16}, 4, 5\nv_min_u32 v{vT2}, 13, v{vT2}\nv_lshlrev_b32 v{vT2}, 7, v{vT2}')
            L.append(f'v_lshrrev_b32 v{vT1}, 9, v{vLANE16}\nv_mul_u32_u24 v{vT1}, 3584, v{vT1}\nv_add_u32 v{vT2}, v{vT2}, v{vT1}')
            L.append(f's_mov_b32 s{d}, s60\ns_mov_b32 s{d+1}, s61\ns_mov_b32 s{d+2}, {512*3584}\ns_mov_b32 s{d+3}, 0x00020000')
            L.append(f's_lshl_b32 s{t0}, s{sRB}, 3\ns_add_u32 s{t0}, s{t0}, s{sW}\ns_mul_i32 s{t0}, s{t0}, {2*3584}\ns_and_b32 s{t1}, s{sG}, 1\ns_mul_i32 s{t1}, s{t1}, 1792\ns_add_u32 s{t0}, s{t0}, s{t1}')
        L.append(f'buffer_load_dword v{vT2}, v{vT2}, s[{d}:{d+3}], s{t0} offen')
        return L
    def start_touch():
        if 'notouch' in X: return
        I('v_bfe_u32 v22, v21, 3, 1')
        I('v_and_b32 v23, 7, v21')
        I('v_lshlrev_b32 v22, 13, v22')
        I('v_lshl_add_u32 v22, v23, 7, v22')
        I(f's_lshl_b32 s100, s{sRB}, 17')
        I(f's_lshl_b32 s{t2}, s{sW}, 14')
        I(f's_add_u32 s100, s100, s{t2}')
        I(f's_lshl_b32 s{t2}, s{sG}, 10')
        I(f's_add_u32 s100, s100, s{t2}')
        I(f'buffer_load_dword v94, v22, s[{sWQ}:{sWQ+3}], s100 offen')
        I('v_and_b32 v23, 3, v21')
        I('v_lshlrev_b32 v23, 7, v23')
        I(f's_lshl_b32 s100, s{sG}, 19')
        I(f's_lshl_b32 s{t2}, s{sRB}, 12')
        I(f's_add_u32 s100, s100, s{t2}')
        I(f's_lshl_b32 s{t2}, s{sW}, 9')
        I(f's_add_u32 s100, s100, s{t2}')
        I(f's_add_u32 s100, s100, {1536*256}')
        I(f'buffer_load_dword v95, v23, s[{sK}:{sK+3}], s100 offen')
    def touch2(kind, dst):
        L = []
        if kind in 'uv':
            L.append(f'v_and_b32 v{dst}, 0x70, v{vLANE16}')
            L.append(f'v_lshlrev_b32 v{dst}, 3, v{dst}')
            L.append(f's_lshl_b32 s44, s{sRB}, 16\ns_lshl_b32 s45, s{sW}, 13\ns_add_u32 s44, s44, s45\ns_lshl_b32 s45, s{sG}, 10\ns_add_u32 s44, s44, s45' + (f'\ns_add_u32 s44, s44, {256*8192}' if kind == 'v' else ''))
            L.append(f'buffer_load_dword v{dst}, v{dst}, s[{sWQ}:{sWQ+3}], s44 offen')
        else:
            L.append(f'v_and_b32 v{dst}, 0x30, v{vLANE16}')
            L.append(f'v_lshlrev_b32 v{dst}, 3, v{dst}')
            L.append(f's_lshl_b32 s44, s{sG}, 19\ns_lshl_b32 s45, s{sRB}, 12\ns_add_u32 s44, s44, s45\ns_lshl_b32 s45, s{sW}, 9\ns_add_u32 s44, s44, s45\ns_add_u32 s44, s44, {1536*256}')
            sx = sK if kind == 'k' else sV
            L.append(f'buffer_load_dword v{dst}, v{dst}, s[{sx}:{sx+3}], s44 offen')
        return L
    TD = {'u': 94, 'v': 95, 'k': 93, 'w': 89}
    early = X.get('early', 'x0 a0 a1 t x1 a2 a3') if isinstance(X, dict) else 'x0 a0 a1 t x1 a2 a3'
    late = X.get('late', 'a4 a5 x2 x3 f') if isinstance(X, dict) else 'a4 a5 x2 x3 f'
    def emit_order(o):
        for tok in o.split():
            if tok == 't': start_touch()
            elif tok[0] == 'P': I(f's_setprio {tok[1]}')
            elif tok == 'm': mploads()
            elif tok == 'f':
                for s in finload(): I(s)
            elif tok in TD:
                for s in touch2(tok, TD[tok]): I(s)
            elif tok[0] == 'x':
                for s in xnload(int(tok[1])): I(s)
            else:
                for s in a_dma(0, int(tok[1])): I(s)
    emit_order(early)
    if R16:
        I('v_lshrrev_b32 v22, 2, v21')
        I('v_lshlrev_b32 v22, 7, v22')
        I('v_and_b32 v23, 3, v21')
        I('v_lshl_add_u32 v22, v23, 3, v22')
        I(f'v_add_u32 v22, s{sW4K}, v22')
        I('v_bfe_u32 v23, v21, 3, 2')
        for nt in range(4):
            I(f'v_xor_b32 v24, {nt}, v23')
            I(f'v_lshl_add_u32 v{vA[nt]}, v24, 5, v22')
    else:
        I('v_bfe_u32 v19, v21, 2, 2')
        I('v_lshl_add_u32 v22, v18, 3, v19')
        I('v_lshlrev_b32 v22, 7, v22')
        I('v_bfe_u32 v23, v21, 4, 1')
        I('v_lshl_add_u32 v22, v23, 5, v22')
        I('v_and_b32 v23, 1, v21')
        I('v_lshl_add_u32 v22, v23, 4, v22')
        I('v_bfe_u32 v23, v21, 1, 1')
        I('v_lshl_add_u32 v22, v23, 3, v22')
        I(f'v_add_u32 v22, s{sW4K}, v22')
        I('v_bfe_u32 v23, v21, 3, 1')
        I(f'v_lshl_add_u32 v{vA[0]}, v23, 6, v22')
        I('v_xor_b32 v23, 1, v23')
        I(f'v_lshl_add_u32 v{vA[1]}, v23, 6, v22')
        I(f'v_add_u32 v{vA[2]}, {2*SLOT}, v{vA[0]}')
        I(f'v_add_u32 v{vA[3]}, {2*SLOT}, v{vA[1]}')
    I('v_and_b32 v24, 31, v21')
    I('v_and_b32 v22, 15, v21')
    I('v_xor_b32 v22, v22, v18')
    I(f's_lshl_b32 s{t2}, s{sRH}, 3')
    I(f'v_xor_b32 v22, s{t2}, v22')
    I('v_lshlrev_b32 v24, 8, v24')
    I(f'v_add_u32 v24, {slot_of(16)}, v24')
    for s in range(8):
        I(f'v_xor_b32 v23, {2*s}, v22')
        I(f'v_lshl_add_u32 v{vKA[s]}, v23, 4, v24')
    I('v_lshrrev_b32 v24, 4, v21')
    I('v_and_b32 v22, 15, v21')
    I('v_xor_b32 v22, v22, v24')
    I('v_lshlrev_b32 v24, 8, v24')
    for j in range(4):
        I(f'v_xor_b32 v23, {4*j}, v22')
        I(f'v_lshl_add_u32 v{vKD[j]}, v23, 4, v24')
    I(f's_lshl_b32 s{t2}, s{sRH}, 14')
    I(f's_add_u32 s{t2}, s{t2}, {3*SLOT}')
    if R16:
        I('v_and_b32 v22, 15, v21')
        I('v_lshlrev_b32 v22, 4, v22')
        I('v_lshrrev_b32 v23, 4, v21')
        I('v_lshl_add_u32 v22, v23, 9, v22')
        I(f'v_add_u32 v{vB[0]}, s{t2}, v22')
    else:
        I(f'v_add_u32 v{vB[0]}, s{t2}, v{vLANE16}')
    I(f'v_xor_b32 v{vB[1]}, 0x4000, v{vB[0]}')
    I('v_mov_b32 v80, 0x3f80')
    I('v_mov_b32 v81, 0x3f800000')
    emit_order(X.get('mid', ''))
    I('v_cvt_f32_u32 v26, v26')
    I('v_cmp_eq_u32 vcc, 0, v21')
    I('v_lshrrev_b32 v25, 3, v21')
    I('v_cmp_eq_u32 vcc, 0, v25')
    I('v_cndmask_b32 v25, 0, 16, vcc')
    STG = 3*SLOT + 16384 + 8192
    I(f's_lshl_b32 s{t2}, s{sW}, 10')
    I(f's_add_u32 s{t2}, s{t2}, {STG}')
    I(f'v_lshl_add_u32 v24, v21, 3, s{t2}')
    I(f'v_lshl_add_u32 v23, v18, 5, s{t2}')
    for e in range(2):
        I(f'v_add_f32 v{MP+e}, v{MP+e}, v{MP+2+e}')
        I(f'v_add_f32 v{MP+4+e}, v{MP+4+e}, v{MP+6+e}')
    for e in range(2): I(f'v_add_f32 v{MP+e}, v{MP+e}, v{MP+4+e}')
    for e in range(2): rnd_bf16(a, MP+e, MP+e)
    for e in range(2): I(f'v_add_f32 v{MP+e}, v{MP+e}, v26')
    for e in range(2): rnd_bf16(a, MP+e, MP+e)
    I(f'v_lshrrev_b32 v{MP}, v25, v{MP}')
    I(f'ds_write_b64 v24, v[{MP}:{MP+1}]')
    MO = 96
    for j in range(4):
        for q, off in enumerate((0, 16, 64, 80)):
            I(f'ds_read_b128 v[{MO+16*j+4*q}:{MO+16*j+4*q+3}], v23 offset:{128*j + off}')
    TT = 64
    def hwrite(j, rh):
        return f'ds_write_b128 v{vHW}, v[{XR+8*j+4*rh}:{XR+8*j+4*rh+3}] offset:{(j >> 1)*32768 + (j & 1)*8192 + rh*16384}'
    for rh in range(2):
        xb = XR + 4*rh
        for d in range(4):
            I(f'v_dot2_f32_bf16 v{TT+2*d}, v{xb+d}, v{MO+2*d}, 0')
            I(f'v_dot2_f32_bf16 v{TT+2*d+1}, v{xb+d}, v{MO+2*d+1}, 0')
        for d in range(4):
            I(f'v_cvt_pk_bf16_f32 v{xb+d}, v{TT+2*d}, v{TT+2*d+1}')
        for d in range(4):
            I(f'v_dot2_f32_bf16 v{TT+8+2*d}, v{xb+d}, v80, v{MO+8+2*d}')
            I(f'v_dot2_f32_bf16 v{TT+8+2*d+1}, v{xb+d}, v81, v{MO+8+2*d+1}')
        for d in range(4):
            I(f'v_cvt_pk_bf16_f32 v{xb+d}, v{TT+8+2*d}, v{TT+8+2*d+1}')
        I(hwrite(0, rh))
    def modq(j):
        L = []
        sb = MO + 16*j
        for rh in range(2):
            for half in range(2):
                seq = []
                for d in (2*half, 2*half+1):
                    x = XR + 8*j + 4*rh + d; lo = TT + 2*d; hi = lo + 1
                    if X.get('mod5'):
                        seq.append([f'v_lshlrev_b32 v{lo}, 16, v{x}', f'v_and_b32 v{hi}, 0xffff0000, v{x}',
                                    f'v_fma_f32 v{lo}, v{sb+2*d}, v{lo}, v{sb+8+2*d}', f'v_fma_f32 v{hi}, v{sb+2*d+1}, v{hi}, v{sb+8+2*d+1}',
                                    f'v_cvt_pk_bf16_f32 v{x}, v{lo}, v{hi}'])
                    else:
                        seq.append([f'v_lshlrev_b32 v{lo}, 16, v{x}', f'v_and_b32 v{hi}, 0xffff0000, v{x}',
                                f'v_mul_f32 v{lo}, v{sb+2*d}, v{lo}', f'v_mul_f32 v{hi}, v{sb+2*d+1}, v{hi}',
                                f'v_cvt_pk_bf16_f32 v{lo}, 0, v{lo}', f'v_cvt_pk_bf16_f32 v{hi}, 0, v{hi}',
                                f'v_add_f32 v{lo}, v{sb+8+2*d}, v{lo}', f'v_add_f32 v{hi}, v{sb+8+2*d+1}, v{hi}',
                                f'v_cvt_pk_bf16_f32 v{x}, v{lo}, v{hi}'])
                n = len(seq[0]) - 1
                for k in range(0, n, 2):
                    for q in seq: L += q[k:k+2]
                for q in seq: L.append(q[n])
            L.append(hwrite(j, rh))
        return L
    SK = X.get('skew', 0)
    ABUF = [224, 232, 128, 136, 144, 152, 160, 168, 176, 184, 192, 200, 208, 216]
    def abuf(ph, kk):
        if ph == 1 and SK: return ABUF[kk % (SK + 2)]
        return AF + 8*(kk & 1)
    def a_reads(ph, kk, nt):
        e = ent(ph, kk); sl = RING[ph][e]
        hi = sl >= 2
        off = (0 if hi else sl*SLOT) + (e & 1)*2048
        d = abuf(ph, kk) + 4*nt
        va = vA[2*hi+nt] if e < 6 else vAX[nt]
        return [f'ds_read_b64_tr_b16 v[{d+2*t}:{d+2*t+1}], v{va} offset:{off + 512*t} ; R:E{e}' for t in range(2)]
    def b_read(kk, b):
        d = BFB + 8*(kk & 1) + 4*b
        return f'ds_read_b128 v[{d}:{d+3}], v{vB[b]} offset:{(kk >> 4)*32768 + (kk & 15)*1024}'
    emit_order(late)
    if EX2:
        I(f'v_add_u32 v{vAX[0]}, {4*SLOT}, v{vA[0]}')
        I(f'v_add_u32 v{vAX[1]}, {4*SLOT}, v{vA[1]}')
    vAH = {0: [21, 22, 25, 26], 1: vKA[4:8] if X.get('c3') else vKD}
    def a_reads16(ph, s_, nt, d):
        L = []
        for t in range(2):
            e = ent(ph, 2*s_ + t); sl = RING[ph][e]; hi = sl >= 2
            off = (0 if hi else sl*SLOT) + t*2048
            va = vAH[ph][nt] if hi else vA[nt]
            L.append(f'ds_read_b64_tr_b16 v[{d+2*t}:{d+2*t+1}], v{va} offset:{off} ; R:E{e}')
        return L
    def b_read16(s_, rq, d):
        return f'ds_read_b128 v[{d}:{d+3}], v{vB[rq >> 1]} offset:{(s_ >> 3)*32768 + ((2*s_) & 15)*1024 + (rq & 1)*256}'
    ORDS = {0: [(i & 3, i >> 2) for i in range(16)],
            1: [(0,0),(1,0),(0,1),(1,1), (2,0),(3,0),(2,1),(3,1), (2,2),(3,2),(2,3),(3,3), (0,2),(1,2),(0,3),(1,3)]}
    def plan16(ph, slots, bmin, lastb=None):
        o = ORDS[X.get('ord16', 0)]
        seq = []
        for s_ in range(16):
            for (mt, rq) in o:
                seq.append((s_, mt, rq ^ 2 if (lastb and s_ == 15) else rq))
        first = {}; last = {}
        for n, (s_, mt, rq) in enumerate(seq):
            for fr in ((s_, 'A', mt), (s_, 'B', rq)):
                first.setdefault(fr, n); last[fr] = n
        pend = sorted(first, key=lambda fr: (first[fr], fr[1]))
        LA = X.get('la16', (10, 10))[ph]
        free = list(slots); reg = {}; issue = {}
        n = -1
        while n < 255:
            for fr in [f_ for f_ in reg if last[f_] == n]: free.append(reg[fr])
            cnt = 0
            while pend and free and (n < 0 or cnt < 1):
                fr = pend[0]
                if first[fr] - n > LA: break
                if fr[1] == 'B' and n < bmin.get(fr[0], -1): break
                reg[fr] = free.pop(0); issue.setdefault(n, []).append(fr); pend.pop(0); cnt += 1
            assert not pend or first[pend[0]] > n + 1 or True
            n += 1
        assert not pend
        for fr in reg:
            ni = [k for k in issue if fr in issue[k]][0]
            assert ni < first[fr], (fr, ni, first[fr])
        return seq, issue, reg
    def ld16(ph, fr, reg):
        return a_reads16(ph, fr[0], fr[2], reg[fr]) if fr[1] == 'A' else [b_read16(fr[0], fr[2], reg[fr])]
    def gemm16(ph, acc, tail, side, bars, plan):
        seq, issue, reg = plan
        a.lg_extra, a.lg_keep = X.get('lgg', (0, 0))
        for kk in range(32):
            if kk in bars:
                I('s_waitcnt lgkmcnt(0)')
                I('s_barrier')
            pr = X.get('prio', (0, 8, 16, 24))
            if kk in X.get('p2st' if ph == 0 else 'p4st', ()): st()
            if pr and kk in pr: I(f's_setprio {3 - pr.index(kk)}')
            if nxt_dma(ph, kk) is not None: dm = a_dma(ph, nxt_dma(ph, kk))
            else: dm = tail.get(kk, ['', ''])
            dpos = X.get('dpos16', ((4, 6), (1, 2)))[kk & 1]
            main = []
            for i in range(8):
                n = 8*kk + i
                s_, mt, rq = seq[n]
                d = acc + 4*(4*rq + mt)
                cc = '0' if s_ == 0 else f'v[{d}:{d+3}]'
                A = reg[(s_, 'A', mt)]; B = reg[(s_, 'B', rq)]
                main.append(f'v_mfma_f32_16x16x32_bf16 v[{d}:{d+3}], v[{A}:{A+3}], v[{B}:{B+3}], {cc}')
                for fr in issue.get(n, []): main += ld16(ph, fr, reg)
                for h_ in range(2):
                    if i == dpos[h_] and dm[h_]: main.append(dm[h_])
            for s in interleave(main, side.get(kk, [])): I(s)
            if ph == 0 and kk in X.get('after', {}): emit_order(X['after'][kk])
        a.lg_extra = a.lg_keep = 0
    def pack16(dst, acc, b):
        L = []
        for nt in range(4):
            g_ = []
            for p in range(2):
                d = acc + 4*(4*(2*b + p) + nt)
                for e in range(2):
                    g_.append(f'v_cvt_pk_bf16_f32 v{dst+4*nt+2*p+e}, v{d+2*e}, v{d+2*e+1}')
            for e in range(2):
                g_.append(f'v_permlane16_swap_b32 v{dst+4*nt+e}, v{dst+4*nt+2+e}')
            L.append(g_)
        return L
    if R16:
        for nt in range(4): I(f'v_add_u32 v{vAH[0][nt]}, {2*SLOT}, v{vA[nt]}')
        p2b = sorted(X.get('bars'))
        plan2 = plan16(0, list(range(AF, 256, 4)), {s_: 8*p2b[s_//4 - 1] - 1 + 1 if s_ >= 4 else -1 for s_ in range(16)}, lastb=True)
        for fr in plan2[1][-1]:
            if fr[1] == 'A':
                for s in ld16(0, fr, plan2[2]): I(s)
    else:
        for s in a_reads(0, 0, 0) + a_reads(0, 0, 1): I(s)
    I('s_waitcnt lgkmcnt(0)')
    I('s_barrier')
    st()

    def gemm_phase(ph, acc, tail, side, bars, lastorder=None):
        for kk in range(32):
            if kk in bars:
                I('s_waitcnt lgkmcnt(0)')
                I('s_barrier')
            buf = kk & 1
            pr = X.get('prio', (0, 8, 16, 24)) if isinstance(X, dict) else (0, 8, 16, 24)
            if ph == 0 and isinstance(X, dict) and kk in X.get('p2st', ()): st()
            if pr and kk in pr: I(f's_setprio {3 - pr.index(kk)}')
            order = [(0,0), (1,0), (0,1), (1,1)]
            if kk == 31 and lastorder: order = lastorder
            mf = []
            for (mt, b) in order:
                d = acc + 16*(2*b + mt)
                cc = '0' if kk == 0 else f'v[{d}:{d+15}]'
                A = AF + 8*buf + 4*mt; B = BFB + 8*buf + 4*b
                pm, pb = order[max(0, order.index((mt, b)) - 1)]
                mf.append(MF('p2' if ph == 0 else 'p4', d, A, B, kk == 0, AF + 8*buf + 4*pm, BFB + 8*buf + 4*pb))
            if kk < 31:
                r0 = a_reads(ph, kk+1, 0) + [b_read(kk+1, 0)]
                r1 = a_reads(ph, kk+1, 1) + [b_read(kk+1, 1)]
            else:
                r0 = r1 = []
            if ph == 1 and isinstance(X, dict) and 'p4last' in X:
                last = X['p4last']
                js = [j for j in range(6, 32) if (((j-6)*last + 12)//25) == kk]
                dm = a_dma(ph, js[0]) if js else ['', '']
            elif nxt_dma(ph, kk) is not None: dm = a_dma(ph, nxt_dma(ph, kk))
            else: dm = tail.get(kk, ['', ''])
            if ph == 1 and 'p4nodma' in X: dm = ['', '']
            if ph == 1 and 'p4noa' in X: r0 = r0[2:]; r1 = r1[2:]
            if ph == 1 and 'p4nob' in X: r0 = r0[:-1]; r1 = r1[:-1]
            main = [mf[0]] + r0 + [mf[1]] + r1 + [mf[2]] + ([dm[0]] if dm[0] else []) + [mf[3]] + ([dm[1]] if dm[1] else [])
            for s in interleave(main, side.get(kk, [])): I(s)
            if ph == 0 and kk in X.get('after', {}): emit_order(X['after'][kk])

    def gemm_skew(acc, side, bars, st0):
        D = SK
        pr = X.get('prio4', (0, 10, 20, 30))
        for s_ in range(32 + D):
            if s_ in bars:
                I('s_waitcnt lgkmcnt(0)')
                I('s_barrier')
            if pr and s_ in pr: I(f's_setprio {3 - pr.index(s_)}')
            def mfm(kk, b):
                L = []
                for mt in range(2):
                    d = acc + 16*(2*b + mt)
                    cc = '0' if kk == 0 else f'v[{d}:{d+15}]'
                    A = abuf(1, kk) + 4*mt; B = BFB + 8*(kk & 1) + 4*b
                    L.append(f'v_mfma_f32_32x32x16_bf16 v[{d}:{d+15}], v[{A}:{A+3}], v[{B}:{B+3}], {cc}')
                return L
            m0_ = mfm(s_, 0) if s_ < 32 else []
            m1_ = mfm(s_ - D, 1) if s_ >= D else []
            r0 = (a_reads(1, s_+1, 0) + [b_read(s_+1, 0)]) if s_ + 1 < 32 else []
            r1 = (a_reads(1, s_+1, 1) if s_ + 1 < 32 else []) + ([b_read(s_+1-D, 1)] if 0 <= s_ + 1 - D < 32 else [])
            dm = a_dma(1, s_+6) if s_ + 6 < 32 else ['', '']
            mf = m0_ + m1_
            slots = [r0, r1, [dm[0]] if dm[0] else [], [dm[1]] if dm[1] else []]
            main = []
            if len(mf) == 4:
                for m, sl_ in zip(mf, slots): main += [m] + sl_
            else:
                main = [mf[0]] + slots[0] + slots[1] + [mf[1]] + slots[2] + slots[3]
            sd = list(side.get(s_, []))
            if s_ >= 33:
                n = len(st0); k = s_ - 33; tot = D - 1
                sd += st0[n*k//tot: n*(k+1)//tot]
            for s in interleave(main, sd): I(s)

    def split(L, n):
        return [L[len(L)*i//n: len(L)*(i+1)//n] for i in range(n)]
    side = {}
    XD = X if isinstance(X, dict) else {}
    for j, k0, n in XD.get('mq', ((1, 0, 4), (2, 4, 4), (3, 8, 4))):
        for i, part in enumerate(split(modq(j), n)):
            side[k0 + i] = side.get(k0 + i, []) + part
    for tok, kk in XD.get('sl', ()):
        L = finload() if tok == 'f' else touch2(tok, TD[tok]) if tok in TD else ['\n'.join(xnload(int(tok[1]))[2*i:2*i+2]) for i in range(2)]
        side[kk] = L + side.get(kk, [])
    fk = XD.get('fin', 14)
    side[fk] = side.get(fk, []) + finops
    if VTR: side[26] = side.get(26, []) + [f'v_lshrrev_b32 v{vD}, 8, v{vLANE16}', f'v_lshlrev_b32 v{vD}, 6, v{vD}', f'v_xor_b32 v{vD}, v{vD}, v{vLANE16}']
    p2bars = set(XD.get('bars', (6, 13)))
    tail = {}
    for kk, c, js in ((26, 16, (0,1)), (27, 16, (2,3)), (28, 17, (0,1)), (29, 17, (2,3))):
        if c == 17 and X.get('v0late'): continue
        L = kv_dma(c, js, tag=f'E{ent(0, kk)}')
        tail[kk] = ['\n'.join(L[:3]), L[3]]
    if R16:
        for fr in plan2[1][-1]:
            if fr[1] == 'B':
                for s in ld16(0, fr, plan2[2]): I(s)
        emit_order(X.get('post', ''))
        gemm16(0, ACC, tail, side, p2bars, plan2)
    else:
        for s in [b_read(0, 0), b_read(0, 1)]: I(s)
        emit_order(X.get('post', ''))
        gemm_phase(0, ACC, tail, side, p2bars, lastorder=[(0,1), (1,1), (0,0), (1,0)])
    st()
    QF2 = 32
    SB_ = [64, 96]
    VF = 128
    KF = AF
    vVA = vT3
    vVT = [4, 5, 6, 7]
    vtset = [f'v_lshrrev_b32 v{vT3}, 9, v{vLANE16}', f'v_bfe_u32 v{vT2}, v{vLANE16}, 6, 2', f'v_lshl_add_u32 v{vT3}, v{vT3}, 2, v{vT2}', f'v_lshlrev_b32 v{vT3}, 8, v{vT3}',
             f'v_lshl_add_u32 v{vT3}, v{vT2}, 6, v{vT3}',
             f'v_bfe_u32 v{vT2}, v{vLANE16}, 8, 1', f'v_lshl_add_u32 v{vT3}, v{vT2}, 5, v{vT3}',
             f'v_and_b32 v{vT2}, 16, v{vLANE16}', f'v_add_u32 v{vT3}, v{vT3}, v{vT2}',
             f'v_bfe_u32 v{vT2}, v{vLANE16}, 5, 1', f'v_lshl_add_u32 v{vT3}, v{vT2}, 3, v{vT3}',
             f'v_add_u32 v{vVT[0]}, {slot_of(17)}, v{vT3}'] + [f'v_xor_b32 v{vVT[mt]}, {64*mt}, v{vVT[0]}' for mt in range(1, 4)]
    vMR = vMX
    def k_reads(t):
        L = []
        c = 16 + 2*(t//4)
        for s in range(8):
            if t % 4 == 0 and t > 0:
                delta = slot_of(c) - slot_of(c-2)
                if delta >= 0: L.append(f'v_add_u32 v{vKA[s]}, {delta}, v{vKA[s]}')
                else: L.append(f'v_subrev_u32 v{vKA[s]}, {-delta}, v{vKA[s]}')
            L.append(f'ds_read_b128 v[{KF+4*s}:{KF+4*s+3}], v{vKA[s]} offset:{(t%4)*8192}')
        return L
    def v_reads(kap):
        L = []
        c = 17 + 2*(kap//8); ks = kap % 8; buf = kap & 1
        if VTR:
            for mt in range(4):
                if ks == 0 and kap > 0:
                    delta = slot_of(c) - slot_of(c-2)
                    L.append(f'v_add_u32 v{vVT[mt]}, {delta}, v{vVT[mt]}' if delta >= 0 else f'v_subrev_u32 v{vVT[mt]}, {-delta}, v{vVT[mt]}')
                d = VF + 16*buf + 4*mt
                for t in range(2):
                    L.append(f'ds_read_b64_tr_b16 v[{d+2*t}:{d+2*t+1}], v{vVT[mt]} offset:{ks*4096 + t*2048}')
            return L
        if ks == 0:
            L.append(f'v_add_u32 v{vVA}, {slot_of(c)}, v{vLANE16}')
        for mt in range(4):
            d = VF + 16*buf + 4*mt
            L.append(f'ds_read_b128 v[{d}:{d+3}], v{vVA} offset:{ks*4096 + mt*1024}')
        return L
    I(f's_load_dwordx8 s[56:63], s[0:1], {KA_W1}')
    if X.get('c3') == 2:
        I(f's_load_dwordx2 s[68:69], s[0:1], {KA_C}')
        I(f's_load_dwordx2 s[72:73], s[0:1], {KA_WMOD}')
        I('s_movk_i32 s70, 1024'); I('s_mov_b32 s71, 0x00020000')
        I(f's_mov_b32 s74, {512*6144}'); I('s_mov_b32 s75, 0x00020000')
    I(f'v_add_u32 v{vT0}, s{sW4K}, v{vLANE16}')
    I(f'v_xor_b32 v{vT1}, 0x1000, v{vT0}')
    EXP = 64
    if R16:
        pk = pack16(EXP, ACC, 1)
        for s in pk[0][:4]: I(s)
        for q in range(4):
            if q < 3:
                for s in pk[q+1][:4]: I(s)
            for s in pk[q][4:]: I(s)
            I(f'ds_write_b128 v{vT0}, v[{EXP+4*q}:{EXP+4*q+3}] offset:{1024*q}')
        pk = pack16(QF2, ACC, 0)
        for g_ in pk:
            for s in g_[:4]: I(s)
        for g_ in pk:
            for s in g_[4:]: I(s)
    else:
        for q in range(4):
            for j in range(4*q, 4*q+4):
                I(f'v_cvt_pk_bf16_f32 v{EXP+j}, v{ACC+32+2*j}, v{ACC+32+2*j+1}')
            I(f'ds_write_b128 v{vT0}, v[{EXP+4*q}:{EXP+4*q+3}] offset:{1024*q}')
        for j in range(16):
            I(f'v_cvt_pk_bf16_f32 v{QF2+j}, v{ACC+2*j}, v{ACC+2*j+1}')
    CEXP = 1.4426950408889634 * 128 ** -0.5
    I(f's_mov_b32 s51, {f32bits(CEXP):#x}')
    for l in vL: I(f'v_mov_b32 v{l}, 0')
    a.wait_tags(['C16'], lg=True)
    I('s_barrier')
    if 'ast' in X: st()
    kr = k_reads(0)
    for s in kr[:4]: I(s)
    for q in range(4):
        I(kr[4+q])
        I(f'ds_read_b128 v[{QF2+16+4*q}:{QF2+16+4*q+3}], v{vT1} offset:{1024*q}')
    def s_mfmas(u):
        seq = []
        for tt in range(2):
            t = 2*u + tt
            b = SB_[u & 1] + 16*tt
            reads = k_reads(t+1) if t < 15 else []
            ri = 0
            for s in range(8):
                cc = '0' if s == 0 else f'v[{b}:{b+15}]'
                grp = [MF('qk', b, KF+4*s, QF2+4*s, s == 0, None, QF2+4*max(0, s-1))]
                while ri < len(reads):
                    grp.append(reads[ri]); ri += 1
                    if reads[ri-1].startswith('ds_read'): break
                if 'pp' in X and s == 0 and X['pp'][tt] is not None: grp = [f's_setprio {X["pp"][tt]}'] + grp
                seq.append('\n'.join(grp))
        return seq
    def pv_mfmas(u, j):
        kap = 4*u + j; buf = kap & 1
        p = SB_[u & 1] + 8*j
        L = []
        for mt in range(4):
            d = ACC + 16*mt
            cc = '0' if kap == 0 else f'v[{d}:{d+15}]'
            L.append(MF('pv', d, VF+16*buf+4*mt, p, kap == 0, VF+16*buf+4*max(0, mt-1), None))
        return L
    def max_ops(u, tt):
        b = SB_[u & 1] + 16*tt
        L = []
        for i in range(8):
            if tt == 0 and i == 0:
                L.append(f'v_max_f32 v{vT0}, v{b}, v{b+1}')
            else:
                L.append(f'v_max3_f32 v{vT0}, v{b+2*i}, v{b+2*i+1}, v{vT0}')
        return L
    def p_ops(u, j):
        b = SB_[u & 1] + 8*j
        L = []
        for e in range(8):
            L.append(f'v_fma_f32 v{b+e}, v{b+e}, s51, v{vNEGM}' if 'nofma' not in X else 's_nop 0')
        for e in range(8):
            L.append(f'v_exp_f32 v{b+e}, v{b+e}')
        for d in range(4):
            L.append(f'v_add_f32 v{vL[d]}, v{vL[d]}, v{b+2*d}' if 'noadd' not in X else 's_nop 0')
            L.append(f'v_add_f32 v{vL[d]}, v{vL[d]}, v{b+2*d+1}' if 'noadd' not in X else 's_nop 0')
            L.append(f'v_cvt_pk_bf16_f32 v{b+d}, v{b+2*d}, v{b+2*d+1}')
        return L
    rare = []
    a.lg_extra, a.lg_keep = X.get('lga', (0, 0))
    extra = kv_dma(18) + (kv_dma(17) if X.get('v0late') else []) + kv_dma(19) + (vtset if VTR else []) + touch_ops('wo')
    for s in extra[:6]: I(s)
    sm = s_mfmas(0)
    for s in merge(sm[:10], extra[6:]): I(s)
    for s in merge(sm[10:], max_ops(0, 0)): I(s)
    for s in max_ops(0, 1): I(s)
    tops = {0: (['C18', 'C17'], kv_dma(20)), 1: (['C19'], kv_dma(21)), 2: (['C20'], kv_dma(22) + (touch_ops('wb') if X.get('wbat', 2) == 2 else [])), 3: (['C21'], kv_dma(23)),
            4: (['C22'], a_dma(1, 0) + a_dma(1, 1)), 5: (['C23'], a_dma(1, 2) + a_dma(1, 3) + (touch_ops('wb') if X.get('wbat', 2) == 5 else [])), 6: None,
            7: ([], a_dma(1, 4) + a_dma(1, 5))}
    C3 = X.get('c3', 0)
    if C3:
        d = sTC; CD = vKD[0]
        c3l = [f's_mov_b32 s{d}, s60\ns_mov_b32 s{d+1}, s61\ns_mov_b32 s{d+2}, {512*3584}\ns_mov_b32 s{d+3}, 0x00020000',
               f's_and_b32 s46, s{sRB}, 0x18\ns_add_u32 s46, s46, s{sG}\ns_lshl_b32 s46, s46, 3\ns_and_b32 s47, s{sRB}, 7\ns_add_u32 s46, s46, s47',
               f's_cmp_ge_u32 s46, 224\ns_cselect_b32 s48, 0x10000000, 0\ns_lshl_b32 s47, s46, 4\ns_add_u32 s47, s47, s48',
               f's_mul_i32 s49, s{sW}, {64*3584}\ns_add_u32 s47, s47, s49',
               f'v_mul_u32_u24 v{CD}, 224, v{vLANE16}',
               f'buffer_load_dwordx4 v[{CD}:{CD+3}], v{CD}, s[{d}:{d+3}], s47 offen',
               f's_lshl_b32 s46, s46, 5\ns_add_u32 s46, s46, s48\ns_mul_i32 s49, s{sW}, 7168\ns_add_u32 s46, s46, s49\ns_add_u32 s46, s46, {WS_C3P:#x}']
        if C3 == 2:
            c3l.insert(2, f's_lshl_b32 s64, s46, 4\ns_mul_i32 s65, s{sW}, {64*6144}\ns_add_u32 s64, s64, s65\ns_add_u32 s64, s64, 2048\n'
                          f's_lshl_b32 s65, s46, 5\ns_lshl_b32 s66, s{sW}, 13\ns_add_u32 s65, s65, s66\ns_add_u32 s65, s65, {WS_M2P:#x}\ns_lshl_b32 s66, s{sW}, 7')
            MD = 252; vC = vD
            m2t = [f'v_mul_u32_u24 v{vT2}, 384, v{vLANE16}', f'buffer_load_dword v{vT2}, v{vT2}, s[72:75], s64 offen',
                   f'v_lshrrev_b32 v{vC}, 3, v{vLANE16}', f'buffer_load_ushort v{vC}, v{vC}, s[68:71], s66 offen']
            m2l = [f'v_mul_u32_u24 v{MD}, 384, v{vLANE16}', f'buffer_load_dwordx4 v[{MD}:{MD+3}], v{MD}, s[72:75], s64 offen']
            tops[4] = (tops[4][0], tops[4][1] + m2t)
            tops[7] = (tops[7][0], (m2l + tops[7][1]) if X.get('m2first') else (tops[7][1] + m2l))
            E = 144; TS = 138
            m2a = [f'v_lshlrev_b32 v{vC}, 16, v{vC}', f'v_mul_f32 v{TS}, {f32bits(1.4426950408889634):#x}, v{vC}', f'v_exp_f32 v{TS}, -v{TS}', f'v_add_f32 v{TS}, 1.0, v{TS}',
                   f'v_rcp_f32 v{TS}, v{TS}', f'v_mul_f32 v{vC}, v{vC}, v{TS}', f'v_cvt_pk_bf16_f32 v{vC}, 0, v{vC}']
            m2b = []
            for dd in range(4):
                m2b += [f'v_lshlrev_b32 v{E+2*dd}, 16, v{MD+dd}', f'v_and_b32 v{E+2*dd+1}, 0xffff0000, v{MD+dd}']
            m2b += [f'v_mul_f32 v{E+e}, v{E+e}, v{vC}' for e in range(8)]
            m2c = [f'v_permlane32_swap_b32 v{E+e}, v{E+4+e}' for e in range(4)] + [f'v_add_f32 v{E+e}, v{E+e}, v{E+4+e}' for e in range(4)] + \
                  [f'v_permlane16_swap_b32 v{E+e}, v{E+2+e}' for e in range(2)] + [f'v_add_f32 v{E+e}, v{E+e}, v{E+2+e}' for e in range(2)]
            m2d = []
            src, dst = E, E + 2
            for ctl in ('quad_perm:[1,0,3,2]', 'quad_perm:[2,3,0,1]', 'row_half_mirror', 'row_mirror'):
                m2d += [f'v_add_f32_dpp v{dst+e}, v{src+e}, v{src+e} {ctl} row_mask:0xf bank_mask:0xf' for e in range(2)]
                src, dst = dst, src
            m2d += [f'v_lshrrev_b32 v{TS}, 5, v{vLANE16}',
                    f's_mov_b32 exec_lo, 0x10001\ns_mov_b32 exec_hi, 0x10001\nbuffer_store_dwordx2 v[{src}:{src+1}], v{TS}, s[{sWS}:{sWS+3}], s65 offen sc0 sc1\ns_mov_b64 exec, -1']
        u3 = X.get('c3u', 3)
        tops[u3] = (tops[u3][0], tops[u3][1] + c3l)
        SM, DD, TQ = 128, 132, 136
        c3p = [f'v_bfe_u32 v{TQ}, v{vLANE16}, 4, 1', f'v_lshlrev_b32 v{TQ}, 4, v{TQ}', f'v_mov_b32 v{TQ+1}, 0x3f80', f'v_lshlrev_b32 v{TQ}, v{TQ}, v{TQ+1}',
               f'v_bfe_u32 v{TQ+1}, v{vLANE16}, 5, 3']
        for dd in range(4):
            c3p.append(f'v_cmp_eq_u32 vcc, {dd}, v{TQ+1}\nv_cndmask_b32 v{SM+dd}, 0, v{TQ}, vcc')
        c3p.append(f'v_mfma_f32_16x16x32_bf16 v[{DD}:{DD+3}], v[{CD}:{CD+3}], v[{SM}:{SM+3}], 0')
        c3q = [f'v_add_f32 v{DD}, v{DD}, v{DD+1}', f'v_add_f32 v{DD+2}, v{DD+2}, v{DD+3}', f'v_add_f32 v{DD}, v{DD}, v{DD+2}',
               f'v_mov_b32 v{DD+1}, v{DD}', f'v_lshrrev_b32 v{TQ}, 2, v{vLANE16}', f'v_permlane16_swap_b32 v{DD}, v{DD+1}', f'v_add_f32 v{DD}, v{DD}, v{DD+1}',
               f'v_mov_b32 v{DD+1}, v{DD}', 's_nop 0', f'v_permlane32_swap_b32 v{DD}, v{DD+1}', f'v_add_f32 v{DD}, v{DD}, v{DD+1}',
               f's_mov_b64 exec, 0xff\nbuffer_store_dword v{DD}, v{TQ}, s[{sWS}:{sWS+3}], s46 offen sc0 sc1\ns_mov_b64 exec, -1']
    for kind, u_ in X.get('pf', ()):
        tops[u_] = (tops[u_][0], tops[u_][1] + pf_ops(kind))
    p4set = [f'v_add_u32 v{vA[2]}, {2*SLOT}, v{vA[2]}', f'v_add_u32 v{vA[3]}, {2*SLOT}, v{vA[3]}',
             f'v_add_u32 v{vB[0]}, {2*SLOT}, v{vLANE16}', f'v_add_u32 v{vB[1]}, {2*SLOT + 16384}, v{vLANE16}',
             f's_lshl_b32 s{t0}, s{sRH}, 14\ns_lshl_b32 s{t1}, s{sHD}, 12\ns_add_u32 s{t0}, s{t0}, s{t1}\ns_add_u32 s{t0}, s{t0}, {2*SLOT}',
             f'v_add_u32 v{vKA[0]}, s{t0}, v{vLANE16}']
    if R16:
        p4set = [f'v_add_u32 v{vAH[1][nt]}, {4*SLOT}, v{vA[nt]}' for nt in range(4)] + \
                [f'v_and_b32 v{vB[0]}, 0x7ff, v{vB[0]}', f'v_add_u32 v{vB[1]}, {2*SLOT + 16384}, v{vB[0]}', f'v_add_u32 v{vB[0]}, {2*SLOT}, v{vB[0]}'] + p4set[4:]
        p4late = []
        if VTR:
            p4set = [f'v_add_u32 v{vAH[1][3]}, {4*SLOT}, v{vA[3]}'] + [f'v_xor_b32 v{vAH[1][nt]}, {(3 ^ nt) << 5}, v{vAH[1][3]}' for nt in range(3)] + \
                    [f'v_and_b32 v{vB[0]}, 0x7ff, v{vB[0]}', f'v_add_u32 v{vB[0]}, {2*SLOT}, v{vB[0]}'] + p4set[7:]
            p4late = [f'v_add_u32 v{vB[1]}, 16384, v{vB[0]}'] + [f'v_xor_b32 v{vA[nt]}, {(3 ^ nt) << 5}, v{vA[3]}' for nt in range(3)]
        x2at = X.get('x2at', 5)
        plan4 = plan16(1, X.get('sl4', list(range(AF, 256, 4)) if C3 != 2 else list(range(AF, 252, 4)) + [140]), {s_: (8*x2at if s_ >= 8 else -1) for s_ in range(16)})
    I(f'v_mov_b32 v{vT1}, v{vT0}')
    I(f'v_permlane32_swap_b32 v{vT0}, v{vT1}')
    I(f'v_max_f32 v{vT0}, v{vT0}, v{vT1}')
    I(f'v_mul_f32 v{vNEGM}, s51, v{vT0}')
    I(f'v_sub_f32 v{vNEGM}, {OFFS}, v{vNEGM}')
    lred = [f'v_add_f32 v{vL[0]}, v{vL[0]}, v{vL[1]}', f'v_add_f32 v{vL[2]}, v{vL[2]}, v{vL[3]}', f'v_add_f32 v{vL[0]}, v{vL[0]}, v{vL[2]}',
            f'v_mov_b32 v{vL[1]}, v{vL[0]}', 's_nop 1', f'v_permlane32_swap_b32 v{vL[0]}, v{vL[1]}', f'v_add_f32 v{vL[1]}, v{vL[0]}, v{vL[1]}', f'v_rcp_f32 v{vL[0]}, v{vL[1]}']
    for u in range(8):
        extra = []
        if u == 0 and 'late0' in X:
            sm = s_mfmas(1)
            pv = p_ops(0, 0) + p_ops(0, 1) + p_ops(0, 2)[:14]
            n0 = X['late0']
            for s in merge(sm[:n0], pv[:len(pv)*n0//16]): I(s)
            a.wait_tags(tops[0][0])
            I('s_barrier')
            for s in merge(sm[n0:], tops[0][1] + v_reads(0), pv[len(pv)*n0//16:]): I(s)
            rest = p_ops(u, 2)[14:] + p_ops(u, 3)
            nxt = p_ops(1, 0)
            side = {0: rest[:18], 1: rest[18:36], 2: rest[36:] + nxt[:10], 3: nxt[10:]}
        elif tops[u] is not None:
            a.wait_tags(tops[u][0])
            if not ('nobar' in X and u > 0): I('s_barrier')
            extra = tops[u][1]
        if 'aprio' in X: I(f's_setprio {X["aprio"][u]}')
        if 'ast' in X: st()
        if u == 0: extra = extra + v_reads(0)
        nxt = p_ops(u+1, 0) if u < 7 else []
        if u == 0 and 'late0' in X:
            pass
        elif u == 0:
            sm = s_mfmas(u+1)
            for s in merge(sm, extra, p_ops(u, 0) + p_ops(u, 1) + p_ops(u, 2)[:14]): I(s)
            rest = p_ops(u, 2)[14:] + p_ops(u, 3)
            side = {0: rest[:18], 1: rest[18:36], 2: rest[36:] + nxt[:10], 3: nxt[10:]}
        elif u < 7:
            sm = s_mfmas(u+1)
            for s in merge(sm, extra, p_ops(u, 1) + p_ops(u, 2)): I(s)
            p3 = p_ops(u, 3)
            side = {0: p3[:14], 1: p3[14:], 2: nxt[:14], 3: nxt[14:]}
        else:
            for s in extra: I(s)
            side = {0: p_ops(u, 1) + p4set[:3], 1: p_ops(u, 2) + p4set[3:], 2: p_ops(u, 3), 3: []}
        for j in range(4):
            kap = 4*u + j
            pre = v_reads(kap+1) if kap < 31 else []
            sd = side[j]
            if u == 7 and j == 3:
                sd = lred + [f'v_cmp_nle_f32 vcc, v{vL[1]}, {X.get("thr", "1.0")}'] + (p4late if R16 else [])
                pre = a_reads(1, 0, 0) + a_reads(1, 0, 1)
                if R16: pre = sum([ld16(1, fr, plan4[2]) for fr in plan4[1][-1] if fr[1] == 'A'], [])
            if 'pp' in X:
                pq = X['pp'][2+j] if u < 7 else 3-j
                if pq is not None: I(f's_setprio {pq}')
            for s in merge(pv_mfmas(u, j), pre, sd): I(s)
    a.lg_extra = a.lg_keep = 0
    I('s_nop 1')
    I('s_cbranch_vccnz K1_fb')
    a.out.append('K1_fbr:')
    f = Asm(); F = f.I
    KFb, St, VFb = 96, 64, 128
    vKa, vKb, vM = vKA[1], vKA[2], vKA[3]
    f.raw('K1_fb:')
    F('s_nop 15'); F('s_nop 15')
    F(f'v_lshrrev_b32 v{vT0}, 4, v{vLANE16}')
    F(f'v_and_b32 v{vT1}, 31, v{vT0}')
    F(f'v_lshlrev_b32 v{vT1}, 8, v{vT1}')
    F(f'v_lshrrev_b32 v{vT0}, 5, v{vT0}')
    F(f'v_lshl_add_u32 v{vT1}, v{vT0}, 4, v{vT1}')
    F(f's_lshl_b32 s40, s{sRH}, 7')
    F(f'v_add_u32 v{vKa}, s40, v{vT1}')
    F(f'v_xor_b32 v{vKb}, 0x80, v{vKa}')
    F(f'v_mov_b32 v{vM}, 0xff800000')
    def fb_s():
        for s_ in range(8):
            F(f'buffer_load_dwordx4 v[{KFb+4*s_}:{KFb+4*s_+3}], v{vKa if s_ < 4 else vKb}, s[{sK}:{sK+3}], s41 offen offset:{32*(s_ & 3)}')
    def fb_mf():
        for s_ in range(8):
            cc = '0' if s_ == 0 else f'v[{St}:{St+15}]'
            F(f'v_mfma_f32_32x32x16_bf16 v[{St}:{St+15}], v[{KFb+4*s_}:{KFb+4*s_+3}], v[{QF2+4*s_}:{QF2+4*s_+3}], {cc}')
    F(f's_sub_u32 s41, s{sBK}, s{sW4K}')
    F('s_mov_b32 s40, 0')
    f.label('K1_fb1')
    fb_s()
    F('s_waitcnt vmcnt(0)')
    fb_mf()
    for i in range(8):
        F(f'v_max3_f32 v{vM}, v{St+2*i}, v{St+2*i+1}, v{vM}')
    F('s_add_u32 s41, s41, 8192')
    F('s_add_u32 s40, s40, 1')
    F('s_cmp_lt_u32 s40, 16')
    F('s_nop 7')
    F('s_cbranch_scc1 K1_fb1')
    F(f'v_mov_b32 v{vT1}, v{vM}')
    F(f'v_permlane32_swap_b32 v{vM}, v{vT1}')
    F(f'v_max_f32 v{vM}, v{vM}, v{vT1}')
    F(f'v_mul_f32 v{vNEGM}, s51, v{vM}')
    F(f'v_sub_f32 v{vNEGM}, 0, v{vNEGM}')
    for i in range(64): F(f'v_mov_b32 v{ACC+i}, 0')
    for l in vL: F(f'v_mov_b32 v{l}, 0')
    F(f's_sub_u32 s41, s{sBK}, s{sW4K}')
    if VTR:
        F(f'v_bfe_u32 v{vT0}, v{vLANE16}, 4, 5')
        F(f'v_and_b32 v{vM}, 0x13, v{vT0}')
        F(f'v_bfe_u32 v{vT1}, v{vT0}, 2, 1')
        F(f'v_lshl_or_b32 v{vM}, v{vT1}, 3, v{vM}')
        F(f'v_bfe_u32 v{vT1}, v{vT0}, 3, 1')
        F(f'v_lshl_or_b32 v{vM}, v{vT1}, 2, v{vM}')
        F(f'v_lshlrev_b32 v{vM}, 1, v{vM}')
        F(f'v_lshrrev_b32 v{vT1}, 9, v{vLANE16}')
        F(f'v_lshl_add_u32 v{vM}, v{vT1}, 10, v{vM}')
        F('s_mov_b32 s40, 0')
        f.label('K1_fb2')
        fb_s()
        F('s_waitcnt vmcnt(0)')
        fb_mf()
        for j in range(2):
            for s_ in p_ops(0, j): F(s_)
        F('s_nop 15')
        for j in range(2):
            F(f's_add_u32 s42, s41, {4096*j}')
            for mt in range(4):
                for e in range(8):
                    F(f'buffer_load_ushort v{KFb+8*mt+e}, v{vM}, s[{sV}:{sV+3}], s42 offen offset:{(8*(e >> 2) + (e & 3))*256 + 64*mt}')
            F('s_waitcnt vmcnt(0)')
            for i in range(16):
                F(f'v_lshl_or_b32 v{VFb+i}, v{KFb+2*i+1}, 16, v{KFb+2*i}')
            for mt in range(4):
                d = ACC + 16*mt
                F(f'v_mfma_f32_32x32x16_bf16 v[{d}:{d+15}], v[{VFb+4*mt}:{VFb+4*mt+3}], v[{St+8*j}:{St+8*j+3}], v[{d}:{d+15}]')
            F('s_nop 15')
        F('s_add_u32 s41, s41, 8192')
        F('s_add_u32 s40, s40, 1')
        F('s_cmp_lt_u32 s40, 16')
        F('s_nop 15'); F('s_nop 15')
        F('s_cbranch_scc1 K1_fb2')
        for s_ in lred: F(s_)
        F('s_nop 15'); F('s_nop 15')
        F('s_branch K1_fbr')
        rare_v = list(f.out)
    F(f's_sub_u32 s42, s{sBV}, s{sW4K}')
    F('s_mov_b32 s40, 0')
    f.label('K1_fb2')
    fb_s()
    F('s_add_u32 s43, s42, 4096')
    for j in range(2):
        for mt in range(4):
            d = VFb + 16*j + 4*mt
            F(f'buffer_load_dwordx4 v[{d}:{d+3}], v{vLANE16}, s[{sWS}:{sWS+3}], s{42+j} offen offset:{1024*mt}')
    F('s_waitcnt vmcnt(0)')
    fb_mf()
    for j in range(2):
        for s_ in p_ops(0, j): F(s_)
    for j in range(2):
        for mt in range(4):
            d = ACC + 16*mt
            F(f'v_mfma_f32_32x32x16_bf16 v[{d}:{d+15}], v[{VFb+16*j+4*mt}:{VFb+16*j+4*mt+3}], v[{St+8*j}:{St+8*j+3}], v[{d}:{d+15}]')
    F('s_add_u32 s41, s41, 8192')
    F('s_add_u32 s42, s42, 8192')
    F('s_add_u32 s40, s40, 1')
    F('s_cmp_lt_u32 s40, 16')
    F('s_nop 15'); F('s_nop 15')
    F('s_cbranch_scc1 K1_fb2')
    for s_ in lred: F(s_)
    F('s_nop 15'); F('s_nop 15')
    F('s_branch K1_fbr')
    rare = rare_v if VTR else f.out
    st()
    OWN = 32; ACC4 = 64
    def norm(q):
        L = []
        for j in range(4*q, 4*q+4):
            L.append(f'v_mul_f32 v{ACC+2*j}, v{ACC+2*j}, v{vL[0]}')
            L.append(f'v_mul_f32 v{ACC+2*j+1}, v{ACC+2*j+1}, v{vL[0]}')
        for j in range(4*q, 4*q+4):
            L.append(f'v_cvt_pk_bf16_f32 v{OWN+j}, v{ACC+2*j}, v{ACC+2*j+1}')
        L.append(f'ds_write_b128 v{vKA[0]}, v[{OWN+4*q}:{OWN+4*q+3}] offset:{(q >> 2)*32768 + 1024*(q & 3)}')
        return L
    for q in range(4):
        for s in norm(q): I(s)
    I('s_waitcnt lgkmcnt(0)')
    I('s_barrier')
    if R16:
        for fr in plan4[1][-1]:
            if fr[1] == 'B':
                for s in ld16(1, fr, plan4[2]): I(s)
    else:
        for s in ([b_read(0, 0), b_read(0, 1)] if not SK else [b_read(0, 0)]): I(s)
    for s in norm(4): I(s)
    st()
    side = {0: norm(5), 1: norm(6), 2: norm(7)}
    addr = [f's_lshl_b32 s{t0}, s{sG}, 21\ns_lshl_b32 s{t1}, s{sRB}, 16\ns_add_u32 s{t0}, s{t0}, s{t1}\ns_add_u32 s{t0}, s{t0}, s{sW4K}\ns_add_u32 s{t0}, s{t0}, {WS_P:#x}\ns_add_u32 s{t1}, s{t0}, 32768']
    side[3] = addr
    if C3:
        side[X.get('c3k', 6)] = c3p; side[X.get('c3k', 6) + 2] = c3q
    if C3 == 2:
        k_ = X.get('m2k', 10)
        side[k_] = m2a; side[k_+1] = m2b[:8]; side[k_+2] = m2b[8:]; side[k_+3] = m2c[:8]; side[k_+4] = m2c[8:]; side[k_+5] = m2d
    def stq(q):
        so = f's{t0}' if q < 4 else f's{t1}'
        return [f'v_cvt_pk_bf16_f32 v{OWN+j}, v{ACC4+2*j}, v{ACC4+2*j+1}' for j in range(4*q, 4*q+4)] + \
               [f'buffer_store_dwordx4 v[{OWN+4*q}:{OWN+4*q+3}], v{vLANE16}, s[{sWS}:{sWS+3}], {so} offen offset:{1024*(q%4)}']
    if R16:
        gemm16(1, ACC4, {}, side, {x2at}, plan4)
    elif SK:
        gemm_skew(ACC4, side, {5}, stq(0) + stq(1) + stq(2) + stq(3))
    else:
        gemm_phase(1, ACC4, {}, side, set() if 'nox2' in X else ({X['x2at']} if isinstance(X, dict) and 'x2at' in X else {5}))
    st()
    pace = X.get('pace') if isinstance(X, dict) else None
    def stores(pc):
        for j in range(16 if SK else 0, 32):
            I(f'v_cvt_pk_bf16_f32 v{OWN+j}, v{ACC4+2*j}, v{ACC4+2*j+1}')
            if j % 4 == 3:
                q = j // 4
                so = f's{t0}' if q < 4 else f's{t1}'
                if pc is not None and q > pc: I(f's_waitcnt vmcnt({pc})')
                I(f'buffer_store_dwordx4 v[{OWN+4*q}:{OWN+4*q+3}], v{vLANE16}, s[{sWS}:{sWS+3}], {so} offen offset:{1024*(q%4)}')
    if R16:
        pk = pack16(OWN, ACC4, 0) + pack16(OWN+16, ACC4, 1)
        for s in pk[0][:4]: I(s)
        for q in range(8):
            if q < 7:
                for s in pk[q+1][:4]: I(s)
            for s in pk[q][4:]: I(s)
            so = f's{t0}' if q < 4 else f's{t1}'
            I(f'buffer_store_dwordx4 v[{OWN+4*q}:{OWN+4*q+3}], v{vLANE16}, s[{sWS}:{sWS+3}], {so} offen offset:{1024*(q%4)}')
    elif pace is not None:
        I(f's_cmp_ge_u32 s{sW}, 4')
        I('s_cbranch_scc1 K1_st2')
        I('s_nop 15')
        stores(pace)
        I('s_branch K1_st3')
        a.label('K1_st2')
        I('s_nop 15')
        stores(None)
        a.label('K1_st3')
    else:
        stores(None)
    if stamps:
        I(f'v_lshrrev_b32 v{vT3}, 4, v{vLANE16}')
        st.flush(sWS, sW, 200, vT3)
    a.label('K1_end')
    I('s_endpgm')
    a.out += rare
    print("K1 instrs", a.ninstr, "nops", a.nnop)
    return a.text(), kernel_desc(name, 256, 102)
```

```python
from common import *

LOG2E = 1.4426950408889634
def gelu_ops(x, t, sC0, sC1):
    return [
        f'v_mul_f32 v{t}, v{x}, v{x}',
        f'v_fma_f32 v{t}, v{t}, {sC1}, {sC0}',
        f'v_mul_f32 v{t}, v{t}, v{x}',
        f'v_exp_f32 v{t}, v{t}',
        f'v_add_f32 v{t}, 1.0, v{t}',
        f'v_rcp_f32 v{t}, v{t}',
        f'v_mul_f32 v{x}, v{x}, v{t}',
    ]

def ident_frags(a, lane, A0, A1, t0, t1, t2):
    I = a.I
    I(f'v_and_b32 v{t0}, 31, v{lane}')
    I(f'v_and_b32 v{t1}, 0x13, v{t0}')
    I(f'v_bfe_u32 v{t2}, v{t0}, 2, 1')
    I(f'v_lshl_or_b32 v{t1}, v{t2}, 3, v{t1}')
    I(f'v_bfe_u32 v{t2}, v{t0}, 3, 1')
    I(f'v_lshl_or_b32 v{t1}, v{t2}, 2, v{t1}')
    I(f'v_lshrrev_b32 v{t0}, 5, v{lane}')
    I(f'v_lshlrev_b32 v{t0}, 3, v{t0}')
    I(f'v_sub_u32 v{t1}, v{t1}, v{t0}')
    for which, A in ((0, A0), (1, A1)):
        for dw in range(4):
            I(f'v_mov_b32 v{A+dw}, 0')
            I(f'v_cmp_eq_u32 vcc, {16*which + 2*dw}, v{t1}')
            I(f'v_mov_b32 v{t2}, 0x3f80')
            I(f'v_cndmask_b32 v{A+dw}, v{A+dw}, v{t2}, vcc')
            I(f'v_cmp_eq_u32 vcc, {16*which + 2*dw + 1}, v{t1}')
            I(f'v_mov_b32 v{t2}, 0x3f800000')
            I(f'v_cndmask_b32 v{A+dw}, v{A+dw}, v{t2}, vcc')

def half_sum(a, r, t):
    a.I(f'v_mov_b32 v{t}, v{r}')
    a.I(f'v_permlane32_swap_b32 v{r}, v{t}')
    a.I(f'v_add_f32 v{r}, v{r}, v{t}')

def ln_rstd(a, var, mean):
    rnd_bf16(a, mean, mean)
    rnd_bf16(a, var, var)
    a.I(f'v_add_f32 v{var}, {f32bits(1e-5):#x}, v{var}')
    rnd_bf16(a, var, var)
    a.I(f'v_sqrt_f32 v{var}, v{var}')
    rnd_bf16(a, var, var)
    a.I(f'v_rcp_f32 v{var}, v{var}')

def gen_k2(name, stamps=False, X={}):
    a = Asm()
    st = Stamper(a, stamps, 2)
    kernel_header(a, name)
    inj = {'q': [], 'n': 0, 'step': X.get('step', 6)}
    def I(t):
        a.I(t)
        if inj['q']:
            inj['n'] += 1
            if inj['n'] % inj['step'] == 0: a.I(inj['q'].pop(0))
    class AW_:
        pass
    aw = AW_(); aw.I = I
    L_HB, L_S2, L_S3 = 0, 16384, 17408
    vLANE, vL16 = 1, 2
    vFO = 3
    A0, A1 = 4, 8
    T = [12,13,14,15,16,17,18,19]
    XR = 20
    U = 28
    GA = 32; D = 48; TB = 64; SB = 80
    P = 64
    AW = 160
    I('s_cmp_ge_u32 s2, 256')
    I('s_cbranch_scc1 K2_end')
    I(f's_load_dwordx2 s[24:25], s[0:1], {KA_WS}')
    I(f's_load_dwordx2 s[8:9], s[0:1], {KA_X}')
    if X.get('pf3') or X.get('pf4'):
        I(f's_load_dwordx2 s[56:57], s[0:1], {KA_W3}')
        I(f's_load_dwordx2 s[60:61], s[0:1], {KA_W4}')
    I(f'v_and_b32 v{vLANE}, 63, v0')
    I('v_lshrrev_b32 v3, 6, v0')
    I('s_nop 0')
    I('v_readfirstlane_b32 s34, v3')
    I('s_and_b32 s35, s2, 7')
    I('s_lshr_b32 s36, s2, 3')
    I('s_lshl_b32 s35, s35, 4')
    I('s_lshr_b32 s37, s36, 1')
    I('s_add_u32 s35, s35, s37')
    I('s_and_b32 s36, s36, 1')
    I(f'v_lshlrev_b32 v{vL16}, 4, v{vLANE}')
    I(f'v_and_b32 v{T[0]}, 15, v{vLANE}')
    I(f'v_bfe_u32 v{T[1]}, v{vLANE}, 4, 1')
    I(f'v_lshrrev_b32 v{T[2]}, 5, v{vLANE}')
    I(f'v_lshl_add_u32 v{vFO}, v{T[2]}, 5, v{T[0]}')
    I('s_and_b32 s37, s35, 1')
    I('s_lshl_b32 s37, s37, 4')
    I(f'v_add_u32 v{vFO}, s37, v{vFO}')
    I(f'v_lshlrev_b32 v{vFO}, 4, v{vFO}')
    I(f'v_lshl_add_u32 v{vFO}, v{T[1]}, 10, v{vFO}')
    for d, n in ((8, 2048*1024), (24, WS_SIZE)):
        I(f's_mov_b32 s{d+2}, {n:#x}'); I(f's_mov_b32 s{d+3}, 0x00020000')
    I('s_lshr_b32 s40, s35, 1')
    I('s_lshl_b32 s40, s40, 15')
    I('s_lshl_b32 s41, s34, 12')
    I('s_add_u32 s41, s40, s41')
    I(f's_add_u32 s42, s41, {WS_P:#x}')
    pl = []
    for g in range(8):
        for f in range(2):
            r = P + 8*g + 4*f
            pl.append(f's_add_u32 s43, s42, {g*2097152:#x}\nbuffer_load_dwordx4 v[{r}:{r+3}], v{vFO}, s[24:27], s43 offen offset:{2048*f}')
    if X.get('half'):
        I('s_lshl_b32 s43, s36, 23')
        I('s_add_u32 s42, s42, s43')
        pl = pl[:8]
    I('s_waitcnt lgkmcnt(0)')
    st.first()
    NP0 = X.get('np0', 2); NA0 = X.get('na0', 28)
    for s in pl[:NP0]: I(s)
    I(f'v_lshlrev_b32 v{T[3]}, 10, v{T[0]}')
    I(f'v_lshl_add_u32 v{T[3]}, v{T[1]}, 5, v{T[3]}')
    I(f'v_lshl_add_u32 v{T[3]}, v{T[2]}, 4, v{T[3]}')
    I('s_lshl_b32 s43, s35, 14')
    I('s_lshl_b32 s44, s34, 7')
    I('s_add_u32 s43, s43, s44')
    for f in range(2):
        I(f'buffer_load_dwordx4 v[{XR+4*f}:{XR+4*f+3}], v{T[3]}, s[8:11], s43 offen offset:{64*f}')
    I(f'v_lshlrev_b32 v{T[4]}, 6, v{T[1]}')
    I(f'v_lshl_add_u32 v{T[4]}, v{T[2]}, 5, v{T[4]}')
    I('s_lshl_b32 s44, s34, 8')
    I(f's_add_u32 s44, s44, {WS_MOD:#x}')
    def modloads(lst):
        L = []
        for vec, base in lst:
            for f in range(2):
                for h2 in range(2):
                    r = base + 8*f + 4*h2
                    L.append(f's_add_u32 s43, s44, {2048*vec}\nbuffer_load_dwordx4 v[{r}:{r+3}], v{T[4]}, s[24:27], s43 offen offset:{128*f + 16*h2}')
        return L
    for s in modloads([(0, GA)]): I(s)
    I('s_lshl_b32 s45, s36, 3')
    I('s_add_u32 s45, s45, s34')
    I('s_lshl_b32 s46, s45, 15')
    I(f's_add_u32 s46, s46, {WS_W1P:#x}')
    aloads = []
    for ks in range(16):
        for Tt in range(2):
            idx = 2*ks + Tt
            aloads.append(f's_add_u32 s47, s46, {Tt*16384 + (ks//4)*4096}\nbuffer_load_dwordx4 a[{4*idx}:{4*idx+3}], v{vL16}, s[24:27], s47 offen offset:{1024*(ks%4)}')
    SPR = X.get('spr', 0)
    if SPR:
        for Tt in range(2):
            for k4 in range(4): I(f's_add_u32 s{56+4*Tt+k4}, s46, {Tt*16384 + k4*4096}')
        aloads = [f'buffer_load_dwordx4 a[{4*(2*ks+Tt)}:{4*(2*ks+Tt)+3}], v{vL16}, s[24:27], s{56+4*Tt+ks//4} offen offset:{1024*(ks%4)}' for ks in range(16) for Tt in range(2)]
    for s in merge(pl[NP0:], aloads[:NA0]): I(s)
    ident_frags(a, vLANE, A0, A1, T[5], T[6], T[7])
    I('s_mov_b32 s52, 0xffff0000')
    I('s_mov_b32 s53, 0x3f803f80')
    NA1 = X.get('na1', 32)
    for s in aloads[NA0:NA1]: I(s)
    st()
    red = []
    first = True
    for g in range(8):
        for f in range(2):
            r = P + 8*g + 4*f
            A = A0 if f == 0 else A1
            cc = '0' if first else f'v[{D}:{D+15}]'
            red.append(f'v_mfma_f32_32x32x16_bf16 v[{D}:{D+15}], v[{A}:{A+3}], v[{r}:{r+3}], {cc}')
            first = False
    for s in red: I(s)
    x1o = []
    for e in range(0, 16, 2):
        r = D + e; u = U + 2*((e//2) % 2); xr = XR + e//2
        x1o.append(f'v_lshlrev_b32 v{u}, 16, v{xr}')
        x1o.append(f'v_and_b32 v{u+1}, s52, v{xr}')
        x1o.append(f'v_pk_fma_f32 v[{r}:{r+1}], v[{r}:{r+1}], v[{GA+e}:{GA+e+1}], v[{u}:{u+1}]')
        x1o.append(f'v_cvt_pk_bf16_f32 v{xr}, v{r}, v{r+1}')
        x1o.append(f'v_lshlrev_b32 v{r}, 16, v{xr}')
        x1o.append(f'v_and_b32 v{r+1}, s52, v{xr}')
    I('s_nop 7')
    CS = A0 if X.get('cse', 1) else D + 8
    csl = [f'v_lshrrev_b32 v{T[1]}, 4, v{vLANE}\nv_lshlrev_b32 v{T[1]}, 5, v{T[1]}\ns_lshl_b32 s48, s45, 7\ns_add_u32 s48, s48, {WS_CS1:#x}']
    for h2 in range(2):
        csl.append(f'buffer_load_dwordx4 v[{CS+4*h2}:{CS+4*h2+3}], v{T[1]}, s[24:27], s48 offen offset:{16*h2}')
    if SPR:
        nx = X.get('nx', 24)
        for s in merge(x1o[:nx], modloads([(2, TB), (1, SB)]) + (csl if X.get('cse', 1) else [])): I(s)
        inj['q'] = list(aloads[NA1:])
        for s in x1o[nx:]: I(s)
    else:
        for s in merge(x1o, modloads([(2, TB), (1, SB)]) + (csl if X.get('cse', 1) else []) + aloads[NA1:]): I(s)
    st()
    def stats_local(mean, var):
        I(f'v_mov_b32 v{mean}, 0'); I(f'v_mov_b32 v{var}, 0'); I(f'v_mov_b32 v{T[6]}, 0'); I(f'v_mov_b32 v{T[7]}, 0')
        for j in range(0, 8, 2):
            I(f'v_dot2_f32_bf16 v{mean}, v{XR+j}, s53, v{mean}')
            I(f'v_dot2_f32_bf16 v{var}, v{XR+j}, v{XR+j}, v{var}')
            I(f'v_dot2_f32_bf16 v{T[6]}, v{XR+j+1}, s53, v{T[6]}')
            I(f'v_dot2_f32_bf16 v{T[7]}, v{XR+j+1}, v{XR+j+1}, v{T[7]}')
        I('s_nop 2')
        I(f'v_add_f32 v{mean}, v{mean}, v{T[6]}')
        I(f'v_add_f32 v{var}, v{var}, v{T[7]}')
        for op in ('v_permlane16_swap_b32', 'v_permlane32_swap_b32'):
            I(f'v_mov_b32 v{T[6]}, v{mean}'); I(f'v_mov_b32 v{T[7]}, v{var}')
            I(f'{op} v{mean}, v{T[6]}'); I(f'{op} v{var}, v{T[7]}')
            I(f'v_add_f32 v{mean}, v{mean}, v{T[6]}'); I(f'v_add_f32 v{var}, v{var}, v{T[7]}')
    def stats_write(area, mean, var):
        I(f'v_lshlrev_b32 v{T[5]}, 3, v{T[0]}')
        I('s_lshl_b32 s48, s34, 7')
        I(f's_add_u32 s48, s48, {area}')
        I(f'v_add_u32 v{T[6]}, s48, v{T[5]}')
        I(f'ds_write_b64 v{T[6]}, v[{mean}:{var}]')
    def stats_read(area, mean, var, R):
        for w in range(8):
            I(f'ds_read_b64 v[{R+2*w}:{R+2*w+1}], v{T[5]} offset:{area + 128*w}')
        for stp in (4, 2, 1):
            for w in range(stp):
                I(f'v_pk_add_f32 v[{R+2*w}:{R+2*w+1}], v[{R+2*w}:{R+2*w+1}], v[{R+2*(w+stp)}:{R+2*(w+stp)+1}]')
        I(f'v_mul_f32 v{mean}, {f32bits(1.0/512):#x}, v{R}')
        I(f'v_mul_f32 v{var}, {f32bits(1.0/512):#x}, v{R+1}')
        I(f'v_fma_f32 v{var}, -v{mean}, v{mean}, v{var}')
        I(f'v_max_f32 v{var}, 0, v{var}')
        ln_rstd(aw, var, mean)
    M, V = T[2], T[3]
    stats_local(M, V)
    stats_write(L_S2, M, V)
    I('s_lshr_b32 s47, s34, 2')
    I('s_cmp_eq_u32 s47, s36')
    I('s_cselect_b32 s54, 0, 0x10000000')
    I(f's_add_u32 s43, s41, {WS_X1:#x}')
    I('s_add_u32 s43, s43, s54')
    for f in range(2):
        I(f'buffer_store_dwordx4 v[{XR+4*f}:{XR+4*f+3}], v{vFO}, s[24:27], s43 offen offset:{2048*f}')
    if X.get('pf3', 0):
        I(f's_mov_b32 s58, {512*3584}'); I('s_mov_b32 s59, 0x00020000')
        I(f'v_and_b32 v{U}, 31, v{vLANE}')
        I(f'v_min_u32 v{U}, 13, v{U}')
        I(f'v_lshlrev_b32 v{U}, 7, v{U}')
        I(f'v_lshrrev_b32 v{U+1}, 5, v{vLANE}')
        I(f'v_mad_u32_u24 v{U}, v{U+1}, s58, v{U}') if False else I(f'v_mul_u32_u24 v{U+1}, 3584, v{U+1}')
        I(f'v_add_u32 v{U}, v{U}, v{U+1}')
        I('s_lshr_b32 s64, s2, 3'); I('s_lshl_b32 s64, s64, 3'); I('s_add_u32 s64, s64, s34'); I(f's_mul_i32 s64, s64, {2*3584}')
        I('s_and_b32 s65, s2, 1'); I('s_mul_i32 s65, s65, 1792'); I('s_add_u32 s64, s64, s65')
        I(f'buffer_load_dword v0, v{U}, s[56:59], s64 offen')
    if X.get('pf4', 0):
        I(f's_mov_b32 s62, {1792*1024}'); I('s_mov_b32 s63, 0x00020000')
        I(f'v_min_u32 v{U+2}, 55, v{vLANE}')
        I(f'v_lshlrev_b32 v{U+2}, 7, v{U+2}')
        I('s_lshr_b32 s64, s2, 3'); I('s_lshl_b32 s64, s64, 3'); I('s_add_u32 s64, s64, s34'); I(f's_mul_i32 s64, s64, 7168')
        I(f'buffer_load_dword v4, v{U+2}, s[60:63], s64 offen')
    I('s_waitcnt lgkmcnt(0)')
    I('s_barrier')
    stats_read(L_S2, M, V, GA)
    st()
    I(f'v_sub_f32 v{U}, 0, v{M}'); I(f'v_sub_f32 v{U+1}, 0, v{M}')
    I(f'v_mov_b32 v{U+2}, v{V}'); I(f'v_mov_b32 v{U+3}, v{V}')
    for e in range(0, 16, 2):
        r = D + e
        I(f'v_pk_add_f32 v[{r}:{r+1}], v[{r}:{r+1}], v[{U}:{U+1}]')
        I(f'v_pk_mul_f32 v[{TB+e}:{TB+e+1}], v[{TB+e}:{TB+e+1}], v[{U+2}:{U+3}]')
        I(f'v_pk_fma_f32 v[{r}:{r+1}], v[{r}:{r+1}], v[{TB+e}:{TB+e+1}], v[{SB+e}:{SB+e+1}]')
        I(f'v_cvt_pk_bf16_f32 v{XR+e//2}, v{r}, v{r+1}')
    I('s_lshl_b32 s48, s34, 11')
    I(f'v_add_u32 v{T[4]}, s48, v{vL16}')
    for f in range(2):
        I(f'ds_write_b128 v{T[4]}, v[{XR+4*f}:{XR+4*f+3}] offset:{L_HB + 1024*f}')
    stats_local(M, V)
    stats_write(L_S3, M, V)
    I(f's_add_u32 s43, s41, {WS_HB:#x}')
    I('s_add_u32 s43, s43, s54')
    for f in range(2):
        I(f'buffer_store_dwordx4 v[{XR+4*f}:{XR+4*f+3}], v{vFO}, s[24:27], s43 offen offset:{2048*f}')
    I(f'v_lshrrev_b32 v{T[4]}, 4, v{vLANE}')
    if not X.get('cse', 1):
        for s in csl: I(s)
    I('s_waitcnt lgkmcnt(0)')
    I('s_barrier')
    st()
    rest_ = inj['q']; inj['q'] = []
    print("K2 leftover A loads", len(rest_))
    for s in rest_: I(s)
    BF = P
    ACC = D
    mfs = []
    for ks in range(16):
        for Tt in range(2):
            idx = 2*ks + Tt
            b = ACC + 4*Tt
            cc = '0' if ks == 0 else f'v[{b}:{b+3}]'
            mfs.append(f'v_mfma_f32_16x16x32_bf16 v[{b}:{b+3}], a[{4*idx}:{4*idx+3}], v[{BF+4*ks}:{BF+4*ks+3}], {cc}')
    if X.get('g2', 1):
        R = GA
        for ks in range(8):
            I(f'ds_read_b128 v[{BF+4*ks}:{BF+4*ks+3}], v{vL16} offset:{L_HB + 1024*ks}')
        rd2 = [f'ds_read_b128 v[{BF+4*ks}:{BF+4*ks+3}], v{vL16} offset:{L_HB + 1024*ks}' for ks in range(8, 16)]
        rd2 += [f'ds_read_b64 v[{R+2*w}:{R+2*w+1}], v{T[5]} offset:{L_S3 + 128*w}' for w in range(8)]
        sm = []
        for stp in (4, 2, 1):
            for w in range(stp):
                sm.append(f'v_add_f32 v{R+2*w}, v{R+2*w}, v{R+2*(w+stp)}')
                sm.append(f'v_add_f32 v{R+2*w+1}, v{R+2*w+1}, v{R+2*(w+stp)+1}')
        sm += [f'v_mul_f32 v{M}, {f32bits(1.0/512):#x}, v{R}', f'v_mul_f32 v{V}, {f32bits(1.0/512):#x}, v{R+1}', f'v_fma_f32 v{V}, -v{M}, v{M}, v{V}', f'v_max_f32 v{V}, 0, v{V}',
               f'v_cvt_pk_bf16_f32 v{M}, 0, v{M}', f'v_cvt_pk_bf16_f32 v{V}, 0, v{V}', f'v_add_f32 v{V}, {f32bits(1e-5):#x}, v{V}', f'v_cvt_pk_bf16_f32 v{V}, 0, v{V}',
               f'v_sqrt_f32 v{V}, v{V}', f'v_cvt_pk_bf16_f32 v{V}, 0, v{V}', f'v_rcp_f32 v{V}, v{V}']
        for s in merge(mfs[:12], rd2): I(s)
        for s in merge(mfs[12:], sm): I(s)
    else:
        for ks in range(16):
            I(f'ds_read_b128 v[{BF+4*ks}:{BF+4*ks+3}], v{vL16} offset:{L_HB + 1024*ks}')
        stats_read(L_S3, M, V, GA)
        for s in mfs: I(s)
    st()
    c0 = -2.0 * (2.0/3.141592653589793) ** 0.5 * LOG2E
    I(f's_mov_b32 s50, {f32bits(c0*0.044715):#x}')
    I(f'v_mov_b32 v{T[7]}, {f32bits(c0):#x}')
    ep = []
    for e in range(8):
        r = ACC + e
        L = [f'v_fma_f32 v{r}, -v{M}, v{CS+e}, v{r}', f'v_mul_f32 v{r}, v{r}, v{V}']
        L += gelu_ops(r, GA + e, 'v%d' % T[7], 's50')
        ep.append(L)
    for j in range(len(ep[0])):
        for L in ep: I(L[j])
    for j in range(4):
        I(f'v_cvt_pk_bf16_f32 v{XR+j}, v{ACC+2*j}, v{ACC+2*j+1}')
    I(f'v_and_b32 v{T[1]}, 1, v{T[4]}')
    I(f'v_lshl_add_u32 v{T[1]}, v{T[1]}, 5, v{T[0]}')
    I(f'v_add_u32 v{T[1]}, s37, v{T[1]}')
    I(f'v_lshlrev_b32 v{T[1]}, 4, v{T[1]}')
    I(f'v_lshrrev_b32 v{T[5]}, 1, v{T[4]}')
    I(f'v_lshl_add_u32 v{T[1]}, v{T[5]}, 10, v{T[1]}')
    I('s_lshl_b32 s48, s45, 11')
    I('s_add_u32 s48, s48, s40')
    I(f's_add_u32 s48, s48, {WS_T:#x}')
    I(f'buffer_store_dwordx4 v[{XR}:{XR+3}], v{T[1]}, s[24:27], s48 offen')
    st.flush(24, 34, 100, vLANE)
    a.label('K2_end')
    I('s_endpgm')
    print("K2 instrs", a.ninstr, "nops", a.nnop)
    return a.text(), kernel_desc(name, 256, 96, accum=128)
```

```python
from common import *
from k2 import *

def gen_k2n(name, stamps=False, X={}):
    a = Asm()
    st = Stamper(a, stamps, 2)
    kernel_header(a, name)
    inj = {'q': [], 'n': 0, 'step': X.get('step', 6)}
    def I(t):
        a.I(t)
        if inj['q']:
            inj['n'] += 1
            if inj['n'] % inj['step'] == 0: a.I(inj['q'].pop(0))
    class AW_:
        pass
    aw = AW_(); aw.I = I
    L_HB, L_S2, L_S3 = 0, 16384, 17408
    vLANE, vL16 = 1, 2
    vFO = 3
    A0, A1 = 4, 8
    T = [12,13,14,15,16,17,18,19]
    XR = 20
    U = 28
    GA = 32; D = 48; TB = 64; SB = 80
    P = 64
    AW = 160
    I('s_cmp_ge_u32 s2, 256')
    I('s_cbranch_scc1 K2_end')
    I(f's_load_dwordx2 s[24:25], s[0:1], {KA_WS}')
    I(f's_load_dwordx2 s[8:9], s[0:1], {KA_X}')
    if X.get('pf3') or X.get('pf4'):
        I(f's_load_dwordx2 s[56:57], s[0:1], {KA_W3}')
        I(f's_load_dwordx2 s[60:61], s[0:1], {KA_W4}')
    I(f'v_and_b32 v{vLANE}, 63, v0')
    I('v_lshrrev_b32 v3, 6, v0')
    I('s_nop 0')
    I('v_readfirstlane_b32 s34, v3')
    I('s_and_b32 s35, s2, 7')
    I('s_lshr_b32 s36, s2, 3')
    I('s_lshl_b32 s35, s35, 4')
    I('s_lshr_b32 s37, s36, 1')
    I('s_add_u32 s35, s35, s37')
    I('s_and_b32 s36, s36, 1')
    I(f'v_lshlrev_b32 v{vL16}, 4, v{vLANE}')
    I(f'v_and_b32 v{T[0]}, 15, v{vLANE}')
    I(f'v_bfe_u32 v{T[1]}, v{vLANE}, 4, 1')
    I(f'v_lshrrev_b32 v{T[2]}, 5, v{vLANE}')
    I(f'v_lshl_add_u32 v{vFO}, v{T[2]}, 5, v{T[0]}')
    I('s_and_b32 s37, s35, 1')
    I('s_lshl_b32 s37, s37, 4')
    I(f'v_add_u32 v{vFO}, s37, v{vFO}')
    I(f'v_lshlrev_b32 v{vFO}, 4, v{vFO}')
    I(f'v_lshl_add_u32 v{vFO}, v{T[1]}, 10, v{vFO}')
    for d, n in ((8, 2048*1024), (24, WS_SIZE)):
        I(f's_mov_b32 s{d+2}, {n:#x}'); I(f's_mov_b32 s{d+3}, 0x00020000')
    I('s_lshr_b32 s40, s35, 1')
    I('s_lshl_b32 s40, s40, 15')
    I('s_lshl_b32 s41, s34, 12')
    I('s_add_u32 s41, s40, s41')
    I(f's_add_u32 s42, s41, {WS_P:#x}')
    pl = []
    for g in range(8):
        for f in range(2):
            r = P + 8*g + 4*f
            pl.append(f's_add_u32 s43, s42, {g*2097152:#x}\nbuffer_load_dwordx4 v[{r}:{r+3}], v{vFO}, s[24:27], s43 offen offset:{2048*f}')
    if X.get('half'):
        I('s_lshl_b32 s43, s36, 23')
        I('s_add_u32 s42, s42, s43')
        pl = pl[:8]
    I('s_waitcnt lgkmcnt(0)')
    st.first()
    X0 = X
    def body(X, pl):
        inj['q'] = []; inj['n'] = 0; inj['step'] = X.get('step', 6)
        NP0 = X.get('np0', 2); NA0 = X.get('na0', 28)
        M2 = X.get('m2', 0)
        MPR = 32
        if M2:
            I(f'v_lshrrev_b32 v{U}, 4, v{vLANE}')
            I(f'v_lshlrev_b32 v{U+1}, 13, v{U}')
            I(f'v_lshl_add_u32 v{U+1}, v{T[0]}, 4, v{U+1}')
            I('s_lshl_b32 s44, s34, 8')
            I(f's_add_u32 s43, s44, {WS_M2P:#x}')
            I('s_cmp_eq_u32 s2, 0')
            I('s_cselect_b32 s55, 0, 0x10000000')
            for vec in range(4):
                for h in range(2):
                    r = MPR + 8*vec + 4*h
                    I(f's_add_u32 s48, s43, {32768*h + 4096*(vec >> 1)}')
                    if vec == 3: I('s_add_u32 s48, s48, s55')
                    I(f'buffer_load_dwordx4 v[{r}:{r+3}], v{U+1}, s[24:27], s48 offen offset:{2048*(vec & 1)}')
            I(f'v_lshl_add_u32 v{U}, v{T[0]}, 2, v{U}')
            I(f'v_lshlrev_b32 v{U}, 2, v{U}')
            I('s_lshl_b32 s48, s34, 11')
            I(f'v_add_u32 v{U+1}, s48, v{U}')
        for s in pl[:NP0]: I(s)
        I(f'v_lshlrev_b32 v{T[3]}, 10, v{T[0]}')
        I(f'v_lshl_add_u32 v{T[3]}, v{T[1]}, 5, v{T[3]}')
        I(f'v_lshl_add_u32 v{T[3]}, v{T[2]}, 4, v{T[3]}')
        I('s_lshl_b32 s43, s35, 14')
        I('s_lshl_b32 s44, s34, 7')
        I('s_add_u32 s43, s43, s44')
        for f in range(2):
            I(f'buffer_load_dwordx4 v[{XR+4*f}:{XR+4*f+3}], v{T[3]}, s[8:11], s43 offen offset:{64*f}')
        I(f'v_lshlrev_b32 v{T[4]}, 6, v{T[1]}')
        I(f'v_lshl_add_u32 v{T[4]}, v{T[2]}, 5, v{T[4]}')
        I('s_lshl_b32 s44, s34, 8')
        I(f's_add_u32 s44, s44, {WS_MOD:#x}')
        def modloads(lst):
            L = []
            for vec, base in lst:
                for f in range(2):
                    for h2 in range(2):
                        r = base + 8*f + 4*h2
                        L.append(f's_add_u32 s43, s44, {2048*vec}\nbuffer_load_dwordx4 v[{r}:{r+3}], v{T[4]}, s[24:27], s43 offen offset:{128*f + 16*h2}')
            return L
        if M2:
            I('s_lshl_b32 s48, s34, 11')
            I(f'v_add_u32 v{T[4]}, s48, v{T[4]}')
            def modloads(lst):
                return [f'ds_read_b128 v[{base+8*f+4*h2}:{base+8*f+4*h2+3}], v{T[4]} offset:{256*vec + 128*f + 16*h2}' for vec, base in lst for f in range(2) for h2 in range(2)]
            def modfin():
                R_ = [MPR + 8*vec for vec in range(4)]
                for r in R_:
                    I(f'v_pk_add_f32 v[{r}:{r+1}], v[{r}:{r+1}], v[{r+4}:{r+5}]')
                    I(f'v_pk_add_f32 v[{r+2}:{r+3}], v[{r+2}:{r+3}], v[{r+6}:{r+7}]')
                for r in R_:
                    I(f'v_permlane32_swap_b32 v{r}, v{r+2}'); I(f'v_permlane32_swap_b32 v{r+1}, v{r+3}')
                for r in R_: I(f'v_pk_add_f32 v[{r}:{r+1}], v[{r}:{r+1}], v[{r+2}:{r+3}]')
                for r in R_: I(f'v_permlane16_swap_b32 v{r}, v{r+1}')
                for r in R_: I(f'v_add_f32 v{r}, v{r}, v{r+1}')
                for r in R_: I(f'v_cvt_pk_bf16_f32 v{r}, 0, v{r}')
                I(f'v_add_f32 v{R_[2]}, 1.0, v{R_[2]}')
                I(f'ds_write_b32 v{U+1}, v{R_[0]}')
                I(f'v_cvt_pk_bf16_f32 v{R_[2]}, 0, v{R_[2]}')
                I(f'ds_write_b32 v{U+1}, v{R_[1]} offset:256')
                I(f'ds_write_b32 v{U+1}, v{R_[2]} offset:512')
                I(f's_add_u32 s48, s44, s55')
                I(f's_add_u32 s48, s48, 6144')
                I(f'buffer_store_dword v{R_[3]}, v{U}, s[24:27], s48 offen sc0 sc1')
                for s in modloads([(0, GA)]): I(s)
        else:
            for s in modloads([(0, GA)]): I(s)
        I('s_lshl_b32 s45, s36, 3')
        I('s_add_u32 s45, s45, s34')
        I('s_lshl_b32 s46, s45, 15')
        I(f's_add_u32 s46, s46, {WS_W1P:#x}')
        aloads = []
        for ks in range(16):
            for Tt in range(2):
                idx = 2*ks + Tt
                aloads.append(f's_add_u32 s47, s46, {Tt*16384 + (ks//4)*4096}\nbuffer_load_dwordx4 a[{4*idx}:{4*idx+3}], v{vL16}, s[24:27], s47 offen offset:{1024*(ks%4)}')
        SPR = X.get('spr', 0)
        if SPR:
            for Tt in range(2):
                for k4 in range(4): I(f's_add_u32 s{56+4*Tt+k4}, s46, {Tt*16384 + k4*4096}')
            aloads = [f'buffer_load_dwordx4 a[{4*(2*ks+Tt)}:{4*(2*ks+Tt)+3}], v{vL16}, s[24:27], s{56+4*Tt+ks//4} offen offset:{1024*(ks%4)}' for ks in range(16) for Tt in range(2)]
        if X.get('afirst'):
            for s in aloads[:NA0]: I(s)
            for s in pl[NP0:]: I(s)
        else:
            lrest = merge(pl[NP0:], aloads[:NA0])
            MPOS = X.get('mpos', 100)
            for s in lrest[:MPOS]: I(s)
        ident_frags(a, vLANE, A0, A1, T[5], T[6], T[7])
        if M2: modfin()
        if not X.get('afirst'):
            for s in lrest[MPOS:]: I(s)
        I('s_mov_b32 s52, 0xffff0000')
        I('s_mov_b32 s53, 0x3f803f80')
        NA1 = X.get('na1', 32)
        for s in aloads[NA0:NA1]: I(s)
        st()
        red = []
        first = True
        for g in range(8):
            for f in range(2):
                r = P + 8*g + 4*f
                A = A0 if f == 0 else A1
                cc = '0' if first else f'v[{D}:{D+15}]'
                red.append(f'v_mfma_f32_32x32x16_bf16 v[{D}:{D+15}], v[{A}:{A+3}], v[{r}:{r+3}], {cc}')
                first = False
        for s in red: I(s)
        x1o = []
        for e in range(0, 16, 2):
            r = D + e; u = U + 2*((e//2) % 2); xr = XR + e//2
            x1o.append(f'v_lshlrev_b32 v{u}, 16, v{xr}')
            x1o.append(f'v_and_b32 v{u+1}, s52, v{xr}')
            x1o.append(f'v_pk_fma_f32 v[{r}:{r+1}], v[{r}:{r+1}], v[{GA+e}:{GA+e+1}], v[{u}:{u+1}]')
            x1o.append(f'v_cvt_pk_bf16_f32 v{xr}, v{r}, v{r+1}')
            x1o.append(f'v_lshlrev_b32 v{r}, 16, v{xr}')
            x1o.append(f'v_and_b32 v{r+1}, s52, v{xr}')
        I('s_nop 7')
        CS = A0 if X.get('cse', 1) else D + 8
        csl = [f'v_lshrrev_b32 v{T[1]}, 4, v{vLANE}\nv_lshlrev_b32 v{T[1]}, 5, v{T[1]}\ns_lshl_b32 s48, s45, 7\ns_add_u32 s48, s48, {WS_CS1:#x}']
        for h2 in range(2):
            csl.append(f'buffer_load_dwordx4 v[{CS+4*h2}:{CS+4*h2+3}], v{T[1]}, s[24:27], s48 offen offset:{16*h2}')
        if SPR:
            nx = X.get('nx', 24)
            for s in merge(x1o[:nx], modloads([(2, TB), (1, SB)]) + (csl if X.get('cse', 1) else [])): I(s)
            inj['q'] = list(aloads[NA1:])
            for s in x1o[nx:]: I(s)
        else:
            for s in merge(x1o, modloads([(2, TB), (1, SB)]) + (csl if X.get('cse', 1) else []) + aloads[NA1:]): I(s)
        st()
        def stats_local(mean, var):
            I(f'v_mov_b32 v{mean}, 0'); I(f'v_mov_b32 v{var}, 0'); I(f'v_mov_b32 v{T[6]}, 0'); I(f'v_mov_b32 v{T[7]}, 0')
            for j in range(0, 8, 2):
                I(f'v_dot2_f32_bf16 v{mean}, v{XR+j}, s53, v{mean}')
                I(f'v_dot2_f32_bf16 v{var}, v{XR+j}, v{XR+j}, v{var}')
                I(f'v_dot2_f32_bf16 v{T[6]}, v{XR+j+1}, s53, v{T[6]}')
                I(f'v_dot2_f32_bf16 v{T[7]}, v{XR+j+1}, v{XR+j+1}, v{T[7]}')
            I('s_nop 2')
            I(f'v_add_f32 v{mean}, v{mean}, v{T[6]}')
            I(f'v_add_f32 v{var}, v{var}, v{T[7]}')
            for op in ('v_permlane16_swap_b32', 'v_permlane32_swap_b32'):
                I(f'v_mov_b32 v{T[6]}, v{mean}'); I(f'v_mov_b32 v{T[7]}, v{var}')
                I(f'{op} v{mean}, v{T[6]}'); I(f'{op} v{var}, v{T[7]}')
                I(f'v_add_f32 v{mean}, v{mean}, v{T[6]}'); I(f'v_add_f32 v{var}, v{var}, v{T[7]}')
        def stats_write(area, mean, var):
            I(f'v_lshlrev_b32 v{T[5]}, 3, v{T[0]}')
            I('s_lshl_b32 s48, s34, 7')
            I(f's_add_u32 s48, s48, {area}')
            I(f'v_add_u32 v{T[6]}, s48, v{T[5]}')
            I(f'ds_write_b64 v{T[6]}, v[{mean}:{var}]')
        def stats_read(area, mean, var, R):
            for w in range(8):
                I(f'ds_read_b64 v[{R+2*w}:{R+2*w+1}], v{T[5]} offset:{area + 128*w}')
            for stp in (4, 2, 1):
                for w in range(stp):
                    I(f'v_pk_add_f32 v[{R+2*w}:{R+2*w+1}], v[{R+2*w}:{R+2*w+1}], v[{R+2*(w+stp)}:{R+2*(w+stp)+1}]')
            I(f'v_mul_f32 v{mean}, {f32bits(1.0/512):#x}, v{R}')
            I(f'v_mul_f32 v{var}, {f32bits(1.0/512):#x}, v{R+1}')
            I(f'v_fma_f32 v{var}, -v{mean}, v{mean}, v{var}')
            I(f'v_max_f32 v{var}, 0, v{var}')
            ln_rstd(aw, var, mean)
        M, V = T[2], T[3]
        stats_local(M, V)
        stats_write(L_S2, M, V)
        I('s_lshr_b32 s47, s34, 2')
        I('s_cmp_eq_u32 s47, s36')
        I('s_cselect_b32 s54, 0, 0x10000000')
        I(f's_add_u32 s43, s41, {WS_X1:#x}')
        I('s_add_u32 s43, s43, s54')
        for f in range(2):
            I(f'buffer_store_dwordx4 v[{XR+4*f}:{XR+4*f+3}], v{vFO}, s[24:27], s43 offen offset:{2048*f}')
        if X.get('pf3', 0):
            I(f's_mov_b32 s58, {512*3584}'); I('s_mov_b32 s59, 0x00020000')
            I(f'v_and_b32 v{U}, 31, v{vLANE}')
            I(f'v_min_u32 v{U}, 13, v{U}')
            I(f'v_lshlrev_b32 v{U}, 7, v{U}')
            I(f'v_lshrrev_b32 v{U+1}, 5, v{vLANE}')
            I(f'v_mad_u32_u24 v{U}, v{U+1}, s58, v{U}') if False else I(f'v_mul_u32_u24 v{U+1}, 3584, v{U+1}')
            I(f'v_add_u32 v{U}, v{U}, v{U+1}')
            I('s_lshr_b32 s64, s2, 3'); I('s_lshl_b32 s64, s64, 3'); I('s_add_u32 s64, s64, s34'); I(f's_mul_i32 s64, s64, {2*3584}')
            I('s_and_b32 s65, s2, 1'); I('s_mul_i32 s65, s65, 1792'); I('s_add_u32 s64, s64, s65')
            I(f'buffer_load_dword v0, v{U}, s[56:59], s64 offen')
        if X.get('pf4', 0):
            I(f's_mov_b32 s62, {1792*1024}'); I('s_mov_b32 s63, 0x00020000')
            I(f'v_min_u32 v{U+2}, 55, v{vLANE}')
            I(f'v_lshlrev_b32 v{U+2}, 7, v{U+2}')
            I('s_lshr_b32 s64, s2, 3'); I('s_lshl_b32 s64, s64, 3'); I('s_add_u32 s64, s64, s34'); I(f's_mul_i32 s64, s64, 7168')
            I(f'buffer_load_dword v4, v{U+2}, s[60:63], s64 offen')
        if X.get('bulk'):
            q_ = inj['q']; inj['q'] = []
            nb_ = X['bulk']
            if X.get('pr'): I('s_setprio 0')
            for s in q_[:nb_]: I(s)
            if X.get('pr'): I('s_setprio 3')
            I('s_waitcnt lgkmcnt(0)')
            I('s_barrier')
            inj['step'] = X.get('step2', inj['step'])
            inj['q'] = q_[nb_:]
        else:
            I('s_waitcnt lgkmcnt(0)')
            I('s_barrier')
        stats_read(L_S2, M, V, GA)
        st()
        I(f'v_sub_f32 v{U}, 0, v{M}'); I(f'v_sub_f32 v{U+1}, 0, v{M}')
        I(f'v_mov_b32 v{U+2}, v{V}'); I(f'v_mov_b32 v{U+3}, v{V}')
        for e in range(0, 16, 2):
            r = D + e
            I(f'v_pk_add_f32 v[{r}:{r+1}], v[{r}:{r+1}], v[{U}:{U+1}]')
            I(f'v_pk_mul_f32 v[{TB+e}:{TB+e+1}], v[{TB+e}:{TB+e+1}], v[{U+2}:{U+3}]')
            I(f'v_pk_fma_f32 v[{r}:{r+1}], v[{r}:{r+1}], v[{TB+e}:{TB+e+1}], v[{SB+e}:{SB+e+1}]')
            I(f'v_cvt_pk_bf16_f32 v{XR+e//2}, v{r}, v{r+1}')
        I('s_lshl_b32 s48, s34, 11')
        I(f'v_add_u32 v{T[4]}, s48, v{vL16}')
        for f in range(2):
            I(f'ds_write_b128 v{T[4]}, v[{XR+4*f}:{XR+4*f+3}] offset:{L_HB + 1024*f}')
        stats_local(M, V)
        stats_write(L_S3, M, V)
        I(f's_add_u32 s43, s41, {WS_HB:#x}')
        I('s_add_u32 s43, s43, s54')
        for f in range(2):
            I(f'buffer_store_dwordx4 v[{XR+4*f}:{XR+4*f+3}], v{vFO}, s[24:27], s43 offen offset:{2048*f}')
        I(f'v_lshrrev_b32 v{T[4]}, 4, v{vLANE}')
        if not X.get('cse', 1):
            for s in csl: I(s)
        I('s_waitcnt lgkmcnt(0)')
        I('s_barrier')
        st()
        rest_ = inj['q']; inj['q'] = []
        print("K2 leftover A loads", len(rest_))
        for s in rest_: I(s)
        BF = P
        ACC = D
        mfs = []
        for ks in range(16):
            for Tt in range(2):
                idx = 2*ks + Tt
                b = ACC + 4*Tt
                cc = '0' if ks == 0 else f'v[{b}:{b+3}]'
                mfs.append(f'v_mfma_f32_16x16x32_bf16 v[{b}:{b+3}], a[{4*idx}:{4*idx+3}], v[{BF+4*ks}:{BF+4*ks+3}], {cc}')
        if X.get('g2', 1):
            R = GA
            for ks in range(8):
                I(f'ds_read_b128 v[{BF+4*ks}:{BF+4*ks+3}], v{vL16} offset:{L_HB + 1024*ks}')
            rd2 = [f'ds_read_b128 v[{BF+4*ks}:{BF+4*ks+3}], v{vL16} offset:{L_HB + 1024*ks}' for ks in range(8, 16)]
            rd2 += [f'ds_read_b64 v[{R+2*w}:{R+2*w+1}], v{T[5]} offset:{L_S3 + 128*w}' for w in range(8)]
            sm = []
            for stp in (4, 2, 1):
                for w in range(stp):
                    sm.append(f'v_add_f32 v{R+2*w}, v{R+2*w}, v{R+2*(w+stp)}')
                    sm.append(f'v_add_f32 v{R+2*w+1}, v{R+2*w+1}, v{R+2*(w+stp)+1}')
            sm += [f'v_mul_f32 v{M}, {f32bits(1.0/512):#x}, v{R}', f'v_mul_f32 v{V}, {f32bits(1.0/512):#x}, v{R+1}', f'v_fma_f32 v{V}, -v{M}, v{M}, v{V}', f'v_max_f32 v{V}, 0, v{V}',
                   f'v_cvt_pk_bf16_f32 v{M}, 0, v{M}', f'v_cvt_pk_bf16_f32 v{V}, 0, v{V}', f'v_add_f32 v{V}, {f32bits(1e-5):#x}, v{V}', f'v_cvt_pk_bf16_f32 v{V}, 0, v{V}',
                   f'v_sqrt_f32 v{V}, v{V}', f'v_cvt_pk_bf16_f32 v{V}, 0, v{V}', f'v_rcp_f32 v{V}, v{V}']
            for s in merge(mfs[:12], rd2): I(s)
            for s in merge(mfs[12:], sm): I(s)
        else:
            for ks in range(16):
                I(f'ds_read_b128 v[{BF+4*ks}:{BF+4*ks+3}], v{vL16} offset:{L_HB + 1024*ks}')
            stats_read(L_S3, M, V, GA)
            for s in mfs: I(s)
        st()
        c0 = -2.0 * (2.0/3.141592653589793) ** 0.5 * LOG2E
        I(f's_mov_b32 s50, {f32bits(c0*0.044715):#x}')
        I(f'v_mov_b32 v{T[7]}, {f32bits(c0):#x}')
        ep = []
        for e in range(8):
            r = ACC + e
            L = [f'v_fma_f32 v{r}, -v{M}, v{CS+e}, v{r}', f'v_mul_f32 v{r}, v{r}, v{V}']
            L += gelu_ops(r, GA + e, 'v%d' % T[7], 's50')
            ep.append(L)
        for j in range(len(ep[0])):
            for L in ep: I(L[j])
        for j in range(4):
            I(f'v_cvt_pk_bf16_f32 v{XR+j}, v{ACC+2*j}, v{ACC+2*j+1}')
        I(f'v_and_b32 v{T[1]}, 1, v{T[4]}')
        I(f'v_lshl_add_u32 v{T[1]}, v{T[1]}, 5, v{T[0]}')
        I(f'v_add_u32 v{T[1]}, s37, v{T[1]}')
        I(f'v_lshlrev_b32 v{T[1]}, 4, v{T[1]}')
        I(f'v_lshrrev_b32 v{T[5]}, 1, v{T[4]}')
        I(f'v_lshl_add_u32 v{T[1]}, v{T[5]}, 10, v{T[1]}')
        I('s_lshl_b32 s48, s45, 11')
        I('s_add_u32 s48, s48, s40')
        I(f's_add_u32 s48, s48, {WS_T:#x}')
        I(f'buffer_store_dwordx4 v[{XR}:{XR+3}], v{T[1]}, s[24:27], s48 offen')
        st.flush(24, 34, 100, vLANE)
        I('s_endpgm')
    import copy
    if X0.get('pr'): I('s_setprio 3')
    I('s_cmp_ge_u32 s34, 4')
    I('s_cbranch_scc1 K2_B')
    sn = st.n
    body(dict(X0, **X0.get('A', {})), pl)
    a.raw('K2_B:')
    a.vm_q = []; a.lds_q = []; a.hist = []
    st.n = sn
    body(dict(X0, **X0.get('B', {})), pl)
    a.label('K2_end')
    I('s_endpgm')
    print("K2 instrs", a.ninstr, "nops", a.nnop)
    return a.text(), kernel_desc(name, 256, 96, accum=128)
```

```python
from common import *
from k2 import LOG2E

L_CS = 131072
L_ST = L_CS + 512
LDS4 = L_ST + 2048

def gen_k4l(name, stamps=False, X={}):
    X = dict({'hs':('01','23s','45','67'),'bs':(16,32,32),'sq':2}, **X)
    a = Asm()
    st = Stamper(a, stamps, 4)
    kernel_header(a, name)
    I = a.I
    vLANE, vL16 = 1, 2
    T = [4,5,6,7,8,9,10,11]
    AD = [12,13,14,15]
    RM = 16
    vCSA, vSTG = 20, 21
    OUTP = 24
    CS = 32
    AFR = 40
    ACC = 64
    ST = 96
    NRING = 6
    BF = 0
    I('s_cmp_ge_u32 s2, 224')
    I('s_cbranch_scc1 K4_end')
    I(f's_load_dwordx2 s[12:13], s[0:1], {KA_W3}')
    I(f's_load_dwordx2 s[24:25], s[0:1], {KA_WS}')
    I(f's_load_dwordx2 s[56:57], s[0:1], {KA_W4}')
    I(f'v_and_b32 v{vLANE}, 63, v0')
    I('v_lshrrev_b32 v3, 6, v0')
    I(f'v_lshlrev_b32 v{vL16}, 4, v{vLANE}')
    I('v_readfirstlane_b32 s55, v3')
    I('s_and_b32 s35, s2, 7')
    I('s_lshr_b32 s36, s2, 3')
    I('s_mul_i32 s37, s36, 37')
    I('s_lshr_b32 s37, s37, 8')
    I('s_mul_i32 s38, s37, 7')
    I('s_sub_u32 s36, s36, s38')
    I('s_and_b32 s38, s35, 1')
    I('s_mul_i32 s38, s38, 7')
    I('s_add_u32 s36, s36, s38')
    I('s_lshr_b32 s35, s35, 1')
    I('s_lshl_b32 s35, s35, 2')
    I('s_add_u32 s35, s35, s37')
    I('s_and_b32 s34, s55, 3')
    I('s_lshl_b32 s40, s35, 2')
    I('s_add_u32 s40, s40, s34')
    I(f's_mov_b32 s14, {512*3584}'); I('s_mov_b32 s15, 0x00020000')
    I(f's_mov_b32 s26, {WS_SIZE:#x}'); I('s_mov_b32 s27, 0x00020000')
    I('s_lshl_b32 s49, s40, 15')
    I(f's_add_u32 s49, s49, {WS_X1B:#x}')
    I(f'v_lshrrev_b32 v{T[0]}, 3, v{vLANE}')
    I(f'v_and_b32 v{T[1]}, 7, v{vLANE}')
    I(f'v_bfe_u32 v{T[2]}, v{vLANE}, 4, 1')
    I(f'v_lshlrev_b32 v{T[2]}, 2, v{T[2]}')
    I(f'v_xor_b32 v{T[1]}, v{T[1]}, v{T[2]}')
    I(f'v_lshlrev_b32 v{T[1]}, 4, v{T[1]}')
    I(f'v_mul_u32_u24 v{T[0]}, 3584, v{T[0]}')
    I(f'v_add_u32 v{AD[0]}, v{T[1]}, v{T[0]}')
    I(f's_mul_i32 s45, s34, {8*3584}')
    I('s_lshl_b32 s46, s36, 8')
    I('s_add_u32 s45, s45, s46')
    I('s_lshl_b32 s46, s34, 10')
    I(f'v_and_b32 v{T[0]}, 31, v{vLANE}')
    if X.get('st2', 1):
        I(f'v_lshrrev_b32 v{T[3]}, 5, v{vLANE}')
        I(f'v_lshlrev_b32 v{T[3]}, 14, v{T[3]}')
        I(f'v_lshl_add_u32 v{T[3]}, v{T[0]}, 3, v{T[3]}')
        I('s_lshl_b32 s50, s40, 8')
    else:
        I(f'v_lshlrev_b32 v{T[3]}, 7, v{T[0]}')
        I('s_lshl_b32 s50, s40, 12')
    I(f's_add_u32 s50, s50, {WS_ST4:#x}')
    I('s_cmp_lt_u32 s55, 4')
    I('s_waitcnt lgkmcnt(0)')
    if stamps:
        st.first()
        I('s_cmp_lt_u32 s55, 4')
    I('s_cbranch_scc1 K4_c1')
    def grp(q):
        L = []
        for j in range(4*(q % 4), 4*(q % 4) + 4):
            hf = q // 4
            L.append(f's_add_u32 m0, s46, {hf*65536 + j*4096}\ns_add_u32 s48, s45, {hf*128 + j*32*3584}\n'
                     f'buffer_load_dwordx4 v{AD[0]}, s[12:15], s48 offen lds ; W:G{q}')
        return L
    AH = X.get('ah', 4)
    SE = X.get('se', 1)
    stl = [f'buffer_load_dwordx4 v[{ST+4*j}:{ST+4*j+3}], v{T[3]}, s[24:27], s50 offen offset:{16*j}' for j in range(8)]
    if X.get('st2', 1):
        stl = [f'buffer_load_dwordx2 v[{ST+2*j}:{ST+2*j+1}], v{T[3]}, s[24:27], s50 offen' + ('\ns_add_u32 s50, s50, 32768' if j < 7 else '') for j in range(8)]
    HS = X.get('hs')
    def hs_emit(spec):
        for ch in spec:
            if ch == 's':
                for s in stl: I(s)
            else:
                for s in grp(int(ch)): I(s)
    if HS: hs_emit(HS[0])
    else:
      for q in range(AH):
        for s in grp(q): I(s)
        if SE and q == SE - 1:
            for s in stl: I(s)
    I('s_branch K4_help')
    hq = list(a.vm_q); hn = st.n
    a.label('K4_c1')
    a.vm_q = []
    c0 = -2.0 * (2.0/3.141592653589793) ** 0.5 * LOG2E
    M, A_, B_, S_ = RM, RM+1, RM+2, RM+3
    N16 = X.get('n16', 0)
    vSA = 23 if N16 else vL16
    SO = 512 if N16 else 1024
    def common():
        if N16:
            I(f'v_and_b32 v{vSA}, 15, v{vLANE}')
            I(f'v_lshlrev_b32 v{vSA}, 4, v{vSA}')
            I(f'v_bfe_u32 v{vCSA}, v{vLANE}, 4, 1')
            I(f'v_lshl_add_u32 v{vSA}, v{vCSA}, 10, v{vSA}')
            I(f'v_lshrrev_b32 v{vCSA}, 5, v{vLANE}')
            I(f'v_lshl_add_u32 v{vSA}, v{vCSA}, 8, v{vSA}')
        I(f'v_lshrrev_b32 v{vCSA}, 5, v{vLANE}')
        I(f'v_lshlrev_b32 v{vCSA}, 5, v{vCSA}')
        I(f'v_add_u32 v{vCSA}, {L_CS}, v{vCSA}')
        I('s_lshl_b32 s41, s34, 13')
        I(f'v_add_u32 v{vSTG}, s41, v{vL16}')
        I(f's_mul_i32 s53, s40, 114688')
        I('s_lshl_b32 s54, s36, 13')
        I('s_add_u32 s53, s53, s54')
        I(f's_add_u32 s53, s53, {WS_T2:#x}')
    BS = X.get('bs', (32, 32, 32))
    def bl(ks):
        if ks % 4 == 0 and ks > 0: I('s_add_u32 s49, s49, 4096')
        I(f'buffer_load_dwordx4 a[{BF+4*ks}:{BF+4*ks+3}], v{vL16}, s[24:27], s49 offen offset:{1024*(ks%4)}')
    for ks in range(BS[0]):
        bl(ks)
        if ks == X.get('nb0', 7):
            I(f'v_lshrrev_b32 v{T[6]}, 5, v{vLANE}')
            I(f'v_bfe_u32 v{T[7]}, v{vLANE}, 2, 2')
            I(f'v_lshl_add_u32 v{T[6]}, v{T[6]}, 3, v{T[7]}')
            I(f'v_lshlrev_b32 v{T[6]}, 7, v{T[6]}')
            I(f'v_bfe_u32 v{T[5]}, v{vLANE}, 4, 1')
            I(f'v_lshl_add_u32 v{T[6]}, v{T[5]}, 5, v{T[6]}')
            I(f'v_and_b32 v{T[5]}, 1, v{vLANE}')
            I(f'v_lshl_add_u32 v{T[6]}, v{T[5]}, 4, v{T[6]}')
            I(f'v_bfe_u32 v{T[5]}, v{vLANE}, 1, 1')
            I(f'v_lshl_add_u32 v{T[6]}, v{T[5]}, 3, v{T[6]}')
            I(f'v_bfe_u32 v{T[7]}, v{vLANE}, 3, 1')
            I(f'v_lshl_add_u32 v{AD[0]}, v{T[7]}, 6, v{T[6]}')
            I(f'v_xor_b32 v{T[7]}, 1, v{T[7]}')
            I(f'v_lshl_add_u32 v{AD[1]}, v{T[7]}, 6, v{T[6]}')
            I(f'v_and_b32 v{T[0]}, 31, v{vLANE}')
            I('s_lshl_b32 s41, s34, 9')
            I(f's_add_u32 s41, s41, {L_ST}')
            I(f'v_lshl_add_u32 v22, v{T[0]}, 4, s41')
            common()
            I(f'v_add_u32 v{vCSA}, 256, v{vCSA}')
            I('s_add_u32 s53, s53, 4096')
    I('s_mov_b32 s44, 0')
    if X.get('prio', 1): I('s_setprio 2')
    st()
    PRE = 4
    a.raw('K4_pass:')
    for qd in range(4):
        if qd >= 2:
            I('s_cmp_eq_u32 s44, 1')
            I(f's_cbranch_scc1 K4_nb{qd}')
            I('s_barrier')
            a.raw(f'K4_nb{qd}:')
        else:
            I('s_barrier')
        base = 16*qd
        order = list(range(base, base+16))
        if qd == 3:
            order = order[:8] + [i for i in order[8:] if i % 2 == 1] + [i for i in order[8:] if i % 2 == 0]
        def rd2(n):
            idx = order[n]; ks, m2 = idx // 2, idx % 2
            return [f'ds_read_b64_tr_b16 v[{AFR + 4*(n % NRING) + 2*t}:{AFR + 4*(n % NRING) + 2*t + 1}], v{AD[m2]} offset:{(16*ks + 4*t)*128}' for t in range(2)]
        for n in range(PRE):
            for s in rd2(n): I(s)
        lo_, hi_ = ((BS[0], BS[1]), (BS[1], BS[2]), (BS[2], 32), (32, 32))[qd]
        if hi_ > lo_:
            I('s_cmp_eq_u32 s44, 1')
            I(f's_cbranch_scc1 K4_nl{qd}')
            for ks in range(lo_, hi_): bl(ks)
            a.raw(f'K4_nl{qd}:')
        for n, idx in enumerate(order):
            ks, m2 = idx // 2, idx % 2
            b = ACC + 16*m2
            cc = '0' if ks == 0 else f'v[{b}:{b+15}]'
            r = AFR + 4*(n % NRING)
            I(f'v_mfma_f32_32x32x16_bf16 v[{b}:{b+15}], v[{r}:{r+3}], a[{BF+4*ks}:{BF+4*ks+3}], {cc}')
            if n + PRE < 16:
                for s in rd2(n+PRE): I(s)
            if qd == 3 and n == 14:
                for i in range(4): I(f'ds_write_b128 v{vSTG}, v[{ACC+16+4*i}:{ACC+16+4*i+3}] offset:{4096 + 1024*i}')
    I('s_cmp_eq_u32 s44, 1')
    I('s_cbranch_scc1 K4_done')
    for i in range(4): I(f'ds_write_b128 v{vSTG}, v[{ACC+4*i}:{ACC+4*i+3}] offset:{1024*i}')
    I(f'v_add_u32 v{AD[0]}, 65536, v{AD[0]}')
    I(f'v_add_u32 v{AD[1]}, 65536, v{AD[1]}')
    I('s_mov_b32 s44, 1')
    I('s_waitcnt lgkmcnt(0)')
    I('s_branch K4_pass')
    a.label('K4_done')
    I(f'ds_read_b128 v[{RM}:{RM+3}], v22')
    I('s_setprio 0')
    I('s_waitcnt lgkmcnt(0)')
    st()
    I('s_barrier')
    I('s_nop 7')
    I('s_call_b64 s[62:63], ' + ('K4_epk' if X.get('pk', 1) else 'K4_epi'))
    st.flush(24, 34, 22, vLANE)
    I('s_endpgm')
    n_comp = st.n
    a.label('K4_epi')
    a.vm_q = []; a.lds_q = []
    b = ACC
    for h8 in range(2):
        I(f'ds_read_b128 v[{CS}:{CS+3}], v{vCSA} offset:{64*h8}')
        I(f'ds_read_b128 v[{CS+4}:{CS+7}], v{vCSA} offset:{64*h8 + 16}')
        chains = []
        for i in range(8):
            r = b + 8*h8 + i; t = T[i]
            chains.append([f'v_fma_f32 v{r}, -v{M}, v{CS+i}, v{r}', f'v_mul_f32 v{t}, v{r}, v{r}', f'v_fma_f32 v{t}, v{t}, v{B_}, v{A_}',
                           f'v_mul_f32 v{t}, v{t}, v{r}', f'v_exp_f32 v{t}, v{t}', f'v_fma_f32 v{t}, v{t}, v{S_}, v{S_}',
                           f'v_rcp_f32 v{t}, v{t}', f'v_mul_f32 v{r}, v{r}, v{t}'])
        for j in range(8):
            for c in chains: I(c[j])
        for i in range(4):
            I(f'v_cvt_pk_bf16_f32 v{OUTP+4*h8+i}, v{b+8*h8+2*i}, v{b+8*h8+2*i+1}')
        I(f'buffer_store_dwordx4 v[{OUTP+4*h8}:{OUTP+4*h8+3}], v{vSA}, s[24:27], s53 offen offset:{SO*h8}')
    I('s_nop 1')
    I('s_setpc_b64 s[62:63]')
    if X.get('pk', 1):
        a.label('K4_epk')
        a.vm_q = []; a.lds_q = []
        PC = AFR + 4
        I(f'v_sub_f32 v{PC}, 0, v{M}'); I(f'v_sub_f32 v{PC+1}, 0, v{M}')
        for k, r in enumerate((A_, B_, S_)):
            I(f'v_mov_b32 v{PC+2+2*k}, v{r}'); I(f'v_mov_b32 v{PC+3+2*k}, v{r}')
        pm, pa, pb, ps = (f'v[{PC+2*k}:{PC+2*k+1}]' for k in range(4))
        for h8 in range(2):
            I(f'ds_read_b128 v[{CS}:{CS+3}], v{vCSA} offset:{64*h8}')
            I(f'ds_read_b128 v[{CS+4}:{CS+7}], v{vCSA} offset:{64*h8 + 16}')
            chains = []
            for i in range(0, 8, 2):
                r = ACC + 8*h8 + i; t = T[i]
                R = f'v[{r}:{r+1}]'; TT_ = f'v[{t}:{t+1}]'
                chains.append([f'v_pk_fma_f32 {R}, {pm}, v[{CS+i}:{CS+i+1}], {R}', f'v_pk_mul_f32 {TT_}, {R}, {R}', f'v_pk_fma_f32 {TT_}, {TT_}, {pb}, {pa}',
                               f'v_pk_mul_f32 {TT_}, {TT_}, {R}', f'v_exp_f32 v{t}, v{t}\nv_exp_f32 v{t+1}, v{t+1}', f'v_pk_fma_f32 {TT_}, {TT_}, {ps}, {ps}',
                               f'v_rcp_f32 v{t}, v{t}\nv_rcp_f32 v{t+1}, v{t+1}', f'v_pk_mul_f32 {R}, {R}, {TT_}', f'v_cvt_pk_bf16_f32 v{OUTP+4*h8+i//2}, v{r}, v{r+1}'])
            for j in range(9):
                for c in chains: I(c[j])
            I(f'buffer_store_dwordx4 v[{OUTP+4*h8}:{OUTP+4*h8+3}], v{vSA}, s[24:27], s53 offen offset:{SO*h8}')
        I('s_nop 1')
        I('s_setpc_b64 s[62:63]')
    a.label('K4_help')
    a.lds_q = []
    a.vm_q = list(hq)
    st.n = hn
    I('s_lshl_b32 s51, s36, 9')
    I(f's_add_u32 s51, s51, {WS_CS3:#x}')
    csl = f's_mov_b32 m0, {L_CS}\ns_mov_b32 exec_hi, 0\nbuffer_load_dwordx4 v{vL16}, s[24:27], s51 offen lds ; W:CS\ns_mov_b32 exec_hi, -1'
    C3 = X.get('c3', 0)
    if C3:
        CP = AFR + 8
        I(f'v_lshrrev_b32 v{AD[2]}, 5, v{vLANE}')
        I(f'v_mul_u32_u24 v{AD[2]}, 7168, v{AD[2]}')
        I(f'v_lshl_add_u32 v{AD[2]}, v{T[0]}, 2, v{AD[2]}')
        I('s_lshl_b32 s51, s36, 9')
        I('s_lshl_b32 s41, s34, 7')
        I('s_add_u32 s51, s51, s41')
        I(f's_add_u32 s51, s51, {WS_C3P:#x}')
        I(f's_add_u32 s41, s41, {L_CS}')
        I(f'v_lshl_add_u32 v{AD[3]}, v{T[0]}, 2, s41')
        csl = '\n'.join(f'buffer_load_dword v{CP+j}, v{AD[2]}, s[24:27], s51 offen' + ('\ns_add_u32 s51, s51, 14336' if j < 3 else '') for j in range(4))
        csf = [f'v_add_f32 v{CP}, v{CP}, v{CP+1}', f'v_add_f32 v{CP+2}, v{CP+2}, v{CP+3}', f'v_add_f32 v{CP}, v{CP}, v{CP+2}', f'v_mov_b32 v{CP+1}, v{CP}',
               f'v_permlane32_swap_b32 v{CP}, v{CP+1}', f'v_add_f32 v{CP}, v{CP}, v{CP+1}', f'ds_write_b32 v{AD[3]}, v{CP}']
    I('s_lshl_b32 s41, s34, 9')
    I(f's_add_u32 s41, s41, {L_ST}')
    I(f'v_lshl_add_u32 v{AD[1]}, v{T[0]}, 4, s41')
    common()
    def stats():
        L = []
        V = S_
        if X.get('st2', 1):
            for stp in (4, 2, 1):
                for j in range(stp):
                    L.append(f'v_add_f32 v{ST+2*j}, v{ST+2*j}, v{ST+2*(j+stp)}')
                    L.append(f'v_add_f32 v{ST+2*j+1}, v{ST+2*j+1}, v{ST+2*(j+stp)+1}')
            L += [f'v_mov_b32 v{M}, v{ST}', f'v_mov_b32 v{V}, v{ST+1}', f'v_permlane32_swap_b32 v{M}, v{ST}', f'v_permlane32_swap_b32 v{V}, v{ST+1}',
                  f'v_add_f32 v{M}, v{M}, v{ST}', f'v_add_f32 v{V}, v{V}, v{ST+1}',
                  f'v_mul_f32 v{M}, {f32bits(1.0/512):#x}, v{M}', f'v_mul_f32 v{V}, {f32bits(1.0/512):#x}, v{V}', f'v_fma_f32 v{V}, -v{M}, v{M}, v{V}', f'v_max_f32 v{V}, 0, v{V}']
        else:
            L.append(f'v_add_f32 v{M}, v{ST}, v{ST+2}')
            L.append(f'v_add_f32 v{V}, v{ST+1}, v{ST+3}')
            for j in range(2, 16):
                L.append(f'v_add_f32 v{M}, v{M}, v{ST+2*j}')
                L.append(f'v_add_f32 v{V}, v{V}, v{ST+2*j+1}')
            L.append(f'v_mul_f32 v{M}, {f32bits(1.0/16):#x}, v{M}')
            L.append(f'v_mov_b32 v{T[2]}, 0')
            for j in range(16):
                L.append(f'v_sub_f32 v{T[3]}, v{ST+2*j}, v{M}')
                L.append(f'v_fmac_f32 v{T[2]}, v{T[3]}, v{T[3]}')
            L.append(f'v_fmac_f32 v{V}, {f32bits(32.0):#x}, v{T[2]}')
            L.append(f'v_mul_f32 v{V}, {f32bits(1.0/512):#x}, v{V}')
        L.append(f'v_cvt_pk_bf16_f32 v{M}, 0, v{M}')
        L.append(f'v_cvt_pk_bf16_f32 v{V}, 0, v{V}')
        L.append(f'v_add_f32 v{V}, {f32bits(1e-5):#x}, v{V}')
        L.append(f'v_cvt_pk_bf16_f32 v{V}, 0, v{V}')
        L.append(f'v_sqrt_f32 v{V}, v{V}')
        L.append(f'v_cvt_pk_bf16_f32 v{V}, 0, v{V}')
        L.append(f'v_rcp_f32 v{T[2]}, v{V}')
        L.append(f'v_mul_f32 v{A_}, {f32bits(c0):#x}, v{T[2]}')
        L.append(f'v_mul_f32 v{B_}, v{T[2]}, v{T[2]}')
        L.append(f'v_mul_f32 v{B_}, v{B_}, v{A_}')
        L.append(f'v_mul_f32 v{B_}, {f32bits(0.044715):#x}, v{B_}')
        L.append(f'ds_write_b128 v{AD[1]}, v[{RM}:{RM+3}]')
        return L
    def pf4(n):
        L = [f's_mov_b32 s58, {1792*1024}\ns_mov_b32 s59, 0x00020000\nv_lshlrev_b32 v{AD[2]}, 7, v{vLANE}\n'
             's_lshr_b32 s60, s2, 3\ns_lshl_b32 s60, s60, 16\ns_lshl_b32 s61, s34, 14\ns_add_u32 s60, s60, s61']
        for i in range(n):
            L.append(f'buffer_load_dword v{AFR+i}, v{AD[2]}, s[56:59], s60 offen\ns_add_u32 s60, s60, 8192')
        return L
    NPF = X.get('pf4', 0); PFQ = X.get('pfq', 'e0')
    for q in range(6):
        tags = [f'G{q}'] + (['CS'] if q == 4 else [])
        if q == 5: tags = ['G5', 'G6', 'G7']
        a.wait_tags(tags, lg=(q >= 4))
        I('s_barrier')
        if X.get('hst'): st()
        if HS:
            if q + 1 < len(HS): hs_emit(HS[q+1])
        elif q + AH < 8:
            for s in grp(q + AH): I(s)
        if q == 0:
            if not SE and not HS:
                for s in stl: I(s)
            I(csl)
        if q == X.get('sq', 1):
            for s in stats(): I(s)
            if C3:
                for s in csf: I(s)
            if X.get('dry', 0):
                I('s_mov_b64 exec, 0')
                I('s_call_b64 s[62:63], ' + ('K4_epk' if X.get('pk', 1) else 'K4_epi'))
                I('s_mov_b64 exec, -1')
                I('s_waitcnt lgkmcnt(0)')
        if q == 4:
            for i in range(4): I(f'ds_read_b128 v[{ACC+4*i}:{ACC+4*i+3}], v{vSTG} offset:{1024*i}')
            for i in range(4): I(f'ds_read_b128 v[{ACC+16+4*i}:{ACC+16+4*i+3}], v{vSTG} offset:{4096 + 1024*i}')
        if NPF and q == PFQ:
            for s in pf4(NPF): I(s)
    I('s_call_b64 s[62:63], K4_epi')
    if NPF and PFQ == 'e0':
        for s in pf4(NPF): I(s)
    for i in range(16): I(f'v_mov_b32 v{ACC+i}, v{ACC+16+i}')
    I(f'v_add_u32 v{vCSA}, 128, v{vCSA}')
    I('s_add_u32 s53, s53, 2048')
    I('s_call_b64 s[62:63], K4_epi')
    if NPF and PFQ == 'e1':
        for s in pf4(NPF): I(s)
    I(f'v_add_u32 v{vCSA}, 256, v{vCSA}')
    I('s_add_u32 s53, s53, 4096')
    st()
    I('s_barrier')
    if X.get('hst'): st()
    for i in range(4): I(f'ds_read_b128 v[{ACC+4*i}:{ACC+4*i+3}], v{vSTG} offset:{4096 + 1024*i}')
    I('s_waitcnt lgkmcnt(0)')
    I('s_call_b64 s[62:63], ' + ('K4_epk' if X.get('pk', 1) else 'K4_epi'))
    if X.get('hst'): st()
    st.kidx = 6
    st.flush(24, 55, 22, vLANE)
    a.label('K4_end')
    I('s_endpgm')
    print("K4 instrs", a.ninstr, "nops", a.nnop)
    return a.text(), kernel_desc(name, 256, 96, accum=128)
```

```python
from common import *

def gen_k5m(name, stamps=False, LA=2, X={}):
    a = Asm()
    st = Stamper(a, stamps, 5)
    kernel_header(a, name)
    I = a.I
    vLANE, vBL = 1, 2
    T = [4,5,6,7,8,9,10,11]
    AD = [12,13,212,213]
    vEP = 14
    vRD = [15, 3]
    WR = [214,215,216,217]
    X1R, X1BR = 16, 20
    GB = 24
    ACC = 32
    AFR = 64
    BF = 96
    NR = 7; NS = 5
    I('s_cmp_ge_u32 s2, 256')
    I('s_cbranch_scc1 K5_end')
    I(f's_load_dwordx2 s[12:13], s[0:1], {KA_W4}')
    I(f's_load_dwordx2 s[24:25], s[0:1], {KA_WS}')
    I(f's_load_dwordx2 s[8:9], s[0:1], {KA_OUT}')
    I(f'v_and_b32 v{vLANE}, 63, v0')
    I('v_lshrrev_b32 v3, 6, v0')
    I('s_nop 0')
    I('v_readfirstlane_b32 s34, v3')
    I('s_and_b32 s35, s2, 7')
    I('s_lshr_b32 s36, s2, 3')
    I('s_lshl_b32 s35, s35, 2')
    I('s_lshr_b32 s37, s36, 3')
    I('s_add_u32 s35, s35, s37')
    I('s_and_b32 s36, s36, 7')
    I('s_and_b32 s38, s34, 1')
    I('s_lshr_b32 s39, s34, 1')
    I('s_lshl_b32 s40, s35, 1')
    I('s_add_u32 s40, s40, s38')
    I(f'v_and_b32 v{T[3]}, 15, v{vLANE}')
    I(f'v_lshrrev_b32 v{T[4]}, 4, v{vLANE}')
    I(f'v_lshlrev_b32 v{vBL}, 4, v{T[3]}')
    N16 = X.get('n16', 0)
    I(f'v_lshl_add_u32 v{vBL}, v{T[4]}, {8 if N16 else 9}, v{vBL}')
    for d, n in ((12, 1792*1024), (8, 2048*1024), (24, WS_SIZE)):
        I(f's_mov_b32 s{d+2}, {n:#x}'); I(f's_mov_b32 s{d+3}, 0x00020000')
    I(f'v_bfe_u32 v{T[0]}, v{vLANE}, 3, 2')
    I(f'v_lshrrev_b32 v{T[1]}, 5, v{vLANE}')
    I(f'v_lshl_add_u32 v{T[0]}, v{T[1]}, 3, v{T[0]}')
    I(f'v_and_b32 v{T[1]}, 7, v{vLANE}')
    I(f'v_lshlrev_b32 v{T[2]}, 1, v{T[4]}')
    I(f'v_xor_b32 v{T[1]}, v{T[1]}, v{T[2]}')
    I(f'v_lshlrev_b32 v{T[1]}, 4, v{T[1]}')
    I(f'v_lshl_add_u32 v{T[1]}, v{T[0]}, 10, v{T[1]}')
    I(f's_mul_i32 s45, s39, {448*1024}')
    I('s_lshl_b32 s46, s36, 7')
    I('s_add_u32 s45, s45, s46')
    I('s_lshl_b32 s46, s38, 14')
    I('s_add_u32 s45, s45, s46')
    I('s_lshl_b32 s46, s39, 13')
    I('s_lshl_b32 s47, s38, 10')
    I('s_add_u32 s46, s46, s47')
    I('s_mul_i32 s49, s40, 114688')
    I(f's_mul_i32 s50, s39, {28*1024}')
    I('s_add_u32 s49, s49, s50')
    I(f's_add_u32 s49, s49, {WS_T2:#x}')
    ROT = X.get('rot', (0, 2))
    I(f's_mul_i32 s54, s36, {ROT[0]}')
    I(f's_mul_i32 s55, s37, {ROT[1]}')
    I('s_add_u32 s54, s54, s55')
    I('s_mul_i32 s55, s54, 37'); I('s_lshr_b32 s55, s55, 8'); I('s_mul_i32 s55, s55, 7'); I('s_sub_u32 s54, s54, s55')
    def round_loads(R):
        L = []
        for j in range(4):
            pre = 's_lshl_b32 s55, s54, 16\ns_add_u32 s55, s55, s45\n' if j == 0 else ''
            L.append(pre + f's_add_u32 m0, s46, {(R % NS)*32768 + j*2048}\ns_add_u32 s48, s55, {(32*(j >> 1) + 4*(j & 1))*1024}\nbuffer_load_dwordx4 v{T[1]}, s[12:15], s48 offen lds')
        L.append('s_lshl_b32 s50, s54, 12\ns_add_u32 s50, s50, s49\ns_add_u32 s54, s54, 1\ns_cmp_eq_u32 s54, 7\ns_cselect_b32 s54, 0, s54')
        for j in range(4):
            ks = 4*R + j
            L.append(f'buffer_load_dwordx4 v[{BF+4*ks}:{BF+4*ks+3}], v{vBL}, s[24:27], s50 offen offset:{2048*(j >> 1) + (1024 if N16 else 256)*(j & 1)}')
        return L
    I('s_waitcnt lgkmcnt(0)')
    st.first()
    for R in range(LA):
        for s in round_loads(R): I(s)
    I(f'v_lshrrev_b32 v{T[6]}, 2, v{vLANE}')
    I(f'v_lshlrev_b32 v{T[6]}, 7, v{T[6]}')
    I(f'v_and_b32 v{T[7]}, 3, v{vLANE}')
    I(f'v_lshl_add_u32 v{T[6]}, v{T[7]}, 3, v{T[6]}')
    I('s_lshl_b32 s50, s39, 13')
    I(f'v_add_u32 v{T[6]}, s50, v{T[6]}')
    I(f'v_bfe_u32 v{T[7]}, v{vLANE}, 3, 2')
    for nt in range(4):
        I(f'v_xor_b32 v{T[5]}, {nt}, v{T[7]}')
        I(f'v_lshl_add_u32 v{AD[nt]}, v{T[5]}, 5, v{T[6]}')
    RED = 65536
    I(f'v_xor_b32 v{T[4]}, v{T[4]}, v{T[3]}')
    I('s_lshl_b32 s50, s34, 13')
    I(f's_add_u32 s50, s50, {RED}')
    I(f'v_lshl_add_u32 v{T[3]}, v{T[3]}, 8, s50')
    for nt in range(4):
        I(f'v_xor_b32 v{T[5]}, {4*nt}, v{T[4]}')
        I(f'v_lshl_add_u32 v{WR[nt]}, v{T[5]}, 4, v{T[3]}')
    def epi_loads():
        L = []
        L.append('s_lshl_b32 s51, s40, 15')
        L.append('s_lshl_b32 s52, s36, 12')
        L.append('s_add_u32 s51, s51, s52')
        L.append(f'v_lshrrev_b32 v{T[3]}, 3, v{vLANE}\ns_lshl_b32 s52, s39, 3\nv_add_u32 v{T[5]}, s52, v{T[3]}')
        L.append(f'v_and_b32 v{T[4]}, 1, v{vLANE}\nv_lshl_add_u32 v{T[3]}, v{T[4]}, 5, v{T[5]}\nv_lshlrev_b32 v{T[3]}, 4, v{T[3]}')
        L.append(f'v_bfe_u32 v{T[4]}, v{vLANE}, 1, 2\nv_lshl_add_u32 v{vEP}, v{T[4]}, 10, v{T[3]}')
        L.append(f's_add_u32 s52, s51, {WS_X1:#x}')
        L.append(f'buffer_load_dwordx4 v[{X1R}:{X1R+3}], v{vEP}, s[24:27], s52 offen')
        L.append(f's_add_u32 s52, s51, {WS_X1B:#x}')
        L.append(f'buffer_load_dwordx4 v[{X1BR}:{X1BR+3}], v{vEP}, s[24:27], s52 offen')
        L.append(f'v_and_b32 v{T[3]}, 7, v{vLANE}')
        L.append(f'v_lshlrev_b32 v{T[4]}, 1, v{T[3]}\nv_and_b32 v{T[6]}, 15, v{T[5]}\nv_xor_b32 v{T[4]}, v{T[4]}, v{T[6]}')
        L.append(f's_lshl_b32 s52, s38, 13\ns_add_u32 s52, s52, {RED}\nv_lshl_add_u32 v{T[5]}, v{T[5]}, 8, s52\nv_lshl_add_u32 v{vRD[0]}, v{T[4]}, 4, v{T[5]}\nv_xor_b32 v{vRD[1]}, 16, v{vRD[0]}')
        L.append(f'v_lshlrev_b32 v{T[3]}, 5, v{T[3]}')
        L.append('s_lshl_b32 s52, s36, 8')
        L.append(f's_add_u32 s52, s52, {WS_MOD + 3*2048:#x}')
        L.append(f'buffer_load_dwordx4 v[{GB}:{GB+3}], v{T[3]}, s[24:27], s52 offen')
        L.append(f'buffer_load_dwordx4 v[{GB+4}:{GB+7}], v{T[3]}, s[24:27], s52 offen offset:16')
        return L
    def rd(R, jj, nt, slot):
        L = []
        off = ((R % NS) % 2) * 32768 + jj*4096
        for t in range(2):
            d = AFR + 4*slot + 2*t
            L.append(f'ds_read_b64_tr_b16 v[{d}:{d+1}], v{AD[nt]} offset:{off + t*2048}')
        return L
    def adv(R):
        cur = ((R-1) % NS) // 2; new = (R % NS) // 2
        d = (new - cur) * 65536
        if d == 0: return []
        if d > 0: return [f'v_add_u32 v{AD[n]}, {d}, v{AD[n]}' for n in range(4)]
        return [f'v_subrev_u32 v{AD[n]}, {-d}, v{AD[n]}' for n in range(4)]
    issued = [8]*LA
    st()
    for R in range(NR):
        allowed = 4 + sum(issued[R+1:])
        I(f's_waitcnt vmcnt({allowed})')
        I('s_barrier')
        side = []
        if R + LA < NR:
            side = round_loads(R+LA); issued.append(8)
        elif R + LA == NR:
            side = epi_loads(); issued.append(4)
        seq = [(jj, nt) for jj in range(2) for nt in range(4)]
        main = []
        PRE = X.get('pre', 4)
        for i in range(PRE):
            main += rd(R, seq[i][0], seq[i][1], i)
        for i, (jj, nt) in enumerate(seq):
            for rq in range(2):
                b = ACC + 4*(4*rq + nt)
                ks = 4*R + 2*jj + rq
                cc = '0' if (R == 0 and jj == 0) else f'v[{b}:{b+3}]'
                main.append(f'v_mfma_f32_16x16x32_bf16 v[{b}:{b+3}], v[{AFR+4*i}:{AFR+4*i+3}], v[{BF+4*ks}:{BF+4*ks+3}], {cc}')
                if i + PRE < 8:
                    main.append(rd(R, seq[i+PRE][0], seq[i+PRE][1], i+PRE)[rq])
                if R == NR - 1 and jj == 1 and nt > 0:
                    pb = ACC + 4*(4*rq + nt - 1)
                    main.append(f'ds_write_b128 v{WR[nt-1]}, v[{pb}:{pb+3}] offset:{4096*rq}')
        if R + 1 < NR: main += adv(R+1)
        for s in merge(main, side): I(s)
    st()
    for rq in range(2):
        pb = ACC + 4*(4*rq + 3)
        I(f'ds_write_b128 v{WR[3]}, v[{pb}:{pb+3}] offset:{4096*rq}')
    I('s_mov_b32 s52, 0xffff0000')
    U = BF
    for e in range(8):
        if e % 2 == 0:
            I(f'v_lshlrev_b32 v{U+e}, 16, v{X1BR+e//2}'); I(f'v_lshlrev_b32 v{U+8+e}, 16, v{X1R+e//2}')
        else:
            I(f'v_and_b32 v{U+e}, s52, v{X1BR+e//2}'); I(f'v_and_b32 v{U+8+e}, s52, v{X1R+e//2}')
    I(f'v_lshrrev_b32 v{T[1]}, 3, v{vLANE}')
    I(f'v_lshlrev_b32 v{T[1]}, 10, v{T[1]}')
    I(f'v_and_b32 v{T[2]}, 7, v{vLANE}')
    I(f'v_lshl_add_u32 v{T[1]}, v{T[2]}, 4, v{T[1]}')
    I('s_lshl_b32 s50, s40, 15')
    I('s_lshl_b32 s51, s36, 7')
    I('s_add_u32 s50, s50, s51')
    I('s_lshl_b32 s51, s39, 13')
    I('s_add_u32 s50, s50, s51')
    I('s_waitcnt lgkmcnt(0)')
    I('s_barrier')
    for q in range(4):
        for h in range(2):
            r = AFR + 8*q + 4*h
            I(f'ds_read_b128 v[{r}:{r+3}], v{vRD[h]} offset:{16384*q}')
    P = lambda r: f'v[{r}:{r+1}]'
    for e in range(0, 8, 2): I(f'v_pk_add_f32 {P(AFR+e)}, {P(AFR+e)}, {P(AFR+8+e)}')
    for e in range(0, 8, 2): I(f'v_pk_add_f32 {P(AFR+16+e)}, {P(AFR+16+e)}, {P(AFR+24+e)}')
    for e in range(0, 8, 2): I(f'v_pk_add_f32 {P(AFR+e)}, {P(AFR+e)}, {P(AFR+16+e)}')
    for e in range(0, 8, 2): I(f'v_pk_add_f32 {P(AFR+e)}, {P(AFR+e)}, {P(U+e)}')
    for e in range(0, 8, 2): I(f'v_pk_fma_f32 {P(AFR+e)}, {P(AFR+e)}, {P(GB+e)}, {P(U+8+e)}')
    for j in range(4):
        I(f'v_cvt_pk_bf16_f32 v{ACC+j}, v{AFR+2*j}, v{AFR+2*j+1}')
    I(f'buffer_store_dwordx4 v[{ACC}:{ACC+3}], v{T[1]}, s[8:11], s50 offen')
    st.flush(24, 34, 208, vLANE)
    a.label('K5_end')
    I('s_endpgm')
    print("K5 instrs", a.ninstr, "nops", a.nnop)
    return a.text(), kernel_desc(name, 224, 96)
```

```python
import sys
from common import *
from k0 import gen_k0
from k1 import gen_k1
from k0n import gen_k0n, set_c3
from k1n import gen_k1n
from k1p import gen_k1p
import k1p_max
from ka import gen_ka
from k2 import gen_k2
from k2n import gen_k2n
from k3 import gen_k3
from k3n import gen_k3n
from k23 import gen_k23, NWG23
from k4 import gen_k4
from k4h import gen_k4h, LDS4
from k4l import gen_k4l
from k5 import gen_k5
from k5m import gen_k5m
X2DEF = {'spr':1,'na0':0,'na1':0,'step':5,'pr':1,'A':{'bulk':20,'step':1000,'step2':6}}
def build(path, upto=6, stamps=False, emu=True, t0=False, t1=2, la5=2, merged=False, cpf=False, nt0=2, f23=False, sc=('k0','k1','k2','k3','k4','k5'), **kw):
    hdr = open('cdna_kernels/' + NAME + '.s.ref').read().split('; Override launch')[0]
    ks = []
    C3 = kw.get('c3', 1)
    NB_K0 = set_c3(C3)
    if kw.get('vtr', 0):
        kw['X'] = dict({'sl':(('x2',4),('w',6),('x3',10),('f',12))}, **dict(kw.get('X', {}) or {}, vtr=1)); kw['skipj'] = ('vp',)
    if kw.get('fold', 1): NB_K0 -= 64
    if C3:
        kw['X'] = dict(kw.get('X', {}) or {}, c3=C3); kw['X4'] = dict(kw.get('X4', {}), c3=1)
    if C3 == 2: kw['X2'] = dict(kw.get('X2', {}), m2=1)
    ks.append(('k0_kernel', (496,1,1), 512, 32768, lambda n: gen_k0(n, stamps, touch=t0, cpf=cpf)))
    ks.append(('k1_kernel', (256,1,1), 512, 163840, lambda n: gen_k1(n, stamps, emu=emu, touch=t1, X=kw.get('X', ()))))
    ks.append(('k2_kernel', (256,1,1), 512, 18432, lambda n: (gen_k2n(n, stamps, X=dict(X2DEF, **kw.get('X2', {}))) if kw.get('k2n', 1) else gen_k2(n, stamps, X=kw.get('X2', {})))))
    ks.append(('k3_kernel', (256,1,1), 256, 65536, lambda n: (gen_k3n if kw.get('k3n', True) else gen_k3)(n, stamps, X=kw.get('X3', {}))))
    ks.append(('k4_kernel', (224,1,1), 512, 131584, lambda n: gen_k4(n, stamps, nt0=nt0, direct=f23, X=kw.get('X4', {}))))
    ks.append(('k5_kernel', (256,1,1), 512, 163840, lambda n: (gen_k5m if kw.get('k5m', 1) else gen_k5)(n, stamps, LA=la5, X=kw.get('X5', {}))))
    if kw.get('new', True):
        ks[0] = ('k0_kernel', (NB_K0+kw.get('xpf',0),1,1), 512, 32768, lambda n: gen_k0n(n, stamps, lite=kw.get('lite', 0), xpf=kw.get('xpf',0), qrows=kw.get('qrows',512), perm=kw.get('perm',0), skipj=kw.get('skipj',()), fold=kw.get('fold',1)))
        ks[1] = ('k1_kernel', (256,1,1), 512, 163840, lambda n: (k1p_max.gen_k1p if kw.get('oldmax') else gen_k1p)(n, stamps, X=kw.get('X', ()), offs=kw.get('offs', 106.0)))
    if kw.get('k4h', True):
        ks[4] = ('k4_kernel', (224,1,1), 512, LDS4, lambda n: (gen_k4h if kw.get('k4h', True) == 'h' else gen_k4l)(n, stamps, X=kw.get('X4', {})))
    if f23:
        ks = ks[:2] + [('k23_kernel', (NWG23,1,1), 512, 151552, lambda n: gen_k23(n, stamps))] + ks[4:]
    if merged:
        ks = [('ka_kernel', (256,1,1), 512, 163840, lambda n: gen_ka(n, stamps))] + ks[2:]
    ks = ks[:upto]
    out = hdr
    for n, g, b, lds, f in ks:
        out += f'; @launch kernel={n} grid=({g[0]},{g[1]},{g[2]}) block=({b},1,1) lds={lds}\n'
    out += '.amdgcn_target "amdgcn-amd-amdhsa--gfx950"\n.text\n'
    descs = ''
    for n, g, b, lds, f in ks:
        FAKE16[0] = n.split('_')[0] in kw.get('fake16', ())
        t, d = f(n)
        FAKE16[0] = False
        if n.split('_')[0] in sc:
            t = '\n'.join((l + ' sc0 sc1' if 'buffer_store_dwordx4' in l and 'sc0' not in l else l) for l in t.split('\n'))
        out += t; descs += d
    out += 'CODE_END:\n    s_endpgm\n'
    out += '.section .rodata,"a"\n' + descs
    open(path, 'w').write(out)
if __name__ == '__main__':
    build(sys.argv[1] if len(sys.argv) > 1 else 'cur.s', stamps=(int(sys.argv[2]) if len(sys.argv) > 2 else 0))
```

```python
from common import *

SLOT = 32768
KV_SLOT = {16: 1, 17: 2, 18: 3, 19: 4, 20: 0, 21: 1, 22: 2, 23: 3}
def slot_of(c): return KV_SLOT[c] * SLOT

def interleave(main, side):
    out = []
    n = len(main); m = len(side); k = 0
    for i, x in enumerate(main):
        out.append(x)
        tgt = (m * (i + 1)) // n
        while k < tgt:
            out.append(side[k]); k += 1
    return out

DEF_OLD = {'late':'', 'early':'u m x0 a0 v a1', 'post':'a2 a3', 'after':{0:'a4 a5', 1:'x1', 3:'k'}, 'sl':(('x2',4),('x3',10),('f',12)), 'mq':((1,4,3),(2,10,4),(3,17,4)), 'bars':(7,14,22), 'fin':24, 'late0':8, 'r16':1}
DEF = {'late':'a0 a1 v', 'early':'P3 m x0 P2 x1 x2 x3 P1', 'mid':'u', 'milp':1, 'late1':'a2 a3', 'post':'a4 a5', 'after':{3:'k'}, 'sl':(('f',12),), 'mq':(), 'bars':(), 'fin':24, 'late0':8, 'r16':1,
       'mall':4, 'alate':1, 'xm':2, 'xi':1}
def gen_k1p(name, stamps=False, X=(), offs=106.0):
    X = dict(DEF, **X) if isinstance(X, dict) else dict(DEF, **{k: True for k in X})
    a = Asm()
    OFFS = f'{f32bits(-float(offs)):#x}'
    st = VStamper(a, stamps, 1, 0)
    kernel_header(a, name)
    I = a.I
    M16 = X.get('m16', '')
    tog = {}
    def MF(ph, d, A, B, first, A2=None, B2=None):
        if ph not in M16.split():
            cc = '0' if first else f'v[{d}:{d+15}]'
            return f'v_mfma_f32_32x32x16_bf16 v[{d}:{d+15}], v[{A}:{A+3}], v[{B}:{B+3}], {cc}'
        if first: tog[d] = 0
        t = tog[d]; tog[d] += 1
        L = []
        for i, (x, y) in enumerate(((A, B), (A2 if A2 is not None else A, B2 if B2 is not None else B))):
            dd = d + 8*(t & 1) + 4*i
            cc = '0' if t < 2 else f'v[{dd}:{dd+3}]'
            L.append(f'v_mfma_f32_16x16x32_bf16 v[{dd}:{dd+3}], v[{x}:{x+3}], v[{y}:{y+3}], {cc}')
        return '\n'.join(L)
    vD, vD2 = 1, 2
    vB = [3, 4]
    vA = [5, 6, 7, 8]
    vKA = [9,10,11,12,13,14,15,16]
    vT0, vT1, vT2, vT3 = 17,18,19,20
    vMX = 21; vNEGM = 22; vL = [23,24,25,26]
    vLANE16 = 27
    vKD = [28,29,30,31]
    ACC = 160
    AF = 224
    BFB = 240
    vHW = vT0
    sK, sWQ, sWO, sWS, sTC = 4, 8, 12, 16, 20
    sW, sG, sRB, sHD, sRH, sW4K, sBQ, sBK, sBO, sBV = 24, 25, 26, 27, 28, 29, 30, 31, 32, 33
    t0, t1, t2 = 34, 35, 3
    MODS = 36
    I('s_cmp_ge_u32 s2, 256')
    I('s_cbranch_scc1 K1_end')
    I(f's_load_dwordx2 s[{sWS}:{sWS+1}], s[0:1], {KA_WS}')
    I(f's_load_dwordx2 s[{sWQ}:{sWQ+1}], s[0:1], {KA_WQ}')
    I(f's_load_dwordx2 s[{sK}:{sK+1}], s[0:1], {KA_K}')
    I(f's_load_dwordx2 s[{sWO}:{sWO+1}], s[0:1], {KA_WO}')
    VTR = X.get('vtr', 0)
    sV = 76
    if VTR: I(f's_load_dwordx2 s[{sV}:{sV+1}], s[0:1], {KA_V}')
    if 'xfake' in X:
        I(f's_load_dwordx2 s[80:81], s[0:1], {KA_X}')
        I(f's_mov_b32 s82, {2048*1024}'); I('s_mov_b32 s83, 0x00020000')
    I('v_and_b32 v21, 63, v0')
    I('v_lshrrev_b32 v18, 6, v0')
    I(f'v_lshlrev_b32 v{vLANE16}, 4, v21')
    I(f'v_readfirstlane_b32 s{sW}, v18')
    if X.get('xm'):
        lg_ = X['xm']
        I(f's_and_b32 s{sG}, s2, {(7 >> lg_) << lg_}')
        I(f's_bfe_u32 s{t0}, s2, {(lg_ << 16) | 3:#x}')
        I(f's_or_b32 s{sG}, s{sG}, s{t0}')
        I(f's_and_b32 s{sRB}, s2, {(1 << lg_) - 1}')
        I(f's_lshl_b32 s{sRB}, s{sRB}, {5 - lg_}')
        I(f's_lshr_b32 s{t0}, s2, {3 + lg_}')
        I(f's_add_u32 s{sRB}, s{sRB}, s{t0}')
    elif X.get('xmap'):
        I(f's_bfe_u32 s{sG}, s2, 0x30003')
        I(f's_and_b32 s{sRB}, s2, 7')
        I(f's_lshl_b32 s{sRB}, s{sRB}, 2')
        I(f's_lshr_b32 s{t0}, s2, 6')
        I(f's_add_u32 s{sRB}, s{sRB}, s{t0}')
    else:
        I(f's_and_b32 s{sG}, s2, 7')
        I(f's_lshr_b32 s{sRB}, s2, 3')
    R16 = X.get('r16', 0)
    if R16:
        I('v_bfe_u32 v22, v21, 3, 2')
        I('v_lshrrev_b32 v23, 5, v21')
        I('v_lshl_add_u32 v22, v23, 3, v22')
        I('v_and_b32 v23, 7, v21')
        I('v_bfe_u32 v24, v21, 4, 2')
        I('v_lshlrev_b32 v24, 1, v24')
    else:
        I('v_lshrrev_b32 v22, 3, v21')
        I('v_and_b32 v23, 7, v21')
        I('v_bfe_u32 v24, v21, 4, 1')
        I('v_lshlrev_b32 v24, 2, v24')
    I('v_xor_b32 v23, v23, v24')
    I('v_lshlrev_b32 v23, 4, v23')
    I(f'v_lshl_add_u32 v{vD}, v22, 13, v23')
    I(f'v_lshl_add_u32 v{vD2}, v22, 10, v23')
    I('v_lshrrev_b32 v18, 5, v21')
    I('v_lshrrev_b32 v19, 4, v21')
    I('v_lshlrev_b32 v20, 9, v19')
    I('v_and_b32 v25, 7, v21')
    I('v_lshl_add_u32 v20, v25, 3, v20')
    I('v_bfe_u32 v25, v21, 3, 1')
    I('v_xor_b32 v26, 1, v25')
    I('v_lshl_add_u32 v20, v26, 11, v20')
    for d, n in ((sWS, WS_SIZE), (sWQ, 512*8192), (sK, 8*2048*256), (sWO, 4096*1024)) + (((sV, 8*2048*256),) if VTR else ()):
        I(f's_mov_b32 s{d+2}, {n:#x}')
        I(f's_mov_b32 s{d+3}, 0x00020000')
    I(f's_lshr_b32 s{sHD}, s{sW}, 1')
    I(f's_and_b32 s{sRH}, s{sW}, 1')
    I(f's_lshl_b32 s{sW4K}, s{sW}, 12')
    I(f's_lshl_b32 s{t0}, s{sW}, 7')
    I(f's_lshl_b32 s{sBQ}, s{sG}, 10')
    I(f's_add_u32 s{sBQ}, s{sBQ}, s{t0}')
    I(f's_lshl_b32 s{sBK}, s{sG}, 19')
    I(f's_add_u32 s{sBO}, s{sBK}, s{t0}')
    I(f's_add_u32 s{sBK}, s{sBK}, s{sW4K}')
    I(f's_add_u32 s{sBK}, s{sBK}, {1536*256}')
    if not VTR:
        I(f's_lshl_b32 s{sBV}, s{sG}, 17')
        I(f's_add_u32 s{sBV}, s{sBV}, s{sW4K}')
        I(f's_add_u32 s{sBV}, s{sBV}, {WS_VP:#x}')
    I(f's_lshr_b32 s{t0}, s{t0}, 1')
    I(f's_add_u32 s{t0}, s{t0}, {WS_GP:#x}')
    I(f's_lshl_b32 s{t1}, s{sRB}, 16')
    I(f's_lshl_b32 s{t2}, s{sW}, 10')
    I(f's_add_u32 s{t1}, s{t1}, s{t2}')
    I(f's_add_u32 s{t2}, s{t2}, {3*SLOT}')
    I(f'v_add_u32 v{vHW}, s{t2}, v{vLANE16}')
    I('s_waitcnt lgkmcnt(0)')
    st.first()
    MP = 82
    def mploads():
        for p in range(4):
            I(f'buffer_load_dwordx2 v[{MP+2*p}:{MP+2*p+1}], v20, s[{sWS}:{sWS+3}], s{t0} offen')
            if p < 3: I(f's_add_u32 s{t0}, s{t0}, {GP_STRIDE}')
    if 'm' not in X['early'].split(): mploads()
    XR = 32
    def xnload(j):
        L = []
        for rh in range(2):
            L.append(f's_add_u32 s{t2}, s{t1}, {8192*j + 32768*rh}')
            L.append(f'buffer_load_dwordx4 v[{XR+8*j+4*rh}:{XR+8*j+4*rh+3}], v{vLANE16}, ' + (f's[{sWS}:{sWS+3}]' if 'xfake' not in X else 's[80:83]') + f', s{t2} offen' + (' nt' if 'xnt' in X else ''))
        return L
    FP = 90
    def finload():
        FO = 8192 if X.get('c3') == 2 else 0
        L = [f's_lshl_b32 s36, s2, 8', f's_add_u32 s37, s36, {WS_GP + 4096 + FO:#x}', f's_add_u32 s36, s36, {WS_MOD + FO:#x}',
             f's_lshl_b32 s38, s{sW}, 8', 's_add_u32 s38, s38, s2', f's_cmp_ge_u32 s38, {(68, 40, 8)[X.get("c3", 0)]}\ns_cselect_b32 s38, 0x10000000, 0',
             's_add_u32 s36, s36, s38', 's_add_u32 s37, s37, s38', f'v_lshrrev_b32 v20, 2, v{vLANE16}']
        for p in range(4):
            L.append(f'buffer_load_dword v{FP+p}, v20, s[{sWS}:{sWS+3}], s37 offen')
            if p < 3: L.append(f's_add_u32 s37, s37, {GP_STRIDE}')
        return L
    finops = ['s_lshr_b32 s38, s2, 3\ns_cmp_eq_u32 s38, 2\ns_cselect_b32 s38, 1.0, 0', 's_cmp_lt_u32 s2, 32\ns_cselect_b64 s[40:41], -1, 0',
              f'v_add_f32 v{FP}, v{FP}, v{FP+1}', f'v_add_f32 v{FP+2}, v{FP+2}, v{FP+3}', f'v_add_f32 v{FP}, v{FP}, v{FP+2}',
              f'v_cvt_pk_bf16_f32 v{FP+1}, 0, v{FP}', f'v_add_f32 v{FP+1}, s38, v{FP+1}', f'v_cvt_pk_bf16_f32 v{FP+1}, 0, v{FP+1}',
              f'v_cndmask_b32 v{FP}, v{FP}, v{FP+1}, s[40:41]', f'buffer_store_dword v{FP}, v20, s[{sWS}:{sWS+3}], s36 offen']
    if X.get('c3') == 2: finops = finops[2:5] + finops[-1:]
    EX2 = X.get('ex2', 0)
    RING = {0: [0,0,1,1,2,2] if not EX2 else [1,1,2,2,0,0,4,4], 1: [4,4,0,0,1,1]}
    def ent(ph, kk):
        if ph == 0 and EX2: return kk if kk < 8 else (kk - 2) % 6
        return kk % 6
    def nxt_dma(ph, k):
        if ph == 0 and EX2 and k < 8: return k + 8 if k < 6 else None
        return k + 6 if k + 6 < 32 else None
    vAX = [23, 24]
    def wo_row(kk): return ((kk >> 2) & 3)*128 + ((kk >> 4)*4 + (kk & 3))*16
    def a_dma(ph, kk):
        e = ent(ph, kk)
        lds = RING[ph][e]*SLOT + (e & 1)*2048
        if ph == 0:
            so = [kk*16*8192, kk*16*8192 + 8*8192 - 1024]; sb = sBQ; srd_ = sWQ; v = vD
        else:
            so = [wo_row(kk)*1024, wo_row(kk)*1024 + 7168]; sb = sBO; srd_ = sWO; v = vD2
            if 'wosmall' in X: so = [(kk % 8)*16384, (kk % 8)*16384 + 7168]
        if R16:
            r0_ = (32*(kk >> 1) if ph == 0 else wo_row(kk & ~1)) + 4*(kk & 1)
            rs_ = 8192 if ph == 0 else 1024
            so = [r0_*rs_, (r0_ + 16)*rs_ - 1024]
        h0 = f's_add_u32 m0, s{sW4K}, {lds}\ns_add_u32 s{t2}, s{sb}, {so[0]}\nbuffer_load_dwordx4 v{v}, s[{srd_}:{srd_+3}], s{t2} offen lds ; W:E{e}'
        h1 = f's_add_u32 s{t2}, s{sb}, {so[1]}\nbuffer_load_dwordx4 v{v}, s[{srd_}:{srd_+3}], s{t2} offen offset:1024 lds ; W:E{e}'
        return [h0, h1]
    def kv_dma(c, js=(0,1,2,3), tag=None):
        L = [f's_add_u32 m0, s{sW4K}, {slot_of(c)}']
        if c % 2 == 0:
            L.append(f's_add_u32 s{t2}, s{sBK}, {((c-16)//2)*32768}')
            for j in js:
                L.append(f'buffer_load_dwordx4 v{vKD[j]}, s[{sK}:{sK+3}], s{t2} offen offset:{1024*j} lds ; W:C{c}' + (f' W:{tag}' if tag else ''))
        elif VTR:
            L.append(f's_add_u32 s{t2}, s{sBK}, {((c-17)//2)*32768}')
            for j in js:
                L.append(f'buffer_load_dwordx4 v{vD}, s[{sV}:{sV+3}], s{t2} offen offset:{1024*j} lds ; W:C{c}' + (f' W:{tag}' if tag else ''))
        else:
            L.append(f's_add_u32 s{t2}, s{sBV}, {((c-17)//2)*32768}')
            for j in js:
                L.append(f'buffer_load_dwordx4 v{vLANE16}, s[{sWS}:{sWS+3}], s{t2} offen offset:{1024*j} lds ; W:C{c}' + (f' W:{tag}' if tag else ''))
        return L
    def touch_ops(kind):
        L = []
        if 'notouch' in X or ('no' + kind) in X: return L
        if kind == 'wo' and X.get('wox'):
            lg_ = X['xm']
            L.append(f'v_lshlrev_b32 v{vT2}, {1 + lg_}, v{vLANE16}')
            L.append(f's_lshl_b32 s{t0}, s{sG}, 19')
            L.append(f's_and_b32 s{t1}, s{sRB}, {(32 >> lg_) - 1}\ns_lshl_b32 s{t1}, s{t1}, {14 + lg_}')
            L.append(f's_add_u32 s{t0}, s{t0}, s{t1}')
            L.append(f's_lshl_b32 s{t1}, s{sW}, {11 + lg_}')
            L.append(f's_add_u32 s{t0}, s{t0}, s{t1}')
            L.append(f'buffer_load_dword v{vT2}, v{vT2}, s[{sWO}:{sWO+3}], s{t0} offen')
        elif kind == 'wo':
            L.append(f'v_lshlrev_b32 v{vT2}, 1, v{vLANE16}')
            L.append(f's_lshl_b32 s{t0}, s{sG}, 19')
            L.append(f's_lshl_b32 s{t1}, s{sRB}, 14')
            L.append(f's_add_u32 s{t0}, s{t0}, s{t1}')
            L.append(f's_lshl_b32 s{t1}, s{sW}, 11')
            L.append(f's_add_u32 s{t0}, s{t0}, s{t1}')
            L.append(f'buffer_load_dword v{vT2}, v{vT2}, s[{sWO}:{sWO+3}], s{t0} offen')
        elif X.get('wbmode', 1) == 0:
            d = sTC
            L.append(f'v_lshlrev_b32 v{vT2}, 3, v{vLANE16}')
            L.append(f's_cmp_eq_u32 s{sHD}, 1\ns_cselect_b32 s{d}, s58, s56\ns_cselect_b32 s{d+1}, s59, s57')
            L.append(f's_cmp_eq_u32 s{sHD}, 2\ns_cselect_b32 s{d}, s60, s{d}\ns_cselect_b32 s{d+1}, s61, s{d+1}')
            L.append(f's_cmp_eq_u32 s{sHD}, 3\ns_cselect_b32 s{d}, s62, s{d}\ns_cselect_b32 s{d+1}, s63, s{d+1}')
            L.append(f's_mov_b32 s{d+2}, {512*1024}\ns_movk_i32 s{t0}, 2048\ns_cmp_ge_u32 s{sHD}, 2\ns_cselect_b32 s{d+2}, {1792*1024}, s{d+2}\ns_cselect_b32 s{t0}, 7168, s{t0}')
            L.append(f's_mov_b32 s{d+3}, 0x00020000')
            L.append(f's_mul_i32 s{t0}, s{t0}, s2')
            L.append(f'buffer_load_dword v{vT2}, v{vT2}, s[{d}:{d+3}], s{t0} offen')
        else:
            d = sTC
            L.append(f'v_lshlrev_b32 v{vT2}, 3, v{vLANE16}')
            L.append(f's_cmp_eq_u32 s{sHD}, 1\ns_cselect_b32 s{d}, s58, s{sWS}\ns_cselect_b32 s{d+1}, s59, s{sWS+1}\ns_cselect_b32 s{d+2}, {512*1024}, s{sWS+2}\ns_cselect_b32 s{t1}, 0, {WS_W1P:#x}')
            L.append(f's_cmp_eq_u32 s{sHD}, 2\ns_cselect_b32 s{d}, s60, s{d}\ns_cselect_b32 s{d+1}, s61, s{d+1}')
            L.append(f's_cmp_eq_u32 s{sHD}, 3\ns_cselect_b32 s{d}, s62, s{d}\ns_cselect_b32 s{d+1}, s63, s{d+1}')
            L.append((f's_lshr_b32 s{t0}, s2, 3\ns_lshl_b32 s{t0}, s{t0}, 14' if X.get('xi') else f's_lshl_b32 s{t0}, s{sRB}, 14') + f'\ns_add_u32 s{t1}, s{t1}, s{t0}\ns_lshl_b32 s{t0}, s{sRH}, 13\ns_add_u32 s{t1}, s{t1}, s{t0}')
            L.append(f's_mul_i32 s{t0}, s2, 7168\ns_cmp_ge_u32 s{sHD}, 2\ns_cselect_b32 s{d+2}, {1792*1024}, s{d+2}\ns_cselect_b32 s{t0}, s{t0}, s{t1}')
            L.append(f's_mov_b32 s{d+3}, 0x00020000')
            L.append(f'buffer_load_dword v{vT2}, v{vT2}, s[{d}:{d+3}], s{t0} offen')
        return L
    def pf_ops(kind):
        d = sTC
        L = []
        if kind == 'w4':
            L.append(f'v_lshrrev_b32 v{vT2}, 4, v{vLANE16}\nv_min_u32 v{vT2}, 55, v{vT2}\nv_lshlrev_b32 v{vT2}, 7, v{vT2}')
            L.append(f's_mov_b32 s{d}, s62\ns_mov_b32 s{d+1}, s63\ns_mov_b32 s{d+2}, {1792*1024}\ns_mov_b32 s{d+3}, 0x00020000')
            L.append(f's_lshl_b32 s{t0}, s{sRB}, 3\ns_add_u32 s{t0}, s{t0}, s{sW}\ns_mul_i32 s{t0}, s{t0}, 7168')
        elif kind == 'w3':
            L.append(f'v_bfe_u32 v{vT2}, v{vLANE16}, 4, 5\nv_min_u32 v{vT2}, 13, v{vT2}\nv_lshlrev_b32 v{vT2}, 7, v{vT2}')
            L.append(f'v_lshrrev_b32 v{vT1}, 9, v{vLANE16}\nv_mul_u32_u24 v{vT1}, 3584, v{vT1}\nv_add_u32 v{vT2}, v{vT2}, v{vT1}')
            L.append(f's_mov_b32 s{d}, s60\ns_mov_b32 s{d+1}, s61\ns_mov_b32 s{d+2}, {512*3584}\ns_mov_b32 s{d+3}, 0x00020000')
            L.append(f's_lshl_b32 s{t0}, s{sRB}, 3\ns_add_u32 s{t0}, s{t0}, s{sW}\ns_mul_i32 s{t0}, s{t0}, {2*3584}\ns_and_b32 s{t1}, s{sG}, 1\ns_mul_i32 s{t1}, s{t1}, 1792\ns_add_u32 s{t0}, s{t0}, s{t1}')
        L.append(f'buffer_load_dword v{vT2}, v{vT2}, s[{d}:{d+3}], s{t0} offen')
        return L
    def start_touch():
        if 'notouch' in X: return
        I('v_bfe_u32 v22, v21, 3, 1')
        I('v_and_b32 v23, 7, v21')
        I('v_lshlrev_b32 v22, 13, v22')
        I('v_lshl_add_u32 v22, v23, 7, v22')
        I(f's_lshl_b32 s100, s{sRB}, 17')
        I(f's_lshl_b32 s{t2}, s{sW}, 14')
        I(f's_add_u32 s100, s100, s{t2}')
        I(f's_lshl_b32 s{t2}, s{sG}, 10')
        I(f's_add_u32 s100, s100, s{t2}')
        I(f'buffer_load_dword v94, v22, s[{sWQ}:{sWQ+3}], s100 offen')
        I('v_and_b32 v23, 3, v21')
        I('v_lshlrev_b32 v23, 7, v23')
        I(f's_lshl_b32 s100, s{sG}, 19')
        I(f's_lshl_b32 s{t2}, s{sRB}, 12')
        I(f's_add_u32 s100, s100, s{t2}')
        I(f's_lshl_b32 s{t2}, s{sW}, 9')
        I(f's_add_u32 s100, s100, s{t2}')
        I(f's_add_u32 s100, s100, {1536*256}')
        I(f'buffer_load_dword v95, v23, s[{sK}:{sK+3}], s100 offen')
    def touch2(kind, dst):
        L = []
        if kind == 'W':
            n_ = X.get('wn', 2); ln_ = n_.bit_length() - 1
            L.append(f'v_and_b32 v{dst}, 0x70, v{vLANE16}')
            L.append(f'v_lshlrev_b32 v{dst}, 3, v{dst}')
            L.append(f'v_bfe_u32 v{dst+1}, v{vLANE16}, 7, {ln_}')
            L.append(f'v_lshl_add_u32 v{dst}, v{dst+1}, 13, v{dst}')
            L.append(f's_and_b32 s44, s{sRB}, 7\ns_lshl_b32 s44, s44, 3\ns_add_u32 s44, s44, s{sW}\ns_lshl_b32 s44, s44, {13 + ln_}\ns_lshl_b32 s45, s{sG}, 10\ns_add_u32 s44, s44, s45')
            L.append(f'buffer_load_dword v{dst}, v{dst}, s[{sWQ}:{sWQ+3}], s44 offen')
        elif kind == 'T':
            L.append(f'v_and_b32 v{dst}, 0x70, v{vLANE16}')
            L.append(f'v_lshlrev_b32 v{dst}, 3, v{dst}')
            L.append(f'v_bfe_u32 v{dst+1}, v{vLANE16}, 7, 1')
            L.append(f'v_lshl_add_u32 v{dst}, v{dst+1}, 13, v{dst}')
            L.append(f's_lshl_b32 s44, s{sRB}, 16\ns_and_b32 s45, s{sW}, 3\ns_lshl_b32 s45, s45, 14\ns_add_u32 s44, s44, s45\ns_lshl_b32 s45, s{sG}, 10\ns_add_u32 s44, s44, s45\n'
                     f's_lshr_b32 s45, s{sW}, 2\ns_lshl_b32 s45, s45, 21\ns_add_u32 s44, s44, s45')
            L.append(f'buffer_load_dword v{dst}, v{dst}, s[{sWQ}:{sWQ+3}], s44 offen')
        elif kind in 'uv':
            L.append(f'v_and_b32 v{dst}, 0x70, v{vLANE16}')
            L.append(f'v_lshlrev_b32 v{dst}, 3, v{dst}')
            L.append(f's_lshl_b32 s44, s{sRB}, 16\ns_lshl_b32 s45, s{sW}, 13\ns_add_u32 s44, s44, s45\ns_lshl_b32 s45, s{sG}, 10\ns_add_u32 s44, s44, s45' + (f'\ns_add_u32 s44, s44, {256*8192}' if kind == 'v' else ''))
            L.append(f'buffer_load_dword v{dst}, v{dst}, s[{sWQ}:{sWQ+3}], s44 offen')
        else:
            L.append(f'v_and_b32 v{dst}, 0x30, v{vLANE16}')
            L.append(f'v_lshlrev_b32 v{dst}, 3, v{dst}')
            L.append(f's_lshl_b32 s44, s{sG}, 19\ns_lshl_b32 s45, s{sRB}, 12\ns_add_u32 s44, s44, s45\ns_lshl_b32 s45, s{sW}, 9\ns_add_u32 s44, s44, s45\ns_add_u32 s44, s44, {1536*256}')
            sx = sK if kind == 'k' else sV
            L.append(f'buffer_load_dword v{dst}, v{dst}, s[{sx}:{sx+3}], s44 offen')
        return L
    TD = {'u': 94, 'v': 95, 'k': 93, 'w': 89, 'T': 94, 'W': 90}
    early = X.get('early', 'x0 a0 a1 t x1 a2 a3') if isinstance(X, dict) else 'x0 a0 a1 t x1 a2 a3'
    late = X.get('late', 'a4 a5 x2 x3 f') if isinstance(X, dict) else 'a4 a5 x2 x3 f'
    def emit_order(o):
        for tok in o.split():
            if tok == 't': start_touch()
            elif tok[0] == 'P': I(f's_setprio {tok[1]}')
            elif tok == 'm': mploads()
            elif tok == 'f':
                for s in finload(): I(s)
            elif tok in TD:
                for s in touch2(tok, TD[tok]): I(s)
            elif tok[0] == 'x':
                for s in xnload(int(tok[1])): I(s)
            else:
                for s in a_dma(0, int(tok[1])): I(s)
    emit_order(early)
    if X.get('pst'): st()
    if R16:
        I('v_lshrrev_b32 v22, 2, v21')
        I('v_lshlrev_b32 v22, 7, v22')
        I('v_and_b32 v23, 3, v21')
        I('v_lshl_add_u32 v22, v23, 3, v22')
        I(f'v_add_u32 v22, s{sW4K}, v22')
        I('v_bfe_u32 v23, v21, 3, 2')
        for nt in range(4):
            I(f'v_xor_b32 v24, {nt}, v23')
            I(f'v_lshl_add_u32 v{vA[nt]}, v24, 5, v22')
    else:
        I('v_bfe_u32 v19, v21, 2, 2')
        I('v_lshl_add_u32 v22, v18, 3, v19')
        I('v_lshlrev_b32 v22, 7, v22')
        I('v_bfe_u32 v23, v21, 4, 1')
        I('v_lshl_add_u32 v22, v23, 5, v22')
        I('v_and_b32 v23, 1, v21')
        I('v_lshl_add_u32 v22, v23, 4, v22')
        I('v_bfe_u32 v23, v21, 1, 1')
        I('v_lshl_add_u32 v22, v23, 3, v22')
        I(f'v_add_u32 v22, s{sW4K}, v22')
        I('v_bfe_u32 v23, v21, 3, 1')
        I(f'v_lshl_add_u32 v{vA[0]}, v23, 6, v22')
        I('v_xor_b32 v23, 1, v23')
        I(f'v_lshl_add_u32 v{vA[1]}, v23, 6, v22')
        I(f'v_add_u32 v{vA[2]}, {2*SLOT}, v{vA[0]}')
        I(f'v_add_u32 v{vA[3]}, {2*SLOT}, v{vA[1]}')
    I('v_and_b32 v24, 31, v21')
    I('v_and_b32 v22, 15, v21')
    I('v_xor_b32 v22, v22, v18')
    I(f's_lshl_b32 s{t2}, s{sRH}, 3')
    I(f'v_xor_b32 v22, s{t2}, v22')
    I('v_lshlrev_b32 v24, 8, v24')
    I(f'v_add_u32 v24, {slot_of(16)}, v24')
    for s in range(8):
        I(f'v_xor_b32 v23, {2*s}, v22')
        I(f'v_lshl_add_u32 v{vKA[s]}, v23, 4, v24')
    I('v_lshrrev_b32 v24, 4, v21')
    I('v_and_b32 v22, 15, v21')
    I('v_xor_b32 v22, v22, v24')
    I('v_lshlrev_b32 v24, 8, v24')
    for j in range(4):
        I(f'v_xor_b32 v23, {4*j}, v22')
        I(f'v_lshl_add_u32 v{vKD[j]}, v23, 4, v24')
    I(f's_lshl_b32 s{t2}, s{sRH}, 14')
    I(f's_add_u32 s{t2}, s{t2}, {3*SLOT}')
    if R16:
        I('v_and_b32 v22, 15, v21')
        I('v_lshlrev_b32 v22, 4, v22')
        I('v_lshrrev_b32 v23, 4, v21')
        I('v_lshl_add_u32 v22, v23, 9, v22')
        I(f'v_add_u32 v{vB[0]}, s{t2}, v22')
    else:
        I(f'v_add_u32 v{vB[0]}, s{t2}, v{vLANE16}')
    I(f'v_xor_b32 v{vB[1]}, 0x4000, v{vB[0]}')
    I('v_mov_b32 v80, 0x3f80')
    I('v_mov_b32 v81, 0x3f800000')
    emit_order(X.get('mid', ''))
    I('v_cvt_f32_u32 v26, v26')
    I('v_cmp_eq_u32 vcc, 0, v21')
    I('v_lshrrev_b32 v25, 3, v21')
    MALL = X.get('mall', 1)
    if MALL == 4:
        I('v_and_b32 v25, 1, v25')
    elif MALL == 2:
        I('v_and_b32 v25, 5, v25')
    elif MALL == 3:
        I('v_cmp_eq_u32 vcc, 6, v25')
        I('v_cndmask_b32 v25, v25, 1, vcc')
        I('v_and_b32 v25, 1, v25')
    I('v_cmp_eq_u32 vcc, 0, v25')
    I('v_cndmask_b32 v25, 0, 16, vcc')
    STG = 3*SLOT + 16384 + 8192
    I(f's_lshl_b32 s{t2}, s{sW}, 10')
    I(f's_add_u32 s{t2}, s{t2}, {STG}')
    I(f'v_lshl_add_u32 v24, v21, 3, s{t2}')
    I(f'v_lshl_add_u32 v23, v18, 5, s{t2}')
    MO = 96
    TT = 64
    def hwrite(j, rh):
        return f'ds_write_b128 v{vHW}, v[{XR+8*j+4*rh}:{XR+8*j+4*rh+3}] offset:{(j >> 1)*32768 + (j & 1)*8192 + rh*16384}'
    def sect():
        if X.get('pst'): st()
        for e in range(2):
            I(f'v_add_f32 v{MP+e}, v{MP+e}, v{MP+2+e}')
            I(f'v_add_f32 v{MP+4+e}, v{MP+4+e}, v{MP+6+e}')
        for e in range(2): I(f'v_add_f32 v{MP+e}, v{MP+e}, v{MP+4+e}')
        for e in range(2): rnd_bf16(a, MP+e, MP+e)
        for e in range(2): I(f'v_add_f32 v{MP+e}, v{MP+e}, v26')
        for e in range(2): rnd_bf16(a, MP+e, MP+e)
        I(f'v_lshrrev_b32 v{MP}, v25, v{MP}')
        I(f'ds_write_b64 v24, v[{MP}:{MP+1}]')
        if X.get('pst'): st()
        for j in range(4):
            for q, off in enumerate((0, 16, 64, 80)):
                I(f'ds_read_b128 v[{MO+16*j+4*q}:{MO+16*j+4*q+3}], v23 offset:{128*j + off}')
        for rh in range(2):
            xb = XR + 4*rh
            for d in range(4):
                I(f'v_dot2_f32_bf16 v{TT+2*d}, v{xb+d}, v{MO+2*d}, 0')
                I(f'v_dot2_f32_bf16 v{TT+2*d+1}, v{xb+d}, v{MO+2*d+1}, 0')
            for d in range(4):
                I(f'v_cvt_pk_bf16_f32 v{xb+d}, v{TT+2*d}, v{TT+2*d+1}')
            for d in range(4):
                I(f'v_dot2_f32_bf16 v{TT+8+2*d}, v{xb+d}, v80, v{MO+8+2*d}')
                I(f'v_dot2_f32_bf16 v{TT+8+2*d+1}, v{xb+d}, v81, v{MO+8+2*d+1}')
            for d in range(4):
                I(f'v_cvt_pk_bf16_f32 v{xb+d}, v{TT+8+2*d}, v{TT+8+2*d+1}')
            I(hwrite(0, rh))
            if X.get('pst'): st()
    if X.get('dup'):
        I(f's_cmp_ge_u32 s{sW}, 4')
        I('s_cbranch_scc1 K1_dB')
        snap = (list(a.vm_q), list(a.lds_q), list(a.hist), st.n)
        emit_order(X['dup'])
        sect()
        I('s_branch K1_dJ')
        qa = list(a.vm_q)
        a.raw('K1_dB:')
        a.vm_q, a.lds_q, a.hist, st.n = list(snap[0]), list(snap[1]), [], snap[3]
        I('s_nop 1')
        sect()
        if not X.get('dupB'): emit_order(X['dup'])
        a.raw('K1_dJ:')
        if X.get('dupB'):
            n0_ = len(a.out)
            emit_order(X['dup'])
            split_code = list(a.out[n0_:]); del a.out[n0_:]
        assert qa == a.vm_q, (qa, a.vm_q)
    elif X.get('cnd'):
        I('s_waitcnt vmcnt(0)')
        I(f's_cmp_ge_u32 s{sW}, 4')
        I('s_cbranch_scc1 K1_sp0')
        n0_ = len(a.out)
        emit_order(X['cnd'])
        split_code = list(a.out[n0_:])
        a.raw('K1_sp0:')
        sect()
        if X.get('cndL'):
            I(f's_cmp_lt_u32 s{sW}, 4')
            I('s_cbranch_scc1 K1_sp1')
            a.out += split_code
            a.raw('K1_sp1:')
    else:
        sect()
    def modq(j):
        L = []
        sb = MO + 16*j
        for rh in range(2):
            for half in range(2):
                seq = []
                for d in (2*half, 2*half+1):
                    x = XR + 8*j + 4*rh + d; lo = TT + 2*d; hi = lo + 1
                    if X.get('mod5'):
                        seq.append([f'v_lshlrev_b32 v{lo}, 16, v{x}', f'v_and_b32 v{hi}, 0xffff0000, v{x}',
                                    f'v_fma_f32 v{lo}, v{sb+2*d}, v{lo}, v{sb+8+2*d}', f'v_fma_f32 v{hi}, v{sb+2*d+1}, v{hi}, v{sb+8+2*d+1}',
                                    f'v_cvt_pk_bf16_f32 v{x}, v{lo}, v{hi}'])
                    else:
                        seq.append([f'v_lshlrev_b32 v{lo}, 16, v{x}', f'v_and_b32 v{hi}, 0xffff0000, v{x}',
                                f'v_mul_f32 v{lo}, v{sb+2*d}, v{lo}', f'v_mul_f32 v{hi}, v{sb+2*d+1}, v{hi}',
                                f'v_cvt_pk_bf16_f32 v{lo}, 0, v{lo}', f'v_cvt_pk_bf16_f32 v{hi}, 0, v{hi}',
                                f'v_add_f32 v{lo}, v{sb+8+2*d}, v{lo}', f'v_add_f32 v{hi}, v{sb+8+2*d+1}, v{hi}',
                                f'v_cvt_pk_bf16_f32 v{x}, v{lo}, v{hi}'])
                n = len(seq[0]) - 1
                for k in range(0, n, 2):
                    for q in seq: L += q[k:k+2]
                for q in seq: L.append(q[n])
            L.append(hwrite(j, rh))
        return L
    SK = X.get('skew', 0)
    ABUF = [224, 232, 128, 136, 144, 152, 160, 168, 176, 184, 192, 200, 208, 216]
    def abuf(ph, kk):
        if ph == 1 and SK: return ABUF[kk % (SK + 2)]
        return AF + 8*(kk & 1)
    def a_reads(ph, kk, nt):
        e = ent(ph, kk); sl = RING[ph][e]
        hi = sl >= 2
        off = (0 if hi else sl*SLOT) + (e & 1)*2048
        d = abuf(ph, kk) + 4*nt
        va = vA[2*hi+nt] if e < 6 else vAX[nt]
        return [f'ds_read_b64_tr_b16 v[{d+2*t}:{d+2*t+1}], v{va} offset:{off + 512*t} ; R:E{e}' for t in range(2)]
    def b_read(kk, b):
        d = BFB + 8*(kk & 1) + 4*b
        return f'ds_read_b128 v[{d}:{d+3}], v{vB[b]} offset:{(kk >> 4)*32768 + (kk & 15)*1024}'
    if X.get('split'):
        I(f's_cmp_ge_u32 s{sW}, 4')
        I('s_cbranch_scc1 K1_sp0')
        n0_ = len(a.out)
        emit_order(late)
        split_code = list(a.out[n0_:])
        a.raw('K1_sp0:')
    else:
        emit_order(late)
    for j in range(1, MALL):
        if X.get('milp'):
            mo = MO + 16*j; TB_ = (160, 176)
            if X.get('pst') == 2 and j == 1:
                I(f'v_mov_b32 v192, v{XR+8*3+7}')
                st()
            for rh in range(2):
                for d in range(4):
                    I(f'v_dot2_f32_bf16 v{TB_[rh]+2*d}, v{XR+8*j+4*rh+d}, v{mo+2*d}, 0')
                    I(f'v_dot2_f32_bf16 v{TB_[rh]+2*d+1}, v{XR+8*j+4*rh+d}, v{mo+2*d+1}, 0')
            for rh in range(2):
                for d in range(4):
                    I(f'v_cvt_pk_bf16_f32 v{XR+8*j+4*rh+d}, v{TB_[rh]+2*d}, v{TB_[rh]+2*d+1}')
            for rh in range(2):
                for d in range(4):
                    I(f'v_dot2_f32_bf16 v{TB_[rh]+8+2*d}, v{XR+8*j+4*rh+d}, v80, v{mo+8+2*d}')
                    I(f'v_dot2_f32_bf16 v{TB_[rh]+8+2*d+1}, v{XR+8*j+4*rh+d}, v81, v{mo+8+2*d+1}')
            for rh in range(2):
                for d in range(4):
                    I(f'v_cvt_pk_bf16_f32 v{XR+8*j+4*rh+d}, v{TB_[rh]+8+2*d}, v{TB_[rh]+8+2*d+1}')
                I(hwrite(j, rh))
            if X.get('pst'): st()
            emit_order(X.get('late%d' % j, ''))
            continue
        for rh in range(2):
            xb = XR + 8*j + 4*rh; mo = MO + 16*j
            for d in range(4):
                I(f'v_dot2_f32_bf16 v{TT+2*d}, v{xb+d}, v{mo+2*d}, 0')
                I(f'v_dot2_f32_bf16 v{TT+2*d+1}, v{xb+d}, v{mo+2*d+1}, 0')
            for d in range(4):
                I(f'v_cvt_pk_bf16_f32 v{xb+d}, v{TT+2*d}, v{TT+2*d+1}')
            for d in range(4):
                I(f'v_dot2_f32_bf16 v{TT+8+2*d}, v{xb+d}, v80, v{mo+8+2*d}')
                I(f'v_dot2_f32_bf16 v{TT+8+2*d+1}, v{xb+d}, v81, v{mo+8+2*d+1}')
            for d in range(4):
                I(f'v_cvt_pk_bf16_f32 v{xb+d}, v{TT+8+2*d}, v{TT+8+2*d+1}')
            I(hwrite(j, rh))
        if X.get('pst'): st()
        emit_order(X.get('late%d' % j, ''))
    if EX2:
        I(f'v_add_u32 v{vAX[0]}, {4*SLOT}, v{vA[0]}')
        I(f'v_add_u32 v{vAX[1]}, {4*SLOT}, v{vA[1]}')
    vAH = {0: [21, 22, 25, 26], 1: vKA[4:8] if X.get('c3') else vKD}
    def a_reads16(ph, s_, nt, d):
        L = []
        for t in range(2):
            e = ent(ph, 2*s_ + t); sl = RING[ph][e]; hi = sl >= 2
            off = (0 if hi else sl*SLOT) + t*2048
            va = vAH[ph][nt] if hi else vA[nt]
            L.append(f'ds_read_b64_tr_b16 v[{d+2*t}:{d+2*t+1}], v{va} offset:{off} ; R:E{e}')
        return L
    def b_read16(s_, rq, d):
        return f'ds_read_b128 v[{d}:{d+3}], v{vB[rq >> 1]} offset:{(s_ >> 3)*32768 + ((2*s_) & 15)*1024 + (rq & 1)*256}'
    ORDS = {0: [(i & 3, i >> 2) for i in range(16)],
            1: [(0,0),(1,0),(0,1),(1,1), (2,0),(3,0),(2,1),(3,1), (2,2),(3,2),(2,3),(3,3), (0,2),(1,2),(0,3),(1,3)]}
    def plan16(ph, slots, bmin, lastb=None):
        o = ORDS[X.get('ord16', 0)]
        seq = []
        for s_ in range(16):
            for (mt, rq) in o:
                seq.append((s_, mt, rq ^ 2 if (lastb and s_ == 15) else rq))
        first = {}; last = {}
        for n, (s_, mt, rq) in enumerate(seq):
            for fr in ((s_, 'A', mt), (s_, 'B', rq)):
                first.setdefault(fr, n); last[fr] = n
        pend = sorted(first, key=lambda fr: (first[fr], fr[1]))
        LA = X.get('la16', (10, 10))[ph]
        free = list(slots); reg = {}; issue = {}
        n = -1
        while n < 255:
            for fr in [f_ for f_ in reg if last[f_] == n]: free.append(reg[fr])
            cnt = 0
            while pend and free and (n < 0 or cnt < 1):
                fr = pend[0]
                if first[fr] - n > LA: break
                if fr[1] == 'B' and n < bmin.get(fr[0], -1): break
                reg[fr] = free.pop(0); issue.setdefault(n, []).append(fr); pend.pop(0); cnt += 1
            assert not pend or first[pend[0]] > n + 1 or True
            n += 1
        assert not pend
        for fr in reg:
            ni = [k for k in issue if fr in issue[k]][0]
            assert ni < first[fr], (fr, ni, first[fr])
        return seq, issue, reg
    def ld16(ph, fr, reg):
        return a_reads16(ph, fr[0], fr[2], reg[fr]) if fr[1] == 'A' else [b_read16(fr[0], fr[2], reg[fr])]
    def gemm16(ph, acc, tail, side, bars, plan):
        seq, issue, reg = plan
        a.lg_extra, a.lg_keep = X.get('lgg', (0, 0))
        for kk in range(32):
            if kk in bars:
                I('s_waitcnt lgkmcnt(0)')
                I('s_barrier')
            pr = X.get('prio', (0, 8, 16, 24))
            if kk in X.get('p2st' if ph == 0 else 'p4st', ()): st()
            if pr and kk in pr: I(f's_setprio {3 - pr.index(kk)}')
            if nxt_dma(ph, kk) is not None: dm = a_dma(ph, nxt_dma(ph, kk))
            else: dm = tail.get(kk, ['', ''])
            dpos = X.get('dpos16', ((4, 6), (1, 2)))[kk & 1]
            main = []
            for i in range(8):
                n = 8*kk + i
                s_, mt, rq = seq[n]
                d = acc + 4*(4*rq + mt)
                cc = '0' if s_ == 0 else f'v[{d}:{d+3}]'
                A = reg[(s_, 'A', mt)]; B = reg[(s_, 'B', rq)]
                main.append(f'v_mfma_f32_16x16x32_bf16 v[{d}:{d+3}], v[{A}:{A+3}], v[{B}:{B+3}], {cc}')
                for fr in issue.get(n, []): main += ld16(ph, fr, reg)
                for h_ in range(2):
                    if i == dpos[h_] and dm[h_]: main.append(dm[h_])
            for s in interleave(main, side.get(kk, [])): I(s)
            if ph == 0 and kk in X.get('after', {}): emit_order(X['after'][kk])
        a.lg_extra = a.lg_keep = 0
    def pack16(dst, acc, b):
        L = []
        for nt in range(4):
            g_ = []
            for p in range(2):
                d = acc + 4*(4*(2*b + p) + nt)
                for e in range(2):
                    g_.append(f'v_cvt_pk_bf16_f32 v{dst+4*nt+2*p+e}, v{d+2*e}, v{d+2*e+1}')
            for e in range(2):
                g_.append(f'v_permlane16_swap_b32 v{dst+4*nt+e}, v{dst+4*nt+2+e}')
            L.append(g_)
        return L
    if R16:
        for nt in range(4): I(f'v_add_u32 v{vAH[0][nt]}, {2*SLOT}, v{vA[nt]}')
        p2b = [0]*(MALL - 1) + sorted(X.get('bars'))
        assert len(p2b) == 3
        plan2 = plan16(0, list(range(AF, 256, 4)), {s_: 8*p2b[s_//4 - 1] - 1 + 1 if s_ >= 4 else -1 for s_ in range(16)}, lastb=True)
        for fr in plan2[1][-1]:
            if fr[1] == 'A' and not X.get('alate'):
                for s in ld16(0, fr, plan2[2]): I(s)
    else:
        for s in a_reads(0, 0, 0) + a_reads(0, 0, 1): I(s)
    I('s_waitcnt lgkmcnt(0)')
    if X.get('pst'): st()
    I('s_barrier')
    st()

    def gemm_phase(ph, acc, tail, side, bars, lastorder=None):
        for kk in range(32):
            if kk in bars:
                I('s_waitcnt lgkmcnt(0)')
                I('s_barrier')
            buf = kk & 1
            pr = X.get('prio', (0, 8, 16, 24)) if isinstance(X, dict) else (0, 8, 16, 24)
            if ph == 0 and isinstance(X, dict) and kk in X.get('p2st', ()): st()
            if pr and kk in pr: I(f's_setprio {3 - pr.index(kk)}')
            order = [(0,0), (1,0), (0,1), (1,1)]
            if kk == 31 and lastorder: order = lastorder
            mf = []
            for (mt, b) in order:
                d = acc + 16*(2*b + mt)
                cc = '0' if kk == 0 else f'v[{d}:{d+15}]'
                A = AF + 8*buf + 4*mt; B = BFB + 8*buf + 4*b
                pm, pb = order[max(0, order.index((mt, b)) - 1)]
                mf.append(MF('p2' if ph == 0 else 'p4', d, A, B, kk == 0, AF + 8*buf + 4*pm, BFB + 8*buf + 4*pb))
            if kk < 31:
                r0 = a_reads(ph, kk+1, 0) + [b_read(kk+1, 0)]
                r1 = a_reads(ph, kk+1, 1) + [b_read(kk+1, 1)]
            else:
                r0 = r1 = []
            if ph == 1 and isinstance(X, dict) and 'p4last' in X:
                last = X['p4last']
                js = [j for j in range(6, 32) if (((j-6)*last + 12)//25) == kk]
                dm = a_dma(ph, js[0]) if js else ['', '']
            elif nxt_dma(ph, kk) is not None: dm = a_dma(ph, nxt_dma(ph, kk))
            else: dm = tail.get(kk, ['', ''])
            if ph == 1 and 'p4nodma' in X: dm = ['', '']
            if ph == 1 and 'p4noa' in X: r0 = r0[2:]; r1 = r1[2:]
            if ph == 1 and 'p4nob' in X: r0 = r0[:-1]; r1 = r1[:-1]
            main = [mf[0]] + r0 + [mf[1]] + r1 + [mf[2]] + ([dm[0]] if dm[0] else []) + [mf[3]] + ([dm[1]] if dm[1] else [])
            for s in interleave(main, side.get(kk, [])): I(s)
            if ph == 0 and kk in X.get('after', {}): emit_order(X['after'][kk])

    def gemm_skew(acc, side, bars, st0):
        D = SK
        pr = X.get('prio4', (0, 10, 20, 30))
        for s_ in range(32 + D):
            if s_ in bars:
                I('s_waitcnt lgkmcnt(0)')
                I('s_barrier')
            if pr and s_ in pr: I(f's_setprio {3 - pr.index(s_)}')
            def mfm(kk, b):
                L = []
                for mt in range(2):
                    d = acc + 16*(2*b + mt)
                    cc = '0' if kk == 0 else f'v[{d}:{d+15}]'
                    A = abuf(1, kk) + 4*mt; B = BFB + 8*(kk & 1) + 4*b
                    L.append(f'v_mfma_f32_32x32x16_bf16 v[{d}:{d+15}], v[{A}:{A+3}], v[{B}:{B+3}], {cc}')
                return L
            m0_ = mfm(s_, 0) if s_ < 32 else []
            m1_ = mfm(s_ - D, 1) if s_ >= D else []
            r0 = (a_reads(1, s_+1, 0) + [b_read(s_+1, 0)]) if s_ + 1 < 32 else []
            r1 = (a_reads(1, s_+1, 1) if s_ + 1 < 32 else []) + ([b_read(s_+1-D, 1)] if 0 <= s_ + 1 - D < 32 else [])
            dm = a_dma(1, s_+6) if s_ + 6 < 32 else ['', '']
            mf = m0_ + m1_
            slots = [r0, r1, [dm[0]] if dm[0] else [], [dm[1]] if dm[1] else []]
            main = []
            if len(mf) == 4:
                for m, sl_ in zip(mf, slots): main += [m] + sl_
            else:
                main = [mf[0]] + slots[0] + slots[1] + [mf[1]] + slots[2] + slots[3]
            sd = list(side.get(s_, []))
            if s_ >= 33:
                n = len(st0); k = s_ - 33; tot = D - 1
                sd += st0[n*k//tot: n*(k+1)//tot]
            for s in interleave(main, sd): I(s)

    def split(L, n):
        return [L[len(L)*i//n: len(L)*(i+1)//n] for i in range(n)]
    side = {}
    XD = X if isinstance(X, dict) else {}
    for j, k0, n in XD.get('mq', ((1, 0, 4), (2, 4, 4), (3, 8, 4))):
        for i, part in enumerate(split(modq(j), n)):
            side[k0 + i] = side.get(k0 + i, []) + part
    for tok, kk in XD.get('sl', ()):
        L = finload() if tok == 'f' else touch2(tok, TD[tok]) if tok in TD else ['\n'.join(xnload(int(tok[1]))[2*i:2*i+2]) for i in range(2)]
        side[kk] = L + side.get(kk, [])
    fk = XD.get('fin', 14)
    side[fk] = side.get(fk, []) + finops
    if VTR: side[26] = side.get(26, []) + [f'v_lshrrev_b32 v{vD}, 8, v{vLANE16}', f'v_lshlrev_b32 v{vD}, 6, v{vD}', f'v_xor_b32 v{vD}, v{vD}, v{vLANE16}']
    p2bars = set(XD.get('bars', (6, 13)))
    tail = {}
    for kk, c, js in ((26, 16, (0,1)), (27, 16, (2,3)), (28, 17, (0,1)), (29, 17, (2,3))):
        if c == 17 and X.get('v0late'): continue
        L = kv_dma(c, js, tag=f'E{ent(0, kk)}')
        tail[kk] = ['\n'.join(L[:3]), L[3]]
    if R16:
        for fr in plan2[1][-1]:
            if fr[1] == 'B':
                for s in ld16(0, fr, plan2[2]): I(s)
        if X.get('split') or X.get('dupB') or (X.get('cnd') and not X.get('cndL')):
            I(f's_cmp_lt_u32 s{sW}, 4')
            I('s_cbranch_scc1 K1_sp1')
            a.out += split_code
            a.raw('K1_sp1:')
        emit_order(X.get('post', ''))
        for fr in plan2[1][-1]:
            if fr[1] == 'A' and X.get('alate'):
                for s in ld16(0, fr, plan2[2]): I(s)
        gemm16(0, ACC, tail, side, p2bars, plan2)
    else:
        for s in [b_read(0, 0), b_read(0, 1)]: I(s)
        emit_order(X.get('post', ''))
        gemm_phase(0, ACC, tail, side, p2bars, lastorder=[(0,1), (1,1), (0,0), (1,0)])
    st()
    QF2 = 32
    SB_ = [64, 96]
    VF = 128
    KF = AF
    vVA = vT3
    vVT = [4, 5, 6, 7]
    vtset = [f'v_lshrrev_b32 v{vT3}, 9, v{vLANE16}', f'v_bfe_u32 v{vT2}, v{vLANE16}, 6, 2', f'v_lshl_add_u32 v{vT3}, v{vT3}, 2, v{vT2}', f'v_lshlrev_b32 v{vT3}, 8, v{vT3}',
             f'v_lshl_add_u32 v{vT3}, v{vT2}, 6, v{vT3}',
             f'v_bfe_u32 v{vT2}, v{vLANE16}, 8, 1', f'v_lshl_add_u32 v{vT3}, v{vT2}, 5, v{vT3}',
             f'v_and_b32 v{vT2}, 16, v{vLANE16}', f'v_add_u32 v{vT3}, v{vT3}, v{vT2}',
             f'v_bfe_u32 v{vT2}, v{vLANE16}, 5, 1', f'v_lshl_add_u32 v{vT3}, v{vT2}, 3, v{vT3}',
             f'v_add_u32 v{vVT[0]}, {slot_of(17)}, v{vT3}'] + [f'v_xor_b32 v{vVT[mt]}, {64*mt}, v{vVT[0]}' for mt in range(1, 4)]
    vMR = vMX
    def k_reads(t):
        L = []
        c = 16 + 2*(t//4)
        for s in range(8):
            if t % 4 == 0 and t > 0:
                delta = slot_of(c) - slot_of(c-2)
                if delta >= 0: L.append(f'v_add_u32 v{vKA[s]}, {delta}, v{vKA[s]}')
                else: L.append(f'v_subrev_u32 v{vKA[s]}, {-delta}, v{vKA[s]}')
            L.append(f'ds_read_b128 v[{KF+4*s}:{KF+4*s+3}], v{vKA[s]} offset:{(t%4)*8192}')
        return L
    def v_reads(kap):
        L = []
        c = 17 + 2*(kap//8); ks = kap % 8; buf = kap & 1
        if VTR:
            for mt in range(4):
                if ks == 0 and kap > 0:
                    delta = slot_of(c) - slot_of(c-2)
                    L.append(f'v_add_u32 v{vVT[mt]}, {delta}, v{vVT[mt]}' if delta >= 0 else f'v_subrev_u32 v{vVT[mt]}, {-delta}, v{vVT[mt]}')
                d = VF + 16*buf + 4*mt
                for t in range(2):
                    L.append(f'ds_read_b64_tr_b16 v[{d+2*t}:{d+2*t+1}], v{vVT[mt]} offset:{ks*4096 + t*2048}')
            return L
        if ks == 0:
            L.append(f'v_add_u32 v{vVA}, {slot_of(c)}, v{vLANE16}')
        for mt in range(4):
            d = VF + 16*buf + 4*mt
            L.append(f'ds_read_b128 v[{d}:{d+3}], v{vVA} offset:{ks*4096 + mt*1024}')
        return L
    I(f's_load_dwordx8 s[56:63], s[0:1], {KA_W1}')
    if X.get('c3') == 2:
        I(f's_load_dwordx2 s[68:69], s[0:1], {KA_C}')
        I(f's_load_dwordx2 s[72:73], s[0:1], {KA_WMOD}')
        I('s_movk_i32 s70, 1024'); I('s_mov_b32 s71, 0x00020000')
        I(f's_mov_b32 s74, {512*6144}'); I('s_mov_b32 s75, 0x00020000')
    I(f'v_add_u32 v{vT0}, s{sW4K}, v{vLANE16}')
    I(f'v_xor_b32 v{vT1}, 0x1000, v{vT0}')
    EXP = 64
    if R16:
        pk = pack16(EXP, ACC, 1)
        for s in pk[0][:4]: I(s)
        for q in range(4):
            if q < 3:
                for s in pk[q+1][:4]: I(s)
            for s in pk[q][4:]: I(s)
            I(f'ds_write_b128 v{vT0}, v[{EXP+4*q}:{EXP+4*q+3}] offset:{1024*q}')
        pk = pack16(QF2, ACC, 0)
        for g_ in pk:
            for s in g_[:4]: I(s)
        for g_ in pk:
            for s in g_[4:]: I(s)
    else:
        for q in range(4):
            for j in range(4*q, 4*q+4):
                I(f'v_cvt_pk_bf16_f32 v{EXP+j}, v{ACC+32+2*j}, v{ACC+32+2*j+1}')
            I(f'ds_write_b128 v{vT0}, v[{EXP+4*q}:{EXP+4*q+3}] offset:{1024*q}')
        for j in range(16):
            I(f'v_cvt_pk_bf16_f32 v{QF2+j}, v{ACC+2*j}, v{ACC+2*j+1}')
    CEXP = 1.4426950408889634 * 128 ** -0.5
    I(f's_mov_b32 s51, {f32bits(CEXP):#x}')
    for l in vL: I(f'v_mov_b32 v{l}, 0')
    a.wait_tags(['C16'], lg=True)
    I('s_barrier')
    if 'ast' in X: st()
    kr = k_reads(0)
    for s in kr[:4]: I(s)
    for q in range(4):
        I(kr[4+q])
        I(f'ds_read_b128 v[{QF2+16+4*q}:{QF2+16+4*q+3}], v{vT1} offset:{1024*q}')
    def s_mfmas(u):
        seq = []
        for tt in range(2):
            t = 2*u + tt
            b = SB_[u & 1] + 16*tt
            reads = k_reads(t+1) if t < 15 else []
            ri = 0
            for s in range(8):
                cc = '0' if s == 0 else f'v[{b}:{b+15}]'
                grp = [MF('qk', b, KF+4*s, QF2+4*s, s == 0, None, QF2+4*max(0, s-1))]
                while ri < len(reads):
                    grp.append(reads[ri]); ri += 1
                    if reads[ri-1].startswith('ds_read'): break
                if 'pp' in X and s == 0 and X['pp'][tt] is not None: grp = [f's_setprio {X["pp"][tt]}'] + grp
                seq.append('\n'.join(grp))
        return seq
    def pv_mfmas(u, j):
        kap = 4*u + j; buf = kap & 1
        p = SB_[u & 1] + 8*j
        L = []
        for mt in range(4):
            d = ACC + 16*mt
            cc = '0' if kap == 0 else f'v[{d}:{d+15}]'
            L.append(MF('pv', d, VF+16*buf+4*mt, p, kap == 0, VF+16*buf+4*max(0, mt-1), None))
        return L
    def max_ops(u, tt):
        b = SB_[u & 1] + 16*tt
        L = []
        for i in range(8):
            if tt == 0 and i == 0:
                L.append(f'v_max_f32 v{vT0}, v{b}, v{b+1}')
            else:
                L.append(f'v_max3_f32 v{vT0}, v{b+2*i}, v{b+2*i+1}, v{vT0}')
        return L
    def p_ops(u, j):
        b = SB_[u & 1] + 8*j
        L = []
        for e in range(8):
            L.append(f'v_fma_f32 v{b+e}, v{b+e}, s51, v{vNEGM}' if 'nofma' not in X else 's_nop 0')
        for e in range(8):
            L.append(f'v_exp_f32 v{b+e}, v{b+e}')
        for d in range(4):
            L.append(f'v_add_f32 v{vL[d]}, v{vL[d]}, v{b+2*d}' if 'noadd' not in X else 's_nop 0')
            L.append(f'v_add_f32 v{vL[d]}, v{vL[d]}, v{b+2*d+1}' if 'noadd' not in X else 's_nop 0')
            L.append(f'v_cvt_pk_bf16_f32 v{b+d}, v{b+2*d}, v{b+2*d+1}')
        return L
    rare = []
    a.lg_extra, a.lg_keep = X.get('lga', (0, 0))
    extra = kv_dma(18) + (kv_dma(17) if X.get('v0late') else []) + kv_dma(19) + (vtset if VTR else []) + touch_ops('wo')
    for s in extra[:6]: I(s)
    sm = s_mfmas(0)
    for s in merge(sm[:10], extra[6:]): I(s)
    for s in merge(sm[10:], max_ops(0, 0)): I(s)
    for s in max_ops(0, 1): I(s)
    tops = {0: (['C18', 'C17'], kv_dma(20)), 1: (['C19'], kv_dma(21)), 2: (['C20'], kv_dma(22) + (touch_ops('wb') if X.get('wbat', 2) == 2 else [])), 3: (['C21'], kv_dma(23)),
            4: (['C22'], a_dma(1, 0) + a_dma(1, 1)), 5: (['C23'], a_dma(1, 2) + a_dma(1, 3) + (touch_ops('wb') if X.get('wbat', 2) == 5 else [])), 6: None,
            7: ([], a_dma(1, 4) + a_dma(1, 5))}
    C3 = X.get('c3', 0)
    if C3:
        d = sTC; CD = vKD[0]
        c3l = [f's_mov_b32 s{d}, s60\ns_mov_b32 s{d+1}, s61\ns_mov_b32 s{d+2}, {512*3584}\ns_mov_b32 s{d+3}, 0x00020000',
               (f's_and_b32 s46, s2, 0xc0\ns_and_b32 s47, s2, 7\ns_lshl_b32 s47, s47, 3\ns_add_u32 s46, s46, s47\ns_bfe_u32 s47, s2, 0x30003\ns_add_u32 s46, s46, s47' if X.get('xi') else
                f's_and_b32 s46, s{sRB}, 0x18\ns_add_u32 s46, s46, s{sG}\ns_lshl_b32 s46, s46, 3\ns_and_b32 s47, s{sRB}, 7\ns_add_u32 s46, s46, s47'),
               f's_cmp_ge_u32 s46, 224\ns_cselect_b32 s48, 0x10000000, 0\ns_lshl_b32 s47, s46, 4\ns_add_u32 s47, s47, s48',
               f's_mul_i32 s49, s{sW}, {64*3584}\ns_add_u32 s47, s47, s49',
               f'v_mul_u32_u24 v{CD}, 224, v{vLANE16}',
               f'buffer_load_dwordx4 v[{CD}:{CD+3}], v{CD}, s[{d}:{d+3}], s47 offen',
               f's_lshl_b32 s46, s46, 5\ns_add_u32 s46, s46, s48\ns_mul_i32 s49, s{sW}, 7168\ns_add_u32 s46, s46, s49\ns_add_u32 s46, s46, {WS_C3P:#x}']
        if C3 == 2:
            c3l.insert(2, f's_lshl_b32 s64, s46, 4\ns_mul_i32 s65, s{sW}, {64*6144}\ns_add_u32 s64, s64, s65\ns_add_u32 s64, s64, 2048\n'
                          f's_lshl_b32 s65, s46, 5\ns_lshl_b32 s66, s{sW}, 13\ns_add_u32 s65, s65, s66\ns_add_u32 s65, s65, {WS_M2P:#x}\ns_lshl_b32 s66, s{sW}, 7')
            MD = 252; vC = vD
            m2t = [f'v_mul_u32_u24 v{vT2}, 384, v{vLANE16}', f'buffer_load_dword v{vT2}, v{vT2}, s[72:75], s64 offen',
                   f'v_lshrrev_b32 v{vC}, 3, v{vLANE16}', f'buffer_load_ushort v{vC}, v{vC}, s[68:71], s66 offen']
            m2l = [f'v_mul_u32_u24 v{MD}, 384, v{vLANE16}', f'buffer_load_dwordx4 v[{MD}:{MD+3}], v{MD}, s[72:75], s64 offen']
            tops[4] = (tops[4][0], tops[4][1] + m2t)
            tops[7] = (tops[7][0], (m2l + tops[7][1]) if X.get('m2first') else (tops[7][1] + m2l))
            E = 144; TS = 138
            m2a = [f'v_lshlrev_b32 v{vC}, 16, v{vC}', f'v_mul_f32 v{TS}, {f32bits(1.4426950408889634):#x}, v{vC}', f'v_exp_f32 v{TS}, -v{TS}', f'v_add_f32 v{TS}, 1.0, v{TS}',
                   f'v_rcp_f32 v{TS}, v{TS}', f'v_mul_f32 v{vC}, v{vC}, v{TS}', f'v_cvt_pk_bf16_f32 v{vC}, 0, v{vC}']
            m2b = []
            for dd in range(4):
                m2b += [f'v_lshlrev_b32 v{E+2*dd}, 16, v{MD+dd}', f'v_and_b32 v{E+2*dd+1}, 0xffff0000, v{MD+dd}']
            m2b += [f'v_mul_f32 v{E+e}, v{E+e}, v{vC}' for e in range(8)]
            m2c = [f'v_permlane32_swap_b32 v{E+e}, v{E+4+e}' for e in range(4)] + [f'v_add_f32 v{E+e}, v{E+e}, v{E+4+e}' for e in range(4)] + \
                  [f'v_permlane16_swap_b32 v{E+e}, v{E+2+e}' for e in range(2)] + [f'v_add_f32 v{E+e}, v{E+e}, v{E+2+e}' for e in range(2)]
            m2d = []
            src, dst = E, E + 2
            for ctl in ('quad_perm:[1,0,3,2]', 'quad_perm:[2,3,0,1]', 'row_half_mirror', 'row_mirror'):
                m2d += [f'v_add_f32_dpp v{dst+e}, v{src+e}, v{src+e} {ctl} row_mask:0xf bank_mask:0xf' for e in range(2)]
                src, dst = dst, src
            m2d += [f'v_lshrrev_b32 v{TS}, 5, v{vLANE16}',
                    f's_mov_b32 exec_lo, 0x10001\ns_mov_b32 exec_hi, 0x10001\nbuffer_store_dwordx2 v[{src}:{src+1}], v{TS}, s[{sWS}:{sWS+3}], s65 offen sc0 sc1\ns_mov_b64 exec, -1']
        u3 = X.get('c3u', 3)
        tops[u3] = (tops[u3][0], tops[u3][1] + c3l)
        SM, DD, TQ = 128, 132, 136
        c3p = [f'v_bfe_u32 v{TQ}, v{vLANE16}, 4, 1', f'v_lshlrev_b32 v{TQ}, 4, v{TQ}', f'v_mov_b32 v{TQ+1}, 0x3f80', f'v_lshlrev_b32 v{TQ}, v{TQ}, v{TQ+1}',
               f'v_bfe_u32 v{TQ+1}, v{vLANE16}, 5, 3']
        for dd in range(4):
            c3p.append(f'v_cmp_eq_u32 vcc, {dd}, v{TQ+1}\nv_cndmask_b32 v{SM+dd}, 0, v{TQ}, vcc')
        c3p.append(f'v_mfma_f32_16x16x32_bf16 v[{DD}:{DD+3}], v[{CD}:{CD+3}], v[{SM}:{SM+3}], 0')
        c3q = [f'v_add_f32 v{DD}, v{DD}, v{DD+1}', f'v_add_f32 v{DD+2}, v{DD+2}, v{DD+3}', f'v_add_f32 v{DD}, v{DD}, v{DD+2}',
               f'v_mov_b32 v{DD+1}, v{DD}', f'v_lshrrev_b32 v{TQ}, 2, v{vLANE16}', f'v_permlane16_swap_b32 v{DD}, v{DD+1}', f'v_add_f32 v{DD}, v{DD}, v{DD+1}',
               f'v_mov_b32 v{DD+1}, v{DD}', 's_nop 0', f'v_permlane32_swap_b32 v{DD}, v{DD+1}', f'v_add_f32 v{DD}, v{DD}, v{DD+1}',
               f's_mov_b64 exec, 0xff\nbuffer_store_dword v{DD}, v{TQ}, s[{sWS}:{sWS+3}], s46 offen sc0 sc1\ns_mov_b64 exec, -1']
    for kind, u_ in X.get('pf', ()):
        tops[u_] = (tops[u_][0], tops[u_][1] + pf_ops(kind))
    p4set = [f'v_add_u32 v{vA[2]}, {2*SLOT}, v{vA[2]}', f'v_add_u32 v{vA[3]}, {2*SLOT}, v{vA[3]}',
             f'v_add_u32 v{vB[0]}, {2*SLOT}, v{vLANE16}', f'v_add_u32 v{vB[1]}, {2*SLOT + 16384}, v{vLANE16}',
             f's_lshl_b32 s{t0}, s{sRH}, 14\ns_lshl_b32 s{t1}, s{sHD}, 12\ns_add_u32 s{t0}, s{t0}, s{t1}\ns_add_u32 s{t0}, s{t0}, {2*SLOT}',
             f'v_add_u32 v{vKA[0]}, s{t0}, v{vLANE16}']
    if R16:
        p4set = [f'v_add_u32 v{vAH[1][nt]}, {4*SLOT}, v{vA[nt]}' for nt in range(4)] + \
                [f'v_and_b32 v{vB[0]}, 0x7ff, v{vB[0]}', f'v_add_u32 v{vB[1]}, {2*SLOT + 16384}, v{vB[0]}', f'v_add_u32 v{vB[0]}, {2*SLOT}, v{vB[0]}'] + p4set[4:]
        p4late = []
        if VTR:
            p4set = [f'v_add_u32 v{vAH[1][3]}, {4*SLOT}, v{vA[3]}'] + [f'v_xor_b32 v{vAH[1][nt]}, {(3 ^ nt) << 5}, v{vAH[1][3]}' for nt in range(3)] + \
                    [f'v_and_b32 v{vB[0]}, 0x7ff, v{vB[0]}', f'v_add_u32 v{vB[0]}, {2*SLOT}, v{vB[0]}'] + p4set[7:]
            p4late = [f'v_add_u32 v{vB[1]}, 16384, v{vB[0]}'] + [f'v_xor_b32 v{vA[nt]}, {(3 ^ nt) << 5}, v{vA[3]}' for nt in range(3)]
        x2at = X.get('x2at', 5)
        plan4 = plan16(1, X.get('sl4', list(range(AF, 256, 4)) if C3 != 2 else list(range(AF, 252, 4)) + [140]), {s_: (8*x2at if s_ >= 8 else -1) for s_ in range(16)})
    I(f'v_mov_b32 v{vT1}, v{vT0}')
    I(f'v_permlane32_swap_b32 v{vT0}, v{vT1}')
    I(f'v_max_f32 v{vT0}, v{vT0}, v{vT1}')
    I(f'v_mul_f32 v{vNEGM}, s51, v{vT0}')
    I(f'v_sub_f32 v{vNEGM}, {OFFS}, v{vNEGM}')
    lred = [f'v_add_f32 v{vL[0]}, v{vL[0]}, v{vL[1]}', f'v_add_f32 v{vL[2]}, v{vL[2]}, v{vL[3]}', f'v_add_f32 v{vL[0]}, v{vL[0]}, v{vL[2]}',
            f'v_mov_b32 v{vL[1]}, v{vL[0]}', 's_nop 1', f'v_permlane32_swap_b32 v{vL[0]}, v{vL[1]}', f'v_add_f32 v{vL[1]}, v{vL[0]}, v{vL[1]}', f'v_rcp_f32 v{vL[0]}, v{vL[1]}']
    for u in range(8):
        extra = []
        if u == 0 and 'late0' in X:
            sm = s_mfmas(1)
            pv = p_ops(0, 0) + p_ops(0, 1) + p_ops(0, 2)[:14]
            n0 = X['late0']
            for s in merge(sm[:n0], pv[:len(pv)*n0//16]): I(s)
            a.wait_tags(tops[0][0])
            I('s_barrier')
            for s in merge(sm[n0:], tops[0][1] + v_reads(0), pv[len(pv)*n0//16:]): I(s)
            rest = p_ops(u, 2)[14:] + p_ops(u, 3)
            nxt = p_ops(1, 0)
            side = {0: rest[:18], 1: rest[18:36], 2: rest[36:] + nxt[:10], 3: nxt[10:]}
        elif tops[u] is not None:
            a.wait_tags(tops[u][0])
            if not ('nobar' in X and u > 0): I('s_barrier')
            extra = tops[u][1]
        if 'aprio' in X: I(f's_setprio {X["aprio"][u]}')
        if 'ast' in X: st()
        if u == 0: extra = extra + v_reads(0)
        nxt = p_ops(u+1, 0) if u < 7 else []
        if u == 0 and 'late0' in X:
            pass
        elif u == 0:
            sm = s_mfmas(u+1)
            for s in merge(sm, extra, p_ops(u, 0) + p_ops(u, 1) + p_ops(u, 2)[:14]): I(s)
            rest = p_ops(u, 2)[14:] + p_ops(u, 3)
            side = {0: rest[:18], 1: rest[18:36], 2: rest[36:] + nxt[:10], 3: nxt[10:]}
        elif u < 7:
            sm = s_mfmas(u+1)
            for s in merge(sm, extra, p_ops(u, 1) + p_ops(u, 2)): I(s)
            p3 = p_ops(u, 3)
            side = {0: p3[:14], 1: p3[14:], 2: nxt[:14], 3: nxt[14:]}
        else:
            for s in extra: I(s)
            side = {0: p_ops(u, 1) + p4set[:3], 1: p_ops(u, 2) + p4set[3:], 2: p_ops(u, 3), 3: []}
        for j in range(4):
            kap = 4*u + j
            pre = v_reads(kap+1) if kap < 31 else []
            sd = side[j]
            if u == 7 and j == 3:
                sd = lred + [f'v_cmp_nle_f32 vcc, v{vL[1]}, {X.get("thr", "1.0")}'] + (p4late if R16 else [])
                pre = a_reads(1, 0, 0) + a_reads(1, 0, 1)
                if R16: pre = sum([ld16(1, fr, plan4[2]) for fr in plan4[1][-1] if fr[1] == 'A'], [])
            if 'pp' in X:
                pq = X['pp'][2+j] if u < 7 else 3-j
                if pq is not None: I(f's_setprio {pq}')
            for s in merge(pv_mfmas(u, j), pre, sd): I(s)
    a.lg_extra = a.lg_keep = 0
    I('s_nop 1')
    I('s_cbranch_vccnz K1_fb')
    a.out.append('K1_fbr:')
    f = Asm(); F = f.I
    KFb, St, VFb = 96, 64, 128
    vKa, vKb, vM = vKA[1], vKA[2], vKA[3]
    f.raw('K1_fb:')
    F('s_nop 15'); F('s_nop 15')
    F(f'v_lshrrev_b32 v{vT0}, 4, v{vLANE16}')
    F(f'v_and_b32 v{vT1}, 31, v{vT0}')
    F(f'v_lshlrev_b32 v{vT1}, 8, v{vT1}')
    F(f'v_lshrrev_b32 v{vT0}, 5, v{vT0}')
    F(f'v_lshl_add_u32 v{vT1}, v{vT0}, 4, v{vT1}')
    F(f's_lshl_b32 s40, s{sRH}, 7')
    F(f'v_add_u32 v{vKa}, s40, v{vT1}')
    F(f'v_xor_b32 v{vKb}, 0x80, v{vKa}')
    F(f'v_mov_b32 v{vM}, 0xff800000')
    def fb_s():
        for s_ in range(8):
            F(f'buffer_load_dwordx4 v[{KFb+4*s_}:{KFb+4*s_+3}], v{vKa if s_ < 4 else vKb}, s[{sK}:{sK+3}], s41 offen offset:{32*(s_ & 3)}')
    def fb_mf():
        for s_ in range(8):
            cc = '0' if s_ == 0 else f'v[{St}:{St+15}]'
            F(f'v_mfma_f32_32x32x16_bf16 v[{St}:{St+15}], v[{KFb+4*s_}:{KFb+4*s_+3}], v[{QF2+4*s_}:{QF2+4*s_+3}], {cc}')
    F(f's_sub_u32 s41, s{sBK}, s{sW4K}')
    F('s_mov_b32 s40, 0')
    f.label('K1_fb1')
    fb_s()
    F('s_waitcnt vmcnt(0)')
    fb_mf()
    for i in range(8):
        F(f'v_max3_f32 v{vM}, v{St+2*i}, v{St+2*i+1}, v{vM}')
    F('s_add_u32 s41, s41, 8192')
    F('s_add_u32 s40, s40, 1')
    F('s_cmp_lt_u32 s40, 16')
    F('s_nop 7')
    F('s_cbranch_scc1 K1_fb1')
    F(f'v_mov_b32 v{vT1}, v{vM}')
    F(f'v_permlane32_swap_b32 v{vM}, v{vT1}')
    F(f'v_max_f32 v{vM}, v{vM}, v{vT1}')
    F(f'v_mul_f32 v{vNEGM}, s51, v{vM}')
    F(f'v_sub_f32 v{vNEGM}, 0, v{vNEGM}')
    for i in range(64): F(f'v_mov_b32 v{ACC+i}, 0')
    for l in vL: F(f'v_mov_b32 v{l}, 0')
    F(f's_sub_u32 s41, s{sBK}, s{sW4K}')
    if VTR:
        F(f'v_bfe_u32 v{vT0}, v{vLANE16}, 4, 5')
        F(f'v_and_b32 v{vM}, 0x13, v{vT0}')
        F(f'v_bfe_u32 v{vT1}, v{vT0}, 2, 1')
        F(f'v_lshl_or_b32 v{vM}, v{vT1}, 3, v{vM}')
        F(f'v_bfe_u32 v{vT1}, v{vT0}, 3, 1')
        F(f'v_lshl_or_b32 v{vM}, v{vT1}, 2, v{vM}')
        F(f'v_lshlrev_b32 v{vM}, 1, v{vM}')
        F(f'v_lshrrev_b32 v{vT1}, 9, v{vLANE16}')
        F(f'v_lshl_add_u32 v{vM}, v{vT1}, 10, v{vM}')
        F('s_mov_b32 s40, 0')
        f.label('K1_fb2')
        fb_s()
        F('s_waitcnt vmcnt(0)')
        fb_mf()
        for j in range(2):
            for s_ in p_ops(0, j): F(s_)
        F('s_nop 15')
        for j in range(2):
            F(f's_add_u32 s42, s41, {4096*j}')
            for mt in range(4):
                for e in range(8):
                    F(f'buffer_load_ushort v{KFb+8*mt+e}, v{vM}, s[{sV}:{sV+3}], s42 offen offset:{(8*(e >> 2) + (e & 3))*256 + 64*mt}')
            F('s_waitcnt vmcnt(0)')
            for i in range(16):
                F(f'v_lshl_or_b32 v{VFb+i}, v{KFb+2*i+1}, 16, v{KFb+2*i}')
            for mt in range(4):
                d = ACC + 16*mt
                F(f'v_mfma_f32_32x32x16_bf16 v[{d}:{d+15}], v[{VFb+4*mt}:{VFb+4*mt+3}], v[{St+8*j}:{St+8*j+3}], v[{d}:{d+15}]')
            F('s_nop 15')
        F('s_add_u32 s41, s41, 8192')
        F('s_add_u32 s40, s40, 1')
        F('s_cmp_lt_u32 s40, 16')
        F('s_nop 15'); F('s_nop 15')
        F('s_cbranch_scc1 K1_fb2')
        for s_ in lred: F(s_)
        F('s_nop 15'); F('s_nop 15')
        F('s_branch K1_fbr')
        rare_v = list(f.out)
    F(f's_sub_u32 s42, s{sBV}, s{sW4K}')
    F('s_mov_b32 s40, 0')
    f.label('K1_fb2')
    fb_s()
    F('s_add_u32 s43, s42, 4096')
    for j in range(2):
        for mt in range(4):
            d = VFb + 16*j + 4*mt
            F(f'buffer_load_dwordx4 v[{d}:{d+3}], v{vLANE16}, s[{sWS}:{sWS+3}], s{42+j} offen offset:{1024*mt}')
    F('s_waitcnt vmcnt(0)')
    fb_mf()
    for j in range(2):
        for s_ in p_ops(0, j): F(s_)
    for j in range(2):
        for mt in range(4):
            d = ACC + 16*mt
            F(f'v_mfma_f32_32x32x16_bf16 v[{d}:{d+15}], v[{VFb+16*j+4*mt}:{VFb+16*j+4*mt+3}], v[{St+8*j}:{St+8*j+3}], v[{d}:{d+15}]')
    F('s_add_u32 s41, s41, 8192')
    F('s_add_u32 s42, s42, 8192')
    F('s_add_u32 s40, s40, 1')
    F('s_cmp_lt_u32 s40, 16')
    F('s_nop 15'); F('s_nop 15')
    F('s_cbranch_scc1 K1_fb2')
    for s_ in lred: F(s_)
    F('s_nop 15'); F('s_nop 15')
    F('s_branch K1_fbr')
    rare = rare_v if VTR else f.out
    st()
    OWN = 32; ACC4 = 64
    def norm(q):
        L = []
        for j in range(4*q, 4*q+4):
            L.append(f'v_mul_f32 v{ACC+2*j}, v{ACC+2*j}, v{vL[0]}')
            L.append(f'v_mul_f32 v{ACC+2*j+1}, v{ACC+2*j+1}, v{vL[0]}')
        for j in range(4*q, 4*q+4):
            L.append(f'v_cvt_pk_bf16_f32 v{OWN+j}, v{ACC+2*j}, v{ACC+2*j+1}')
        L.append(f'ds_write_b128 v{vKA[0]}, v[{OWN+4*q}:{OWN+4*q+3}] offset:{(q >> 2)*32768 + 1024*(q & 3)}')
        return L
    for q in range(4):
        for s in norm(q): I(s)
    I('s_waitcnt lgkmcnt(0)')
    I('s_barrier')
    if R16:
        for fr in plan4[1][-1]:
            if fr[1] == 'B':
                for s in ld16(1, fr, plan4[2]): I(s)
    else:
        for s in ([b_read(0, 0), b_read(0, 1)] if not SK else [b_read(0, 0)]): I(s)
    for s in norm(4): I(s)
    st()
    side = {0: norm(5), 1: norm(6), 2: norm(7)}
    addr = [f's_lshl_b32 s{t0}, s{sG}, 21\ns_lshl_b32 s{t1}, s{sRB}, 16\ns_add_u32 s{t0}, s{t0}, s{t1}\ns_add_u32 s{t0}, s{t0}, s{sW4K}\ns_add_u32 s{t0}, s{t0}, {WS_P:#x}\ns_add_u32 s{t1}, s{t0}, 32768']
    if X.get('pl'):
        pb_, sg_, sr_ = X['pl']
        addr = [f's_mul_i32 s{t0}, s{sG}, {sg_}\ns_mul_i32 s{t1}, s{sRB}, {sr_}\ns_add_u32 s{t0}, s{t0}, s{t1}\ns_add_u32 s{t0}, s{t0}, s{sW4K}\ns_add_u32 s{t0}, s{t0}, {pb_:#x}\ns_add_u32 s{t1}, s{t0}, 32768']
    side[3] = addr
    if C3:
        side[X.get('c3k', 6)] = c3p; side[X.get('c3k', 6) + 2] = c3q
    if C3 == 2:
        k_ = X.get('m2k', 10)
        side[k_] = m2a; side[k_+1] = m2b[:8]; side[k_+2] = m2b[8:]; side[k_+3] = m2c[:8]; side[k_+4] = m2c[8:]; side[k_+5] = m2d
    def stq(q):
        so = f's{t0}' if q < 4 else f's{t1}'
        return [f'v_cvt_pk_bf16_f32 v{OWN+j}, v{ACC4+2*j}, v{ACC4+2*j+1}' for j in range(4*q, 4*q+4)] + \
               [f'buffer_store_dwordx4 v[{OWN+4*q}:{OWN+4*q+3}], v{vLANE16}, s[{sWS}:{sWS+3}], {so} offen offset:{1024*(q%4)}']
    if R16:
        gemm16(1, ACC4, {}, side, {x2at}, plan4)
    elif SK:
        gemm_skew(ACC4, side, {5}, stq(0) + stq(1) + stq(2) + stq(3))
    else:
        gemm_phase(1, ACC4, {}, side, set() if 'nox2' in X else ({X['x2at']} if isinstance(X, dict) and 'x2at' in X else {5}))
    st()
    pace = X.get('pace') if isinstance(X, dict) else None
    def stores(pc):
        for j in range(16 if SK else 0, 32):
            I(f'v_cvt_pk_bf16_f32 v{OWN+j}, v{ACC4+2*j}, v{ACC4+2*j+1}')
            if j % 4 == 3:
                q = j // 4
                so = f's{t0}' if q < 4 else f's{t1}'
                if pc is not None and q > pc: I(f's_waitcnt vmcnt({pc})')
                I(f'buffer_store_dwordx4 v[{OWN+4*q}:{OWN+4*q+3}], v{vLANE16}, s[{sWS}:{sWS+3}], {so} offen offset:{1024*(q%4)}')
    if R16:
        pk = pack16(OWN, ACC4, 0) + pack16(OWN+16, ACC4, 1)
        for s in pk[0][:4]: I(s)
        for q in range(8):
            if q < 7:
                for s in pk[q+1][:4]: I(s)
            for s in pk[q][4:]: I(s)
            so = f's{t0}' if q < 4 else f's{t1}'
            I(f'buffer_store_dwordx4 v[{OWN+4*q}:{OWN+4*q+3}], v{vLANE16}, s[{sWS}:{sWS+3}], {so} offen offset:{1024*(q%4)}')
    elif pace is not None:
        I(f's_cmp_ge_u32 s{sW}, 4')
        I('s_cbranch_scc1 K1_st2')
        I('s_nop 15')
        stores(pace)
        I('s_branch K1_st3')
        a.label('K1_st2')
        I('s_nop 15')
        stores(None)
        a.label('K1_st3')
    else:
        stores(None)
    if stamps:
        I(f'v_lshrrev_b32 v{vT3}, 4, v{vLANE16}')
        st.flush(sWS, sW, 200, vT3)
    a.label('K1_end')
    I('s_endpgm')
    a.out += rare
    print("K1 instrs", a.ninstr, "nops", a.nnop)
    return a.text(), kernel_desc(name, 256, 102)
```

```python
from common import *
from k2 import *

def gen_k2n(name, stamps=False, X={}):
    a = Asm()
    st = Stamper(a, stamps, 2)
    kernel_header(a, name)
    inj = {'q': [], 'n': 0, 'step': X.get('step', 6)}
    def I(t):
        a.I(t)
        if inj['q']:
            inj['n'] += 1
            if inj['n'] % inj['step'] == 0: a.I(inj['q'].pop(0))
    class AW_:
        pass
    aw = AW_(); aw.I = I
    L_HB, L_S2, L_S3 = 0, 16384, 17408
    vLANE, vL16 = 1, 2
    vFO = 3
    A0, A1 = 4, 8
    T = [12,13,14,15,16,17,18,19]
    XR = 20
    U = 28
    GA = 32; D = 48; TB = 64; SB = 80
    P = 64
    AW = 160
    I('s_cmp_ge_u32 s2, 256')
    I('s_cbranch_scc1 K2_end')
    I(f's_load_dwordx2 s[24:25], s[0:1], {KA_WS}')
    I(f's_load_dwordx2 s[8:9], s[0:1], {KA_X}')
    if X.get('pf3') or X.get('pf4'):
        I(f's_load_dwordx2 s[56:57], s[0:1], {KA_W3}')
        I(f's_load_dwordx2 s[60:61], s[0:1], {KA_W4}')
    I(f'v_and_b32 v{vLANE}, 63, v0')
    I('v_lshrrev_b32 v3, 6, v0')
    I('s_nop 0')
    I('v_readfirstlane_b32 s34, v3')
    I('s_and_b32 s35, s2, 7')
    I('s_lshr_b32 s36, s2, 3')
    I('s_lshl_b32 s35, s35, 4')
    I('s_lshr_b32 s37, s36, 1')
    I('s_add_u32 s35, s35, s37')
    I('s_and_b32 s36, s36, 1')
    I(f'v_lshlrev_b32 v{vL16}, 4, v{vLANE}')
    I(f'v_and_b32 v{T[0]}, 15, v{vLANE}')
    I(f'v_bfe_u32 v{T[1]}, v{vLANE}, 4, 1')
    I(f'v_lshrrev_b32 v{T[2]}, 5, v{vLANE}')
    I(f'v_lshl_add_u32 v{vFO}, v{T[2]}, 5, v{T[0]}')
    I('s_and_b32 s37, s35, 1')
    I('s_lshl_b32 s37, s37, 4')
    I(f'v_add_u32 v{vFO}, s37, v{vFO}')
    I(f'v_lshlrev_b32 v{vFO}, 4, v{vFO}')
    I(f'v_lshl_add_u32 v{vFO}, v{T[1]}, 10, v{vFO}')
    for d, n in ((8, 2048*1024), (24, WS_SIZE)):
        I(f's_mov_b32 s{d+2}, {n:#x}'); I(f's_mov_b32 s{d+3}, 0x00020000')
    I('s_lshr_b32 s40, s35, 1')
    I('s_lshl_b32 s40, s40, 15')
    I('s_lshl_b32 s41, s34, 12')
    I('s_add_u32 s41, s40, s41')
    SG_ = 2097152
    if X.get('pl'):
        pb_, SG_, sr_ = X['pl']
        I('s_lshr_b32 s42, s35, 2')
        I(f's_mul_i32 s42, s42, {sr_}')
        I('s_and_b32 s43, s41, 0xffff')
        I('s_add_u32 s42, s42, s43')
        I(f's_add_u32 s42, s42, {pb_:#x}')
    else:
        I(f's_add_u32 s42, s41, {WS_P:#x}')
    pl = []
    for g in range(8):
        for f in range(2):
            r = P + 8*g + 4*f
            pl.append(f's_add_u32 s43, s42, {g*SG_:#x}\nbuffer_load_dwordx4 v[{r}:{r+3}], v{vFO}, s[24:27], s43 offen offset:{2048*f}')
    if X.get('half'):
        I('s_lshl_b32 s43, s36, 23')
        I('s_add_u32 s42, s42, s43')
        pl = pl[:8]
    I('s_waitcnt lgkmcnt(0)')
    st.first()
    X0 = X
    def body(X, pl):
        inj['q'] = []; inj['n'] = 0; inj['step'] = X.get('step', 6)
        NP0 = X.get('np0', 2); NA0 = X.get('na0', 28)
        M2 = X.get('m2', 0)
        MPR = 32
        if M2:
            I(f'v_lshrrev_b32 v{U}, 4, v{vLANE}')
            I(f'v_lshlrev_b32 v{U+1}, 13, v{U}')
            I(f'v_lshl_add_u32 v{U+1}, v{T[0]}, 4, v{U+1}')
            I('s_lshl_b32 s44, s34, 8')
            I(f's_add_u32 s43, s44, {WS_M2P:#x}')
            I('s_cmp_eq_u32 s2, 0')
            I('s_cselect_b32 s55, 0, 0x10000000')
            for vec in range(4):
                for h in range(2):
                    r = MPR + 8*vec + 4*h
                    I(f's_add_u32 s48, s43, {32768*h + 4096*(vec >> 1)}')
                    if vec == 3: I('s_add_u32 s48, s48, s55')
                    I(f'buffer_load_dwordx4 v[{r}:{r+3}], v{U+1}, s[24:27], s48 offen offset:{2048*(vec & 1)}')
            I(f'v_lshl_add_u32 v{U}, v{T[0]}, 2, v{U}')
            I(f'v_lshlrev_b32 v{U}, 2, v{U}')
            I('s_lshl_b32 s48, s34, 11')
            I(f'v_add_u32 v{U+1}, s48, v{U}')
        for s in pl[:NP0]: I(s)
        I(f'v_lshlrev_b32 v{T[3]}, 10, v{T[0]}')
        I(f'v_lshl_add_u32 v{T[3]}, v{T[1]}, 5, v{T[3]}')
        I(f'v_lshl_add_u32 v{T[3]}, v{T[2]}, 4, v{T[3]}')
        I('s_lshl_b32 s43, s35, 14')
        I('s_lshl_b32 s44, s34, 7')
        I('s_add_u32 s43, s43, s44')
        for f in range(2):
            I(f'buffer_load_dwordx4 v[{XR+4*f}:{XR+4*f+3}], v{T[3]}, s[8:11], s43 offen offset:{64*f}')
        I(f'v_lshlrev_b32 v{T[4]}, 6, v{T[1]}')
        I(f'v_lshl_add_u32 v{T[4]}, v{T[2]}, 5, v{T[4]}')
        I('s_lshl_b32 s44, s34, 8')
        I(f's_add_u32 s44, s44, {WS_MOD:#x}')
        def modloads(lst):
            L = []
            for vec, base in lst:
                for f in range(2):
                    for h2 in range(2):
                        r = base + 8*f + 4*h2
                        L.append(f's_add_u32 s43, s44, {2048*vec}\nbuffer_load_dwordx4 v[{r}:{r+3}], v{T[4]}, s[24:27], s43 offen offset:{128*f + 16*h2}')
            return L
        if M2:
            I('s_lshl_b32 s48, s34, 11')
            I(f'v_add_u32 v{T[4]}, s48, v{T[4]}')
            def modloads(lst):
                return [f'ds_read_b128 v[{base+8*f+4*h2}:{base+8*f+4*h2+3}], v{T[4]} offset:{256*vec + 128*f + 16*h2}' for vec, base in lst for f in range(2) for h2 in range(2)]
            def modfin():
                R_ = [MPR + 8*vec for vec in range(4)]
                for r in R_:
                    I(f'v_pk_add_f32 v[{r}:{r+1}], v[{r}:{r+1}], v[{r+4}:{r+5}]')
                    I(f'v_pk_add_f32 v[{r+2}:{r+3}], v[{r+2}:{r+3}], v[{r+6}:{r+7}]')
                for r in R_:
                    I(f'v_permlane32_swap_b32 v{r}, v{r+2}'); I(f'v_permlane32_swap_b32 v{r+1}, v{r+3}')
                for r in R_: I(f'v_pk_add_f32 v[{r}:{r+1}], v[{r}:{r+1}], v[{r+2}:{r+3}]')
                for r in R_: I(f'v_permlane16_swap_b32 v{r}, v{r+1}')
                for r in R_: I(f'v_add_f32 v{r}, v{r}, v{r+1}')
                for r in R_: I(f'v_cvt_pk_bf16_f32 v{r}, 0, v{r}')
                I(f'v_add_f32 v{R_[2]}, 1.0, v{R_[2]}')
                I(f'ds_write_b32 v{U+1}, v{R_[0]}')
                I(f'v_cvt_pk_bf16_f32 v{R_[2]}, 0, v{R_[2]}')
                I(f'ds_write_b32 v{U+1}, v{R_[1]} offset:256')
                I(f'ds_write_b32 v{U+1}, v{R_[2]} offset:512')
                I(f's_add_u32 s48, s44, s55')
                I(f's_add_u32 s48, s48, 6144')
                I(f'buffer_store_dword v{R_[3]}, v{U}, s[24:27], s48 offen sc0 sc1')
                for s in modloads([(0, GA)]): I(s)
        else:
            for s in modloads([(0, GA)]): I(s)
        I('s_lshl_b32 s45, s36, 3')
        I('s_add_u32 s45, s45, s34')
        I('s_lshl_b32 s46, s45, 15')
        I(f's_add_u32 s46, s46, {WS_W1P:#x}')
        aloads = []
        for ks in range(16):
            for Tt in range(2):
                idx = 2*ks + Tt
                aloads.append(f's_add_u32 s47, s46, {Tt*16384 + (ks//4)*4096}\nbuffer_load_dwordx4 a[{4*idx}:{4*idx+3}], v{vL16}, s[24:27], s47 offen offset:{1024*(ks%4)}')
        SPR = X.get('spr', 0)
        if SPR:
            for Tt in range(2):
                for k4 in range(4): I(f's_add_u32 s{56+4*Tt+k4}, s46, {Tt*16384 + k4*4096}')
            aloads = [f'buffer_load_dwordx4 a[{4*(2*ks+Tt)}:{4*(2*ks+Tt)+3}], v{vL16}, s[24:27], s{56+4*Tt+ks//4} offen offset:{1024*(ks%4)}' for ks in range(16) for Tt in range(2)]
        if X.get('afirst'):
            for s in aloads[:NA0]: I(s)
            for s in pl[NP0:]: I(s)
        else:
            lrest = merge(pl[NP0:], aloads[:NA0])
            MPOS = X.get('mpos', 100)
            for s in lrest[:MPOS]: I(s)
        ident_frags(a, vLANE, A0, A1, T[5], T[6], T[7])
        if M2: modfin()
        if not X.get('afirst'):
            for s in lrest[MPOS:]: I(s)
        I('s_mov_b32 s52, 0xffff0000')
        I('s_mov_b32 s53, 0x3f803f80')
        NA1 = X.get('na1', 32)
        for s in aloads[NA0:NA1]: I(s)
        st()
        red = []
        first = True
        for g in range(8):
            for f in range(2):
                r = P + 8*g + 4*f
                A = A0 if f == 0 else A1
                cc = '0' if first else f'v[{D}:{D+15}]'
                red.append(f'v_mfma_f32_32x32x16_bf16 v[{D}:{D+15}], v[{A}:{A+3}], v[{r}:{r+3}], {cc}')
                first = False
        for s in red: I(s)
        x1o = []
        for e in range(0, 16, 2):
            r = D + e; u = U + 2*((e//2) % 2); xr = XR + e//2
            x1o.append(f'v_lshlrev_b32 v{u}, 16, v{xr}')
            x1o.append(f'v_and_b32 v{u+1}, s52, v{xr}')
            x1o.append(f'v_pk_fma_f32 v[{r}:{r+1}], v[{r}:{r+1}], v[{GA+e}:{GA+e+1}], v[{u}:{u+1}]')
            x1o.append(f'v_cvt_pk_bf16_f32 v{xr}, v{r}, v{r+1}')
            x1o.append(f'v_lshlrev_b32 v{r}, 16, v{xr}')
            x1o.append(f'v_and_b32 v{r+1}, s52, v{xr}')
        I('s_nop 7')
        CS = A0 if X.get('cse', 1) else D + 8
        csl = [f'v_lshrrev_b32 v{T[1]}, 4, v{vLANE}\nv_lshlrev_b32 v{T[1]}, 5, v{T[1]}\ns_lshl_b32 s48, s45, 7\ns_add_u32 s48, s48, {WS_CS1:#x}']
        for h2 in range(2):
            csl.append(f'buffer_load_dwordx4 v[{CS+4*h2}:{CS+4*h2+3}], v{T[1]}, s[24:27], s48 offen offset:{16*h2}')
        if SPR:
            nx = X.get('nx', 24)
            for s in merge(x1o[:nx], modloads([(2, TB), (1, SB)]) + (csl if X.get('cse', 1) else [])): I(s)
            inj['q'] = list(aloads[NA1:])
            for s in x1o[nx:]: I(s)
        else:
            for s in merge(x1o, modloads([(2, TB), (1, SB)]) + (csl if X.get('cse', 1) else []) + aloads[NA1:]): I(s)
        st()
        def stats_local(mean, var):
            I(f'v_mov_b32 v{mean}, 0'); I(f'v_mov_b32 v{var}, 0'); I(f'v_mov_b32 v{T[6]}, 0'); I(f'v_mov_b32 v{T[7]}, 0')
            for j in range(0, 8, 2):
                I(f'v_dot2_f32_bf16 v{mean}, v{XR+j}, s53, v{mean}')
                I(f'v_dot2_f32_bf16 v{var}, v{XR+j}, v{XR+j}, v{var}')
                I(f'v_dot2_f32_bf16 v{T[6]}, v{XR+j+1}, s53, v{T[6]}')
                I(f'v_dot2_f32_bf16 v{T[7]}, v{XR+j+1}, v{XR+j+1}, v{T[7]}')
            I('s_nop 2')
            I(f'v_add_f32 v{mean}, v{mean}, v{T[6]}')
            I(f'v_add_f32 v{var}, v{var}, v{T[7]}')
            for op in ('v_permlane16_swap_b32', 'v_permlane32_swap_b32'):
                I(f'v_mov_b32 v{T[6]}, v{mean}'); I(f'v_mov_b32 v{T[7]}, v{var}')
                I(f'{op} v{mean}, v{T[6]}'); I(f'{op} v{var}, v{T[7]}')
                I(f'v_add_f32 v{mean}, v{mean}, v{T[6]}'); I(f'v_add_f32 v{var}, v{var}, v{T[7]}')
        def stats_write(area, mean, var):
            I(f'v_lshlrev_b32 v{T[5]}, 3, v{T[0]}')
            I('s_lshl_b32 s48, s34, 7')
            I(f's_add_u32 s48, s48, {area}')
            I(f'v_add_u32 v{T[6]}, s48, v{T[5]}')
            I(f'ds_write_b64 v{T[6]}, v[{mean}:{var}]')
        def stats_read(area, mean, var, R):
            for w in range(8):
                I(f'ds_read_b64 v[{R+2*w}:{R+2*w+1}], v{T[5]} offset:{area + 128*w}')
            for stp in (4, 2, 1):
                for w in range(stp):
                    I(f'v_pk_add_f32 v[{R+2*w}:{R+2*w+1}], v[{R+2*w}:{R+2*w+1}], v[{R+2*(w+stp)}:{R+2*(w+stp)+1}]')
            I(f'v_mul_f32 v{mean}, {f32bits(1.0/512):#x}, v{R}')
            I(f'v_mul_f32 v{var}, {f32bits(1.0/512):#x}, v{R+1}')
            I(f'v_fma_f32 v{var}, -v{mean}, v{mean}, v{var}')
            I(f'v_max_f32 v{var}, 0, v{var}')
            ln_rstd(aw, var, mean)
        M, V = T[2], T[3]
        stats_local(M, V)
        stats_write(L_S2, M, V)
        I('s_lshr_b32 s47, s34, 2')
        I('s_cmp_eq_u32 s47, s36')
        I('s_cselect_b32 s54, 0, 0x10000000')
        I(f's_add_u32 s43, s41, {WS_X1:#x}')
        I('s_add_u32 s43, s43, s54')
        for f in range(2):
            I(f'buffer_store_dwordx4 v[{XR+4*f}:{XR+4*f+3}], v{vFO}, s[24:27], s43 offen offset:{2048*f}')
        if X.get('pf3', 0):
            I(f's_mov_b32 s58, {512*3584}'); I('s_mov_b32 s59, 0x00020000')
            I(f'v_and_b32 v{U}, 31, v{vLANE}')
            I(f'v_min_u32 v{U}, 13, v{U}')
            I(f'v_lshlrev_b32 v{U}, 7, v{U}')
            I(f'v_lshrrev_b32 v{U+1}, 5, v{vLANE}')
            I(f'v_mad_u32_u24 v{U}, v{U+1}, s58, v{U}') if False else I(f'v_mul_u32_u24 v{U+1}, 3584, v{U+1}')
            I(f'v_add_u32 v{U}, v{U}, v{U+1}')
            I('s_lshr_b32 s64, s2, 3'); I('s_lshl_b32 s64, s64, 3'); I('s_add_u32 s64, s64, s34'); I(f's_mul_i32 s64, s64, {2*3584}')
            I('s_and_b32 s65, s2, 1'); I('s_mul_i32 s65, s65, 1792'); I('s_add_u32 s64, s64, s65')
            I(f'buffer_load_dword v0, v{U}, s[56:59], s64 offen')
        if X.get('pf4', 0):
            I(f's_mov_b32 s62, {1792*1024}'); I('s_mov_b32 s63, 0x00020000')
            I(f'v_min_u32 v{U+2}, 55, v{vLANE}')
            I(f'v_lshlrev_b32 v{U+2}, 7, v{U+2}')
            I('s_lshr_b32 s64, s2, 3'); I('s_lshl_b32 s64, s64, 3'); I('s_add_u32 s64, s64, s34'); I(f's_mul_i32 s64, s64, 7168')
            I(f'buffer_load_dword v4, v{U+2}, s[60:63], s64 offen')
        if X.get('bulk'):
            q_ = inj['q']; inj['q'] = []
            nb_ = X['bulk']
            if X.get('pr'): I('s_setprio 0')
            for s in q_[:nb_]: I(s)
            if X.get('pr'): I('s_setprio 3')
            I('s_waitcnt lgkmcnt(0)')
            I('s_barrier')
            inj['step'] = X.get('step2', inj['step'])
            inj['q'] = q_[nb_:]
        else:
            I('s_waitcnt lgkmcnt(0)')
            I('s_barrier')
        stats_read(L_S2, M, V, GA)
        st()
        I(f'v_sub_f32 v{U}, 0, v{M}'); I(f'v_sub_f32 v{U+1}, 0, v{M}')
        I(f'v_mov_b32 v{U+2}, v{V}'); I(f'v_mov_b32 v{U+3}, v{V}')
        for e in range(0, 16, 2):
            r = D + e
            I(f'v_pk_add_f32 v[{r}:{r+1}], v[{r}:{r+1}], v[{U}:{U+1}]')
            I(f'v_pk_mul_f32 v[{TB+e}:{TB+e+1}], v[{TB+e}:{TB+e+1}], v[{U+2}:{U+3}]')
            I(f'v_pk_fma_f32 v[{r}:{r+1}], v[{r}:{r+1}], v[{TB+e}:{TB+e+1}], v[{SB+e}:{SB+e+1}]')
            I(f'v_cvt_pk_bf16_f32 v{XR+e//2}, v{r}, v{r+1}')
        I('s_lshl_b32 s48, s34, 11')
        I(f'v_add_u32 v{T[4]}, s48, v{vL16}')
        for f in range(2):
            I(f'ds_write_b128 v{T[4]}, v[{XR+4*f}:{XR+4*f+3}] offset:{L_HB + 1024*f}')
        stats_local(M, V)
        stats_write(L_S3, M, V)
        I(f's_add_u32 s43, s41, {WS_HB:#x}')
        I('s_add_u32 s43, s43, s54')
        for f in range(2):
            I(f'buffer_store_dwordx4 v[{XR+4*f}:{XR+4*f+3}], v{vFO}, s[24:27], s43 offen offset:{2048*f}')
        I(f'v_lshrrev_b32 v{T[4]}, 4, v{vLANE}')
        if not X.get('cse', 1):
            for s in csl: I(s)
        I('s_waitcnt lgkmcnt(0)')
        I('s_barrier')
        st()
        rest_ = inj['q']; inj['q'] = []
        print("K2 leftover A loads", len(rest_))
        for s in rest_: I(s)
        BF = P
        ACC = D
        mfs = []
        for ks in range(16):
            for Tt in range(2):
                idx = 2*ks + Tt
                b = ACC + 4*Tt
                cc = '0' if ks == 0 else f'v[{b}:{b+3}]'
                mfs.append(f'v_mfma_f32_16x16x32_bf16 v[{b}:{b+3}], a[{4*idx}:{4*idx+3}], v[{BF+4*ks}:{BF+4*ks+3}], {cc}')
        if X.get('g2', 1):
            R = GA
            for ks in range(8):
                I(f'ds_read_b128 v[{BF+4*ks}:{BF+4*ks+3}], v{vL16} offset:{L_HB + 1024*ks}')
            rd2 = [f'ds_read_b128 v[{BF+4*ks}:{BF+4*ks+3}], v{vL16} offset:{L_HB + 1024*ks}' for ks in range(8, 16)]
            rd2 += [f'ds_read_b64 v[{R+2*w}:{R+2*w+1}], v{T[5]} offset:{L_S3 + 128*w}' for w in range(8)]
            sm = []
            for stp in (4, 2, 1):
                for w in range(stp):
                    sm.append(f'v_add_f32 v{R+2*w}, v{R+2*w}, v{R+2*(w+stp)}')
                    sm.append(f'v_add_f32 v{R+2*w+1}, v{R+2*w+1}, v{R+2*(w+stp)+1}')
            sm += [f'v_mul_f32 v{M}, {f32bits(1.0/512):#x}, v{R}', f'v_mul_f32 v{V}, {f32bits(1.0/512):#x}, v{R+1}', f'v_fma_f32 v{V}, -v{M}, v{M}, v{V}', f'v_max_f32 v{V}, 0, v{V}',
                   f'v_cvt_pk_bf16_f32 v{M}, 0, v{M}', f'v_cvt_pk_bf16_f32 v{V}, 0, v{V}', f'v_add_f32 v{V}, {f32bits(1e-5):#x}, v{V}', f'v_cvt_pk_bf16_f32 v{V}, 0, v{V}',
                   f'v_sqrt_f32 v{V}, v{V}', f'v_cvt_pk_bf16_f32 v{V}, 0, v{V}', f'v_rcp_f32 v{V}, v{V}']
            for s in merge(mfs[:12], rd2): I(s)
            for s in merge(mfs[12:], sm): I(s)
        else:
            for ks in range(16):
                I(f'ds_read_b128 v[{BF+4*ks}:{BF+4*ks+3}], v{vL16} offset:{L_HB + 1024*ks}')
            stats_read(L_S3, M, V, GA)
            for s in mfs: I(s)
        st()
        c0 = -2.0 * (2.0/3.141592653589793) ** 0.5 * LOG2E
        I(f's_mov_b32 s50, {f32bits(c0*0.044715):#x}')
        I(f'v_mov_b32 v{T[7]}, {f32bits(c0):#x}')
        ep = []
        for e in range(8):
            r = ACC + e
            L = [f'v_fma_f32 v{r}, -v{M}, v{CS+e}, v{r}', f'v_mul_f32 v{r}, v{r}, v{V}']
            L += gelu_ops(r, GA + e, 'v%d' % T[7], 's50')
            ep.append(L)
        for j in range(len(ep[0])):
            for L in ep: I(L[j])
        for j in range(4):
            I(f'v_cvt_pk_bf16_f32 v{XR+j}, v{ACC+2*j}, v{ACC+2*j+1}')
        I(f'v_and_b32 v{T[1]}, 1, v{T[4]}')
        I(f'v_lshl_add_u32 v{T[1]}, v{T[1]}, 5, v{T[0]}')
        I(f'v_add_u32 v{T[1]}, s37, v{T[1]}')
        I(f'v_lshlrev_b32 v{T[1]}, 4, v{T[1]}')
        I(f'v_lshrrev_b32 v{T[5]}, 1, v{T[4]}')
        I(f'v_lshl_add_u32 v{T[1]}, v{T[5]}, 10, v{T[1]}')
        I('s_lshl_b32 s48, s45, 11')
        I('s_add_u32 s48, s48, s40')
        I(f's_add_u32 s48, s48, {WS_T:#x}')
        I(f'buffer_store_dwordx4 v[{XR}:{XR+3}], v{T[1]}, s[24:27], s48 offen')
        st.flush(24, 34, 100, vLANE)
        I('s_endpgm')
    import copy
    if X0.get('pr'): I('s_setprio 3')
    I('s_cmp_ge_u32 s34, 4')
    I('s_cbranch_scc1 K2_B')
    sn = st.n
    body(dict(X0, **X0.get('A', {})), pl)
    a.raw('K2_B:')
    a.vm_q = []; a.lds_q = []; a.hist = []
    st.n = sn
    body(dict(X0, **X0.get('B', {})), pl)
    a.label('K2_end')
    I('s_endpgm')
    print("K2 instrs", a.ninstr, "nops", a.nnop)
    return a.text(), kernel_desc(name, 256, 96, accum=128)
```

```python
from common import *
from k2 import LOG2E

L_CS = 131072
L_ST = L_CS + 512
L_FL = L_ST + 2048
LDS4 = L_FL + 64

def gen_k4l(name, stamps=False, X={}):
    X = dict({'hs':('01','23s','45','67'),'bs':(16,32,32),'sq':2}, **X)
    a = Asm()
    st = Stamper(a, stamps, 4)
    kernel_header(a, name)
    I = a.I
    vLANE, vL16 = 1, 2
    T = [4,5,6,7,8,9,10,11]
    AD = [12,13,14,15]
    RM = 16
    vCSA, vSTG = 20, 21
    OUTP = 24
    CS = 32
    AFR = 40
    ACC = 64
    ST = 96
    NRING = 6
    BF = 0
    I('s_cmp_ge_u32 s2, 224')
    I('s_cbranch_scc1 K4_end')
    I(f's_load_dwordx2 s[12:13], s[0:1], {KA_W3}')
    I(f's_load_dwordx2 s[24:25], s[0:1], {KA_WS}')
    I(f's_load_dwordx2 s[56:57], s[0:1], {KA_W4}')
    I(f'v_and_b32 v{vLANE}, 63, v0')
    I('v_lshrrev_b32 v3, 6, v0')
    I(f'v_lshlrev_b32 v{vL16}, 4, v{vLANE}')
    I('v_readfirstlane_b32 s55, v3')
    I('s_and_b32 s35, s2, 7')
    I('s_lshr_b32 s36, s2, 3')
    I('s_mul_i32 s37, s36, 37')
    I('s_lshr_b32 s37, s37, 8')
    I('s_mul_i32 s38, s37, 7')
    I('s_sub_u32 s36, s36, s38')
    I('s_and_b32 s38, s35, 1')
    I('s_mul_i32 s38, s38, 7')
    I('s_add_u32 s36, s36, s38')
    I('s_lshr_b32 s35, s35, 1')
    I('s_lshl_b32 s35, s35, 2')
    I('s_add_u32 s35, s35, s37')
    I('s_and_b32 s34, s55, 3')
    I('s_lshl_b32 s40, s35, 2')
    I('s_add_u32 s40, s40, s34')
    I(f's_mov_b32 s14, {512*3584}'); I('s_mov_b32 s15, 0x00020000')
    I(f's_mov_b32 s26, {WS_SIZE:#x}'); I('s_mov_b32 s27, 0x00020000')
    I('s_lshl_b32 s49, s40, 15')
    I(f's_add_u32 s49, s49, {WS_X1B:#x}')
    I(f'v_lshrrev_b32 v{T[0]}, 3, v{vLANE}')
    I(f'v_and_b32 v{T[1]}, 7, v{vLANE}')
    I(f'v_bfe_u32 v{T[2]}, v{vLANE}, 4, 1')
    I(f'v_lshlrev_b32 v{T[2]}, 2, v{T[2]}')
    I(f'v_xor_b32 v{T[1]}, v{T[1]}, v{T[2]}')
    I(f'v_lshlrev_b32 v{T[1]}, 4, v{T[1]}')
    I(f'v_mul_u32_u24 v{T[0]}, 3584, v{T[0]}')
    I(f'v_add_u32 v{AD[0]}, v{T[1]}, v{T[0]}')
    I(f's_mul_i32 s45, s34, {8*3584}')
    I('s_lshl_b32 s46, s36, 8')
    I('s_add_u32 s45, s45, s46')
    I('s_lshl_b32 s46, s34, 10')
    I(f'v_and_b32 v{T[0]}, 31, v{vLANE}')
    if X.get('st2', 1):
        I(f'v_lshrrev_b32 v{T[3]}, 5, v{vLANE}')
        I(f'v_lshlrev_b32 v{T[3]}, 14, v{T[3]}')
        I(f'v_lshl_add_u32 v{T[3]}, v{T[0]}, 3, v{T[3]}')
        I('s_lshl_b32 s50, s40, 8')
    else:
        I(f'v_lshlrev_b32 v{T[3]}, 7, v{T[0]}')
        I('s_lshl_b32 s50, s40, 12')
    I(f's_add_u32 s50, s50, {WS_ST4:#x}')
    I('s_cmp_lt_u32 s55, 4')
    I('s_waitcnt lgkmcnt(0)')
    if stamps:
        st.first()
        I('s_cmp_lt_u32 s55, 4')
    I('s_cbranch_scc1 K4_c1')
    UN = X.get('un')
    def grp(q):
        L = []
        hf, kq_ = UN[q] if UN else (q // 4, q % 4)
        for j in range(4*kq_, 4*kq_ + 4):
            L.append(f's_add_u32 m0, s46, {hf*65536 + j*4096}\ns_add_u32 s48, s45, {hf*128 + j*32*3584}\n'
                     f'buffer_load_dwordx4 v{AD[0]}, s[12:15], s48 offen lds ; W:G{q}')
        return L
    AH = X.get('ah', 4)
    SE = X.get('se', 1)
    stl = [f'buffer_load_dwordx4 v[{ST+4*j}:{ST+4*j+3}], v{T[3]}, s[24:27], s50 offen offset:{16*j}' for j in range(8)]
    if X.get('st2', 1):
        stl = [f'buffer_load_dwordx2 v[{ST+2*j}:{ST+2*j+1}], v{T[3]}, s[24:27], s50 offen' + ('\ns_add_u32 s50, s50, 32768' if j < 7 else '') for j in range(8)]
    HS = X.get('hs')
    def hs_emit(spec):
        for ch in spec:
            if ch == 's':
                for s in stl: I(s)
            else:
                for s in grp(int(ch)): I(s)
    if HS: hs_emit(HS[0])
    else:
      for q in range(AH):
        for s in grp(q): I(s)
        if SE and q == SE - 1:
            for s in stl: I(s)
    I('s_branch K4_help')
    hq = list(a.vm_q); hn = st.n
    a.label('K4_c1')
    a.vm_q = []
    c0 = -2.0 * (2.0/3.141592653589793) ** 0.5 * LOG2E
    M, A_, B_, S_ = RM, RM+1, RM+2, RM+3
    N16 = X.get('n16', 0)
    vSA = 23 if N16 else vL16
    SO = 512 if N16 else 1024
    FLG = X.get('flag', 0)
    vFA, vFV = 3, 0
    def common():
        if FLG:
            I('s_lshl_b32 s41, s34, 2')
            I(f's_add_u32 s41, s41, {L_FL}')
            I(f'v_mov_b32 v{vFA}, s41')
            I(f'v_mov_b32 v{vFV}, 0')
        if N16:
            I(f'v_and_b32 v{vSA}, 15, v{vLANE}')
            I(f'v_lshlrev_b32 v{vSA}, 4, v{vSA}')
            I(f'v_bfe_u32 v{vCSA}, v{vLANE}, 4, 1')
            I(f'v_lshl_add_u32 v{vSA}, v{vCSA}, 10, v{vSA}')
            I(f'v_lshrrev_b32 v{vCSA}, 5, v{vLANE}')
            I(f'v_lshl_add_u32 v{vSA}, v{vCSA}, 8, v{vSA}')
        I(f'v_lshrrev_b32 v{vCSA}, 5, v{vLANE}')
        I(f'v_lshlrev_b32 v{vCSA}, 5, v{vCSA}')
        I(f'v_add_u32 v{vCSA}, {L_CS}, v{vCSA}')
        I('s_lshl_b32 s41, s34, 13')
        I(f'v_add_u32 v{vSTG}, s41, v{vL16}')
        I(f's_mul_i32 s53, s40, 114688')
        I('s_lshl_b32 s54, s36, 13')
        I('s_add_u32 s53, s53, s54')
        I(f's_add_u32 s53, s53, {WS_T2:#x}')
    BS = X.get('bs', (32, 32, 32))
    def bl(ks):
        if ks % 4 == 0 and ks > 0: I('s_add_u32 s49, s49, 4096')
        I(f'buffer_load_dwordx4 a[{BF+4*ks}:{BF+4*ks+3}], v{vL16}, s[24:27], s49 offen offset:{1024*(ks%4)}')
    for ks in range(BS[0]):
        bl(ks)
        if ks == X.get('nb0', 7):
            I(f'v_lshrrev_b32 v{T[6]}, 5, v{vLANE}')
            I(f'v_bfe_u32 v{T[7]}, v{vLANE}, 2, 2')
            I(f'v_lshl_add_u32 v{T[6]}, v{T[6]}, 3, v{T[7]}')
            I(f'v_lshlrev_b32 v{T[6]}, 7, v{T[6]}')
            I(f'v_bfe_u32 v{T[5]}, v{vLANE}, 4, 1')
            I(f'v_lshl_add_u32 v{T[6]}, v{T[5]}, 5, v{T[6]}')
            I(f'v_and_b32 v{T[5]}, 1, v{vLANE}')
            I(f'v_lshl_add_u32 v{T[6]}, v{T[5]}, 4, v{T[6]}')
            I(f'v_bfe_u32 v{T[5]}, v{vLANE}, 1, 1')
            I(f'v_lshl_add_u32 v{T[6]}, v{T[5]}, 3, v{T[6]}')
            I(f'v_bfe_u32 v{T[7]}, v{vLANE}, 3, 1')
            I(f'v_lshl_add_u32 v{AD[0]}, v{T[7]}, 6, v{T[6]}')
            I(f'v_xor_b32 v{T[7]}, 1, v{T[7]}')
            I(f'v_lshl_add_u32 v{AD[1]}, v{T[7]}, 6, v{T[6]}')
            I(f'v_and_b32 v{T[0]}, 31, v{vLANE}')
            I('s_lshl_b32 s41, s34, 9')
            I(f's_add_u32 s41, s41, {L_ST}')
            I(f'v_lshl_add_u32 v22, v{T[0]}, 4, s41')
            common()
            I(f'v_add_u32 v{vCSA}, 256, v{vCSA}')
            I('s_add_u32 s53, s53, 4096')
    I('s_mov_b32 s44, 0')
    if X.get('prio', 1): I('s_setprio 2')
    st()
    PRE = 4
    if UN:
        I(f'v_add_u32 v{AD[2]}, 65536, v{AD[0]}')
        I(f'v_add_u32 v{AD[3]}, 65536, v{AD[1]}')
        ACCS = (ACC, ST)
        last0 = max(i for i, (h_, k_) in enumerate(UN) if h_ == 0)
        NBAR = last0 + 2
        nb = BS[0]
        for gi, (h_, kq_) in enumerate(UN):
            if gi < NBAR:
                if gi == last0 + 1: I('s_waitcnt lgkmcnt(0)')
                I('s_barrier')
            order = list(range(16*kq_, 16*kq_ + 16))
            if gi == last0 or gi == 7:
                order = order[:8] + [i for i in order[8:] if i % 2 == 0] + [i for i in order[8:] if i % 2 == 1]
            def rd2(n):
                idx = order[n]; ks, m2 = idx // 2, idx % 2
                return [f'ds_read_b64_tr_b16 v[{AFR + 4*(n % NRING) + 2*t}:{AFR + 4*(n % NRING) + 2*t + 1}], v{AD[2*h_+m2]} offset:{(16*ks + 4*t)*128}' for t in range(2)]
            for n in range(PRE):
                for s_ in rd2(n): I(s_)
            hi_ = BS[gi+1] if gi + 1 < len(BS) else 32
            for ks in range(nb, hi_): bl(ks)
            nb = max(nb, hi_)
            for n, idx in enumerate(order):
                ks, m2 = idx // 2, idx % 2
                b = ACCS[h_] + 16*m2
                cc = '0' if ks == 0 else f'v[{b}:{b+15}]'
                r = AFR + 4*(n % NRING)
                I(f'v_mfma_f32_32x32x16_bf16 v[{b}:{b+15}], v[{r}:{r+3}], a[{BF+4*ks}:{BF+4*ks+3}], {cc}')
                if n + PRE < 16:
                    for s_ in rd2(n+PRE): I(s_)
                if gi == last0 and n == 14:
                    for i in range(4): I(f'ds_write_b128 v{vSTG}, v[{ACC+4*i}:{ACC+4*i+3}] offset:{1024*i}')
                if gi == 7 and n == 8: I(f'ds_read_b128 v[{RM}:{RM+3}], v22')
                if gi == 7 and n == 14:
                    for i in range(16): I(f'v_mov_b32 v{ACC+i}, v{ST+i}')
            if gi == last0:
                for i in range(4): I(f'ds_write_b128 v{vSTG}, v[{ACC+16+4*i}:{ACC+16+4*i+3}] offset:{4096 + 1024*i}')
        I('s_setprio 0')
        I('s_waitcnt lgkmcnt(0)')
        st()
        I('s_call_b64 s[62:63], K4_epk')
        for i in range(16): I(f'v_mov_b32 v{ACC+i}, v{ST+16+i}')
        I(f'v_add_u32 v{vCSA}, 128, v{vCSA}')
        I(f's_add_u32 s53, s53, 2048')
        I('s_call_b64 s[62:63], K4_epk')
        st.flush(24, 34, 22, vLANE)
        I('s_endpgm')
        mark = len(a.out)
    a.raw('K4_pass:')
    for qd in range(4):
        if qd >= 2:
            I('s_cmp_eq_u32 s44, 1')
            I(f's_cbranch_scc1 K4_nb{qd}')
            I('s_barrier')
            a.raw(f'K4_nb{qd}:')
        else:
            I('s_barrier')
        base = 16*qd
        order = list(range(base, base+16))
        if qd == 3:
            order = order[:8] + [i for i in order[8:] if i % 2 == 1] + [i for i in order[8:] if i % 2 == 0]
        def rd2(n):
            idx = order[n]; ks, m2 = idx // 2, idx % 2
            return [f'ds_read_b64_tr_b16 v[{AFR + 4*(n % NRING) + 2*t}:{AFR + 4*(n % NRING) + 2*t + 1}], v{AD[m2]} offset:{(16*ks + 4*t)*128}' for t in range(2)]
        for n in range(PRE):
            for s in rd2(n): I(s)
        lo_, hi_ = ((BS[0], BS[1]), (BS[1], BS[2]), (BS[2], 32), (32, 32))[qd]
        if hi_ > lo_:
            I('s_cmp_eq_u32 s44, 1')
            I(f's_cbranch_scc1 K4_nl{qd}')
            for ks in range(lo_, hi_): bl(ks)
            a.raw(f'K4_nl{qd}:')
        for n, idx in enumerate(order):
            ks, m2 = idx // 2, idx % 2
            b = ACC + 16*m2
            cc = '0' if ks == 0 else f'v[{b}:{b+15}]'
            r = AFR + 4*(n % NRING)
            I(f'v_mfma_f32_32x32x16_bf16 v[{b}:{b+15}], v[{r}:{r+3}], a[{BF+4*ks}:{BF+4*ks+3}], {cc}')
            if n + PRE < 16:
                for s in rd2(n+PRE): I(s)
            if qd == 3 and n == 14:
                for i in ((2, 3, 0, 1) if FLG else range(4)):
                    I(f'ds_write_b128 v{vSTG}, v[{ACC+16+4*i}:{ACC+16+4*i+3}] offset:{4096 + 1024*i}')
                    if FLG and i == (3 if FLG == 1 else 1): I(f'ds_write_b32 v{vFA}, v{vFV}')
    I('s_cmp_eq_u32 s44, 1')
    I('s_cbranch_scc1 K4_done')
    for i in range(4): I(f'ds_write_b128 v{vSTG}, v[{ACC+4*i}:{ACC+4*i+3}] offset:{1024*i}')
    I(f'v_add_u32 v{AD[0]}, 65536, v{AD[0]}')
    I(f'v_add_u32 v{AD[1]}, 65536, v{AD[1]}')
    I('s_mov_b32 s44, 1')
    if FLG: I(f'v_mov_b32 v{vFV}, 1')
    I('s_waitcnt lgkmcnt(0)')
    I('s_branch K4_pass')
    a.label('K4_done')
    I(f'ds_read_b128 v[{RM}:{RM+3}], v22')
    I('s_setprio 0')
    I('s_waitcnt lgkmcnt(0)')
    st()
    if not FLG: I('s_barrier')
    I('s_nop 7')
    I('s_call_b64 s[62:63], ' + ('K4_epk' if X.get('pk', 1) else 'K4_epi'))
    if FLG == 3:
        for i in range(16): I(f'v_mov_b32 v{ACC+i}, v{ACC+16+i}')
        I(f'v_add_u32 v{vCSA}, 128, v{vCSA}')
        I(f's_add_u32 s53, s53, 2048')
        I('s_call_b64 s[62:63], K4_epk')
    if FLG == 1:
        for i in range(8): I(f'v_mov_b32 v{ACC+8+i}, v{ACC+16+i}')
        I(f'v_add_u32 v{vCSA}, 64, v{vCSA}')
        I(f's_add_u32 s53, s53, {2048 - SO}')
        I('s_call_b64 s[62:63], K4_epk1')
    st.flush(24, 34, 22, vLANE)
    I('s_endpgm')
    if UN: a.out = a.out[:mark]
    n_comp = st.n
    a.label('K4_epi')
    a.vm_q = []; a.lds_q = []
    b = ACC
    EH = X.get('eh', 0)
    for h8 in range(2):
        if h8 == 1 and EH:
            I('s_cbranch_scc1 K4_epr')
            a.label('K4_epi1')
        I(f'ds_read_b128 v[{CS}:{CS+3}], v{vCSA} offset:{64*h8}')
        I(f'ds_read_b128 v[{CS+4}:{CS+7}], v{vCSA} offset:{64*h8 + 16}')
        chains = []
        for i in range(8):
            r = b + 8*h8 + i; t = T[i]
            chains.append([f'v_fma_f32 v{r}, -v{M}, v{CS+i}, v{r}', f'v_mul_f32 v{t}, v{r}, v{r}', f'v_fma_f32 v{t}, v{t}, v{B_}, v{A_}',
                           f'v_mul_f32 v{t}, v{t}, v{r}', f'v_exp_f32 v{t}, v{t}', f'v_fma_f32 v{t}, v{t}, v{S_}, v{S_}',
                           f'v_rcp_f32 v{t}, v{t}', f'v_mul_f32 v{r}, v{r}, v{t}'])
        for j in range(8):
            for c in chains: I(c[j])
        for i in range(4):
            I(f'v_cvt_pk_bf16_f32 v{OUTP+4*h8+i}, v{b+8*h8+2*i}, v{b+8*h8+2*i+1}')
        I(f'buffer_store_dwordx4 v[{OUTP+4*h8}:{OUTP+4*h8+3}], v{vSA}, s[24:27], s53 offen offset:{SO*h8}')
    if EH: a.raw('K4_epr:')
    I('s_nop 1')
    I('s_setpc_b64 s[62:63]')
    if X.get('pk', 1):
        a.label('K4_epk')
        a.vm_q = []; a.lds_q = []
        PC = AFR + 4
        I(f'v_sub_f32 v{PC}, 0, v{M}'); I(f'v_sub_f32 v{PC+1}, 0, v{M}')
        for k, r in enumerate((A_, B_, S_)):
            I(f'v_mov_b32 v{PC+2+2*k}, v{r}'); I(f'v_mov_b32 v{PC+3+2*k}, v{r}')
        pm, pa, pb, ps = (f'v[{PC+2*k}:{PC+2*k+1}]' for k in range(4))
        for h8 in range(2):
            if h8 == 1 and FLG == 1: a.label('K4_epk1')
            I(f'ds_read_b128 v[{CS}:{CS+3}], v{vCSA} offset:{64*h8}')
            I(f'ds_read_b128 v[{CS+4}:{CS+7}], v{vCSA} offset:{64*h8 + 16}')
            chains = []
            for i in range(0, 8, 2):
                r = ACC + 8*h8 + i; t = T[i]
                R = f'v[{r}:{r+1}]'; TT_ = f'v[{t}:{t+1}]'
                chains.append([f'v_pk_fma_f32 {R}, {pm}, v[{CS+i}:{CS+i+1}], {R}', f'v_pk_mul_f32 {TT_}, {R}, {R}', f'v_pk_fma_f32 {TT_}, {TT_}, {pb}, {pa}',
                               f'v_pk_mul_f32 {TT_}, {TT_}, {R}', f'v_exp_f32 v{t}, v{t}\nv_exp_f32 v{t+1}, v{t+1}', f'v_pk_fma_f32 {TT_}, {TT_}, {ps}, {ps}',
                               f'v_rcp_f32 v{t}, v{t}\nv_rcp_f32 v{t+1}, v{t+1}', f'v_pk_mul_f32 {R}, {R}, {TT_}', f'v_cvt_pk_bf16_f32 v{OUTP+4*h8+i//2}, v{r}, v{r+1}'])
            for j in range(9):
                for c in chains: I(c[j])
            I(f'buffer_store_dwordx4 v[{OUTP+4*h8}:{OUTP+4*h8+3}], v{vSA}, s[24:27], s53 offen offset:{SO*h8}')
        I('s_nop 1')
        I('s_setpc_b64 s[62:63]')
    a.label('K4_help')
    a.lds_q = []
    a.vm_q = list(hq)
    st.n = hn
    I('s_lshl_b32 s51, s36, 9')
    I(f's_add_u32 s51, s51, {WS_CS3:#x}')
    csl = f's_mov_b32 m0, {L_CS}\ns_mov_b32 exec_hi, 0\nbuffer_load_dwordx4 v{vL16}, s[24:27], s51 offen lds ; W:CS\ns_mov_b32 exec_hi, -1'
    C3 = X.get('c3', 0)
    if C3:
        CP = AFR + 8
        I(f'v_lshrrev_b32 v{AD[2]}, 5, v{vLANE}')
        I(f'v_mul_u32_u24 v{AD[2]}, 7168, v{AD[2]}')
        I(f'v_lshl_add_u32 v{AD[2]}, v{T[0]}, 2, v{AD[2]}')
        I('s_lshl_b32 s51, s36, 9')
        I('s_lshl_b32 s41, s34, 7')
        I('s_add_u32 s51, s51, s41')
        I(f's_add_u32 s51, s51, {WS_C3P:#x}')
        I(f's_add_u32 s41, s41, {L_CS}')
        I(f'v_lshl_add_u32 v{AD[3]}, v{T[0]}, 2, s41')
        csl = '\n'.join(f'buffer_load_dword v{CP+j}, v{AD[2]}, s[24:27], s51 offen' + ('\ns_add_u32 s51, s51, 14336' if j < 3 else '') for j in range(4))
        csf = [f'v_add_f32 v{CP}, v{CP}, v{CP+1}', f'v_add_f32 v{CP+2}, v{CP+2}, v{CP+3}', f'v_add_f32 v{CP}, v{CP}, v{CP+2}', f'v_mov_b32 v{CP+1}, v{CP}',
               f'v_permlane32_swap_b32 v{CP}, v{CP+1}', f'v_add_f32 v{CP}, v{CP}, v{CP+1}', f'ds_write_b32 v{AD[3]}, v{CP}']
    I('s_lshl_b32 s41, s34, 9')
    I(f's_add_u32 s41, s41, {L_ST}')
    I(f'v_lshl_add_u32 v{AD[1]}, v{T[0]}, 4, s41')
    common()
    def stats():
        L = []
        V = S_
        if X.get('st2', 1):
            for stp in (4, 2, 1):
                for j in range(stp):
                    L.append(f'v_add_f32 v{ST+2*j}, v{ST+2*j}, v{ST+2*(j+stp)}')
                    L.append(f'v_add_f32 v{ST+2*j+1}, v{ST+2*j+1}, v{ST+2*(j+stp)+1}')
            L += [f'v_mov_b32 v{M}, v{ST}', f'v_mov_b32 v{V}, v{ST+1}', f'v_permlane32_swap_b32 v{M}, v{ST}', f'v_permlane32_swap_b32 v{V}, v{ST+1}',
                  f'v_add_f32 v{M}, v{M}, v{ST}', f'v_add_f32 v{V}, v{V}, v{ST+1}',
                  f'v_mul_f32 v{M}, {f32bits(1.0/512):#x}, v{M}', f'v_mul_f32 v{V}, {f32bits(1.0/512):#x}, v{V}', f'v_fma_f32 v{V}, -v{M}, v{M}, v{V}', f'v_max_f32 v{V}, 0, v{V}']
        else:
            L.append(f'v_add_f32 v{M}, v{ST}, v{ST+2}')
            L.append(f'v_add_f32 v{V}, v{ST+1}, v{ST+3}')
            for j in range(2, 16):
                L.append(f'v_add_f32 v{M}, v{M}, v{ST+2*j}')
                L.append(f'v_add_f32 v{V}, v{V}, v{ST+2*j+1}')
            L.append(f'v_mul_f32 v{M}, {f32bits(1.0/16):#x}, v{M}')
            L.append(f'v_mov_b32 v{T[2]}, 0')
            for j in range(16):
                L.append(f'v_sub_f32 v{T[3]}, v{ST+2*j}, v{M}')
                L.append(f'v_fmac_f32 v{T[2]}, v{T[3]}, v{T[3]}')
            L.append(f'v_fmac_f32 v{V}, {f32bits(32.0):#x}, v{T[2]}')
            L.append(f'v_mul_f32 v{V}, {f32bits(1.0/512):#x}, v{V}')
        L.append(f'v_cvt_pk_bf16_f32 v{M}, 0, v{M}')
        L.append(f'v_cvt_pk_bf16_f32 v{V}, 0, v{V}')
        L.append(f'v_add_f32 v{V}, {f32bits(1e-5):#x}, v{V}')
        L.append(f'v_cvt_pk_bf16_f32 v{V}, 0, v{V}')
        L.append(f'v_sqrt_f32 v{V}, v{V}')
        L.append(f'v_cvt_pk_bf16_f32 v{V}, 0, v{V}')
        L.append(f'v_rcp_f32 v{T[2]}, v{V}')
        L.append(f'v_mul_f32 v{A_}, {f32bits(c0):#x}, v{T[2]}')
        L.append(f'v_mul_f32 v{B_}, v{T[2]}, v{T[2]}')
        L.append(f'v_mul_f32 v{B_}, v{B_}, v{A_}')
        L.append(f'v_mul_f32 v{B_}, {f32bits(0.044715):#x}, v{B_}')
        L.append(f'ds_write_b128 v{AD[1]}, v[{RM}:{RM+3}]')
        return L
    def pf4(n):
        L = [f's_mov_b32 s58, {1792*1024}\ns_mov_b32 s59, 0x00020000\nv_lshlrev_b32 v{AD[2]}, 7, v{vLANE}\n'
             's_lshr_b32 s60, s2, 3\ns_lshl_b32 s60, s60, 16\ns_lshl_b32 s61, s34, 14\ns_add_u32 s60, s60, s61']
        for i in range(n):
            L.append(f'buffer_load_dword v{AFR+i}, v{AD[2]}, s[56:59], s60 offen\ns_add_u32 s60, s60, 8192')
        return L
    NPF = X.get('pf4', 0); PFQ = X.get('pfq', 'e0')
    QS = NBAR - 1 if UN else 4
    for q in range(NBAR if UN else 6):
        tags = [f'G{q}'] + (['CS'] if q == QS else [])
        if q == 5 and not UN: tags = ['G5', 'G6', 'G7']
        if UN and q == NBAR - 1: tags += [f'G{i}' for i in range(q, 8)]
        a.wait_tags(tags, lg=(q >= QS))
        I('s_barrier')
        if X.get('hst'): st()
        if HS:
            if q + 1 < len(HS): hs_emit(HS[q+1])
        elif q + AH < 8:
            for s in grp(q + AH): I(s)
        if q == 0:
            if not SE and not HS:
                for s in stl: I(s)
            I(csl)
        if q == X.get('sq', 1):
            for s in stats(): I(s)
        if C3 and q == X.get('cq', X.get('sq', 1)):
            for s in csf: I(s)
        if q == X.get('sq', 1):
            if X.get('dry', 0):
                I('s_mov_b64 exec, 0')
                I('s_call_b64 s[62:63], ' + ('K4_epk' if X.get('pk', 1) else 'K4_epi'))
                I('s_mov_b64 exec, -1')
                I('s_waitcnt lgkmcnt(0)')
        if q == QS:
            for i in range(4): I(f'ds_read_b128 v[{ACC+4*i}:{ACC+4*i+3}], v{vSTG} offset:{1024*i}')
            for i in range(4): I(f'ds_read_b128 v[{ACC+16+4*i}:{ACC+16+4*i+3}], v{vSTG} offset:{4096 + 1024*i}')
            if EH:
                I('s_waitcnt lgkmcnt(6)')
                I('s_cmp_eq_u32 s34, s34')
                I('s_call_b64 s[62:63], K4_epi')
                a.vm_q.append(None)
        if NPF and q == PFQ:
            for s in pf4(NPF): I(s)
    if UN: I('s_waitcnt lgkmcnt(0)')
    I('s_call_b64 s[62:63], ' + ('K4_epi1' if EH else 'K4_epi'))
    if NPF and PFQ == 'e0':
        for s in pf4(NPF): I(s)
    for i in range(16): I(f'v_mov_b32 v{ACC+i}, v{ACC+16+i}')
    I(f'v_add_u32 v{vCSA}, 128, v{vCSA}')
    I('s_add_u32 s53, s53, 2048')
    if EH: I('s_cmp_lg_u32 s34, s34')
    I('s_call_b64 s[62:63], ' + ('K4_epk' if X.get('h1pk') else 'K4_epi'))
    if NPF and PFQ == 'e1':
        for s in pf4(NPF): I(s)
    I(f'v_add_u32 v{vCSA}, 256, v{vCSA}')
    I('s_add_u32 s53, s53, 4096')
    st()
    if FLG == 3 or UN:
        pass
    elif FLG:
        if FLG == 1:
            PC = AFR + 4
            I(f'v_sub_f32 v{PC}, 0, v{M}'); I(f'v_sub_f32 v{PC+1}, 0, v{M}')
            for k, r in enumerate((A_, B_, S_)):
                I(f'v_mov_b32 v{PC+2+2*k}, v{r}'); I(f'v_mov_b32 v{PC+3+2*k}, v{r}')
        a.label('K4_poll')
        I(f'ds_read_b32 v{vFV}, v{vFA}')
        for i in (range(2, 4) if FLG == 1 else range(4)): I(f'ds_read_b128 v[{ACC+4*i}:{ACC+4*i+3}], v{vSTG} offset:{4096 + 1024*i}')
        I('s_waitcnt lgkmcnt(0)')
        I(f'v_readfirstlane_b32 s41, v{vFV}')
        I('s_nop 3')
        I('s_cmp_eq_u32 s41, 1')
        I('s_cbranch_scc0 K4_poll')
        I('s_call_b64 s[62:63], ' + ('K4_epk1' if FLG == 1 else 'K4_epk'))
    else:
        I('s_barrier')
        if X.get('hst'): st()
        for i in range(4): I(f'ds_read_b128 v[{ACC+4*i}:{ACC+4*i+3}], v{vSTG} offset:{4096 + 1024*i}')
        I('s_waitcnt lgkmcnt(0)')
        I('s_call_b64 s[62:63], ' + ('K4_epk' if X.get('pk', 1) else 'K4_epi'))
    if X.get('hst'): st()
    st.kidx = 6
    st.flush(24, 55, 22, vLANE)
    a.label('K4_end')
    I('s_endpgm')
    print("K4 instrs", a.ninstr, "nops", a.nnop)
    return a.text(), kernel_desc(name, 256, 96, accum=128)
```

```python
import sys
from common import *
from k0 import gen_k0
from k1 import gen_k1
from k0n import gen_k0n, set_c3
from k1n import gen_k1n
from k1p import gen_k1p
import k1p_max
from ka import gen_ka
from k2 import gen_k2
from k2n import gen_k2n
from k3 import gen_k3
from k3n import gen_k3n
from k23 import gen_k23, NWG23
from k4 import gen_k4
from k4h import gen_k4h, LDS4
from k4l import gen_k4l
import k4l
from k5 import gen_k5
from k5m import gen_k5m
X2DEF = {'spr':1,'na0':0,'na1':0,'step':5,'pr':1,'A':{'bulk':20,'step':1000,'step2':6}}
def build(path, upto=6, stamps=False, emu=True, t0=False, t1=2, la5=2, merged=False, cpf=False, nt0=2, f23=False, sc=('k0','k1','k2','k3','k4','k5'), **kw):
    hdr = open('cdna_kernels/' + NAME + '.s.ref').read().split('; Override launch')[0]
    ks = []
    C3 = kw.get('c3', 1)
    NB_K0 = set_c3(C3)
    if kw.get('pl'):
        kw['X'] = dict(kw.get('X', {}) or {}, pl=kw['pl']); kw['X2'] = dict(kw.get('X2', {}), pl=kw['pl'])
    if kw.get('vtr', 0):
        kw['X'] = dict({'sl':(('x2',4),('w',6),('x3',10),('f',12))}, **dict(kw.get('X', {}) or {}, vtr=1)); kw['skipj'] = ('vp',)
    if kw.get('fold', 1): NB_K0 -= 64
    if C3:
        kw['X'] = dict(kw.get('X', {}) or {}, c3=C3); kw['X4'] = dict(kw.get('X4', {}), c3=1)
    if C3 == 2: kw['X2'] = dict(kw.get('X2', {}), m2=1)
    ks.append(('k0_kernel', (496,1,1), 512, 32768, lambda n: gen_k0(n, stamps, touch=t0, cpf=cpf)))
    ks.append(('k1_kernel', (256,1,1), 512, 163840, lambda n: gen_k1(n, stamps, emu=emu, touch=t1, X=kw.get('X', ()))))
    ks.append(('k2_kernel', (256,1,1), 512, 18432, lambda n: (gen_k2n(n, stamps, X=dict(X2DEF, **kw.get('X2', {}))) if kw.get('k2n', 1) else gen_k2(n, stamps, X=kw.get('X2', {})))))
    ks.append(('k3_kernel', (256,1,1), 256, 65536, lambda n: (gen_k3n if kw.get('k3n', True) else gen_k3)(n, stamps, X=kw.get('X3', {}))))
    ks.append(('k4_kernel', (224,1,1), 512, 131584, lambda n: gen_k4(n, stamps, nt0=nt0, direct=f23, X=kw.get('X4', {}))))
    ks.append(('k5_kernel', (256,1,1), 512, 163840, lambda n: (gen_k5m if kw.get('k5m', 1) else gen_k5)(n, stamps, LA=la5, X=kw.get('X5', {}))))
    if kw.get('new', True):
        ks[0] = ('k0_kernel', (NB_K0+kw.get('xpf',0),1,1), 512, 32768, lambda n: gen_k0n(n, stamps, lite=kw.get('lite', 0), xpf=kw.get('xpf',0), qrows=kw.get('qrows',512), perm=kw.get('perm',0), skipj=kw.get('skipj',()), fold=kw.get('fold',1)))
        ks[1] = ('k1_kernel', (256,1,1), 512, 163840, lambda n: (k1p_max.gen_k1p if kw.get('oldmax') else gen_k1p)(n, stamps, X=kw.get('X', ()), offs=kw.get('offs', 106.0)))
    if kw.get('k4h', True):
        ks[4] = ('k4_kernel', (224,1,1), 512, (k4l.LDS4 if kw.get('X4', {}).get('flag') else LDS4), lambda n: (gen_k4h if kw.get('k4h', True) == 'h' else gen_k4l)(n, stamps, X=kw.get('X4', {})))
    if f23:
        ks = ks[:2] + [('k23_kernel', (NWG23,1,1), 512, 151552, lambda n: gen_k23(n, stamps))] + ks[4:]
    if merged:
        ks = [('ka_kernel', (256,1,1), 512, 163840, lambda n: gen_ka(n, stamps))] + ks[2:]
    ks = ks[:upto]
    out = hdr
    for n, g, b, lds, f in ks:
        out += f'; @launch kernel={n} grid=({g[0]},{g[1]},{g[2]}) block=({b},1,1) lds={lds}\n'
    out += '.amdgcn_target "amdgcn-amd-amdhsa--gfx950"\n.text\n'
    descs = ''
    for n, g, b, lds, f in ks:
        FAKE16[0] = n.split('_')[0] in kw.get('fake16', ())
        t, d = f(n)
        FAKE16[0] = False
        if n.split('_')[0] in sc:
            t = '\n'.join((l + ' sc0 sc1' if 'buffer_store_dwordx4' in l and 'sc0' not in l else l) for l in t.split('\n'))
        out += t; descs += d
    out += 'CODE_END:\n    s_endpgm\n'
    out += '.section .rodata,"a"\n' + descs
    open(path, 'w').write(out)
if __name__ == '__main__':
    build(sys.argv[1] if len(sys.argv) > 1 else 'cur.s', stamps=(int(sys.argv[2]) if len(sys.argv) > 2 else 0))
```

```python
from common import *
from k2 import *

LDS2C = 32768 + 8192 + 4096
def gen_k2c(name, stamps=False, X={}):
    a = Asm()
    st = Stamper(a, stamps, 2)
    kernel_header(a, name)
    inj = {'q': [], 'n': 0, 'step': 6}
    def I(t):
        a.I(t)
        if inj['q']:
            inj['n'] += 1
            if inj['n'] % inj['step'] == 0: a.I(inj['q'].pop(0))
    class AW_: pass
    aw = AW_(); aw.I = I
    L_HB, L_ML, L_S2, L_S3 = 0, 32768, 40960, 43008
    vLANE, vL16 = 1, 2
    vMA = 3
    A0, A1 = 4, 8
    T = [12,13,14,15,16,17,18,19]
    U = 20
    vSA, vSR = 24, 25
    XR = 28
    MV = 44
    D = 64
    PV = 96
    def preg(g, q):
        if g < 2: return f'v[{PV+16*g+4*q}:{PV+16*g+4*q+3}]'
        r = 32 + 16*(g-2) + 4*q
        return f'a[{r}:{r+3}]'
    I('s_cmp_ge_u32 s2, 256')
    I('s_cbranch_scc1 K2_end')
    I(f's_load_dwordx2 s[24:25], s[0:1], {KA_WS}')
    I(f's_load_dwordx2 s[8:9], s[0:1], {KA_X}')
    I(f'v_and_b32 v{vLANE}, 63, v0')
    I('v_lshrrev_b32 v3, 6, v0')
    I(f'v_lshlrev_b32 v{vL16}, 4, v{vLANE}')
    I('v_readfirstlane_b32 s34, v3')
    I('s_and_b32 s35, s2, 7')
    I('s_lshl_b32 s35, s35, 3')
    I('s_lshr_b32 s37, s2, 5')
    I('s_add_u32 s35, s35, s37')
    I('s_bfe_u32 s36, s2, 0x20003')
    for d, n in ((8, 2048*1024), (24, WS_SIZE)):
        I(f's_mov_b32 s{d+2}, {n:#x}'); I(f's_mov_b32 s{d+3}, 0x00020000')
    I('s_lshl_b32 s40, s35, 15')
    I('s_lshl_b32 s41, s34, 12')
    I('s_add_u32 s41, s40, s41')
    I(f's_add_u32 s42, s41, {WS_P:#x}')
    I(f'v_and_b32 v{T[0]}, 31, v{vLANE}')
    I(f'v_lshrrev_b32 v{T[2]}, 5, v{vLANE}')
    I('s_lshl_b32 s55, s36, 22')
    pl = []
    for g in range(8):
        for q in range(4):
            pl.append(((f's_add_u32 s43, s55, {g*2097152:#x}\ns_and_b32 s43, s43, 0xffffff\ns_add_u32 s43, s43, s42\n' if X.get('rot') else f's_add_u32 s43, s42, {g*2097152:#x}\n') if q == 0 else '') + f'buffer_load_dwordx4 {preg(g, q)}, v{vL16}, s[24:27], s43 offen offset:{1024*q}')
    I('s_waitcnt lgkmcnt(0)')
    st.first()
    X0 = X
    def body(X):
        inj['q'] = []; inj['n'] = 0; inj['step'] = X.get('step', 6)
        NP0 = X.get('np0', 4)
        for s in pl[:NP0]: I(s)
        I(f'v_lshlrev_b32 v{T[3]}, 10, v{T[0]}')
        I(f'v_lshl_add_u32 v{T[3]}, v{T[2]}, 4, v{T[3]}')
        I('s_lshl_b32 s44, s34, 7')
        I('s_add_u32 s44, s44, s40')
        for q in range(4):
            I(f'buffer_load_dwordx4 v[{XR+4*q}:{XR+4*q+3}], v{T[3]}, s[8:11], s44 offen offset:{32*q}')
        I(f'v_lshrrev_b32 v{U}, 4, v{vLANE}')
        I(f'v_lshlrev_b32 v{U}, 11, v{U}')
        I(f'v_and_b32 v{U+1}, 15, v{vLANE}')
        I(f'v_lshl_add_u32 v{U}, v{U+1}, 4, v{U}')
        I('s_lshl_b32 s48, s34, 8')
        I(f'v_add_u32 v{U}, s48, v{U}')
        I('s_lshl_b32 s45, s36, 3')
        I('s_add_u32 s45, s45, s34')
        I('s_lshl_b32 s48, s45, 6')
        I(f's_add_u32 s48, s48, {WS_CS1 - WS_MOD:#x}')
        I(f'v_and_b32 v{U+1}, 3, v{vLANE}')
        I(f'v_lshl_add_u32 v{U+1}, v{U+1}, 4, s48')
        I(f'v_cmp_gt_u32 vcc, 48, v{vLANE}')
        I(f'v_cndmask_b32 v{U}, v{U+1}, v{U}, vcc')
        I('s_lshl_b32 s48, s34, 10')
        I(f's_add_u32 s48, s48, {L_ML}')
        I('s_mov_b32 m0, s48')
        I(f's_mov_b32 s44, {WS_MOD:#x}')
        I(f'buffer_load_dwordx4 v{U}, s[24:27], s44 offen lds ; W:ML')
        I(f'v_lshl_add_u32 v{vMA}, v{T[2]}, 5, s48')
        def mrd(vec, q, dst):
            return [f'ds_read_b128 v[{dst+4*h2}:{dst+4*h2+3}], v{vMA} offset:{256*vec + 64*q + 16*h2} ; R:ML' for h2 in range(2)]
        I('s_lshl_b32 s46, s45, 14')
        I(f's_add_u32 s46, s46, {WS_W1P:#x}')
        for k4 in range(4): I(f's_add_u32 s{56+k4}, s46, {k4*4096}')
        aloads = [f'buffer_load_dwordx4 a[{4*ks}:{4*ks+3}], v{vL16}, s[24:27], s{56+ks//4} offen offset:{1024*(ks%4)}' for ks in range(16)]
        MPOS = X.get('mpos', 100)
        for s in pl[NP0:][:MPOS]: I(s)
        ident_frags(a, vLANE, A0, A1, T[5], T[6], T[7])
        I('s_mov_b32 s52, 0xffff0000')
        I('s_mov_b32 s53, 0x3f803f80')
        I(f'v_and_b32 v{T[5]}, 15, v{vLANE}')
        I(f'v_lshlrev_b32 v{vSR}, 4, v{T[5]}')
        I(f'v_bfe_u32 v{T[5]}, v{vLANE}, 4, 1')
        I(f'v_lshl_add_u32 v{T[4]}, v{T[5]}, 3, v{vSR}')
        I('s_lshl_b32 s48, s34, 8')
        I(f'v_add_u32 v{vSA}, s48, v{T[4]}')
        for s in pl[NP0:][MPOS:]: I(s)
        NA1 = X.get('na1', 0)
        for s in aloads[:NA1]: I(s)
        for s in mrd(0, 0, MV) + mrd(0, 1, MV+8): I(s)
        st()
        for g in range(8):
            for q in range(4):
                d = D + 16*(q >> 1)
                A = A0 if (q & 1) == 0 else A1
                cc = '0' if (g == 0 and (q & 1) == 0) else f'v[{d}:{d+15}]'
                I(f'v_mfma_f32_32x32x16_bf16 v[{d}:{d+15}], v[{A}:{A+3}], {preg(g, q)}, {cc}')
        for s in mrd(0, 2, PV) + mrd(0, 3, PV+8): I(s)
        GAq = [MV, MV+8, PV, PV+8]
        inj['q'] = list(aloads[NA1:])
        for q in range(4):
            for e in range(0, 8, 2):
                r = D + 8*q + e; u = U + 2*((e//2) % 2); xr = XR + 4*q + e//2; g_ = GAq[q] + e
                I(f'v_lshlrev_b32 v{u}, 16, v{xr}')
                I(f'v_and_b32 v{u+1}, s52, v{xr}')
                I(f'v_pk_fma_f32 v[{r}:{r+1}], v[{r}:{r+1}], v[{g_}:{g_+1}], v[{u}:{u+1}]')
                I(f'v_cvt_pk_bf16_f32 v{xr}, v{r}, v{r+1}')
        st()
        M, V = T[2], T[3]
        def stats_local(mean, var):
            I(f'v_mov_b32 v{mean}, 0'); I(f'v_mov_b32 v{var}, 0'); I(f'v_mov_b32 v{T[6]}, 0'); I(f'v_mov_b32 v{T[7]}, 0')
            for j in range(0, 16, 2):
                I(f'v_dot2_f32_bf16 v{mean}, v{XR+j}, s53, v{mean}')
                I(f'v_dot2_f32_bf16 v{var}, v{XR+j}, v{XR+j}, v{var}')
                I(f'v_dot2_f32_bf16 v{T[6]}, v{XR+j+1}, s53, v{T[6]}')
                I(f'v_dot2_f32_bf16 v{T[7]}, v{XR+j+1}, v{XR+j+1}, v{T[7]}')
            I(f'v_add_f32 v{mean}, v{mean}, v{T[6]}')
            I(f'v_add_f32 v{var}, v{var}, v{T[7]}')
            I(f'v_mov_b32 v{T[6]}, v{mean}'); I(f'v_mov_b32 v{T[7]}, v{var}')
            I(f'v_permlane32_swap_b32 v{mean}, v{T[6]}'); I(f'v_permlane32_swap_b32 v{var}, v{T[7]}')
            I(f'v_add_f32 v{mean}, v{mean}, v{T[6]}'); I(f'v_add_f32 v{var}, v{var}, v{T[7]}')
        stats_local(M, V)
        I(f'ds_write_b64 v{vSA}, v[{M}:{V}] offset:{L_S2}')
        I('s_lshr_b32 s47, s34, 1\ns_cmp_eq_u32 s47, s36\ns_cselect_b32 s54, 0, 0x10000000')
        I(f's_add_u32 s43, s41, {WS_X1:#x}')
        I('s_add_u32 s43, s43, s54')
        for q in range(4):
            I(f'buffer_store_dwordx4 v[{XR+4*q}:{XR+4*q+3}], v{vL16}, s[24:27], s43 offen offset:{1024*q}')
        for s in mrd(2, 0, PV) + mrd(1, 0, PV+8) + mrd(2, 1, PV+16) + mrd(1, 1, PV+24): I(s)
        for j in range(16):
            I(f'v_lshlrev_b32 v{D+2*j}, 16, v{XR+j}')
            I(f'v_and_b32 v{D+2*j+1}, s52, v{XR+j}')
        if X.get('bulk'):
            q_ = inj['q']; inj['q'] = []
            nb_ = X['bulk']
            I('s_setprio 0')
            for s in q_[:nb_]: I(s)
            I('s_setprio 3')
            I('s_waitcnt lgkmcnt(0)')
            I('s_barrier')
            inj['step'] = X.get('step2', inj['step'])
            inj['q'] = q_[nb_:]
        else:
            I('s_waitcnt lgkmcnt(0)')
            I('s_barrier')
        R = MV
        for w in range(8):
            I(f'ds_read_b64 v[{R+2*w}:{R+2*w+1}], v{T[4]} offset:{L_S2 + 256*w}')
        for stp in (4, 2, 1):
            for w in range(stp):
                I(f'v_pk_add_f32 v[{R+2*w}:{R+2*w+1}], v[{R+2*w}:{R+2*w+1}], v[{R+2*(w+stp)}:{R+2*(w+stp)+1}]')
        I(f'v_mul_f32 v{M}, {f32bits(1.0/512):#x}, v{R}')
        I(f'v_mul_f32 v{V}, {f32bits(1.0/512):#x}, v{R+1}')
        for s in mrd(2, 2, MV) + mrd(1, 2, MV+8): I(s)
        I(f'v_fma_f32 v{V}, -v{M}, v{M}, v{V}')
        I(f'v_max_f32 v{V}, 0, v{V}')
        ln_rstd(aw, V, M)
        st()
        I(f'v_sub_f32 v{U}, 0, v{M}'); I(f'v_sub_f32 v{U+1}, 0, v{M}')
        I(f'v_mov_b32 v{U+2}, v{V}'); I(f'v_mov_b32 v{U+3}, v{V}')
        I('s_lshl_b32 s48, s34, 12')
        I(f'v_add_u32 v{T[1]}, s48, v{vL16}')
        TS = [(PV, PV+8), (PV+16, PV+24), (MV, MV+8), (PV, PV+8)]
        for q in range(4):
            tb, sb = TS[q]
            for e in range(0, 8, 2):
                r = D + 8*q + e
                I(f'v_pk_add_f32 v[{r}:{r+1}], v[{r}:{r+1}], v[{U}:{U+1}]')
                I(f'v_pk_mul_f32 v[{tb+e}:{tb+e+1}], v[{tb+e}:{tb+e+1}], v[{U+2}:{U+3}]')
            for e in range(0, 8, 2):
                r = D + 8*q + e
                I(f'v_pk_fma_f32 v[{r}:{r+1}], v[{r}:{r+1}], v[{tb+e}:{tb+e+1}], v[{sb+e}:{sb+e+1}]')
            if q == 0:
                for s in mrd(2, 3, PV) + mrd(1, 3, PV+8): I(s)
            for e in range(0, 8, 2):
                r = D + 8*q + e
                I(f'v_cvt_pk_bf16_f32 v{XR+4*q+e//2}, v{r}, v{r+1}')
            I(f'ds_write_b128 v{T[1]}, v[{XR+4*q}:{XR+4*q+3}] offset:{L_HB + 1024*q}')
        stats_local(M, V)
        I(f'ds_write_b64 v{vSA}, v[{M}:{V}] offset:{L_S3}')
        I(f's_add_u32 s43, s41, {WS_HB:#x}')
        I('s_add_u32 s43, s43, s54')
        for q in range(4):
            I(f'buffer_store_dwordx4 v[{XR+4*q}:{XR+4*q+3}], v{vL16}, s[24:27], s43 offen offset:{1024*q}')
        I(f'v_bfe_u32 v{T[5]}, v{vLANE}, 4, 1')
        I(f'v_lshl_add_u32 v{T[1]}, v{T[5]}, 10, v{vSR}')
        I(f'v_lshrrev_b32 v{T[5]}, 5, v{vLANE}')
        I(f'v_lshl_add_u32 v{T[1]}, v{T[5]}, 9, v{T[1]}')
        I(f'v_and_b32 v{T[5]}, 0x30, v{vLANE}')
        I('s_lshl_b32 s48, s34, 10')
        I(f's_add_u32 s48, s48, {L_ML + 768}')
        I(f'v_add_u32 v{T[5]}, s48, v{T[5]}')
        CS = A0
        I(f'ds_read_b128 v[{CS}:{CS+3}], v{T[5]} ; R:ML')
        I('s_waitcnt lgkmcnt(0)')
        I('s_barrier')
        st()
        rest_ = inj['q']; inj['q'] = []
        print("K2 leftover A loads", len(rest_))
        for s in rest_: I(s)
        BF = 64; NB = 16; ACC = XR
        seq = [(ks, rq) for ks in range(16) for rq in range(2)]
        def brd(n):
            ks, rq = seq[n]; d = BF + 4*(n % NB)
            return f'ds_read_b128 v[{d}:{d+3}], v{T[1]} offset:{L_HB + 2048*ks + 256*rq}'
        PRE = X.get('pre', 10)
        for n in range(PRE): I(brd(n))
        S = MV - 8
        srd_ = [f'ds_read_b128 v[{S+4*(w%4)}:{S+4*(w%4)+3}], v{vSR} offset:{L_S3 + 256*w}' for w in range(8)]
        SA = S + 16
        sm = srd_[:4] + [f'v_add_f32 v{SA+i}, v{S+i}, v{S+4+i}' for i in range(4)] + [f'v_add_f32 v{SA+4+i}, v{S+8+i}, v{S+12+i}' for i in range(4)] + srd_[4:] + \
             [f'v_add_f32 v{SA+i}, v{SA+i}, v{SA+4+i}' for i in range(4)] + \
             [f'v_add_f32 v{S+i}, v{S+i}, v{S+4+i}' for i in range(4)] + [f'v_add_f32 v{S+8+i}, v{S+8+i}, v{S+12+i}' for i in range(4)] + \
             [f'v_add_f32 v{S+i}, v{S+i}, v{S+8+i}' for i in range(4)] + [f'v_add_f32 v{SA+i}, v{SA+i}, v{S+i}' for i in range(4)]
        ch = []
        for rq in range(2):
            m_, v_ = SA + 2*rq, SA + 2*rq + 1
            ch.append([f'v_mul_f32 v{m_}, {f32bits(1.0/512):#x}, v{m_}', f'v_mul_f32 v{v_}, {f32bits(1.0/512):#x}, v{v_}', f'v_fma_f32 v{v_}, -v{m_}, v{m_}, v{v_}', f'v_max_f32 v{v_}, 0, v{v_}',
                       f'v_cvt_pk_bf16_f32 v{m_}, 0, v{m_}', f'v_cvt_pk_bf16_f32 v{v_}, 0, v{v_}', f'v_add_f32 v{v_}, {f32bits(1e-5):#x}, v{v_}', f'v_cvt_pk_bf16_f32 v{v_}, 0, v{v_}',
                       f'v_sqrt_f32 v{v_}, v{v_}', f'v_cvt_pk_bf16_f32 v{v_}, 0, v{v_}', f'v_rcp_f32 v{v_}, v{v_}'])
        sm += [x for p in zip(*ch) for x in p]
        main = []
        for n, (ks, rq) in enumerate(seq):
            b = ACC + 4*rq; d = BF + 4*(n % NB)
            cc = '0' if ks == 0 else f'v[{b}:{b+3}]'
            main.append(f'v_mfma_f32_16x16x32_bf16 v[{b}:{b+3}], a[{4*ks}:{4*ks+3}], v[{d}:{d+3}], {cc}' + (('\n' + brd(n+PRE)) if n + PRE < 32 else ''))
        for s in merge(main, sm): I(s)
        st()
        c0 = -2.0 * (2.0/3.141592653589793) ** 0.5 * LOG2E
        I(f's_mov_b32 s50, {f32bits(c0*0.044715):#x}')
        I(f'v_mov_b32 v{T[7]}, {f32bits(c0):#x}')
        ep = []
        for e in range(8):
            r = ACC + e; rq = e >> 2
            L = [f'v_fma_f32 v{r}, -v{SA+2*rq}, v{CS+(e & 3)}, v{r}', f'v_mul_f32 v{r}, v{r}, v{SA+2*rq+1}']
            L += gelu_ops(r, BF + e, 'v%d' % T[7], 's50')
            ep.append(L)
        for j in range(len(ep[0])):
            for L in ep: I(L[j])
        O = BF + 8
        for j in range(4):
            I(f'v_cvt_pk_bf16_f32 v{O+j}, v{ACC+2*j}, v{ACC+2*j+1}')
        I('s_lshl_b32 s48, s45, 10')
        I('s_add_u32 s48, s48, s40')
        I(f's_add_u32 s48, s48, {WS_T:#x}')
        for e in range(2): I(f'v_permlane16_swap_b32 v{O+e}, v{O+2+e}')
        I(f'buffer_store_dwordx4 v[{O}:{O+3}], v{vL16}, s[24:27], s48 offen')
        st.flush(24, 34, 100, vLANE)
        I('s_endpgm')
    I('s_setprio 3')
    if X0.get('A') is not None:
        I('s_cmp_ge_u32 s34, 4')
        I('s_cbranch_scc1 K2_B')
        sn = st.n
        body(dict(X0, **X0.get('A', {})))
        a.raw('K2_B:')
        a.vm_q = []; a.lds_q = []; a.hist = []
        st.n = sn
        body(dict(X0, **X0.get('B', {})))
    else:
        body(X0)
    a.label('K2_end')
    I('s_endpgm')
    print("K2 instrs", a.ninstr, "nops", a.nnop)
    return a.text(), kernel_desc(name, 256, 96, accum=128)
```

```python
from common import *
from k2 import *

def gen_k2n(name, stamps=False, X={}):
    a = Asm()
    st = Stamper(a, stamps, 2)
    kernel_header(a, name)
    inj = {'q': [], 'n': 0, 'step': X.get('step', 6)}
    def I(t):
        a.I(t)
        if inj['q']:
            inj['n'] += 1
            if inj['n'] % inj['step'] == 0: a.I(inj['q'].pop(0))
    class AW_:
        pass
    aw = AW_(); aw.I = I
    L_HB, L_S2, L_S3 = 0, 16384, 17408
    vLANE, vL16 = 1, 2
    vFO = 3
    A0, A1 = 4, 8
    T = [12,13,14,15,16,17,18,19]
    XR = 20
    U = 28
    GA = 32; D = 48; TB = 64; SB = 80
    P = 64
    AW = 160
    I('s_cmp_ge_u32 s2, 256')
    I('s_cbranch_scc1 K2_end')
    I(f's_load_dwordx2 s[24:25], s[0:1], {KA_WS}')
    I(f's_load_dwordx2 s[8:9], s[0:1], {KA_X}')
    if X.get('pf3') or X.get('pf4'):
        I(f's_load_dwordx2 s[56:57], s[0:1], {KA_W3}')
        I(f's_load_dwordx2 s[60:61], s[0:1], {KA_W4}')
    I(f'v_and_b32 v{vLANE}, 63, v0')
    I('v_lshrrev_b32 v3, 6, v0')
    I('s_nop 0')
    I('v_readfirstlane_b32 s34, v3')
    I('s_and_b32 s35, s2, 7')
    I('s_lshr_b32 s36, s2, 3')
    I('s_lshl_b32 s35, s35, 4')
    I('s_lshr_b32 s37, s36, 1')
    I('s_add_u32 s35, s35, s37')
    I('s_and_b32 s36, s36, 1')
    I(f'v_lshlrev_b32 v{vL16}, 4, v{vLANE}')
    I(f'v_and_b32 v{T[0]}, 15, v{vLANE}')
    I(f'v_bfe_u32 v{T[1]}, v{vLANE}, 4, 1')
    I(f'v_lshrrev_b32 v{T[2]}, 5, v{vLANE}')
    I(f'v_lshl_add_u32 v{vFO}, v{T[2]}, 5, v{T[0]}')
    I('s_and_b32 s37, s35, 1')
    I('s_lshl_b32 s37, s37, 4')
    I(f'v_add_u32 v{vFO}, s37, v{vFO}')
    I(f'v_lshlrev_b32 v{vFO}, 4, v{vFO}')
    I(f'v_lshl_add_u32 v{vFO}, v{T[1]}, 10, v{vFO}')
    for d, n in ((8, 2048*1024), (24, WS_SIZE)):
        I(f's_mov_b32 s{d+2}, {n:#x}'); I(f's_mov_b32 s{d+3}, 0x00020000')
    I('s_lshr_b32 s40, s35, 1')
    I('s_lshl_b32 s40, s40, 15')
    I('s_lshl_b32 s41, s34, 12')
    I('s_add_u32 s41, s40, s41')
    SG_ = 2097152
    if X.get('pl'):
        pb_, SG_, sr_ = X['pl']
        I('s_lshr_b32 s42, s35, 2')
        I(f's_mul_i32 s42, s42, {sr_}')
        I('s_and_b32 s43, s41, 0xffff')
        I('s_add_u32 s42, s42, s43')
        I(f's_add_u32 s42, s42, {pb_:#x}')
    else:
        I(f's_add_u32 s42, s41, {WS_P:#x}')
    if X.get('rot'): I('s_lshl_b32 s55, s36, 23')
    pl = []
    for g in range(8):
        for f in range(2):
            r = P + 8*g + 4*f
            pl.append((f's_add_u32 s43, s55, {g*SG_:#x}\ns_and_b32 s43, s43, 0xffffff\ns_add_u32 s43, s43, s42' if X.get('rot') else f's_add_u32 s43, s42, {g*SG_:#x}') + f'\nbuffer_load_dwordx4 v[{r}:{r+3}], v{vFO}, s[24:27], s43 offen offset:{2048*f}')
    if X.get('half'):
        I('s_lshl_b32 s43, s36, 23')
        I('s_add_u32 s42, s42, s43')
        pl = pl[:8]
    I('s_waitcnt lgkmcnt(0)')
    st.first()
    if X.get('probe'):
        pr_ = X['probe']
        if pr_ == 3:
            I('s_lshl_b32 s42, s2, 16'); I('s_lshl_b32 s43, s34, 13'); I('s_add_u32 s42, s42, s43'); I(f's_add_u32 s42, s42, {WS_P:#x}')
            pl = [f's_add_u32 s43, s42, {4096*(i//4)}\nbuffer_load_dwordx4 v[{P+4*i}:{P+4*i+3}], v{vL16}, s[24:27], s43 offen offset:{1024*(i%4)}' for i in range(8)]
        if pr_ == 4:
            I('s_and_b32 s42, s2, 7'); I('s_lshl_b32 s42, s42, 3'); I('s_lshr_b32 s43, s2, 5'); I('s_add_u32 s42, s42, s43'); I('s_lshl_b32 s42, s42, 15')
            I('s_bfe_u32 s43, s2, 0x20003'); I('s_lshl_b32 s43, s43, 22'); I('s_add_u32 s42, s42, s43')
            I('s_lshl_b32 s43, s34, 12'); I('s_add_u32 s42, s42, s43'); I(f's_add_u32 s42, s42, {WS_P:#x}')
            pl = [f's_add_u32 s43, s42, {2097152*(i//4)}\nbuffer_load_dwordx4 v[{P+4*i}:{P+4*i+3}], v{vL16}, s[24:27], s43 offen offset:{1024*(i%4)}' for i in range(8)]
        for s in pl: I(s)
        st()
        I('s_waitcnt vmcnt(0)')
        st()
        st.flush(24, 34, 100, vLANE)
        I('s_endpgm')
    X0 = X
    def body(X, pl):
        inj['q'] = []; inj['n'] = 0; inj['step'] = X.get('step', 6)
        NP0 = X.get('np0', 2); NA0 = X.get('na0', 28)
        M2 = X.get('m2', 0)
        MPR = 32
        if M2:
            I(f'v_lshrrev_b32 v{U}, 4, v{vLANE}')
            I(f'v_lshlrev_b32 v{U+1}, 13, v{U}')
            I(f'v_lshl_add_u32 v{U+1}, v{T[0]}, 4, v{U+1}')
            I('s_lshl_b32 s44, s34, 8')
            I(f's_add_u32 s43, s44, {WS_M2P:#x}')
            I('s_cmp_eq_u32 s2, 0')
            I('s_cselect_b32 s55, 0, 0x10000000')
            for vec in range(4):
                for h in range(2):
                    r = MPR + 8*vec + 4*h
                    I(f's_add_u32 s48, s43, {32768*h + 4096*(vec >> 1)}')
                    if vec == 3: I('s_add_u32 s48, s48, s55')
                    I(f'buffer_load_dwordx4 v[{r}:{r+3}], v{U+1}, s[24:27], s48 offen offset:{2048*(vec & 1)}')
            I(f'v_lshl_add_u32 v{U}, v{T[0]}, 2, v{U}')
            I(f'v_lshlrev_b32 v{U}, 2, v{U}')
            I('s_lshl_b32 s48, s34, 11')
            I(f'v_add_u32 v{U+1}, s48, v{U}')
        for s in pl[:NP0]: I(s)
        I(f'v_lshlrev_b32 v{T[3]}, 10, v{T[0]}')
        I(f'v_lshl_add_u32 v{T[3]}, v{T[1]}, 5, v{T[3]}')
        I(f'v_lshl_add_u32 v{T[3]}, v{T[2]}, 4, v{T[3]}')
        I('s_lshl_b32 s43, s35, 14')
        I('s_lshl_b32 s44, s34, 7')
        I('s_add_u32 s43, s43, s44')
        for f in range(2):
            if X.get('nox'): continue
            I(f'buffer_load_dwordx4 v[{XR+4*f}:{XR+4*f+3}], v{T[3]}, s[8:11], s43 offen offset:{64*f}')
        I(f'v_lshlrev_b32 v{T[4]}, 6, v{T[1]}')
        I(f'v_lshl_add_u32 v{T[4]}, v{T[2]}, 5, v{T[4]}')
        I('s_lshl_b32 s44, s34, 8')
        I(f's_add_u32 s44, s44, {WS_MOD:#x}')
        def modloads(lst):
            L = []
            for vec, base in lst:
                for f in range(2):
                    for h2 in range(2):
                        r = base + 8*f + 4*h2
                        L.append(f's_add_u32 s43, s44, {2048*vec}\nbuffer_load_dwordx4 v[{r}:{r+3}], v{T[4]}, s[24:27], s43 offen offset:{128*f + 16*h2}')
            return L
        if M2:
            I('s_lshl_b32 s48, s34, 11')
            I(f'v_add_u32 v{T[4]}, s48, v{T[4]}')
            def modloads(lst):
                return [f'ds_read_b128 v[{base+8*f+4*h2}:{base+8*f+4*h2+3}], v{T[4]} offset:{256*vec + 128*f + 16*h2}' for vec, base in lst for f in range(2) for h2 in range(2)]
            def modfin():
                R_ = [MPR + 8*vec for vec in range(4)]
                for r in R_:
                    I(f'v_pk_add_f32 v[{r}:{r+1}], v[{r}:{r+1}], v[{r+4}:{r+5}]')
                    I(f'v_pk_add_f32 v[{r+2}:{r+3}], v[{r+2}:{r+3}], v[{r+6}:{r+7}]')
                for r in R_:
                    I(f'v_permlane32_swap_b32 v{r}, v{r+2}'); I(f'v_permlane32_swap_b32 v{r+1}, v{r+3}')
                for r in R_: I(f'v_pk_add_f32 v[{r}:{r+1}], v[{r}:{r+1}], v[{r+2}:{r+3}]')
                for r in R_: I(f'v_permlane16_swap_b32 v{r}, v{r+1}')
                for r in R_: I(f'v_add_f32 v{r}, v{r}, v{r+1}')
                for r in R_: I(f'v_cvt_pk_bf16_f32 v{r}, 0, v{r}')
                I(f'v_add_f32 v{R_[2]}, 1.0, v{R_[2]}')
                I(f'ds_write_b32 v{U+1}, v{R_[0]}')
                I(f'v_cvt_pk_bf16_f32 v{R_[2]}, 0, v{R_[2]}')
                I(f'ds_write_b32 v{U+1}, v{R_[1]} offset:256')
                I(f'ds_write_b32 v{U+1}, v{R_[2]} offset:512')
                I(f's_add_u32 s48, s44, s55')
                I(f's_add_u32 s48, s48, 6144')
                I(f'buffer_store_dword v{R_[3]}, v{U}, s[24:27], s48 offen sc0 sc1')
                for s in modloads([(0, GA)]): I(s)
        elif X.get('ml'):
            I(f'v_lshrrev_b32 v{U}, 4, v{vLANE}')
            I(f'v_lshlrev_b32 v{U}, 11, v{U}')
            I(f'v_lshl_add_u32 v{U}, v{T[0]}, 4, v{U}')
            I('s_lshl_b32 s48, s34, 8')
            I(f'v_add_u32 v{U}, s48, v{U}')
            I('s_lshl_b32 s45, s36, 3')
            I('s_add_u32 s45, s45, s34')
            I('s_lshl_b32 s48, s45, 7')
            I(f's_add_u32 s48, s48, {WS_CS1 - WS_MOD:#x}')
            I(f'v_and_b32 v{U+1}, 7, v{vLANE}')
            I(f'v_lshl_add_u32 v{U+1}, v{U+1}, 4, s48')
            I(f'v_cmp_gt_u32 vcc, 48, v{vLANE}')
            I(f'v_cndmask_b32 v{U}, v{U+1}, v{U}, vcc')
            I('s_lshl_b32 s48, s34, 11')
            I('s_mov_b32 m0, s48')
            I(f's_mov_b32 s43, {WS_MOD:#x}')
            I(f'buffer_load_dwordx4 v{U}, s[24:27], s43 offen lds ; W:ML')
            I(f'v_add_u32 v{T[4]}, s48, v{T[4]}')
            def modloads(lst):
                return [f'ds_read_b128 v[{base+8*f+4*h2}:{base+8*f+4*h2+3}], v{T[4]} offset:{256*vec + 128*f + 16*h2} ; R:ML' for vec, base in lst for f in range(2) for h2 in range(2)]
            def modfin():
                for s in modloads([(0, GA)]): I(s)
        else:
            for s in modloads([(0, GA)]): I(s)
        I('s_lshl_b32 s45, s36, 3')
        I('s_add_u32 s45, s45, s34')
        I('s_lshl_b32 s46, s45, 15')
        I(f's_add_u32 s46, s46, {WS_W1P:#x}')
        aloads = []
        for ks in range(16):
            for Tt in range(2):
                idx = 2*ks + Tt
                aloads.append(f's_add_u32 s47, s46, {Tt*16384 + (ks//4)*4096}\nbuffer_load_dwordx4 a[{4*idx}:{4*idx+3}], v{vL16}, s[24:27], s47 offen offset:{1024*(ks%4)}')
        SPR = X.get('spr', 0)
        if SPR:
            for Tt in range(2):
                for k4 in range(4): I(f's_add_u32 s{56+4*Tt+k4}, s46, {Tt*16384 + k4*4096}')
            aloads = [f'buffer_load_dwordx4 a[{4*(2*ks+Tt)}:{4*(2*ks+Tt)+3}], v{vL16}, s[24:27], s{56+4*Tt+ks//4} offen offset:{1024*(ks%4)}' for ks in range(16) for Tt in range(2)]
        if X.get('afirst'):
            for s in aloads[:NA0]: I(s)
            for s in pl[NP0:]: I(s)
        else:
            lrest = merge(pl[NP0:], aloads[:NA0])
            MPOS = X.get('mpos', 100)
            for s in lrest[:MPOS]: I(s)
        ident_frags(a, vLANE, A0, A1, T[5], T[6], T[7])
        if M2 or X.get('ml'): modfin()
        if not X.get('afirst'):
            for s in lrest[MPOS:]: I(s)
        I('s_mov_b32 s52, 0xffff0000')
        I('s_mov_b32 s53, 0x3f803f80')
        NA1 = X.get('na1', 32)
        for s in aloads[NA0:NA1]: I(s)
        st()
        if X.get('probe2'):
            I('s_waitcnt vmcnt(0)')
            st()
            if X['probe2'] == 1:
                st.flush(24, 34, 100, vLANE)
                I('s_endpgm')
        red = []
        first = True
        for g in range(8):
            for f in range(2):
                r = P + 8*g + 4*f
                A = A0 if f == 0 else A1
                cc = '0' if first else f'v[{D}:{D+15}]'
                red.append(f'v_mfma_f32_32x32x16_bf16 v[{D}:{D+15}], v[{A}:{A+3}], v[{r}:{r+3}], {cc}')
                first = False
        for s in red: I(s)
        if X.get('probe2'): st()
        x1o = []
        for e in range(0, 16, 2):
            r = D + e; u = U + 2*((e//2) % 2); xr = XR + e//2
            x1o.append(f'v_lshlrev_b32 v{u}, 16, v{xr}')
            x1o.append(f'v_and_b32 v{u+1}, s52, v{xr}')
            x1o.append(f'v_pk_fma_f32 v[{r}:{r+1}], v[{r}:{r+1}], v[{GA+e}:{GA+e+1}], v[{u}:{u+1}]')
            x1o.append(f'v_cvt_pk_bf16_f32 v{xr}, v{r}, v{r+1}')
            x1o.append(f'v_lshlrev_b32 v{r}, 16, v{xr}')
            x1o.append(f'v_and_b32 v{r+1}, s52, v{xr}')
        I('s_nop 7')
        CS = A0 if X.get('cse', 1) else D + 8
        csl = [f'v_lshrrev_b32 v{T[1]}, 4, v{vLANE}\nv_lshlrev_b32 v{T[1]}, 5, v{T[1]}\ns_lshl_b32 s48, s45, 7\ns_add_u32 s48, s48, {WS_CS1:#x}']
        for h2 in range(2):
            csl.append(f'buffer_load_dwordx4 v[{CS+4*h2}:{CS+4*h2+3}], v{T[1]}, s[24:27], s48 offen offset:{16*h2}')
        if X.get('ml'):
            csl = [f'v_lshrrev_b32 v{T[1]}, 4, v{vLANE}\ns_lshl_b32 s48, s34, 11\nv_lshl_add_u32 v{T[1]}, v{T[1]}, 5, s48'] + \
                  [f'ds_read_b128 v[{CS+4*h2}:{CS+4*h2+3}], v{T[1]} offset:{768 + 16*h2} ; R:ML' for h2 in range(2)]
        if SPR:
            nx = X.get('nx', 24)
            for s in merge(x1o[:nx], modloads([(2, TB), (1, SB)]) + (csl if X.get('cse', 1) else [])): I(s)
            inj['q'] = list(aloads[NA1:])
            for s in x1o[nx:]: I(s)
        else:
            for s in merge(x1o, modloads([(2, TB), (1, SB)]) + (csl if X.get('cse', 1) else []) + aloads[NA1:]): I(s)
        st()
        def stats_local(mean, var):
            I(f'v_mov_b32 v{mean}, 0'); I(f'v_mov_b32 v{var}, 0'); I(f'v_mov_b32 v{T[6]}, 0'); I(f'v_mov_b32 v{T[7]}, 0')
            for j in range(0, 8, 2):
                I(f'v_dot2_f32_bf16 v{mean}, v{XR+j}, s53, v{mean}')
                I(f'v_dot2_f32_bf16 v{var}, v{XR+j}, v{XR+j}, v{var}')
                I(f'v_dot2_f32_bf16 v{T[6]}, v{XR+j+1}, s53, v{T[6]}')
                I(f'v_dot2_f32_bf16 v{T[7]}, v{XR+j+1}, v{XR+j+1}, v{T[7]}')
            I('s_nop 2')
            I(f'v_add_f32 v{mean}, v{mean}, v{T[6]}')
            I(f'v_add_f32 v{var}, v{var}, v{T[7]}')
            for op in ('v_permlane16_swap_b32', 'v_permlane32_swap_b32'):
                I(f'v_mov_b32 v{T[6]}, v{mean}'); I(f'v_mov_b32 v{T[7]}, v{var}')
                I(f'{op} v{mean}, v{T[6]}'); I(f'{op} v{var}, v{T[7]}')
                I(f'v_add_f32 v{mean}, v{mean}, v{T[6]}'); I(f'v_add_f32 v{var}, v{var}, v{T[7]}')
        def stats_write(area, mean, var):
            I(f'v_lshlrev_b32 v{T[5]}, 3, v{T[0]}')
            I('s_lshl_b32 s48, s34, 7')
            I(f's_add_u32 s48, s48, {area}')
            I(f'v_add_u32 v{T[6]}, s48, v{T[5]}')
            I(f'ds_write_b64 v{T[6]}, v[{mean}:{var}]')
        def stats_read(area, mean, var, R):
            for w in range(8):
                I(f'ds_read_b64 v[{R+2*w}:{R+2*w+1}], v{T[5]} offset:{area + 128*w}')
            for stp in (4, 2, 1):
                for w in range(stp):
                    I(f'v_pk_add_f32 v[{R+2*w}:{R+2*w+1}], v[{R+2*w}:{R+2*w+1}], v[{R+2*(w+stp)}:{R+2*(w+stp)+1}]')
            I(f'v_mul_f32 v{mean}, {f32bits(1.0/512):#x}, v{R}')
            I(f'v_mul_f32 v{var}, {f32bits(1.0/512):#x}, v{R+1}')
            I(f'v_fma_f32 v{var}, -v{mean}, v{mean}, v{var}')
            I(f'v_max_f32 v{var}, 0, v{var}')
            ln_rstd(aw, var, mean)
        M, V = T[2], T[3]
        stats_local(M, V)
        stats_write(L_S2, M, V)
        I('s_lshr_b32 s47, s34, 2')
        I('s_cmp_eq_u32 s47, s36')
        I('s_cselect_b32 s54, 0, 0x10000000')
        I(f's_add_u32 s43, s41, {WS_X1:#x}')
        I('s_add_u32 s43, s43, s54')
        for f in range(2):
            I(f'buffer_store_dwordx4 v[{XR+4*f}:{XR+4*f+3}], v{vFO}, s[24:27], s43 offen offset:{2048*f}')
        if X.get('pf3', 0):
            I(f's_mov_b32 s58, {512*3584}'); I('s_mov_b32 s59, 0x00020000')
            I(f'v_and_b32 v{U}, 31, v{vLANE}')
            I(f'v_min_u32 v{U}, 13, v{U}')
            I(f'v_lshlrev_b32 v{U}, 7, v{U}')
            I(f'v_lshrrev_b32 v{U+1}, 5, v{vLANE}')
            I(f'v_mad_u32_u24 v{U}, v{U+1}, s58, v{U}') if False else I(f'v_mul_u32_u24 v{U+1}, 3584, v{U+1}')
            I(f'v_add_u32 v{U}, v{U}, v{U+1}')
            I('s_lshr_b32 s64, s2, 3'); I('s_lshl_b32 s64, s64, 3'); I('s_add_u32 s64, s64, s34'); I(f's_mul_i32 s64, s64, {2*3584}')
            I('s_and_b32 s65, s2, 1'); I('s_mul_i32 s65, s65, 1792'); I('s_add_u32 s64, s64, s65')
            I(f'buffer_load_dword v0, v{U}, s[56:59], s64 offen')
        if X.get('pf4', 0):
            I(f's_mov_b32 s62, {1792*1024}'); I('s_mov_b32 s63, 0x00020000')
            I(f'v_min_u32 v{U+2}, 55, v{vLANE}')
            I(f'v_lshlrev_b32 v{U+2}, 7, v{U+2}')
            I('s_lshr_b32 s64, s2, 3'); I('s_lshl_b32 s64, s64, 3'); I('s_add_u32 s64, s64, s34'); I(f's_mul_i32 s64, s64, 7168')
            I(f'buffer_load_dword v4, v{U+2}, s[60:63], s64 offen')
        if X.get('bulk'):
            q_ = inj['q']; inj['q'] = []
            nb_ = X['bulk']
            if X.get('pr'): I('s_setprio 0')
            for s in q_[:nb_]: I(s)
            if X.get('pr'): I('s_setprio 3')
            I('s_waitcnt lgkmcnt(0)')
            I('s_barrier')
            inj['step'] = X.get('step2', inj['step'])
            inj['q'] = q_[nb_:]
        else:
            I('s_waitcnt lgkmcnt(0)')
            I('s_barrier')
        stats_read(L_S2, M, V, GA)
        st()
        I(f'v_sub_f32 v{U}, 0, v{M}'); I(f'v_sub_f32 v{U+1}, 0, v{M}')
        I(f'v_mov_b32 v{U+2}, v{V}'); I(f'v_mov_b32 v{U+3}, v{V}')
        for e in range(0, 16, 2):
            r = D + e
            I(f'v_pk_add_f32 v[{r}:{r+1}], v[{r}:{r+1}], v[{U}:{U+1}]')
            I(f'v_pk_mul_f32 v[{TB+e}:{TB+e+1}], v[{TB+e}:{TB+e+1}], v[{U+2}:{U+3}]')
            I(f'v_pk_fma_f32 v[{r}:{r+1}], v[{r}:{r+1}], v[{TB+e}:{TB+e+1}], v[{SB+e}:{SB+e+1}]')
            I(f'v_cvt_pk_bf16_f32 v{XR+e//2}, v{r}, v{r+1}')
        I('s_lshl_b32 s48, s34, 11')
        I(f'v_add_u32 v{T[4]}, s48, v{vL16}')
        for f in range(2):
            I(f'ds_write_b128 v{T[4]}, v[{XR+4*f}:{XR+4*f+3}] offset:{L_HB + 1024*f}')
        stats_local(M, V)
        stats_write(L_S3, M, V)
        I(f's_add_u32 s43, s41, {WS_HB:#x}')
        I('s_add_u32 s43, s43, s54')
        for f in range(2):
            I(f'buffer_store_dwordx4 v[{XR+4*f}:{XR+4*f+3}], v{vFO}, s[24:27], s43 offen offset:{2048*f}')
        I(f'v_lshrrev_b32 v{T[4]}, 4, v{vLANE}')
        if not X.get('cse', 1):
            for s in csl: I(s)
        I('s_waitcnt lgkmcnt(0)')
        I('s_barrier')
        st()
        rest_ = inj['q']; inj['q'] = []
        print("K2 leftover A loads", len(rest_))
        for s in rest_: I(s)
        BF = P
        ACC = D
        mfs = []
        for ks in range(16):
            for Tt in range(2):
                idx = 2*ks + Tt
                b = ACC + 4*Tt
                cc = '0' if ks == 0 else f'v[{b}:{b+3}]'
                mfs.append(f'v_mfma_f32_16x16x32_bf16 v[{b}:{b+3}], a[{4*idx}:{4*idx+3}], v[{BF+4*ks}:{BF+4*ks+3}], {cc}')
        if X.get('g2', 1):
            R = GA
            for ks in range(8):
                I(f'ds_read_b128 v[{BF+4*ks}:{BF+4*ks+3}], v{vL16} offset:{L_HB + 1024*ks}')
            rd2 = [f'ds_read_b128 v[{BF+4*ks}:{BF+4*ks+3}], v{vL16} offset:{L_HB + 1024*ks}' for ks in range(8, 16)]
            rd2 += [f'ds_read_b64 v[{R+2*w}:{R+2*w+1}], v{T[5]} offset:{L_S3 + 128*w}' for w in range(8)]
            sm = []
            for stp in (4, 2, 1):
                for w in range(stp):
                    sm.append(f'v_add_f32 v{R+2*w}, v{R+2*w}, v{R+2*(w+stp)}')
                    sm.append(f'v_add_f32 v{R+2*w+1}, v{R+2*w+1}, v{R+2*(w+stp)+1}')
            sm += [f'v_mul_f32 v{M}, {f32bits(1.0/512):#x}, v{R}', f'v_mul_f32 v{V}, {f32bits(1.0/512):#x}, v{R+1}', f'v_fma_f32 v{V}, -v{M}, v{M}, v{V}', f'v_max_f32 v{V}, 0, v{V}',
                   f'v_cvt_pk_bf16_f32 v{M}, 0, v{M}', f'v_cvt_pk_bf16_f32 v{V}, 0, v{V}', f'v_add_f32 v{V}, {f32bits(1e-5):#x}, v{V}', f'v_cvt_pk_bf16_f32 v{V}, 0, v{V}',
                   f'v_sqrt_f32 v{V}, v{V}', f'v_cvt_pk_bf16_f32 v{V}, 0, v{V}', f'v_rcp_f32 v{V}, v{V}']
            for s in merge(mfs[:12], rd2): I(s)
            for s in merge(mfs[12:], sm): I(s)
        else:
            for ks in range(16):
                I(f'ds_read_b128 v[{BF+4*ks}:{BF+4*ks+3}], v{vL16} offset:{L_HB + 1024*ks}')
            stats_read(L_S3, M, V, GA)
            for s in mfs: I(s)
        st()
        c0 = -2.0 * (2.0/3.141592653589793) ** 0.5 * LOG2E
        I(f's_mov_b32 s50, {f32bits(c0*0.044715):#x}')
        I(f'v_mov_b32 v{T[7]}, {f32bits(c0):#x}')
        ep = []
        for e in range(8):
            r = ACC + e
            L = [f'v_fma_f32 v{r}, -v{M}, v{CS+e}, v{r}', f'v_mul_f32 v{r}, v{r}, v{V}']
            L += gelu_ops(r, GA + e, 'v%d' % T[7], 's50')
            ep.append(L)
        for j in range(len(ep[0])):
            for L in ep: I(L[j])
        for j in range(4):
            I(f'v_cvt_pk_bf16_f32 v{XR+j}, v{ACC+2*j}, v{ACC+2*j+1}')
        I(f'v_and_b32 v{T[1]}, 1, v{T[4]}')
        I(f'v_lshl_add_u32 v{T[1]}, v{T[1]}, 5, v{T[0]}')
        I(f'v_add_u32 v{T[1]}, s37, v{T[1]}')
        I(f'v_lshlrev_b32 v{T[1]}, 4, v{T[1]}')
        I(f'v_lshrrev_b32 v{T[5]}, 1, v{T[4]}')
        I(f'v_lshl_add_u32 v{T[1]}, v{T[5]}, 10, v{T[1]}')
        I('s_lshl_b32 s48, s45, 11')
        I('s_add_u32 s48, s48, s40')
        I(f's_add_u32 s48, s48, {WS_T:#x}')
        I(f'buffer_store_dwordx4 v[{XR}:{XR+3}], v{T[1]}, s[24:27], s48 offen')
        st.flush(24, 34, 100, vLANE)
        I('s_endpgm')
    import copy
    if X0.get('pr'): I('s_setprio 3')
    I('s_cmp_ge_u32 s34, 4')
    I('s_cbranch_scc1 K2_B')
    sn = st.n
    body(dict(X0, **X0.get('A', {})), pl)
    a.raw('K2_B:')
    a.vm_q = []; a.lds_q = []; a.hist = []
    st.n = sn
    body(dict(X0, **X0.get('B', {})), pl)
    a.label('K2_end')
    I('s_endpgm')
    print("K2 instrs", a.ninstr, "nops", a.nnop)
    return a.text(), kernel_desc(name, 256, 96, accum=128)
```

```python
import sys
from common import *
from k0 import gen_k0
from k1 import gen_k1
from k0n import gen_k0n, set_c3
from k1n import gen_k1n
from k1p import gen_k1p
import k1p_max
from ka import gen_ka
from k2 import gen_k2
from k2n import gen_k2n
from k2c import gen_k2c, LDS2C
from k3 import gen_k3
from k3n import gen_k3n
from k3m import gen_k3m, LDS3M
from k23 import gen_k23, NWG23
from k4 import gen_k4
from k4h import gen_k4h, LDS4
from k4l import gen_k4l
import k4l
from k5 import gen_k5
from k5m import gen_k5m
X2DEF = {'spr':1,'na0':0,'na1':0,'pr':1,'ml':1,'nx':4,'step':9,'A':{'bulk':24,'step':1000,'step2':8},'B':{'mpos':8}}
def build(path, upto=6, stamps=False, emu=True, t0=False, t1=2, la5=2, merged=False, cpf=False, nt0=2, f23=False, sc=('k0','k1','k2','k3','k4','k5'), **kw):
    hdr = open('cdna_kernels/' + NAME + '.s.ref').read().split('; Override launch')[0]
    ks = []
    C3 = kw.get('c3', 1)
    NB_K0 = set_c3(C3)
    if kw.get('pl'):
        kw['X'] = dict(kw.get('X', {}) or {}, pl=kw['pl']); kw['X2'] = dict(kw.get('X2', {}), pl=kw['pl'])
    if kw.get('vtr', 0):
        kw['X'] = dict(kw.get('X', {}) or {}, vtr=1); kw['skipj'] = ('vp',)
    if kw.get('fold', 1): NB_K0 -= 64
    if C3:
        kw['X'] = dict(kw.get('X', {}) or {}, c3=C3); kw['X4'] = dict(kw.get('X4', {}), c3=1)
    if C3 == 2: kw['X2'] = dict(kw.get('X2', {}), m2=1)
    ks.append(('k0_kernel', (496,1,1), 512, 32768, lambda n: gen_k0(n, stamps, touch=t0, cpf=cpf)))
    ks.append(('k1_kernel', (256,1,1), 512, 163840, lambda n: gen_k1(n, stamps, emu=emu, touch=t1, X=kw.get('X', ()))))
    ks.append(('k2_kernel', (256,1,1), 512, 18432, lambda n: (gen_k2n(n, stamps, X=dict(X2DEF, **kw.get('X2', {}))) if kw.get('k2n', 1) else gen_k2(n, stamps, X=kw.get('X2', {})))))
    ks.append(('k3_kernel', (256,1,1), 256, 65536, lambda n: (gen_k3n if kw.get('k3n', True) else gen_k3)(n, stamps, X=kw.get('X3', {}))))
    ks.append(('k4_kernel', (224,1,1), 512, 131584, lambda n: gen_k4(n, stamps, nt0=nt0, direct=f23, X=kw.get('X4', {}))))
    ks.append(('k5_kernel', (256,1,1), 512, 163840, lambda n: (gen_k5m if kw.get('k5m', 1) else gen_k5)(n, stamps, LA=la5, X=kw.get('X5', {}))))
    if kw.get('new', True):
        ks[0] = ('k0_kernel', (NB_K0+kw.get('xpf',0),1,1), 512, 32768, lambda n: gen_k0n(n, stamps, lite=kw.get('lite', 0), xpf=kw.get('xpf',0), qrows=kw.get('qrows',512), perm=kw.get('perm',0), skipj=kw.get('skipj',()), fold=kw.get('fold',1), w1n=kw.get('k2c',0)))
        ks[1] = ('k1_kernel', (256,1,1), 512, 163840, lambda n: (k1p_max.gen_k1p if kw.get('oldmax') else gen_k1p)(n, stamps, X=kw.get('X', ()), offs=kw.get('offs', 106.0)))
    if kw.get('k2c', 0):
        ks[2] = ('k2_kernel', (256,1,1), 512, LDS2C, lambda n: gen_k2c(n, stamps, X=kw.get('X2', {})))
    if kw.get('k3m', 0):
        ks[3] = ('k3_kernel', (256,1,1), 512, LDS3M, lambda n: gen_k3m(n, stamps, X=kw.get('X3', {})))
    if kw.get('k4h', True):
        ks[4] = ('k4_kernel', (224,1,1), 512, (k4l.LDS4 if kw.get('X4', {}).get('flag') else LDS4), lambda n: (gen_k4h if kw.get('k4h', True) == 'h' else gen_k4l)(n, stamps, X=kw.get('X4', {})))
    if f23:
        ks = ks[:2] + [('k23_kernel', (NWG23,1,1), 512, 151552, lambda n: gen_k23(n, stamps))] + ks[4:]
    if merged:
        ks = [('ka_kernel', (256,1,1), 512, 163840, lambda n: gen_ka(n, stamps))] + ks[2:]
    ks = ks[:upto]
    out = hdr
    for n, g, b, lds, f in ks:
        out += f'; @launch kernel={n} grid=({g[0]},{g[1]},{g[2]}) block=({b},1,1) lds={lds}\n'
    out += '.amdgcn_target "amdgcn-amd-amdhsa--gfx950"\n.text\n'
    descs = ''
    for n, g, b, lds, f in ks:
        FAKE16[0] = n.split('_')[0] in kw.get('fake16', ())
        t, d = f(n)
        FAKE16[0] = False
        if n.split('_')[0] in sc:
            t = '\n'.join((l + ' sc0 sc1' if 'buffer_store_dwordx4' in l and 'sc0' not in l else l) for l in t.split('\n'))
        out += t; descs += d
    out += 'CODE_END:\n    s_endpgm\n'
    out += '.section .rodata,"a"\n' + descs
    open(path, 'w').write(out)
if __name__ == '__main__':
    build(sys.argv[1] if len(sys.argv) > 1 else 'cur.s', stamps=(int(sys.argv[2]) if len(sys.argv) > 2 else 0))
```

```python
import re

TRANS = ('v_exp_f32','v_log_f32','v_rcp_f32','v_rsq_f32','v_sqrt_f32','v_sin_f32','v_cos_f32','v_rcp_iflag_f32')

def parse_regs(tok):
    tok = tok.strip()
    tok = tok.lstrip('-')
    m = re.fullmatch(r'abs\((.*)\)', tok)
    if m: tok = m.group(1)
    m = re.fullmatch(r'\|(.*)\|', tok)
    if m: tok = m.group(1)
    m = re.fullmatch(r'([vsa])\[(\d+):(\d+)\]', tok)
    if m:
        return [(m.group(1), i) for i in range(int(m.group(2)), int(m.group(3))+1)]
    m = re.fullmatch(r'([vsa])(\d+)', tok)
    if m:
        return [(m.group(1), int(m.group(2)))]
    if tok in ('vcc',): return [('x','vcc')]
    if tok in ('exec',): return [('x','exec')]
    if tok in ('m0',): return [('x','m0')]
    return []

def split_ops(s):
    ops = []; depth = 0; cur = ''
    for ch in s:
        if ch in '[(': depth += 1
        if ch in '])': depth -= 1
        if ch == ',' and depth == 0:
            ops.append(cur.strip()); cur = ''
        else:
            cur += ch
    if cur.strip(): ops.append(cur.strip())
    return ops

class Ins:
    __slots__ = ('text','mn','cls','reads','writes','srcC','passes','ws','isDPP','ldsdma','widestore','tagR','tagW')
    def __init__(self, text):
        self.text = text
        t = text.split(';')[0].strip()
        parts = t.split(None, 1)
        mn = parts[0]; self.mn = mn
        rest = parts[1] if len(parts) > 1 else ''
        ops = split_ops(rest)
        mods = ''
        if ops:
            last = ops[-1].split()
            if len(last) > 1:
                ops[-1] = last[0]; mods = ' '.join(last[1:])
        self.reads = []; self.writes = []; self.srcC = []; self.passes = 0; self.ws = 1
        self.isDPP = ('dpp' in mn) or ('row_' in mods) or ('quad_perm' in mods)
        self.ldsdma = False; self.widestore = False
        R = lambda i: parse_regs(ops[i]) if i < len(ops) else []
        if mn.startswith('v_mfma'):
            self.cls = 'mfma'
            self.writes = R(0); self.reads = R(1) + R(2) + R(3); self.srcC = R(3)
            self.passes = 8 if '32x32x16' in mn else 4
        elif mn.startswith('v_cmp'):
            self.cls = 'valu'; self.writes = R(0); self.reads = R(1) + R(2)
        elif mn.startswith('v_permlane') and 'swap' in mn:
            self.cls = 'valu'; self.writes = R(0) + R(1); self.reads = R(0) + R(1)
        elif mn in ('v_readfirstlane_b32','v_readlane_b32'):
            self.cls = 'valu'; self.writes = R(0); self.reads = R(1) + R(2)
        elif mn.startswith('v_add_co') or mn.startswith('v_sub_co') or mn.startswith('v_addc_co'):
            self.cls = 'valu'; self.writes = R(0) + R(1); self.reads = sum([R(i) for i in range(2, len(ops))], [])
        elif mn == 'v_nop':
            self.cls = 'valu'
        elif mn.startswith('v_'):
            self.cls = 'trans' if any(mn.startswith(x) for x in TRANS) else 'valu'
            self.writes = R(0); self.reads = sum([R(i) for i in range(1, len(ops))], [])
            if mn.startswith('v_fmac') or mn.startswith('v_dot2c') or mn.startswith('v_mac') or self.isDPP or mn.startswith('v_writelane'):
                self.reads += R(0)
            if mn.startswith('v_cndmask') and len(ops) == 3: self.reads += [('x','vcc')]
        elif mn.startswith('ds_read') or mn.startswith('ds_bpermute') or mn.startswith('ds_swizzle') or mn.startswith('ds_permute'):
            self.cls = 'dsr'; self.writes = R(0); self.reads = sum([R(i) for i in range(1, len(ops))], [])
        elif mn.startswith('ds_write') or mn.startswith('ds_add'):
            self.cls = 'dsw'; self.reads = sum([R(i) for i in range(len(ops))], [])
        elif mn.startswith('buffer_load') or mn.startswith('global_load'):
            if re.search(r'\blds\b', mods) or 'lds' in mn:
                self.cls = 'vmem_dma'; self.ldsdma = True
                self.reads = sum([R(i) for i in range(len(ops))], []) + [('x','m0')]
            else:
                self.cls = 'vmem_ld'; self.writes = R(0); self.reads = sum([R(i) for i in range(1, len(ops))], [])
        elif mn.startswith('buffer_store') or mn.startswith('global_store') or mn.startswith('buffer_atomic') or mn.startswith('global_atomic'):
            self.cls = 'vmem_st'; self.reads = sum([R(i) for i in range(len(ops))], [])
            self.widestore = ('x3' in mn or 'x4' in mn)
            if self.widestore:
                self.srcC = R(0) if mn.startswith('buffer') else R(1)
        elif mn.startswith('s_load') or mn.startswith('s_buffer_load'):
            self.cls = 'smem'; self.writes = R(0); self.reads = R(1)
        elif mn == 's_nop':
            self.cls = 'nop'; self.ws = int(ops[0], 0) + 1
        elif mn in ('s_waitcnt','s_barrier','s_setprio','s_endpgm','s_sleep') or mn.startswith('s_cbranch') or mn in ('s_branch', 's_call_b64', 's_setpc_b64'):
            self.cls = 'ctl'
        elif mn.startswith('s_cmp'):
            self.cls = 'salu'; self.reads = R(0) + R(1)
        elif mn.startswith('s_'):
            self.cls = 'salu'; self.writes = R(0); self.reads = sum([R(i) for i in range(1, len(ops))], [])
            if 'saveexec' in mn: self.writes += [('x','exec')]
        else:
            raise ValueError("unknown instr: " + text)
        self.tagR = []; self.tagW = []
        if ';' in text:
            for tok in text.split(';', 1)[1].split():
                if tok.startswith('R:'): self.tagR.append(('L', tok[2:]))
                elif tok.startswith('W:'): self.tagW.append(('L', tok[2:]))

FAKE16 = [False]
class Asm:
    def __init__(self):
        self.tog = {}
        self.vm_q2 = None; self.cls = None
        self.lg_extra = 0; self.lg_keep = 0
        self.out = []
        self.hist = []
        self.pos = 0
        self.lds_q = []
        self.vm_q = []
        self.nnop = 0
        self.ninstr = 0
    def raw(self, s):
        self.out.append(s)
    def label(self, name):
        self.out.append(name + ':')
        self.hist = [(p, self.pos) for (p, _) in self.hist]
        for attr in ('lds_q', 'vm_q'):
            q = getattr(self, attr)
            u = set()
            for d in q:
                if d: u |= d
            setattr(self, attr, [u] if u else [])
    def comment(self, s):
        self.out.append('    ; ' + s)
    def barrier_state(self):
        self._emit_nop(16)
    def _emit_nop(self, n):
        while n > 0:
            k = min(n, 16)
            self.out.append(f'    s_nop {k-1}')
            self.pos += k; n -= k; self.nnop += 1
    def _need(self, ins):
        need = 0
        rd = set(ins.reads); wr = set(ins.writes)
        for (p, pend) in reversed(self.hist):
            dist = self.pos - pend
            if dist >= 24: break
            pw = set(p.writes)
            req = 0
            isvalu = p.cls in ('valu','trans')
            if isvalu:
                vw = {r for r in pw if r[0] in 'va'}
                sw = {r for r in pw if r[0] == 's' or r == ('x','vcc')}
                if ins.cls == 'mfma' and vw & rd: req = max(req, 2)
                if ins.mn.startswith('v_permlane') and vw & rd: req = max(req, 2)
                if ins.mn in ('v_readfirstlane_b32','v_readlane_b32') and vw & rd: req = max(req, 1)
                if ins.isDPP and vw & rd: req = max(req, 2)
                if p.mn.startswith('v_dot') and vw & (rd | wr):
                    ops_ = split_ops(ins.text.split(';')[0].strip().split(None,1)[1]) if ' ' in ins.text.strip() else []
                    same_c = (ins.mn == p.mn and len(ops_) >= 4 and vw == set(parse_regs(ops_[3].split()[0])) and not (vw & set(parse_regs(ops_[1]) + parse_regs(ops_[2]))))
                    if not same_c: req = max(req, 3)
                if p.cls == 'trans' and ins.cls in ('valu','mfma','vmem_st','dsw','dsr','vmem_ld','vmem_dma') and vw & (rd|wr): req = max(req, 1)
                if sw & rd:
                    if ins.cls in ('valu','trans'): req = max(req, 2)
                    if ins.cls.startswith('vmem'): req = max(req, 5)
                    if ins.mn in ('v_readlane_b32','v_writelane_b32'): req = max(req, 4)
                    if ins.cls in ('salu',): req = max(req, 1)
            if p.cls == 'mfma':
                big = 12 if p.passes == 8 else 8
                ovl = 10 if p.passes == 8 else 6
                war = 7 if p.passes == 8 else 3
                if ins.cls == 'mfma':
                    a_b = set(ins.reads) - set(ins.srcC)
                    ab = set(parse_regs(split_ops(ins.text.split(None,1)[1])[1]) + parse_regs(split_ops(ins.text.split(None,1)[1])[2]))
                    if pw & ab: req = max(req, big)
                    c = set(ins.srcC)
                    if pw & c:
                        if c == pw and p.passes == ins.passes: pass
                        else: req = max(req, ovl)
                    elif pw & wr:
                        req = max(req, ovl)
                else:
                    if pw & (rd | wr): req = max(req, big)
                    if ins.cls in ('valu','trans','dsr','vmem_ld') and set(p.srcC) & wr: req = max(req, war)
            if p.cls == 'salu' and ('x','m0') in pw and ins.ldsdma: req = max(req, 1)
            if p.cls == 'vmem_st' and p.widestore and set(p.srcC) & wr:
                req = max(req, 2 if ins.cls in ('valu','trans','mfma') else 1)
            if req > dist: need = max(need, req - dist)
        return need
    def _autowait(self, ins):
        touched = set(ins.reads) | set(ins.writes)
        touched_l = touched | set(ins.tagW if ins.cls not in ('dsw',) else [])
        touched = touched | set(ins.tagR) | set(ins.tagW if ins.cls in ('dsw',) else [])
        k = None
        for i, d in enumerate(self.lds_q):
            if d and (d & touched_l): k = i
        lg = None; vm = None
        if k is not None:
            k = max(k, min(k + self.lg_extra, len(self.lds_q) - 1 - self.lg_keep))
            lg = len(self.lds_q) - 1 - k
            self.lds_q = self.lds_q[k+1:]
        if self.vm_q2 is not None:
            for ci, q in enumerate((self.vm_q, self.vm_q2)):
                if self.cls is not None and self.cls != ci: continue
                k = None
                for i, d in enumerate(q):
                    if d and (d & touched): k = i
                if k is not None:
                    n = len(q) - 1 - k
                    vm = n if vm is None else min(vm, n)
            if vm is not None:
                if self.cls in (None, 0): self.vm_q = self.vm_q[max(0, len(self.vm_q)-vm):] if vm else []
                if self.cls in (None, 1): self.vm_q2 = self.vm_q2[max(0, len(self.vm_q2)-vm):] if vm else []
        else:
            k = None
            for i, d in enumerate(self.vm_q):
                if d and (d & touched): k = i
            if k is not None:
                vm = len(self.vm_q) - 1 - k
                self.vm_q = self.vm_q[k+1:]
        if lg is not None or vm is not None:
            s = 's_waitcnt'
            if vm is not None: s += f' vmcnt({min(vm,63)})'
            if lg is not None: s += f' lgkmcnt({min(lg,15)})'
            self._put(Ins(s))
    def _put(self, ins):
        self.out.append('    ' + ins.text.split(';')[0].rstrip())
        self.pos += ins.ws
        self.hist.append((ins, self.pos))
        if len(self.hist) > 64: self.hist = self.hist[-48:]
        self.ninstr += 1
    def I(self, text):
        if '\n' in text:
            for t in text.split('\n'): self.I(t)
            return
        if FAKE16[0] and text.startswith('v_mfma_f32_32x32x16_bf16'):
            ops = split_ops(text.split(None, 1)[1])
            d = int(re.match(r'v\[(\d+):', ops[0]).group(1))
            if ops[3] == '0': self.tog[d] = 0
            t = self.tog[d]; self.tog[d] += 1
            for i in range(2):
                dd = d + 8*(t & 1) + 4*i
                cc = '0' if t < 2 else f'v[{dd}:{dd+3}]'
                self.I(f'v_mfma_f32_16x16x32_bf16 v[{dd}:{dd+3}], {ops[1]}, {ops[2]}, {cc}')
            return
        ins = Ins(text)
        if ins.mn == 's_waitcnt':
            m = re.search(r'vmcnt\((\d+)\)', text)
            if m:
                n = int(m.group(1));
                if len(self.vm_q) > n: self.vm_q = self.vm_q[len(self.vm_q)-n:] if n else []
                if self.vm_q2 is not None and len(self.vm_q2) > n: self.vm_q2 = self.vm_q2[len(self.vm_q2)-n:] if n else []
            m = re.search(r'lgkmcnt\((\d+)\)', text)
            if m:
                n = int(m.group(1))
                if len(self.lds_q) > n: self.lds_q = self.lds_q[len(self.lds_q)-n:] if n else []
            self._put(ins); return
        self._autowait(ins)
        n = self._need(ins)
        if n > 0: self._emit_nop(n)
        self._put(ins)
        if ins.cls == 'dsr': self.lds_q.append(set(ins.writes) | set(ins.tagR))
        elif ins.cls == 'dsw': self.lds_q.append(set(r for r in ins.reads if r[0]=='v') and None)
        elif ins.cls in ('vmem_ld', 'vmem_dma', 'vmem_st'):
            e = set(ins.writes) if ins.cls == 'vmem_ld' else (set(ins.tagW) or None)
            if self.vm_q2 is None or self.cls in (None, 0): self.vm_q.append(e)
            if self.vm_q2 is not None and self.cls in (None, 1): self.vm_q2.append(e)
    def wait_tags(self, tags, lg=False):
        k = None
        tt = {('L', t) for t in tags}
        for i, d in enumerate(self.vm_q):
            if d and (d & tt): k = i
        s = 's_waitcnt'
        if k is not None: s += f' vmcnt({min(len(self.vm_q) - 1 - k, 63)})'
        if lg: s += ' lgkmcnt(0)'
        if s != 's_waitcnt': self.I(s)
    def vm_outstanding(self):
        return len(self.vm_q)
    def text(self):
        return '\n'.join(self.out) + '\n'

def merge(*streams):
    streams = [s for s in streams if s]
    if not streams: return []
    total = max(len(s) for s in streams)
    idx = [0]*len(streams)
    out = []
    n = sum(len(s) for s in streams)
    while len(out) < n:
        best = None; bf = None
        for i, s in enumerate(streams):
            if idx[i] < len(s):
                f = (idx[i] + 0.5) / len(s)
                if bf is None or f < bf: bf = f; best = i
        out.append(streams[best][idx[best]]); idx[best] += 1
    return out
```

```python
from common import *
from k2 import *

def gen_k2n(name, stamps=False, X={}):
    a = Asm()
    st = Stamper(a, stamps, 2)
    kernel_header(a, name)
    inj = {'q': [], 'n': 0, 'step': X.get('step', 6)}
    def I(t):
        a.I(t)
        if inj['q']:
            inj['n'] += 1
            if inj['n'] % inj['step'] == 0: a.I(inj['q'].pop(0))
    class AW_:
        pass
    aw = AW_(); aw.I = I
    L_HB, L_S2, L_S3 = 0, 16384, 17408
    vLANE, vL16 = 1, 2
    vFO = 3
    A0, A1 = 4, 8
    T = [12,13,14,15,16,17,18,19]
    XR = 20
    U = 28
    GA = 32; D = 48; TB = 64; SB = 80
    P = 64
    AW = 160
    I('s_cmp_ge_u32 s2, 256')
    I('s_cbranch_scc1 K2_end')
    I(f's_load_dwordx2 s[24:25], s[0:1], {KA_WS}')
    I(f's_load_dwordx2 s[8:9], s[0:1], {KA_X}')
    if X.get('pf3') or X.get('pf4'):
        I(f's_load_dwordx2 s[56:57], s[0:1], {KA_W3}')
        I(f's_load_dwordx2 s[60:61], s[0:1], {KA_W4}')
    I(f'v_and_b32 v{vLANE}, 63, v0')
    I('v_lshrrev_b32 v3, 6, v0')
    I('s_nop 0')
    I('v_readfirstlane_b32 s34, v3')
    I('s_and_b32 s35, s2, 7')
    I('s_lshr_b32 s36, s2, 3')
    I('s_lshl_b32 s35, s35, 4')
    I('s_lshr_b32 s37, s36, 1')
    I('s_add_u32 s35, s35, s37')
    I('s_and_b32 s36, s36, 1')
    I(f'v_lshlrev_b32 v{vL16}, 4, v{vLANE}')
    I(f'v_and_b32 v{T[0]}, 15, v{vLANE}')
    I(f'v_bfe_u32 v{T[1]}, v{vLANE}, 4, 1')
    I(f'v_lshrrev_b32 v{T[2]}, 5, v{vLANE}')
    I(f'v_lshl_add_u32 v{vFO}, v{T[2]}, 5, v{T[0]}')
    I('s_and_b32 s37, s35, 1')
    I('s_lshl_b32 s37, s37, 4')
    I(f'v_add_u32 v{vFO}, s37, v{vFO}')
    I(f'v_lshlrev_b32 v{vFO}, 4, v{vFO}')
    I(f'v_lshl_add_u32 v{vFO}, v{T[1]}, 10, v{vFO}')
    for d, n in ((8, 2048*1024), (24, WS_SIZE)):
        I(f's_mov_b32 s{d+2}, {n:#x}'); I(f's_mov_b32 s{d+3}, 0x00020000')
    I('s_lshr_b32 s40, s35, 1')
    I('s_lshl_b32 s40, s40, 15')
    I('s_lshl_b32 s41, s34, 12')
    I('s_add_u32 s41, s40, s41')
    SG_ = 2097152
    if X.get('pl'):
        pb_, SG_, sr_ = X['pl']
        I('s_lshr_b32 s42, s35, 2')
        I(f's_mul_i32 s42, s42, {sr_}')
        I('s_and_b32 s43, s41, 0xffff')
        I('s_add_u32 s42, s42, s43')
        I(f's_add_u32 s42, s42, {pb_:#x}')
    else:
        I(f's_add_u32 s42, s41, {WS_P:#x}')
    if X.get('rot'): I('s_lshl_b32 s55, s36, 23')
    pl = []
    for g in range(8):
        for f in range(2):
            r = P + 8*g + 4*f
            pl.append((f's_add_u32 s43, s55, {g*SG_:#x}\ns_and_b32 s43, s43, 0xffffff\ns_add_u32 s43, s43, s42' if X.get('rot') else f's_add_u32 s43, s42, {g*SG_:#x}') + f'\nbuffer_load_dwordx4 v[{r}:{r+3}], v{vFO}, s[24:27], s43 offen offset:{2048*f}')
    if X.get('half'):
        I('s_lshl_b32 s43, s36, 23')
        I('s_add_u32 s42, s42, s43')
        pl = pl[:8]
    I('s_waitcnt lgkmcnt(0)')
    st.first()
    if X.get('probe'):
        pr_ = X['probe']
        if pr_ == 3:
            I('s_lshl_b32 s42, s2, 16'); I('s_lshl_b32 s43, s34, 13'); I('s_add_u32 s42, s42, s43'); I(f's_add_u32 s42, s42, {WS_P:#x}')
            pl = [f's_add_u32 s43, s42, {4096*(i//4)}\nbuffer_load_dwordx4 v[{P+4*i}:{P+4*i+3}], v{vL16}, s[24:27], s43 offen offset:{1024*(i%4)}' for i in range(8)]
        if pr_ == 4:
            I('s_and_b32 s42, s2, 7'); I('s_lshl_b32 s42, s42, 3'); I('s_lshr_b32 s43, s2, 5'); I('s_add_u32 s42, s42, s43'); I('s_lshl_b32 s42, s42, 15')
            I('s_bfe_u32 s43, s2, 0x20003'); I('s_lshl_b32 s43, s43, 22'); I('s_add_u32 s42, s42, s43')
            I('s_lshl_b32 s43, s34, 12'); I('s_add_u32 s42, s42, s43'); I(f's_add_u32 s42, s42, {WS_P:#x}')
            pl = [f's_add_u32 s43, s42, {2097152*(i//4)}\nbuffer_load_dwordx4 v[{P+4*i}:{P+4*i+3}], v{vL16}, s[24:27], s43 offen offset:{1024*(i%4)}' for i in range(8)]
        for s in pl: I(s)
        st()
        I('s_waitcnt vmcnt(0)')
        st()
        st.flush(24, 34, 100, vLANE)
        I('s_endpgm')
    X0 = X
    SP = X.get('sp')
    spn = [0, 0, 0]
    def cblk(pos, aloads):
        if not SP: return
        na, nb = SP.get(pos, (0, 0))
        if pos == 'end': na, nb = 32 - spn[0], 32 - spn[1]
        for ci, n in ((0, na), (1, nb)):
            if n <= 0: continue
            lab = f'K2_c{spn[2]}'; spn[2] += 1
            a.I('s_cbranch_vccnz ' + lab if False else ('s_cmp_ge_u32 s34, 4' if ci == 0 else 's_cmp_lt_u32 s34, 4'))
            a.I('s_cbranch_scc1 ' + lab)
            a.cls = ci
            p0_ = a.pos; h0_ = list(a.hist)
            if pos == 'b1' and ci == 0: a.I('s_setprio 0')
            for s_ in aloads[spn[ci]: spn[ci] + n]: a.I(s_)
            if pos == 'b1' and ci == 0: a.I('s_setprio 3')
            a.cls = None
            a.pos = p0_; a.hist = h0_
            spn[ci] += n
            a.raw(lab + ':')
    def body(X, pl):
        inj['q'] = []; inj['n'] = 0; inj['step'] = X.get('step', 6)
        NP0 = X.get('np0', 2); NA0 = X.get('na0', 28)
        M2 = X.get('m2', 0)
        MPR = 32
        if M2:
            I(f'v_lshrrev_b32 v{U}, 4, v{vLANE}')
            I(f'v_lshlrev_b32 v{U+1}, 13, v{U}')
            I(f'v_lshl_add_u32 v{U+1}, v{T[0]}, 4, v{U+1}')
            I('s_lshl_b32 s44, s34, 8')
            I(f's_add_u32 s43, s44, {WS_M2P:#x}')
            I('s_cmp_eq_u32 s2, 0')
            I('s_cselect_b32 s55, 0, 0x10000000')
            for vec in range(4):
                for h in range(2):
                    r = MPR + 8*vec + 4*h
                    I(f's_add_u32 s48, s43, {32768*h + 4096*(vec >> 1)}')
                    if vec == 3: I('s_add_u32 s48, s48, s55')
                    I(f'buffer_load_dwordx4 v[{r}:{r+3}], v{U+1}, s[24:27], s48 offen offset:{2048*(vec & 1)}')
            I(f'v_lshl_add_u32 v{U}, v{T[0]}, 2, v{U}')
            I(f'v_lshlrev_b32 v{U}, 2, v{U}')
            I('s_lshl_b32 s48, s34, 11')
            I(f'v_add_u32 v{U+1}, s48, v{U}')
        for s in pl[:NP0]: I(s)
        I(f'v_lshlrev_b32 v{T[3]}, 10, v{T[0]}')
        I(f'v_lshl_add_u32 v{T[3]}, v{T[1]}, 5, v{T[3]}')
        I(f'v_lshl_add_u32 v{T[3]}, v{T[2]}, 4, v{T[3]}')
        I('s_lshl_b32 s43, s35, 14')
        I('s_lshl_b32 s44, s34, 7')
        I('s_add_u32 s43, s43, s44')
        for f in range(2):
            if X.get('nox'): continue
            I(f'buffer_load_dwordx4 v[{XR+4*f}:{XR+4*f+3}], v{T[3]}, s[8:11], s43 offen offset:{64*f}')
        I(f'v_lshlrev_b32 v{T[4]}, 6, v{T[1]}')
        I(f'v_lshl_add_u32 v{T[4]}, v{T[2]}, 5, v{T[4]}')
        I('s_lshl_b32 s44, s34, 8')
        I(f's_add_u32 s44, s44, {WS_MOD:#x}')
        def modloads(lst):
            L = []
            for vec, base in lst:
                for f in range(2):
                    for h2 in range(2):
                        r = base + 8*f + 4*h2
                        L.append(f's_add_u32 s43, s44, {2048*vec}\nbuffer_load_dwordx4 v[{r}:{r+3}], v{T[4]}, s[24:27], s43 offen offset:{128*f + 16*h2}')
            return L
        if M2:
            I('s_lshl_b32 s48, s34, 11')
            I(f'v_add_u32 v{T[4]}, s48, v{T[4]}')
            def modloads(lst):
                return [f'ds_read_b128 v[{base+8*f+4*h2}:{base+8*f+4*h2+3}], v{T[4]} offset:{256*vec + 128*f + 16*h2}' for vec, base in lst for f in range(2) for h2 in range(2)]
            def modfin():
                R_ = [MPR + 8*vec for vec in range(4)]
                for r in R_:
                    I(f'v_pk_add_f32 v[{r}:{r+1}], v[{r}:{r+1}], v[{r+4}:{r+5}]')
                    I(f'v_pk_add_f32 v[{r+2}:{r+3}], v[{r+2}:{r+3}], v[{r+6}:{r+7}]')
                for r in R_:
                    I(f'v_permlane32_swap_b32 v{r}, v{r+2}'); I(f'v_permlane32_swap_b32 v{r+1}, v{r+3}')
                for r in R_: I(f'v_pk_add_f32 v[{r}:{r+1}], v[{r}:{r+1}], v[{r+2}:{r+3}]')
                for r in R_: I(f'v_permlane16_swap_b32 v{r}, v{r+1}')
                for r in R_: I(f'v_add_f32 v{r}, v{r}, v{r+1}')
                for r in R_: I(f'v_cvt_pk_bf16_f32 v{r}, 0, v{r}')
                I(f'v_add_f32 v{R_[2]}, 1.0, v{R_[2]}')
                I(f'ds_write_b32 v{U+1}, v{R_[0]}')
                I(f'v_cvt_pk_bf16_f32 v{R_[2]}, 0, v{R_[2]}')
                I(f'ds_write_b32 v{U+1}, v{R_[1]} offset:256')
                I(f'ds_write_b32 v{U+1}, v{R_[2]} offset:512')
                I(f's_add_u32 s48, s44, s55')
                I(f's_add_u32 s48, s48, 6144')
                I(f'buffer_store_dword v{R_[3]}, v{U}, s[24:27], s48 offen sc0 sc1')
                for s in modloads([(0, GA)]): I(s)
        elif X.get('ml'):
            I(f'v_lshrrev_b32 v{U}, 4, v{vLANE}')
            I(f'v_lshlrev_b32 v{U}, 11, v{U}')
            I(f'v_lshl_add_u32 v{U}, v{T[0]}, 4, v{U}')
            I('s_lshl_b32 s48, s34, 8')
            I(f'v_add_u32 v{U}, s48, v{U}')
            I('s_lshl_b32 s45, s36, 3')
            I('s_add_u32 s45, s45, s34')
            I('s_lshl_b32 s48, s45, 7')
            I(f's_add_u32 s48, s48, {WS_CS1 - WS_MOD:#x}')
            I(f'v_and_b32 v{U+1}, 7, v{vLANE}')
            I(f'v_lshl_add_u32 v{U+1}, v{U+1}, 4, s48')
            I(f'v_cmp_gt_u32 vcc, 48, v{vLANE}')
            I(f'v_cndmask_b32 v{U}, v{U+1}, v{U}, vcc')
            I('s_lshl_b32 s48, s34, 11')
            I('s_mov_b32 m0, s48')
            I(f's_mov_b32 s43, {WS_MOD:#x}')
            I(f'buffer_load_dwordx4 v{U}, s[24:27], s43 offen lds ; W:ML')
            I(f'v_add_u32 v{T[4]}, s48, v{T[4]}')
            def modloads(lst):
                return [f'ds_read_b128 v[{base+8*f+4*h2}:{base+8*f+4*h2+3}], v{T[4]} offset:{256*vec + 128*f + 16*h2} ; R:ML' for vec, base in lst for f in range(2) for h2 in range(2)]
            def modfin():
                for s in modloads([(0, GA)]): I(s)
        else:
            for s in modloads([(0, GA)]): I(s)
        I('s_lshl_b32 s45, s36, 3')
        I('s_add_u32 s45, s45, s34')
        I('s_lshl_b32 s46, s45, 15')
        I(f's_add_u32 s46, s46, {WS_W1P:#x}')
        aloads = []
        for ks in range(16):
            for Tt in range(2):
                idx = 2*ks + Tt
                aloads.append(f's_add_u32 s47, s46, {Tt*16384 + (ks//4)*4096}\nbuffer_load_dwordx4 a[{4*idx}:{4*idx+3}], v{vL16}, s[24:27], s47 offen offset:{1024*(ks%4)}')
        SPR = X.get('spr', 0)
        if SPR:
            for Tt in range(2):
                for k4 in range(4): I(f's_add_u32 s{56+4*Tt+k4}, s46, {Tt*16384 + k4*4096}')
            aloads = [f'buffer_load_dwordx4 a[{4*(2*ks+Tt)}:{4*(2*ks+Tt)+3}], v{vL16}, s[24:27], s{56+4*Tt+ks//4} offen offset:{1024*(ks%4)}' for ks in range(16) for Tt in range(2)]
        if X.get('afirst'):
            for s in aloads[:NA0]: I(s)
            for s in pl[NP0:]: I(s)
        else:
            lrest = merge(pl[NP0:], aloads[:NA0])
            if X.get('tw') is not None:
                tn_ = X.get('twn', 16)
                tw_ = [f'v_and_b32 v{U+2}, {tn_-1}, v{vLANE}\nv_lshlrev_b32 v{U+2}, 7, v{U+2}\ns_lshr_b32 s48, s2, 3\ns_lshl_b32 s48, s48, 14\ns_mul_i32 s49, s34, {tn_*128}\ns_add_u32 s48, s48, s49\n'
                       f's_add_u32 s48, s48, {WS_W1P:#x}\nbuffer_load_dword v{U+2}, v{U+2}, s[24:27], s48 offen']
                lrest = lrest[:X['tw']] + tw_ + lrest[X['tw']:]
            MPOS = X.get('mpos', 100)
            for s in lrest[:MPOS]: I(s)
        ident_frags(a, vLANE, A0, A1, T[5], T[6], T[7])
        if M2 or X.get('ml'): modfin()
        if not X.get('afirst'):
            for s in lrest[MPOS:]: I(s)
        I('s_mov_b32 s52, 0xffff0000')
        I('s_mov_b32 s53, 0x3f803f80')
        NA1 = X.get('na1', 32)
        for s in aloads[NA0:NA1]: I(s)
        st()
        if X.get('probe2'):
            I('s_waitcnt vmcnt(0)')
            st()
            if X['probe2'] == 1:
                st.flush(24, 34, 100, vLANE)
                I('s_endpgm')
        red = []
        first = True
        for g in range(8):
            for f in range(2):
                r = P + 8*g + 4*f
                A = A0 if f == 0 else A1
                cc = '0' if first else f'v[{D}:{D+15}]'
                red.append(f'v_mfma_f32_32x32x16_bf16 v[{D}:{D+15}], v[{A}:{A+3}], v[{r}:{r+3}], {cc}')
                first = False
        for s in red: I(s)
        if X.get('probe2'): st()
        x1o = []
        for e in range(0, 16, 2):
            r = D + e; u = U + 2*((e//2) % 2); xr = XR + e//2
            x1o.append(f'v_lshlrev_b32 v{u}, 16, v{xr}')
            x1o.append(f'v_and_b32 v{u+1}, s52, v{xr}')
            x1o.append(f'v_pk_fma_f32 v[{r}:{r+1}], v[{r}:{r+1}], v[{GA+e}:{GA+e+1}], v[{u}:{u+1}]')
            x1o.append(f'v_cvt_pk_bf16_f32 v{xr}, v{r}, v{r+1}')
            x1o.append(f'v_lshlrev_b32 v{r}, 16, v{xr}')
            x1o.append(f'v_and_b32 v{r+1}, s52, v{xr}')
        I('s_nop 7')
        CS = A0 if X.get('cse', 1) else D + 8
        csl = [f'v_lshrrev_b32 v{T[1]}, 4, v{vLANE}\nv_lshlrev_b32 v{T[1]}, 5, v{T[1]}\ns_lshl_b32 s48, s45, 7\ns_add_u32 s48, s48, {WS_CS1:#x}']
        for h2 in range(2):
            csl.append(f'buffer_load_dwordx4 v[{CS+4*h2}:{CS+4*h2+3}], v{T[1]}, s[24:27], s48 offen offset:{16*h2}')
        if X.get('ml'):
            csl = [f'v_lshrrev_b32 v{T[1]}, 4, v{vLANE}\ns_lshl_b32 s48, s34, 11\nv_lshl_add_u32 v{T[1]}, v{T[1]}, 5, s48'] + \
                  [f'ds_read_b128 v[{CS+4*h2}:{CS+4*h2+3}], v{T[1]} offset:{768 + 16*h2} ; R:ML' for h2 in range(2)]
        if SPR:
            nx = X.get('nx', 24)
            for s in merge(x1o[:nx], modloads([(2, TB), (1, SB)]) + (csl if X.get('cse', 1) else [])): I(s)
            inj['q'] = list(aloads[NA1:]) if not SP else []
            cblk('x0', aloads)
            for s in x1o[nx:]: I(s)
            cblk('x1', aloads)
        else:
            for s in merge(x1o, modloads([(2, TB), (1, SB)]) + (csl if X.get('cse', 1) else []) + aloads[NA1:]): I(s)
        st()
        def stats_local(mean, var):
            I(f'v_mov_b32 v{mean}, 0'); I(f'v_mov_b32 v{var}, 0'); I(f'v_mov_b32 v{T[6]}, 0'); I(f'v_mov_b32 v{T[7]}, 0')
            for j in range(0, 8, 2):
                I(f'v_dot2_f32_bf16 v{mean}, v{XR+j}, s53, v{mean}')
                I(f'v_dot2_f32_bf16 v{var}, v{XR+j}, v{XR+j}, v{var}')
                I(f'v_dot2_f32_bf16 v{T[6]}, v{XR+j+1}, s53, v{T[6]}')
                I(f'v_dot2_f32_bf16 v{T[7]}, v{XR+j+1}, v{XR+j+1}, v{T[7]}')
            I('s_nop 2')
            I(f'v_add_f32 v{mean}, v{mean}, v{T[6]}')
            I(f'v_add_f32 v{var}, v{var}, v{T[7]}')
            for op in ('v_permlane16_swap_b32', 'v_permlane32_swap_b32'):
                I(f'v_mov_b32 v{T[6]}, v{mean}'); I(f'v_mov_b32 v{T[7]}, v{var}')
                I(f'{op} v{mean}, v{T[6]}'); I(f'{op} v{var}, v{T[7]}')
                I(f'v_add_f32 v{mean}, v{mean}, v{T[6]}'); I(f'v_add_f32 v{var}, v{var}, v{T[7]}')
        def stats_write(area, mean, var):
            I(f'v_lshlrev_b32 v{T[5]}, 3, v{T[0]}')
            I('s_lshl_b32 s48, s34, 7')
            I(f's_add_u32 s48, s48, {area}')
            I(f'v_add_u32 v{T[6]}, s48, v{T[5]}')
            I(f'ds_write_b64 v{T[6]}, v[{mean}:{var}]')
        def stats_read(area, mean, var, R):
            for w in range(8):
                I(f'ds_read_b64 v[{R+2*w}:{R+2*w+1}], v{T[5]} offset:{area + 128*w}')
            for stp in (4, 2, 1):
                for w in range(stp):
                    I(f'v_pk_add_f32 v[{R+2*w}:{R+2*w+1}], v[{R+2*w}:{R+2*w+1}], v[{R+2*(w+stp)}:{R+2*(w+stp)+1}]')
            I(f'v_mul_f32 v{mean}, {f32bits(1.0/512):#x}, v{R}')
            I(f'v_mul_f32 v{var}, {f32bits(1.0/512):#x}, v{R+1}')
            I(f'v_fma_f32 v{var}, -v{mean}, v{mean}, v{var}')
            I(f'v_max_f32 v{var}, 0, v{var}')
            ln_rstd(aw, var, mean)
        M, V = T[2], T[3]
        stats_local(M, V)
        stats_write(L_S2, M, V)
        I('s_lshr_b32 s47, s34, 2')
        I('s_cmp_eq_u32 s47, s36')
        I('s_cselect_b32 s54, 0, 0x10000000')
        I(f's_add_u32 s43, s41, {WS_X1:#x}')
        I('s_add_u32 s43, s43, s54')
        for f in range(2):
            I(f'buffer_store_dwordx4 v[{XR+4*f}:{XR+4*f+3}], v{vFO}, s[24:27], s43 offen offset:{2048*f}')
        if X.get('pf3', 0):
            I(f's_mov_b32 s58, {512*3584}'); I('s_mov_b32 s59, 0x00020000')
            I(f'v_and_b32 v{U}, 31, v{vLANE}')
            I(f'v_min_u32 v{U}, 13, v{U}')
            I(f'v_lshlrev_b32 v{U}, 7, v{U}')
            I(f'v_lshrrev_b32 v{U+1}, 5, v{vLANE}')
            I(f'v_mad_u32_u24 v{U}, v{U+1}, s58, v{U}') if False else I(f'v_mul_u32_u24 v{U+1}, 3584, v{U+1}')
            I(f'v_add_u32 v{U}, v{U}, v{U+1}')
            I('s_lshr_b32 s64, s2, 3'); I('s_lshl_b32 s64, s64, 3'); I('s_add_u32 s64, s64, s34'); I(f's_mul_i32 s64, s64, {2*3584}')
            I('s_and_b32 s65, s2, 1'); I('s_mul_i32 s65, s65, 1792'); I('s_add_u32 s64, s64, s65')
            I(f'buffer_load_dword v0, v{U}, s[56:59], s64 offen')
        if X.get('pf4', 0):
            I(f's_mov_b32 s62, {1792*1024}'); I('s_mov_b32 s63, 0x00020000')
            I(f'v_min_u32 v{U+2}, 55, v{vLANE}')
            I(f'v_lshlrev_b32 v{U+2}, 7, v{U+2}')
            I('s_lshr_b32 s64, s2, 3'); I('s_lshl_b32 s64, s64, 3'); I('s_add_u32 s64, s64, s34'); I(f's_mul_i32 s64, s64, 7168')
            I(f'buffer_load_dword v4, v{U+2}, s[60:63], s64 offen')
        cblk('b1', aloads)
        if X.get('bulk'):
            q_ = inj['q']; inj['q'] = []
            nb_ = X['bulk']
            if X.get('pr'): I('s_setprio 0')
            for s in q_[:nb_]: I(s)
            if X.get('pr'): I('s_setprio 3')
            I('s_waitcnt lgkmcnt(0)')
            I('s_barrier')
            inj['step'] = X.get('step2', inj['step'])
            inj['q'] = q_[nb_:]
        else:
            I('s_waitcnt lgkmcnt(0)')
            I('s_barrier')
        stats_read(L_S2, M, V, GA)
        st()
        cblk('h0', aloads)
        I(f'v_sub_f32 v{U}, 0, v{M}'); I(f'v_sub_f32 v{U+1}, 0, v{M}')
        I(f'v_mov_b32 v{U+2}, v{V}'); I(f'v_mov_b32 v{U+3}, v{V}')
        for e in range(0, 16, 2):
            r = D + e
            I(f'v_pk_add_f32 v[{r}:{r+1}], v[{r}:{r+1}], v[{U}:{U+1}]')
            I(f'v_pk_mul_f32 v[{TB+e}:{TB+e+1}], v[{TB+e}:{TB+e+1}], v[{U+2}:{U+3}]')
            I(f'v_pk_fma_f32 v[{r}:{r+1}], v[{r}:{r+1}], v[{TB+e}:{TB+e+1}], v[{SB+e}:{SB+e+1}]')
            I(f'v_cvt_pk_bf16_f32 v{XR+e//2}, v{r}, v{r+1}')
        I('s_lshl_b32 s48, s34, 11')
        I(f'v_add_u32 v{T[4]}, s48, v{vL16}')
        for f in range(2):
            I(f'ds_write_b128 v{T[4]}, v[{XR+4*f}:{XR+4*f+3}] offset:{L_HB + 1024*f}')
        cblk('h1', aloads)
        stats_local(M, V)
        stats_write(L_S3, M, V)
        I(f's_add_u32 s43, s41, {WS_HB:#x}')
        I('s_add_u32 s43, s43, s54')
        for f in range(2):
            I(f'buffer_store_dwordx4 v[{XR+4*f}:{XR+4*f+3}], v{vFO}, s[24:27], s43 offen offset:{2048*f}')
        I(f'v_lshrrev_b32 v{T[4]}, 4, v{vLANE}')
        if not X.get('cse', 1):
            for s in csl: I(s)
        cblk('b2', aloads)
        I('s_waitcnt lgkmcnt(0)')
        I('s_barrier')
        st()
        rest_ = inj['q']; inj['q'] = []
        print("K2 leftover A loads", len(rest_))
        for s in rest_: I(s)
        cblk('end', aloads)
        BF = P
        ACC = D
        mfs = []
        for ks in range(16):
            for Tt in range(2):
                idx = 2*ks + Tt
                b = ACC + 4*Tt
                cc = '0' if ks == 0 else f'v[{b}:{b+3}]'
                mfs.append(f'v_mfma_f32_16x16x32_bf16 v[{b}:{b+3}], a[{4*idx}:{4*idx+3}], v[{BF+4*ks}:{BF+4*ks+3}], {cc}')
        if X.get('g2', 1):
            R = GA
            for ks in range(8):
                I(f'ds_read_b128 v[{BF+4*ks}:{BF+4*ks+3}], v{vL16} offset:{L_HB + 1024*ks}')
            rd2 = [f'ds_read_b128 v[{BF+4*ks}:{BF+4*ks+3}], v{vL16} offset:{L_HB + 1024*ks}' for ks in range(8, 16)]
            rd2 += [f'ds_read_b64 v[{R+2*w}:{R+2*w+1}], v{T[5]} offset:{L_S3 + 128*w}' for w in range(8)]
            sm = []
            for stp in (4, 2, 1):
                for w in range(stp):
                    sm.append(f'v_add_f32 v{R+2*w}, v{R+2*w}, v{R+2*(w+stp)}')
                    sm.append(f'v_add_f32 v{R+2*w+1}, v{R+2*w+1}, v{R+2*(w+stp)+1}')
            sm += [f'v_mul_f32 v{M}, {f32bits(1.0/512):#x}, v{R}', f'v_mul_f32 v{V}, {f32bits(1.0/512):#x}, v{R+1}', f'v_fma_f32 v{V}, -v{M}, v{M}, v{V}', f'v_max_f32 v{V}, 0, v{V}',
                   f'v_cvt_pk_bf16_f32 v{M}, 0, v{M}', f'v_cvt_pk_bf16_f32 v{V}, 0, v{V}', f'v_add_f32 v{V}, {f32bits(1e-5):#x}, v{V}', f'v_cvt_pk_bf16_f32 v{V}, 0, v{V}',
                   f'v_sqrt_f32 v{V}, v{V}', f'v_cvt_pk_bf16_f32 v{V}, 0, v{V}', f'v_rcp_f32 v{V}, v{V}']
            for s in merge(mfs[:12], rd2): I(s)
            for s in merge(mfs[12:], sm): I(s)
        else:
            for ks in range(16):
                I(f'ds_read_b128 v[{BF+4*ks}:{BF+4*ks+3}], v{vL16} offset:{L_HB + 1024*ks}')
            stats_read(L_S3, M, V, GA)
            for s in mfs: I(s)
        st()
        c0 = -2.0 * (2.0/3.141592653589793) ** 0.5 * LOG2E
        I(f's_mov_b32 s50, {f32bits(c0*0.044715):#x}')
        I(f'v_mov_b32 v{T[7]}, {f32bits(c0):#x}')
        ep = []
        for e in range(8):
            r = ACC + e
            L = [f'v_fma_f32 v{r}, -v{M}, v{CS+e}, v{r}', f'v_mul_f32 v{r}, v{r}, v{V}']
            L += gelu_ops(r, GA + e, 'v%d' % T[7], 's50')
            ep.append(L)
        for j in range(len(ep[0])):
            for L in ep: I(L[j])
        for j in range(4):
            I(f'v_cvt_pk_bf16_f32 v{XR+j}, v{ACC+2*j}, v{ACC+2*j+1}')
        I(f'v_and_b32 v{T[1]}, 1, v{T[4]}')
        I(f'v_lshl_add_u32 v{T[1]}, v{T[1]}, 5, v{T[0]}')
        I(f'v_add_u32 v{T[1]}, s37, v{T[1]}')
        I(f'v_lshlrev_b32 v{T[1]}, 4, v{T[1]}')
        I(f'v_lshrrev_b32 v{T[5]}, 1, v{T[4]}')
        I(f'v_lshl_add_u32 v{T[1]}, v{T[5]}, 10, v{T[1]}')
        I('s_lshl_b32 s48, s45, 11')
        I('s_add_u32 s48, s48, s40')
        I(f's_add_u32 s48, s48, {WS_T:#x}')
        I(f'buffer_store_dwordx4 v[{XR}:{XR+3}], v{T[1]}, s[24:27], s48 offen')
        st.flush(24, 34, 100, vLANE)
        I('s_endpgm')
    import copy
    if X0.get('pr'): I('s_setprio 3')
    if SP:
        a.vm_q2 = []
        body(X0, pl)
    else:
        I('s_cmp_ge_u32 s34, 4')
        I('s_cbranch_scc1 K2_B')
        sn = st.n
        body(dict(X0, **X0.get('A', {})), pl)
        a.raw('K2_B:')
        a.vm_q = []; a.lds_q = []; a.hist = []
        st.n = sn
        body(dict(X0, **X0.get('B', {})), pl)
    a.label('K2_end')
    I('s_endpgm')
    print("K2 instrs", a.ninstr, "nops", a.nnop)
    return a.text(), kernel_desc(name, 256, 96, accum=128)
```

```python
from common import *
from k2 import LOG2E

L_CS = 131072
L_ST = L_CS + 512
L_FL = L_ST + 2048
LDS4 = L_FL + 64

def gen_k4l(name, stamps=False, X={}):
    X = dict({'hs':('01','23s','45','67'),'bs':(16,32,32),'sq':2,'hp':(3,0)}, **X)
    a = Asm()
    st = Stamper(a, stamps, 4)
    kernel_header(a, name)
    I = a.I
    vLANE, vL16 = 1, 2
    T = [4,5,6,7,8,9,10,11]
    AD = [12,13,14,15]
    RM = 16
    vCSA, vSTG = 20, 21
    OUTP = 24
    CS = 32
    AFR = 40
    ACC = 64
    ST = 96
    NRING = 6
    BF = 0
    I('s_cmp_ge_u32 s2, 224')
    I('s_cbranch_scc1 K4_end')
    I(f's_load_dwordx2 s[12:13], s[0:1], {KA_W3}')
    I(f's_load_dwordx2 s[24:25], s[0:1], {KA_WS}')
    I(f's_load_dwordx2 s[56:57], s[0:1], {KA_W4}')
    I(f'v_and_b32 v{vLANE}, 63, v0')
    I('v_lshrrev_b32 v3, 6, v0')
    I(f'v_lshlrev_b32 v{vL16}, 4, v{vLANE}')
    I('v_readfirstlane_b32 s55, v3')
    I('s_and_b32 s35, s2, 7')
    I('s_lshr_b32 s36, s2, 3')
    I('s_mul_i32 s37, s36, 37')
    I('s_lshr_b32 s37, s37, 8')
    I('s_mul_i32 s38, s37, 7')
    I('s_sub_u32 s36, s36, s38')
    I('s_and_b32 s38, s35, 1')
    I('s_mul_i32 s38, s38, 7')
    I('s_add_u32 s36, s36, s38')
    I('s_lshr_b32 s35, s35, 1')
    I('s_lshl_b32 s35, s35, 2')
    I('s_add_u32 s35, s35, s37')
    I('s_and_b32 s34, s55, 3')
    I('s_lshl_b32 s40, s35, 2')
    I('s_add_u32 s40, s40, s34')
    I(f's_mov_b32 s14, {512*3584}'); I('s_mov_b32 s15, 0x00020000')
    I(f's_mov_b32 s26, {WS_SIZE:#x}'); I('s_mov_b32 s27, 0x00020000')
    I('s_lshl_b32 s49, s40, 15')
    I(f's_add_u32 s49, s49, {WS_X1B:#x}')
    I(f'v_lshrrev_b32 v{T[0]}, 3, v{vLANE}')
    I(f'v_and_b32 v{T[1]}, 7, v{vLANE}')
    I(f'v_bfe_u32 v{T[2]}, v{vLANE}, 4, 1')
    I(f'v_lshlrev_b32 v{T[2]}, 2, v{T[2]}')
    I(f'v_xor_b32 v{T[1]}, v{T[1]}, v{T[2]}')
    I(f'v_lshlrev_b32 v{T[1]}, 4, v{T[1]}')
    I(f'v_mul_u32_u24 v{T[0]}, 3584, v{T[0]}')
    I(f'v_add_u32 v{AD[0]}, v{T[1]}, v{T[0]}')
    I(f's_mul_i32 s45, s34, {8*3584}')
    I('s_lshl_b32 s46, s36, 8')
    I('s_add_u32 s45, s45, s46')
    I('s_lshl_b32 s46, s34, 10')
    I(f'v_and_b32 v{T[0]}, 31, v{vLANE}')
    if X.get('st2', 1):
        I(f'v_lshrrev_b32 v{T[3]}, 5, v{vLANE}')
        I(f'v_lshlrev_b32 v{T[3]}, 14, v{T[3]}')
        I(f'v_lshl_add_u32 v{T[3]}, v{T[0]}, 3, v{T[3]}')
        I('s_lshl_b32 s50, s40, 8')
    else:
        I(f'v_lshlrev_b32 v{T[3]}, 7, v{T[0]}')
        I('s_lshl_b32 s50, s40, 12')
    I(f's_add_u32 s50, s50, {WS_ST4:#x}')
    I('s_cmp_lt_u32 s55, 4')
    I('s_waitcnt lgkmcnt(0)')
    if stamps:
        st.first()
        I('s_cmp_lt_u32 s55, 4')
    I('s_cbranch_scc1 K4_c1')
    UN = X.get('un')
    def grp(q):
        L = []
        hf, kq_ = UN[q] if UN else (q // 4, q % 4)
        for j in range(4*kq_, 4*kq_ + 4):
            L.append(f's_add_u32 m0, s46, {hf*65536 + j*4096}\ns_add_u32 s48, s45, {hf*128 + j*32*3584}\n'
                     f'buffer_load_dwordx4 v{AD[0]}, s[12:15], s48 offen lds ; W:G{q}')
        return L
    AH = X.get('ah', 4)
    SE = X.get('se', 1)
    stl = [f'buffer_load_dwordx4 v[{ST+4*j}:{ST+4*j+3}], v{T[3]}, s[24:27], s50 offen offset:{16*j}' for j in range(8)]
    if X.get('st2', 1):
        stl = [f'buffer_load_dwordx2 v[{ST+2*j}:{ST+2*j+1}], v{T[3]}, s[24:27], s50 offen' + ('\ns_add_u32 s50, s50, 32768' if j < 7 else '') for j in range(8)]
    HS = X.get('hs')
    def hs_emit(spec):
        for ch in spec:
            if ch == 's':
                for s in stl: I(s)
            else:
                for s in grp(int(ch)): I(s)
    if X.get('hp'): I(f's_setprio {X["hp"][0]}')
    if HS: hs_emit(HS[0])
    if X.get('hp'): I(f's_setprio {X["hp"][1]}')
    if not HS:
      for q in range(AH):
        for s in grp(q): I(s)
        if SE and q == SE - 1:
            for s in stl: I(s)
    I('s_branch K4_help')
    hq = list(a.vm_q); hn = st.n
    a.label('K4_c1')
    a.vm_q = []
    c0 = -2.0 * (2.0/3.141592653589793) ** 0.5 * LOG2E
    M, A_, B_, S_ = RM, RM+1, RM+2, RM+3
    N16 = X.get('n16', 0)
    vSA = 23 if N16 else vL16
    SO = 512 if N16 else 1024
    FLG = X.get('flag', 0)
    vFA, vFV = 3, 0
    def common():
        if FLG:
            I('s_lshl_b32 s41, s34, 2')
            I(f's_add_u32 s41, s41, {L_FL}')
            I(f'v_mov_b32 v{vFA}, s41')
            I(f'v_mov_b32 v{vFV}, 0')
        if N16:
            I(f'v_and_b32 v{vSA}, 15, v{vLANE}')
            I(f'v_lshlrev_b32 v{vSA}, 4, v{vSA}')
            I(f'v_bfe_u32 v{vCSA}, v{vLANE}, 4, 1')
            I(f'v_lshl_add_u32 v{vSA}, v{vCSA}, 10, v{vSA}')
            I(f'v_lshrrev_b32 v{vCSA}, 5, v{vLANE}')
            I(f'v_lshl_add_u32 v{vSA}, v{vCSA}, 8, v{vSA}')
        I(f'v_lshrrev_b32 v{vCSA}, 5, v{vLANE}')
        I(f'v_lshlrev_b32 v{vCSA}, 5, v{vCSA}')
        I(f'v_add_u32 v{vCSA}, {L_CS}, v{vCSA}')
        I('s_lshl_b32 s41, s34, 13')
        I(f'v_add_u32 v{vSTG}, s41, v{vL16}')
        I(f's_mul_i32 s53, s40, 114688')
        I('s_lshl_b32 s54, s36, 13')
        I('s_add_u32 s53, s53, s54')
        I(f's_add_u32 s53, s53, {WS_T2:#x}')
    BS = X.get('bs', (32, 32, 32))
    def bl(ks):
        if ks % 4 == 0 and ks > 0: I('s_add_u32 s49, s49, 4096')
        I(f'buffer_load_dwordx4 a[{BF+4*ks}:{BF+4*ks+3}], v{vL16}, s[24:27], s49 offen offset:{1024*(ks%4)}')
    for ks in range(BS[0]):
        bl(ks)
        if ks == X.get('nb0', 7):
            I(f'v_lshrrev_b32 v{T[6]}, 5, v{vLANE}')
            I(f'v_bfe_u32 v{T[7]}, v{vLANE}, 2, 2')
            I(f'v_lshl_add_u32 v{T[6]}, v{T[6]}, 3, v{T[7]}')
            I(f'v_lshlrev_b32 v{T[6]}, 7, v{T[6]}')
            I(f'v_bfe_u32 v{T[5]}, v{vLANE}, 4, 1')
            I(f'v_lshl_add_u32 v{T[6]}, v{T[5]}, 5, v{T[6]}')
            I(f'v_and_b32 v{T[5]}, 1, v{vLANE}')
            I(f'v_lshl_add_u32 v{T[6]}, v{T[5]}, 4, v{T[6]}')
            I(f'v_bfe_u32 v{T[5]}, v{vLANE}, 1, 1')
            I(f'v_lshl_add_u32 v{T[6]}, v{T[5]}, 3, v{T[6]}')
            I(f'v_bfe_u32 v{T[7]}, v{vLANE}, 3, 1')
            I(f'v_lshl_add_u32 v{AD[0]}, v{T[7]}, 6, v{T[6]}')
            I(f'v_xor_b32 v{T[7]}, 1, v{T[7]}')
            I(f'v_lshl_add_u32 v{AD[1]}, v{T[7]}, 6, v{T[6]}')
            I(f'v_and_b32 v{T[0]}, 31, v{vLANE}')
            I('s_lshl_b32 s41, s34, 9')
            I(f's_add_u32 s41, s41, {L_ST}')
            I(f'v_lshl_add_u32 v22, v{T[0]}, 4, s41')
            common()
            I(f'v_add_u32 v{vCSA}, 256, v{vCSA}')
            I('s_add_u32 s53, s53, 4096')
    I('s_mov_b32 s44, 0')
    if X.get('prio', 1): I('s_setprio 2')
    st()
    PRE = 4
    if UN:
        I(f'v_add_u32 v{AD[2]}, 65536, v{AD[0]}')
        I(f'v_add_u32 v{AD[3]}, 65536, v{AD[1]}')
        ACCS = (ACC, ST)
        last0 = max(i for i, (h_, k_) in enumerate(UN) if h_ == 0)
        NBAR = last0 + 2
        nb = BS[0]
        for gi, (h_, kq_) in enumerate(UN):
            if gi < NBAR:
                if gi == last0 + 1: I('s_waitcnt lgkmcnt(0)')
                I('s_barrier')
            order = list(range(16*kq_, 16*kq_ + 16))
            if gi == last0 or gi == 7:
                order = order[:8] + [i for i in order[8:] if i % 2 == 0] + [i for i in order[8:] if i % 2 == 1]
            def rd2(n):
                idx = order[n]; ks, m2 = idx // 2, idx % 2
                return [f'ds_read_b64_tr_b16 v[{AFR + 4*(n % NRING) + 2*t}:{AFR + 4*(n % NRING) + 2*t + 1}], v{AD[2*h_+m2]} offset:{(16*ks + 4*t)*128}' for t in range(2)]
            for n in range(PRE):
                for s_ in rd2(n): I(s_)
            hi_ = BS[gi+1] if gi + 1 < len(BS) else 32
            for ks in range(nb, hi_): bl(ks)
            nb = max(nb, hi_)
            for n, idx in enumerate(order):
                ks, m2 = idx // 2, idx % 2
                b = ACCS[h_] + 16*m2
                cc = '0' if ks == 0 else f'v[{b}:{b+15}]'
                r = AFR + 4*(n % NRING)
                I(f'v_mfma_f32_32x32x16_bf16 v[{b}:{b+15}], v[{r}:{r+3}], a[{BF+4*ks}:{BF+4*ks+3}], {cc}')
                if n + PRE < 16:
                    for s_ in rd2(n+PRE): I(s_)
                if gi == last0 and n == 14:
                    for i in range(4): I(f'ds_write_b128 v{vSTG}, v[{ACC+4*i}:{ACC+4*i+3}] offset:{1024*i}')
                if gi == 7 and n == 8: I(f'ds_read_b128 v[{RM}:{RM+3}], v22')
                if gi == 7 and n == 14:
                    for i in range(16): I(f'v_mov_b32 v{ACC+i}, v{ST+i}')
            if gi == last0:
                for i in range(4): I(f'ds_write_b128 v{vSTG}, v[{ACC+16+4*i}:{ACC+16+4*i+3}] offset:{4096 + 1024*i}')
        I('s_setprio 0')
        I('s_waitcnt lgkmcnt(0)')
        st()
        I('s_call_b64 s[62:63], K4_epk')
        for i in range(16): I(f'v_mov_b32 v{ACC+i}, v{ST+16+i}')
        I(f'v_add_u32 v{vCSA}, 128, v{vCSA}')
        I(f's_add_u32 s53, s53, 2048')
        I('s_call_b64 s[62:63], K4_epk')
        st.flush(24, 34, 22, vLANE)
        I('s_endpgm')
        mark = len(a.out)
    a.raw('K4_pass:')
    for qd in range(4):
        if qd >= 2:
            I('s_cmp_eq_u32 s44, 1')
            I(f's_cbranch_scc1 K4_nb{qd}')
            I('s_barrier')
            a.raw(f'K4_nb{qd}:')
        else:
            I('s_barrier')
        base = 16*qd
        order = list(range(base, base+16))
        if qd == 3:
            order = order[:8] + [i for i in order[8:] if i % 2 == 1] + [i for i in order[8:] if i % 2 == 0]
        def rd2(n):
            idx = order[n]; ks, m2 = idx // 2, idx % 2
            return [f'ds_read_b64_tr_b16 v[{AFR + 4*(n % NRING) + 2*t}:{AFR + 4*(n % NRING) + 2*t + 1}], v{AD[m2]} offset:{(16*ks + 4*t)*128}' for t in range(2)]
        for n in range(PRE):
            for s in rd2(n): I(s)
        lo_, hi_ = ((BS[0], BS[1]), (BS[1], BS[2]), (BS[2], 32), (32, 32))[qd]
        if hi_ > lo_:
            I('s_cmp_eq_u32 s44, 1')
            I(f's_cbranch_scc1 K4_nl{qd}')
            for ks in range(lo_, hi_): bl(ks)
            a.raw(f'K4_nl{qd}:')
        for n, idx in enumerate(order):
            ks, m2 = idx // 2, idx % 2
            b = ACC + 16*m2
            cc = '0' if ks == 0 else f'v[{b}:{b+15}]'
            r = AFR + 4*(n % NRING)
            I(f'v_mfma_f32_32x32x16_bf16 v[{b}:{b+15}], v[{r}:{r+3}], a[{BF+4*ks}:{BF+4*ks+3}], {cc}')
            if n + PRE < 16:
                for s in rd2(n+PRE): I(s)
            if qd == 3 and n == 14:
                for i in ((2, 3, 0, 1) if FLG else range(4)):
                    I(f'ds_write_b128 v{vSTG}, v[{ACC+16+4*i}:{ACC+16+4*i+3}] offset:{4096 + 1024*i}')
                    if FLG and i == (3 if FLG == 1 else 1): I(f'ds_write_b32 v{vFA}, v{vFV}')
    I('s_cmp_eq_u32 s44, 1')
    I('s_cbranch_scc1 K4_done')
    for i in range(4): I(f'ds_write_b128 v{vSTG}, v[{ACC+4*i}:{ACC+4*i+3}] offset:{1024*i}')
    I(f'v_add_u32 v{AD[0]}, 65536, v{AD[0]}')
    I(f'v_add_u32 v{AD[1]}, 65536, v{AD[1]}')
    I('s_mov_b32 s44, 1')
    if FLG: I(f'v_mov_b32 v{vFV}, 1')
    I('s_waitcnt lgkmcnt(0)')
    I('s_branch K4_pass')
    a.label('K4_done')
    I(f'ds_read_b128 v[{RM}:{RM+3}], v22')
    I('s_setprio 0')
    I('s_waitcnt lgkmcnt(0)')
    st()
    if not FLG: I('s_barrier')
    I('s_nop 7')
    I('s_call_b64 s[62:63], ' + ('K4_epk' if X.get('pk', 1) else 'K4_epi'))
    if FLG == 3:
        for i in range(16): I(f'v_mov_b32 v{ACC+i}, v{ACC+16+i}')
        I(f'v_add_u32 v{vCSA}, 128, v{vCSA}')
        I(f's_add_u32 s53, s53, 2048')
        I('s_call_b64 s[62:63], K4_epk')
    if FLG == 1:
        for i in range(8): I(f'v_mov_b32 v{ACC+8+i}, v{ACC+16+i}')
        I(f'v_add_u32 v{vCSA}, 64, v{vCSA}')
        I(f's_add_u32 s53, s53, {2048 - SO}')
        I('s_call_b64 s[62:63], K4_epk1')
    st.flush(24, 34, 22, vLANE)
    I('s_endpgm')
    if UN: a.out = a.out[:mark]
    n_comp = st.n
    a.label('K4_epi')
    a.vm_q = []; a.lds_q = []
    b = ACC
    EH = X.get('eh', 0)
    for h8 in range(2):
        if h8 == 1 and EH:
            I('s_cbranch_scc1 K4_epr')
            a.label('K4_epi1')
        I(f'ds_read_b128 v[{CS}:{CS+3}], v{vCSA} offset:{64*h8}')
        I(f'ds_read_b128 v[{CS+4}:{CS+7}], v{vCSA} offset:{64*h8 + 16}')
        chains = []
        for i in range(8):
            r = b + 8*h8 + i; t = T[i]
            chains.append([f'v_fma_f32 v{r}, -v{M}, v{CS+i}, v{r}', f'v_mul_f32 v{t}, v{r}, v{r}', f'v_fma_f32 v{t}, v{t}, v{B_}, v{A_}',
                           f'v_mul_f32 v{t}, v{t}, v{r}', f'v_exp_f32 v{t}, v{t}', f'v_fma_f32 v{t}, v{t}, v{S_}, v{S_}',
                           f'v_rcp_f32 v{t}, v{t}', f'v_mul_f32 v{r}, v{r}, v{t}'])
        for j in range(8):
            for c in chains: I(c[j])
        for i in range(4):
            I(f'v_cvt_pk_bf16_f32 v{OUTP+4*h8+i}, v{b+8*h8+2*i}, v{b+8*h8+2*i+1}')
        I(f'buffer_store_dwordx4 v[{OUTP+4*h8}:{OUTP+4*h8+3}], v{vSA}, s[24:27], s53 offen offset:{SO*h8}')
    if EH: a.raw('K4_epr:')
    I('s_nop 1')
    I('s_setpc_b64 s[62:63]')
    if X.get('pk', 1):
        a.label('K4_epk')
        a.vm_q = []; a.lds_q = []
        PC = AFR + 4
        I(f'v_sub_f32 v{PC}, 0, v{M}'); I(f'v_sub_f32 v{PC+1}, 0, v{M}')
        for k, r in enumerate((A_, B_, S_)):
            I(f'v_mov_b32 v{PC+2+2*k}, v{r}'); I(f'v_mov_b32 v{PC+3+2*k}, v{r}')
        pm, pa, pb, ps = (f'v[{PC+2*k}:{PC+2*k+1}]' for k in range(4))
        for h8 in range(2):
            if h8 == 1 and FLG == 1: a.label('K4_epk1')
            I(f'ds_read_b128 v[{CS}:{CS+3}], v{vCSA} offset:{64*h8}')
            I(f'ds_read_b128 v[{CS+4}:{CS+7}], v{vCSA} offset:{64*h8 + 16}')
            chains = []
            for i in range(0, 8, 2):
                r = ACC + 8*h8 + i; t = T[i]
                R = f'v[{r}:{r+1}]'; TT_ = f'v[{t}:{t+1}]'
                chains.append([f'v_pk_fma_f32 {R}, {pm}, v[{CS+i}:{CS+i+1}], {R}', f'v_pk_mul_f32 {TT_}, {R}, {R}', f'v_pk_fma_f32 {TT_}, {TT_}, {pb}, {pa}',
                               f'v_pk_mul_f32 {TT_}, {TT_}, {R}', f'v_exp_f32 v{t}, v{t}\nv_exp_f32 v{t+1}, v{t+1}', f'v_pk_fma_f32 {TT_}, {TT_}, {ps}, {ps}',
                               f'v_rcp_f32 v{t}, v{t}\nv_rcp_f32 v{t+1}, v{t+1}', f'v_pk_mul_f32 {R}, {R}, {TT_}', f'v_cvt_pk_bf16_f32 v{OUTP+4*h8+i//2}, v{r}, v{r+1}'])
            for j in range(9):
                for c in chains: I(c[j])
            I(f'buffer_store_dwordx4 v[{OUTP+4*h8}:{OUTP+4*h8+3}], v{vSA}, s[24:27], s53 offen offset:{SO*h8}')
        I('s_nop 1')
        I('s_setpc_b64 s[62:63]')
    a.label('K4_help')
    a.lds_q = []
    a.vm_q = list(hq)
    st.n = hn
    I('s_lshl_b32 s51, s36, 9')
    I(f's_add_u32 s51, s51, {WS_CS3:#x}')
    csl = f's_mov_b32 m0, {L_CS}\ns_mov_b32 exec_hi, 0\nbuffer_load_dwordx4 v{vL16}, s[24:27], s51 offen lds ; W:CS\ns_mov_b32 exec_hi, -1'
    C3 = X.get('c3', 0)
    if C3:
        CP = AFR + 8
        I(f'v_lshrrev_b32 v{AD[2]}, 5, v{vLANE}')
        I(f'v_mul_u32_u24 v{AD[2]}, 7168, v{AD[2]}')
        I(f'v_lshl_add_u32 v{AD[2]}, v{T[0]}, 2, v{AD[2]}')
        I('s_lshl_b32 s51, s36, 9')
        I('s_lshl_b32 s41, s34, 7')
        I('s_add_u32 s51, s51, s41')
        I(f's_add_u32 s51, s51, {WS_C3P:#x}')
        I(f's_add_u32 s41, s41, {L_CS}')
        I(f'v_lshl_add_u32 v{AD[3]}, v{T[0]}, 2, s41')
        csl = '\n'.join(f'buffer_load_dword v{CP+j}, v{AD[2]}, s[24:27], s51 offen' + ('\ns_add_u32 s51, s51, 14336' if j < 3 else '') for j in range(4))
        csf = [f'v_add_f32 v{CP}, v{CP}, v{CP+1}', f'v_add_f32 v{CP+2}, v{CP+2}, v{CP+3}', f'v_add_f32 v{CP}, v{CP}, v{CP+2}', f'v_mov_b32 v{CP+1}, v{CP}',
               f'v_permlane32_swap_b32 v{CP}, v{CP+1}', f'v_add_f32 v{CP}, v{CP}, v{CP+1}', f'ds_write_b32 v{AD[3]}, v{CP}']
    I('s_lshl_b32 s41, s34, 9')
    I(f's_add_u32 s41, s41, {L_ST}')
    I(f'v_lshl_add_u32 v{AD[1]}, v{T[0]}, 4, s41')
    common()
    def stats():
        L = []
        V = S_
        if X.get('st2', 1):
            for stp in (4, 2, 1):
                for j in range(stp):
                    L.append(f'v_add_f32 v{ST+2*j}, v{ST+2*j}, v{ST+2*(j+stp)}')
                    L.append(f'v_add_f32 v{ST+2*j+1}, v{ST+2*j+1}, v{ST+2*(j+stp)+1}')
            L += [f'v_mov_b32 v{M}, v{ST}', f'v_mov_b32 v{V}, v{ST+1}', f'v_permlane32_swap_b32 v{M}, v{ST}', f'v_permlane32_swap_b32 v{V}, v{ST+1}',
                  f'v_add_f32 v{M}, v{M}, v{ST}', f'v_add_f32 v{V}, v{V}, v{ST+1}',
                  f'v_mul_f32 v{M}, {f32bits(1.0/512):#x}, v{M}', f'v_mul_f32 v{V}, {f32bits(1.0/512):#x}, v{V}', f'v_fma_f32 v{V}, -v{M}, v{M}, v{V}', f'v_max_f32 v{V}, 0, v{V}']
        else:
            L.append(f'v_add_f32 v{M}, v{ST}, v{ST+2}')
            L.append(f'v_add_f32 v{V}, v{ST+1}, v{ST+3}')
            for j in range(2, 16):
                L.append(f'v_add_f32 v{M}, v{M}, v{ST+2*j}')
                L.append(f'v_add_f32 v{V}, v{V}, v{ST+2*j+1}')
            L.append(f'v_mul_f32 v{M}, {f32bits(1.0/16):#x}, v{M}')
            L.append(f'v_mov_b32 v{T[2]}, 0')
            for j in range(16):
                L.append(f'v_sub_f32 v{T[3]}, v{ST+2*j}, v{M}')
                L.append(f'v_fmac_f32 v{T[2]}, v{T[3]}, v{T[3]}')
            L.append(f'v_fmac_f32 v{V}, {f32bits(32.0):#x}, v{T[2]}')
            L.append(f'v_mul_f32 v{V}, {f32bits(1.0/512):#x}, v{V}')
        L.append(f'v_cvt_pk_bf16_f32 v{M}, 0, v{M}')
        L.append(f'v_cvt_pk_bf16_f32 v{V}, 0, v{V}')
        L.append(f'v_add_f32 v{V}, {f32bits(1e-5):#x}, v{V}')
        L.append(f'v_cvt_pk_bf16_f32 v{V}, 0, v{V}')
        L.append(f'v_sqrt_f32 v{V}, v{V}')
        L.append(f'v_cvt_pk_bf16_f32 v{V}, 0, v{V}')
        L.append(f'v_rcp_f32 v{T[2]}, v{V}')
        L.append(f'v_mul_f32 v{A_}, {f32bits(c0):#x}, v{T[2]}')
        L.append(f'v_mul_f32 v{B_}, v{T[2]}, v{T[2]}')
        L.append(f'v_mul_f32 v{B_}, v{B_}, v{A_}')
        L.append(f'v_mul_f32 v{B_}, {f32bits(0.044715):#x}, v{B_}')
        L.append(f'ds_write_b128 v{AD[1]}, v[{RM}:{RM+3}]')
        return L
    def pf4(n):
        L = [f's_mov_b32 s58, {1792*1024}\ns_mov_b32 s59, 0x00020000\nv_lshlrev_b32 v{AD[2]}, 7, v{vLANE}\n'
             's_lshr_b32 s60, s2, 3\ns_lshl_b32 s60, s60, 16\ns_lshl_b32 s61, s34, 14\ns_add_u32 s60, s60, s61']
        for i in range(n):
            L.append(f'buffer_load_dword v{AFR+i}, v{AD[2]}, s[56:59], s60 offen\ns_add_u32 s60, s60, 8192')
        return L
    NPF = X.get('pf4', 0); PFQ = X.get('pfq', 'e0')
    QS = NBAR - 1 if UN else 4
    for q in range(NBAR if UN else 6):
        tags = [f'G{q}'] + (['CS'] if q == QS else [])
        if q == 5 and not UN: tags = ['G5', 'G6', 'G7']
        if UN and q == NBAR - 1: tags += [f'G{i}' for i in range(q, 8)]
        a.wait_tags(tags, lg=(q >= QS))
        I('s_barrier')
        if X.get('hst'): st()
        if HS:
            if q + 1 < len(HS): hs_emit(HS[q+1])
        elif q + AH < 8:
            for s in grp(q + AH): I(s)
        if q == 0:
            if not SE and not HS:
                for s in stl: I(s)
            I(csl)
        if q == X.get('sq', 1):
            for s in stats(): I(s)
        if C3 and q == X.get('cq', X.get('sq', 1)):
            for s in csf: I(s)
        if q == X.get('sq', 1):
            if X.get('dry', 0):
                I('s_mov_b64 exec, 0')
                I('s_call_b64 s[62:63], ' + ('K4_epk' if X.get('pk', 1) else 'K4_epi'))
                I('s_mov_b64 exec, -1')
                I('s_waitcnt lgkmcnt(0)')
        if q == QS:
            for i in range(4): I(f'ds_read_b128 v[{ACC+4*i}:{ACC+4*i+3}], v{vSTG} offset:{1024*i}')
            for i in range(4): I(f'ds_read_b128 v[{ACC+16+4*i}:{ACC+16+4*i+3}], v{vSTG} offset:{4096 + 1024*i}')
            if EH:
                I('s_waitcnt lgkmcnt(6)')
                I('s_cmp_eq_u32 s34, s34')
                I('s_call_b64 s[62:63], K4_epi')
                a.vm_q.append(None)
        if NPF and q == PFQ:
            for s in pf4(NPF): I(s)
    if UN: I('s_waitcnt lgkmcnt(0)')
    if X.get('hp'): I('s_setprio 0')
    I('s_call_b64 s[62:63], ' + ('K4_epi1' if EH else 'K4_epi'))
    if NPF and PFQ == 'e0':
        for s in pf4(NPF): I(s)
    for i in range(16): I(f'v_mov_b32 v{ACC+i}, v{ACC+16+i}')
    I(f'v_add_u32 v{vCSA}, 128, v{vCSA}')
    I('s_add_u32 s53, s53, 2048')
    if EH: I('s_cmp_lg_u32 s34, s34')
    I('s_call_b64 s[62:63], ' + ('K4_epk' if X.get('h1pk') else 'K4_epi'))
    if NPF and PFQ == 'e1':
        for s in pf4(NPF): I(s)
    I(f'v_add_u32 v{vCSA}, 256, v{vCSA}')
    I('s_add_u32 s53, s53, 4096')
    st()
    if FLG == 3 or UN:
        pass
    elif FLG:
        if FLG == 1:
            PC = AFR + 4
            I(f'v_sub_f32 v{PC}, 0, v{M}'); I(f'v_sub_f32 v{PC+1}, 0, v{M}')
            for k, r in enumerate((A_, B_, S_)):
                I(f'v_mov_b32 v{PC+2+2*k}, v{r}'); I(f'v_mov_b32 v{PC+3+2*k}, v{r}')
        a.label('K4_poll')
        I(f'ds_read_b32 v{vFV}, v{vFA}')
        for i in (range(2, 4) if FLG == 1 else range(4)): I(f'ds_read_b128 v[{ACC+4*i}:{ACC+4*i+3}], v{vSTG} offset:{4096 + 1024*i}')
        I('s_waitcnt lgkmcnt(0)')
        I(f'v_readfirstlane_b32 s41, v{vFV}')
        I('s_nop 3')
        I('s_cmp_eq_u32 s41, 1')
        I('s_cbranch_scc0 K4_poll')
        I('s_call_b64 s[62:63], ' + ('K4_epk1' if FLG == 1 else 'K4_epk'))
    else:
        I('s_barrier')
        if X.get('hst'): st()
        for i in range(4): I(f'ds_read_b128 v[{ACC+4*i}:{ACC+4*i+3}], v{vSTG} offset:{4096 + 1024*i}')
        I('s_waitcnt lgkmcnt(0)')
        I('s_call_b64 s[62:63], ' + ('K4_epk' if X.get('pk', 1) else 'K4_epi'))
    if X.get('hst'): st()
    st.kidx = 6
    st.flush(24, 55, 22, vLANE)
    a.label('K4_end')
    I('s_endpgm')
    print("K4 instrs", a.ninstr, "nops", a.nnop)
    return a.text(), kernel_desc(name, 256, 96, accum=128)
```

```python
from common import *

def gen_k5m(name, stamps=False, LA=2, X={}):
    a = Asm()
    st = Stamper(a, stamps, 5)
    kernel_header(a, name)
    I = a.I
    vLANE, vBL = 1, 2
    T = [4,5,6,7,8,9,10,11]
    AD = [12,13,212,213]
    vEP = 14
    vRD = [15, 3]
    WR = [214,215,216,217]
    X1R, X1BR = 16, 20
    GB = 24
    ACC = 32
    AFR = 64
    BF = 96
    NR = 7; NS = 5
    I('s_cmp_ge_u32 s2, 256')
    I('s_cbranch_scc1 K5_end')
    I(f's_load_dwordx2 s[12:13], s[0:1], {KA_W4}')
    I(f's_load_dwordx2 s[24:25], s[0:1], {KA_WS}')
    I(f's_load_dwordx2 s[8:9], s[0:1], {KA_OUT}')
    I(f'v_and_b32 v{vLANE}, 63, v0')
    I('v_lshrrev_b32 v3, 6, v0')
    I('s_nop 0')
    I('v_readfirstlane_b32 s34, v3')
    I('s_and_b32 s35, s2, 7')
    I('s_lshr_b32 s36, s2, 3')
    I('s_lshl_b32 s35, s35, 2')
    I('s_lshr_b32 s37, s36, 3')
    I('s_add_u32 s35, s35, s37')
    I('s_and_b32 s36, s36, 7')
    I('s_and_b32 s38, s34, 1')
    I('s_lshr_b32 s39, s34, 1')
    I('s_lshl_b32 s40, s35, 1')
    I('s_add_u32 s40, s40, s38')
    I(f'v_and_b32 v{T[3]}, 15, v{vLANE}')
    I(f'v_lshrrev_b32 v{T[4]}, 4, v{vLANE}')
    I(f'v_lshlrev_b32 v{vBL}, 4, v{T[3]}')
    N16 = X.get('n16', 0)
    I(f'v_lshl_add_u32 v{vBL}, v{T[4]}, {8 if N16 else 9}, v{vBL}')
    for d, n in ((12, 1792*1024), (8, 2048*1024), (24, WS_SIZE)):
        I(f's_mov_b32 s{d+2}, {n:#x}'); I(f's_mov_b32 s{d+3}, 0x00020000')
    I(f'v_bfe_u32 v{T[0]}, v{vLANE}, 3, 2')
    I(f'v_lshrrev_b32 v{T[1]}, 5, v{vLANE}')
    I(f'v_lshl_add_u32 v{T[0]}, v{T[1]}, 3, v{T[0]}')
    I(f'v_and_b32 v{T[1]}, 7, v{vLANE}')
    I(f'v_lshlrev_b32 v{T[2]}, 1, v{T[4]}')
    I(f'v_xor_b32 v{T[1]}, v{T[1]}, v{T[2]}')
    I(f'v_lshlrev_b32 v{T[1]}, 4, v{T[1]}')
    I(f'v_lshl_add_u32 v{T[1]}, v{T[0]}, 10, v{T[1]}')
    I(f's_mul_i32 s45, s39, {448*1024}')
    I('s_lshl_b32 s46, s36, 7')
    I('s_add_u32 s45, s45, s46')
    I('s_lshl_b32 s46, s38, 14')
    I('s_add_u32 s45, s45, s46')
    I('s_lshl_b32 s46, s39, 13')
    I('s_lshl_b32 s47, s38, 10')
    I('s_add_u32 s46, s46, s47')
    I('s_mul_i32 s49, s40, 114688')
    I(f's_mul_i32 s50, s39, {28*1024}')
    I('s_add_u32 s49, s49, s50')
    I(f's_add_u32 s49, s49, {WS_T2:#x}')
    ROT = X.get('rot', (0, 2))
    I(f's_mul_i32 s54, s36, {ROT[0]}')
    I(f's_mul_i32 s55, s37, {ROT[1]}')
    I('s_add_u32 s54, s54, s55')
    I('s_mul_i32 s55, s54, 37'); I('s_lshr_b32 s55, s55, 8'); I('s_mul_i32 s55, s55, 7'); I('s_sub_u32 s54, s54, s55')
    def round_loads(R):
        L = []
        for j in range(4):
            pre = 's_lshl_b32 s55, s54, 16\ns_add_u32 s55, s55, s45\n' if j == 0 else ''
            L.append(pre + f's_add_u32 m0, s46, {(R % NS)*32768 + j*2048}\ns_add_u32 s48, s55, {(32*(j >> 1) + 4*(j & 1))*1024}\nbuffer_load_dwordx4 v{T[1]}, s[12:15], s48 offen lds')
        L.append('s_lshl_b32 s50, s54, 12\ns_add_u32 s50, s50, s49\ns_add_u32 s54, s54, 1\ns_cmp_eq_u32 s54, 7\ns_cselect_b32 s54, 0, s54')
        for j in range(4):
            ks = 4*R + j
            L.append(f'buffer_load_dwordx4 v[{BF+4*ks}:{BF+4*ks+3}], v{vBL}, s[24:27], s50 offen offset:{2048*(j >> 1) + (1024 if N16 else 256)*(j & 1)}')
        return L
    I('s_waitcnt lgkmcnt(0)')
    st.first()
    PR = X.get('pr', 0)
    for R in range(LA):
        rl = round_loads(R)
        if PR == 1: I(f's_setprio {3 - R}')
        if PR == 2:
            I(f's_setprio {3 - 2*R}')
            for s in rl[:4]: I(s)
            I(f's_setprio {2 - 2*R}')
            for s in rl[4:]: I(s)
            continue
        for s in rl: I(s)
    if PR: I('s_setprio 0')
    I(f'v_lshrrev_b32 v{T[6]}, 2, v{vLANE}')
    I(f'v_lshlrev_b32 v{T[6]}, 7, v{T[6]}')
    I(f'v_and_b32 v{T[7]}, 3, v{vLANE}')
    I(f'v_lshl_add_u32 v{T[6]}, v{T[7]}, 3, v{T[6]}')
    I('s_lshl_b32 s50, s39, 13')
    I(f'v_add_u32 v{T[6]}, s50, v{T[6]}')
    I(f'v_bfe_u32 v{T[7]}, v{vLANE}, 3, 2')
    for nt in range(4):
        I(f'v_xor_b32 v{T[5]}, {nt}, v{T[7]}')
        I(f'v_lshl_add_u32 v{AD[nt]}, v{T[5]}, 5, v{T[6]}')
    RED = 65536
    I(f'v_xor_b32 v{T[4]}, v{T[4]}, v{T[3]}')
    I('s_lshl_b32 s50, s34, 13')
    I(f's_add_u32 s50, s50, {RED}')
    I(f'v_lshl_add_u32 v{T[3]}, v{T[3]}, 8, s50')
    for nt in range(4):
        I(f'v_xor_b32 v{T[5]}, {4*nt}, v{T[4]}')
        I(f'v_lshl_add_u32 v{WR[nt]}, v{T[5]}, 4, v{T[3]}')
    def epi_loads():
        L = []
        L.append('s_lshl_b32 s51, s40, 15')
        L.append('s_lshl_b32 s52, s36, 12')
        L.append('s_add_u32 s51, s51, s52')
        L.append(f'v_lshrrev_b32 v{T[3]}, 3, v{vLANE}\ns_lshl_b32 s52, s39, 3\nv_add_u32 v{T[5]}, s52, v{T[3]}')
        L.append(f'v_and_b32 v{T[4]}, 1, v{vLANE}\nv_lshl_add_u32 v{T[3]}, v{T[4]}, 5, v{T[5]}\nv_lshlrev_b32 v{T[3]}, 4, v{T[3]}')
        L.append(f'v_bfe_u32 v{T[4]}, v{vLANE}, 1, 2\nv_lshl_add_u32 v{vEP}, v{T[4]}, 10, v{T[3]}')
        L.append(f's_add_u32 s52, s51, {WS_X1:#x}')
        L.append(f'buffer_load_dwordx4 v[{X1R}:{X1R+3}], v{vEP}, s[24:27], s52 offen')
        L.append(f's_add_u32 s52, s51, {WS_X1B:#x}')
        L.append(f'buffer_load_dwordx4 v[{X1BR}:{X1BR+3}], v{vEP}, s[24:27], s52 offen')
        L.append(f'v_and_b32 v{T[3]}, 7, v{vLANE}')
        L.append(f'v_lshlrev_b32 v{T[4]}, 1, v{T[3]}\nv_and_b32 v{T[6]}, 15, v{T[5]}\nv_xor_b32 v{T[4]}, v{T[4]}, v{T[6]}')
        L.append(f's_lshl_b32 s52, s38, 13\ns_add_u32 s52, s52, {RED}\nv_lshl_add_u32 v{T[5]}, v{T[5]}, 8, s52\nv_lshl_add_u32 v{vRD[0]}, v{T[4]}, 4, v{T[5]}\nv_xor_b32 v{vRD[1]}, 16, v{vRD[0]}')
        L.append(f'v_lshlrev_b32 v{T[3]}, 5, v{T[3]}')
        L.append('s_lshl_b32 s52, s36, 8')
        L.append(f's_add_u32 s52, s52, {WS_MOD + 3*2048:#x}')
        L.append(f'buffer_load_dwordx4 v[{GB}:{GB+3}], v{T[3]}, s[24:27], s52 offen')
        L.append(f'buffer_load_dwordx4 v[{GB+4}:{GB+7}], v{T[3]}, s[24:27], s52 offen offset:16')
        return L
    def rd(R, jj, nt, slot):
        L = []
        off = ((R % NS) % 2) * 32768 + jj*4096
        for t in range(2):
            d = AFR + 4*slot + 2*t
            L.append(f'ds_read_b64_tr_b16 v[{d}:{d+1}], v{AD[nt]} offset:{off + t*2048}')
        return L
    def adv(R):
        cur = ((R-1) % NS) // 2; new = (R % NS) // 2
        d = (new - cur) * 65536
        if d == 0: return []
        if d > 0: return [f'v_add_u32 v{AD[n]}, {d}, v{AD[n]}' for n in range(4)]
        return [f'v_subrev_u32 v{AD[n]}, {-d}, v{AD[n]}' for n in range(4)]
    issued = [8]*LA
    st()
    for R in range(NR):
        allowed = 4 + sum(issued[R+1:])
        I(f's_waitcnt vmcnt({allowed})')
        I('s_barrier')
        side = []
        if R + LA < NR:
            side = round_loads(R+LA); issued.append(8)
        elif R + LA == NR:
            side = epi_loads(); issued.append(4)
        seq = [(jj, nt) for jj in range(2) for nt in range(4)]
        main = []
        PRE = X.get('pre', 4)
        for i in range(PRE):
            main += rd(R, seq[i][0], seq[i][1], i)
        for i, (jj, nt) in enumerate(seq):
            for rq in range(2):
                b = ACC + 4*(4*rq + nt)
                ks = 4*R + 2*jj + rq
                cc = '0' if (R == 0 and jj == 0) else f'v[{b}:{b+3}]'
                main.append(f'v_mfma_f32_16x16x32_bf16 v[{b}:{b+3}], v[{AFR+4*i}:{AFR+4*i+3}], v[{BF+4*ks}:{BF+4*ks+3}], {cc}')
                if i + PRE < 8:
                    main.append(rd(R, seq[i+PRE][0], seq[i+PRE][1], i+PRE)[rq])
                if R == NR - 1 and jj == 1 and nt > 0:
                    pb = ACC + 4*(4*rq + nt - 1)
                    main.append(f'ds_write_b128 v{WR[nt-1]}, v[{pb}:{pb+3}] offset:{4096*rq}')
        if R + 1 < NR: main += adv(R+1)
        for s in merge(main, side): I(s)
    st()
    for rq in range(2):
        pb = ACC + 4*(4*rq + 3)
        I(f'ds_write_b128 v{WR[3]}, v[{pb}:{pb+3}] offset:{4096*rq}')
    I('s_mov_b32 s52, 0xffff0000')
    U = BF
    for e in range(8):
        if e % 2 == 0:
            I(f'v_lshlrev_b32 v{U+e}, 16, v{X1BR+e//2}'); I(f'v_lshlrev_b32 v{U+8+e}, 16, v{X1R+e//2}')
        else:
            I(f'v_and_b32 v{U+e}, s52, v{X1BR+e//2}'); I(f'v_and_b32 v{U+8+e}, s52, v{X1R+e//2}')
    I(f'v_lshrrev_b32 v{T[1]}, 3, v{vLANE}')
    I(f'v_lshlrev_b32 v{T[1]}, 10, v{T[1]}')
    I(f'v_and_b32 v{T[2]}, 7, v{vLANE}')
    I(f'v_lshl_add_u32 v{T[1]}, v{T[2]}, 4, v{T[1]}')
    I('s_lshl_b32 s50, s40, 15')
    I('s_lshl_b32 s51, s36, 7')
    I('s_add_u32 s50, s50, s51')
    I('s_lshl_b32 s51, s39, 13')
    I('s_add_u32 s50, s50, s51')
    I('s_waitcnt lgkmcnt(0)')
    I('s_barrier')
    for q in range(4):
        for h in range(2):
            r = AFR + 8*q + 4*h
            I(f'ds_read_b128 v[{r}:{r+3}], v{vRD[h]} offset:{16384*q}')
    P = lambda r: f'v[{r}:{r+1}]'
    for e in range(0, 8, 2): I(f'v_pk_add_f32 {P(AFR+e)}, {P(AFR+e)}, {P(AFR+8+e)}')
    for e in range(0, 8, 2): I(f'v_pk_add_f32 {P(AFR+16+e)}, {P(AFR+16+e)}, {P(AFR+24+e)}')
    for e in range(0, 8, 2): I(f'v_pk_add_f32 {P(AFR+e)}, {P(AFR+e)}, {P(AFR+16+e)}')
    for e in range(0, 8, 2): I(f'v_pk_add_f32 {P(AFR+e)}, {P(AFR+e)}, {P(U+e)}')
    for e in range(0, 8, 2): I(f'v_pk_fma_f32 {P(AFR+e)}, {P(AFR+e)}, {P(GB+e)}, {P(U+8+e)}')
    for j in range(4):
        I(f'v_cvt_pk_bf16_f32 v{ACC+j}, v{AFR+2*j}, v{AFR+2*j+1}')
    I(f'buffer_store_dwordx4 v[{ACC}:{ACC+3}], v{T[1]}, s[8:11], s50 offen')
    st.flush(24, 34, 208, vLANE)
    a.label('K5_end')
    I('s_endpgm')
    print("K5 instrs", a.ninstr, "nops", a.nnop)
    return a.text(), kernel_desc(name, 224, 96)
```

```python
import re
from warm import insn_sizes
def addrs(path):
    L = open(path).read().split('\n')
    ins = insn_sizes(path)
    info = {}; j = 0
    for i, l in enumerate(L):
        if re.match(r'^k\d_kernel:', l):
            while not ins[j][0].startswith('s_cmp'): j += 1
        if l.startswith('    ') and not l.strip().startswith(('.', ';')) and '.amdhsa' not in l:
            mn = l.split()[0]
            while not ins[j][0].startswith(mn.replace('_e32','').replace('_e64','')[:12]): j += 1
            info[i] = ins[j][1]; j += 1
    return L, info
def place(txt, org):
    txt = txt.replace('.text\n.globl k0_kernel\n', '.text\n.p2align 12\nTBASE:\n.globl k0_kernel\n', 1)
    for k, o in org.items():
        txt = txt.replace(f'.globl k{k}_kernel\n', f'.fill ({o} - (. - TBASE))/4, 4, 0xBF810000\n.globl k{k}_kernel\n', 1)
    return txt
def ok_spot(L, i, prev):
    l = L[i]
    return 'exec' not in prev and 'exec' not in l and 'm0' not in prev and not L[i-1].endswith('_kernel:') and 's_cbranch' not in l
def layout(path, org, rare_end=False, pages=(), lines=(), line=128, nw=4, lrange=None):
    txt = open(path).read()
    if rare_end:
        i0 = txt.index('K1_fb:\n'); i1 = txt.index('.globl k2_kernel')
        rare = txt[i0:i1]; txt = txt[:i0] + txt[i1:]
        txt = txt.replace('CODE_END:', rare + 'CODE_END:')
    txt = place(txt, org)
    open(path, 'w').write(txt)
    if not pages and not lines: return
    L, info = addrs(path)
    cur = None; seen = set(); ppads = []; lpads = []; prev = ''; shift = 0; nextl = 0
    for i, l in enumerate(L):
        m = re.match(r'^k(\d)_kernel:', l)
        if m: cur = int(m.group(1)); shift = 0; k0a = None
        if l.startswith('K1_fb:') or l.startswith('CODE_END'): cur = None
        if l.startswith('K1_end:'): seen.add(info[i-1] >> 12)
        if i in info and cur is not None:
            a = info[i] + shift
            if k0a is None: k0a = a; nextl = a + 256
            if cur in pages and (a >> 12) not in seen and 64 <= (a & 0xfff) < 0xf00 and ok_spot(L, i, prev):
                seen.add(a >> 12); ppads.append(i); shift += 4
            elif cur in lines and a >= nextl and ok_spot(L, i, prev) and len(lpads) < 32*nw:
                lpads.append(i); shift += 4; nextl = (a // line + 1) * line
        if i in info: prev = l
    out = []
    for i, l in enumerate(L):
        if i in ppads:
            n = ppads.index(i); nx = n + nw
            out.append(f'TP{n}:'); out.append('    s_cbranch_execz ' + (f'TP{nx}' if nx < len(ppads) else 'K1_end'))
        if i in lpads:
            n = lpads.index(i)
            out.append(f'TL{n}:'); out.append('    s_cbranch_execz ' + (f'TP{n % nw}' if (n % nw) < len(ppads) else 'K1_end'))
        out.append(l)
    txt = '\n'.join(out)
    if lpads:
        lg = nw.bit_length() - 1
        disp = [f'    s_cmp_ge_u32 s24, {nw}', '    s_cbranch_scc1 K1_end', '    s_lshr_b32 s3, s2, 3', f'    s_lshl_b32 s3, s3, {lg}', '    s_add_u32 s3, s3, s24', '    s_mov_b64 exec, 0',
                '    s_lshl_b32 s3, s3, 2', '    s_getpc_b64 s[4:5]', '    s_add_u32 s4, s4, s3', '    s_addc_u32 s5, s5, 0', '    s_add_u32 s4, s4, 20', '    s_addc_u32 s5, s5, 0', '    s_setpc_b64 s[4:5]']
        for k in range(32*nw): disp.append('    s_branch ' + (f'TL{k}' if k < len(lpads) else (f'TP{k % nw}' if (k % nw) < len(ppads) else 'K1_end')))
    else:
        disp = ['    s_mov_b64 exec, 0'] + sum([[f'    s_cmp_eq_u32 s24, {w}', f'    s_cbranch_scc1 TP{w}'] for w in range(min(nw, len(ppads)))], [])
    txt = txt.replace('K1_end:\n', '\n'.join(disp) + '\nK1_end:\n', 1)
    open(path, 'w').write(txt)
    print('page pads', len(ppads), 'line pads', len(lpads))
```

```python
import re, sys
from gen import build
from warm5 import layout, addrs
def sizes(path):
    L, info = addrs(path)
    cur = None; st = {}; en = {}
    for i, l in enumerate(L):
        m = re.match(r'^k(\d)_kernel:', l)
        if m: cur = int(m.group(1))
        if l.startswith('K1_fb:') or l.startswith('CODE_END'): cur = None
        if i in info and cur is not None:
            st.setdefault(cur, info[i]); en[cur] = info[i] + 4
    return {k: en[k] - st[k] for k in st}
def final(path, k5=0xd500, k1=0x1400, extra={}, **kw):
    build(path, **kw)
    sz = sizes(path)
    O = {5: k5}
    for k in (4, 3, 2):
        O[k] = (O[k+1] - sz[k] - 12 - extra.get(k, 0)) // 256 * 256
    O[1] = k1; O[0] = (k1 - sz[0]) // 256 * 256
    assert O[1] + sz[1] + 64 <= O[2], (O, sz)
    layout(path, org=O, rare_end=True, pages=(2,3,4,5))
    print({k: hex(v) for k, v in O.items()}, {k: hex(O[k+1] - O[k] - sz[k]) for k in (0,2,3,4)})
if __name__ == '__main__':
    final(sys.argv[1])
```

```python
from common import *

SLOT = 32768
KV_SLOT = {16: 1, 17: 2, 18: 3, 19: 4, 20: 0, 21: 1, 22: 2, 23: 3}
def slot_of(c): return KV_SLOT[c] * SLOT

def interleave(main, side):
    out = []
    n = len(main); m = len(side); k = 0
    for i, x in enumerate(main):
        out.append(x)
        tgt = (m * (i + 1)) // n
        while k < tgt:
            out.append(side[k]); k += 1
    return out

DEF_OLD = {'late':'', 'early':'u m x0 a0 v a1', 'post':'a2 a3', 'after':{0:'a4 a5', 1:'x1', 3:'k'}, 'sl':(('x2',4),('x3',10),('f',12)), 'mq':((1,4,3),(2,10,4),(3,17,4)), 'bars':(7,14,22), 'fin':24, 'late0':8, 'r16':1}
DEF = {'late':'a0 a1 v', 'early':'P3 m x0 P2 x1 x2 x3 P1', 'mid':'u', 'milp':1, 'late1':'a2 a3', 'post':'a4 a5', 'after':{3:'k'}, 'sl':(('f',12),), 'mq':(), 'bars':(), 'fin':24, 'late0':8, 'r16':1,
       'mall':4, 'alate':1, 'xm':2, 'xi':1}
def gen_k1p(name, stamps=False, X=(), offs=106.0):
    X = dict(DEF, **X) if isinstance(X, dict) else dict(DEF, **{k: True for k in X})
    a = Asm()
    OFFS = f'{f32bits(-float(offs)):#x}'
    st = VStamper(a, stamps, 1, 0)
    kernel_header(a, name)
    I = a.I
    M16 = X.get('m16', '')
    tog = {}
    def MF(ph, d, A, B, first, A2=None, B2=None):
        if ph not in M16.split():
            cc = '0' if first else f'v[{d}:{d+15}]'
            return f'v_mfma_f32_32x32x16_bf16 v[{d}:{d+15}], v[{A}:{A+3}], v[{B}:{B+3}], {cc}'
        if first: tog[d] = 0
        t = tog[d]; tog[d] += 1
        L = []
        for i, (x, y) in enumerate(((A, B), (A2 if A2 is not None else A, B2 if B2 is not None else B))):
            dd = d + 8*(t & 1) + 4*i
            cc = '0' if t < 2 else f'v[{dd}:{dd+3}]'
            L.append(f'v_mfma_f32_16x16x32_bf16 v[{dd}:{dd+3}], v[{x}:{x+3}], v[{y}:{y+3}], {cc}')
        return '\n'.join(L)
    vD, vD2 = 1, 2
    vB = [3, 4]
    vA = [5, 6, 7, 8]
    vKA = [9,10,11,12,13,14,15,16]
    vT0, vT1, vT2, vT3 = 17,18,19,20
    vMX = 21; vNEGM = 22; vL = [23,24,25,26]
    vLANE16 = 27
    vKD = [28,29,30,31]
    ACC = 160
    AF = 224
    BFB = 240
    vHW = vT0
    sK, sWQ, sWO, sWS, sTC = 4, 8, 12, 16, 20
    sW, sG, sRB, sHD, sRH, sW4K, sBQ, sBK, sBO, sBV = 24, 25, 26, 27, 28, 29, 30, 31, 32, 33
    t0, t1, t2 = 34, 35, 3
    MODS = 36
    I('s_cmp_ge_u32 s2, 256')
    I('s_cbranch_scc1 K1_end')
    I(f's_load_dwordx2 s[{sWS}:{sWS+1}], s[0:1], {KA_WS}')
    I(f's_load_dwordx2 s[{sWQ}:{sWQ+1}], s[0:1], {KA_WQ}')
    I(f's_load_dwordx2 s[{sK}:{sK+1}], s[0:1], {KA_K}')
    I(f's_load_dwordx2 s[{sWO}:{sWO+1}], s[0:1], {KA_WO}')
    VTR = X.get('vtr', 0)
    sV = 76
    if VTR: I(f's_load_dwordx2 s[{sV}:{sV+1}], s[0:1], {KA_V}')
    if 'xfake' in X:
        I(f's_load_dwordx2 s[80:81], s[0:1], {KA_X}')
        I(f's_mov_b32 s82, {2048*1024}'); I('s_mov_b32 s83, 0x00020000')
    I('v_and_b32 v21, 63, v0')
    I('v_lshrrev_b32 v18, 6, v0')
    I(f'v_lshlrev_b32 v{vLANE16}, 4, v21')
    I(f'v_readfirstlane_b32 s{sW}, v18')
    if X.get('xm'):
        lg_ = X['xm']
        I(f's_and_b32 s{sG}, s2, {(7 >> lg_) << lg_}')
        I(f's_bfe_u32 s{t0}, s2, {(lg_ << 16) | 3:#x}')
        I(f's_or_b32 s{sG}, s{sG}, s{t0}')
        I(f's_and_b32 s{sRB}, s2, {(1 << lg_) - 1}')
        I(f's_lshl_b32 s{sRB}, s{sRB}, {5 - lg_}')
        I(f's_lshr_b32 s{t0}, s2, {3 + lg_}')
        I(f's_add_u32 s{sRB}, s{sRB}, s{t0}')
    elif X.get('xmap'):
        I(f's_bfe_u32 s{sG}, s2, 0x30003')
        I(f's_and_b32 s{sRB}, s2, 7')
        I(f's_lshl_b32 s{sRB}, s{sRB}, 2')
        I(f's_lshr_b32 s{t0}, s2, 6')
        I(f's_add_u32 s{sRB}, s{sRB}, s{t0}')
    else:
        I(f's_and_b32 s{sG}, s2, 7')
        I(f's_lshr_b32 s{sRB}, s2, 3')
    R16 = X.get('r16', 0)
    if R16:
        I('v_bfe_u32 v22, v21, 3, 2')
        I('v_lshrrev_b32 v23, 5, v21')
        I('v_lshl_add_u32 v22, v23, 3, v22')
        I('v_and_b32 v23, 7, v21')
        I('v_bfe_u32 v24, v21, 4, 2')
        I('v_lshlrev_b32 v24, 1, v24')
    else:
        I('v_lshrrev_b32 v22, 3, v21')
        I('v_and_b32 v23, 7, v21')
        I('v_bfe_u32 v24, v21, 4, 1')
        I('v_lshlrev_b32 v24, 2, v24')
    I('v_xor_b32 v23, v23, v24')
    I('v_lshlrev_b32 v23, 4, v23')
    I(f'v_lshl_add_u32 v{vD}, v22, 13, v23')
    I(f'v_lshl_add_u32 v{vD2}, v22, 10, v23')
    I('v_lshrrev_b32 v18, 5, v21')
    I('v_lshrrev_b32 v19, 4, v21')
    I('v_lshlrev_b32 v20, 9, v19')
    I('v_and_b32 v25, 7, v21')
    I('v_lshl_add_u32 v20, v25, 3, v20')
    I('v_bfe_u32 v25, v21, 3, 1')
    I('v_xor_b32 v26, 1, v25')
    I('v_lshl_add_u32 v20, v26, 11, v20')
    for d, n in ((sWS, WS_SIZE), (sWQ, 512*8192), (sK, 8*2048*256), (sWO, 4096*1024)) + (((sV, 8*2048*256),) if VTR else ()):
        I(f's_mov_b32 s{d+2}, {n:#x}')
        I(f's_mov_b32 s{d+3}, 0x00020000')
    I(f's_lshr_b32 s{sHD}, s{sW}, 1')
    I(f's_and_b32 s{sRH}, s{sW}, 1')
    I(f's_lshl_b32 s{sW4K}, s{sW}, 12')
    I(f's_lshl_b32 s{t0}, s{sW}, 7')
    I(f's_lshl_b32 s{sBQ}, s{sG}, 10')
    I(f's_add_u32 s{sBQ}, s{sBQ}, s{t0}')
    I(f's_lshl_b32 s{sBK}, s{sG}, 19')
    I(f's_add_u32 s{sBO}, s{sBK}, s{t0}')
    I(f's_add_u32 s{sBK}, s{sBK}, s{sW4K}')
    I(f's_add_u32 s{sBK}, s{sBK}, {1536*256}')
    if not VTR:
        I(f's_lshl_b32 s{sBV}, s{sG}, 17')
        I(f's_add_u32 s{sBV}, s{sBV}, s{sW4K}')
        I(f's_add_u32 s{sBV}, s{sBV}, {WS_VP:#x}')
    I(f's_lshr_b32 s{t0}, s{t0}, 1')
    I(f's_add_u32 s{t0}, s{t0}, {WS_GP:#x}')
    I(f's_lshl_b32 s{t1}, s{sRB}, 16')
    I(f's_lshl_b32 s{t2}, s{sW}, 10')
    I(f's_add_u32 s{t1}, s{t1}, s{t2}')
    I(f's_add_u32 s{t2}, s{t2}, {3*SLOT}')
    I(f'v_add_u32 v{vHW}, s{t2}, v{vLANE16}')
    I('s_waitcnt lgkmcnt(0)')
    st.first()
    MP = 82
    def mploads():
        for p in range(4):
            I(f'buffer_load_dwordx2 v[{MP+2*p}:{MP+2*p+1}], v20, s[{sWS}:{sWS+3}], s{t0} offen')
            if p < 3: I(f's_add_u32 s{t0}, s{t0}, {GP_STRIDE}')
    if 'm' not in X['early'].split(): mploads()
    XR = 32
    def xnload(j):
        L = []
        for rh in range(2):
            L.append(f's_add_u32 s{t2}, s{t1}, {8192*j + 32768*rh}')
            L.append(f'buffer_load_dwordx4 v[{XR+8*j+4*rh}:{XR+8*j+4*rh+3}], v{vLANE16}, ' + (f's[{sWS}:{sWS+3}]' if 'xfake' not in X else 's[80:83]') + f', s{t2} offen' + (' nt' if 'xnt' in X else ''))
        return L
    FP = 90
    def finload():
        FO = 8192 if X.get('c3') == 2 else 0
        L = [f's_lshl_b32 s36, s2, 8', f's_add_u32 s37, s36, {WS_GP + 4096 + FO:#x}', f's_add_u32 s36, s36, {WS_MOD + FO:#x}',
             f's_lshl_b32 s38, s{sW}, 8', 's_add_u32 s38, s38, s2', f's_cmp_ge_u32 s38, {(68, 40, 8)[X.get("c3", 0)]}\ns_cselect_b32 s38, 0x10000000, 0',
             's_add_u32 s36, s36, s38', 's_add_u32 s37, s37, s38', f'v_lshrrev_b32 v20, 2, v{vLANE16}']
        for p in range(4):
            L.append(f'buffer_load_dword v{FP+p}, v20, s[{sWS}:{sWS+3}], s37 offen')
            if p < 3: L.append(f's_add_u32 s37, s37, {GP_STRIDE}')
        return L
    finops = ['s_lshr_b32 s38, s2, 3\ns_cmp_eq_u32 s38, 2\ns_cselect_b32 s38, 1.0, 0', 's_cmp_lt_u32 s2, 32\ns_cselect_b64 s[40:41], -1, 0',
              f'v_add_f32 v{FP}, v{FP}, v{FP+1}', f'v_add_f32 v{FP+2}, v{FP+2}, v{FP+3}', f'v_add_f32 v{FP}, v{FP}, v{FP+2}',
              f'v_cvt_pk_bf16_f32 v{FP+1}, 0, v{FP}', f'v_add_f32 v{FP+1}, s38, v{FP+1}', f'v_cvt_pk_bf16_f32 v{FP+1}, 0, v{FP+1}',
              f'v_cndmask_b32 v{FP}, v{FP}, v{FP+1}, s[40:41]', f'buffer_store_dword v{FP}, v20, s[{sWS}:{sWS+3}], s36 offen']
    if X.get('c3') == 2: finops = finops[2:5] + finops[-1:]
    EX2 = X.get('ex2', 0)
    RING = {0: [0,0,1,1,2,2] if not EX2 else [1,1,2,2,0,0,4,4], 1: [4,4,0,0,1,1]}
    def ent(ph, kk):
        if ph == 0 and EX2: return kk if kk < 8 else (kk - 2) % 6
        return kk % 6
    def nxt_dma(ph, k):
        if ph == 0 and EX2 and k < 8: return k + 8 if k < 6 else None
        return k + 6 if k + 6 < 32 else None
    vAX = [23, 24]
    def wo_row(kk): return ((kk >> 2) & 3)*128 + ((kk >> 4)*4 + (kk & 3))*16
    def a_dma(ph, kk):
        e = ent(ph, kk)
        lds = RING[ph][e]*SLOT + (e & 1)*2048
        if ph == 0:
            so = [kk*16*8192, kk*16*8192 + 8*8192 - 1024]; sb = sBQ; srd_ = sWQ; v = vD
        else:
            so = [wo_row(kk)*1024, wo_row(kk)*1024 + 7168]; sb = sBO; srd_ = sWO; v = vD2
            if 'wosmall' in X: so = [(kk % 8)*16384, (kk % 8)*16384 + 7168]
        if R16:
            r0_ = (32*(kk >> 1) if ph == 0 else wo_row(kk & ~1)) + 4*(kk & 1)
            rs_ = 8192 if ph == 0 else 1024
            so = [r0_*rs_, (r0_ + 16)*rs_ - 1024]
        h0 = f's_add_u32 m0, s{sW4K}, {lds}\ns_add_u32 s{t2}, s{sb}, {so[0]}\nbuffer_load_dwordx4 v{v}, s[{srd_}:{srd_+3}], s{t2} offen lds ; W:E{e}'
        h1 = f's_add_u32 s{t2}, s{sb}, {so[1]}\nbuffer_load_dwordx4 v{v}, s[{srd_}:{srd_+3}], s{t2} offen offset:1024 lds ; W:E{e}'
        return [h0, h1]
    def kv_dma(c, js=(0,1,2,3), tag=None):
        L = [f's_add_u32 m0, s{sW4K}, {slot_of(c)}']
        if c % 2 == 0:
            L.append(f's_add_u32 s{t2}, s{sBK}, {((c-16)//2)*32768}')
            for j in js:
                L.append(f'buffer_load_dwordx4 v{vKD[j]}, s[{sK}:{sK+3}], s{t2} offen offset:{1024*j} lds ; W:C{c}' + (f' W:{tag}' if tag else ''))
        elif VTR:
            L.append(f's_add_u32 s{t2}, s{sBK}, {((c-17)//2)*32768}')
            for j in js:
                L.append(f'buffer_load_dwordx4 v{vD}, s[{sV}:{sV+3}], s{t2} offen offset:{1024*j} lds ; W:C{c}' + (f' W:{tag}' if tag else ''))
        else:
            L.append(f's_add_u32 s{t2}, s{sBV}, {((c-17)//2)*32768}')
            for j in js:
                L.append(f'buffer_load_dwordx4 v{vLANE16}, s[{sWS}:{sWS+3}], s{t2} offen offset:{1024*j} lds ; W:C{c}' + (f' W:{tag}' if tag else ''))
        return L
    def touch_ops(kind):
        L = []
        if 'notouch' in X or ('no' + kind) in X: return L
        if kind == 'wo' and X.get('wox'):
            lg_ = X['xm']
            L.append(f'v_lshlrev_b32 v{vT2}, {1 + lg_}, v{vLANE16}')
            L.append(f's_lshl_b32 s{t0}, s{sG}, 19')
            L.append(f's_and_b32 s{t1}, s{sRB}, {(32 >> lg_) - 1}\ns_lshl_b32 s{t1}, s{t1}, {14 + lg_}')
            L.append(f's_add_u32 s{t0}, s{t0}, s{t1}')
            L.append(f's_lshl_b32 s{t1}, s{sW}, {11 + lg_}')
            L.append(f's_add_u32 s{t0}, s{t0}, s{t1}')
            L.append(f'buffer_load_dword v{vT2}, v{vT2}, s[{sWO}:{sWO+3}], s{t0} offen')
        elif kind == 'wo':
            L.append(f'v_lshlrev_b32 v{vT2}, 1, v{vLANE16}')
            L.append(f's_lshl_b32 s{t0}, s{sG}, 19')
            L.append(f's_lshl_b32 s{t1}, s{sRB}, 14')
            L.append(f's_add_u32 s{t0}, s{t0}, s{t1}')
            L.append(f's_lshl_b32 s{t1}, s{sW}, 11')
            L.append(f's_add_u32 s{t0}, s{t0}, s{t1}')
            L.append(f'buffer_load_dword v{vT2}, v{vT2}, s[{sWO}:{sWO+3}], s{t0} offen')
        elif X.get('wbmode', 1) == 0:
            d = sTC
            L.append(f'v_lshlrev_b32 v{vT2}, 3, v{vLANE16}')
            L.append(f's_cmp_eq_u32 s{sHD}, 1\ns_cselect_b32 s{d}, s58, s56\ns_cselect_b32 s{d+1}, s59, s57')
            L.append(f's_cmp_eq_u32 s{sHD}, 2\ns_cselect_b32 s{d}, s60, s{d}\ns_cselect_b32 s{d+1}, s61, s{d+1}')
            L.append(f's_cmp_eq_u32 s{sHD}, 3\ns_cselect_b32 s{d}, s62, s{d}\ns_cselect_b32 s{d+1}, s63, s{d+1}')
            L.append(f's_mov_b32 s{d+2}, {512*1024}\ns_movk_i32 s{t0}, 2048\ns_cmp_ge_u32 s{sHD}, 2\ns_cselect_b32 s{d+2}, {1792*1024}, s{d+2}\ns_cselect_b32 s{t0}, 7168, s{t0}')
            L.append(f's_mov_b32 s{d+3}, 0x00020000')
            L.append(f's_mul_i32 s{t0}, s{t0}, s2')
            L.append(f'buffer_load_dword v{vT2}, v{vT2}, s[{d}:{d+3}], s{t0} offen')
        else:
            d = sTC
            L.append(f'v_lshlrev_b32 v{vT2}, 3, v{vLANE16}')
            L.append(f's_cmp_eq_u32 s{sHD}, 1\ns_cselect_b32 s{d}, s58, s{sWS}\ns_cselect_b32 s{d+1}, s59, s{sWS+1}\ns_cselect_b32 s{d+2}, {512*1024}, s{sWS+2}\ns_cselect_b32 s{t1}, 0, {WS_W1P:#x}')
            L.append(f's_cmp_eq_u32 s{sHD}, 2\ns_cselect_b32 s{d}, s60, s{d}\ns_cselect_b32 s{d+1}, s61, s{d+1}')
            L.append(f's_cmp_eq_u32 s{sHD}, 3\ns_cselect_b32 s{d}, s62, s{d}\ns_cselect_b32 s{d+1}, s63, s{d+1}')
            L.append((f's_lshr_b32 s{t0}, s2, 3\ns_lshl_b32 s{t0}, s{t0}, 14' if X.get('xi') else f's_lshl_b32 s{t0}, s{sRB}, 14') + f'\ns_add_u32 s{t1}, s{t1}, s{t0}\ns_lshl_b32 s{t0}, s{sRH}, 13\ns_add_u32 s{t1}, s{t1}, s{t0}')
            L.append(f's_mul_i32 s{t0}, s2, 7168\ns_cmp_ge_u32 s{sHD}, 2\ns_cselect_b32 s{d+2}, {1792*1024}, s{d+2}\ns_cselect_b32 s{t0}, s{t0}, s{t1}')
            L.append(f's_mov_b32 s{d+3}, 0x00020000')
            L.append(f'buffer_load_dword v{vT2}, v{vT2}, s[{d}:{d+3}], s{t0} offen')
        return L
    def pf_ops(kind):
        d = sTC
        L = []
        if kind == 'w4':
            L.append(f'v_lshrrev_b32 v{vT2}, 4, v{vLANE16}\nv_min_u32 v{vT2}, 55, v{vT2}\nv_lshlrev_b32 v{vT2}, 7, v{vT2}')
            L.append(f's_mov_b32 s{d}, s62\ns_mov_b32 s{d+1}, s63\ns_mov_b32 s{d+2}, {1792*1024}\ns_mov_b32 s{d+3}, 0x00020000')
            L.append(f's_lshl_b32 s{t0}, s{sRB}, 3\ns_add_u32 s{t0}, s{t0}, s{sW}\ns_mul_i32 s{t0}, s{t0}, 7168')
        elif kind == 'w3':
            L.append(f'v_bfe_u32 v{vT2}, v{vLANE16}, 4, 5\nv_min_u32 v{vT2}, 13, v{vT2}\nv_lshlrev_b32 v{vT2}, 7, v{vT2}')
            L.append(f'v_lshrrev_b32 v{vT1}, 9, v{vLANE16}\nv_mul_u32_u24 v{vT1}, 3584, v{vT1}\nv_add_u32 v{vT2}, v{vT2}, v{vT1}')
            L.append(f's_mov_b32 s{d}, s60\ns_mov_b32 s{d+1}, s61\ns_mov_b32 s{d+2}, {512*3584}\ns_mov_b32 s{d+3}, 0x00020000')
            L.append(f's_lshl_b32 s{t0}, s{sRB}, 3\ns_add_u32 s{t0}, s{t0}, s{sW}\ns_mul_i32 s{t0}, s{t0}, {2*3584}\ns_and_b32 s{t1}, s{sG}, 1\ns_mul_i32 s{t1}, s{t1}, 1792\ns_add_u32 s{t0}, s{t0}, s{t1}')
        L.append(f'buffer_load_dword v{vT2}, v{vT2}, s[{d}:{d+3}], s{t0} offen')
        return L
    def start_touch():
        if 'notouch' in X: return
        I('v_bfe_u32 v22, v21, 3, 1')
        I('v_and_b32 v23, 7, v21')
        I('v_lshlrev_b32 v22, 13, v22')
        I('v_lshl_add_u32 v22, v23, 7, v22')
        I(f's_lshl_b32 s100, s{sRB}, 17')
        I(f's_lshl_b32 s{t2}, s{sW}, 14')
        I(f's_add_u32 s100, s100, s{t2}')
        I(f's_lshl_b32 s{t2}, s{sG}, 10')
        I(f's_add_u32 s100, s100, s{t2}')
        I(f'buffer_load_dword v94, v22, s[{sWQ}:{sWQ+3}], s100 offen')
        I('v_and_b32 v23, 3, v21')
        I('v_lshlrev_b32 v23, 7, v23')
        I(f's_lshl_b32 s100, s{sG}, 19')
        I(f's_lshl_b32 s{t2}, s{sRB}, 12')
        I(f's_add_u32 s100, s100, s{t2}')
        I(f's_lshl_b32 s{t2}, s{sW}, 9')
        I(f's_add_u32 s100, s100, s{t2}')
        I(f's_add_u32 s100, s100, {1536*256}')
        I(f'buffer_load_dword v95, v23, s[{sK}:{sK+3}], s100 offen')
    def touch2(kind, dst):
        L = []
        if kind == 'W':
            n_ = X.get('wn', 2); ln_ = n_.bit_length() - 1
            L.append(f'v_and_b32 v{dst}, 0x70, v{vLANE16}')
            L.append(f'v_lshlrev_b32 v{dst}, 3, v{dst}')
            L.append(f'v_bfe_u32 v{dst+1}, v{vLANE16}, 7, {ln_}')
            L.append(f'v_lshl_add_u32 v{dst}, v{dst+1}, 13, v{dst}')
            L.append(f's_and_b32 s44, s{sRB}, 7\ns_lshl_b32 s44, s44, 3\ns_add_u32 s44, s44, s{sW}\ns_lshl_b32 s44, s44, {13 + ln_}\ns_lshl_b32 s45, s{sG}, 10\ns_add_u32 s44, s44, s45')
            L.append(f'buffer_load_dword v{dst}, v{dst}, s[{sWQ}:{sWQ+3}], s44 offen')
        elif kind == 'T':
            L.append(f'v_and_b32 v{dst}, 0x70, v{vLANE16}')
            L.append(f'v_lshlrev_b32 v{dst}, 3, v{dst}')
            L.append(f'v_bfe_u32 v{dst+1}, v{vLANE16}, 7, 1')
            L.append(f'v_lshl_add_u32 v{dst}, v{dst+1}, 13, v{dst}')
            L.append(f's_lshl_b32 s44, s{sRB}, 16\ns_and_b32 s45, s{sW}, 3\ns_lshl_b32 s45, s45, 14\ns_add_u32 s44, s44, s45\ns_lshl_b32 s45, s{sG}, 10\ns_add_u32 s44, s44, s45\n'
                     f's_lshr_b32 s45, s{sW}, 2\ns_lshl_b32 s45, s45, 21\ns_add_u32 s44, s44, s45')
            L.append(f'buffer_load_dword v{dst}, v{dst}, s[{sWQ}:{sWQ+3}], s44 offen')
        elif kind in 'uv':
            L.append(f'v_and_b32 v{dst}, 0x70, v{vLANE16}')
            L.append(f'v_lshlrev_b32 v{dst}, 3, v{dst}')
            L.append(f's_lshl_b32 s44, s{sRB}, 16\ns_lshl_b32 s45, s{sW}, 13\ns_add_u32 s44, s44, s45\ns_lshl_b32 s45, s{sG}, 10\ns_add_u32 s44, s44, s45' + (f'\ns_add_u32 s44, s44, {256*8192}' if kind == 'v' else ''))
            L.append(f'buffer_load_dword v{dst}, v{dst}, s[{sWQ}:{sWQ+3}], s44 offen')
        else:
            L.append(f'v_and_b32 v{dst}, 0x30, v{vLANE16}')
            L.append(f'v_lshlrev_b32 v{dst}, 3, v{dst}')
            L.append(f's_lshl_b32 s44, s{sG}, 19\ns_lshl_b32 s45, s{sRB}, 12\ns_add_u32 s44, s44, s45\ns_lshl_b32 s45, s{sW}, 9\ns_add_u32 s44, s44, s45\ns_add_u32 s44, s44, {1536*256}')
            sx = sK if kind == 'k' else sV
            L.append(f'buffer_load_dword v{dst}, v{dst}, s[{sx}:{sx+3}], s44 offen')
        return L
    TD = {'u': 94, 'v': 95, 'k': 93, 'w': 89, 'T': 94, 'W': 90}
    early = X.get('early', 'x0 a0 a1 t x1 a2 a3') if isinstance(X, dict) else 'x0 a0 a1 t x1 a2 a3'
    late = X.get('late', 'a4 a5 x2 x3 f') if isinstance(X, dict) else 'a4 a5 x2 x3 f'
    def emit_order(o):
        for tok in o.split():
            if tok == 't': start_touch()
            elif tok[0] == 'P': I(f's_setprio {tok[1]}')
            elif tok == 'm': mploads()
            elif tok == 'f':
                for s in finload(): I(s)
            elif tok in TD:
                for s in touch2(tok, TD[tok]): I(s)
            elif tok[0] == 'x':
                for s in xnload(int(tok[1])): I(s)
            else:
                for s in a_dma(0, int(tok[1])): I(s)
    emit_order(early)
    if X.get('pst'): st()
    if R16:
        I('v_lshrrev_b32 v22, 2, v21')
        I('v_lshlrev_b32 v22, 7, v22')
        I('v_and_b32 v23, 3, v21')
        I('v_lshl_add_u32 v22, v23, 3, v22')
        I(f'v_add_u32 v22, s{sW4K}, v22')
        I('v_bfe_u32 v23, v21, 3, 2')
        for nt in range(4):
            I(f'v_xor_b32 v24, {nt}, v23')
            I(f'v_lshl_add_u32 v{vA[nt]}, v24, 5, v22')
    else:
        I('v_bfe_u32 v19, v21, 2, 2')
        I('v_lshl_add_u32 v22, v18, 3, v19')
        I('v_lshlrev_b32 v22, 7, v22')
        I('v_bfe_u32 v23, v21, 4, 1')
        I('v_lshl_add_u32 v22, v23, 5, v22')
        I('v_and_b32 v23, 1, v21')
        I('v_lshl_add_u32 v22, v23, 4, v22')
        I('v_bfe_u32 v23, v21, 1, 1')
        I('v_lshl_add_u32 v22, v23, 3, v22')
        I(f'v_add_u32 v22, s{sW4K}, v22')
        I('v_bfe_u32 v23, v21, 3, 1')
        I(f'v_lshl_add_u32 v{vA[0]}, v23, 6, v22')
        I('v_xor_b32 v23, 1, v23')
        I(f'v_lshl_add_u32 v{vA[1]}, v23, 6, v22')
        I(f'v_add_u32 v{vA[2]}, {2*SLOT}, v{vA[0]}')
        I(f'v_add_u32 v{vA[3]}, {2*SLOT}, v{vA[1]}')
    I('v_and_b32 v24, 31, v21')
    I('v_and_b32 v22, 15, v21')
    I('v_xor_b32 v22, v22, v18')
    I(f's_lshl_b32 s{t2}, s{sRH}, 3')
    I(f'v_xor_b32 v22, s{t2}, v22')
    I('v_lshlrev_b32 v24, 8, v24')
    I(f'v_add_u32 v24, {slot_of(16)}, v24')
    for s in range(8):
        I(f'v_xor_b32 v23, {2*s}, v22')
        I(f'v_lshl_add_u32 v{vKA[s]}, v23, 4, v24')
    I('v_lshrrev_b32 v24, 4, v21')
    I('v_and_b32 v22, 15, v21')
    I('v_xor_b32 v22, v22, v24')
    I('v_lshlrev_b32 v24, 8, v24')
    for j in range(4):
        I(f'v_xor_b32 v23, {4*j}, v22')
        I(f'v_lshl_add_u32 v{vKD[j]}, v23, 4, v24')
    I(f's_lshl_b32 s{t2}, s{sRH}, 14')
    I(f's_add_u32 s{t2}, s{t2}, {3*SLOT}')
    if R16:
        I('v_and_b32 v22, 15, v21')
        I('v_lshlrev_b32 v22, 4, v22')
        I('v_lshrrev_b32 v23, 4, v21')
        I('v_lshl_add_u32 v22, v23, 9, v22')
        I(f'v_add_u32 v{vB[0]}, s{t2}, v22')
    else:
        I(f'v_add_u32 v{vB[0]}, s{t2}, v{vLANE16}')
    I(f'v_xor_b32 v{vB[1]}, 0x4000, v{vB[0]}')
    I('v_mov_b32 v80, 0x3f80')
    I('v_mov_b32 v81, 0x3f800000')
    emit_order(X.get('mid', ''))
    I('v_cvt_f32_u32 v26, v26')
    I('v_cmp_eq_u32 vcc, 0, v21')
    I('v_lshrrev_b32 v25, 3, v21')
    MALL = X.get('mall', 1)
    if MALL == 4:
        I('v_and_b32 v25, 1, v25')
    elif MALL == 2:
        I('v_and_b32 v25, 5, v25')
    elif MALL == 3:
        I('v_cmp_eq_u32 vcc, 6, v25')
        I('v_cndmask_b32 v25, v25, 1, vcc')
        I('v_and_b32 v25, 1, v25')
    I('v_cmp_eq_u32 vcc, 0, v25')
    I('v_cndmask_b32 v25, 0, 16, vcc')
    STG = 3*SLOT + 16384 + 8192
    I(f's_lshl_b32 s{t2}, s{sW}, 10')
    I(f's_add_u32 s{t2}, s{t2}, {STG}')
    I(f'v_lshl_add_u32 v24, v21, 3, s{t2}')
    I(f'v_lshl_add_u32 v23, v18, 5, s{t2}')
    MO = 96
    TT = 64
    def hwrite(j, rh):
        return f'ds_write_b128 v{vHW}, v[{XR+8*j+4*rh}:{XR+8*j+4*rh+3}] offset:{(j >> 1)*32768 + (j & 1)*8192 + rh*16384}'
    def sect():
        if X.get('pst'): st()
        for e in range(2):
            I(f'v_add_f32 v{MP+e}, v{MP+e}, v{MP+2+e}')
            I(f'v_add_f32 v{MP+4+e}, v{MP+4+e}, v{MP+6+e}')
        for e in range(2): I(f'v_add_f32 v{MP+e}, v{MP+e}, v{MP+4+e}')
        for e in range(2): rnd_bf16(a, MP+e, MP+e)
        for e in range(2): I(f'v_add_f32 v{MP+e}, v{MP+e}, v26')
        for e in range(2): rnd_bf16(a, MP+e, MP+e)
        I(f'v_lshrrev_b32 v{MP}, v25, v{MP}')
        I(f'ds_write_b64 v24, v[{MP}:{MP+1}]')
        if X.get('pst'): st()
        for j in range(4):
            for q, off in enumerate((0, 16, 64, 80)):
                I(f'ds_read_b128 v[{MO+16*j+4*q}:{MO+16*j+4*q+3}], v23 offset:{128*j + off}')
        for rh in range(2):
            xb = XR + 4*rh
            for d in range(4):
                I(f'v_dot2_f32_bf16 v{TT+2*d}, v{xb+d}, v{MO+2*d}, 0')
                I(f'v_dot2_f32_bf16 v{TT+2*d+1}, v{xb+d}, v{MO+2*d+1}, 0')
            for d in range(4):
                I(f'v_cvt_pk_bf16_f32 v{xb+d}, v{TT+2*d}, v{TT+2*d+1}')
            for d in range(4):
                I(f'v_dot2_f32_bf16 v{TT+8+2*d}, v{xb+d}, v80, v{MO+8+2*d}')
                I(f'v_dot2_f32_bf16 v{TT+8+2*d+1}, v{xb+d}, v81, v{MO+8+2*d+1}')
            for d in range(4):
                I(f'v_cvt_pk_bf16_f32 v{xb+d}, v{TT+8+2*d}, v{TT+8+2*d+1}')
            I(hwrite(0, rh))
            if X.get('pst'): st()
    if X.get('dup'):
        I(f's_cmp_ge_u32 s{sW}, 4')
        I('s_cbranch_scc1 K1_dB')
        snap = (list(a.vm_q), list(a.lds_q), list(a.hist), st.n)
        emit_order(X['dup'])
        sect()
        I('s_branch K1_dJ')
        qa = list(a.vm_q)
        a.raw('K1_dB:')
        a.vm_q, a.lds_q, a.hist, st.n = list(snap[0]), list(snap[1]), [], snap[3]
        I('s_nop 1')
        sect()
        if not X.get('dupB'): emit_order(X['dup'])
        a.raw('K1_dJ:')
        if X.get('dupB'):
            n0_ = len(a.out)
            emit_order(X['dup'])
            split_code = list(a.out[n0_:]); del a.out[n0_:]
        assert qa == a.vm_q, (qa, a.vm_q)
    elif X.get('cnd'):
        I('s_waitcnt vmcnt(0)')
        I(f's_cmp_ge_u32 s{sW}, 4')
        I('s_cbranch_scc1 K1_sp0')
        n0_ = len(a.out)
        emit_order(X['cnd'])
        split_code = list(a.out[n0_:])
        a.raw('K1_sp0:')
        sect()
        if X.get('cndL'):
            I(f's_cmp_lt_u32 s{sW}, 4')
            I('s_cbranch_scc1 K1_sp1')
            a.out += split_code
            a.raw('K1_sp1:')
    else:
        sect()
    def modq(j):
        L = []
        sb = MO + 16*j
        for rh in range(2):
            for half in range(2):
                seq = []
                for d in (2*half, 2*half+1):
                    x = XR + 8*j + 4*rh + d; lo = TT + 2*d; hi = lo + 1
                    if X.get('mod5'):
                        seq.append([f'v_lshlrev_b32 v{lo}, 16, v{x}', f'v_and_b32 v{hi}, 0xffff0000, v{x}',
                                    f'v_fma_f32 v{lo}, v{sb+2*d}, v{lo}, v{sb+8+2*d}', f'v_fma_f32 v{hi}, v{sb+2*d+1}, v{hi}, v{sb+8+2*d+1}',
                                    f'v_cvt_pk_bf16_f32 v{x}, v{lo}, v{hi}'])
                    else:
                        seq.append([f'v_lshlrev_b32 v{lo}, 16, v{x}', f'v_and_b32 v{hi}, 0xffff0000, v{x}',
                                f'v_mul_f32 v{lo}, v{sb+2*d}, v{lo}', f'v_mul_f32 v{hi}, v{sb+2*d+1}, v{hi}',
                                f'v_cvt_pk_bf16_f32 v{lo}, 0, v{lo}', f'v_cvt_pk_bf16_f32 v{hi}, 0, v{hi}',
                                f'v_add_f32 v{lo}, v{sb+8+2*d}, v{lo}', f'v_add_f32 v{hi}, v{sb+8+2*d+1}, v{hi}',
                                f'v_cvt_pk_bf16_f32 v{x}, v{lo}, v{hi}'])
                n = len(seq[0]) - 1
                for k in range(0, n, 2):
                    for q in seq: L += q[k:k+2]
                for q in seq: L.append(q[n])
            L.append(hwrite(j, rh))
        return L
    SK = X.get('skew', 0)
    ABUF = [224, 232, 128, 136, 144, 152, 160, 168, 176, 184, 192, 200, 208, 216]
    def abuf(ph, kk):
        if ph == 1 and SK: return ABUF[kk % (SK + 2)]
        return AF + 8*(kk & 1)
    def a_reads(ph, kk, nt):
        e = ent(ph, kk); sl = RING[ph][e]
        hi = sl >= 2
        off = (0 if hi else sl*SLOT) + (e & 1)*2048
        d = abuf(ph, kk) + 4*nt
        va = vA[2*hi+nt] if e < 6 else vAX[nt]
        return [f'ds_read_b64_tr_b16 v[{d+2*t}:{d+2*t+1}], v{va} offset:{off + 512*t} ; R:E{e}' for t in range(2)]
    def b_read(kk, b):
        d = BFB + 8*(kk & 1) + 4*b
        return f'ds_read_b128 v[{d}:{d+3}], v{vB[b]} offset:{(kk >> 4)*32768 + (kk & 15)*1024}'
    if X.get('split'):
        I(f's_cmp_ge_u32 s{sW}, 4')
        I('s_cbranch_scc1 K1_sp0')
        n0_ = len(a.out)
        emit_order(late)
        split_code = list(a.out[n0_:])
        a.raw('K1_sp0:')
    else:
        emit_order(late)
    for j in range(1, MALL):
        if X.get('milp'):
            mo = MO + 16*j; TB_ = (160, 176)
            if X.get('pst') == 2 and j == 1:
                I(f'v_mov_b32 v192, v{XR+8*3+7}')
                st()
            for rh in range(2):
                for d in range(4):
                    I(f'v_dot2_f32_bf16 v{TB_[rh]+2*d}, v{XR+8*j+4*rh+d}, v{mo+2*d}, 0')
                    I(f'v_dot2_f32_bf16 v{TB_[rh]+2*d+1}, v{XR+8*j+4*rh+d}, v{mo+2*d+1}, 0')
            for rh in range(2):
                for d in range(4):
                    I(f'v_cvt_pk_bf16_f32 v{XR+8*j+4*rh+d}, v{TB_[rh]+2*d}, v{TB_[rh]+2*d+1}')
            for rh in range(2):
                for d in range(4):
                    I(f'v_dot2_f32_bf16 v{TB_[rh]+8+2*d}, v{XR+8*j+4*rh+d}, v80, v{mo+8+2*d}')
                    I(f'v_dot2_f32_bf16 v{TB_[rh]+8+2*d+1}, v{XR+8*j+4*rh+d}, v81, v{mo+8+2*d+1}')
            for rh in range(2):
                for d in range(4):
                    I(f'v_cvt_pk_bf16_f32 v{XR+8*j+4*rh+d}, v{TB_[rh]+8+2*d}, v{TB_[rh]+8+2*d+1}')
                I(hwrite(j, rh))
            if X.get('pst'): st()
            emit_order(X.get('late%d' % j, ''))
            continue
        for rh in range(2):
            xb = XR + 8*j + 4*rh; mo = MO + 16*j
            for d in range(4):
                I(f'v_dot2_f32_bf16 v{TT+2*d}, v{xb+d}, v{mo+2*d}, 0')
                I(f'v_dot2_f32_bf16 v{TT+2*d+1}, v{xb+d}, v{mo+2*d+1}, 0')
            for d in range(4):
                I(f'v_cvt_pk_bf16_f32 v{xb+d}, v{TT+2*d}, v{TT+2*d+1}')
            for d in range(4):
                I(f'v_dot2_f32_bf16 v{TT+8+2*d}, v{xb+d}, v80, v{mo+8+2*d}')
                I(f'v_dot2_f32_bf16 v{TT+8+2*d+1}, v{xb+d}, v81, v{mo+8+2*d+1}')
            for d in range(4):
                I(f'v_cvt_pk_bf16_f32 v{xb+d}, v{TT+8+2*d}, v{TT+8+2*d+1}')
            I(hwrite(j, rh))
        if X.get('pst'): st()
        emit_order(X.get('late%d' % j, ''))
    if EX2:
        I(f'v_add_u32 v{vAX[0]}, {4*SLOT}, v{vA[0]}')
        I(f'v_add_u32 v{vAX[1]}, {4*SLOT}, v{vA[1]}')
    vAH = {0: [21, 22, 25, 26], 1: vKA[4:8] if X.get('c3') else vKD}
    def a_reads16(ph, s_, nt, d):
        L = []
        for t in range(2):
            e = ent(ph, 2*s_ + t); sl = RING[ph][e]; hi = sl >= 2
            off = (0 if hi else sl*SLOT) + t*2048
            va = vAH[ph][nt] if hi else vA[nt]
            L.append(f'ds_read_b64_tr_b16 v[{d+2*t}:{d+2*t+1}], v{va} offset:{off} ; R:E{e}')
        return L
    def b_read16(s_, rq, d):
        return f'ds_read_b128 v[{d}:{d+3}], v{vB[rq >> 1]} offset:{(s_ >> 3)*32768 + ((2*s_) & 15)*1024 + (rq & 1)*256}'
    ORDS = {0: [(i & 3, i >> 2) for i in range(16)],
            1: [(0,0),(1,0),(0,1),(1,1), (2,0),(3,0),(2,1),(3,1), (2,2),(3,2),(2,3),(3,3), (0,2),(1,2),(0,3),(1,3)]}
    def akey(ph, s_, mt, rq):
        if ph == 1 and X.get('sk16') and s_ >= 13: return (s_, 'A', mt, rq >> 1)
        return (s_, 'A', mt)
    def plan16(ph, slots, bmin, lastb=None):
        o = ORDS[X.get('ord16', 0)]
        seq = []
        for s_ in range(16):
            for (mt, rq) in o:
                seq.append((s_, mt, rq ^ 2 if (lastb and s_ == 15) else rq))
        SK0 = X.get('sk16') if ph == 1 else None
        if SK0:
            hs = [(s_, h_) for s_ in range(SK0) for h_ in range(2)] + [(s_, 0) for s_ in range(SK0, 16)] + [(s_, 1) for s_ in range(SK0, 16)]
            seq = [(s_, i & 3, 2*h_ + (i >> 2)) for (s_, h_) in hs for i in range(8)]
        first = {}; last = {}
        for n, (s_, mt, rq) in enumerate(seq):
            for fr in (akey(ph, s_, mt, rq), (s_, 'B', rq)):
                first.setdefault(fr, n); last[fr] = n
        pend = sorted(first, key=lambda fr: (first[fr], fr[1]))
        LA = X.get('la16', (10, 10))[ph]
        free = list(slots); reg = {}; issue = {}
        n = -1
        while n < 255:
            for fr in [f_ for f_ in reg if last[f_] == n]: free.append(reg[fr])
            if SK0 and n == 64: free += list(range(160, 224, 4))
            cnt = 0
            while pend and free and (n < 0 or cnt < 1):
                fr = pend[0]
                if first[fr] - n > LA: break
                if fr[1] == 'B' and n < bmin.get(fr[0], -1): break
                reg[fr] = free.pop(0); issue.setdefault(n, []).append(fr); pend.pop(0); cnt += 1
            assert not pend or first[pend[0]] > n + 1 or True
            n += 1
        assert not pend
        for fr in reg:
            ni = [k for k in issue if fr in issue[k]][0]
            assert ni < first[fr], (fr, ni, first[fr])
        return seq, issue, reg
    def ld16(ph, fr, reg):
        return a_reads16(ph, fr[0], fr[2], reg[fr]) if fr[1] == 'A' else [b_read16(fr[0], fr[2], reg[fr])]
    def gemm16(ph, acc, tail, side, bars, plan):
        seq, issue, reg = plan
        a.lg_extra, a.lg_keep = X.get('lgg', (0, 0))
        for kk in range(32):
            if kk in bars:
                I('s_waitcnt lgkmcnt(0)')
                I('s_barrier')
            pr = X.get('prio', (0, 8, 16, 24))
            if ph == 1 and 'pr4' in X: pr = X['pr4']
            if kk in X.get('p2st' if ph == 0 else 'p4st', ()): st()
            if pr and kk in pr: I(f's_setprio {3 - pr.index(kk)}')
            if nxt_dma(ph, kk) is not None: dm = a_dma(ph, nxt_dma(ph, kk))
            else: dm = tail.get(kk, ['', ''])
            dpos = X.get('dpos16', ((4, 6), (1, 2)))[kk & 1]
            if ph == 1 and X.get('sk16') and kk >= 2*X['sk16']:
                s0_ = X['sk16'] + kk - 2*X['sk16']
                if s0_ < 13:
                    d0_ = a_dma(1, 2*s0_ + 6); d1_ = a_dma(1, 2*s0_ + 7)
                    dm = [d0_[0] + '\n' + d0_[1], d1_[0] + '\n' + d1_[1]]; dpos = (4, 6)
                else: dm = ['', '']
            main = []
            for i in range(8):
                n = 8*kk + i
                s_, mt, rq = seq[n]
                d = acc + 4*(4*rq + mt)
                cc = '0' if s_ == 0 else f'v[{d}:{d+3}]'
                A = reg[akey(ph, s_, mt, rq)]; B = reg[(s_, 'B', rq)]
                main.append(f'v_mfma_f32_16x16x32_bf16 v[{d}:{d+3}], v[{A}:{A+3}], v[{B}:{B+3}], {cc}')
                for fr in issue.get(n, []): main += ld16(ph, fr, reg)
                for h_ in range(2):
                    if i == dpos[h_] and dm[h_]: main.append(dm[h_])
            for s in interleave(main, side.get(kk, [])): I(s)
            if ph == 0 and kk in X.get('after', {}): emit_order(X['after'][kk])
        a.lg_extra = a.lg_keep = 0
    def pack16(dst, acc, b):
        L = []
        for nt in range(4):
            g_ = []
            for p in range(2):
                d = acc + 4*(4*(2*b + p) + nt)
                for e in range(2):
                    g_.append(f'v_cvt_pk_bf16_f32 v{dst+4*nt+2*p+e}, v{d+2*e}, v{d+2*e+1}')
            for e in range(2):
                g_.append(f'v_permlane16_swap_b32 v{dst+4*nt+e}, v{dst+4*nt+2+e}')
            L.append(g_)
        return L
    if R16:
        for nt in range(4): I(f'v_add_u32 v{vAH[0][nt]}, {2*SLOT}, v{vA[nt]}')
        p2b = [0]*(MALL - 1) + sorted(X.get('bars'))
        assert len(p2b) == 3
        plan2 = plan16(0, list(range(AF, 256, 4)), {s_: 8*p2b[s_//4 - 1] - 1 + 1 if s_ >= 4 else -1 for s_ in range(16)}, lastb=True)
        for fr in plan2[1][-1]:
            if fr[1] == 'A' and not X.get('alate'):
                for s in ld16(0, fr, plan2[2]): I(s)
    else:
        for s in a_reads(0, 0, 0) + a_reads(0, 0, 1): I(s)
    I('s_waitcnt lgkmcnt(0)')
    if X.get('pst'): st()
    I('s_barrier')
    st()

    def gemm_phase(ph, acc, tail, side, bars, lastorder=None):
        for kk in range(32):
            if kk in bars:
                I('s_waitcnt lgkmcnt(0)')
                I('s_barrier')
            buf = kk & 1
            pr = X.get('prio', (0, 8, 16, 24)) if isinstance(X, dict) else (0, 8, 16, 24)
            if ph == 0 and isinstance(X, dict) and kk in X.get('p2st', ()): st()
            if pr and kk in pr: I(f's_setprio {3 - pr.index(kk)}')
            order = [(0,0), (1,0), (0,1), (1,1)]
            if kk == 31 and lastorder: order = lastorder
            mf = []
            for (mt, b) in order:
                d = acc + 16*(2*b + mt)
                cc = '0' if kk == 0 else f'v[{d}:{d+15}]'
                A = AF + 8*buf + 4*mt; B = BFB + 8*buf + 4*b
                pm, pb = order[max(0, order.index((mt, b)) - 1)]
                mf.append(MF('p2' if ph == 0 else 'p4', d, A, B, kk == 0, AF + 8*buf + 4*pm, BFB + 8*buf + 4*pb))
            if kk < 31:
                r0 = a_reads(ph, kk+1, 0) + [b_read(kk+1, 0)]
                r1 = a_reads(ph, kk+1, 1) + [b_read(kk+1, 1)]
            else:
                r0 = r1 = []
            if ph == 1 and isinstance(X, dict) and 'p4last' in X:
                last = X['p4last']
                js = [j for j in range(6, 32) if (((j-6)*last + 12)//25) == kk]
                dm = a_dma(ph, js[0]) if js else ['', '']
            elif nxt_dma(ph, kk) is not None: dm = a_dma(ph, nxt_dma(ph, kk))
            else: dm = tail.get(kk, ['', ''])
            if ph == 1 and 'p4nodma' in X: dm = ['', '']
            if ph == 1 and 'p4noa' in X: r0 = r0[2:]; r1 = r1[2:]
            if ph == 1 and 'p4nob' in X: r0 = r0[:-1]; r1 = r1[:-1]
            main = [mf[0]] + r0 + [mf[1]] + r1 + [mf[2]] + ([dm[0]] if dm[0] else []) + [mf[3]] + ([dm[1]] if dm[1] else [])
            for s in interleave(main, side.get(kk, [])): I(s)
            if ph == 0 and kk in X.get('after', {}): emit_order(X['after'][kk])

    def gemm_skew(acc, side, bars, st0):
        D = SK
        pr = X.get('prio4', (0, 10, 20, 30))
        for s_ in range(32 + D):
            if s_ in bars:
                I('s_waitcnt lgkmcnt(0)')
                I('s_barrier')
            if pr and s_ in pr: I(f's_setprio {3 - pr.index(s_)}')
            def mfm(kk, b):
                L = []
                for mt in range(2):
                    d = acc + 16*(2*b + mt)
                    cc = '0' if kk == 0 else f'v[{d}:{d+15}]'
                    A = abuf(1, kk) + 4*mt; B = BFB + 8*(kk & 1) + 4*b
                    L.append(f'v_mfma_f32_32x32x16_bf16 v[{d}:{d+15}], v[{A}:{A+3}], v[{B}:{B+3}], {cc}')
                return L
            m0_ = mfm(s_, 0) if s_ < 32 else []
            m1_ = mfm(s_ - D, 1) if s_ >= D else []
            r0 = (a_reads(1, s_+1, 0) + [b_read(s_+1, 0)]) if s_ + 1 < 32 else []
            r1 = (a_reads(1, s_+1, 1) if s_ + 1 < 32 else []) + ([b_read(s_+1-D, 1)] if 0 <= s_ + 1 - D < 32 else [])
            dm = a_dma(1, s_+6) if s_ + 6 < 32 else ['', '']
            mf = m0_ + m1_
            slots = [r0, r1, [dm[0]] if dm[0] else [], [dm[1]] if dm[1] else []]
            main = []
            if len(mf) == 4:
                for m, sl_ in zip(mf, slots): main += [m] + sl_
            else:
                main = [mf[0]] + slots[0] + slots[1] + [mf[1]] + slots[2] + slots[3]
            sd = list(side.get(s_, []))
            if s_ >= 33:
                n = len(st0); k = s_ - 33; tot = D - 1
                sd += st0[n*k//tot: n*(k+1)//tot]
            for s in interleave(main, sd): I(s)

    def split(L, n):
        return [L[len(L)*i//n: len(L)*(i+1)//n] for i in range(n)]
    side = {}
    XD = X if isinstance(X, dict) else {}
    for j, k0, n in XD.get('mq', ((1, 0, 4), (2, 4, 4), (3, 8, 4))):
        for i, part in enumerate(split(modq(j), n)):
            side[k0 + i] = side.get(k0 + i, []) + part
    for tok, kk in XD.get('sl', ()):
        L = finload() if tok == 'f' else touch2(tok, TD[tok]) if tok in TD else ['\n'.join(xnload(int(tok[1]))[2*i:2*i+2]) for i in range(2)]
        side[kk] = L + side.get(kk, [])
    fk = XD.get('fin', 14)
    side[fk] = side.get(fk, []) + finops
    if VTR: side[26] = side.get(26, []) + [f'v_lshrrev_b32 v{vD}, 8, v{vLANE16}', f'v_lshlrev_b32 v{vD}, 6, v{vD}', f'v_xor_b32 v{vD}, v{vD}, v{vLANE16}']
    p2bars = set(XD.get('bars', (6, 13)))
    tail = {}
    for kk, c, js in ((26, 16, (0,1)), (27, 16, (2,3)), (28, 17, (0,1)), (29, 17, (2,3))):
        if c == 17 and X.get('v0late'): continue
        L = kv_dma(c, js, tag=f'E{ent(0, kk)}')
        tail[kk] = ['\n'.join(L[:3]), L[3]]
    if R16:
        for fr in plan2[1][-1]:
            if fr[1] == 'B':
                for s in ld16(0, fr, plan2[2]): I(s)
        if X.get('split') or X.get('dupB') or (X.get('cnd') and not X.get('cndL')):
            I(f's_cmp_lt_u32 s{sW}, 4')
            I('s_cbranch_scc1 K1_sp1')
            a.out += split_code
            a.raw('K1_sp1:')
        emit_order(X.get('post', ''))
        for fr in plan2[1][-1]:
            if fr[1] == 'A' and X.get('alate'):
                for s in ld16(0, fr, plan2[2]): I(s)
        gemm16(0, ACC, tail, side, p2bars, plan2)
    else:
        for s in [b_read(0, 0), b_read(0, 1)]: I(s)
        emit_order(X.get('post', ''))
        gemm_phase(0, ACC, tail, side, p2bars, lastorder=[(0,1), (1,1), (0,0), (1,0)])
    st()
    QF2 = 32
    SB_ = [64, 96]
    VF = 128
    KF = AF
    vVA = vT3
    vVT = [4, 5, 6, 7]
    vtset = [f'v_lshrrev_b32 v{vT3}, 9, v{vLANE16}', f'v_bfe_u32 v{vT2}, v{vLANE16}, 6, 2', f'v_lshl_add_u32 v{vT3}, v{vT3}, 2, v{vT2}', f'v_lshlrev_b32 v{vT3}, 8, v{vT3}',
             f'v_lshl_add_u32 v{vT3}, v{vT2}, 6, v{vT3}',
             f'v_bfe_u32 v{vT2}, v{vLANE16}, 8, 1', f'v_lshl_add_u32 v{vT3}, v{vT2}, 5, v{vT3}',
             f'v_and_b32 v{vT2}, 16, v{vLANE16}', f'v_add_u32 v{vT3}, v{vT3}, v{vT2}',
             f'v_bfe_u32 v{vT2}, v{vLANE16}, 5, 1', f'v_lshl_add_u32 v{vT3}, v{vT2}, 3, v{vT3}',
             f'v_add_u32 v{vVT[0]}, {slot_of(17)}, v{vT3}'] + [f'v_xor_b32 v{vVT[mt]}, {64*mt}, v{vVT[0]}' for mt in range(1, 4)]
    vMR = vMX
    def k_reads(t):
        L = []
        c = 16 + 2*(t//4)
        for s in range(8):
            if t % 4 == 0 and t > 0:
                delta = slot_of(c) - slot_of(c-2)
                if delta >= 0: L.append(f'v_add_u32 v{vKA[s]}, {delta}, v{vKA[s]}')
                else: L.append(f'v_subrev_u32 v{vKA[s]}, {-delta}, v{vKA[s]}')
            L.append(f'ds_read_b128 v[{KF+4*s}:{KF+4*s+3}], v{vKA[s]} offset:{(t%4)*8192}')
        return L
    def v_reads(kap):
        L = []
        c = 17 + 2*(kap//8); ks = kap % 8; buf = kap & 1
        if VTR:
            for mt in range(4):
                if ks == 0 and kap > 0:
                    delta = slot_of(c) - slot_of(c-2)
                    L.append(f'v_add_u32 v{vVT[mt]}, {delta}, v{vVT[mt]}' if delta >= 0 else f'v_subrev_u32 v{vVT[mt]}, {-delta}, v{vVT[mt]}')
                d = VF + 16*buf + 4*mt
                for t in range(2):
                    L.append(f'ds_read_b64_tr_b16 v[{d+2*t}:{d+2*t+1}], v{vVT[mt]} offset:{ks*4096 + t*2048}')
            return L
        if ks == 0:
            L.append(f'v_add_u32 v{vVA}, {slot_of(c)}, v{vLANE16}')
        for mt in range(4):
            d = VF + 16*buf + 4*mt
            L.append(f'ds_read_b128 v[{d}:{d+3}], v{vVA} offset:{ks*4096 + mt*1024}')
        return L
    I(f's_load_dwordx8 s[56:63], s[0:1], {KA_W1}')
    if X.get('c3') == 2:
        I(f's_load_dwordx2 s[68:69], s[0:1], {KA_C}')
        I(f's_load_dwordx2 s[72:73], s[0:1], {KA_WMOD}')
        I('s_movk_i32 s70, 1024'); I('s_mov_b32 s71, 0x00020000')
        I(f's_mov_b32 s74, {512*6144}'); I('s_mov_b32 s75, 0x00020000')
    I(f'v_add_u32 v{vT0}, s{sW4K}, v{vLANE16}')
    I(f'v_xor_b32 v{vT1}, 0x1000, v{vT0}')
    EXP = 64
    if R16:
        pk = pack16(EXP, ACC, 1)
        for s in pk[0][:4]: I(s)
        for q in range(4):
            if q < 3:
                for s in pk[q+1][:4]: I(s)
            for s in pk[q][4:]: I(s)
            I(f'ds_write_b128 v{vT0}, v[{EXP+4*q}:{EXP+4*q+3}] offset:{1024*q}')
        pk = pack16(QF2, ACC, 0)
        for g_ in pk:
            for s in g_[:4]: I(s)
        for g_ in pk:
            for s in g_[4:]: I(s)
    else:
        for q in range(4):
            for j in range(4*q, 4*q+4):
                I(f'v_cvt_pk_bf16_f32 v{EXP+j}, v{ACC+32+2*j}, v{ACC+32+2*j+1}')
            I(f'ds_write_b128 v{vT0}, v[{EXP+4*q}:{EXP+4*q+3}] offset:{1024*q}')
        for j in range(16):
            I(f'v_cvt_pk_bf16_f32 v{QF2+j}, v{ACC+2*j}, v{ACC+2*j+1}')
    CEXP = 1.4426950408889634 * 128 ** -0.5
    I(f's_mov_b32 s51, {f32bits(CEXP):#x}')
    for l in vL: I(f'v_mov_b32 v{l}, 0')
    a.wait_tags(['C16'], lg=True)
    I('s_barrier')
    if 'ast' in X: st()
    kr = k_reads(0)
    for s in kr[:4]: I(s)
    for q in range(4):
        I(kr[4+q])
        I(f'ds_read_b128 v[{QF2+16+4*q}:{QF2+16+4*q+3}], v{vT1} offset:{1024*q}')
    def s_mfmas(u):
        seq = []
        for tt in range(2):
            t = 2*u + tt
            b = SB_[u & 1] + 16*tt
            reads = k_reads(t+1) if t < 15 else []
            ri = 0
            for s in range(8):
                cc = '0' if s == 0 else f'v[{b}:{b+15}]'
                grp = [MF('qk', b, KF+4*s, QF2+4*s, s == 0, None, QF2+4*max(0, s-1))]
                while ri < len(reads):
                    grp.append(reads[ri]); ri += 1
                    if reads[ri-1].startswith('ds_read'): break
                if 'pp' in X and s == 0 and X['pp'][tt] is not None: grp = [f's_setprio {X["pp"][tt]}'] + grp
                seq.append('\n'.join(grp))
        return seq
    def pv_mfmas(u, j):
        kap = 4*u + j; buf = kap & 1
        p = SB_[u & 1] + 8*j
        L = []
        for mt in range(4):
            d = ACC + 16*mt
            cc = '0' if kap == 0 else f'v[{d}:{d+15}]'
            L.append(MF('pv', d, VF+16*buf+4*mt, p, kap == 0, VF+16*buf+4*max(0, mt-1), None))
        return L
    def max_ops(u, tt):
        b = SB_[u & 1] + 16*tt
        L = []
        for i in range(8):
            if tt == 0 and i == 0:
                L.append(f'v_max_f32 v{vT0}, v{b}, v{b+1}')
            else:
                L.append(f'v_max3_f32 v{vT0}, v{b+2*i}, v{b+2*i+1}, v{vT0}')
        return L
    def p_ops(u, j):
        b = SB_[u & 1] + 8*j
        L = []
        for e in range(8):
            L.append(f'v_fma_f32 v{b+e}, v{b+e}, s51, v{vNEGM}' if 'nofma' not in X else 's_nop 0')
        for e in range(8):
            L.append(f'v_exp_f32 v{b+e}, v{b+e}')
        for d in range(4):
            L.append(f'v_add_f32 v{vL[d]}, v{vL[d]}, v{b+2*d}' if 'noadd' not in X else 's_nop 0')
            L.append(f'v_add_f32 v{vL[d]}, v{vL[d]}, v{b+2*d+1}' if 'noadd' not in X else 's_nop 0')
            L.append(f'v_cvt_pk_bf16_f32 v{b+d}, v{b+2*d}, v{b+2*d+1}')
        return L
    rare = []
    a.lg_extra, a.lg_keep = X.get('lga', (0, 0))
    extra = kv_dma(18) + (kv_dma(17) if X.get('v0late') else []) + kv_dma(19) + (vtset if VTR else []) + touch_ops('wo')
    for s in extra[:6]: I(s)
    sm = s_mfmas(0)
    for s in merge(sm[:10], extra[6:]): I(s)
    for s in merge(sm[10:], max_ops(0, 0)): I(s)
    for s in max_ops(0, 1): I(s)
    tops = {0: (['C18', 'C17'], kv_dma(20)), 1: (['C19'], kv_dma(21)), 2: (['C20'], kv_dma(22) + (touch_ops('wb') if X.get('wbat', 2) == 2 else [])), 3: (['C21'], kv_dma(23)),
            4: (['C22'], a_dma(1, 0) + a_dma(1, 1)), 5: (['C23'], a_dma(1, 2) + a_dma(1, 3) + (touch_ops('wb') if X.get('wbat', 2) == 5 else [])), 6: None,
            7: ([], a_dma(1, 4) + a_dma(1, 5))}
    C3 = X.get('c3', 0)
    if C3:
        d = sTC; CD = vKD[0]
        c3l = [f's_mov_b32 s{d}, s60\ns_mov_b32 s{d+1}, s61\ns_mov_b32 s{d+2}, {512*3584}\ns_mov_b32 s{d+3}, 0x00020000',
               (f's_and_b32 s46, s2, 0xc0\ns_and_b32 s47, s2, 7\ns_lshl_b32 s47, s47, 3\ns_add_u32 s46, s46, s47\ns_bfe_u32 s47, s2, 0x30003\ns_add_u32 s46, s46, s47' if X.get('xi') else
                f's_and_b32 s46, s{sRB}, 0x18\ns_add_u32 s46, s46, s{sG}\ns_lshl_b32 s46, s46, 3\ns_and_b32 s47, s{sRB}, 7\ns_add_u32 s46, s46, s47'),
               f's_cmp_ge_u32 s46, 224\ns_cselect_b32 s48, 0x10000000, 0\ns_lshl_b32 s47, s46, 4\ns_add_u32 s47, s47, s48',
               f's_mul_i32 s49, s{sW}, {64*3584}\ns_add_u32 s47, s47, s49',
               f'v_mul_u32_u24 v{CD}, 224, v{vLANE16}',
               f'buffer_load_dwordx4 v[{CD}:{CD+3}], v{CD}, s[{d}:{d+3}], s47 offen',
               f's_lshl_b32 s46, s46, 5\ns_add_u32 s46, s46, s48\ns_mul_i32 s49, s{sW}, 7168\ns_add_u32 s46, s46, s49\ns_add_u32 s46, s46, {WS_C3P:#x}']
        if C3 == 2:
            c3l.insert(2, f's_lshl_b32 s64, s46, 4\ns_mul_i32 s65, s{sW}, {64*6144}\ns_add_u32 s64, s64, s65\ns_add_u32 s64, s64, 2048\n'
                          f's_lshl_b32 s65, s46, 5\ns_lshl_b32 s66, s{sW}, 13\ns_add_u32 s65, s65, s66\ns_add_u32 s65, s65, {WS_M2P:#x}\ns_lshl_b32 s66, s{sW}, 7')
            MD = 252; vC = vD
            m2t = [f'v_mul_u32_u24 v{vT2}, 384, v{vLANE16}', f'buffer_load_dword v{vT2}, v{vT2}, s[72:75], s64 offen',
                   f'v_lshrrev_b32 v{vC}, 3, v{vLANE16}', f'buffer_load_ushort v{vC}, v{vC}, s[68:71], s66 offen']
            m2l = [f'v_mul_u32_u24 v{MD}, 384, v{vLANE16}', f'buffer_load_dwordx4 v[{MD}:{MD+3}], v{MD}, s[72:75], s64 offen']
            tops[4] = (tops[4][0], tops[4][1] + m2t)
            tops[7] = (tops[7][0], (m2l + tops[7][1]) if X.get('m2first') else (tops[7][1] + m2l))
            E = 144; TS = 138
            m2a = [f'v_lshlrev_b32 v{vC}, 16, v{vC}', f'v_mul_f32 v{TS}, {f32bits(1.4426950408889634):#x}, v{vC}', f'v_exp_f32 v{TS}, -v{TS}', f'v_add_f32 v{TS}, 1.0, v{TS}',
                   f'v_rcp_f32 v{TS}, v{TS}', f'v_mul_f32 v{vC}, v{vC}, v{TS}', f'v_cvt_pk_bf16_f32 v{vC}, 0, v{vC}']
            m2b = []
            for dd in range(4):
                m2b += [f'v_lshlrev_b32 v{E+2*dd}, 16, v{MD+dd}', f'v_and_b32 v{E+2*dd+1}, 0xffff0000, v{MD+dd}']
            m2b += [f'v_mul_f32 v{E+e}, v{E+e}, v{vC}' for e in range(8)]
            m2c = [f'v_permlane32_swap_b32 v{E+e}, v{E+4+e}' for e in range(4)] + [f'v_add_f32 v{E+e}, v{E+e}, v{E+4+e}' for e in range(4)] + \
                  [f'v_permlane16_swap_b32 v{E+e}, v{E+2+e}' for e in range(2)] + [f'v_add_f32 v{E+e}, v{E+e}, v{E+2+e}' for e in range(2)]
            m2d = []
            src, dst = E, E + 2
            for ctl in ('quad_perm:[1,0,3,2]', 'quad_perm:[2,3,0,1]', 'row_half_mirror', 'row_mirror'):
                m2d += [f'v_add_f32_dpp v{dst+e}, v{src+e}, v{src+e} {ctl} row_mask:0xf bank_mask:0xf' for e in range(2)]
                src, dst = dst, src
            m2d += [f'v_lshrrev_b32 v{TS}, 5, v{vLANE16}',
                    f's_mov_b32 exec_lo, 0x10001\ns_mov_b32 exec_hi, 0x10001\nbuffer_store_dwordx2 v[{src}:{src+1}], v{TS}, s[{sWS}:{sWS+3}], s65 offen sc0 sc1\ns_mov_b64 exec, -1']
        u3 = X.get('c3u', 3)
        tops[u3] = (tops[u3][0], tops[u3][1] + c3l)
        SM, DD, TQ = 128, 132, 136
        c3p = [f'v_bfe_u32 v{TQ}, v{vLANE16}, 4, 1', f'v_lshlrev_b32 v{TQ}, 4, v{TQ}', f'v_mov_b32 v{TQ+1}, 0x3f80', f'v_lshlrev_b32 v{TQ}, v{TQ}, v{TQ+1}',
               f'v_bfe_u32 v{TQ+1}, v{vLANE16}, 5, 3']
        for dd in range(4):
            c3p.append(f'v_cmp_eq_u32 vcc, {dd}, v{TQ+1}\nv_cndmask_b32 v{SM+dd}, 0, v{TQ}, vcc')
        c3p.append(f'v_mfma_f32_16x16x32_bf16 v[{DD}:{DD+3}], v[{CD}:{CD+3}], v[{SM}:{SM+3}], 0')
        c3q = [f'v_add_f32 v{DD}, v{DD}, v{DD+1}', f'v_add_f32 v{DD+2}, v{DD+2}, v{DD+3}', f'v_add_f32 v{DD}, v{DD}, v{DD+2}',
               f'v_mov_b32 v{DD+1}, v{DD}', f'v_lshrrev_b32 v{TQ}, 2, v{vLANE16}', f'v_permlane16_swap_b32 v{DD}, v{DD+1}', f'v_add_f32 v{DD}, v{DD}, v{DD+1}',
               f'v_mov_b32 v{DD+1}, v{DD}', 's_nop 0', f'v_permlane32_swap_b32 v{DD}, v{DD+1}', f'v_add_f32 v{DD}, v{DD}, v{DD+1}',
               f's_mov_b64 exec, 0xff\nbuffer_store_dword v{DD}, v{TQ}, s[{sWS}:{sWS+3}], s46 offen sc0 sc1\ns_mov_b64 exec, -1']
    for kind, u_ in X.get('pf', ()):
        tops[u_] = (tops[u_][0], tops[u_][1] + pf_ops(kind))
    p4set = [f'v_add_u32 v{vA[2]}, {2*SLOT}, v{vA[2]}', f'v_add_u32 v{vA[3]}, {2*SLOT}, v{vA[3]}',
             f'v_add_u32 v{vB[0]}, {2*SLOT}, v{vLANE16}', f'v_add_u32 v{vB[1]}, {2*SLOT + 16384}, v{vLANE16}',
             f's_lshl_b32 s{t0}, s{sRH}, 14\ns_lshl_b32 s{t1}, s{sHD}, 12\ns_add_u32 s{t0}, s{t0}, s{t1}\ns_add_u32 s{t0}, s{t0}, {2*SLOT}',
             f'v_add_u32 v{vKA[0]}, s{t0}, v{vLANE16}']
    if R16:
        p4set = [f'v_add_u32 v{vAH[1][nt]}, {4*SLOT}, v{vA[nt]}' for nt in range(4)] + \
                [f'v_and_b32 v{vB[0]}, 0x7ff, v{vB[0]}', f'v_add_u32 v{vB[1]}, {2*SLOT + 16384}, v{vB[0]}', f'v_add_u32 v{vB[0]}, {2*SLOT}, v{vB[0]}'] + p4set[4:]
        p4late = []
        if VTR:
            p4set = [f'v_add_u32 v{vAH[1][3]}, {4*SLOT}, v{vA[3]}'] + [f'v_xor_b32 v{vAH[1][nt]}, {(3 ^ nt) << 5}, v{vAH[1][3]}' for nt in range(3)] + \
                    [f'v_and_b32 v{vB[0]}, 0x7ff, v{vB[0]}', f'v_add_u32 v{vB[0]}, {2*SLOT}, v{vB[0]}'] + p4set[7:]
            p4late = [f'v_add_u32 v{vB[1]}, 16384, v{vB[0]}'] + [f'v_xor_b32 v{vA[nt]}, {(3 ^ nt) << 5}, v{vA[3]}' for nt in range(3)]
        x2at = X.get('x2at', 5)
        plan4 = plan16(1, X.get('sl4', list(range(AF, 256, 4)) if C3 != 2 else list(range(AF, 252, 4)) + [140]), {s_: (8*x2at if s_ >= 8 else -1) for s_ in range(16)})
    I(f'v_mov_b32 v{vT1}, v{vT0}')
    I(f'v_permlane32_swap_b32 v{vT0}, v{vT1}')
    I(f'v_max_f32 v{vT0}, v{vT0}, v{vT1}')
    I(f'v_mul_f32 v{vNEGM}, s51, v{vT0}')
    I(f'v_sub_f32 v{vNEGM}, {OFFS}, v{vNEGM}')
    lred = [f'v_add_f32 v{vL[0]}, v{vL[0]}, v{vL[1]}', f'v_add_f32 v{vL[2]}, v{vL[2]}, v{vL[3]}', f'v_add_f32 v{vL[0]}, v{vL[0]}, v{vL[2]}',
            f'v_mov_b32 v{vL[1]}, v{vL[0]}', 's_nop 1', f'v_permlane32_swap_b32 v{vL[0]}, v{vL[1]}', f'v_add_f32 v{vL[1]}, v{vL[0]}, v{vL[1]}', f'v_rcp_f32 v{vL[0]}, v{vL[1]}']
    for u in range(8):
        extra = []
        if u == 0 and 'late0' in X:
            sm = s_mfmas(1)
            pv = p_ops(0, 0) + p_ops(0, 1) + p_ops(0, 2)[:14]
            n0 = X['late0']
            for s in merge(sm[:n0], pv[:len(pv)*n0//16]): I(s)
            a.wait_tags(tops[0][0])
            I('s_barrier')
            for s in merge(sm[n0:], tops[0][1] + v_reads(0), pv[len(pv)*n0//16:]): I(s)
            rest = p_ops(u, 2)[14:] + p_ops(u, 3)
            nxt = p_ops(1, 0)
            side = {0: rest[:18], 1: rest[18:36], 2: rest[36:] + nxt[:10], 3: nxt[10:]}
        elif tops[u] is not None:
            a.wait_tags(tops[u][0])
            if not ('nobar' in X and u > 0): I('s_barrier')
            extra = tops[u][1]
        if 'aprio' in X: I(f's_setprio {X["aprio"][u]}')
        if 'ast' in X: st()
        if u == 0: extra = extra + v_reads(0)
        nxt = p_ops(u+1, 0) if u < 7 else []
        if u == 0 and 'late0' in X:
            pass
        elif u == 0:
            sm = s_mfmas(u+1)
            for s in merge(sm, extra, p_ops(u, 0) + p_ops(u, 1) + p_ops(u, 2)[:14]): I(s)
            rest = p_ops(u, 2)[14:] + p_ops(u, 3)
            side = {0: rest[:18], 1: rest[18:36], 2: rest[36:] + nxt[:10], 3: nxt[10:]}
        elif u < 7:
            sm = s_mfmas(u+1)
            for s in merge(sm, extra, p_ops(u, 1) + p_ops(u, 2)): I(s)
            p3 = p_ops(u, 3)
            side = {0: p3[:14], 1: p3[14:], 2: nxt[:14], 3: nxt[14:]}
        else:
            for s in extra: I(s)
            side = {0: p_ops(u, 1) + p4set[:3], 1: p_ops(u, 2) + p4set[3:], 2: p_ops(u, 3), 3: []}
        for j in range(4):
            kap = 4*u + j
            pre = v_reads(kap+1) if kap < 31 else []
            sd = side[j]
            if u == 7 and j == 3:
                sd = lred + [f'v_cmp_nle_f32 vcc, v{vL[1]}, {X.get("thr", "1.0")}'] + (p4late if R16 else [])
                pre = a_reads(1, 0, 0) + a_reads(1, 0, 1)
                if R16: pre = sum([ld16(1, fr, plan4[2]) for fr in plan4[1][-1] if fr[1] == 'A'], [])
            if 'pp' in X:
                pq = X['pp'][2+j] if u < 7 else 3-j
                if pq is not None: I(f's_setprio {pq}')
            for s in merge(pv_mfmas(u, j), pre, sd): I(s)
    a.lg_extra = a.lg_keep = 0
    I('s_nop 1')
    I('s_cbranch_vccnz K1_fb')
    a.out.append('K1_fbr:')
    f = Asm(); F = f.I
    KFb, St, VFb = 96, 64, 128
    vKa, vKb, vM = vKA[1], vKA[2], vKA[3]
    f.raw('K1_fb:')
    F('s_nop 15'); F('s_nop 15')
    F(f'v_lshrrev_b32 v{vT0}, 4, v{vLANE16}')
    F(f'v_and_b32 v{vT1}, 31, v{vT0}')
    F(f'v_lshlrev_b32 v{vT1}, 8, v{vT1}')
    F(f'v_lshrrev_b32 v{vT0}, 5, v{vT0}')
    F(f'v_lshl_add_u32 v{vT1}, v{vT0}, 4, v{vT1}')
    F(f's_lshl_b32 s40, s{sRH}, 7')
    F(f'v_add_u32 v{vKa}, s40, v{vT1}')
    F(f'v_xor_b32 v{vKb}, 0x80, v{vKa}')
    F(f'v_mov_b32 v{vM}, 0xff800000')
    def fb_s():
        for s_ in range(8):
            F(f'buffer_load_dwordx4 v[{KFb+4*s_}:{KFb+4*s_+3}], v{vKa if s_ < 4 else vKb}, s[{sK}:{sK+3}], s41 offen offset:{32*(s_ & 3)}')
    def fb_mf():
        for s_ in range(8):
            cc = '0' if s_ == 0 else f'v[{St}:{St+15}]'
            F(f'v_mfma_f32_32x32x16_bf16 v[{St}:{St+15}], v[{KFb+4*s_}:{KFb+4*s_+3}], v[{QF2+4*s_}:{QF2+4*s_+3}], {cc}')
    F(f's_sub_u32 s41, s{sBK}, s{sW4K}')
    F('s_mov_b32 s40, 0')
    f.label('K1_fb1')
    fb_s()
    F('s_waitcnt vmcnt(0)')
    fb_mf()
    for i in range(8):
        F(f'v_max3_f32 v{vM}, v{St+2*i}, v{St+2*i+1}, v{vM}')
    F('s_add_u32 s41, s41, 8192')
    F('s_add_u32 s40, s40, 1')
    F('s_cmp_lt_u32 s40, 16')
    F('s_nop 7')
    F('s_cbranch_scc1 K1_fb1')
    F(f'v_mov_b32 v{vT1}, v{vM}')
    F(f'v_permlane32_swap_b32 v{vM}, v{vT1}')
    F(f'v_max_f32 v{vM}, v{vM}, v{vT1}')
    F(f'v_mul_f32 v{vNEGM}, s51, v{vM}')
    F(f'v_sub_f32 v{vNEGM}, 0, v{vNEGM}')
    for i in range(64): F(f'v_mov_b32 v{ACC+i}, 0')
    for l in vL: F(f'v_mov_b32 v{l}, 0')
    F(f's_sub_u32 s41, s{sBK}, s{sW4K}')
    if VTR:
        F(f'v_bfe_u32 v{vT0}, v{vLANE16}, 4, 5')
        F(f'v_and_b32 v{vM}, 0x13, v{vT0}')
        F(f'v_bfe_u32 v{vT1}, v{vT0}, 2, 1')
        F(f'v_lshl_or_b32 v{vM}, v{vT1}, 3, v{vM}')
        F(f'v_bfe_u32 v{vT1}, v{vT0}, 3, 1')
        F(f'v_lshl_or_b32 v{vM}, v{vT1}, 2, v{vM}')
        F(f'v_lshlrev_b32 v{vM}, 1, v{vM}')
        F(f'v_lshrrev_b32 v{vT1}, 9, v{vLANE16}')
        F(f'v_lshl_add_u32 v{vM}, v{vT1}, 10, v{vM}')
        F('s_mov_b32 s40, 0')
        f.label('K1_fb2')
        fb_s()
        F('s_waitcnt vmcnt(0)')
        fb_mf()
        for j in range(2):
            for s_ in p_ops(0, j): F(s_)
        F('s_nop 15')
        for j in range(2):
            F(f's_add_u32 s42, s41, {4096*j}')
            for mt in range(4):
                for e in range(8):
                    F(f'buffer_load_ushort v{KFb+8*mt+e}, v{vM}, s[{sV}:{sV+3}], s42 offen offset:{(8*(e >> 2) + (e & 3))*256 + 64*mt}')
            F('s_waitcnt vmcnt(0)')
            for i in range(16):
                F(f'v_lshl_or_b32 v{VFb+i}, v{KFb+2*i+1}, 16, v{KFb+2*i}')
            for mt in range(4):
                d = ACC + 16*mt
                F(f'v_mfma_f32_32x32x16_bf16 v[{d}:{d+15}], v[{VFb+4*mt}:{VFb+4*mt+3}], v[{St+8*j}:{St+8*j+3}], v[{d}:{d+15}]')
            F('s_nop 15')
        F('s_add_u32 s41, s41, 8192')
        F('s_add_u32 s40, s40, 1')
        F('s_cmp_lt_u32 s40, 16')
        F('s_nop 15'); F('s_nop 15')
        F('s_cbranch_scc1 K1_fb2')
        for s_ in lred: F(s_)
        F('s_nop 15'); F('s_nop 15')
        F('s_branch K1_fbr')
        rare_v = list(f.out)
    F(f's_sub_u32 s42, s{sBV}, s{sW4K}')
    F('s_mov_b32 s40, 0')
    f.label('K1_fb2')
    fb_s()
    F('s_add_u32 s43, s42, 4096')
    for j in range(2):
        for mt in range(4):
            d = VFb + 16*j + 4*mt
            F(f'buffer_load_dwordx4 v[{d}:{d+3}], v{vLANE16}, s[{sWS}:{sWS+3}], s{42+j} offen offset:{1024*mt}')
    F('s_waitcnt vmcnt(0)')
    fb_mf()
    for j in range(2):
        for s_ in p_ops(0, j): F(s_)
    for j in range(2):
        for mt in range(4):
            d = ACC + 16*mt
            F(f'v_mfma_f32_32x32x16_bf16 v[{d}:{d+15}], v[{VFb+16*j+4*mt}:{VFb+16*j+4*mt+3}], v[{St+8*j}:{St+8*j+3}], v[{d}:{d+15}]')
    F('s_add_u32 s41, s41, 8192')
    F('s_add_u32 s42, s42, 8192')
    F('s_add_u32 s40, s40, 1')
    F('s_cmp_lt_u32 s40, 16')
    F('s_nop 15'); F('s_nop 15')
    F('s_cbranch_scc1 K1_fb2')
    for s_ in lred: F(s_)
    F('s_nop 15'); F('s_nop 15')
    F('s_branch K1_fbr')
    rare = rare_v if VTR else f.out
    st()
    OWN = 32; ACC4 = 64
    def norm(q):
        L = []
        for j in range(4*q, 4*q+4):
            L.append(f'v_mul_f32 v{ACC+2*j}, v{ACC+2*j}, v{vL[0]}')
            L.append(f'v_mul_f32 v{ACC+2*j+1}, v{ACC+2*j+1}, v{vL[0]}')
        for j in range(4*q, 4*q+4):
            L.append(f'v_cvt_pk_bf16_f32 v{OWN+j}, v{ACC+2*j}, v{ACC+2*j+1}')
        L.append(f'ds_write_b128 v{vKA[0]}, v[{OWN+4*q}:{OWN+4*q+3}] offset:{(q >> 2)*32768 + 1024*(q & 3)}')
        return L
    for q in range(4):
        for s in norm(q): I(s)
    I('s_waitcnt lgkmcnt(0)')
    I('s_barrier')
    if R16:
        for fr in plan4[1][-1]:
            if fr[1] == 'B':
                for s in ld16(1, fr, plan4[2]): I(s)
    else:
        for s in ([b_read(0, 0), b_read(0, 1)] if not SK else [b_read(0, 0)]): I(s)
    for s in norm(4): I(s)
    st()
    side = {0: norm(5), 1: norm(6), 2: norm(7)}
    addr = [f's_lshl_b32 s{t0}, s{sG}, 21\ns_lshl_b32 s{t1}, s{sRB}, 16\ns_add_u32 s{t0}, s{t0}, s{t1}\ns_add_u32 s{t0}, s{t0}, s{sW4K}\ns_add_u32 s{t0}, s{t0}, {WS_P:#x}\ns_add_u32 s{t1}, s{t0}, 32768']
    if X.get('pl'):
        pb_, sg_, sr_ = X['pl']
        addr = [f's_mul_i32 s{t0}, s{sG}, {sg_}\ns_mul_i32 s{t1}, s{sRB}, {sr_}\ns_add_u32 s{t0}, s{t0}, s{t1}\ns_add_u32 s{t0}, s{t0}, s{sW4K}\ns_add_u32 s{t0}, s{t0}, {pb_:#x}\ns_add_u32 s{t1}, s{t0}, 32768']
    side[3] = addr
    if C3:
        side[X.get('c3k', 6)] = c3p; side[X.get('c3k', 6) + 2] = c3q
    if C3 == 2:
        k_ = X.get('m2k', 10)
        side[k_] = m2a; side[k_+1] = m2b[:8]; side[k_+2] = m2b[8:]; side[k_+3] = m2c[:8]; side[k_+4] = m2c[8:]; side[k_+5] = m2d
    def stq(q):
        so = f's{t0}' if q < 4 else f's{t1}'
        return [f'v_cvt_pk_bf16_f32 v{OWN+j}, v{ACC4+2*j}, v{ACC4+2*j+1}' for j in range(4*q, 4*q+4)] + \
               [f'buffer_store_dwordx4 v[{OWN+4*q}:{OWN+4*q+3}], v{vLANE16}, s[{sWS}:{sWS+3}], {so} offen offset:{1024*(q%4)}']
    if R16:
        if X.get('sk16'):
            pk0 = pack16(OWN, ACC4, 0)
            k0_ = 16 + X['sk16']
            lst = []
            for q in range(4):
                lst += pk0[q] + [f'buffer_store_dwordx4 v[{OWN+4*q}:{OWN+4*q+3}], v{vLANE16}, s[{sWS}:{sWS+3}], s{t0} offen offset:{1024*q}']
            nsp = X.get('sksp', 2)
            for i_, part in enumerate(split(lst, nsp)): side[k0_ + i_] = side.get(k0_ + i_, []) + part
        gemm16(1, ACC4, {}, side, {x2at}, plan4)
    elif SK:
        gemm_skew(ACC4, side, {5}, stq(0) + stq(1) + stq(2) + stq(3))
    else:
        gemm_phase(1, ACC4, {}, side, set() if 'nox2' in X else ({X['x2at']} if isinstance(X, dict) and 'x2at' in X else {5}))
    st()
    pace = X.get('pace') if isinstance(X, dict) else None
    def stores(pc):
        for j in range(16 if SK else 0, 32):
            I(f'v_cvt_pk_bf16_f32 v{OWN+j}, v{ACC4+2*j}, v{ACC4+2*j+1}')
            if j % 4 == 3:
                q = j // 4
                so = f's{t0}' if q < 4 else f's{t1}'
                if pc is not None and q > pc: I(f's_waitcnt vmcnt({pc})')
                I(f'buffer_store_dwordx4 v[{OWN+4*q}:{OWN+4*q+3}], v{vLANE16}, s[{sWS}:{sWS+3}], {so} offen offset:{1024*(q%4)}')
    if R16:
        pk = pack16(OWN, ACC4, 0) + pack16(OWN+16, ACC4, 1)
        q0_ = 4 if X.get('sk16') else 0
        for s in pk[q0_][:4]: I(s)
        for q in range(q0_, 8):
            if q < 7:
                for s in pk[q+1][:4]: I(s)
            for s in pk[q][4:]: I(s)
            so = f's{t0}' if q < 4 else f's{t1}'
            I(f'buffer_store_dwordx4 v[{OWN+4*q}:{OWN+4*q+3}], v{vLANE16}, s[{sWS}:{sWS+3}], {so} offen offset:{1024*(q%4)}')
    elif pace is not None:
        I(f's_cmp_ge_u32 s{sW}, 4')
        I('s_cbranch_scc1 K1_st2')
        I('s_nop 15')
        stores(pace)
        I('s_branch K1_st3')
        a.label('K1_st2')
        I('s_nop 15')
        stores(None)
        a.label('K1_st3')
    else:
        stores(None)
    if stamps:
        I(f'v_lshrrev_b32 v{vT3}, 4, v{vLANE16}')
        st.flush(sWS, sW, 200, vT3)
    a.label('K1_end')
    I('s_endpgm')
    a.out += rare
    print("K1 instrs", a.ninstr, "nops", a.nnop)
    return a.text(), kernel_desc(name, 256, 102)
```

```python
from common import *

LDS3M = 131072
def gen_k3m(name, stamps=False, X={}):
    a = Asm()
    st = Stamper(a, stamps, 3)
    kernel_header(a, name)
    I = a.I
    vLANE = 1
    T = [4,5,6,7,8,9,10,11]
    AD = [12,13,14,15]
    vBL = [16, 17]
    vEP = 18
    vRD = [19, 20]
    WR = [21,22,23,24]
    vROW = 25
    HBR = 28
    ACC = 32
    AFR = 64
    BF = 96
    NR = 2
    I('s_cmp_ge_u32 s2, 256')
    I('s_cbranch_scc1 K3_end')
    I(f's_load_dwordx2 s[12:13], s[0:1], {KA_W2}')
    I(f's_load_dwordx2 s[24:25], s[0:1], {KA_WS}')
    I(f'v_and_b32 v{vLANE}, 63, v0')
    I('v_lshrrev_b32 v3, 6, v0')
    I(f'v_and_b32 v{T[3]}, 15, v{vLANE}')
    I('v_readfirstlane_b32 s34, v3')
    I('s_and_b32 s35, s2, 7')
    I('s_lshr_b32 s36, s2, 3')
    I('s_lshl_b32 s35, s35, 2')
    I('s_lshr_b32 s37, s36, 3')
    I('s_add_u32 s35, s35, s37')
    I('s_and_b32 s36, s36, 7')
    I('s_and_b32 s38, s34, 1')
    I('s_lshr_b32 s39, s34, 1')
    I('s_lshl_b32 s40, s35, 1')
    I('s_add_u32 s40, s40, s38')
    I(f's_mov_b32 s14, {512*1024}'); I('s_mov_b32 s15, 0x00020000')
    I(f's_mov_b32 s26, {WS_SIZE:#x}'); I('s_mov_b32 s27, 0x00020000')
    I(f's_mov_b32 s18, {2097152}'); I('s_mov_b32 s19, 0x00020000')
    I(f'v_lshrrev_b32 v{T[4]}, 4, v{vLANE}')
    I(f'v_bfe_u32 v{T[0]}, v{vLANE}, 3, 2')
    I(f'v_lshrrev_b32 v{T[1]}, 5, v{vLANE}')
    I(f'v_lshl_add_u32 v{T[0]}, v{T[1]}, 3, v{T[0]}')
    I(f'v_and_b32 v{T[1]}, 7, v{vLANE}')
    I(f'v_lshlrev_b32 v{T[2]}, 1, v{T[4]}')
    I(f'v_xor_b32 v{T[1]}, v{T[1]}, v{T[2]}')
    I(f'v_lshlrev_b32 v{T[1]}, 4, v{T[1]}')
    I(f'v_lshl_add_u32 v{T[1]}, v{T[0]}, 10, v{T[1]}')
    I('s_lshl_b32 s45, s39, 17')
    I('s_lshl_b32 s46, s36, 7')
    I('s_add_u32 s45, s45, s46')
    I('s_lshl_b32 s46, s38, 14')
    I('s_add_u32 s45, s45, s46')
    I('s_lshl_b32 s46, s39, 14')
    I('s_lshl_b32 s47, s38, 10')
    I('s_add_u32 s46, s46, s47')
    I('s_lshr_b32 s47, s39, 1')
    I('s_add_u32 s47, s47, 1')
    I('s_sub_u32 s48, 0, s47')
    I('s_bitcmp1_b32 s39, 0')
    I('s_cselect_b32 s47, s47, s48')
    I('s_lshl_b32 s48, s40, 5')
    I('s_add_u32 s47, s47, s48')
    for rq in range(2):
        I(f'v_add_u32 v{T[5]}, s47, v{T[3]}')
        if rq == 0: I('s_add_u32 s47, s47, 16')
        I(f'v_lshrrev_b32 v{T[6]}, 5, v{T[5]}')
        I(f'v_lshlrev_b32 v{T[6]}, 15, v{T[6]}')
        I(f'v_and_b32 v{T[5]}, 31, v{T[5]}')
        I(f'v_lshl_add_u32 v{T[5]}, v{T[5]}, 4, v{T[6]}')
        I(f'v_lshl_add_u32 v{vBL[rq]}, v{T[4]}, 9, v{T[5]}')
    I('s_lshl_b32 s51, s39, 13')
    I('s_waitcnt lgkmcnt(0)')
    st.first()
    I(f's_add_u32 s16, s24, {WS_T:#x}')
    I('s_addc_u32 s17, s25, 0')
    def loads(R):
        L = []
        for j in range(4):
            L.append(f's_add_u32 m0, s46, {R*8192 + j*2048}\ns_add_u32 s48, s45, {(64*R + 32*(j >> 1) + 4*(j & 1))*1024}\nbuffer_load_dwordx4 v{T[1]}, s[12:15], s48 offen lds ; W:D{R}')
        for j in range(4):
            pre = f's_add_u32 s50, s51, {R*4096}\n' if j == 0 else ''
            L.append(pre + f'buffer_load_dwordx4 v[{BF+16*R+4*j}:{BF+16*R+4*j+3}], v{vBL[j & 1]}, s[16:19], s50 offen offset:{2048*(j >> 1)}')
        return L
    PR = X.get('pr', 1)
    if PR: I('s_setprio 3')
    for s in loads(0): I(s)
    if PR: I('s_setprio 1')
    I(f'v_lshrrev_b32 v{T[6]}, 2, v{vLANE}')
    I(f'v_lshlrev_b32 v{T[6]}, 7, v{T[6]}')
    I(f'v_and_b32 v{T[7]}, 3, v{vLANE}')
    I(f'v_lshl_add_u32 v{T[6]}, v{T[7]}, 3, v{T[6]}')
    I('s_lshl_b32 s52, s39, 14')
    I(f'v_add_u32 v{T[6]}, s52, v{T[6]}')
    I(f'v_bfe_u32 v{T[7]}, v{vLANE}, 3, 2')
    for nt in range(4):
        I(f'v_xor_b32 v{T[5]}, {nt}, v{T[7]}')
        I(f'v_lshl_add_u32 v{AD[nt]}, v{T[5]}, 5, v{T[6]}')
    L1 = loads(1)
    N1 = X.get('n1', 8)
    for s in L1[:N1]: I(s)
    RED = 65536
    I(f'v_xor_b32 v{T[4]}, v{T[4]}, v{T[3]}')
    I('s_lshl_b32 s52, s34, 13')
    I(f's_add_u32 s52, s52, {RED}')
    I(f'v_lshl_add_u32 v{T[3]}, v{T[3]}, 8, s52')
    for nt in range(4):
        I(f'v_xor_b32 v{T[5]}, {4*nt}, v{T[4]}')
        I(f'v_lshl_add_u32 v{WR[nt]}, v{T[5]}, 4, v{T[3]}')
    I('s_lshl_b32 s53, s40, 15')
    I('s_lshl_b32 s52, s36, 12')
    I('s_add_u32 s53, s53, s52')
    I(f'v_lshrrev_b32 v{T[3]}, 3, v{vLANE}')
    I('s_lshl_b32 s52, s39, 3')
    I(f'v_add_u32 v{vROW}, s52, v{T[3]}')
    I(f'v_and_b32 v{T[4]}, 1, v{vLANE}')
    I(f'v_lshl_add_u32 v{T[3]}, v{T[4]}, 5, v{vROW}')
    I(f'v_lshlrev_b32 v{T[3]}, 4, v{T[3]}')
    I(f'v_bfe_u32 v{T[4]}, v{vLANE}, 1, 2')
    I(f'v_lshl_add_u32 v{vEP}, v{T[4]}, 10, v{T[3]}')
    hbl = [f's_add_u32 s52, s53, {WS_HB:#x}\nbuffer_load_dwordx4 v[{HBR}:{HBR+3}], v{vEP}, s[24:27], s52 offen']
    I(f'v_and_b32 v{T[3]}, 7, v{vLANE}')
    I(f'v_lshlrev_b32 v{T[4]}, 1, v{T[3]}')
    I(f'v_and_b32 v{T[6]}, 15, v{vROW}')
    I(f'v_xor_b32 v{T[4]}, v{T[4]}, v{T[6]}')
    I('s_lshl_b32 s52, s38, 13')
    I(f's_add_u32 s52, s52, {RED}')
    I(f'v_lshl_add_u32 v{T[5]}, v{vROW}, 8, s52')
    I(f'v_lshl_add_u32 v{vRD[0]}, v{T[4]}, 4, v{T[5]}')
    I(f'v_xor_b32 v{vRD[1]}, 16, v{vRD[0]}')
    I(f'v_lshrrev_b32 v{T[3]}, 2, v{T[3]}')
    I(f'v_lshlrev_b32 v{T[3]}, 14, v{T[3]}')
    I(f'v_lshl_add_u32 v{vROW}, v{vROW}, 3, v{T[3]}')
    I('s_lshl_b32 s54, s36, 15')
    I('s_lshl_b32 s52, s40, 8')
    I('s_add_u32 s54, s54, s52')
    I(f's_add_u32 s54, s54, {WS_ST4:#x}')
    if PR: I('s_setprio 0')
    st()
    def rd(R, jj, nt, slot):
        return [f'ds_read_b64_tr_b16 v[{AFR+4*slot+2*t}:{AFR+4*slot+2*t+1}], v{AD[nt]} offset:{R*8192 + jj*4096 + t*2048}' for t in range(2)]
    for R in range(NR):
        a.wait_tags([f'D{R}'])
        I('s_barrier')
        seq = [(jj, nt) for jj in range(2) for nt in range(4)]
        main = []
        PRE = X.get('pre', 6)
        for i in range(PRE): main += rd(R, seq[i][0], seq[i][1], i)
        if R == 0: main += L1[N1:] + hbl
        for i, (jj, nt) in enumerate(seq):
            for rq in range(2):
                b = ACC + 4*(4*rq + nt); B = BF + 16*R + 4*(2*jj + rq)
                cc = '0' if (R == 0 and jj == 0) else f'v[{b}:{b+3}]'
                main.append(f'v_mfma_f32_16x16x32_bf16 v[{b}:{b+3}], v[{AFR+4*i}:{AFR+4*i+3}], v[{B}:{B+3}], {cc}')
                if i + PRE < 8: main.append(rd(R, seq[i+PRE][0], seq[i+PRE][1], i+PRE)[rq])
                if R == NR - 1 and jj == 1 and nt > 0:
                    pb = ACC + 4*(4*rq + nt - 1)
                    main.append(f'ds_write_b128 v{WR[nt-1]}, v[{pb}:{pb+3}] offset:{4096*rq}')
        for s in main: I(s)
    for rq in range(2):
        pb = ACC + 4*(4*rq + 3)
        I(f'ds_write_b128 v{WR[3]}, v[{pb}:{pb+3}] offset:{4096*rq}')
    I('s_mov_b32 s52, 0xffff0000')
    U = BF
    for j in range(4):
        I(f'v_lshlrev_b32 v{U+2*j}, 16, v{HBR+j}')
        I(f'v_and_b32 v{U+2*j+1}, s52, v{HBR+j}')
    M, V = T[0], T[1]
    for r in (M, V, T[2], T[3]): I(f'v_mov_b32 v{r}, 0')
    I('s_mov_b32 s55, 0x3f803f80')
    I(f's_add_u32 s53, s53, {WS_X1B:#x}')
    I('s_waitcnt lgkmcnt(0)')
    I('s_barrier')
    for q in range(4):
        for h in range(2):
            r = AFR + 8*q + 4*h
            I(f'ds_read_b128 v[{r}:{r+3}], v{vRD[h]} offset:{16384*q}')
    st()
    P = lambda r: f'v[{r}:{r+1}]'
    for e in range(0, 8, 2): I(f'v_pk_add_f32 {P(AFR+e)}, {P(AFR+e)}, {P(AFR+8+e)}')
    for e in range(0, 8, 2): I(f'v_pk_add_f32 {P(AFR+16+e)}, {P(AFR+16+e)}, {P(AFR+24+e)}')
    for e in range(0, 8, 2): I(f'v_pk_add_f32 {P(AFR+e)}, {P(AFR+e)}, {P(AFR+16+e)}')
    for e in range(8): rnd_bf16(a, AFR+e, AFR+e)
    for e in range(0, 8, 2): I(f'v_pk_add_f32 {P(AFR+e)}, {P(AFR+e)}, {P(U+e)}')
    for j in range(4): I(f'v_cvt_pk_bf16_f32 v{HBR+j}, v{AFR+2*j}, v{AFR+2*j+1}')
    I(f'buffer_store_dwordx4 v[{HBR}:{HBR+3}], v{vEP}, s[24:27], s53 offen')
    for j in range(0, 4, 2):
        I(f'v_dot2_f32_bf16 v{M}, v{HBR+j}, s55, v{M}')
        I(f'v_dot2_f32_bf16 v{V}, v{HBR+j}, v{HBR+j}, v{V}')
        I(f'v_dot2_f32_bf16 v{T[2]}, v{HBR+j+1}, s55, v{T[2]}')
        I(f'v_dot2_f32_bf16 v{T[3]}, v{HBR+j+1}, v{HBR+j+1}, v{T[3]}')
    I(f'v_add_f32 v{M}, v{M}, v{T[2]}')
    I(f'v_add_f32 v{V}, v{V}, v{T[3]}')
    I(f'v_add_f32_dpp v{T[2]}, v{M}, v{M} quad_perm:[1,0,3,2] row_mask:0xf bank_mask:0xf')
    I(f'v_add_f32_dpp v{T[3]}, v{V}, v{V} quad_perm:[1,0,3,2] row_mask:0xf bank_mask:0xf')
    I(f'v_add_f32_dpp v{M}, v{T[2]}, v{T[2]} quad_perm:[2,3,0,1] row_mask:0xf bank_mask:0xf')
    I(f'v_add_f32_dpp v{V}, v{T[3]}, v{T[3]} quad_perm:[2,3,0,1] row_mask:0xf bank_mask:0xf')
    I('s_mov_b32 exec_lo, 0x11111111')
    I('s_mov_b32 exec_hi, 0x11111111')
    I(f'buffer_store_dwordx2 v[{M}:{V}], v{vROW}, s[24:27], s54 offen sc0 sc1')
    st.flush(24, 34, 124, vLANE)
    a.label('K3_end')
    I('s_endpgm')
    print("K3 instrs", a.ninstr, "nops", a.nnop)
    return a.text(), kernel_desc(name, 128, 96)
```

```python
from common import *

def gen_k5m(name, stamps=False, LA=2, X={}):
    a = Asm()
    st = Stamper(a, stamps, 5)
    kernel_header(a, name)
    I = a.I
    vLANE, vBL = 1, 2
    T = [4,5,6,7,8,9,10,11]
    AD = [12,13,212,213]
    vEP = 14
    vRD = [15, 3]
    WR = [214,215,216,217]
    X1R, X1BR = 16, 20
    GB = 24
    ACC = 32
    AFR = 64
    BF = 96
    NR = 7; NS = 5
    I('s_cmp_ge_u32 s2, 256')
    I('s_cbranch_scc1 K5_end')
    I(f's_load_dwordx2 s[12:13], s[0:1], {KA_W4}')
    I(f's_load_dwordx2 s[24:25], s[0:1], {KA_WS}')
    I(f's_load_dwordx2 s[8:9], s[0:1], {KA_OUT}')
    I(f'v_and_b32 v{vLANE}, 63, v0')
    I('v_lshrrev_b32 v3, 6, v0')
    I('s_nop 0')
    I('v_readfirstlane_b32 s34, v3')
    I('s_and_b32 s35, s2, 7')
    I('s_lshr_b32 s36, s2, 3')
    I('s_lshl_b32 s35, s35, 2')
    I('s_lshr_b32 s37, s36, 3')
    I('s_add_u32 s35, s35, s37')
    I('s_and_b32 s36, s36, 7')
    I('s_and_b32 s38, s34, 1')
    I('s_lshr_b32 s39, s34, 1')
    I('s_lshl_b32 s40, s35, 1')
    I('s_add_u32 s40, s40, s38')
    I(f'v_and_b32 v{T[3]}, 15, v{vLANE}')
    I(f'v_lshrrev_b32 v{T[4]}, 4, v{vLANE}')
    I(f'v_lshlrev_b32 v{vBL}, 4, v{T[3]}')
    N16 = X.get('n16', 0)
    I(f'v_lshl_add_u32 v{vBL}, v{T[4]}, {8 if N16 else 9}, v{vBL}')
    for d, n in ((12, 1792*1024), (8, 2048*1024), (24, WS_SIZE)):
        I(f's_mov_b32 s{d+2}, {n:#x}'); I(f's_mov_b32 s{d+3}, 0x00020000')
    I(f'v_bfe_u32 v{T[0]}, v{vLANE}, 3, 2')
    I(f'v_lshrrev_b32 v{T[1]}, 5, v{vLANE}')
    I(f'v_lshl_add_u32 v{T[0]}, v{T[1]}, 3, v{T[0]}')
    I(f'v_and_b32 v{T[1]}, 7, v{vLANE}')
    I(f'v_lshlrev_b32 v{T[2]}, 1, v{T[4]}')
    I(f'v_xor_b32 v{T[1]}, v{T[1]}, v{T[2]}')
    I(f'v_lshlrev_b32 v{T[1]}, 4, v{T[1]}')
    I(f'v_lshl_add_u32 v{T[1]}, v{T[0]}, 10, v{T[1]}')
    I(f's_mul_i32 s45, s39, {448*1024}')
    I('s_lshl_b32 s46, s36, 7')
    I('s_add_u32 s45, s45, s46')
    I('s_lshl_b32 s46, s38, 14')
    I('s_add_u32 s45, s45, s46')
    I('s_lshl_b32 s46, s39, 13')
    I('s_lshl_b32 s47, s38, 10')
    I('s_add_u32 s46, s46, s47')
    I('s_mul_i32 s49, s40, 114688')
    I(f's_mul_i32 s50, s39, {28*1024}')
    I('s_add_u32 s49, s49, s50')
    I(f's_add_u32 s49, s49, {WS_T2:#x}')
    ROT = X.get('rot', (0, 2))
    I(f's_mul_i32 s54, s36, {ROT[0]}')
    I(f's_mul_i32 s55, s37, {ROT[1]}')
    I('s_add_u32 s54, s54, s55')
    I('s_mul_i32 s55, s54, 37'); I('s_lshr_b32 s55, s55, 8'); I('s_mul_i32 s55, s55, 7'); I('s_sub_u32 s54, s54, s55')
    def round_loads(R):
        L = []
        for j in range(4):
            pre = 's_lshl_b32 s55, s54, 16\ns_add_u32 s55, s55, s45\n' if j == 0 else ''
            L.append(pre + f's_add_u32 m0, s46, {(R % NS)*32768 + j*2048}\ns_add_u32 s48, s55, {(32*(j >> 1) + 4*(j & 1))*1024}\nbuffer_load_dwordx4 v{T[1]}, s[12:15], s48 offen lds')
        L.append('s_lshl_b32 s50, s54, 12\ns_add_u32 s50, s50, s49\ns_add_u32 s54, s54, 1\ns_cmp_eq_u32 s54, 7\ns_cselect_b32 s54, 0, s54')
        for j in range(4):
            ks = 4*R + j
            L.append(f'buffer_load_dwordx4 v[{BF+4*ks}:{BF+4*ks+3}], v{vBL}, s[24:27], s50 offen offset:{2048*(j >> 1) + (1024 if N16 else 256)*(j & 1)}')
        return L
    LB = X.get('lb', 0)
    if LB:
        I('s_mov_b32 s56, s54')
        def dma_loads(R):
            L = []
            for j in range(4):
                pre = 's_lshl_b32 s55, s54, 16\ns_add_u32 s55, s55, s45\ns_add_u32 s54, s54, 1\ns_cmp_eq_u32 s54, 7\ns_cselect_b32 s54, 0, s54\n' if j == 0 else ''
                L.append(pre + f's_add_u32 m0, s46, {(R % NS)*32768 + j*2048}\ns_add_u32 s48, s55, {(32*(j >> 1) + 4*(j & 1))*1024}\nbuffer_load_dwordx4 v{T[1]}, s[12:15], s48 offen lds ; W:D{R}')
            return L
        def b_loads(R):
            L = ['s_lshl_b32 s57, s56, 12\ns_add_u32 s57, s57, s49\ns_add_u32 s56, s56, 1\ns_cmp_eq_u32 s56, 7\ns_cselect_b32 s56, 0, s56']
            for j in range(4):
                ks = 4*R + j
                L.append(f'buffer_load_dwordx4 v[{BF+4*ks}:{BF+4*ks+3}], v{vBL}, s[24:27], s57 offen offset:{2048*(j >> 1) + (1024 if N16 else 256)*(j & 1)}')
            return L
        def round_loads(R):
            L = []
            if R < NR: L += dma_loads(R)
            if R < LA: L += b_loads(R)
            if R == LA - 1:
                for r2 in range(LA, LA + LB): L += b_loads(r2)
            elif R >= LA and R + LB < NR: L += b_loads(R + LB)
            return L
    I('s_waitcnt lgkmcnt(0)')
    st.first()
    PR = X.get('pr', 0)
    for R in range(LA):
        rl = round_loads(R)
        if PR == 1: I(f's_setprio {3 - R}')
        if PR == 2:
            I(f's_setprio {3 - 2*R}')
            for s in rl[:4]: I(s)
            I(f's_setprio {2 - 2*R}')
            for s in rl[4:]: I(s)
            continue
        for s in rl: I(s)
    if PR: I('s_setprio 0')
    I(f'v_lshrrev_b32 v{T[6]}, 2, v{vLANE}')
    I(f'v_lshlrev_b32 v{T[6]}, 7, v{T[6]}')
    I(f'v_and_b32 v{T[7]}, 3, v{vLANE}')
    I(f'v_lshl_add_u32 v{T[6]}, v{T[7]}, 3, v{T[6]}')
    I('s_lshl_b32 s50, s39, 13')
    I(f'v_add_u32 v{T[6]}, s50, v{T[6]}')
    I(f'v_bfe_u32 v{T[7]}, v{vLANE}, 3, 2')
    for nt in range(4):
        I(f'v_xor_b32 v{T[5]}, {nt}, v{T[7]}')
        I(f'v_lshl_add_u32 v{AD[nt]}, v{T[5]}, 5, v{T[6]}')
    RED = 65536
    I(f'v_xor_b32 v{T[4]}, v{T[4]}, v{T[3]}')
    I('s_lshl_b32 s50, s34, 13')
    I(f's_add_u32 s50, s50, {RED}')
    I(f'v_lshl_add_u32 v{T[3]}, v{T[3]}, 8, s50')
    for nt in range(4):
        I(f'v_xor_b32 v{T[5]}, {4*nt}, v{T[4]}')
        I(f'v_lshl_add_u32 v{WR[nt]}, v{T[5]}, 4, v{T[3]}')
    def epi_loads():
        L = []
        L.append('s_lshl_b32 s51, s40, 15')
        L.append('s_lshl_b32 s52, s36, 12')
        L.append('s_add_u32 s51, s51, s52')
        L.append(f'v_lshrrev_b32 v{T[3]}, 3, v{vLANE}\ns_lshl_b32 s52, s39, 3\nv_add_u32 v{T[5]}, s52, v{T[3]}')
        L.append(f'v_and_b32 v{T[4]}, 1, v{vLANE}\nv_lshl_add_u32 v{T[3]}, v{T[4]}, 5, v{T[5]}\nv_lshlrev_b32 v{T[3]}, 4, v{T[3]}')
        L.append(f'v_bfe_u32 v{T[4]}, v{vLANE}, 1, 2\nv_lshl_add_u32 v{vEP}, v{T[4]}, 10, v{T[3]}')
        L.append(f's_add_u32 s52, s51, {WS_X1:#x}')
        L.append(f'buffer_load_dwordx4 v[{X1R}:{X1R+3}], v{vEP}, s[24:27], s52 offen')
        L.append(f's_add_u32 s52, s51, {WS_X1B:#x}')
        L.append(f'buffer_load_dwordx4 v[{X1BR}:{X1BR+3}], v{vEP}, s[24:27], s52 offen')
        L.append(f'v_and_b32 v{T[3]}, 7, v{vLANE}')
        L.append(f'v_lshlrev_b32 v{T[4]}, 1, v{T[3]}\nv_and_b32 v{T[6]}, 15, v{T[5]}\nv_xor_b32 v{T[4]}, v{T[4]}, v{T[6]}')
        L.append(f's_lshl_b32 s52, s38, 13\ns_add_u32 s52, s52, {RED}\nv_lshl_add_u32 v{T[5]}, v{T[5]}, 8, s52\nv_lshl_add_u32 v{vRD[0]}, v{T[4]}, 4, v{T[5]}\nv_xor_b32 v{vRD[1]}, 16, v{vRD[0]}')
        L.append(f'v_lshlrev_b32 v{T[3]}, 5, v{T[3]}')
        L.append('s_lshl_b32 s52, s36, 8')
        L.append(f's_add_u32 s52, s52, {WS_MOD + 3*2048:#x}')
        L.append(f'buffer_load_dwordx4 v[{GB}:{GB+3}], v{T[3]}, s[24:27], s52 offen')
        L.append(f'buffer_load_dwordx4 v[{GB+4}:{GB+7}], v{T[3]}, s[24:27], s52 offen offset:16')
        return L
    def rd(R, jj, nt, slot):
        L = []
        off = ((R % NS) % 2) * 32768 + jj*4096
        for t in range(2):
            d = AFR + 4*slot + 2*t
            L.append(f'ds_read_b64_tr_b16 v[{d}:{d+1}], v{AD[nt]} offset:{off + t*2048}')
        return L
    def adv(R):
        cur = ((R-1) % NS) // 2; new = (R % NS) // 2
        d = (new - cur) * 65536
        if d == 0: return []
        if d > 0: return [f'v_add_u32 v{AD[n]}, {d}, v{AD[n]}' for n in range(4)]
        return [f'v_subrev_u32 v{AD[n]}, {-d}, v{AD[n]}' for n in range(4)]
    issued = [8]*LA
    st()
    for R in range(NR):
        allowed = 4 + sum(issued[R+1:])
        if LB: a.wait_tags([f'D{R}'])
        else: I(f's_waitcnt vmcnt({allowed})')
        I('s_barrier')
        side = []
        if R + LA < NR:
            side = round_loads(R+LA); issued.append(8)
        elif R + LA == NR:
            side = epi_loads(); issued.append(4)
        seq = [(jj, nt) for jj in range(2) for nt in range(4)]
        main = []
        PRE = X.get('pre', 4)
        for i in range(PRE):
            main += rd(R, seq[i][0], seq[i][1], i)
        for i, (jj, nt) in enumerate(seq):
            for rq in range(2):
                b = ACC + 4*(4*rq + nt)
                ks = 4*R + 2*jj + rq
                cc = '0' if (R == 0 and jj == 0) else f'v[{b}:{b+3}]'
                main.append(f'v_mfma_f32_16x16x32_bf16 v[{b}:{b+3}], v[{AFR+4*i}:{AFR+4*i+3}], v[{BF+4*ks}:{BF+4*ks+3}], {cc}')
                if i + PRE < 8:
                    main.append(rd(R, seq[i+PRE][0], seq[i+PRE][1], i+PRE)[rq])
                if R == NR - 1 and jj == 1 and nt > 0:
                    pb = ACC + 4*(4*rq + nt - 1)
                    main.append(f'ds_write_b128 v{WR[nt-1]}, v[{pb}:{pb+3}] offset:{4096*rq}')
        if R + 1 < NR: main += adv(R+1)
        for s in merge(main, side): I(s)
    st()
    for rq in range(2):
        pb = ACC + 4*(4*rq + 3)
        I(f'ds_write_b128 v{WR[3]}, v[{pb}:{pb+3}] offset:{4096*rq}')
    I('s_mov_b32 s52, 0xffff0000')
    U = BF
    for e in range(8):
        if e % 2 == 0:
            I(f'v_lshlrev_b32 v{U+e}, 16, v{X1BR+e//2}'); I(f'v_lshlrev_b32 v{U+8+e}, 16, v{X1R+e//2}')
        else:
            I(f'v_and_b32 v{U+e}, s52, v{X1BR+e//2}'); I(f'v_and_b32 v{U+8+e}, s52, v{X1R+e//2}')
    I(f'v_lshrrev_b32 v{T[1]}, 3, v{vLANE}')
    I(f'v_lshlrev_b32 v{T[1]}, 10, v{T[1]}')
    I(f'v_and_b32 v{T[2]}, 7, v{vLANE}')
    I(f'v_lshl_add_u32 v{T[1]}, v{T[2]}, 4, v{T[1]}')
    I('s_lshl_b32 s50, s40, 15')
    I('s_lshl_b32 s51, s36, 7')
    I('s_add_u32 s50, s50, s51')
    I('s_lshl_b32 s51, s39, 13')
    I('s_add_u32 s50, s50, s51')
    I('s_waitcnt lgkmcnt(0)')
    I('s_barrier')
    for q in range(4):
        for h in range(2):
            r = AFR + 8*q + 4*h
            I(f'ds_read_b128 v[{r}:{r+3}], v{vRD[h]} offset:{16384*q}')
    P = lambda r: f'v[{r}:{r+1}]'
    for e in range(0, 8, 2): I(f'v_pk_add_f32 {P(AFR+e)}, {P(AFR+e)}, {P(AFR+8+e)}')
    for e in range(0, 8, 2): I(f'v_pk_add_f32 {P(AFR+16+e)}, {P(AFR+16+e)}, {P(AFR+24+e)}')
    for e in range(0, 8, 2): I(f'v_pk_add_f32 {P(AFR+e)}, {P(AFR+e)}, {P(AFR+16+e)}')
    for e in range(0, 8, 2): I(f'v_pk_add_f32 {P(AFR+e)}, {P(AFR+e)}, {P(U+e)}')
    for e in range(0, 8, 2): I(f'v_pk_fma_f32 {P(AFR+e)}, {P(AFR+e)}, {P(GB+e)}, {P(U+8+e)}')
    for j in range(4):
        I(f'v_cvt_pk_bf16_f32 v{ACC+j}, v{AFR+2*j}, v{AFR+2*j+1}')
    I(f'buffer_store_dwordx4 v[{ACC}:{ACC+3}], v{T[1]}, s[8:11], s50 offen')
    st.flush(24, 34, 208, vLANE)
    a.label('K5_end')
    I('s_endpgm')
    print("K5 instrs", a.ninstr, "nops", a.nnop)
    return a.text(), kernel_desc(name, 224, 96)
```

```python
import sys
sys.path.insert(0,'gen')
from fin import final
for nm, x in zip('abcdefgh', ({}, {'sk16':11}, {'sk16':11,'sksp':3}, {'sk16':11,'sksp':4}, {'sk16':10,'sksp':4}, {'sk16':11,'sksp':3,'la16':(10,8)}, {'sk16':11,'sksp':3,'pr4':(0,8,16,22)}, {'sk16':12,'sksp':3})):
    final(f'w{nm}.s', X=x)
```

```python
from common import *

NB_G0 = 32
NB_LN = 128
B_LN = NB_G0
B_G1 = B_LN + NB_LN
B_VP = B_G1 + 136
B_W1 = B_VP + 32
NB_K0 = B_W1 + 32
def set_c3(on):
    global B_VP, B_W1, NB_K0
    global J1
    B_VP = B_G1 + {0: 136, 1: 80, 2: 16}[on]; B_W1 = B_VP + 32; NB_K0 = B_W1 + 32
    J1 = 96 if on == 2 else 32
    return NB_K0
J1 = 32

def gen_k0n(name, stamps=False, STF='', lite=0, xpf=0, qrows=512, perm=0, skipj=(), fold=0, w1n=0):
    a = Asm()
    st = Stamper(a, stamps, 0)
    kernel_header(a, name)
    I = a.I
    log2e = f32bits(1.4426950408889634)
    I(f's_cmp_ge_u32 s2, {(B_VP if fold else NB_K0) + xpf}')
    I('s_cbranch_scc1 K0_end')
    if perm == 1:
        I('s_add_u32 s3, s2, 128'); I('s_cmp_lt_u32 s2, 32'); I('s_cselect_b32 s3, s2, s3')
        I('s_sub_u32 s29, s2, 200'); I('s_cmp_ge_u32 s2, 232'); I('s_cselect_b32 s2, s29, s3')
    if perm == 3:
        I('s_add_u32 s3, s2, 32'); I('s_sub_u32 s29, s2, 128'); I('s_cmp_lt_u32 s2, 128'); I('s_cselect_b32 s3, s3, s29')
        I('s_cmp_lt_u32 s2, 160'); I('s_cselect_b32 s2, s3, s2')
    if perm == 4:
        I('s_add_u32 s3, s2, 128'); I('s_cmp_lt_u32 s2, 32'); I('s_cselect_b32 s3, s2, s3')
        I('s_sub_u32 s29, s2, 80'); I('s_cmp_ge_u32 s2, 112'); I('s_cselect_b32 s2, s29, s3')
    if perm == 2:
        I('s_add_u32 s3, s2, 64'); I('s_sub_u32 s29, s2, 64'); I('s_cmp_lt_u32 s2, 96'); I('s_cselect_b32 s3, s29, s3')
        I('s_add_u32 s29, s2, 296'); I('s_cmp_lt_u32 s2, 64'); I('s_cselect_b32 s3, s29, s3')
        I('s_sub_u32 s29, s2, 200'); I('s_cmp_ge_u32 s2, 232'); I('s_cselect_b32 s2, s29, s3')
    I(f's_load_dwordx2 s[4:5], s[0:1], {KA_X}')
    I(f's_load_dwordx4 s[8:11], s[0:1], {KA_C}')
    I(f's_load_dwordx2 s[12:13], s[0:1], {KA_W1}')
    I(f's_load_dwordx2 s[14:15], s[0:1], {KA_W3}')
    I(f's_load_dwordx2 s[16:17], s[0:1], {KA_WS}')
    I(f's_load_dwordx2 s[58:59], s[0:1], {KA_V}')
    I('v_lshrrev_b32 v3, 6, v0')
    I('v_and_b32 v9, 63, v0')
    I('v_readfirstlane_b32 s54, v3')
    if xpf:
        I(f's_cmp_ge_u32 s2, {B_VP if fold else NB_K0}')
        I('s_cbranch_scc1 K0_xp')
    if not fold:
        I(f's_cmp_ge_u32 s2, {B_VP}')
        I('s_cbranch_scc1 K0_s')
    I(f's_cmp_lt_u32 s2, {B_LN}')
    I('s_cbranch_scc1 K0_g')
    I(f's_cmp_ge_u32 s2, {B_G1}')
    I('s_cbranch_scc1 K0_g' if not lite else 's_cbranch_scc1 K0_end')
    I('s_cmp_ge_u32 s54, 4')
    I('s_cbranch_scc1 K0_end' if not fold else 's_cbranch_scc1 K0_s')
    I(f's_sub_u32 s29, s2, {B_LN}')
    I('v_lshrrev_b32 v7, 3, v9')
    I('v_and_b32 v4, 7, v9')
    I('v_lshlrev_b32 v5, 10, v7')
    I('v_lshl_add_u32 v5, v4, 4, v5')
    I('s_lshr_b32 s30, s54, 1')
    I('s_and_b32 s31, s54, 1')
    I('s_lshl_b32 s44, s29, 14')
    I('s_lshl_b32 s45, s30, 13')
    I('s_add_u32 s44, s44, s45')
    I('s_lshl_b32 s45, s31, 9')
    I('s_add_u32 s46, s44, s45')
    I('s_xor_b32 s45, s45, 512')
    I('s_add_u32 s47, s44, s45')
    I('s_waitcnt lgkmcnt(0)')
    st.first()
    srd(a, 32, 4, 5, 2048*1024)
    for i in range(4):
        I(f'buffer_load_dwordx4 v[{32+4*i}:{35+4*i}], v5, s[32:35], s46 offen offset:{128*i}')
    for i in range(4):
        I(f'buffer_load_dwordx4 v[{48+4*i}:{51+4*i}], v5, s[32:35], s47 offen offset:{128*i}')
    srd(a, 40, 16, 17, WS_SIZE)
    I('v_lshrrev_b32 v10, 1, v4')
    I('v_lshlrev_b32 v10, 10, v10')
    I('v_and_b32 v11, 1, v4')
    I('v_lshl_add_u32 v10, v11, 9, v10')
    I('v_lshl_add_u32 v10, v7, 4, v10')
    I('s_and_b32 s44, s29, 1')
    I('s_lshl_b32 s44, s44, 8')
    I('s_lshl_b32 s45, s30, 7')
    I('s_add_u32 s44, s44, s45')
    I('s_lshr_b32 s45, s29, 1')
    I('s_lshl_b32 s45, s45, 15')
    I('s_add_u32 s44, s44, s45')
    I('s_lshl_b32 s45, s31, 14')
    I('s_add_u32 s44, s44, s45')
    I('s_mov_b32 s47, 0x3f803f80')
    I('s_mov_b32 s46, 0xffff0000')
    I('v_mov_b32 v12, 0x3f80')
    I('v_mov_b32 v13, 0x3f800000')
    I('v_mov_b32 v30, 0'); I('v_mov_b32 v31, 0'); I('v_mov_b32 v28, 0'); I('v_mov_b32 v29, 0')
    st()
    for i in range(0, 32, 2):
        I(f'v_dot2_f32_bf16 v30, v{32+i}, s47, v30')
        I(f'v_dot2_f32_bf16 v31, v{32+i}, v{32+i}, v31')
        I(f'v_dot2_f32_bf16 v28, v{33+i}, s47, v28')
        I(f'v_dot2_f32_bf16 v29, v{33+i}, v{33+i}, v29')
    I('s_nop 2')
    I('v_add_f32 v30, v30, v28')
    I('v_add_f32 v31, v31, v29')
    I('v_add_f32_dpp v28, v30, v30 quad_perm:[1,0,3,2] row_mask:0xf bank_mask:0xf')
    I('v_add_f32_dpp v29, v31, v31 quad_perm:[1,0,3,2] row_mask:0xf bank_mask:0xf')
    I('v_add_f32_dpp v30, v28, v28 quad_perm:[2,3,0,1] row_mask:0xf bank_mask:0xf')
    I('v_add_f32_dpp v31, v29, v29 quad_perm:[2,3,0,1] row_mask:0xf bank_mask:0xf')
    I('v_add_f32_dpp v28, v30, v30 row_half_mirror row_mask:0xf bank_mask:0xf')
    I('v_add_f32_dpp v29, v31, v31 row_half_mirror row_mask:0xf bank_mask:0xf')
    I(f'v_mul_f32 v30, {f32bits(1.0/512):#x}, v28')
    I(f'v_mul_f32 v31, {f32bits(1.0/512):#x}, v29')
    I('v_fma_f32 v31, -v30, v30, v31')
    I('v_max_f32 v31, 0, v31')
    rnd_bf16(a, 30, 30)
    rnd_bf16(a, 31, 31)
    I(f'v_add_f32 v31, {f32bits(1e-5):#x}, v31')
    rnd_bf16(a, 31, 31)
    I('v_sqrt_f32 v31, v31')
    I('v_sub_f32 v30, 0, v30')
    rnd_bf16(a, 31, 31)
    I('v_rcp_f32 v31, v31')
    st()
    for i in range(4):
        for d in range(4):
            r = 32 + 4*i + d
            I(f'v_dot2_f32_bf16 v{64+2*d}, v{r}, v12, v30')
            I(f'v_dot2_f32_bf16 v{65+2*d}, v{r}, v13, v30')
        I('s_nop 1')
        for e in range(8):
            rnd_bf16(a, 64+e, 64+e)
        for e in range(8):
            I(f'v_mul_f32 v{64+e}, v{64+e}, v31')
        for d in range(4):
            I(f'v_cvt_pk_bf16_f32 v{80+4*i+d}, v{64+2*d}, v{65+2*d}')
        I(f'buffer_store_dwordx4 v[{80+4*i}:{83+4*i}], v10, s[40:43], s44 offen')
        if i < 3: I('s_add_u32 s44, s44, 4096')
    st.flush(40, 54, 100, 9)
    I('s_endpgm')
    a.label('K0_g')
    a.vm_q = []; a.lds_q = []
    I(f's_sub_u32 s29, s2, {B_G1 - J1}')
    I(f's_cmp_lt_u32 s2, {B_LN}')
    I('s_cselect_b32 s29, s2, s29')
    if skipj:
        for lo, hi in [x for x in skipj if not isinstance(x, str)]:
            I(f's_sub_u32 s31, s29, {lo}')
            I(f's_cmp_lt_u32 s31, {hi - lo}')
            I('s_cbranch_scc1 K0_end')
    I('s_and_b32 s31, s29, 3')
    I('s_lshr_b32 s29, s29, 2')
    I('v_and_b32 v1, 15, v0')
    I('v_lshrrev_b32 v2, 4, v0')
    I('v_lshlrev_b32 v6, 3, v2')
    I('s_lshl_b32 s26, s31, 8')
    I(f's_mul_i32 s28, s31, {GP_STRIDE}')
    I('s_lshl_b32 s30, s29, 9')
    I('s_add_u32 s28, s28, s30')
    I(f's_add_u32 s28, s28, {WS_GP:#x}')
    I('s_waitcnt lgkmcnt(0)')
    st.n = 0
    st.first()
    srd(a, 36, 8, 9, 1024)
    I('buffer_load_dwordx2 v[10:11], v6, s[36:39], s26 offen')
    I('s_mov_b32 s20, s10'); I('s_mov_b32 s21, s11'); I(f's_mov_b32 s22, {512*6144}')
    I('s_movk_i32 s24, 6144')
    I('s_mov_b32 s25, s29')
    I('s_cmp_ge_u32 s29, 24')
    I('s_cselect_b32 s20, s12, s20'); I('s_cselect_b32 s21, s13, s21'); I(f's_cselect_b32 s22, {512*1024}, s22')
    I('s_cselect_b32 s24, 1024, s24'); I('s_cselect_b32 s30, 24, 0')
    I('s_cmp_ge_u32 s29, 28')
    I('s_cselect_b32 s20, s14, s20'); I('s_cselect_b32 s21, s15, s21'); I(f's_cselect_b32 s22, {512*3584}, s22')
    I('s_cselect_b32 s24, 3584, s24'); I('s_cselect_b32 s30, 28, s30')
    I('s_sub_u32 s25, s25, s30')
    I('s_lshl_b32 s25, s25, 8')
    I('s_lshl_b32 s30, s31, 7')
    I('s_mul_i32 s30, s30, s24')
    I('s_add_u32 s25, s25, s30')
    I('s_mov_b32 s23, 0x00020000')
    I('s_lshl_b32 s30, s24, 2')
    I('v_mul_lo_u32 v3, v2, s30')
    I('v_lshl_add_u32 v3, v1, 4, v3')
    for i in range(4):
        I(f'buffer_load_dwordx4 v[{32+4*i}:{35+4*i}], v3, s[20:23], s25 offen')
        if i < 3: I('s_add_u32 s25, s25, s24')
    srd(a, 40, 16, 17, WS_SIZE)
    I(f's_mov_b32 s45, {log2e:#x}')
    I('s_mov_b32 s46, 0xffff0000')
    I('s_mov_b32 s62, 0x05040100')
    I('s_mov_b32 s63, 0x07060302')
    I('s_cmp_ge_u32 s29, 24')
    I('s_cselect_b64 s[52:53], -1, 0')
    I('v_mov_b32 v24, 0x3f803f80')
    for e in range(8): I(f'v_mov_b32 v{16+e}, 0')
    I('v_lshrrev_b32 v28, 4, v9')
    I('v_lshlrev_b32 v28, 3, v28')
    I('v_lshl_add_u32 v28, v1, 5, v28')
    I('s_lshl_b32 s30, s54, 9')
    I('v_add_u32 v27, s30, v28')
    I('v_lshlrev_b32 v26, 2, v0')
    st()
    I('v_lshlrev_b32 v12, 16, v10'); I('v_and_b32 v13, s46, v10')
    I('v_lshlrev_b32 v14, 16, v11'); I('v_and_b32 v15, s46, v11')
    for e in range(4): I(f'v_mul_f32 v{4+e}, s45, v{12+e}')
    for e in range(4): I(f'v_exp_f32 v{4+e}, -v{4+e}')
    for e in range(4): I(f'v_add_f32 v{4+e}, 1.0, v{4+e}')
    for e in range(4): I(f'v_rcp_f32 v{4+e}, v{4+e}')
    for e in range(4): I(f'v_mul_f32 v{12+e}, v{12+e}, v{4+e}')
    I('v_cvt_pk_bf16_f32 v10, v12, v13')
    I('v_cvt_pk_bf16_f32 v11, v14, v15')
    I('v_cndmask_b32 v10, v10, v24, s[52:53]')
    I('v_cndmask_b32 v11, v11, v24, s[52:53]')
    for p in range(2):
        for d in range(4):
            r0 = 32 + 8*p + d; r1 = r0 + 4
            I(f'v_perm_b32 v{4+(d&1)*2}, v{r1}, v{r0}, s62')
            I(f'v_perm_b32 v{5+(d&1)*2}, v{r1}, v{r0}, s63')
            I(f'v_dot2_f32_bf16 v{16+2*d}, v{4+(d&1)*2}, v{10+p}, v{16+2*d}')
            I(f'v_dot2_f32_bf16 v{17+2*d}, v{5+(d&1)*2}, v{10+p}, v{17+2*d}')
    for e in range(4):
        I(f'v_permlane32_swap_b32 v{16+e}, v{20+e}')
    for e in range(4):
        I(f'v_add_f32 v{16+e}, v{16+e}, v{20+e}')
    for e in range(2):
        I(f'v_permlane16_swap_b32 v{16+e}, v{18+e}')
    for e in range(2):
        I(f'v_add_f32 v{16+e}, v{16+e}, v{18+e}')
    I('ds_write_b64 v27, v[16:17]')
    I('s_waitcnt lgkmcnt(0)')
    I('s_barrier')
    st()
    if not stamps:
        I('s_cmp_ge_u32 s54, 2')
        I('s_cbranch_scc1 K0_end')
    if stamps: I('v_and_b32 v26, 511, v26')
    for i in range(8):
        I(f'ds_read_b32 v{48+i}, v26 offset:{512*i}')
    for stp in (4, 2, 1):
        for i in range(stp):
            I(f'v_add_f32 v{48+i}, v{48+i}, v{48+i+stp}')
    I('buffer_store_dword v48, v26, s[40:43], s28 offen' + STF)
    st.flush(40, 54, 100, 9)
    a.label('K0_end')
    I('s_endpgm')
    a.label('K0_s')
    I('s_lshl_b32 s66, s54, 12')
    if fold:
        I('s_cmp_ge_u32 s54, 6')
        I('s_cbranch_scc1 K0_s1')
    else:
        I(f's_cmp_ge_u32 s2, {B_W1 if lite < 2 else B_VP}')
        I('s_cbranch_scc1 K0_s1' if not lite else 's_cbranch_scc1 K0_end')
    if 'vp' in skipj: I('s_branch K0_end')
    if fold:
        I(f's_sub_u32 s29, s2, {B_LN}')
        I('s_and_b32 s64, s29, 7')
        I('s_lshr_b32 s65, s29, 3')
        I('s_lshl_b32 s65, s65, 1')
        I('s_and_b32 s63, s54, 1')
        I('s_add_u32 s65, s65, s63')
    else:
        I(f's_sub_u32 s29, s2, {B_VP}')
        I('s_and_b32 s64, s29, 7')
        I('s_lshr_b32 s65, s29, 3')
        I('s_lshl_b32 s65, s65, 3')
        I('s_add_u32 s65, s65, s54')
    I('v_lshlrev_b32 v10, 4, v9')
    I('v_lshrrev_b32 v11, 4, v9')
    I('v_lshlrev_b32 v11, 6, v11')
    I('v_xor_b32 v10, v10, v11')
    I('s_lshl_b32 s62, s64, 19')
    I('s_lshl_b32 s63, s65, 12')
    I('s_add_u32 s62, s62, s63')
    I(f's_add_u32 s62, s62, {1536*256}')
    I('s_mov_b32 m0, s66')
    I('s_mov_b32 s55, s66')
    I('s_waitcnt lgkmcnt(0)')
    st.n = 0
    st.first()
    I('s_mov_b32 s66, s55')
    srd(a, 48, 58, 59, 8*2048*256)
    for j in range(4):
        I(f'buffer_load_dwordx4 v10, s[48:51], s62 offen offset:{1024*j} lds')
    srd(a, 40, 16, 17, WS_SIZE)
    I('v_lshrrev_b32 v11, 5, v9')
    I('v_bfe_u32 v12, v9, 2, 2')
    I('v_lshl_add_u32 v11, v11, 2, v12')
    I('v_lshlrev_b32 v11, 8, v11')
    I('v_bfe_u32 v13, v9, 4, 1')
    I('v_lshl_add_u32 v11, v13, 5, v11')
    I('v_and_b32 v13, 1, v9')
    I('v_lshl_add_u32 v11, v13, 4, v11')
    I('v_bfe_u32 v13, v9, 1, 1')
    I('v_lshl_add_u32 v11, v13, 3, v11')
    I('v_add_u32 v11, s66, v11')
    I('v_lshlrev_b32 v10, 4, v9')
    I('s_lshl_b32 s62, s64, 17')
    I('s_lshl_b32 s63, s65, 12')
    I('s_add_u32 s62, s62, s63')
    I(f's_add_u32 s62, s62, {WS_VP:#x}')
    I('s_waitcnt vmcnt(0)')
    for mt in range(4):
        I(f'v_xor_b32 v13, {mt}, v12')
        I('v_lshl_add_u32 v13, v13, 6, v11')
        for t in range(2):
            I(f'ds_read_b64_tr_b16 v[{32+4*mt+2*t}:{33+4*mt+2*t}], v13 offset:{8*t*256}')
    for mt in range(4):
        I(f'buffer_store_dwordx4 v[{32+4*mt}:{35+4*mt}], v10, s[40:43], s62 offen offset:{1024*mt}')
    st.flush(40, 54, 100, 9)
    I('s_endpgm')
    a.label('K0_s1')
    if 'w1' in skipj: I('s_branch K0_end')
    if fold:
        I(f's_sub_u32 s29, s2, {B_LN}')
        I('s_lshl_b32 s29, s29, 1')
        I('s_and_b32 s63, s54, 1')
        I('s_add_u32 s29, s29, s63')
    else:
        I(f's_sub_u32 s29, s2, {B_W1}')
        I('s_lshl_b32 s29, s29, 3')
        I('s_add_u32 s29, s29, s54')
    I('v_lshrrev_b32 v10, 2, v9')
    I('v_lshlrev_b32 v10, 10, v10')
    I('v_and_b32 v11, 3, v9')
    I('v_lshl_add_u32 v10, v11, 4, v10')
    I('s_lshr_b32 s62, s29, 4')
    I('s_lshl_b32 s62, s62, 15')
    I('s_and_b32 s63, s29, 15')
    I('s_lshl_b32 s63, s63, 6')
    I('s_add_u32 s62, s62, s63')
    I('s_mov_b32 m0, s66')
    I('s_mov_b32 s55, s66')
    I('s_waitcnt lgkmcnt(0)')
    st.n = 0
    st.first()
    I('s_mov_b32 s66, s55')
    srd(a, 48, 12, 13, 512*1024)
    I('buffer_load_dwordx4 v10, s[48:51], s62 offen lds')
    I('s_add_u32 s62, s62, 16384')
    I('s_add_u32 s63, s66, 1024')
    I('s_mov_b32 m0, s63')
    I('buffer_load_dwordx4 v10, s[48:51], s62 offen lds')
    srd(a, 40, 16, 17, WS_SIZE)
    I('v_bfe_u32 v11, v9, 4, 1')
    I('v_lshlrev_b32 v11, 4, v11')
    I('v_lshrrev_b32 v12, 5, v9')
    I('v_lshl_add_u32 v11, v12, 3, v11')
    I('v_bfe_u32 v12, v9, 2, 2')
    I('v_add_u32 v11, v11, v12')
    I('v_lshlrev_b32 v11, 6, v11')
    I('v_and_b32 v12, 3, v9')
    I(f'v_lshl_add_u32 v11, v12, {3 if w1n else 4}, v11')
    I('v_add_u32 v11, s66, v11')
    I('v_lshlrev_b32 v10, 4, v9')
    I('s_and_b32 s62, s29, 15')
    I('s_lshl_b32 s62, s62, 15')
    I('s_lshr_b32 s63, s29, 4')
    I('s_lshl_b32 s63, s63, 10')
    I('s_add_u32 s62, s62, s63')
    I(f's_add_u32 s62, s62, {WS_W1P:#x}')
    I('s_waitcnt vmcnt(0)')
    for T in range(2):
        for t in range(2):
            I(f'ds_read_b64_tr_b16 v[{32+4*T+2*t}:{33+4*T+2*t}], v11 offset:{4*t*64 + (32 if w1n else 8)*T}')
    I('buffer_store_dwordx4 v[32:35], v10, s[40:43], s62 offen')
    I('s_add_u32 s62, s62, 16384')
    I('buffer_store_dwordx4 v[36:39], v10, s[40:43], s62 offen')
    st.flush(40, 54, 100, 9)
    I('s_endpgm')
    if xpf:
        a.label('K0_xp')
        nw = xpf
        rows = qrows // nw
        I(f's_load_dwordx2 s[32:33], s[0:1], {KA_WQ}')
        I(f's_sub_u32 s29, s2, {B_VP if fold else NB_K0}')
        I('s_and_b32 s31, s29, 7')
        I('s_lshr_b32 s29, s29, 3')
        I('s_lshl_b32 s29, s29, 3')
        I('s_add_u32 s29, s29, s54')
        I(f's_mul_i32 s29, s29, {rows*8192}')
        I('s_lshl_b32 s31, s31, 10')
        I('s_add_u32 s29, s29, s31')
        I('v_lshrrev_b32 v10, 3, v9')
        I(f'v_min_u32 v10, {min(rows, 8)-1}, v10')
        I('v_lshlrev_b32 v10, 13, v10')
        I('v_and_b32 v11, 7, v9')
        I('v_lshl_add_u32 v10, v11, 7, v10')
        I('s_mov_b32 s34, 0x400000'); I('s_mov_b32 s35, 0x00020000')
        I('s_waitcnt lgkmcnt(0)')
        for i in range(max(1, rows // 8)):
            I(f'buffer_load_dword v{20+i}, v10, s[32:35], s29 offen')
            I('s_add_u32 s29, s29, 65536')
        I('s_endpgm')
    print("K0 instrs", a.ninstr, "nops", a.nnop)
    return a.text(), kernel_desc(name, 128, 96)
```

```python
from common import *

SLOT = 32768
KV_SLOT = {16: 1, 17: 2, 18: 3, 19: 4, 20: 0, 21: 1, 22: 2, 23: 3}
def slot_of(c): return KV_SLOT[c] * SLOT

def interleave(main, side):
    out = []
    n = len(main); m = len(side); k = 0
    for i, x in enumerate(main):
        out.append(x)
        tgt = (m * (i + 1)) // n
        while k < tgt:
            out.append(side[k]); k += 1
    return out

DEF_OLD = {'late':'', 'early':'u m x0 a0 v a1', 'post':'a2 a3', 'after':{0:'a4 a5', 1:'x1', 3:'k'}, 'sl':(('x2',4),('x3',10),('f',12)), 'mq':((1,4,3),(2,10,4),(3,17,4)), 'bars':(7,14,22), 'fin':24, 'late0':8, 'r16':1}
DEF = {'late':'a0 a1 v', 'early':'P3 m x0 P2 x1 x2 x3 P1', 'mid':'u', 'milp':1, 'late1':'a2 a3', 'post':'a4 a5', 'after':{3:'k'}, 'sl':(('f',12),), 'mq':(), 'bars':(), 'fin':24, 'late0':8, 'r16':1,
       'mall':4, 'alate':1, 'xm':2, 'xi':1}
def gen_k1p(name, stamps=False, X=(), offs=106.0):
    X = dict(DEF, **X) if isinstance(X, dict) else dict(DEF, **{k: True for k in X})
    a = Asm()
    OFFS = f'{f32bits(-float(offs)):#x}'
    st = VStamper(a, stamps, 1, 0)
    kernel_header(a, name)
    I = a.I
    M16 = X.get('m16', '')
    tog = {}
    def MF(ph, d, A, B, first, A2=None, B2=None):
        if ph not in M16.split():
            cc = '0' if first else f'v[{d}:{d+15}]'
            return f'v_mfma_f32_32x32x16_bf16 v[{d}:{d+15}], v[{A}:{A+3}], v[{B}:{B+3}], {cc}'
        if first: tog[d] = 0
        t = tog[d]; tog[d] += 1
        L = []
        for i, (x, y) in enumerate(((A, B), (A2 if A2 is not None else A, B2 if B2 is not None else B))):
            dd = d + 8*(t & 1) + 4*i
            cc = '0' if t < 2 else f'v[{dd}:{dd+3}]'
            L.append(f'v_mfma_f32_16x16x32_bf16 v[{dd}:{dd+3}], v[{x}:{x+3}], v[{y}:{y+3}], {cc}')
        return '\n'.join(L)
    vD, vD2 = 1, 2
    vB = [3, 4]
    vA = [5, 6, 7, 8]
    vKA = [9,10,11,12,13,14,15,16]
    vT0, vT1, vT2, vT3 = 17,18,19,20
    vMX = 21; vNEGM = 22; vL = [23,24,25,26]
    vLANE16 = 27
    vKD = [28,29,30,31]
    ACC = 160
    AF = 224
    BFB = 240
    vHW = vT0
    sK, sWQ, sWO, sWS, sTC = 4, 8, 12, 16, 20
    sW, sG, sRB, sHD, sRH, sW4K, sBQ, sBK, sBO, sBV = 24, 25, 26, 27, 28, 29, 30, 31, 32, 33
    t0, t1, t2 = 34, 35, 3
    MODS = 36
    I('s_cmp_ge_u32 s2, 256')
    I('s_cbranch_scc1 K1_end')
    I(f's_load_dwordx2 s[{sWS}:{sWS+1}], s[0:1], {KA_WS}')
    I(f's_load_dwordx2 s[{sWQ}:{sWQ+1}], s[0:1], {KA_WQ}')
    I(f's_load_dwordx2 s[{sK}:{sK+1}], s[0:1], {KA_K}')
    I(f's_load_dwordx2 s[{sWO}:{sWO+1}], s[0:1], {KA_WO}')
    VTR = X.get('vtr', 0)
    sV = 76
    if VTR: I(f's_load_dwordx2 s[{sV}:{sV+1}], s[0:1], {KA_V}')
    if 'xfake' in X:
        I(f's_load_dwordx2 s[80:81], s[0:1], {KA_X}')
        I(f's_mov_b32 s82, {2048*1024}'); I('s_mov_b32 s83, 0x00020000')
    I('v_and_b32 v21, 63, v0')
    I('v_lshrrev_b32 v18, 6, v0')
    I(f'v_lshlrev_b32 v{vLANE16}, 4, v21')
    I(f'v_readfirstlane_b32 s{sW}, v18')
    if X.get('xm'):
        lg_ = X['xm']
        I(f's_and_b32 s{sG}, s2, {(7 >> lg_) << lg_}')
        I(f's_bfe_u32 s{t0}, s2, {(lg_ << 16) | 3:#x}')
        I(f's_or_b32 s{sG}, s{sG}, s{t0}')
        I(f's_and_b32 s{sRB}, s2, {(1 << lg_) - 1}')
        I(f's_lshl_b32 s{sRB}, s{sRB}, {5 - lg_}')
        I(f's_lshr_b32 s{t0}, s2, {3 + lg_}')
        I(f's_add_u32 s{sRB}, s{sRB}, s{t0}')
    elif X.get('xmap'):
        I(f's_bfe_u32 s{sG}, s2, 0x30003')
        I(f's_and_b32 s{sRB}, s2, 7')
        I(f's_lshl_b32 s{sRB}, s{sRB}, 2')
        I(f's_lshr_b32 s{t0}, s2, 6')
        I(f's_add_u32 s{sRB}, s{sRB}, s{t0}')
    else:
        I(f's_and_b32 s{sG}, s2, 7')
        I(f's_lshr_b32 s{sRB}, s2, 3')
    R16 = X.get('r16', 0)
    if R16:
        I('v_bfe_u32 v22, v21, 3, 2')
        I('v_lshrrev_b32 v23, 5, v21')
        I('v_lshl_add_u32 v22, v23, 3, v22')
        I('v_and_b32 v23, 7, v21')
        I('v_bfe_u32 v24, v21, 4, 2')
        I('v_lshlrev_b32 v24, 1, v24')
    else:
        I('v_lshrrev_b32 v22, 3, v21')
        I('v_and_b32 v23, 7, v21')
        I('v_bfe_u32 v24, v21, 4, 1')
        I('v_lshlrev_b32 v24, 2, v24')
    I('v_xor_b32 v23, v23, v24')
    I('v_lshlrev_b32 v23, 4, v23')
    I(f'v_lshl_add_u32 v{vD}, v22, 13, v23')
    I(f'v_lshl_add_u32 v{vD2}, v22, 10, v23')
    I('v_lshrrev_b32 v18, 5, v21')
    I('v_lshrrev_b32 v19, 4, v21')
    I('v_lshlrev_b32 v20, 9, v19')
    I('v_and_b32 v25, 7, v21')
    I('v_lshl_add_u32 v20, v25, 3, v20')
    I('v_bfe_u32 v25, v21, 3, 1')
    I('v_xor_b32 v26, 1, v25')
    I('v_lshl_add_u32 v20, v26, 11, v20')
    for d, n in ((sWS, WS_SIZE), (sWQ, 512*8192), (sK, 8*2048*256), (sWO, 4096*1024)) + (((sV, 8*2048*256),) if VTR else ()):
        I(f's_mov_b32 s{d+2}, {n:#x}')
        I(f's_mov_b32 s{d+3}, 0x00020000')
    I(f's_lshr_b32 s{sHD}, s{sW}, 1')
    I(f's_and_b32 s{sRH}, s{sW}, 1')
    I(f's_lshl_b32 s{sW4K}, s{sW}, 12')
    I(f's_lshl_b32 s{t0}, s{sW}, 7')
    I(f's_lshl_b32 s{sBQ}, s{sG}, 10')
    I(f's_add_u32 s{sBQ}, s{sBQ}, s{t0}')
    I(f's_lshl_b32 s{sBK}, s{sG}, 19')
    I(f's_add_u32 s{sBO}, s{sBK}, s{t0}')
    I(f's_add_u32 s{sBK}, s{sBK}, s{sW4K}')
    I(f's_add_u32 s{sBK}, s{sBK}, {1536*256}')
    if not VTR:
        I(f's_lshl_b32 s{sBV}, s{sG}, 17')
        I(f's_add_u32 s{sBV}, s{sBV}, s{sW4K}')
        I(f's_add_u32 s{sBV}, s{sBV}, {WS_VP:#x}')
    I(f's_lshr_b32 s{t0}, s{t0}, 1')
    I(f's_add_u32 s{t0}, s{t0}, {WS_GP:#x}')
    I(f's_lshl_b32 s{t1}, s{sRB}, 16')
    I(f's_lshl_b32 s{t2}, s{sW}, 10')
    I(f's_add_u32 s{t1}, s{t1}, s{t2}')
    I(f's_add_u32 s{t2}, s{t2}, {3*SLOT}')
    I(f'v_add_u32 v{vHW}, s{t2}, v{vLANE16}')
    I('s_waitcnt lgkmcnt(0)')
    st.first()
    MP = 82
    def mploads():
        for p in range(4):
            I(f'buffer_load_dwordx2 v[{MP+2*p}:{MP+2*p+1}], v20, s[{sWS}:{sWS+3}], s{t0} offen')
            if p < 3: I(f's_add_u32 s{t0}, s{t0}, {GP_STRIDE}')
    if 'm' not in X['early'].split(): mploads()
    XR = 32
    def xnload(j):
        L = []
        for rh in range(2):
            L.append(f's_add_u32 s{t2}, s{t1}, {8192*j + 32768*rh}')
            L.append(f'buffer_load_dwordx4 v[{XR+8*j+4*rh}:{XR+8*j+4*rh+3}], v{vLANE16}, ' + (f's[{sWS}:{sWS+3}]' if 'xfake' not in X else 's[80:83]') + f', s{t2} offen' + (' nt' if 'xnt' in X else ''))
        return L
    FP = 90
    def finload():
        FO = 8192 if X.get('c3') == 2 else 0
        L = [f's_lshl_b32 s36, s2, 8', f's_add_u32 s37, s36, {WS_GP + 4096 + FO:#x}', f's_add_u32 s36, s36, {WS_MOD + FO:#x}',
             f's_lshl_b32 s38, s{sW}, 8', 's_add_u32 s38, s38, s2', f's_cmp_ge_u32 s38, {(68, 40, 8)[X.get("c3", 0)]}\ns_cselect_b32 s38, 0x10000000, 0',
             's_add_u32 s36, s36, s38', 's_add_u32 s37, s37, s38', f'v_lshrrev_b32 v20, 2, v{vLANE16}']
        for p in range(4):
            L.append(f'buffer_load_dword v{FP+p}, v20, s[{sWS}:{sWS+3}], s37 offen')
            if p < 3: L.append(f's_add_u32 s37, s37, {GP_STRIDE}')
        return L
    finops = ['s_lshr_b32 s38, s2, 3\ns_cmp_eq_u32 s38, 2\ns_cselect_b32 s38, 1.0, 0', 's_cmp_lt_u32 s2, 32\ns_cselect_b64 s[40:41], -1, 0',
              f'v_add_f32 v{FP}, v{FP}, v{FP+1}', f'v_add_f32 v{FP+2}, v{FP+2}, v{FP+3}', f'v_add_f32 v{FP}, v{FP}, v{FP+2}',
              f'v_cvt_pk_bf16_f32 v{FP+1}, 0, v{FP}', f'v_add_f32 v{FP+1}, s38, v{FP+1}', f'v_cvt_pk_bf16_f32 v{FP+1}, 0, v{FP+1}',
              f'v_cndmask_b32 v{FP}, v{FP}, v{FP+1}, s[40:41]', f'buffer_store_dword v{FP}, v20, s[{sWS}:{sWS+3}], s36 offen']
    if X.get('c3') == 2: finops = finops[2:5] + finops[-1:]
    EX2 = X.get('ex2', 0)
    RING = {0: [0,0,1,1,2,2] if not EX2 else [1,1,2,2,0,0,4,4], 1: [4,4,0,0,1,1]}
    def ent(ph, kk):
        if ph == 0 and EX2: return kk if kk < 8 else (kk - 2) % 6
        return kk % 6
    def nxt_dma(ph, k):
        if ph == 0 and EX2 and k < 8: return k + 8 if k < 6 else None
        return k + 6 if k + 6 < 32 else None
    vAX = [23, 24]
    def wo_row(kk): return ((kk >> 2) & 3)*128 + ((kk >> 4)*4 + (kk & 3))*16
    def a_dma(ph, kk):
        e = ent(ph, kk)
        lds = RING[ph][e]*SLOT + (e & 1)*2048
        if ph == 0:
            so = [kk*16*8192, kk*16*8192 + 8*8192 - 1024]; sb = sBQ; srd_ = sWQ; v = vD
        else:
            so = [wo_row(kk)*1024, wo_row(kk)*1024 + 7168]; sb = sBO; srd_ = sWO; v = vD2
            if 'wosmall' in X: so = [(kk % 8)*16384, (kk % 8)*16384 + 7168]
        if R16:
            r0_ = (32*(kk >> 1) if ph == 0 else wo_row(kk & ~1)) + 4*(kk & 1)
            rs_ = 8192 if ph == 0 else 1024
            so = [r0_*rs_, (r0_ + 16)*rs_ - 1024]
        h0 = f's_add_u32 m0, s{sW4K}, {lds}\ns_add_u32 s{t2}, s{sb}, {so[0]}\nbuffer_load_dwordx4 v{v}, s[{srd_}:{srd_+3}], s{t2} offen lds ; W:E{e}'
        h1 = f's_add_u32 s{t2}, s{sb}, {so[1]}\nbuffer_load_dwordx4 v{v}, s[{srd_}:{srd_+3}], s{t2} offen offset:1024 lds ; W:E{e}'
        return [h0, h1]
    def kv_dma(c, js=(0,1,2,3), tag=None):
        L = [f's_add_u32 m0, s{sW4K}, {slot_of(c)}']
        if c % 2 == 0:
            L.append(f's_add_u32 s{t2}, s{sBK}, {((c-16)//2)*32768}')
            for j in js:
                L.append(f'buffer_load_dwordx4 v{vKD[j]}, s[{sK}:{sK+3}], s{t2} offen offset:{1024*j} lds ; W:C{c}' + (f' W:{tag}' if tag else ''))
        elif VTR:
            L.append(f's_add_u32 s{t2}, s{sBK}, {((c-17)//2)*32768}')
            for j in js:
                L.append(f'buffer_load_dwordx4 v{vD}, s[{sV}:{sV+3}], s{t2} offen offset:{1024*j} lds ; W:C{c}' + (f' W:{tag}' if tag else ''))
        else:
            L.append(f's_add_u32 s{t2}, s{sBV}, {((c-17)//2)*32768}')
            for j in js:
                L.append(f'buffer_load_dwordx4 v{vLANE16}, s[{sWS}:{sWS+3}], s{t2} offen offset:{1024*j} lds ; W:C{c}' + (f' W:{tag}' if tag else ''))
        return L
    def touch_ops(kind):
        L = []
        if 'notouch' in X or ('no' + kind) in X: return L
        if kind == 'wo' and X.get('wox'):
            lg_ = X['xm']
            L.append(f'v_lshlrev_b32 v{vT2}, {1 + lg_}, v{vLANE16}')
            L.append(f's_lshl_b32 s{t0}, s{sG}, 19')
            L.append(f's_and_b32 s{t1}, s{sRB}, {(32 >> lg_) - 1}\ns_lshl_b32 s{t1}, s{t1}, {14 + lg_}')
            L.append(f's_add_u32 s{t0}, s{t0}, s{t1}')
            L.append(f's_lshl_b32 s{t1}, s{sW}, {11 + lg_}')
            L.append(f's_add_u32 s{t0}, s{t0}, s{t1}')
            L.append(f'buffer_load_dword v{vT2}, v{vT2}, s[{sWO}:{sWO+3}], s{t0} offen')
        elif kind == 'wo':
            L.append(f'v_lshlrev_b32 v{vT2}, 1, v{vLANE16}')
            L.append(f's_lshl_b32 s{t0}, s{sG}, 19')
            L.append(f's_lshl_b32 s{t1}, s{sRB}, 14')
            L.append(f's_add_u32 s{t0}, s{t0}, s{t1}')
            L.append(f's_lshl_b32 s{t1}, s{sW}, 11')
            L.append(f's_add_u32 s{t0}, s{t0}, s{t1}')
            L.append(f'buffer_load_dword v{vT2}, v{vT2}, s[{sWO}:{sWO+3}], s{t0} offen')
        elif X.get('wbmode', 1) == 0:
            d = sTC
            L.append(f'v_lshlrev_b32 v{vT2}, 3, v{vLANE16}')
            L.append(f's_cmp_eq_u32 s{sHD}, 1\ns_cselect_b32 s{d}, s58, s56\ns_cselect_b32 s{d+1}, s59, s57')
            L.append(f's_cmp_eq_u32 s{sHD}, 2\ns_cselect_b32 s{d}, s60, s{d}\ns_cselect_b32 s{d+1}, s61, s{d+1}')
            L.append(f's_cmp_eq_u32 s{sHD}, 3\ns_cselect_b32 s{d}, s62, s{d}\ns_cselect_b32 s{d+1}, s63, s{d+1}')
            L.append(f's_mov_b32 s{d+2}, {512*1024}\ns_movk_i32 s{t0}, 2048\ns_cmp_ge_u32 s{sHD}, 2\ns_cselect_b32 s{d+2}, {1792*1024}, s{d+2}\ns_cselect_b32 s{t0}, 7168, s{t0}')
            L.append(f's_mov_b32 s{d+3}, 0x00020000')
            L.append(f's_mul_i32 s{t0}, s{t0}, s2')
            L.append(f'buffer_load_dword v{vT2}, v{vT2}, s[{d}:{d+3}], s{t0} offen')
        else:
            d = sTC
            L.append(f'v_lshlrev_b32 v{vT2}, 3, v{vLANE16}')
            L.append(f's_cmp_eq_u32 s{sHD}, 1\ns_cselect_b32 s{d}, s58, s{sWS}\ns_cselect_b32 s{d+1}, s59, s{sWS+1}\ns_cselect_b32 s{d+2}, {512*1024}, s{sWS+2}\ns_cselect_b32 s{t1}, 0, {WS_W1P:#x}')
            L.append(f's_cmp_eq_u32 s{sHD}, 2\ns_cselect_b32 s{d}, s60, s{d}\ns_cselect_b32 s{d+1}, s61, s{d+1}')
            L.append(f's_cmp_eq_u32 s{sHD}, 3\ns_cselect_b32 s{d}, s62, s{d}\ns_cselect_b32 s{d+1}, s63, s{d+1}')
            L.append((f's_lshr_b32 s{t0}, s2, 3\ns_lshl_b32 s{t0}, s{t0}, 14' if X.get('xi') else f's_lshl_b32 s{t0}, s{sRB}, 14') + f'\ns_add_u32 s{t1}, s{t1}, s{t0}\ns_lshl_b32 s{t0}, s{sRH}, 13\ns_add_u32 s{t1}, s{t1}, s{t0}')
            L.append(f's_mul_i32 s{t0}, s2, 7168\ns_cmp_ge_u32 s{sHD}, 2\ns_cselect_b32 s{d+2}, {1792*1024}, s{d+2}\ns_cselect_b32 s{t0}, s{t0}, s{t1}')
            L.append(f's_mov_b32 s{d+3}, 0x00020000')
            L.append(f'buffer_load_dword v{vT2}, v{vT2}, s[{d}:{d+3}], s{t0} offen')
        return L
    def pf_ops(kind):
        d = sTC
        L = []
        if kind == 'w4':
            L.append(f'v_lshrrev_b32 v{vT2}, 4, v{vLANE16}\nv_min_u32 v{vT2}, 55, v{vT2}\nv_lshlrev_b32 v{vT2}, 7, v{vT2}')
            L.append(f's_mov_b32 s{d}, s62\ns_mov_b32 s{d+1}, s63\ns_mov_b32 s{d+2}, {1792*1024}\ns_mov_b32 s{d+3}, 0x00020000')
            L.append(f's_lshl_b32 s{t0}, s{sRB}, 3\ns_add_u32 s{t0}, s{t0}, s{sW}\ns_mul_i32 s{t0}, s{t0}, 7168')
        elif kind == 'w3':
            L.append(f'v_bfe_u32 v{vT2}, v{vLANE16}, 4, 5\nv_min_u32 v{vT2}, 13, v{vT2}\nv_lshlrev_b32 v{vT2}, 7, v{vT2}')
            L.append(f'v_lshrrev_b32 v{vT1}, 9, v{vLANE16}\nv_mul_u32_u24 v{vT1}, 3584, v{vT1}\nv_add_u32 v{vT2}, v{vT2}, v{vT1}')
            L.append(f's_mov_b32 s{d}, s60\ns_mov_b32 s{d+1}, s61\ns_mov_b32 s{d+2}, {512*3584}\ns_mov_b32 s{d+3}, 0x00020000')
            L.append(f's_lshl_b32 s{t0}, s{sRB}, 3\ns_add_u32 s{t0}, s{t0}, s{sW}\ns_mul_i32 s{t0}, s{t0}, {2*3584}\ns_and_b32 s{t1}, s{sG}, 1\ns_mul_i32 s{t1}, s{t1}, 1792\ns_add_u32 s{t0}, s{t0}, s{t1}')
        L.append(f'buffer_load_dword v{vT2}, v{vT2}, s[{d}:{d+3}], s{t0} offen')
        return L
    def start_touch():
        if 'notouch' in X: return
        I('v_bfe_u32 v22, v21, 3, 1')
        I('v_and_b32 v23, 7, v21')
        I('v_lshlrev_b32 v22, 13, v22')
        I('v_lshl_add_u32 v22, v23, 7, v22')
        I(f's_lshl_b32 s100, s{sRB}, 17')
        I(f's_lshl_b32 s{t2}, s{sW}, 14')
        I(f's_add_u32 s100, s100, s{t2}')
        I(f's_lshl_b32 s{t2}, s{sG}, 10')
        I(f's_add_u32 s100, s100, s{t2}')
        I(f'buffer_load_dword v94, v22, s[{sWQ}:{sWQ+3}], s100 offen')
        I('v_and_b32 v23, 3, v21')
        I('v_lshlrev_b32 v23, 7, v23')
        I(f's_lshl_b32 s100, s{sG}, 19')
        I(f's_lshl_b32 s{t2}, s{sRB}, 12')
        I(f's_add_u32 s100, s100, s{t2}')
        I(f's_lshl_b32 s{t2}, s{sW}, 9')
        I(f's_add_u32 s100, s100, s{t2}')
        I(f's_add_u32 s100, s100, {1536*256}')
        I(f'buffer_load_dword v95, v23, s[{sK}:{sK+3}], s100 offen')
    def touch2(kind, dst):
        L = []
        if kind == 'W':
            n_ = X.get('wn', 2); ln_ = n_.bit_length() - 1
            L.append(f'v_and_b32 v{dst}, 0x70, v{vLANE16}')
            L.append(f'v_lshlrev_b32 v{dst}, 3, v{dst}')
            L.append(f'v_bfe_u32 v{dst+1}, v{vLANE16}, 7, {ln_}')
            L.append(f'v_lshl_add_u32 v{dst}, v{dst+1}, 13, v{dst}')
            L.append(f's_and_b32 s44, s{sRB}, 7\ns_lshl_b32 s44, s44, 3\ns_add_u32 s44, s44, s{sW}\ns_lshl_b32 s44, s44, {13 + ln_}\ns_lshl_b32 s45, s{sG}, 10\ns_add_u32 s44, s44, s45')
            L.append(f'buffer_load_dword v{dst}, v{dst}, s[{sWQ}:{sWQ+3}], s44 offen')
        elif kind == 'T':
            L.append(f'v_and_b32 v{dst}, 0x70, v{vLANE16}')
            L.append(f'v_lshlrev_b32 v{dst}, 3, v{dst}')
            L.append(f'v_bfe_u32 v{dst+1}, v{vLANE16}, 7, 1')
            L.append(f'v_lshl_add_u32 v{dst}, v{dst+1}, 13, v{dst}')
            L.append(f's_lshl_b32 s44, s{sRB}, 16\ns_and_b32 s45, s{sW}, 3\ns_lshl_b32 s45, s45, 14\ns_add_u32 s44, s44, s45\ns_lshl_b32 s45, s{sG}, 10\ns_add_u32 s44, s44, s45\n'
                     f's_lshr_b32 s45, s{sW}, 2\ns_lshl_b32 s45, s45, 21\ns_add_u32 s44, s44, s45')
            L.append(f'buffer_load_dword v{dst}, v{dst}, s[{sWQ}:{sWQ+3}], s44 offen')
        elif kind in 'uv':
            L.append(f'v_and_b32 v{dst}, 0x70, v{vLANE16}')
            L.append(f'v_lshlrev_b32 v{dst}, 3, v{dst}')
            L.append(f's_lshl_b32 s44, s{sRB}, 16\ns_lshl_b32 s45, s{sW}, 13\ns_add_u32 s44, s44, s45\ns_lshl_b32 s45, s{sG}, 10\ns_add_u32 s44, s44, s45' + (f'\ns_add_u32 s44, s44, {256*8192}' if kind == 'v' else ''))
            L.append(f'buffer_load_dword v{dst}, v{dst}, s[{sWQ}:{sWQ+3}], s44 offen')
        else:
            L.append(f'v_and_b32 v{dst}, 0x30, v{vLANE16}')
            L.append(f'v_lshlrev_b32 v{dst}, 3, v{dst}')
            L.append(f's_lshl_b32 s44, s{sG}, 19\ns_lshl_b32 s45, s{sRB}, 12\ns_add_u32 s44, s44, s45\ns_lshl_b32 s45, s{sW}, 9\ns_add_u32 s44, s44, s45\ns_add_u32 s44, s44, {1536*256}')
            sx = sK if kind == 'k' else sV
            L.append(f'buffer_load_dword v{dst}, v{dst}, s[{sx}:{sx+3}], s44 offen')
        return L
    TD = {'u': 94, 'v': 95, 'k': 93, 'w': 89, 'T': 94, 'W': 90}
    early = X.get('early', 'x0 a0 a1 t x1 a2 a3') if isinstance(X, dict) else 'x0 a0 a1 t x1 a2 a3'
    late = X.get('late', 'a4 a5 x2 x3 f') if isinstance(X, dict) else 'a4 a5 x2 x3 f'
    def emit_order(o):
        for tok in o.split():
            if tok == 't': start_touch()
            elif tok[0] == 'P': I(f's_setprio {tok[1]}')
            elif tok == 'm': mploads()
            elif tok == 'f':
                for s in finload(): I(s)
            elif tok in TD:
                for s in touch2(tok, TD[tok]): I(s)
            elif tok[0] == 'x':
                for s in xnload(int(tok[1])): I(s)
            else:
                for s in a_dma(0, int(tok[1])): I(s)
    emit_order(early)
    if X.get('pst'): st()
    if R16:
        I('v_lshrrev_b32 v22, 2, v21')
        I('v_lshlrev_b32 v22, 7, v22')
        I('v_and_b32 v23, 3, v21')
        I('v_lshl_add_u32 v22, v23, 3, v22')
        I(f'v_add_u32 v22, s{sW4K}, v22')
        I('v_bfe_u32 v23, v21, 3, 2')
        for nt in range(4):
            I(f'v_xor_b32 v24, {nt}, v23')
            I(f'v_lshl_add_u32 v{vA[nt]}, v24, 5, v22')
    else:
        I('v_bfe_u32 v19, v21, 2, 2')
        I('v_lshl_add_u32 v22, v18, 3, v19')
        I('v_lshlrev_b32 v22, 7, v22')
        I('v_bfe_u32 v23, v21, 4, 1')
        I('v_lshl_add_u32 v22, v23, 5, v22')
        I('v_and_b32 v23, 1, v21')
        I('v_lshl_add_u32 v22, v23, 4, v22')
        I('v_bfe_u32 v23, v21, 1, 1')
        I('v_lshl_add_u32 v22, v23, 3, v22')
        I(f'v_add_u32 v22, s{sW4K}, v22')
        I('v_bfe_u32 v23, v21, 3, 1')
        I(f'v_lshl_add_u32 v{vA[0]}, v23, 6, v22')
        I('v_xor_b32 v23, 1, v23')
        I(f'v_lshl_add_u32 v{vA[1]}, v23, 6, v22')
        I(f'v_add_u32 v{vA[2]}, {2*SLOT}, v{vA[0]}')
        I(f'v_add_u32 v{vA[3]}, {2*SLOT}, v{vA[1]}')
    I('v_and_b32 v24, 31, v21')
    I('v_and_b32 v22, 15, v21')
    I('v_xor_b32 v22, v22, v18')
    I(f's_lshl_b32 s{t2}, s{sRH}, 3')
    I(f'v_xor_b32 v22, s{t2}, v22')
    I('v_lshlrev_b32 v24, 8, v24')
    I(f'v_add_u32 v24, {slot_of(16)}, v24')
    for s in range(8):
        I(f'v_xor_b32 v23, {2*s}, v22')
        I(f'v_lshl_add_u32 v{vKA[s]}, v23, 4, v24')
    I('v_lshrrev_b32 v24, 4, v21')
    I('v_and_b32 v22, 15, v21')
    I('v_xor_b32 v22, v22, v24')
    I('v_lshlrev_b32 v24, 8, v24')
    for j in range(4):
        I(f'v_xor_b32 v23, {4*j}, v22')
        I(f'v_lshl_add_u32 v{vKD[j]}, v23, 4, v24')
    I(f's_lshl_b32 s{t2}, s{sRH}, 14')
    I(f's_add_u32 s{t2}, s{t2}, {3*SLOT}')
    if R16:
        I('v_and_b32 v22, 15, v21')
        I('v_lshlrev_b32 v22, 4, v22')
        I('v_lshrrev_b32 v23, 4, v21')
        I('v_lshl_add_u32 v22, v23, 9, v22')
        I(f'v_add_u32 v{vB[0]}, s{t2}, v22')
    else:
        I(f'v_add_u32 v{vB[0]}, s{t2}, v{vLANE16}')
    I(f'v_xor_b32 v{vB[1]}, 0x4000, v{vB[0]}')
    I('v_mov_b32 v80, 0x3f80')
    I('v_mov_b32 v81, 0x3f800000')
    emit_order(X.get('mid', ''))
    I('v_cvt_f32_u32 v26, v26')
    I('v_cmp_eq_u32 vcc, 0, v21')
    I('v_lshrrev_b32 v25, 3, v21')
    MALL = X.get('mall', 1)
    if MALL == 4:
        I('v_and_b32 v25, 1, v25')
    elif MALL == 2:
        I('v_and_b32 v25, 5, v25')
    elif MALL == 3:
        I('v_cmp_eq_u32 vcc, 6, v25')
        I('v_cndmask_b32 v25, v25, 1, vcc')
        I('v_and_b32 v25, 1, v25')
    I('v_cmp_eq_u32 vcc, 0, v25')
    I('v_cndmask_b32 v25, 0, 16, vcc')
    STG = 3*SLOT + 16384 + 8192
    I(f's_lshl_b32 s{t2}, s{sW}, 10')
    I(f's_add_u32 s{t2}, s{t2}, {STG}')
    I(f'v_lshl_add_u32 v24, v21, 3, s{t2}')
    I(f'v_lshl_add_u32 v23, v18, 5, s{t2}')
    MO = 96
    TT = 64
    def hwrite(j, rh):
        return f'ds_write_b128 v{vHW}, v[{XR+8*j+4*rh}:{XR+8*j+4*rh+3}] offset:{(j >> 1)*32768 + (j & 1)*8192 + rh*16384}'
    def sect():
        if X.get('pst'): st()
        for e in range(2):
            I(f'v_add_f32 v{MP+e}, v{MP+e}, v{MP+2+e}')
            I(f'v_add_f32 v{MP+4+e}, v{MP+4+e}, v{MP+6+e}')
        for e in range(2): I(f'v_add_f32 v{MP+e}, v{MP+e}, v{MP+4+e}')
        for e in range(2): rnd_bf16(a, MP+e, MP+e)
        for e in range(2): I(f'v_add_f32 v{MP+e}, v{MP+e}, v26')
        for e in range(2): rnd_bf16(a, MP+e, MP+e)
        I(f'v_lshrrev_b32 v{MP}, v25, v{MP}')
        I(f'ds_write_b64 v24, v[{MP}:{MP+1}]')
        if X.get('pst'): st()
        for j in range(4):
            for q, off in enumerate((0, 16, 64, 80)):
                I(f'ds_read_b128 v[{MO+16*j+4*q}:{MO+16*j+4*q+3}], v23 offset:{128*j + off}')
        for rh in range(2):
            xb = XR + 4*rh
            for d in range(4):
                I(f'v_dot2_f32_bf16 v{TT+2*d}, v{xb+d}, v{MO+2*d}, 0')
                I(f'v_dot2_f32_bf16 v{TT+2*d+1}, v{xb+d}, v{MO+2*d+1}, 0')
            for d in range(4):
                I(f'v_cvt_pk_bf16_f32 v{xb+d}, v{TT+2*d}, v{TT+2*d+1}')
            for d in range(4):
                I(f'v_dot2_f32_bf16 v{TT+8+2*d}, v{xb+d}, v80, v{MO+8+2*d}')
                I(f'v_dot2_f32_bf16 v{TT+8+2*d+1}, v{xb+d}, v81, v{MO+8+2*d+1}')
            for d in range(4):
                I(f'v_cvt_pk_bf16_f32 v{xb+d}, v{TT+8+2*d}, v{TT+8+2*d+1}')
            I(hwrite(0, rh))
            if X.get('pst'): st()
    if X.get('dup'):
        I(f's_cmp_ge_u32 s{sW}, 4')
        I('s_cbranch_scc1 K1_dB')
        snap = (list(a.vm_q), list(a.lds_q), list(a.hist), st.n)
        emit_order(X['dup'])
        sect()
        I('s_branch K1_dJ')
        qa = list(a.vm_q)
        a.raw('K1_dB:')
        a.vm_q, a.lds_q, a.hist, st.n = list(snap[0]), list(snap[1]), [], snap[3]
        I('s_nop 1')
        sect()
        if not X.get('dupB'): emit_order(X['dup'])
        a.raw('K1_dJ:')
        if X.get('dupB'):
            n0_ = len(a.out)
            emit_order(X['dup'])
            split_code = list(a.out[n0_:]); del a.out[n0_:]
        assert qa == a.vm_q, (qa, a.vm_q)
    elif X.get('cnd'):
        I('s_waitcnt vmcnt(0)')
        I(f's_cmp_ge_u32 s{sW}, 4')
        I('s_cbranch_scc1 K1_sp0')
        n0_ = len(a.out)
        emit_order(X['cnd'])
        split_code = list(a.out[n0_:])
        a.raw('K1_sp0:')
        sect()
        if X.get('cndL'):
            I(f's_cmp_lt_u32 s{sW}, 4')
            I('s_cbranch_scc1 K1_sp1')
            a.out += split_code
            a.raw('K1_sp1:')
    else:
        sect()
    def modq(j):
        L = []
        sb = MO + 16*j
        for rh in range(2):
            for half in range(2):
                seq = []
                for d in (2*half, 2*half+1):
                    x = XR + 8*j + 4*rh + d; lo = TT + 2*d; hi = lo + 1
                    if X.get('mod5'):
                        seq.append([f'v_lshlrev_b32 v{lo}, 16, v{x}', f'v_and_b32 v{hi}, 0xffff0000, v{x}',
                                    f'v_fma_f32 v{lo}, v{sb+2*d}, v{lo}, v{sb+8+2*d}', f'v_fma_f32 v{hi}, v{sb+2*d+1}, v{hi}, v{sb+8+2*d+1}',
                                    f'v_cvt_pk_bf16_f32 v{x}, v{lo}, v{hi}'])
                    else:
                        seq.append([f'v_lshlrev_b32 v{lo}, 16, v{x}', f'v_and_b32 v{hi}, 0xffff0000, v{x}',
                                f'v_mul_f32 v{lo}, v{sb+2*d}, v{lo}', f'v_mul_f32 v{hi}, v{sb+2*d+1}, v{hi}',
                                f'v_cvt_pk_bf16_f32 v{lo}, 0, v{lo}', f'v_cvt_pk_bf16_f32 v{hi}, 0, v{hi}',
                                f'v_add_f32 v{lo}, v{sb+8+2*d}, v{lo}', f'v_add_f32 v{hi}, v{sb+8+2*d+1}, v{hi}',
                                f'v_cvt_pk_bf16_f32 v{x}, v{lo}, v{hi}'])
                n = len(seq[0]) - 1
                for k in range(0, n, 2):
                    for q in seq: L += q[k:k+2]
                for q in seq: L.append(q[n])
            L.append(hwrite(j, rh))
        return L
    SK = X.get('skew', 0)
    ABUF = [224, 232, 128, 136, 144, 152, 160, 168, 176, 184, 192, 200, 208, 216]
    def abuf(ph, kk):
        if ph == 1 and SK: return ABUF[kk % (SK + 2)]
        return AF + 8*(kk & 1)
    def a_reads(ph, kk, nt):
        e = ent(ph, kk); sl = RING[ph][e]
        hi = sl >= 2
        off = (0 if hi else sl*SLOT) + (e & 1)*2048
        d = abuf(ph, kk) + 4*nt
        va = vA[2*hi+nt] if e < 6 else vAX[nt]
        return [f'ds_read_b64_tr_b16 v[{d+2*t}:{d+2*t+1}], v{va} offset:{off + 512*t} ; R:E{e}' for t in range(2)]
    def b_read(kk, b):
        d = BFB + 8*(kk & 1) + 4*b
        return f'ds_read_b128 v[{d}:{d+3}], v{vB[b]} offset:{(kk >> 4)*32768 + (kk & 15)*1024}'
    if X.get('split'):
        I(f's_cmp_ge_u32 s{sW}, 4')
        I('s_cbranch_scc1 K1_sp0')
        n0_ = len(a.out)
        emit_order(late)
        split_code = list(a.out[n0_:])
        a.raw('K1_sp0:')
    else:
        emit_order(late)
    for j in range(1, MALL):
        if X.get('milp'):
            mo = MO + 16*j; TB_ = (160, 176)
            if X.get('pst') == 2 and j == 1:
                I(f'v_mov_b32 v192, v{XR+8*3+7}')
                st()
            for rh in range(2):
                for d in range(4):
                    I(f'v_dot2_f32_bf16 v{TB_[rh]+2*d}, v{XR+8*j+4*rh+d}, v{mo+2*d}, 0')
                    I(f'v_dot2_f32_bf16 v{TB_[rh]+2*d+1}, v{XR+8*j+4*rh+d}, v{mo+2*d+1}, 0')
            for rh in range(2):
                for d in range(4):
                    I(f'v_cvt_pk_bf16_f32 v{XR+8*j+4*rh+d}, v{TB_[rh]+2*d}, v{TB_[rh]+2*d+1}')
            for rh in range(2):
                for d in range(4):
                    I(f'v_dot2_f32_bf16 v{TB_[rh]+8+2*d}, v{XR+8*j+4*rh+d}, v80, v{mo+8+2*d}')
                    I(f'v_dot2_f32_bf16 v{TB_[rh]+8+2*d+1}, v{XR+8*j+4*rh+d}, v81, v{mo+8+2*d+1}')
            for rh in range(2):
                for d in range(4):
                    I(f'v_cvt_pk_bf16_f32 v{XR+8*j+4*rh+d}, v{TB_[rh]+8+2*d}, v{TB_[rh]+8+2*d+1}')
                I(hwrite(j, rh))
            if X.get('pst'): st()
            emit_order(X.get('late%d' % j, ''))
            continue
        for rh in range(2):
            xb = XR + 8*j + 4*rh; mo = MO + 16*j
            for d in range(4):
                I(f'v_dot2_f32_bf16 v{TT+2*d}, v{xb+d}, v{mo+2*d}, 0')
                I(f'v_dot2_f32_bf16 v{TT+2*d+1}, v{xb+d}, v{mo+2*d+1}, 0')
            for d in range(4):
                I(f'v_cvt_pk_bf16_f32 v{xb+d}, v{TT+2*d}, v{TT+2*d+1}')
            for d in range(4):
                I(f'v_dot2_f32_bf16 v{TT+8+2*d}, v{xb+d}, v80, v{mo+8+2*d}')
                I(f'v_dot2_f32_bf16 v{TT+8+2*d+1}, v{xb+d}, v81, v{mo+8+2*d+1}')
            for d in range(4):
                I(f'v_cvt_pk_bf16_f32 v{xb+d}, v{TT+8+2*d}, v{TT+8+2*d+1}')
            I(hwrite(j, rh))
        if X.get('pst'): st()
        emit_order(X.get('late%d' % j, ''))
    if EX2:
        I(f'v_add_u32 v{vAX[0]}, {4*SLOT}, v{vA[0]}')
        I(f'v_add_u32 v{vAX[1]}, {4*SLOT}, v{vA[1]}')
    vAH = {0: [21, 22, 25, 26], 1: vKA[4:8] if X.get('c3') else vKD}
    def a_reads16(ph, s_, nt, d):
        L = []
        for t in range(2):
            e = ent(ph, 2*s_ + t); sl = RING[ph][e]; hi = sl >= 2
            off = (0 if hi else sl*SLOT) + t*2048
            va = vAH[ph][nt] if hi else vA[nt]
            L.append(f'ds_read_b64_tr_b16 v[{d+2*t}:{d+2*t+1}], v{va} offset:{off} ; R:E{e}')
        return L
    def b_read16(s_, rq, d):
        return f'ds_read_b128 v[{d}:{d+3}], v{vB[rq >> 1]} offset:{(s_ >> 3)*32768 + ((2*s_) & 15)*1024 + (rq & 1)*256}'
    ORDS = {0: [(i & 3, i >> 2) for i in range(16)],
            2: [(i >> 2, i & 3) for i in range(16)],
            4: [(i >> 2, (i & 3) if not (i >> 2) & 1 else 3 - (i & 3)) for i in range(16)],
            3: [((i & 3) if not (i >> 2) & 1 else 3 - (i & 3), i >> 2) for i in range(16)],
            1: [(0,0),(1,0),(0,1),(1,1), (2,0),(3,0),(2,1),(3,1), (2,2),(3,2),(2,3),(3,3), (0,2),(1,2),(0,3),(1,3)]}
    def akey(ph, s_, mt, rq):
        if ph == 1 and X.get('sk16') and s_ >= 13: return (s_, 'A', mt, rq >> 1)
        return (s_, 'A', mt)
    def plan16(ph, slots, bmin, lastb=None):
        o = ORDS[X.get('ord16', 0)]
        seq = []
        for s_ in range(16):
            for (mt, rq) in o:
                seq.append((s_, mt, rq ^ 2 if (lastb and s_ == 15) else rq))
        SK0 = X.get('sk16') if ph == 1 else None
        if SK0:
            hs = [(s_, h_) for s_ in range(SK0) for h_ in range(2)] + [(s_, 0) for s_ in range(SK0, 16)] + [(s_, 1) for s_ in range(SK0, 16)]
            seq = [(s_, i & 3, 2*h_ + (i >> 2)) for (s_, h_) in hs for i in range(8)]
        first = {}; last = {}
        for n, (s_, mt, rq) in enumerate(seq):
            for fr in (akey(ph, s_, mt, rq), (s_, 'B', rq)):
                first.setdefault(fr, n); last[fr] = n
        pend = sorted(first, key=lambda fr: (first[fr], fr[1]))
        LA = X.get('la16', (10, 10))[ph]
        free = list(slots); reg = {}; issue = {}
        n = -1
        while n < 255:
            for fr in [f_ for f_ in reg if last[f_] == n]: free.append(reg[fr])
            if SK0 and n == 64: free += list(range(160, 224, 4))
            cnt = 0
            while pend and free and (n < 0 or cnt < 1):
                fr = pend[0]
                if first[fr] - n > LA: break
                if fr[1] == 'B' and n < bmin.get(fr[0], -1): break
                reg[fr] = free.pop(0); issue.setdefault(n, []).append(fr); pend.pop(0); cnt += 1
            assert not pend or first[pend[0]] > n + 1 or True
            n += 1
        assert not pend
        for fr in reg:
            ni = [k for k in issue if fr in issue[k]][0]
            assert ni < first[fr], (fr, ni, first[fr])
        return seq, issue, reg
    def ld16(ph, fr, reg):
        return a_reads16(ph, fr[0], fr[2], reg[fr]) if fr[1] == 'A' else [b_read16(fr[0], fr[2], reg[fr])]
    def gemm16(ph, acc, tail, side, bars, plan):
        seq, issue, reg = plan
        a.lg_extra, a.lg_keep = X.get('lgg', (0, 0))
        for kk in range(32):
            if kk in bars:
                I('s_waitcnt lgkmcnt(0)')
                I('s_barrier')
            pr = X.get('prio', (0, 8, 16, 24))
            if ph == 1 and 'pr4' in X: pr = X['pr4']
            if kk in X.get('p2st' if ph == 0 else 'p4st', ()): st()
            if pr and kk in pr: I(f's_setprio {3 - pr.index(kk)}')
            if nxt_dma(ph, kk) is not None: dm = a_dma(ph, nxt_dma(ph, kk))
            else: dm = tail.get(kk, ['', ''])
            dpos = X.get('dpos16', ((4, 6), (1, 2)))[kk & 1]
            if ph == 1 and X.get('sk16') and kk >= 2*X['sk16']:
                s0_ = X['sk16'] + kk - 2*X['sk16']
                if s0_ < 13:
                    d0_ = a_dma(1, 2*s0_ + 6); d1_ = a_dma(1, 2*s0_ + 7)
                    dm = [d0_[0] + '\n' + d0_[1], d1_[0] + '\n' + d1_[1]]; dpos = (4, 6)
                else: dm = ['', '']
            main = []
            for i in range(8):
                n = 8*kk + i
                s_, mt, rq = seq[n]
                d = acc + 4*(4*rq + mt)
                cc = '0' if s_ == 0 else f'v[{d}:{d+3}]'
                A = reg[akey(ph, s_, mt, rq)]; B = reg[(s_, 'B', rq)]
                main.append(f'v_mfma_f32_16x16x32_bf16 v[{d}:{d+3}], v[{A}:{A+3}], v[{B}:{B+3}], {cc}')
                for fr in issue.get(n, []): main += ld16(ph, fr, reg)
                for h_ in range(2):
                    if i == dpos[h_] and dm[h_]: main.append(dm[h_])
            for s in interleave(main, side.get(kk, [])): I(s)
            if ph == 0 and kk in X.get('after', {}): emit_order(X['after'][kk])
        a.lg_extra = a.lg_keep = 0
    def pack16(dst, acc, b):
        L = []
        for nt in range(4):
            g_ = []
            for p in range(2):
                d = acc + 4*(4*(2*b + p) + nt)
                for e in range(2):
                    g_.append(f'v_cvt_pk_bf16_f32 v{dst+4*nt+2*p+e}, v{d+2*e}, v{d+2*e+1}')
            for e in range(2):
                g_.append(f'v_permlane16_swap_b32 v{dst+4*nt+e}, v{dst+4*nt+2+e}')
            L.append(g_)
        return L
    if R16:
        for nt in range(4): I(f'v_add_u32 v{vAH[0][nt]}, {2*SLOT}, v{vA[nt]}')
        p2b = [0]*(MALL - 1) + sorted(X.get('bars'))
        assert len(p2b) == 3
        plan2 = plan16(0, list(range(AF, 256, 4)), {s_: 8*p2b[s_//4 - 1] - 1 + 1 if s_ >= 4 else -1 for s_ in range(16)}, lastb=True)
        for fr in plan2[1][-1]:
            if fr[1] == 'A' and not X.get('alate'):
                for s in ld16(0, fr, plan2[2]): I(s)
    else:
        for s in a_reads(0, 0, 0) + a_reads(0, 0, 1): I(s)
    I('s_waitcnt lgkmcnt(0)')
    if X.get('pst'): st()
    I('s_barrier')
    st()

    def gemm_phase(ph, acc, tail, side, bars, lastorder=None):
        for kk in range(32):
            if kk in bars:
                I('s_waitcnt lgkmcnt(0)')
                I('s_barrier')
            buf = kk & 1
            pr = X.get('prio', (0, 8, 16, 24)) if isinstance(X, dict) else (0, 8, 16, 24)
            if ph == 0 and isinstance(X, dict) and kk in X.get('p2st', ()): st()
            if pr and kk in pr: I(f's_setprio {3 - pr.index(kk)}')
            order = [(0,0), (1,0), (0,1), (1,1)]
            if kk == 31 and lastorder: order = lastorder
            mf = []
            for (mt, b) in order:
                d = acc + 16*(2*b + mt)
                cc = '0' if kk == 0 else f'v[{d}:{d+15}]'
                A = AF + 8*buf + 4*mt; B = BFB + 8*buf + 4*b
                pm, pb = order[max(0, order.index((mt, b)) - 1)]
                mf.append(MF('p2' if ph == 0 else 'p4', d, A, B, kk == 0, AF + 8*buf + 4*pm, BFB + 8*buf + 4*pb))
            if kk < 31:
                r0 = a_reads(ph, kk+1, 0) + [b_read(kk+1, 0)]
                r1 = a_reads(ph, kk+1, 1) + [b_read(kk+1, 1)]
            else:
                r0 = r1 = []
            if ph == 1 and isinstance(X, dict) and 'p4last' in X:
                last = X['p4last']
                js = [j for j in range(6, 32) if (((j-6)*last + 12)//25) == kk]
                dm = a_dma(ph, js[0]) if js else ['', '']
            elif nxt_dma(ph, kk) is not None: dm = a_dma(ph, nxt_dma(ph, kk))
            else: dm = tail.get(kk, ['', ''])
            if ph == 1 and 'p4nodma' in X: dm = ['', '']
            if ph == 1 and 'p4noa' in X: r0 = r0[2:]; r1 = r1[2:]
            if ph == 1 and 'p4nob' in X: r0 = r0[:-1]; r1 = r1[:-1]
            main = [mf[0]] + r0 + [mf[1]] + r1 + [mf[2]] + ([dm[0]] if dm[0] else []) + [mf[3]] + ([dm[1]] if dm[1] else [])
            for s in interleave(main, side.get(kk, [])): I(s)
            if ph == 0 and kk in X.get('after', {}): emit_order(X['after'][kk])

    def gemm_skew(acc, side, bars, st0):
        D = SK
        pr = X.get('prio4', (0, 10, 20, 30))
        for s_ in range(32 + D):
            if s_ in bars:
                I('s_waitcnt lgkmcnt(0)')
                I('s_barrier')
            if pr and s_ in pr: I(f's_setprio {3 - pr.index(s_)}')
            def mfm(kk, b):
                L = []
                for mt in range(2):
                    d = acc + 16*(2*b + mt)
                    cc = '0' if kk == 0 else f'v[{d}:{d+15}]'
                    A = abuf(1, kk) + 4*mt; B = BFB + 8*(kk & 1) + 4*b
                    L.append(f'v_mfma_f32_32x32x16_bf16 v[{d}:{d+15}], v[{A}:{A+3}], v[{B}:{B+3}], {cc}')
                return L
            m0_ = mfm(s_, 0) if s_ < 32 else []
            m1_ = mfm(s_ - D, 1) if s_ >= D else []
            r0 = (a_reads(1, s_+1, 0) + [b_read(s_+1, 0)]) if s_ + 1 < 32 else []
            r1 = (a_reads(1, s_+1, 1) if s_ + 1 < 32 else []) + ([b_read(s_+1-D, 1)] if 0 <= s_ + 1 - D < 32 else [])
            dm = a_dma(1, s_+6) if s_ + 6 < 32 else ['', '']
            mf = m0_ + m1_
            slots = [r0, r1, [dm[0]] if dm[0] else [], [dm[1]] if dm[1] else []]
            main = []
            if len(mf) == 4:
                for m, sl_ in zip(mf, slots): main += [m] + sl_
            else:
                main = [mf[0]] + slots[0] + slots[1] + [mf[1]] + slots[2] + slots[3]
            sd = list(side.get(s_, []))
            if s_ >= 33:
                n = len(st0); k = s_ - 33; tot = D - 1
                sd += st0[n*k//tot: n*(k+1)//tot]
            for s in interleave(main, sd): I(s)

    def split(L, n):
        return [L[len(L)*i//n: len(L)*(i+1)//n] for i in range(n)]
    side = {}
    XD = X if isinstance(X, dict) else {}
    for j, k0, n in XD.get('mq', ((1, 0, 4), (2, 4, 4), (3, 8, 4))):
        for i, part in enumerate(split(modq(j), n)):
            side[k0 + i] = side.get(k0 + i, []) + part
    for tok, kk in XD.get('sl', ()):
        L = finload() if tok == 'f' else touch2(tok, TD[tok]) if tok in TD else ['\n'.join(xnload(int(tok[1]))[2*i:2*i+2]) for i in range(2)]
        side[kk] = L + side.get(kk, [])
    fk = XD.get('fin', 14)
    side[fk] = side.get(fk, []) + finops
    if VTR: side[26] = side.get(26, []) + [f'v_lshrrev_b32 v{vD}, 8, v{vLANE16}', f'v_lshlrev_b32 v{vD}, 6, v{vD}', f'v_xor_b32 v{vD}, v{vD}, v{vLANE16}']
    p2bars = set(XD.get('bars', (6, 13)))
    tail = {}
    for kk, c, js in ((26, 16, (0,1)), (27, 16, (2,3)), (28, 17, (0,1)), (29, 17, (2,3))):
        if c == 17 and X.get('v0late'): continue
        L = kv_dma(c, js, tag=f'E{ent(0, kk)}')
        tail[kk] = ['\n'.join(L[:3]), L[3]]
    if R16:
        for fr in plan2[1][-1]:
            if fr[1] == 'B':
                for s in ld16(0, fr, plan2[2]): I(s)
        if X.get('split') or X.get('dupB') or (X.get('cnd') and not X.get('cndL')):
            I(f's_cmp_lt_u32 s{sW}, 4')
            I('s_cbranch_scc1 K1_sp1')
            a.out += split_code
            a.raw('K1_sp1:')
        emit_order(X.get('post', ''))
        for fr in plan2[1][-1]:
            if fr[1] == 'A' and X.get('alate'):
                for s in ld16(0, fr, plan2[2]): I(s)
        gemm16(0, ACC, tail, side, p2bars, plan2)
    else:
        for s in [b_read(0, 0), b_read(0, 1)]: I(s)
        emit_order(X.get('post', ''))
        gemm_phase(0, ACC, tail, side, p2bars, lastorder=[(0,1), (1,1), (0,0), (1,0)])
    st()
    QF2 = 32
    SB_ = [64, 96]
    VF = 128
    KF = AF
    vVA = vT3
    vVT = [4, 5, 6, 7]
    vtset = [f'v_lshrrev_b32 v{vT3}, 9, v{vLANE16}', f'v_bfe_u32 v{vT2}, v{vLANE16}, 6, 2', f'v_lshl_add_u32 v{vT3}, v{vT3}, 2, v{vT2}', f'v_lshlrev_b32 v{vT3}, 8, v{vT3}',
             f'v_lshl_add_u32 v{vT3}, v{vT2}, 6, v{vT3}',
             f'v_bfe_u32 v{vT2}, v{vLANE16}, 8, 1', f'v_lshl_add_u32 v{vT3}, v{vT2}, 5, v{vT3}',
             f'v_and_b32 v{vT2}, 16, v{vLANE16}', f'v_add_u32 v{vT3}, v{vT3}, v{vT2}',
             f'v_bfe_u32 v{vT2}, v{vLANE16}, 5, 1', f'v_lshl_add_u32 v{vT3}, v{vT2}, 3, v{vT3}',
             f'v_add_u32 v{vVT[0]}, {slot_of(17)}, v{vT3}'] + [f'v_xor_b32 v{vVT[mt]}, {64*mt}, v{vVT[0]}' for mt in range(1, 4)]
    vMR = vMX
    def k_reads(t):
        L = []
        c = 16 + 2*(t//4)
        for s in range(8):
            if t % 4 == 0 and t > 0:
                delta = slot_of(c) - slot_of(c-2)
                if delta >= 0: L.append(f'v_add_u32 v{vKA[s]}, {delta}, v{vKA[s]}')
                else: L.append(f'v_subrev_u32 v{vKA[s]}, {-delta}, v{vKA[s]}')
            L.append(f'ds_read_b128 v[{KF+4*s}:{KF+4*s+3}], v{vKA[s]} offset:{(t%4)*8192}')
        return L
    def v_reads(kap):
        L = []
        c = 17 + 2*(kap//8); ks = kap % 8; buf = kap & 1
        if VTR:
            for mt in range(4):
                if ks == 0 and kap > 0:
                    delta = slot_of(c) - slot_of(c-2)
                    L.append(f'v_add_u32 v{vVT[mt]}, {delta}, v{vVT[mt]}' if delta >= 0 else f'v_subrev_u32 v{vVT[mt]}, {-delta}, v{vVT[mt]}')
                d = VF + 16*buf + 4*mt
                for t in range(2):
                    L.append(f'ds_read_b64_tr_b16 v[{d+2*t}:{d+2*t+1}], v{vVT[mt]} offset:{ks*4096 + t*2048}')
            return L
        if ks == 0:
            L.append(f'v_add_u32 v{vVA}, {slot_of(c)}, v{vLANE16}')
        for mt in range(4):
            d = VF + 16*buf + 4*mt
            L.append(f'ds_read_b128 v[{d}:{d+3}], v{vVA} offset:{ks*4096 + mt*1024}')
        return L
    I(f's_load_dwordx8 s[56:63], s[0:1], {KA_W1}')
    if X.get('c3') == 2:
        I(f's_load_dwordx2 s[68:69], s[0:1], {KA_C}')
        I(f's_load_dwordx2 s[72:73], s[0:1], {KA_WMOD}')
        I('s_movk_i32 s70, 1024'); I('s_mov_b32 s71, 0x00020000')
        I(f's_mov_b32 s74, {512*6144}'); I('s_mov_b32 s75, 0x00020000')
    I(f'v_add_u32 v{vT0}, s{sW4K}, v{vLANE16}')
    I(f'v_xor_b32 v{vT1}, 0x1000, v{vT0}')
    EXP = 64
    if R16:
        pk = pack16(EXP, ACC, 1)
        for s in pk[0][:4]: I(s)
        for q in range(4):
            if q < 3:
                for s in pk[q+1][:4]: I(s)
            for s in pk[q][4:]: I(s)
            I(f'ds_write_b128 v{vT0}, v[{EXP+4*q}:{EXP+4*q+3}] offset:{1024*q}')
        pk = pack16(QF2, ACC, 0)
        for g_ in pk:
            for s in g_[:4]: I(s)
        for g_ in pk:
            for s in g_[4:]: I(s)
    else:
        for q in range(4):
            for j in range(4*q, 4*q+4):
                I(f'v_cvt_pk_bf16_f32 v{EXP+j}, v{ACC+32+2*j}, v{ACC+32+2*j+1}')
            I(f'ds_write_b128 v{vT0}, v[{EXP+4*q}:{EXP+4*q+3}] offset:{1024*q}')
        for j in range(16):
            I(f'v_cvt_pk_bf16_f32 v{QF2+j}, v{ACC+2*j}, v{ACC+2*j+1}')
    CEXP = 1.4426950408889634 * 128 ** -0.5
    I(f's_mov_b32 s51, {f32bits(CEXP):#x}')
    for l in vL: I(f'v_mov_b32 v{l}, 0')
    a.wait_tags(['C16'], lg=True)
    I('s_barrier')
    if 'ast' in X: st()
    QK2 = X.get('qk2', 0)
    def k_item(u, n):
        s_, tt = n >> 1, n & 1
        t = 2*u + tt; c = 16 + 2*(t//4); L = []
        if u % 2 == 0 and u > 0 and tt == 0:
            delta = slot_of(c) - slot_of(c-2)
            L.append(f'v_add_u32 v{vKA[s_]}, {delta}, v{vKA[s_]}' if delta >= 0 else f'v_subrev_u32 v{vKA[s_]}, {-delta}, v{vKA[s_]}')
        L.append(f'ds_read_b128 v[{KF+4*(n%8)}:{KF+4*(n%8)+3}], v{vKA[s_]} offset:{(t%4)*8192}')
        return L
    kr = k_reads(0) if not QK2 else [k_item(0, n)[0] for n in range(8)]
    for s in kr[:4]: I(s)
    for q in range(4):
        I(kr[4+q])
        I(f'ds_read_b128 v[{QF2+16+4*q}:{QF2+16+4*q+3}], v{vT1} offset:{1024*q}')
    def s_mfmas(u):
        seq = []
        if QK2:
            for n in range(16):
                s_, tt = n >> 1, n & 1
                grp = [MF('qk', SB_[u & 1] + 16*tt, KF+4*(n%8), QF2+4*s_, s_ == 0)]
                if n < 8: grp += k_item(u, n+8)
                elif u < 7: grp += k_item(u+1, n-8)
                seq.append('\n'.join(grp))
            return seq
        for tt in range(2):
            t = 2*u + tt
            b = SB_[u & 1] + 16*tt
            reads = k_reads(t+1) if t < 15 else []
            ri = 0
            for s in range(8):
                cc = '0' if s == 0 else f'v[{b}:{b+15}]'
                grp = [MF('qk', b, KF+4*s, QF2+4*s, s == 0, None, QF2+4*max(0, s-1))]
                while ri < len(reads):
                    grp.append(reads[ri]); ri += 1
                    if reads[ri-1].startswith('ds_read'): break
                if 'pp' in X and s == 0 and X['pp'][tt] is not None: grp = [f's_setprio {X["pp"][tt]}'] + grp
                seq.append('\n'.join(grp))
        return seq
    def pv_mfmas(u, j):
        kap = 4*u + j; buf = kap & 1
        p = SB_[u & 1] + 8*j
        L = []
        for mt in range(4):
            d = ACC + 16*mt
            cc = '0' if kap == 0 else f'v[{d}:{d+15}]'
            L.append(MF('pv', d, VF+16*buf+4*mt, p, kap == 0, VF+16*buf+4*max(0, mt-1), None))
        return L
    def max_ops(u, tt):
        b = SB_[u & 1] + 16*tt
        L = []
        for i in range(8):
            if tt == 0 and i == 0:
                L.append(f'v_max_f32 v{vT0}, v{b}, v{b+1}')
            else:
                L.append(f'v_max3_f32 v{vT0}, v{b+2*i}, v{b+2*i+1}, v{vT0}')
        return L
    def p_ops(u, j):
        b = SB_[u & 1] + 8*j
        L = []
        for e in range(8):
            L.append(f'v_fma_f32 v{b+e}, v{b+e}, s51, v{vNEGM}' if 'nofma' not in X else 's_nop 0')
        for e in range(8):
            L.append(f'v_exp_f32 v{b+e}, v{b+e}')
        for d in range(4):
            L.append(f'v_add_f32 v{vL[d]}, v{vL[d]}, v{b+2*d}' if 'noadd' not in X else 's_nop 0')
            L.append(f'v_add_f32 v{vL[d]}, v{vL[d]}, v{b+2*d+1}' if 'noadd' not in X else 's_nop 0')
            L.append(f'v_cvt_pk_bf16_f32 v{b+d}, v{b+2*d}, v{b+2*d+1}')
        return L
    rare = []
    a.lg_extra, a.lg_keep = X.get('lga', (0, 0))
    extra = kv_dma(18) + (kv_dma(17) if X.get('v0late') else []) + kv_dma(19) + (vtset if VTR else []) + touch_ops('wo')
    for s in extra[:6]: I(s)
    sm = s_mfmas(0)
    for s in merge(sm[:10], extra[6:]): I(s)
    for s in (merge(sm[10:], max_ops(0, 0)) if not QK2 else sm[10:] + max_ops(0, 0)): I(s)
    for s in max_ops(0, 1): I(s)
    tops = {0: (['C18', 'C17'], kv_dma(20)), 1: (['C19'], kv_dma(21)), 2: (['C20'], kv_dma(22) + (touch_ops('wb') if X.get('wbat', 2) == 2 else [])), 3: (['C21'], kv_dma(23)),
            4: (['C22'], a_dma(1, 0) + a_dma(1, 1)), 5: (['C23'], a_dma(1, 2) + a_dma(1, 3) + (touch_ops('wb') if X.get('wbat', 2) == 5 else [])), 6: None,
            7: ([], a_dma(1, 4) + a_dma(1, 5))}
    C3 = X.get('c3', 0)
    if C3:
        d = sTC; CD = vKD[0]
        c3l = [f's_mov_b32 s{d}, s60\ns_mov_b32 s{d+1}, s61\ns_mov_b32 s{d+2}, {512*3584}\ns_mov_b32 s{d+3}, 0x00020000',
               (f's_and_b32 s46, s2, 0xc0\ns_and_b32 s47, s2, 7\ns_lshl_b32 s47, s47, 3\ns_add_u32 s46, s46, s47\ns_bfe_u32 s47, s2, 0x30003\ns_add_u32 s46, s46, s47' if X.get('xi') else
                f's_and_b32 s46, s{sRB}, 0x18\ns_add_u32 s46, s46, s{sG}\ns_lshl_b32 s46, s46, 3\ns_and_b32 s47, s{sRB}, 7\ns_add_u32 s46, s46, s47'),
               f's_cmp_ge_u32 s46, 224\ns_cselect_b32 s48, 0x10000000, 0\ns_lshl_b32 s47, s46, 4\ns_add_u32 s47, s47, s48',
               f's_mul_i32 s49, s{sW}, {64*3584}\ns_add_u32 s47, s47, s49',
               f'v_mul_u32_u24 v{CD}, 224, v{vLANE16}',
               f'buffer_load_dwordx4 v[{CD}:{CD+3}], v{CD}, s[{d}:{d+3}], s47 offen',
               f's_lshl_b32 s46, s46, 5\ns_add_u32 s46, s46, s48\ns_mul_i32 s49, s{sW}, 7168\ns_add_u32 s46, s46, s49\ns_add_u32 s46, s46, {WS_C3P:#x}']
        if C3 == 2:
            c3l.insert(2, f's_lshl_b32 s64, s46, 4\ns_mul_i32 s65, s{sW}, {64*6144}\ns_add_u32 s64, s64, s65\ns_add_u32 s64, s64, 2048\n'
                          f's_lshl_b32 s65, s46, 5\ns_lshl_b32 s66, s{sW}, 13\ns_add_u32 s65, s65, s66\ns_add_u32 s65, s65, {WS_M2P:#x}\ns_lshl_b32 s66, s{sW}, 7')
            MD = 252; vC = vD
            m2t = [f'v_mul_u32_u24 v{vT2}, 384, v{vLANE16}', f'buffer_load_dword v{vT2}, v{vT2}, s[72:75], s64 offen',
                   f'v_lshrrev_b32 v{vC}, 3, v{vLANE16}', f'buffer_load_ushort v{vC}, v{vC}, s[68:71], s66 offen']
            m2l = [f'v_mul_u32_u24 v{MD}, 384, v{vLANE16}', f'buffer_load_dwordx4 v[{MD}:{MD+3}], v{MD}, s[72:75], s64 offen']
            tops[4] = (tops[4][0], tops[4][1] + m2t)
            tops[7] = (tops[7][0], (m2l + tops[7][1]) if X.get('m2first') else (tops[7][1] + m2l))
            E = 144; TS = 138
            m2a = [f'v_lshlrev_b32 v{vC}, 16, v{vC}', f'v_mul_f32 v{TS}, {f32bits(1.4426950408889634):#x}, v{vC}', f'v_exp_f32 v{TS}, -v{TS}', f'v_add_f32 v{TS}, 1.0, v{TS}',
                   f'v_rcp_f32 v{TS}, v{TS}', f'v_mul_f32 v{vC}, v{vC}, v{TS}', f'v_cvt_pk_bf16_f32 v{vC}, 0, v{vC}']
            m2b = []
            for dd in range(4):
                m2b += [f'v_lshlrev_b32 v{E+2*dd}, 16, v{MD+dd}', f'v_and_b32 v{E+2*dd+1}, 0xffff0000, v{MD+dd}']
            m2b += [f'v_mul_f32 v{E+e}, v{E+e}, v{vC}' for e in range(8)]
            m2c = [f'v_permlane32_swap_b32 v{E+e}, v{E+4+e}' for e in range(4)] + [f'v_add_f32 v{E+e}, v{E+e}, v{E+4+e}' for e in range(4)] + \
                  [f'v_permlane16_swap_b32 v{E+e}, v{E+2+e}' for e in range(2)] + [f'v_add_f32 v{E+e}, v{E+e}, v{E+2+e}' for e in range(2)]
            m2d = []
            src, dst = E, E + 2
            for ctl in ('quad_perm:[1,0,3,2]', 'quad_perm:[2,3,0,1]', 'row_half_mirror', 'row_mirror'):
                m2d += [f'v_add_f32_dpp v{dst+e}, v{src+e}, v{src+e} {ctl} row_mask:0xf bank_mask:0xf' for e in range(2)]
                src, dst = dst, src
            m2d += [f'v_lshrrev_b32 v{TS}, 5, v{vLANE16}',
                    f's_mov_b32 exec_lo, 0x10001\ns_mov_b32 exec_hi, 0x10001\nbuffer_store_dwordx2 v[{src}:{src+1}], v{TS}, s[{sWS}:{sWS+3}], s65 offen sc0 sc1\ns_mov_b64 exec, -1']
        u3 = X.get('c3u', 3)
        tops[u3] = (tops[u3][0], tops[u3][1] + c3l)
        SM, DD, TQ = 128, 132, 136
        c3p = [f'v_bfe_u32 v{TQ}, v{vLANE16}, 4, 1', f'v_lshlrev_b32 v{TQ}, 4, v{TQ}', f'v_mov_b32 v{TQ+1}, 0x3f80', f'v_lshlrev_b32 v{TQ}, v{TQ}, v{TQ+1}',
               f'v_bfe_u32 v{TQ+1}, v{vLANE16}, 5, 3']
        for dd in range(4):
            c3p.append(f'v_cmp_eq_u32 vcc, {dd}, v{TQ+1}\nv_cndmask_b32 v{SM+dd}, 0, v{TQ}, vcc')
        c3p.append(f'v_mfma_f32_16x16x32_bf16 v[{DD}:{DD+3}], v[{CD}:{CD+3}], v[{SM}:{SM+3}], 0')
        c3q = [f'v_add_f32 v{DD}, v{DD}, v{DD+1}', f'v_add_f32 v{DD+2}, v{DD+2}, v{DD+3}', f'v_add_f32 v{DD}, v{DD}, v{DD+2}',
               f'v_mov_b32 v{DD+1}, v{DD}', f'v_lshrrev_b32 v{TQ}, 2, v{vLANE16}', f'v_permlane16_swap_b32 v{DD}, v{DD+1}', f'v_add_f32 v{DD}, v{DD}, v{DD+1}',
               f'v_mov_b32 v{DD+1}, v{DD}', 's_nop 0', f'v_permlane32_swap_b32 v{DD}, v{DD+1}', f'v_add_f32 v{DD}, v{DD}, v{DD+1}',
               f's_mov_b64 exec, 0xff\nbuffer_store_dword v{DD}, v{TQ}, s[{sWS}:{sWS+3}], s46 offen sc0 sc1\ns_mov_b64 exec, -1']
    for kind, u_ in X.get('pf', ()):
        tops[u_] = (tops[u_][0], tops[u_][1] + pf_ops(kind))
    p4set = [f'v_add_u32 v{vA[2]}, {2*SLOT}, v{vA[2]}', f'v_add_u32 v{vA[3]}, {2*SLOT}, v{vA[3]}',
             f'v_add_u32 v{vB[0]}, {2*SLOT}, v{vLANE16}', f'v_add_u32 v{vB[1]}, {2*SLOT + 16384}, v{vLANE16}',
             f's_lshl_b32 s{t0}, s{sRH}, 14\ns_lshl_b32 s{t1}, s{sHD}, 12\ns_add_u32 s{t0}, s{t0}, s{t1}\ns_add_u32 s{t0}, s{t0}, {2*SLOT}',
             f'v_add_u32 v{vKA[0]}, s{t0}, v{vLANE16}']
    if R16:
        p4set = [f'v_add_u32 v{vAH[1][nt]}, {4*SLOT}, v{vA[nt]}' for nt in range(4)] + \
                [f'v_and_b32 v{vB[0]}, 0x7ff, v{vB[0]}', f'v_add_u32 v{vB[1]}, {2*SLOT + 16384}, v{vB[0]}', f'v_add_u32 v{vB[0]}, {2*SLOT}, v{vB[0]}'] + p4set[4:]
        p4late = []
        if VTR:
            p4set = [f'v_add_u32 v{vAH[1][3]}, {4*SLOT}, v{vA[3]}'] + [f'v_xor_b32 v{vAH[1][nt]}, {(3 ^ nt) << 5}, v{vAH[1][3]}' for nt in range(3)] + \
                    [f'v_and_b32 v{vB[0]}, 0x7ff, v{vB[0]}', f'v_add_u32 v{vB[0]}, {2*SLOT}, v{vB[0]}'] + p4set[7:]
            p4late = [f'v_add_u32 v{vB[1]}, 16384, v{vB[0]}'] + [f'v_xor_b32 v{vA[nt]}, {(3 ^ nt) << 5}, v{vA[3]}' for nt in range(3)]
        x2at = X.get('x2at', 5)
        plan4 = plan16(1, X.get('sl4', list(range(AF, 256, 4)) if C3 != 2 else list(range(AF, 252, 4)) + [140]), {s_: (8*x2at if s_ >= 8 else -1) for s_ in range(16)})
    I(f'v_mov_b32 v{vT1}, v{vT0}')
    I(f'v_permlane32_swap_b32 v{vT0}, v{vT1}')
    I(f'v_max_f32 v{vT0}, v{vT0}, v{vT1}')
    I(f'v_mul_f32 v{vNEGM}, s51, v{vT0}')
    I(f'v_sub_f32 v{vNEGM}, {OFFS}, v{vNEGM}')
    lred = [f'v_add_f32 v{vL[0]}, v{vL[0]}, v{vL[1]}', f'v_add_f32 v{vL[2]}, v{vL[2]}, v{vL[3]}', f'v_add_f32 v{vL[0]}, v{vL[0]}, v{vL[2]}',
            f'v_mov_b32 v{vL[1]}, v{vL[0]}', 's_nop 1', f'v_permlane32_swap_b32 v{vL[0]}, v{vL[1]}', f'v_add_f32 v{vL[1]}, v{vL[0]}, v{vL[1]}', f'v_rcp_f32 v{vL[0]}, v{vL[1]}']
    for u in range(8):
        extra = []
        if u == 0 and 'late0' in X:
            sm = s_mfmas(1)
            pv = p_ops(0, 0) + p_ops(0, 1) + p_ops(0, 2)[:14]
            n0 = X['late0']
            for s in merge(sm[:n0], pv[:len(pv)*n0//16]): I(s)
            a.wait_tags(tops[0][0])
            I('s_barrier')
            for s in merge(sm[n0:], tops[0][1] + v_reads(0), pv[len(pv)*n0//16:]): I(s)
            rest = p_ops(u, 2)[14:] + p_ops(u, 3)
            nxt = p_ops(1, 0)
            side = {0: rest[:18], 1: rest[18:36], 2: rest[36:] + nxt[:10], 3: nxt[10:]}
        elif tops[u] is not None:
            a.wait_tags(tops[u][0])
            if not ('nobar' in X and u > 0): I('s_barrier')
            extra = tops[u][1]
        if 'aprio' in X: I(f's_setprio {X["aprio"][u]}')
        if 'ast' in X: st()
        if u == 0: extra = extra + v_reads(0)
        nxt = p_ops(u+1, 0) if u < 7 else []
        if u == 0 and 'late0' in X:
            pass
        elif u == 0:
            sm = s_mfmas(u+1)
            for s in merge(sm, extra, p_ops(u, 0) + p_ops(u, 1) + p_ops(u, 2)[:14]): I(s)
            rest = p_ops(u, 2)[14:] + p_ops(u, 3)
            side = {0: rest[:18], 1: rest[18:36], 2: rest[36:] + nxt[:10], 3: nxt[10:]}
        elif u < 7:
            sm = s_mfmas(u+1)
            for s in merge(sm, extra, p_ops(u, 1) + p_ops(u, 2)): I(s)
            p3 = p_ops(u, 3)
            side = {0: p3[:14], 1: p3[14:], 2: nxt[:14], 3: nxt[14:]}
        else:
            for s in extra: I(s)
            side = {0: p_ops(u, 1) + p4set[:3], 1: p_ops(u, 2) + p4set[3:], 2: p_ops(u, 3), 3: []}
        for j in range(4):
            kap = 4*u + j
            pre = v_reads(kap+1) if kap < 31 else []
            sd = side[j]
            if u == 7 and j == 3:
                sd = lred + [f'v_cmp_nle_f32 vcc, v{vL[1]}, {X.get("thr", "1.0")}'] + (p4late if R16 else [])
                pre = a_reads(1, 0, 0) + a_reads(1, 0, 1)
                if R16: pre = sum([ld16(1, fr, plan4[2]) for fr in plan4[1][-1] if fr[1] == 'A'], [])
            if 'pp' in X:
                pq = X['pp'][2+j] if u < 7 else 3-j
                if pq is not None: I(f's_setprio {pq}')
            for s in merge(pv_mfmas(u, j), pre, sd): I(s)
    a.lg_extra = a.lg_keep = 0
    I('s_nop 1')
    I('s_cbranch_vccnz K1_fb')
    a.out.append('K1_fbr:')
    f = Asm(); F = f.I
    KFb, St, VFb = 96, 64, 128
    vKa, vKb, vM = vKA[1], vKA[2], vKA[3]
    f.raw('K1_fb:')
    F('s_nop 15'); F('s_nop 15')
    F(f'v_lshrrev_b32 v{vT0}, 4, v{vLANE16}')
    F(f'v_and_b32 v{vT1}, 31, v{vT0}')
    F(f'v_lshlrev_b32 v{vT1}, 8, v{vT1}')
    F(f'v_lshrrev_b32 v{vT0}, 5, v{vT0}')
    F(f'v_lshl_add_u32 v{vT1}, v{vT0}, 4, v{vT1}')
    F(f's_lshl_b32 s40, s{sRH}, 7')
    F(f'v_add_u32 v{vKa}, s40, v{vT1}')
    F(f'v_xor_b32 v{vKb}, 0x80, v{vKa}')
    F(f'v_mov_b32 v{vM}, 0xff800000')
    def fb_s():
        for s_ in range(8):
            F(f'buffer_load_dwordx4 v[{KFb+4*s_}:{KFb+4*s_+3}], v{vKa if s_ < 4 else vKb}, s[{sK}:{sK+3}], s41 offen offset:{32*(s_ & 3)}')
    def fb_mf():
        for s_ in range(8):
            cc = '0' if s_ == 0 else f'v[{St}:{St+15}]'
            F(f'v_mfma_f32_32x32x16_bf16 v[{St}:{St+15}], v[{KFb+4*s_}:{KFb+4*s_+3}], v[{QF2+4*s_}:{QF2+4*s_+3}], {cc}')
    F(f's_sub_u32 s41, s{sBK}, s{sW4K}')
    F('s_mov_b32 s40, 0')
    f.label('K1_fb1')
    fb_s()
    F('s_waitcnt vmcnt(0)')
    fb_mf()
    for i in range(8):
        F(f'v_max3_f32 v{vM}, v{St+2*i}, v{St+2*i+1}, v{vM}')
    F('s_add_u32 s41, s41, 8192')
    F('s_add_u32 s40, s40, 1')
    F('s_cmp_lt_u32 s40, 16')
    F('s_nop 7')
    F('s_cbranch_scc1 K1_fb1')
    F(f'v_mov_b32 v{vT1}, v{vM}')
    F(f'v_permlane32_swap_b32 v{vM}, v{vT1}')
    F(f'v_max_f32 v{vM}, v{vM}, v{vT1}')
    F(f'v_mul_f32 v{vNEGM}, s51, v{vM}')
    F(f'v_sub_f32 v{vNEGM}, 0, v{vNEGM}')
    for i in range(64): F(f'v_mov_b32 v{ACC+i}, 0')
    for l in vL: F(f'v_mov_b32 v{l}, 0')
    F(f's_sub_u32 s41, s{sBK}, s{sW4K}')
    if VTR:
        F(f'v_bfe_u32 v{vT0}, v{vLANE16}, 4, 5')
        F(f'v_and_b32 v{vM}, 0x13, v{vT0}')
        F(f'v_bfe_u32 v{vT1}, v{vT0}, 2, 1')
        F(f'v_lshl_or_b32 v{vM}, v{vT1}, 3, v{vM}')
        F(f'v_bfe_u32 v{vT1}, v{vT0}, 3, 1')
        F(f'v_lshl_or_b32 v{vM}, v{vT1}, 2, v{vM}')
        F(f'v_lshlrev_b32 v{vM}, 1, v{vM}')
        F(f'v_lshrrev_b32 v{vT1}, 9, v{vLANE16}')
        F(f'v_lshl_add_u32 v{vM}, v{vT1}, 10, v{vM}')
        F('s_mov_b32 s40, 0')
        f.label('K1_fb2')
        fb_s()
        F('s_waitcnt vmcnt(0)')
        fb_mf()
        for j in range(2):
            for s_ in p_ops(0, j): F(s_)
        F('s_nop 15')
        for j in range(2):
            F(f's_add_u32 s42, s41, {4096*j}')
            for mt in range(4):
                for e in range(8):
                    F(f'buffer_load_ushort v{KFb+8*mt+e}, v{vM}, s[{sV}:{sV+3}], s42 offen offset:{(8*(e >> 2) + (e & 3))*256 + 64*mt}')
            F('s_waitcnt vmcnt(0)')
            for i in range(16):
                F(f'v_lshl_or_b32 v{VFb+i}, v{KFb+2*i+1}, 16, v{KFb+2*i}')
            for mt in range(4):
                d = ACC + 16*mt
                F(f'v_mfma_f32_32x32x16_bf16 v[{d}:{d+15}], v[{VFb+4*mt}:{VFb+4*mt+3}], v[{St+8*j}:{St+8*j+3}], v[{d}:{d+15}]')
            F('s_nop 15')
        F('s_add_u32 s41, s41, 8192')
        F('s_add_u32 s40, s40, 1')
        F('s_cmp_lt_u32 s40, 16')
        F('s_nop 15'); F('s_nop 15')
        F('s_cbranch_scc1 K1_fb2')
        for s_ in lred: F(s_)
        F('s_nop 15'); F('s_nop 15')
        F('s_branch K1_fbr')
        rare_v = list(f.out)
    F(f's_sub_u32 s42, s{sBV}, s{sW4K}')
    F('s_mov_b32 s40, 0')
    f.label('K1_fb2')
    fb_s()
    F('s_add_u32 s43, s42, 4096')
    for j in range(2):
        for mt in range(4):
            d = VFb + 16*j + 4*mt
            F(f'buffer_load_dwordx4 v[{d}:{d+3}], v{vLANE16}, s[{sWS}:{sWS+3}], s{42+j} offen offset:{1024*mt}')
    F('s_waitcnt vmcnt(0)')
    fb_mf()
    for j in range(2):
        for s_ in p_ops(0, j): F(s_)
    for j in range(2):
        for mt in range(4):
            d = ACC + 16*mt
            F(f'v_mfma_f32_32x32x16_bf16 v[{d}:{d+15}], v[{VFb+16*j+4*mt}:{VFb+16*j+4*mt+3}], v[{St+8*j}:{St+8*j+3}], v[{d}:{d+15}]')
    F('s_add_u32 s41, s41, 8192')
    F('s_add_u32 s42, s42, 8192')
    F('s_add_u32 s40, s40, 1')
    F('s_cmp_lt_u32 s40, 16')
    F('s_nop 15'); F('s_nop 15')
    F('s_cbranch_scc1 K1_fb2')
    for s_ in lred: F(s_)
    F('s_nop 15'); F('s_nop 15')
    F('s_branch K1_fbr')
    rare = rare_v if VTR else f.out
    st()
    OWN = 32; ACC4 = 64
    def norm(q):
        L = []
        for j in range(4*q, 4*q+4):
            L.append(f'v_mul_f32 v{ACC+2*j}, v{ACC+2*j}, v{vL[0]}')
            L.append(f'v_mul_f32 v{ACC+2*j+1}, v{ACC+2*j+1}, v{vL[0]}')
        for j in range(4*q, 4*q+4):
            L.append(f'v_cvt_pk_bf16_f32 v{OWN+j}, v{ACC+2*j}, v{ACC+2*j+1}')
        L.append(f'ds_write_b128 v{vKA[0]}, v[{OWN+4*q}:{OWN+4*q+3}] offset:{(q >> 2)*32768 + 1024*(q & 3)}')
        return L
    for q in range(4):
        for s in norm(q): I(s)
    I('s_waitcnt lgkmcnt(0)')
    I('s_barrier')
    if R16:
        for fr in plan4[1][-1]:
            if fr[1] == 'B':
                for s in ld16(1, fr, plan4[2]): I(s)
    else:
        for s in ([b_read(0, 0), b_read(0, 1)] if not SK else [b_read(0, 0)]): I(s)
    for s in norm(4): I(s)
    st()
    side = {0: norm(5), 1: norm(6), 2: norm(7)}
    addr = [f's_lshl_b32 s{t0}, s{sG}, 21\ns_lshl_b32 s{t1}, s{sRB}, 16\ns_add_u32 s{t0}, s{t0}, s{t1}\ns_add_u32 s{t0}, s{t0}, s{sW4K}\ns_add_u32 s{t0}, s{t0}, {WS_P:#x}\ns_add_u32 s{t1}, s{t0}, 32768']
    if X.get('pl'):
        pb_, sg_, sr_ = X['pl']
        addr = [f's_mul_i32 s{t0}, s{sG}, {sg_}\ns_mul_i32 s{t1}, s{sRB}, {sr_}\ns_add_u32 s{t0}, s{t0}, s{t1}\ns_add_u32 s{t0}, s{t0}, s{sW4K}\ns_add_u32 s{t0}, s{t0}, {pb_:#x}\ns_add_u32 s{t1}, s{t0}, 32768']
    side[3] = addr
    if C3:
        side[X.get('c3k', 6)] = c3p; side[X.get('c3k', 6) + 2] = c3q
    if C3 == 2:
        k_ = X.get('m2k', 10)
        side[k_] = m2a; side[k_+1] = m2b[:8]; side[k_+2] = m2b[8:]; side[k_+3] = m2c[:8]; side[k_+4] = m2c[8:]; side[k_+5] = m2d
    def stq(q):
        so = f's{t0}' if q < 4 else f's{t1}'
        return [f'v_cvt_pk_bf16_f32 v{OWN+j}, v{ACC4+2*j}, v{ACC4+2*j+1}' for j in range(4*q, 4*q+4)] + \
               [f'buffer_store_dwordx4 v[{OWN+4*q}:{OWN+4*q+3}], v{vLANE16}, s[{sWS}:{sWS+3}], {so} offen offset:{1024*(q%4)}']
    if R16:
        if X.get('sk16'):
            pk0 = pack16(OWN, ACC4, 0)
            k0_ = 16 + X['sk16']
            lst = []
            for q in range(4):
                lst += pk0[q] + [f'buffer_store_dwordx4 v[{OWN+4*q}:{OWN+4*q+3}], v{vLANE16}, s[{sWS}:{sWS+3}], s{t0} offen offset:{1024*q}']
            nsp = X.get('sksp', 2)
            for i_, part in enumerate(split(lst, nsp)): side[k0_ + i_] = side.get(k0_ + i_, []) + part
        gemm16(1, ACC4, {}, side, {x2at}, plan4)
    elif SK:
        gemm_skew(ACC4, side, {5}, stq(0) + stq(1) + stq(2) + stq(3))
    else:
        gemm_phase(1, ACC4, {}, side, set() if 'nox2' in X else ({X['x2at']} if isinstance(X, dict) and 'x2at' in X else {5}))
    st()
    pace = X.get('pace') if isinstance(X, dict) else None
    def stores(pc):
        for j in range(16 if SK else 0, 32):
            I(f'v_cvt_pk_bf16_f32 v{OWN+j}, v{ACC4+2*j}, v{ACC4+2*j+1}')
            if j % 4 == 3:
                q = j // 4
                so = f's{t0}' if q < 4 else f's{t1}'
                if pc is not None and q > pc: I(f's_waitcnt vmcnt({pc})')
                I(f'buffer_store_dwordx4 v[{OWN+4*q}:{OWN+4*q+3}], v{vLANE16}, s[{sWS}:{sWS+3}], {so} offen offset:{1024*(q%4)}')
    if R16:
        pk = pack16(OWN, ACC4, 0) + pack16(OWN+16, ACC4, 1)
        q0_ = 4 if X.get('sk16') else 0
        for s in pk[q0_][:4]: I(s)
        for q in range(q0_, 8):
            if q < 7:
                for s in pk[q+1][:4]: I(s)
            for s in pk[q][4:]: I(s)
            so = f's{t0}' if q < 4 else f's{t1}'
            I(f'buffer_store_dwordx4 v[{OWN+4*q}:{OWN+4*q+3}], v{vLANE16}, s[{sWS}:{sWS+3}], {so} offen offset:{1024*(q%4)}')
    elif pace is not None:
        I(f's_cmp_ge_u32 s{sW}, 4')
        I('s_cbranch_scc1 K1_st2')
        I('s_nop 15')
        stores(pace)
        I('s_branch K1_st3')
        a.label('K1_st2')
        I('s_nop 15')
        stores(None)
        a.label('K1_st3')
    else:
        stores(None)
    if stamps:
        I(f'v_lshrrev_b32 v{vT3}, 4, v{vLANE16}')
        st.flush(sWS, sW, 200, vT3)
    a.label('K1_end')
    I('s_endpgm')
    a.out += rare
    print("K1 instrs", a.ninstr, "nops", a.nnop)
    return a.text(), kernel_desc(name, 256, 102)
```
